```python
import torch

def _softmax(x, axis=-1):
    return torch.softmax(x, dim=axis)
def _gelu(x):
    return torch.nn.functional.gelu(x, approximate="tanh")
def _silu(x):
    return torch.nn.functional.silu(x)
def _sigmoid(x):
    return torch.sigmoid(x)
def _layernorm(x, axis=-1, eps=1e-5):
    m = x.mean(dim=axis, keepdim=True)
    v = x.var(dim=axis, keepdim=True, unbiased=False)
    return (x - m) / torch.sqrt(v + eps)
def _scatter_add(tgt, idx, src, axis=0):
    return tgt.clone().index_add_(axis, idx, src)
def _segment_sum(src, seg, n):
    out = torch.zeros((n,) + src.shape[1:], dtype=src.dtype)
    return out.index_add_(0, seg, src)
def _pad(x, pw):
    flat = tuple(v for pair in reversed(pw) for v in pair)
    return torch.nn.functional.pad(x, flat)

kernel_name = 'gated_mix__grouped_kv_mqa__spectral_gfnet__prompt'

def setup_inputs():

    _w = (lambda a: (lambda t: t.to(torch.bfloat16) if t.is_floating_point() else t)(torch.as_tensor(a)))
    def _A_setup():
        B, S, D, H = 1, 2048, 512, 32
        Dh = D // H
        return {
            "x": _w((lambda *s: torch.randn(*s, dtype=torch.bfloat16) * 0.05)(B, S, D)),
            "wq": _w((lambda *s: torch.randn(*s, dtype=torch.bfloat16) * 0.8)(D, H * Dh)),
            "wk": _w((lambda *s: torch.randn(*s, dtype=torch.bfloat16) * 0.8)(D, Dh)),
            "wv": _w((lambda *s: torch.randn(*s, dtype=torch.bfloat16) * 0.05)(D, Dh)),
            "wo": _w((lambda *s: torch.randn(*s, dtype=torch.bfloat16) * 0.05)(H * Dh, D)),
        }
    _A_in = _A_setup()

    def _B_setup():
        B, S, D = 1, 2048, 512
        Df = D // 2 + 1
        return {
            "x": _w((lambda *s: torch.randn(*s, dtype=torch.bfloat16) * 0.05)(B, S, D)),
            "w_r": _w((lambda *s: torch.randn(*s, dtype=torch.bfloat16) * 0.4)(S, Df) * 0.02),
            "w_i": _w((lambda *s: torch.randn(*s, dtype=torch.bfloat16) * 0.8)(S, Df) * 0.02),
        }
    _B_in = _B_setup()

    return {
        "A_x": _A_in["x"],
        "A_wq": _A_in["wq"],
        "A_wk": _A_in["wk"],
        "A_wv": _A_in["wv"],
        "A_wo": _A_in["wo"],
        "B_x": _B_in["x"],
        "B_w_r": _B_in["w_r"],
        "B_w_i": _B_in["w_i"],
        "gate_w": _w((lambda *s: torch.randn(*s, dtype=torch.bfloat16) * 0.05)(512) * 16.0),
    }

def reference(A_x, A_wq, A_wk, A_wv, A_wo, B_x, B_w_r, B_w_i, gate_w):
    def _A_ref(x, wq, wk, wv, wo):
        B, S, D = x.shape
        H = 32
        Dh = D // H
        q = (lambda x, *d: x.permute(*d))((x @ wq).reshape(B, S, H, Dh), 0, 2, 1, 3)
        k = x @ wk
        v = x @ wv
        scores = torch.einsum("bhqd,bkd->bhqk", q, k) * (Dh ** -0.5)
        p = _softmax(scores, axis=-1)
        o = torch.einsum("bhqk,bkd->bhqd", p, v)
        return (lambda x, *d: x.permute(*d))(o, 0, 2, 1, 3).reshape(B, S, H * Dh) @ wo

    def _B_ref(x, w_r, w_i):
        B, S, D = x.shape
        X = (lambda x, axes=(-2,-1): torch.fft.rfft2(x.float(), dim=axes))(x, axes=(-2, -1))
        W = w_r + 1j * w_i
        X = X * W
        y = (lambda x, s, axes=(-2,-1): torch.fft.irfft2(x, s=s, dim=axes).to(torch.bfloat16))(X, (S, D), axes=(-2, -1))
        return y

    x = A_x
    g = _sigmoid((x * gate_w).sum(-1, keepdims=True))
    a = _A_ref(x, A_wq, A_wk, A_wv, A_wo)
    b = _B_ref(x, B_w_r, B_w_i)
    return g * a + (1 - g) * b
```

```python
import numpy as np, sys, math

NAME = 'gated_mix__grouped_kv_mqa__spectral_gfnet__prompt'

WS_QS  = 0x000000
WS_KV  = 0x200000
WS_G   = 0x220000
WS_X1T = 0x300000
WS_O   = 0x500000
WS_Y1T = 0x700000
WS_WT  = 0x900000
WS_SIZE = 0xB10000

def bf16_bits(x):
    u = np.float32(x).view(np.uint32)
    r = ((u >> 16) & 1) + 0x7fff
    return int(((int(u) + int(r)) >> 16) & 0xffff)
def f32_bits(x):
    return int(np.float32(x).view(np.uint32))

class Asm:
    def __init__(self):
        self.lines = []
    def __call__(self, s):
        for l in s.strip('\n').split('\n'):
            self.lines.append('  ' + l.strip())
    def label(self, l):
        self.lines.append(l + ':')
    def raw(self, s):
        self.lines.append(s)
    def text(self):
        return '\n'.join(self.lines) + '\n'

def vr(b, n):
    return f'v[{b}:{b+n-1}]'
def sr(b, n):
    return f's[{b}:{b+n-1}]'

def srd(a, d, base, nbytes):
    a(f's_mov_b32 s{d}, s{base}')
    a(f's_mov_b32 s{d+1}, s{base+1}')
    a(f's_mov_b32 s{d+2}, {nbytes}')
    a(f's_mov_b32 s{d+3}, 0x20000')

def table_srd(a, d, label, nbytes, uniq):
    a(f's_getpc_b64 s[{d}:{d+1}]')
    a(f's_add_u32 s{d}, s{d}, {label}@rel32@lo+4')
    a(f's_addc_u32 s{d+1}, s{d+1}, {label}@rel32@hi+12')
    a(f's_mov_b32 s{d+2}, {nbytes}')
    a(f's_mov_b32 s{d+3}, 0x20000')

def kernel_header(a, name):
    a.raw(f'.globl {name}')
    a.raw('.p2align 8')
    a.raw(f'.type {name},@function')
    a.label(name)

def kernel_desc(a, name, vgpr, sgpr):
    acc = (vgpr + 3) // 4 * 4
    a.raw('.p2align 6')
    a.raw(f'.amdhsa_kernel {name}')
    a.raw(f'  .amdhsa_next_free_vgpr {vgpr}')
    a.raw(f'  .amdhsa_next_free_sgpr {sgpr}')
    a.raw(f'  .amdhsa_accum_offset {acc}')
    a.raw('  .amdhsa_group_segment_fixed_size 0')
    a.raw('  .amdhsa_kernarg_size 96')
    a.raw('  .amdhsa_user_sgpr_count 2')
    a.raw('  .amdhsa_user_sgpr_kernarg_segment_ptr 1')
    a.raw('  .amdhsa_system_sgpr_workgroup_id_x 1')
    a.raw('.end_amdhsa_kernel')

QSCALE = 0.25 * math.log2(math.e)

import os
RT = int(os.environ.get('RT', '0'))
ST = int(os.environ.get('ST', '0'))
def st_stamp(a, kid, i):
    if ST == kid:
        a(f's_memtime s[{64+2*i}:{65+2*i}]')
def st_dump(a, kid, s_w, n):
    if ST == kid:
        a('s_load_dwordx2 s[56:57], s[0:1], 88')
        a('s_waitcnt vmcnt(0)')
        a(f's_memtime s[{64+2*n}:{65+2*n}]')
        a('s_mov_b64 exec, 1')
        a('s_lshl_b32 s60, s2, 4')
        a(f's_add_u32 s60, s60, s{s_w}')
        a('s_lshl_b32 s60, s60, 6')
        a(f's_add_u32 s60, s60, {0xC00000}')
        a('s_waitcnt lgkmcnt(0)')
        a('s_mov_b32 s58, 0x1000000')
        a('s_mov_b32 s59, 0x20000')
        a('v_mov_b32 v0, 0')
        for i in range(n + 1):
            a(f'v_mov_b32 v2, s{64+2*i}')
            a(f'buffer_store_dword v2, v0, s[56:59], s60 offen offset:{4*i}')
            a('s_nop 1')
def rt_start(a):
    if RT:
        a('s_memrealtime s[70:71]')
def rt_end(a, kid, s_w):
    if RT:
        a('s_load_dwordx2 s[76:77], s[0:1], 88')
        a('s_waitcnt vmcnt(0)')
        a('s_memrealtime s[72:73]')
        a('s_mov_b64 exec, 1')
        a('s_lshl_b32 s74, s2, 4')
        a(f's_add_u32 s74, s74, s{s_w}')
        a('s_lshl_b32 s74, s74, 3')
        a(f's_add_u32 s74, s74, {0xD00000 + kid*0x40000}')
        a('s_waitcnt lgkmcnt(0)')
        a('s_mov_b32 s78, 0x1000000')
        a('s_mov_b32 s79, 0x20000')
        a('v_mov_b32 v0, 0')
        a('v_mov_b32 v2, s70')
        a('v_mov_b32 v3, s72')
        a('buffer_store_dwordx2 v[2:3], v0, s[76:79], s74 offen')

K1_SLOT = 24576
K1_R = 5
K1_KVB = K1_SLOT * K1_R
K1_LDS = K1_KVB + 33792

def gen_k1(a):
    kernel_header(a, 'k1_kernel')
    S_X, S_WQ, S_WK, S_WV, S_GT, S_WS = 4, 6, 8, 10, 12, 14
    R_X, R_B, R_WS, R_WK, R_WV, R_GT = 16, 20, 24, 28, 32, 36
    S_RG, S_CG, S_W, S_STEPB, S_T0, S_T1, S_SA, S_SB = 40, 41, 42, 43, 44, 45, 46, 47
    a('s_cmp_ge_u32 s2, 256')
    a('s_cbranch_scc1 K1_END')
    rt_start(a)
    st_stamp(a, 1, 0)
    a(f's_load_dwordx4 s[{S_X}:{S_X+3}], s[0:1], 0')
    a(f's_load_dwordx4 s[{S_WK}:{S_WK+3}], s[0:1], 16')
    a(f's_load_dwordx2 s[{S_GT}:{S_GT+1}], s[0:1], 64')
    a(f's_load_dwordx2 s[{S_WS}:{S_WS+1}], s[0:1], 88')
    a('v_lshrrev_b32 v1, 6, v0')
    a('v_and_b32 v0, 63, v0')
    a(f's_lshr_b32 s{S_RG}, s2, 4')
    a(f'v_readfirstlane_b32 s{S_W}, v1')
    if RT: a(f'v_readfirstlane_b32 s69, v1')
    a(f's_and_b32 s{S_CG}, s2, 15')
    a('s_waitcnt lgkmcnt(0)')
    st_stamp(a, 1, 1)
    srd(a, R_X, S_X, 2048 * 1024)
    srd(a, R_WS, S_WS, WS_SIZE)
    a(f's_cmp_ge_u32 s{S_W}, 4')
    a('s_cbranch_scc1 K1_KVWAVE')

    V_ACC = 0
    V_ACC = 64
    V_X = 96
    V_W = 112
    V_OA = 2
    V_OB = 6
    V_XA = 8
    V_WA = 12
    V_XC = 16
    V_WC = 20
    V_T = 24
    t = lambda i: f'v{V_T+i}'
    lane = 'v0'
    a(f'v_lshrrev_b32 {t(0)}, 3, {lane}')
    a(f'v_and_b32 {t(1)}, 7, {lane}')
    a(f'v_lshrrev_b32 {t(2)}, 4, {lane}')
    a(f'v_and_b32 {t(3)}, 31, {lane}')
    a(f'v_lshrrev_b32 {t(4)}, 5, {lane}')
    a(f'v_bfe_u32 {t(5)}, {lane}, 1, 3')
    a(f's_lshl_b32 s{S_T0}, s{S_W}, 12')
    a(f'v_lshlrev_b32 {t(6)}, 7, {t(3)}')
    a(f'v_add_u32 {t(6)}, s{S_T0}, {t(6)}')
    for ks in range(4):
        a(f'v_add_u32 {t(7)}, {2*ks}, {t(4)}')
        a(f'v_xor_b32 {t(7)}, {t(7)}, {t(5)}')
        a(f'v_lshl_add_u32 v{V_XA+ks}, {t(7)}, 4, {t(6)}')
    a(f's_cmp_ge_u32 s{S_CG}, 8')
    a('s_cbranch_scc1 K1_FTYPE')

    def dma_chunk(c):
        sl = c % K1_R
        a(f's_mov_b32 s{S_SA}, {c*128}')
        a(f's_mul_i32 s{S_SB}, s{S_STEPB}, {c}')
        for i in range(4):
            a(f's_add_u32 m0, s{S_T1}, {sl*K1_SLOT + i*1024}')
            a('s_nop 0')
            a(f'buffer_load_dwordx4 v{V_OA+i}, s[{R_X}:{R_X+3}], s{S_SA} offen lds')
        for i in range(2):
            a(f's_add_u32 m0, s{S_T0}, {sl*K1_SLOT + 16384 + i*1024}')
            a('s_nop 0')
            a(f'buffer_load_dwordx4 v{V_OB+i}, s[{R_B}:{R_B+3}], s{S_SB} offen lds')

    def main_loop(qtype):
        a(f's_lshl_b32 s{S_T1}, s{S_W}, 12')
        a(f's_lshl_b32 s{S_T0}, s{S_W}, 11')
        for c in range(K1_R):
            dma_chunk(c)
        st_stamp(a, 1, 2)
        for i in range(32):
            a(f'v_mov_b32 v{V_ACC+i}, 0')
        outstanding = K1_R
        for c in range(8):
            issued = min(8, K1_R + max(0, c - 1))
            a(f's_waitcnt vmcnt({6*(issued - c - 1)})')
            a('s_barrier')
            st_stamp(a, 1, 3 + c)
            if c >= 1 and c - 1 + K1_R < 8:
                dma_chunk(c - 1 + K1_R)
            sb = (c % K1_R) * K1_SLOT
            for ks in range(4):
                a(f'v_add_u32 v{V_XC+ks}, {sb}, v{V_XA+ks}')
            for tt in range(2 if qtype else 1):
                a(f'v_add_u32 v{V_WC+tt}, {sb}, v{V_WA+tt}')
            def reads(ks):
                a(f'ds_read_b128 {vr(V_X+4*ks,4)}, v{V_XC+ks}')
                for tt in range(2):
                    wb = V_W + 8*ks + 4*tt
                    if qtype:
                        a(f'ds_read_b64_tr_b16 {vr(wb,2)}, v{V_WC+tt} offset:{ks*2048}')
                        a(f'ds_read_b64_tr_b16 {vr(wb+2,2)}, v{V_WC+tt} offset:{ks*2048+512}')
                    else:
                        a(f'ds_read_b128 {vr(wb,4)}, v{V_WC} offset:{(2*ks+tt)*1024}')
            def mfmas(ks):
                for tt in range(2):
                    wb = V_W + 8*ks + 4*tt
                    acc = vr(V_ACC+16*tt, 16)
                    if qtype:
                        a(f'v_mfma_f32_32x32x16_bf16 {acc}, {vr(wb,4)}, {vr(V_X+4*ks,4)}, {acc}')
                    else:
                        a(f'v_mfma_f32_32x32x16_bf16 {acc}, {vr(V_X+4*ks,4)}, {vr(wb,4)}, {acc}')
            n = 5 if qtype else 3
            reads(0); reads(1); reads(2)
            a(f's_waitcnt lgkmcnt({2*n})'); mfmas(0)
            reads(3)
            a(f's_waitcnt lgkmcnt({2*n})'); mfmas(1)
            a(f's_waitcnt lgkmcnt({n})'); mfmas(2)
            a('s_waitcnt lgkmcnt(0)'); mfmas(3)

    srd(a, R_B, S_WQ, 512 * 1024)
    a(f's_mov_b32 s{S_STEPB}, 65536')
    a(f's_lshl_b32 s{S_T0}, s{S_RG}, 7')
    a(f's_lshl_b32 s{S_T1}, s{S_W}, 5')
    a(f's_add_u32 s{S_T0}, s{S_T0}, s{S_T1}')
    a(f'v_add_u32 {t(8)}, s{S_T0}, {t(0)}')
    for i in range(4):
        a(f'v_add_u32 {t(9)}, {4*i}, {t(2)}')
        a(f'v_and_b32 {t(9)}, 7, {t(9)}')
        a(f'v_xor_b32 {t(9)}, {t(9)}, {t(1)}')
        a(f'v_add_u32 {t(10)}, {8*i}, {t(8)}')
        a(f'v_lshlrev_b32 {t(10)}, 10, {t(10)}')
        a(f'v_lshl_add_u32 v{V_OA+i}, {t(9)}, 4, {t(10)}')
    a(f'v_and_b32 {t(9)}, 1, {t(2)}')
    a(f'v_lshlrev_b32 {t(9)}, 2, {t(9)}')
    a(f'v_xor_b32 {t(9)}, {t(9)}, {t(1)}')
    a(f'v_lshlrev_b32 {t(9)}, 4, {t(9)}')
    a(f's_lshl_b32 s{S_T0}, s{S_W}, 14')
    a(f's_lshl_b32 s{S_T1}, s{S_CG}, 7')
    a(f's_add_u32 s{S_T0}, s{S_T0}, s{S_T1}')
    a(f'v_lshl_add_u32 {t(10)}, {t(0)}, 10, {t(9)}')
    a(f'v_add_u32 v{V_OB}, s{S_T0}, {t(10)}')
    a(f'v_add_u32 v{V_OB+1}, 8192, v{V_OB}')
    a(f'v_bfe_u32 {t(9)}, {lane}, 2, 2')
    a(f'v_and_b32 {t(10)}, 3, {lane}')
    a(f'v_and_b32 {t(11)}, 1, {t(2)}')
    a(f'v_lshl_add_u32 {t(12)}, {t(4)}, 3, {t(9)}')
    a(f'v_lshlrev_b32 {t(12)}, 7, {t(12)}')
    a(f'v_lshrrev_b32 {t(13)}, 1, {t(10)}')
    a(f'v_lshl_add_u32 {t(12)}, {t(13)}, 3, {t(12)}')
    a(f'v_add_u32 {t(12)}, 16384, {t(12)}')
    a(f'v_and_b32 {t(13)}, 1, {t(10)}')
    a(f'v_lshl_add_u32 {t(13)}, {t(13)}, 1, {t(11)}')
    a(f'v_lshrrev_b32 {t(14)}, 1, {t(9)}')
    a(f'v_lshlrev_b32 {t(14)}, 2, {t(14)}')
    for tt in range(2):
        a(f'v_add_u32 {t(15)}, {4*tt}, {t(13)}')
        a(f'v_xor_b32 {t(15)}, {t(15)}, {t(14)}')
        a(f'v_lshl_add_u32 v{V_WA+tt}, {t(15)}, 4, {t(12)}')
    a(f's_lshl_b32 s{S_T0}, s{S_RG}, 7')
    a(f's_lshl_b32 s{S_T1}, s{S_W}, 5')
    a(f's_add_u32 s{S_T0}, s{S_T0}, s{S_T1}')
    a(f'v_add_u32 {t(15)}, s{S_T0}, {t(3)}')
    a(f'v_lshlrev_b32 {t(15)}, 10, {t(15)}')
    a(f'v_lshl_add_u32 {t(15)}, {t(4)}, 5, {t(15)}')
    a(f's_lshl_b32 s{S_T1}, s{S_CG}, 7')
    a(f'v_add_u32 {t(15)}, s{S_T1}, {t(15)}')
    main_loop(True)
    st_stamp(a, 1, 11)
    a(f's_mov_b32 s{S_T0}, {f32_bits(QSCALE)}')
    a('s_nop 15')
    for i in range(32):
        a(f'v_mul_f32 v{V_ACC+i}, s{S_T0}, v{V_ACC+i}')
    for i in range(16):
        a(f'v_cvt_pk_bf16_f32 v{V_X+i}, v{V_ACC+2*i}, v{V_ACC+2*i+1}')
    for tt in range(2):
        for q in range(2):
            a(f'buffer_store_dwordx4 {vr(V_X+8*tt+4*q,4)}, {t(15)}, s[{R_WS}:{R_WS+3}], 0 offen offset:{WS_QS + 64*tt + 16*q}')
    st_stamp(a, 1, 12)
    st_dump(a, 1, S_W, 13)
    rt_end(a, 0, 69)
    a('s_endpgm')

    a.label('K1_FTYPE')
    table_srd(a, R_B, 'TAB_F', 512 * 1024, 'f')
    a(f's_mov_b32 s{S_STEPB}, 8192')
    a(f's_sub_u32 s{S_CG}, s{S_CG}, 8')
    a(f's_lshr_b32 s{S_T0}, s{S_W}, 1')
    a(f's_lshl_b32 s{S_T1}, s{S_RG}, 1')
    a(f's_add_u32 s{S_T0}, s{S_T0}, s{S_T1}')
    a(f's_and_b32 s{S_T1}, s{S_W}, 1')
    a(f's_lshl_b32 s{S_SA}, s{S_T1}, 10')
    a(f's_add_u32 s{S_SA}, s{S_SA}, s{S_T0}')
    a(f'v_lshrrev_b32 {t(8)}, 2, {t(0)}')
    a(f'v_lshlrev_b32 {t(8)}, 4, {t(8)}')
    a(f'v_and_b32 {t(9)}, 3, {t(0)}')
    a(f'v_add_u32 {t(8)}, {t(8)}, {t(9)}')
    a(f'v_lshlrev_b32 {t(8)}, 5, {t(8)}')
    a(f'v_add_u32 {t(8)}, s{S_SA}, {t(8)}')
    for i in range(4):
        a(f'v_add_u32 {t(9)}, {4*i}, {t(2)}')
        a(f'v_and_b32 {t(9)}, 7, {t(9)}')
        a(f'v_xor_b32 {t(9)}, {t(9)}, {t(1)}')
        a(f'v_add_u32 {t(10)}, {128*i}, {t(8)}')
        if os.environ.get('CONTIG'):
            a(f'v_and_b32 {t(11)}, 31, {t(10)}')
            a(f'v_lshrrev_b32 {t(10)}, 5, {t(10)}')
            a(f'v_lshl_add_u32 {t(10)}, {t(11)}, 6, {t(10)}')
        a(f'v_lshlrev_b32 {t(10)}, 10, {t(10)}')
        a(f'v_lshl_add_u32 v{V_OA+i}, {t(9)}, 4, {t(10)}')
    a(f's_lshl_b32 s{S_SA}, s{S_CG}, 16')
    a(f's_lshl_b32 s{S_SB}, s{S_W}, 11')
    a(f's_add_u32 s{S_SA}, s{S_SA}, s{S_SB}')
    a(f'v_lshlrev_b32 {t(9)}, 4, {lane}')
    a(f'v_add_u32 v{V_OB}, s{S_SA}, {t(9)}')
    a(f'v_add_u32 v{V_OB+1}, 1024, v{V_OB}')
    a(f'v_add_u32 v{V_WA}, 16384, {t(9)}')
    a(f's_lshl_b32 s{S_SA}, s{S_CG}, 18')
    a(f's_lshl_b32 s{S_T0}, s{S_T0}, 7')
    a(f's_add_u32 s{S_SA}, s{S_SA}, s{S_T0}')
    a(f's_lshl_b32 s{S_T1}, s{S_T1}, 6')
    a(f's_add_u32 s{S_SA}, s{S_SA}, s{S_T1}')
    a(f's_add_u32 s{S_SA}, s{S_SA}, {WS_X1T}')
    a(f'v_lshlrev_b32 {t(15)}, 12, {t(3)}')
    a(f'v_lshl_add_u32 {t(15)}, {t(4)}, 5, {t(15)}')
    a(f'v_add_u32 {t(15)}, s{S_SA}, {t(15)}')
    a(f'v_add_u32 {t(14)}, {32*4096}, {t(15)}')
    main_loop(False)
    st_stamp(a, 1, 11)
    a('s_nop 15')
    for i in range(16):
        a(f'v_cvt_pk_bf16_f32 v{V_X+i}, v{V_ACC+2*i}, v{V_ACC+2*i+1}')
    for tt in range(2):
        for q in range(2):
            a(f'buffer_store_dwordx4 {vr(V_X+8*tt+4*q,4)}, {t(15-tt)}, s[{R_WS}:{R_WS+3}], 0 offen offset:{16*q}')
    st_stamp(a, 1, 12)
    st_dump(a, 1, S_W, 13)
    rt_end(a, 0, 69)
    a('s_endpgm')

    a.label('K1_KVWAVE')
    a(f's_cmp_ge_u32 s{S_CG}, 8')
    a('s_cbranch_scc1 K1_WTWAVE')
    srd(a, R_WK, S_WK, 16384)
    srd(a, R_WV, S_WV, 16384)
    srd(a, R_GT, S_GT, 1024)
    a(f'v_lshlrev_b32 v2, 4, {lane}')
    for i in range(16):
        a(f's_mov_b32 m0, {K1_KVB + i*1024}')
        a(f's_mov_b32 s{S_SA}, {i*1024}')
        a(f'buffer_load_dwordx4 v2, s[{R_WK}:{R_WK+3}], s{S_SA} offen lds')
        a(f's_mov_b32 m0, {K1_KVB + 16384 + i*1024}')
        a('s_nop 0')
        a(f'buffer_load_dwordx4 v2, s[{R_WV}:{R_WV+3}], s{S_SA} offen lds')
    a(f's_mov_b32 m0, {K1_KVB + 32768}')
    a('s_nop 0')
    a(f'buffer_load_dwordx4 v2, s[{R_GT}:{R_GT+3}], 0 offen lds')
    a(f'v_and_b32 v3, 15, {lane}')
    a(f'v_lshrrev_b32 v4, 4, {lane}')
    a(f's_lshl_b32 s{S_T0}, s{S_CG}, 4')
    a(f'v_add_u32 v5, s{S_T0}, v3')
    a('v_bfe_u32 v6, v5, 1, 3')
    a('v_lshlrev_b32 v7, 7, v5')
    for ks2 in range(2):
        a(f'v_add_u32 v8, {4*ks2}, v4')
        a('v_xor_b32 v8, v8, v6')
        a(f'v_lshl_add_u32 v{10+ks2}, v8, 4, v7')
    a(f'v_bfe_u32 v8, {lane}, 2, 2')
    a(f'v_and_b32 v9, 3, {lane}')
    a('v_lshl_add_u32 v8, v4, 3, v8')
    a('v_lshlrev_b32 v8, 5, v8')
    a('v_lshl_add_u32 v12, v9, 3, v8')
    a(f'v_add_u32 v12, {K1_KVB}, v12')
    a('v_lshlrev_b32 v13, 4, v4')
    a(f'v_add_u32 v13, {K1_KVB + 32768}, v13')
    for i in range(12):
        a(f'v_mov_b32 v{64+i}, 0')
    a('s_waitcnt vmcnt(0)')
    for c in range(8):
        a('s_barrier')
        sb = (c % K1_R) * K1_SLOT
        for ks2 in range(2):
            a(f'v_add_u32 v{14+ks2}, {sb}, v{10+ks2}')
        for ks2 in range(2):
            b = 80 + 16*ks2
            ko = (64*c + 32*ks2) * 32
            a(f'ds_read_b128 {vr(b,4)}, v{14+ks2}')
            a(f'ds_read_b64_tr_b16 {vr(b+4,2)}, v12 offset:{ko}')
            a(f'ds_read_b64_tr_b16 {vr(b+6,2)}, v12 offset:{ko+128}')
            a(f'ds_read_b64_tr_b16 {vr(b+8,2)}, v12 offset:{ko+16384}')
            a(f'ds_read_b64_tr_b16 {vr(b+10,2)}, v12 offset:{ko+16384+128}')
            a(f'ds_read_b128 {vr(b+12,4)}, v13 offset:{(64*c+32*ks2)*2}')
        for ks2 in range(2):
            b = 80 + 16*ks2
            a(f's_waitcnt lgkmcnt({6*(1-ks2)})')
            a(f'v_mfma_f32_16x16x32_bf16 v[64:67], {vr(b+4,4)}, {vr(b,4)}, v[64:67]')
            a(f'v_mfma_f32_16x16x32_bf16 v[68:71], {vr(b,4)}, {vr(b+8,4)}, v[68:71]')
            a(f'v_mfma_f32_16x16x32_bf16 v[72:75], {vr(b+12,4)}, {vr(b,4)}, v[72:75]')
    a('s_nop 15')
    a('v_cvt_pk_bf16_f32 v80, v64, v65')
    a('v_cvt_pk_bf16_f32 v81, v66, v67')
    a('v_cvt_pk_bf16_f32 v82, v68, v69')
    a('v_cvt_pk_bf16_f32 v83, v70, v71')
    a(f's_lshl_b32 s{S_T0}, s{S_RG}, 7')
    a(f's_lshl_b32 s{S_T1}, s{S_CG}, 4')
    a(f's_add_u32 s{S_T0}, s{S_T0}, s{S_T1}')
    a(f's_lshr_b32 s{S_T1}, s{S_T0}, 5')
    a(f's_lshl_b32 s{S_T1}, s{S_T1}, 11')
    a(f's_and_b32 s{S_SA}, s{S_CG}, 1')
    a(f's_lshl_b32 s{S_SA}, s{S_SA}, 9')
    a(f's_add_u32 s{S_T1}, s{S_T1}, s{S_SA}')
    a(f's_add_u32 s{S_T1}, s{S_T1}, {WS_KV}')
    a('v_lshlrev_b32 v8, 5, v3')
    a('v_lshl_add_u32 v8, v4, 3, v8')
    a(f'buffer_store_dwordx2 v[80:81], v8, s[{R_WS}:{R_WS+3}], s{S_T1} offen')
    a('v_and_b32 v8, 1, v4')
    a('v_lshrrev_b32 v9, 1, v4')
    a('v_lshlrev_b32 v8, 8, v8')
    a('v_lshl_add_u32 v8, v3, 4, v8')
    a('v_lshl_add_u32 v8, v9, 3, v8')
    a(f'buffer_store_dwordx2 v[82:83], v8, s[{R_WS}:{R_WS+3}], s{S_T1} offen offset:1024')
    a('v_cvt_pk_bf16_f32 v84, v72, v72')
    a('v_lshlrev_b32 v84, 16, v84')
    a(f's_mov_b32 s{S_SA}, {f32_bits(-math.log2(math.e))}')
    a(f'v_mul_f32 v84, s{S_SA}, v84')
    a('v_exp_f32 v84, v84')
    a('s_nop 0')
    a('v_add_f32 v84, 1.0, v84')
    a('v_rcp_f32 v84, v84')
    a('s_nop 0')
    a('v_cvt_pk_bf16_f32 v84, v84, v84')
    a('v_lshlrev_b32 v84, 16, v84')
    a(f'v_add_u32 v8, s{S_T0}, v3')
    a('v_lshlrev_b32 v8, 2, v8')
    a(f's_mov_b32 s{S_SA}, {WS_G}')
    a('s_mov_b64 exec, 0xffff')
    a(f'buffer_store_dword v84, v8, s[{R_WS}:{R_WS+3}], s{S_SA} offen')
    rt_end(a, 0, 69)
    a('s_endpgm')

    a.label('K1_WTWAVE')
    a(f's_load_dwordx4 s[{S_WK}:{S_WK+3}], s[0:1], 48')
    S_FB, S_G, S_FW = S_CG, S_STEPB, S_W
    a(f's_sub_u32 s{S_FB}, s{S_CG}, 8')
    a(f's_and_b32 s{S_G}, s{S_RG}, 3')
    a(f's_lshr_b32 s{S_FW}, s{S_RG}, 2')
    a(f'v_and_b32 v3, 15, {lane}')
    a(f'v_lshrrev_b32 v4, 4, {lane}')
    a(f's_lshl_b32 s{S_T0}, s{S_FW}, 4')
    a(f's_lshl_b32 s{S_T1}, s{S_G}, 8')
    a(f's_add_u32 s{S_T1}, s{S_T1}, s{S_T0}')
    a(f'v_add_u32 v5, s{S_T1}, v3')
    a(f'v_mul_u32_u24 v5, 514, v5')
    a('v_lshl_add_u32 v5, v4, 4, v5')
    a(f's_lshl_b32 s{S_T1}, s{S_FB}, 6')
    a(f'v_add_u32 v5, s{S_T1}, v5')
    a('v_lshlrev_b32 v6, 16, v4')
    a('v_lshl_add_u32 v6, v3, 4, v6')
    a(f's_mov_b32 s{S_GT}, 0x05040100')
    a(f's_mov_b32 s{S_GT+1}, 0x07060302')
    a('s_waitcnt lgkmcnt(0)')
    srd(a, R_WK, S_WK, 2048 * 514)
    srd(a, R_WV, S_WV, 2048 * 514)
    for part in range(2):
        for e in range(8):
            a(f's_mov_b32 s{S_SA}, {(16*(e>>2)+(e&3))*32896}')
            a(f'buffer_load_dwordx4 {vr(16+32*part+4*e,4)}, v5, s[{(R_WK,R_WV)[part]}:{(R_WK,R_WV)[part]+3}], s{S_SA} offen')
    a(f's_lshl_b32 s{S_T1}, s{S_FB}, 18')
    a(f's_lshl_b32 s{S_SA}, s{S_FW}, 11')
    a(f's_add_u32 s{S_T1}, s{S_T1}, s{S_SA}')
    a(f's_lshl_b32 s{S_SA}, s{S_G}, 8')
    a(f's_add_u32 s{S_T1}, s{S_T1}, s{S_SA}')
    a(f's_add_u32 s{S_T1}, s{S_T1}, {WS_WT}')
    for part in range(2):
        a(f's_waitcnt vmcnt(8)')
        ob = 80 + 32*part
        for ph in range(8):
            for q in range(4):
                lo = 16 + 32*part + 4*(2*q) + (ph >> 1); hi = 16 + 32*part + 4*(2*q+1) + (ph >> 1)
                a(f'v_perm_b32 v{ob+4*ph+q}, v{hi}, v{lo}, s{S_GT+(ph&1)}')
        for ph in range(8):
            a(f's_add_u32 s{S_SA}, s{S_T1}, {8192*ph}')
            a(f'buffer_store_dwordx4 {vr(ob+4*ph,4)}, v6, s[{R_WS}:{R_WS+3}], s{S_SA} offen offset:{1024*part}')
    a(f's_or_b32 s{S_SA}, s{S_FB}, s{S_G}')
    a(f's_cmp_lg_u32 s{S_SA}, 0')
    a('s_cbranch_scc1 K1_END2')
    a('v_lshl_add_u32 v5, v4, 8, v3')
    a(f'v_add_u32 v5, s{S_T0}, v5')
    a(f'v_mul_u32_u24 v5, 514, v5')
    for part in range(2):
        for e in range(8):
            a(f's_mov_b32 s{S_SA}, {(16*(e>>2)+(e&3))*32896}')
            a(f'buffer_load_ushort v{16+8*part+e}, v5, s[{(R_WK,R_WV)[part]}:{(R_WK,R_WV)[part]+3}], s{S_SA} offen offset:512')
    a(f'v_lshlrev_b32 v6, 4, {lane}')
    a(f's_lshl_b32 s{S_SA}, s{S_FW}, 11')
    a(f's_add_u32 s{S_SA}, s{S_SA}, {WS_WT + 256*8192}')
    a('s_waitcnt vmcnt(0)')
    for q in range(8):
        a(f'v_lshl_or_b32 v{8+q}, v{17+2*q}, 16, v{16+2*q}')
    for part in range(2):
        a(f'buffer_store_dwordx4 {vr(8+4*part,4)}, v6, s[{R_WS}:{R_WS+3}], s{S_SA} offen offset:{1024*part}')
    a.label('K1_END2')
    rt_end(a, 0, 69)
    a.label('K1_END')
    a('s_endpgm')
    return 144, (100 if (RT or ST) else 48)

def gen_tables(a):
    for j in range(512):
        a.raw(f'.set C{j}, {bf16_bits(0.0 if j in (128,384) else math.cos(2*math.pi*j/512))}')
    a.raw('.altmacro')
    a.raw('.macro EC a')
    a.raw('.short C\\a')
    a.raw('.endm')
    a.raw('.macro F8 mul, add, k0')
    for j in range(8):
        a.raw(f'EC %((\\mul*(\\k0+{j})+\\add)&511)')
    a.raw('.endm')
    a.raw('.p2align 8')
    a.raw('TAB_F:')
    a.raw('.set tI, 0')
    a.raw('.rept 32768')
    a.raw('  .set tL, tI & 63')
    a.raw('  .set tC, ((tI >> 12) << 6) + (((tI >> 6) & 1) << 5) + (tL & 31)')
    a.raw('  .set tK, (((tI >> 7) & 31) << 4) + ((tL >> 5) << 3)')
    a.raw('  .set tM, (tC >> 1) + ((tC == 1) & 256)')
    a.raw('  .set tA, ((tC & 1) << 7) & ((tC != 1) & 255)')
    a.raw('  F8 %tM, %tA, %tK')
    a.raw('  .set tI, tI + 1')
    a.raw('.endr')

def build(path, kernels=('k1','k2','k3')):
    import gen_k2
    a = Asm()
    hdr = open(f'cdna_kernels/{NAME}.s.ref').read().split('\n')
    for l in hdr:
        if l.startswith(';') and '@launch' not in l and 'Override launch' not in l and 'grid=ceil' not in l:
            a.raw(l)
    a.raw(f'; @launch kernel=k1_kernel grid=(256,1,1) block=(320,1,1) lds={K1_LDS}')
    if 'k2' in kernels:
        a.raw(f'; @launch kernel=k2_kernel grid=(256,1,1) block=(768,1,1) lds={gen_k2.K2_LDS}')
    if 'k3' in kernels:
        import gen_k3
        a.raw(f'; @launch kernel=k3_kernel grid=(256,1,1) block=(256,1,1) lds={gen_k3.K3_LDS}')
    a.raw('.amdgcn_target "amdgcn-amd-amdhsa--gfx950"')
    a.raw('.text')
    res = {}
    res['k1_kernel'] = gen_k1(a)
    if 'k2' in kernels:
        res['k2_kernel'] = gen_k2.gen_k2(a)
    if 'k3' in kernels:
        res['k3_kernel'] = gen_k3.gen_k3(a)
    a.raw('.section .rodata,"a"')
    for k, (v, s) in res.items():
        kernel_desc(a, k, v, s)
    gen_tables(a)
    if 'k2' in kernels:
        gen_k2.gen_tables_k2(a)
    if 'k3' in kernels:
        gen_k3.gen_tables_k3(a)
    open(path, 'w').write(a.text())

if __name__ == '__main__':
    ks = sys.argv[2].split(',') if len(sys.argv) > 2 else ('k1','k2','k3')
    build(sys.argv[1] if len(sys.argv) > 1 else 'k.s', ks)
```

```python
from gen import *

L_FLAG = 0
L_APR = 256;  L_API = L_APR + 5120
L_CPR = L_API + 5120; L_CPI = L_CPR + 4608
L_MRG = 20480
L_SP = L_MRG + 8 * 2560
K2_LDS = L_SP + 6 * 8192
assert L_CPI + 4608 <= L_MRG

YSCALE = 1.0 / 2048 / 256

import os
PROF = int(os.environ.get('PROF', '0'))
def gen_k2(a):
    kernel_header(a, 'k2_kernel')
    def stamp(i):
        if PROF:
            a(f's_memtime s[{50+2*i}:{51+2*i}]')
    def dump(n):
        if PROF:
            a('s_waitcnt lgkmcnt(0)')
            a('s_mul_i32 s48, s2, 12')
            a('s_add_u32 s48, s48, s28')
            a('s_lshl_b32 s48, s48, 6')
            a('s_add_u32 s48, s48, 0xC00000')
            a('s_mov_b32 s14, 0x1000000')
            a('v_mov_b32 v160, 0')
            for i in range(n):
                a(f'v_mov_b32 v161, s{50+2*i}')
                a(f'buffer_store_dword v161, v160, s[12:15], s48 offen offset:{4*i}')
                a('s_nop 1')
    stamp(0)
    S_WR, S_WI, S_WS = 4, 6, 8
    R_WS, R_WR, R_WI, R_TB = 12, 16, 20, 24
    S_W, S_T0, S_T1, S_T2, S_KOFF, S_CNT, S_KB, S_P, S_KH, S_F = 28, 29, 30, 31, 32, 33, 34, 35, 36, 37
    S_VM = 38
    S_C0 = 40; S_C1 = 42
    S_MH, S_NH, S_FW = 44, 45, 46
    a('s_cmp_ge_u32 s2, 256')
    a('s_cbranch_scc1 K2_END')
    rt_start(a)
    a(f's_load_dwordx2 s[{S_WS}:{S_WS+1}], s[0:1], 88')
    a('v_lshrrev_b32 v1, 6, v0')
    a('v_and_b32 v0, 63, v0')
    a('s_nop 0')
    a(f'v_readfirstlane_b32 s{S_W}, v1')
    a('s_waitcnt lgkmcnt(0)')
    srd(a, R_WS, S_WS, WS_SIZE)
    ws = f's[{R_WS}:{R_WS+3}]'
    a(f's_cmp_ge_u32 s{S_W}, 8')
    a('s_cbranch_scc1 K2_FFT')

    V_OQ, V_OV = 2, 3
    V_M = 4
    V_H = 6
    V_Q = 8
    V_S = 16
    V_P = 48
    V_O = 64
    V_K = 96
    V_V = 112
    V_T = 144
    a(f's_and_b32 s{S_P}, s{S_W}, 3')
    a(f's_lshr_b32 s{S_KH}, s{S_W}, 2')
    a('v_and_b32 v1, 31, v0')
    a(f'v_lshrrev_b32 v{V_H}, 5, v0')
    a(f'v_lshlrev_b32 v{V_OQ}, 5, v1')
    a(f'v_lshl_add_u32 v{V_OQ}, v{V_H}, 4, v{V_OQ}')
    a(f'v_and_b32 v{V_OV}, 15, v0')
    a(f'v_lshlrev_b32 v{V_OV}, 4, v{V_OV}')
    a(f'v_lshl_add_u32 v{V_OV}, v{V_H}, 8, v{V_OV}')
    a(f's_lshl_b32 s{S_T0}, s2, 3')
    a(f's_lshl_b32 s{S_T1}, s{S_P}, 1')
    a(f's_add_u32 s{S_T0}, s{S_T0}, s{S_T1}')
    a(f's_lshl_b32 s{S_T2}, s{S_T0}, 10')
    a(f'buffer_load_dwordx4 {vr(V_Q,4)}, v{V_OQ}, {ws}, s{S_T2} offen')
    a(f'buffer_load_dwordx4 {vr(V_Q+4,4)}, v{V_OQ}, {ws}, s{S_T2} offen offset:1024')
    a(f's_lshl_b32 s{S_KB}, s{S_KH}, 16')
    a(f's_add_u32 s{S_KB}, s{S_KB}, {WS_KV}')
    a(f's_mov_b32 s{S_VM}, 0xffff')
    a(f's_mov_b32 s{S_VM+1}, 0xffff')
    a(f'v_and_b32 v{V_T+1}, 27, v1')
    a(f'v_cmp_eq_u32 vcc, 16, v{V_T+1}')
    a(f'v_mov_b32 v{V_T+2}, 0x3f803f80')
    a(f'v_mov_b32 v{V_M}, 0')
    a(f'v_mov_b32 v{V_M+1}, 0')
    a(f'v_cndmask_b32 v{V_T+2}, 0, v{V_T+2}, vcc')
    for i in range(32):
        a(f'v_mov_b32 v{V_V+i}, v{V_T+2}')

    def load_k(slot, off):
        a(f'buffer_load_dwordx4 {vr(V_K+4*slot,4)}, v{V_OQ}, {ws}, s{S_KOFF} offen offset:{off}')
    def load_v(slot, off):
        a(f's_mov_b64 exec, s[{S_VM}:{S_VM+1}]')
        a(f'buffer_load_dwordx4 {vr(V_V+8*slot,4)}, v{V_OV}, {ws}, s{S_KOFF} offen offset:{off+1024}')
        a(f'buffer_load_dwordx4 {vr(V_V+8*slot+4,4)}, v{V_OV}, {ws}, s{S_KOFF} offen offset:{off+1536}')
        a('s_mov_b64 exec, -1')
    def mfma_s(t, slot):
        a(f'v_mfma_f32_32x32x16_bf16 {vr(V_S+16*t,16)}, {vr(V_K+4*slot,4)}, {vr(V_Q+4*t,4)}, 0')
    def mfma_pv(t, slot, pp):
        a(f'v_mfma_f32_32x32x16_bf16 {vr(V_O+16*t,16)}, {vr(V_V+8*slot+4*pp,4)}, {vr(V_P+8*t+4*pp,4)}, {vr(V_O+16*t,16)}')
    def cv(t, i):
        a(f'v_cvt_pk_bf16_f32 v{V_P+8*t+i}, v{V_S+16*t+2*i}, v{V_S+16*t+2*i+1}')

    def attn_pass(tag, sub, first):
        def ex(t, i):
            r = V_S + 16*t + i
            if sub:
                a(f'v_sub_f32 v{r}, v{r}, v{V_M+t}')
            a(f'v_exp_f32 v{r}, v{r}')
        a(f's_mov_b32 s{S_KOFF}, s{S_KB}')
        load_k(0, 0)
        for c in range(3):
            load_k(c + 1, 2048)
            load_v(c, 0)
            a(f's_add_u32 s{S_KOFF}, s{S_KOFF}, 2048')
        for i in range(32):
            a(f'v_mov_b32 v{V_O+i}, 0')
        for i in range(4):
            a(f'v_mov_b32 v{V_P+12+i}, 0')
        if first:
            a('s_barrier')
            stamp(1)
        a('s_waitcnt vmcnt(9)')
        mfma_s(0, 0)
        a(f's_mov_b32 s{S_CNT}, 8')
        if first: stamp(2)
        a('s_nop 10')
        a.label(f'K2_LOOP{tag}')
        for b in range(4):
            for t in range(2):
                ex(t, 0); ex(t, 1)
                if t == 1:
                    mfma_pv(0, b, 1)
                else:
                    mfma_pv(1, (b - 1) & 3, 1)
                ex(t, 2); ex(t, 3); ex(t, 4); ex(t, 5)
                if t == 1:
                    mfma_s(0, (b + 1) & 3)
                else:
                    mfma_s(1, b)
                ex(t, 6); ex(t, 7)
                cv(t, 0); cv(t, 1); cv(t, 2); cv(t, 3)
                if t == 0:
                    load_k(b, 2048)
                    load_v((b + 3) & 3, 0)
                    a(f's_add_u32 s{S_KOFF}, s{S_KOFF}, 2048')
                    a('s_waitcnt vmcnt(9)')
                ex(t, 8); ex(t, 9)
                mfma_pv(t, b, 0)
                for i in range(10, 16):
                    ex(t, i)
                cv(t, 4); cv(t, 5); cv(t, 6); cv(t, 7)
        a(f's_sub_u32 s{S_CNT}, s{S_CNT}, 1')
        a(f's_cmp_lg_u32 s{S_CNT}, 0')
        a(f's_cbranch_scc1 K2_LOOP{tag}')
        mfma_pv(1, 3, 1)
        a('s_waitcnt vmcnt(0)')
        a('s_nop 12')

    attn_pass('A', False, True)
    stamp(3)
    a(f's_mov_b32 s{S_T0}, {f32_bits(2.0**-30)}')
    a(f's_mov_b32 s{S_T1}, {f32_bits(2.0**30)}')
    a(f'v_cmp_le_f32 s[{S_C0}:{S_C0+1}], s{S_T0}, v{V_O+8}')
    a(f'v_cmp_ge_f32 s[{S_C1}:{S_C1+1}], s{S_T1}, v{V_O+8}')
    a(f's_and_b64 s[{S_C0}:{S_C0+1}], s[{S_C0}:{S_C0+1}], s[{S_C1}:{S_C1+1}]')
    a(f'v_cmp_le_f32 s[{S_C1}:{S_C1+1}], s{S_T0}, v{V_O+24}')
    a(f's_and_b64 s[{S_C0}:{S_C0+1}], s[{S_C0}:{S_C0+1}], s[{S_C1}:{S_C1+1}]')
    a(f'v_cmp_ge_f32 s[{S_C1}:{S_C1+1}], s{S_T1}, v{V_O+24}')
    a(f's_and_b64 s[{S_C0}:{S_C0+1}], s[{S_C0}:{S_C0+1}], s[{S_C1}:{S_C1+1}]')
    a(f's_cmp_eq_u64 s[{S_C0}:{S_C0+1}], -1')
    a('s_cbranch_scc1 K2_MERGE')
    a(f'v_mov_b32 v{V_M}, 0xff800000')
    a(f'v_mov_b32 v{V_M+1}, 0xff800000')
    a(f's_mov_b32 s{S_KOFF}, s{S_KB}')
    a(f's_mov_b32 s{S_CNT}, 32')
    a.label('K2_MAXLOOP')
    load_k(0, 0)
    a(f's_add_u32 s{S_KOFF}, s{S_KOFF}, 2048')
    a('s_waitcnt vmcnt(0)')
    mfma_s(0, 0)
    mfma_s(1, 0)
    a('s_nop 12')
    for t in range(2):
        for i in range(8):
            a(f'v_max3_f32 v{V_M+t}, v{V_S+16*t+2*i}, v{V_S+16*t+2*i+1}, v{V_M+t}')
    a(f's_sub_u32 s{S_CNT}, s{S_CNT}, 1')
    a(f's_cmp_lg_u32 s{S_CNT}, 0')
    a('s_cbranch_scc1 K2_MAXLOOP')
    for t in range(2):
        a(f'v_mov_b32 v{V_T+t}, v{V_M+t}')
    a('s_nop 1')
    for t in range(2):
        a(f'v_permlane32_swap_b32 v{V_M+t}, v{V_T+t}')
    a('s_nop 1')
    for t in range(2):
        a(f'v_max_f32 v{V_M+t}, v{V_M+t}, v{V_T+t}')
    attn_pass('B', True, False)

    a.label('K2_MERGE')
    a(f's_mul_i32 s{S_T0}, s{S_W}, 2560')
    a(f's_xor_b32 s{S_T1}, s{S_W}, 4')
    a(f's_mul_i32 s{S_T1}, s{S_T1}, 2560')
    a(f'v_lshlrev_b32 v{V_T}, 4, v0')
    a(f'v_add_u32 v{V_T+1}, s{S_T1}, v{V_T}')
    a(f'v_add_u32 v{V_T}, s{S_T0}, v{V_T}')
    a(f'v_lshlrev_b32 v{V_T+2}, 3, v0')
    a(f'v_add_u32 v{V_T+3}, s{S_T1}, v{V_T+2}')
    a(f'v_add_u32 v{V_T+2}, s{S_T0}, v{V_T+2}')
    a(f'v_lshlrev_b32 v{V_T+4}, 5, v1')
    a(f'v_lshl_add_u32 v{V_T+4}, v{V_H}, 3, v{V_T+4}')
    a(f's_lshl_b32 s{S_T0}, s{S_KH}, 10')
    a(f's_add_u32 s{S_T2}, s{S_T2}, s{S_T0}')
    a(f's_add_u32 s{S_T2}, s{S_T2}, {WS_O}')
    a(f's_cmp_eq_u32 s{S_KH}, 1')
    a('s_cbranch_scc1 K2_MERGE1')
    R = V_S
    for kh in range(2):
        if kh == 1:
            a.label('K2_MERGE1')
        snd = V_O + 16 * (1 - kh); kp = V_O + 16 * kh
        a(f'v_mov_b32 v{snd+9}, v{V_M+1-kh}')
        a(f'ds_write_b128 v{V_T}, {vr(snd,4)} offset:{L_MRG}')
        a(f'ds_write_b128 v{V_T}, {vr(snd+4,4)} offset:{L_MRG+1024}')
        a(f'ds_write_b64 v{V_T+2}, {vr(snd+8,2)} offset:{L_MRG+2048}')
        a('s_waitcnt lgkmcnt(0)')
        a('s_barrier')
        a(f'ds_read_b128 {vr(R,4)}, v{V_T+1} offset:{L_MRG}')
        a(f'ds_read_b128 {vr(R+4,4)}, v{V_T+1} offset:{L_MRG+1024}')
        a(f'ds_read_b64 {vr(R+8,2)}, v{V_T+3} offset:{L_MRG+2048}')
        a('s_waitcnt lgkmcnt(0)')
        mk = V_M + kh
        a(f'v_max_f32 v{R+10}, v{mk}, v{R+9}')
        a(f'v_sub_f32 v{R+11}, v{mk}, v{R+10}')
        a(f'v_sub_f32 v{R+12}, v{R+9}, v{R+10}')
        a(f'v_exp_f32 v{R+11}, v{R+11}')
        a(f'v_exp_f32 v{R+12}, v{R+12}')
        a('s_nop 0')
        a(f'v_mul_f32 v{R+13}, v{R+11}, v{kp+8}')
        a(f'v_fma_f32 v{R+13}, v{R+12}, v{R+8}, v{R+13}')
        a(f'v_rcp_f32 v{R+13}, v{R+13}')
        a('s_nop 0')
        a(f'v_mul_f32 v{R+11}, v{R+11}, v{R+13}')
        a(f'v_mul_f32 v{R+12}, v{R+12}, v{R+13}')
        for i in range(8):
            a(f'v_mul_f32 v{kp+i}, v{R+11}, v{kp+i}')
            a(f'v_fma_f32 v{kp+i}, v{R+12}, v{R+i}, v{kp+i}')
        for i in range(4):
            a(f'v_cvt_pk_bf16_f32 v{R+16+i}, v{kp+2*i}, v{kp+2*i+1}')
        a(f'buffer_store_dwordx2 {vr(R+16,2)}, v{V_T+4}, {ws}, s{S_T2} offen')
        a(f'buffer_store_dwordx2 {vr(R+18,2)}, v{V_T+4}, {ws}, s{S_T2} offen offset:16')
        stamp(4)
        dump(5)
        rt_end(a, 1, S_W)
        a('s_endpgm')

    a.label('K2_FFT')
    V_I, V_G, V_L16, V_A1, V_A2, V_A3, V_Z = 1, 2, 3, 4, 5, 6, 7
    V_T1 = 8
    V_T2 = 56
    V_D = 80
    V_TW = 96
    V_X = 112
    V_W = 128
    V_AC = 144
    V_U = 160
    tb = f's[{R_TB}:{R_TB+3}]'
    wr = f's[{R_WR}:{R_WR+3}]'; wi = f's[{R_WI}:{R_WI+3}]'
    table_srd(a, R_TB, 'TAB_K2', 24576 + 6144 + 32768, 'k2')
    O_T1, O_T2, O_TW1, O_TW2 = 0, 24576, 30720, 30720 + 16384
    a(f's_sub_u32 s{S_FW}, s{S_W}, 8')
    a(f's_lshr_b32 s{S_MH}, s{S_FW}, 1')
    a(f's_and_b32 s{S_NH}, s{S_FW}, 1')
    a(f's_and_b32 s{S_T0}, s2, 7')
    a(f's_lshl_b32 s{S_T0}, s{S_T0}, 5')
    a(f's_lshr_b32 s{S_F}, s2, 3')
    a(f's_add_u32 s{S_F}, s{S_F}, s{S_T0}')
    a(f'v_and_b32 v{V_I}, 15, v0')
    a(f'v_lshrrev_b32 v{V_G}, 4, v0')
    a(f'v_lshlrev_b32 v{V_L16}, 4, v0')
    a(f'v_mov_b32 v{V_Z}, 0')
    a(f's_cmp_lg_u32 s{S_FW}, 0')
    a('s_cbranch_scc1 K2_F1')
    a(f'v_lshlrev_b32 v{V_U}, 2, v0')
    a(f'ds_write_b32 v{V_U}, v{V_Z} offset:{L_FLAG}')
    a('s_waitcnt lgkmcnt(0)')
    a.label('K2_F1')
    a('s_barrier')
    a(f'v_lshlrev_b32 v{V_A1}, 7, v{V_I}')
    a(f'v_lshl_add_u32 v{V_A1}, v{V_G}, 4, v{V_A1}')
    a(f's_lshl_b32 s{S_T0}, s{S_F}, 13')
    a(f's_lshl_b32 s{S_T1}, s{S_NH}, 11')
    a(f's_add_u32 s{S_T0}, s{S_T0}, s{S_T1}')
    a(f's_add_u32 s{S_T0}, s{S_T0}, {WS_X1T}')
    a(f's_add_u32 s{S_T1}, s{S_T0}, 4096')
    for part in range(2):
        for ks in range(2):
            a(f'buffer_load_dwordx4 {vr(V_D+8*part+4*ks,4)}, v{V_A1}, {ws}, s{S_T0+part} offen offset:{64*ks}')
    a(f's_mul_i32 s{S_T0}, s{S_MH}, 12288')
    for i in range(12):
        if i % 4 == 0 and i:
            a(f's_add_u32 s{S_T0}, s{S_T0}, 4096')
        a(f'buffer_load_dwordx4 {vr(V_T1+4*i,4)}, v{V_L16}, {tb}, s{S_T0} offen offset:{(i%4)*1024}')
    a(f's_lshl_b32 s{S_T2}, s{S_FW}, 12')
    a(f's_add_u32 s{S_T0}, s{S_T2}, {O_TW1}')
    for i in range(4):
        a(f'buffer_load_dwordx4 {vr(V_TW+4*i,4)}, v{V_L16}, {tb}, s{S_T0} offen offset:{i*1024}')
    a(f's_mov_b32 s{S_T0}, {O_T2}')
    a(f's_mov_b32 s{S_T1}, {O_T2+4096}')
    for i in range(6):
        a(f'buffer_load_dwordx4 {vr(V_T2+4*i,4)}, v{V_L16}, {tb}, s{S_T0+(i>>2)} offen offset:{(i%4)*1024}')
    a(f's_lshl_b32 s{S_T0}, s{S_FW}, 4')
    a(f'v_lshl_add_u32 v{V_A3}, v{V_G}, 8, v{V_I}')
    a(f'v_add_u32 v{V_A3}, s{S_T0}, v{V_A3}')
    a(f's_lshl_b32 s{S_T0}, s{S_F}, 13')
    a(f's_lshl_b32 s{S_T1}, s{S_FW}, 11')
    a(f's_add_u32 s{S_T1}, s{S_T1}, {WS_WT}')
    a(f's_add_u32 s{S_T0}, s{S_T0}, s{S_T1}')
    a(f's_add_u32 s{S_T1}, s{S_T1}, {256*8192}')
    for part in range(2):
        a(f'buffer_load_dwordx4 {vr(V_W+8*part+4,4)}, v{V_L16}, {ws}, s{S_T0} offen offset:{1024*part}')
    for part in range(2):
        a(f'buffer_load_dwordx4 {vr(V_X+8*part+4,4)}, v{V_L16}, {ws}, s{S_T1} offen offset:{1024*part}')
    stamp(1)

    def mf(d, x, y, c):
        cc = vr(d, 4) if c else '0'
        a(f'v_mfma_f32_16x16x32_bf16 {vr(d,4)}, {vr(x,4)}, {vr(y,4)}, {cc}')
    def t1(nt, ks, v): return V_T1 + 4 * ((nt * 2 + ks) * 3 + v)
    def t2(mt, v): return V_T2 + 4 * (mt * 3 + v)
    def cmul_pack(dst):
        for t_ in range(2):
            for r in range(4):
                ar, ai = V_AC + 8*t_ + r, V_AC + 8*t_ + 4 + r
                c_, s_ = V_TW + 8*t_ + r, V_TW + 8*t_ + 4 + r
                u = V_U + (r & 1) * 2
                a(f'v_mul_f32 v{u}, v{ar}, v{c_}')
                a(f'v_mul_f32 v{u+1}, v{ar}, v{s_}')
                a(f'v_fma_f32 v{ar}, -v{ai}, v{s_}, v{u}')
                a(f'v_fma_f32 v{ai}, v{ai}, v{c_}, v{u+1}')
        for i in range(8):
            a(f'v_cvt_pk_bf16_f32 v{dst+i}, v{V_AC+2*i}, v{V_AC+2*i+1}')
    def sync(i):
        a('s_waitcnt lgkmcnt(0)')
        a(f'v_mov_b32 v{V_U}, 1')
        a('s_mov_b64 exec, 1')
        a(f'ds_add_u32 v{V_Z}, v{V_U} offset:{L_FLAG+4*i}')
        a('s_mov_b64 exec, -1')
        a.label(f'K2_SY{i}')
        a(f'ds_read_b32 v{V_U}, v{V_Z} offset:{L_FLAG+4*i}')
        a('s_waitcnt lgkmcnt(0)')
        a(f'v_readfirstlane_b32 s{S_T0}, v{V_U}')
        a(f's_cmp_ge_u32 s{S_T0}, 4')
        a(f's_cbranch_scc1 K2_SD{i}')
        a('s_sleep 2')
        a(f's_branch K2_SY{i}')
        a.label(f'K2_SD{i}')

    a('s_waitcnt vmcnt(14)')
    zr = lambda ks: V_D + 4*ks
    zi = lambda ks: V_D + 8 + 4*ks
    for ks in range(2):
        for nt in range(2):
            mf(V_AC + 8*nt, zr(ks), t1(nt, ks, 0), ks)
            mf(V_AC + 8*nt + 4, zi(ks), t1(nt, ks, 0), ks)
        for nt in range(2):
            mf(V_AC + 8*nt, zi(ks), t1(nt, ks, 2), 1)
            mf(V_AC + 8*nt + 4, zr(ks), t1(nt, ks, 1), 1)
    a(f's_mul_i32 s{S_T0}, s{S_MH}, 2560')
    a(f's_lshl_b32 s{S_T1}, s{S_NH}, 3')
    a(f's_add_u32 s{S_T0}, s{S_T0}, s{S_T1}')
    a(f'v_mul_u32_u24 v{V_A1}, 80, v{V_I}')
    a(f'v_lshl_add_u32 v{V_A1}, v{V_G}, 4, v{V_A1}')
    a(f'v_add_u32 v{V_U+4}, s{S_T0}, v{V_A1}')
    a('s_waitcnt vmcnt(10)')
    a('s_nop 4')
    cmul_pack(V_D)
    for nt in range(2):
        a(f'ds_write_b64 v{V_U+4}, {vr(V_D+4*nt,2)} offset:{L_APR+1280*nt}')
        a(f'ds_write_b64 v{V_U+4}, {vr(V_D+4*nt+2,2)} offset:{L_API+1280*nt}')
    a(f's_add_u32 s{S_T0}, s{S_T2}, {O_TW2}')
    for i in range(4):
        a(f'buffer_load_dwordx4 {vr(V_TW+4*i,4)}, v{V_L16}, {tb}, s{S_T0} offen offset:{i*1024}')
    stamp(2)
    sync(0)
    a(f's_mul_i32 s{S_T0}, s{S_FW}, 1280')
    a(f'v_add_u32 v{V_U+4}, s{S_T0}, v{V_A1}')
    a(f'ds_read_b128 {vr(V_D,4)}, v{V_U+4} offset:{L_APR}')
    a(f'ds_read_b128 {vr(V_D+4,4)}, v{V_U+4} offset:{L_API}')
    a('s_waitcnt vmcnt(4) lgkmcnt(0)')
    for mt in range(2):
        mf(V_AC + 8*mt, t2(mt, 0), V_D, 0)
        mf(V_AC + 8*mt + 4, t2(mt, 0), V_D + 4, 0)
    for mt in range(2):
        mf(V_AC + 8*mt, t2(mt, 2), V_D + 4, 1)
        mf(V_AC + 8*mt + 4, t2(mt, 1), V_D, 1)
    def unpack(base):
        for part in range(2):
            b = base + 8*part
            for q in range(4):
                a(f'v_lshlrev_b32 v{b+2*q}, 16, v{b+4+q}')
                a(f'v_and_b32 v{b+2*q+1}, 0xffff0000, v{b+4+q}')
    unpack(V_W)
    a(f's_cmp_eq_u32 s{S_F}, 0')
    a('s_cbranch_scc1 K2_SPECIAL')
    for e in range(8):
        mt, r = e >> 2, e & 3
        ar, ai = V_AC + 8*mt + r, V_AC + 8*mt + 4 + r
        c_, s_ = V_W + e, V_W + 8 + e
        u = V_U + (r & 1) * 2
        a(f'v_mul_f32 v{u}, v{ar}, v{c_}')
        a(f'v_mul_f32 v{u+1}, v{ar}, v{s_}')
        a(f'v_fma_f32 v{ar}, -v{ai}, v{s_}, v{u}')
        a(f'v_fma_f32 v{ai}, v{ai}, v{c_}, v{u+1}')
    a.label('K2_STEP3')
    for mt in range(2):
        for part in range(2):
            for q in range(2):
                src = V_AC + 8*mt + 4*part + 2*q
                a(f'v_cvt_pk_bf16_f32 v{V_D+4*part+2*mt+q}, v{src}, v{src+1}')
    a('s_nop 1')
    for mt in range(2):
        mf(V_AC + 8*mt, V_D, t2(mt, 0), 0)
        mf(V_AC + 8*mt + 4, V_D + 4, t2(mt, 0), 0)
    for mt in range(2):
        mf(V_AC + 8*mt, V_D + 4, t2(mt, 1), 1)
        mf(V_AC + 8*mt + 4, V_D, t2(mt, 2), 1)
    a(f'v_mul_u32_u24 v{V_A1}, 144, v{V_I}')
    a(f's_lshl_b32 s{S_T0}, s{S_FW}, 5')
    a(f'v_lshl_add_u32 v{V_U+4}, v{V_G}, 3, v{V_A1}')
    a(f'v_add_u32 v{V_U+4}, s{S_T0}, v{V_U+4}')
    a('s_waitcnt vmcnt(0)')
    a('s_nop 4')
    cmul_pack(V_D)
    for mt in range(2):
        a(f'ds_write_b64 v{V_U+4}, {vr(V_D+4*mt,2)} offset:{L_CPR+2304*mt}')
        a(f'ds_write_b64 v{V_U+4}, {vr(V_D+4*mt+2,2)} offset:{L_CPI+2304*mt}')
    stamp(3)
    sync(1)
    a(f's_mul_i32 s{S_T0}, s{S_NH}, 2304')
    a(f'v_lshl_add_u32 v{V_U+4}, v{V_G}, 4, v{V_A1}')
    a(f'v_add_u32 v{V_U+4}, s{S_T0}, v{V_U+4}')
    for part in range(2):
        for ks in range(2):
            a(f'ds_read_b128 {vr(V_D+8*part+4*ks,4)}, v{V_U+4} offset:{(L_CPI if part else L_CPR)+64*ks}')
    a('s_waitcnt lgkmcnt(0)')
    for ks in range(2):
        for nt in range(2):
            mf(V_AC + 8*nt, zr(ks), t1(nt, ks, 0), ks)
            mf(V_AC + 8*nt + 4, zi(ks), t1(nt, ks, 0), ks)
        for nt in range(2):
            mf(V_AC + 8*nt, zi(ks), t1(nt, ks, 1), 1)
            mf(V_AC + 8*nt + 4, zr(ks), t1(nt, ks, 2), 1)
    a(f'v_lshlrev_b32 v{V_U+4}, 6, v{V_I}')
    a(f'v_lshl_add_u32 v{V_U+4}, v{V_G}, 3, v{V_U+4}')
    a(f's_lshl_b32 s{S_T0}, s{S_F}, 13')
    a(f's_lshl_b32 s{S_T1}, s{S_MH}, 11')
    a(f's_add_u32 s{S_T0}, s{S_T0}, s{S_T1}')
    a(f's_lshl_b32 s{S_T1}, s{S_NH}, 5')
    a(f's_add_u32 s{S_T0}, s{S_T0}, s{S_T1}')
    a(f's_add_u32 s{S_T0}, s{S_T0}, {WS_Y1T}')
    a(f's_add_u32 s{S_T1}, s{S_T0}, 4096')
    for i in range(8):
        a(f'v_cvt_pk_bf16_f32 v{V_D+i}, v{V_AC+2*i}, v{V_AC+2*i+1}')
    for nt in range(2):
        for part in range(2):
            a(f'buffer_store_dwordx2 {vr(V_D+4*nt+2*part,2)}, v{V_U+4}, {ws}, s{S_T0+part} offen offset:{1024*nt}')
    stamp(4)
    dump(5)
    rt_end(a, 1, S_W)
    a('s_endpgm')

    a.label('K2_SPECIAL')
    unpack(V_X)
    a(f'v_lshlrev_b32 v{V_U+4}, 2, v{V_A3}')
    a(f'v_add_u32 v{V_U+6}, {L_SP}, v{V_U+4}')
    for e in range(8):
        mt, r = e >> 2, e & 3
        srcs = [V_AC + 8*mt + r, V_AC + 8*mt + 4 + r, V_W + e, V_W + 8 + e, V_X + e, V_X + 8 + e]
        for pl, s_ in enumerate(srcs):
            a(f'ds_write_b32 v{V_U+6}, v{s_} offset:{8192*pl + 256*(16*mt+r)}')
    sync(2)
    a(f's_mov_b32 s{S_T0}, {f32_bits(0.125)}')
    for e in range(8):
        mt, r = e >> 2, e & 3
        zr_, zi_ = V_AC + 8*mt + r, V_AC + 8*mt + 4 + r
        a0r, a0i, a1r, a1i = V_W + e, V_W + 8 + e, V_X + e, V_X + 8 + e
        a(f'v_sub_u32 v{V_U+5}, {8192 - 256*(16*mt+r)}, v{V_U+4}')
        a(f'v_and_b32 v{V_U+5}, 8188, v{V_U+5}')
        a(f'v_add_u32 v{V_U+5}, {L_SP}, v{V_U+5}')
        n = V_D
        for pl in range(6):
            a(f'ds_read_b32 v{n+pl}, v{V_U+5} offset:{8192*pl}')
        a('s_waitcnt lgkmcnt(0)')
        znr, zni, b0r, b0i, b1r, b1i = [n + i for i in range(6)]
        a(f'v_add_f32 v{b0r}, v{a0r}, v{b0r}')
        a(f'v_sub_f32 v{b0i}, v{a0i}, v{b0i}')
        a(f'v_add_f32 v{b1r}, v{a1r}, v{b1r}')
        a(f'v_sub_f32 v{b1i}, v{a1i}, v{b1i}')
        pr, pi_, mr, mi = n + 6, n + 7, n + 8, n + 9
        a(f'v_add_f32 v{pr}, v{b0r}, v{b1r}')
        a(f'v_add_f32 v{pi_}, v{b0i}, v{b1i}')
        a(f'v_sub_f32 v{mr}, v{b0r}, v{b1r}')
        a(f'v_sub_f32 v{mi}, v{b0i}, v{b1i}')
        rr, ri = n + 10, n + 11
        a(f'v_mul_f32 v{rr}, v{zr_}, v{pr}')
        a(f'v_mul_f32 v{ri}, v{zr_}, v{pi_}')
        a(f'v_fma_f32 v{rr}, -v{zi_}, v{pi_}, v{rr}')
        a(f'v_fma_f32 v{ri}, v{zi_}, v{pr}, v{ri}')
        a(f'v_fma_f32 v{rr}, v{znr}, v{mr}, v{rr}')
        a(f'v_fma_f32 v{ri}, v{znr}, v{mi}, v{ri}')
        a(f'v_fma_f32 v{rr}, v{zni}, v{mi}, v{rr}')
        a(f'v_fma_f32 v{ri}, -v{zni}, v{mr}, v{ri}')
        a(f'v_mul_f32 v{zr_}, s{S_T0}, v{rr}')
        a(f'v_mul_f32 v{zi_}, s{S_T0}, v{ri}')
    a('s_branch K2_STEP3')
    a.label('K2_END')
    a('s_endpgm')
    return 168, (80 if (PROF or RT) else 48)

def gen_tables_k2(a):
    def cb(j):
        j &= 511
        return bf16_bits(0.0 if j in (128, 384) else math.cos(2*math.pi*j/512))
    vadd = [0, 128, 384]
    a.raw('.p2align 8')
    a.raw('TAB_K2:')
    def shorts(vals):
        for i in range(0, len(vals), 32):
            a.raw('.short ' + ','.join(str(v) for v in vals[i:i+32]))
    def longs(vals):
        for i in range(0, len(vals), 16):
            a.raw('.long ' + ','.join(str(v) for v in vals[i:i+16]))
    v = []
    for mh in range(2):
        for nt in range(2):
            for ks in range(2):
                for var in range(3):
                    for l in range(64):
                        for j in range(8):
                            aa = 32*mh + 16*nt + (l & 15); b = 32*ks + 8*(l >> 4) + j
                            v.append(cb(8*aa*b + vadd[var]))
    for mt in range(2):
        for var in range(3):
            for l in range(64):
                for j in range(8):
                    aa = 16*mt + (l & 15); b = 16*(j >> 2) + 4*(l >> 4) + (j & 3)
                    v.append(cb(16*aa*b + vadd[var]))
    shorts(v)
    v = []
    for fw in range(4):
        mh, nh = fw >> 1, fw & 1
        for nt in range(2):
            for part in range(2):
                for l in range(64):
                    for r in range(4):
                        k1 = 32*mh + 16*nt + (l & 15); n2 = 16*nh + 4*(l >> 4) + r
                        th = 2*math.pi*((k1*n2) % 2048)/2048
                        v.append(f32_bits(math.cos(th) if part == 0 else -math.sin(th)))
    for fw in range(4):
        for mt in range(2):
            for part in range(2):
                for l in range(64):
                    for r in range(4):
                        n2 = 16*mt + (l & 15); k1 = 16*fw + 4*(l >> 4) + r
                        th = 2*math.pi*((k1*n2) % 2048)/2048
                        v.append(f32_bits((math.cos(th) if part == 0 else math.sin(th)) * YSCALE))
    longs(v)
```

```python
from gen import *
import os
PROF = int(os.environ.get('PROF', '0'))

K3_SLOT = 32768
K3_R = 5
K3_LDS = K3_SLOT * K3_R

def gen_k3(a):
    kernel_header(a, 'k3_kernel')
    S_WO, S_OUT, S_WS = 4, 6, 8
    R_WO, R_OUT, R_WS, R_TB = 12, 16, 20, 24
    S_W, S_ST, S_DT, S_MI, S_NI, S_T0, S_T1, S_T2, S_A, S_B, S_C, S_D = 28, 29, 30, 31, 32, 33, 34, 35, 36, 37, 38, 39
    a('s_cmp_ge_u32 s2, 256')
    a('s_cbranch_scc1 K3_END')
    rt_start(a)
    st_stamp(a, 3, 0)
    a(f's_load_dwordx2 s[{S_WO}:{S_WO+1}], s[0:1], 32')
    a(f's_load_dwordx2 s[{S_OUT}:{S_OUT+1}], s[0:1], 72')
    a(f's_load_dwordx2 s[{S_WS}:{S_WS+1}], s[0:1], 88')
    a('v_lshrrev_b32 v1, 6, v0')
    a('v_and_b32 v0, 63, v0')
    a(f's_and_b32 s{S_T0}, s2, 7')
    a(f'v_readfirstlane_b32 s{S_W}, v1')
    a(f's_lshl_b32 s{S_T0}, s{S_T0}, 2')
    a(f's_lshr_b32 s{S_ST}, s2, 6')
    a(f's_add_u32 s{S_ST}, s{S_ST}, s{S_T0}')
    a(f's_bfe_u32 s{S_DT}, s2, 0x30003')
    a(f's_and_b32 s{S_MI}, s{S_W}, 1')
    a(f's_lshr_b32 s{S_NI}, s{S_W}, 1')
    table_srd(a, R_TB, 'TAB_FINV', 512 * 1024, 'fi')
    lane = 'v0'
    V_OD = 2
    V_RA = 10
    V_RO = 11
    V_RF = 15
    V_RY = 16
    V_CUR = 17
    V_OUT = 24
    V_GT = 25
    V_T = 26
    V_ACC = 48
    V_FA = 80
    V_FO = 96
    V_FF = 112
    V_FY = 128
    t = lambda i: f'v{V_T+i}'
    a(f'v_lshrrev_b32 {t(0)}, 3, {lane}')
    a(f'v_and_b32 {t(1)}, 7, {lane}')
    a(f'v_lshrrev_b32 {t(2)}, 4, {lane}')
    a(f'v_and_b32 {t(3)}, 31, {lane}')
    a(f'v_lshrrev_b32 {t(4)}, 5, {lane}')
    a(f'v_and_b32 {t(5)}, 1, {t(2)}')
    a(f'v_lshlrev_b32 {t(6)}, 2, {t(5)}')
    a(f'v_xor_b32 {t(6)}, {t(6)}, {t(1)}')
    a(f'v_lshlrev_b32 {t(6)}, 4, {t(6)}')
    a(f's_lshl_b32 s{S_T0}, s{S_W}, 14')
    a(f's_lshl_b32 s{S_T1}, s{S_DT}, 7')
    a(f's_add_u32 s{S_T0}, s{S_T0}, s{S_T1}')
    a(f'v_lshl_add_u32 {t(7)}, {t(0)}, 10, {t(6)}')
    a(f'v_add_u32 v{V_OD}, s{S_T0}, {t(7)}')
    a(f'v_add_u32 v{V_OD+1}, 8192, v{V_OD}')
    a(f's_lshl_b32 s{S_T0}, s{S_W}, 16')
    a(f's_lshl_b32 s{S_T1}, s{S_ST}, 7')
    a(f's_add_u32 s{S_T0}, s{S_T0}, s{S_T1}')
    a(f's_add_u32 s{S_T0}, s{S_T0}, {WS_Y1T}')
    a(f'v_lshl_add_u32 {t(7)}, {t(0)}, 12, {t(6)}')
    a(f'v_add_u32 v{V_OD+6}, s{S_T0}, {t(7)}')
    a(f'v_add_u32 v{V_OD+7}, 32768, v{V_OD+6}')
    a(f's_lshl_b32 s{S_T0}, s{S_ST}, 16')
    a(f's_lshl_b32 s{S_T1}, s{S_W}, 14')
    a(f's_add_u32 s{S_T0}, s{S_T0}, s{S_T1}')
    a(f's_add_u32 s{S_T0}, s{S_T0}, {WS_O}')
    a(f'v_lshlrev_b32 {t(7)}, 10, {t(0)}')
    a(f'v_add_u32 {t(7)}, s{S_T0}, {t(7)}')
    for i in range(2):
        a(f'v_add_u32 {t(8)}, {4*i}, {t(2)}')
        a(f'v_xor_b32 {t(8)}, {t(8)}, {t(1)}')
        a(f'v_lshl_add_u32 v{V_OD+2+i}, {t(8)}, 4, {t(7)}')
        if i == 1:
            a(f'v_add_u32 v{V_OD+3}, 8192, v{V_OD+3}')
    a(f's_lshl_b32 s{S_T0}, s{S_DT}, 16')
    a(f's_lshl_b32 s{S_T2}, s{S_W}, 11')
    a(f's_add_u32 s{S_T0}, s{S_T0}, s{S_T2}')
    a(f'v_lshlrev_b32 {t(7)}, 4, {lane}')
    a(f'v_add_u32 v{V_OD+4}, s{S_T0}, {t(7)}')
    a(f'v_add_u32 v{V_OD+5}, 1024, v{V_OD+4}')
    a('s_waitcnt lgkmcnt(0)')
    st_stamp(a, 3, 1)
    srd(a, R_WO, S_WO, 512 * 1024)
    srd(a, R_WS, S_WS, WS_SIZE)
    srd(a, R_OUT, S_OUT, 2048 * 1024)
    wo = sr(R_WO, 4); ws = sr(R_WS, 4); tb = sr(R_TB, 4)

    def dma_chunk(c):
        sl = (c % K3_R) * K3_SLOT
        a(f's_mov_b32 s{S_A}, {c*65536}')
        a(f's_mov_b32 s{S_B}, {c*128}')
        a(f's_mov_b32 s{S_C}, {c*8192}')
        a(f's_mov_b32 s{S_D}, {c*262144}')
        for reg, (rs, so) in enumerate(((wo, S_A), (ws, S_B), (tb, S_C), (ws, S_D))):
            for i in range(2):
                a(f's_add_u32 m0, s{S_T2}, {sl + reg*8192 + i*1024}')
                a('s_nop 0')
                a(f'buffer_load_dwordx4 v{V_OD+2*reg+i}, {rs}, s{so} offen lds')
    for c in range(K3_R):
        dma_chunk(c)
    st_stamp(a, 3, 2)
    a(f's_lshl_b32 s{S_T0}, s{S_ST}, 6')
    a(f's_lshl_b32 s{S_T1}, s{S_NI}, 5')
    a(f's_add_u32 s{S_T0}, s{S_T0}, s{S_T1}')
    a(f'v_add_u32 {t(8)}, s{S_T0}, {t(3)}')
    a(f'v_lshlrev_b32 {t(9)}, 2, {t(8)}')
    a(f's_mov_b32 s{S_T0}, {WS_G}')
    a(f'buffer_load_dword v{V_GT}, {t(9)}, {ws}, s{S_T0} offen')
    a(f'v_lshlrev_b32 v{V_OUT}, 10, {t(8)}')
    a(f'v_lshl_add_u32 v{V_OUT}, {t(4)}, 5, v{V_OUT}')
    a(f's_lshl_b32 s{S_T0}, s{S_DT}, 7')
    a(f's_lshl_b32 s{S_T1}, s{S_MI}, 6')
    a(f's_add_u32 s{S_T0}, s{S_T0}, s{S_T1}')
    a(f'v_add_u32 v{V_OUT}, s{S_T0}, v{V_OUT}')
    a(f'v_bfe_u32 {t(9)}, {lane}, 2, 2')
    a(f'v_and_b32 {t(10)}, 3, {lane}')
    a(f'v_lshl_add_u32 {t(12)}, {t(4)}, 3, {t(9)}')
    a(f'v_lshlrev_b32 {t(12)}, 7, {t(12)}')
    a(f'v_lshrrev_b32 {t(13)}, 1, {t(10)}')
    a(f'v_and_b32 {t(14)}, 1, {t(10)}')
    a(f'v_lshrrev_b32 {t(15)}, 1, {t(9)}')
    a(f'v_lshlrev_b32 {t(15)}, 2, {t(15)}')
    a(f'v_lshl_add_u32 {t(11)}, {t(14)}, 1, {t(5)}')
    a(f's_lshl_b32 s{S_T0}, s{S_MI}, 2')
    a(f'v_add_u32 {t(11)}, s{S_T0}, {t(11)}')
    a(f'v_xor_b32 {t(11)}, {t(11)}, {t(15)}')
    a(f'v_lshl_add_u32 {t(11)}, {t(11)}, 4, {t(12)}')
    a(f'v_lshl_add_u32 v{V_RA}, {t(13)}, 3, {t(11)}')
    a(f'v_lshl_add_u32 {t(11)}, {t(5)}, 1, {t(13)}')
    a(f's_lshl_b32 s{S_T0}, s{S_NI}, 2')
    a(f'v_add_u32 {t(11)}, s{S_T0}, {t(11)}')
    a(f'v_xor_b32 {t(11)}, {t(11)}, {t(15)}')
    a(f'v_lshl_add_u32 {t(11)}, {t(11)}, 4, {t(12)}')
    a(f'v_lshl_add_u32 v{V_RY}, {t(14)}, 3, {t(11)}')
    a(f'v_add_u32 v{V_RY}, 24576, v{V_RY}')
    a(f'v_bfe_u32 {t(9)}, {lane}, 1, 3')
    a(f's_lshl_b32 s{S_T0}, s{S_NI}, 12')
    a(f's_add_u32 s{S_T0}, s{S_T0}, 8192')
    a(f'v_lshlrev_b32 {t(10)}, 7, {t(3)}')
    a(f'v_add_u32 {t(10)}, s{S_T0}, {t(10)}')
    for ks in range(4):
        a(f'v_add_u32 {t(11)}, {2*ks}, {t(4)}')
        a(f'v_xor_b32 {t(11)}, {t(11)}, {t(9)}')
        a(f'v_lshl_add_u32 v{V_RO+ks}, {t(11)}, 4, {t(10)}')
    a(f's_lshl_b32 s{S_T0}, s{S_MI}, 10')
    a(f's_add_u32 s{S_T0}, s{S_T0}, 16384')
    a(f'v_add_u32 v{V_RF}, s{S_T0}, {t(7)}')
    for i in range(32):
        a(f'v_mov_b32 v{V_ACC+i}, 0')

    for c in range(8):
        issued = min(8, K3_R + max(0, c - 1))
        extra = 1 if c < K3_R else 0
        a(f's_waitcnt vmcnt({8*(issued - c - 1) + extra})')
        a('s_barrier')
        st_stamp(a, 3, 3 + c)
        if c >= 1 and c - 1 + K3_R < 8:
            dma_chunk(c - 1 + K3_R)
        sb = (c % K3_R) * K3_SLOT
        for i in range(7):
            a(f'v_add_u32 v{V_CUR+i}, {sb}, v{V_RA+i}')
        cA, cO, cF, cY = V_CUR, V_CUR + 1, V_CUR + 5, V_CUR + 6
        def reads(ks):
            a(f'ds_read_b64_tr_b16 {vr(V_FA+4*ks,2)}, v{cA} offset:{ks*2048}')
            a(f'ds_read_b64_tr_b16 {vr(V_FA+4*ks+2,2)}, v{cA} offset:{ks*2048+512}')
            a(f'ds_read_b128 {vr(V_FO+4*ks,4)}, v{cO+ks}')
            a(f'ds_read_b128 {vr(V_FF+4*ks,4)}, v{cF} offset:{ks*2048}')
            a(f'ds_read_b64_tr_b16 {vr(V_FY+4*ks,2)}, v{cY} offset:{ks*2048}')
            a(f'ds_read_b64_tr_b16 {vr(V_FY+4*ks+2,2)}, v{cY} offset:{ks*2048+512}')
        def mfma_a(ks):
            acc = vr(V_ACC, 16)
            a(f'v_mfma_f32_32x32x16_bf16 {acc}, {vr(V_FA+4*ks,4)}, {vr(V_FO+4*ks,4)}, {acc}')
        def mfma_b(ks):
            acc = vr(V_ACC+16, 16)
            a(f'v_mfma_f32_32x32x16_bf16 {acc}, {vr(V_FF+4*ks,4)}, {vr(V_FY+4*ks,4)}, {acc}')
        reads(0); reads(1)
        a('s_waitcnt lgkmcnt(9)'); mfma_a(0)
        a('s_waitcnt lgkmcnt(6)'); mfma_b(0)
        reads(2)
        a('s_waitcnt lgkmcnt(9)'); mfma_a(1)
        a('s_waitcnt lgkmcnt(6)'); mfma_b(1)
        reads(3)
        a('s_waitcnt lgkmcnt(9)'); mfma_a(2)
        a('s_waitcnt lgkmcnt(6)'); mfma_b(2)
        a('s_waitcnt lgkmcnt(3)'); mfma_a(3)
        a('s_waitcnt lgkmcnt(0)'); mfma_b(3)
    st_stamp(a, 3, 11)
    a('s_nop 15')
    for i in range(16):
        a(f'v_sub_f32 v{V_ACC+i}, v{V_ACC+i}, v{V_ACC+16+i}')
        a(f'v_fma_f32 v{V_ACC+i}, v{V_GT}, v{V_ACC+i}, v{V_ACC+16+i}')
    for i in range(8):
        a(f'v_cvt_pk_bf16_f32 v{V_FA+i}, v{V_ACC+2*i}, v{V_ACC+2*i+1}')
    for q in range(2):
        a(f'buffer_store_dwordx4 {vr(V_FA+4*q,4)}, v{V_OUT}, {sr(R_OUT,4)}, 0 offen offset:{16*q}')
    st_stamp(a, 3, 12)
    st_dump(a, 3, S_W, 13)
    rt_end(a, 2, S_W)
    a.label('K3_END')
    a('s_endpgm')
    return 144, (100 if (RT or ST) else 48)

def gen_tables_k3(a):
    a.raw('.macro G8 d, f0')
    for j in range(8):
        if j == 1:
            a.raw('EC %(((\\f0 + ((\\f0 == 0) & 256))*\\d + (128 & (\\f0 != 0)))&511)')
        else:
            a.raw(f'EC %(((\\f0+{j>>1})*\\d+{128*(j&1)})&511)')
    a.raw('.endm')
    a.raw('.p2align 8')
    a.raw('TAB_FINV:')
    a.raw('.set tI, 0')
    a.raw('.rept 32768')
    a.raw('  .set tL, tI & 63')
    a.raw('  .set tD, ((tI >> 12) << 6) + (((tI >> 6) & 1) << 5) + (((tL >> 2) & 1) << 4) + (((tL >> 3) & 3) << 2) + (tL & 3)')
    a.raw('  .set tF, (((tI >> 7) & 31) << 3) + ((tL >> 5) << 2)')
    a.raw('  G8 %tD, %tF')
    a.raw('  .set tI, tI + 1')
    a.raw('.endr')
```

```python
from gen import *
import gen_k2, gen_k3
from gen_k2 import YSCALE
import os

WS_ROOT = 0x240000
WS_FL1 = 0x244000
WS_FL2 = 0x248000
WS_FL3 = 0x24C000
WS_FL4 = 0x260000
TAG_M, TAG_C = 0x9E3779B1, 0x7F4A7C15

L_X = 0
L_WQ = 65536
L_KW = 131072
L_GATE = L_KW + 16384
L_FLAG = L_GATE + 1024
L_FREE = L_FLAG + 256
KG_LDS = 163840
L_APR = L_KW; L_API = L_APR + 5120
L_CPR = L_FREE; L_CPI = L_CPR + 4608
assert L_CPI + 4608 <= KG_LDS and L_API + 5120 <= L_GATE
L_SP = L_WQ
L_WO = L_X
L_Y = L_WQ
F_CX, F_CW, F_KVOK, F_TAG, F_QDONE, F_AST, F_J1, F_S1OK, F_SY0, F_SY1, F_SY2, F_J2, F_S2OK, F_J3, F_TAGOK, F_KVPUB, F_ADONE, F_J4 = range(18)
WS_G = 0x230000
E = lambda k, d: int(os.environ.get(k, str(d)))
LOAD_D = E('LOAD_D', 4)
KV_SLEEP = E('KV_SLEEP', 4)
O_SLEEP = E('O_SLEEP', 2)
THR = E('THR', 3)
KVSC = ' sc1' if E('KVSC1', 0) else ''
OSC = ' sc1' if E('OSC1', 0) else ''
SC = ' sc1'
POLL_LIMIT = 1 << 21
NSTAMP = 12

def gen_g(a, name):
    kernel_header(a, name)
    S_X, S_WQ, S_WK, S_WV, S_WO, S_WS, S_WR, S_WI, S_GT, S_OUT = 4, 6, 8, 10, 12, 14, 16, 18, 20, 22
    R_X, R_WS, R_A, R_B, R_TB, R_OUT = 24, 28, 32, 36, 40, 44
    S_W, S_QG, S_HG, S_T0, S_T1, S_T2, S_T3, S_CNT, S_KOFF, S_KB, S_P, S_KH = 48, 49, 50, 51, 52, 53, 54, 55, 56, 57, 58, 59
    S_VM = 60; S_C0 = 62; S_C1 = 64
    S_CT, S_A, S_F, S_HW, S_MH, S_NH, S_SEEN, S_LIM, S_TAG = 3, 66, 67, 68, 69, 70, 71, 72, 73
    NS = 74
    SB = 74
    ws = sr(R_WS, 4); xs = sr(R_X, 4); ra = sr(R_A, 4); rb_ = sr(R_B, 4); tb = sr(R_TB, 4)
    TM = 's_memrealtime' if ST == 5 else 's_memtime'
    def stamp(i):
        if ST in (5, 6):
            a(f'{TM} s[{SB+2*i}:{SB+1+2*i}]')
    def dump():
        n = NSTAMP
        if ST in (5, 6):
            a('s_waitcnt vmcnt(0)')
            a(f'{TM} s[{SB+2*n}:{SB+1+2*n}]')
            a('s_mov_b64 exec, 1')
            a(f's_lshl_b32 s{S_T0}, s2, 4')
            a(f's_add_u32 s{S_T0}, s{S_T0}, s{S_W}')
            a(f's_lshl_b32 s{S_T0}, s{S_T0}, 6')
            a(f's_add_u32 s{S_T0}, s{S_T0}, {0xC00000}')
            a('s_waitcnt lgkmcnt(0)')
            a(f's_mov_b32 s{R_WS+2}, 0x1000000')
            a('v_mov_b32 v0, 0')
            for i in range(n + 1):
                a(f'v_mov_b32 v2, s{SB+2*i}')
                a(f'buffer_store_dword v2, v0, {ws}, s{S_T0} offen offset:{4*i}')
                a('s_nop 1')

    a('s_cmp_ge_u32 s2, 256')
    a('s_cbranch_scc1 KG_END')
    if ST in (5, 6):
        for i in range(NSTAMP + 1):
            a(f's_mov_b32 s{SB+2*i}, 0')
    stamp(0)
    a(f's_load_dwordx8 s[{S_X}:{S_X+7}], s[0:1], 0')
    a(f's_load_dwordx2 s[{S_WS}:{S_WS+1}], s[0:1], 88')
    a(f's_load_dwordx4 s[{S_GT}:{S_GT+3}], s[0:1], 64')
    a(f's_load_dwordx2 s[{S_WO}:{S_WO+1}], s[0:1], 32')
    a(f's_load_dwordx4 s[{S_WR}:{S_WR+3}], s[0:1], 48')
    a('v_lshrrev_b32 v1, 6, v0')
    a('v_and_b32 v0, 63, v0')
    a(f's_and_b32 s{S_T0}, s2, 7')
    a(f'v_readfirstlane_b32 s{S_W}, v1')
    a(f's_lshl_b32 s{S_T0}, s{S_T0}, 2')
    a(f's_lshr_b32 s{S_QG}, s2, 6')
    a(f's_add_u32 s{S_QG}, s{S_QG}, s{S_T0}')
    a(f's_bfe_u32 s{S_HG}, s2, 0x30003')
    a(f's_mov_b32 s{S_LIM}, {1<<23}')
    V_Z = 7
    a(f'v_mov_b32 v{V_Z}, {L_FLAG}')
    a(f's_cmp_lg_u32 s{S_W}, 1')
    a('s_cbranch_scc1 KG_B0')
    a(f'v_lshl_add_u32 v2, v0, 2, v{V_Z}')
    a('v_mov_b32 v3, 0')
    a('ds_write_b32 v2, v3')
    a.label('KG_B0')
    a('s_waitcnt lgkmcnt(0)')
    srd(a, R_WS, S_WS, WS_SIZE)
    a(f's_cmp_lt_u32 s{S_W}, 4')
    a('s_cbranch_scc1 KG_HELP')

    uid = [0]
    def lds_wait(flag, val, vtmp, sleep=1):
        uid[0] += 1; u = uid[0]
        a.label(f'KG_LW{u}')
        a(f'ds_read_b32 v{vtmp}, v{V_Z} offset:{4*flag}')
        a('s_waitcnt lgkmcnt(0)')
        a(f'v_readfirstlane_b32 s{S_T0}, v{vtmp}')
        a(f's_cmp_ge_u32 s{S_T0}, {val}')
        a(f's_cbranch_scc1 KG_LD{u}')
        a(f's_sleep {sleep}')
        a(f's_sub_u32 s{S_LIM}, s{S_LIM}, 1')
        a(f's_cbranch_scc0 KG_LW{u}')
        a.label(f'KG_LD{u}')
    def lds_add(flag, vtmp):
        a(f'v_mov_b32 v{vtmp}, 1')
        a('s_mov_b64 exec, 1')
        a(f'ds_add_u32 v{V_Z}, v{vtmp} offset:{4*flag}')
        a('s_mov_b64 exec, -1')
    def get_tag(vtmp):
        a(f'ds_read_b32 v{vtmp}, v{V_Z} offset:{4*F_TAG}')
        a('s_waitcnt lgkmcnt(0)')
        a(f'v_readfirstlane_b32 s{S_TAG}, v{vtmp}')

    V_OQ, V_OV = 2, 3
    V_M = 4
    V_H = 6
    V_Q = 8
    V_S = 16
    V_P = 48
    V_O = 64
    V_K = 96
    V_V = 128
    V_T = 192
    a(f's_and_b32 s{S_CT}, s{S_W}, 1')
    a(f's_bfe_u32 s{S_A}, s{S_W}, 0x10001')
    a('v_and_b32 v1, 31, v0')
    a(f'v_lshrrev_b32 v{V_H}, 5, v0')
    V_XA = V_T
    V_WA = V_T + 4
    t = lambda i: f'v{V_T+8+i}'
    a(f'v_bfe_u32 {t(0)}, v0, 1, 3')
    a(f's_lshl_b32 s{S_T0}, s{S_A}, 12')
    a(f'v_lshlrev_b32 {t(1)}, 7, v1')
    a(f'v_add_u32 {t(1)}, s{S_T0}, {t(1)}')
    for ks in range(4):
        a(f'v_add_u32 {t(2)}, {2*ks}, v{V_H}')
        a(f'v_xor_b32 {t(2)}, {t(2)}, {t(0)}')
        a(f'v_lshl_add_u32 v{V_XA+ks}, {t(2)}, 4, {t(1)}')
    a(f'v_bfe_u32 {t(0)}, v0, 2, 2')
    a(f'v_and_b32 {t(1)}, 3, v0')
    a(f'v_bfe_u32 {t(2)}, v0, 4, 1')
    a(f'v_lshl_add_u32 {t(3)}, v{V_H}, 3, {t(0)}')
    a(f'v_lshlrev_b32 {t(3)}, 7, {t(3)}')
    a(f'v_lshrrev_b32 {t(4)}, 1, {t(1)}')
    a(f'v_and_b32 {t(5)}, 1, {t(1)}')
    a(f'v_lshrrev_b32 {t(6)}, 1, {t(0)}')
    a(f'v_lshlrev_b32 {t(6)}, 2, {t(6)}')
    a(f'v_lshl_add_u32 {t(7)}, {t(2)}, 1, {t(4)}')
    a(f's_lshl_b32 s{S_T0}, s{S_CT}, 2')
    a(f'v_add_u32 {t(7)}, s{S_T0}, {t(7)}')
    a(f'v_xor_b32 {t(7)}, {t(7)}, {t(6)}')
    a(f'v_lshl_add_u32 {t(7)}, {t(7)}, 4, {t(3)}')
    a(f'v_lshl_add_u32 v{V_WA}, {t(5)}, 3, {t(7)}')
    a(f'v_add_u32 v{V_WA}, {L_WQ}, v{V_WA}')
    a(f'v_lshlrev_b32 v{V_OQ}, 5, v1')
    a(f'v_lshl_add_u32 v{V_OQ}, v{V_H}, 4, v{V_OQ}')
    a(f'v_and_b32 v{V_OV}, 15, v0')
    a(f'v_lshlrev_b32 v{V_OV}, 4, v{V_OV}')
    a(f'v_lshl_add_u32 v{V_OV}, v{V_H}, 8, v{V_OV}')
    a(f'v_add_u32 v{V_OQ}, {WS_KV}, v{V_OQ}')
    a(f'v_add_u32 v{V_OV}, {WS_KV}, v{V_OV}')
    a(f's_mov_b32 s{S_VM}, 0xffff')
    a(f's_mov_b32 s{S_VM+1}, 0xffff')
    a(f'v_and_b32 {t(0)}, 27, v1')
    a(f'v_cmp_eq_u32 vcc, 16, {t(0)}')
    a(f'v_mov_b32 {t(1)}, 0x3f803f80')
    a(f'v_mov_b32 v{V_M}, 0')
    a(f'v_mov_b32 v{V_M+1}, 0')
    a(f'v_cndmask_b32 {t(1)}, 0, {t(1)}, vcc')
    for i in range(64):
        a(f'v_mov_b32 v{V_V+i}, {t(1)}')
    QA = V_S
    QB = (V_O, V_K)
    a(f's_mov_b32 s{S_SEEN}, 0')
    a('s_barrier')
    stamp(1)
    def q_wait(c):
        a(f's_cmp_gt_u32 s{S_SEEN}, {c}')
        a(f's_cbranch_scc1 KG_QG{c}')
        a.label(f'KG_QP{c}')
        a(f'ds_read_b64 {vr(V_T+8,2)}, v{V_Z} offset:{4*F_CX}')
        a('s_waitcnt lgkmcnt(0)')
        a(f'v_min_u32 {t(0)}, {t(0)}, {t(1)}')
        a('s_nop 0')
        a(f'v_readfirstlane_b32 s{S_SEEN}, {t(0)}')
        a(f's_cmp_gt_u32 s{S_SEEN}, {c}')
        a(f's_cbranch_scc1 KG_QG{c}')
        a('s_sleep 1')
        a(f's_sub_u32 s{S_LIM}, s{S_LIM}, 1')
        a(f's_cbranch_scc0 KG_QP{c}')
        a.label(f'KG_QG{c}')
    def q_reads(c):
        b = QB[c & 1]
        for ks in range(4):
            a(f'ds_read_b128 {vr(b+4*ks,4)}, v{V_XA+ks} offset:{c*8192}')
            a(f'ds_read_b64_tr_b16 {vr(b+16+4*ks,2)}, v{V_WA} offset:{c*8192+ks*2048}')
            a(f'ds_read_b64_tr_b16 {vr(b+16+4*ks+2,2)}, v{V_WA} offset:{c*8192+ks*2048+512}')
    q_wait(0); q_reads(0)
    for c in range(8):
        if c < 7:
            q_wait(c + 1); q_reads(c + 1)
        b = QB[c & 1]
        for ks in range(4):
            a(f's_waitcnt lgkmcnt({min(15, (12 if c < 7 else 0) + 9 - 3*ks)})')
            cc = vr(QA, 16) if (c or ks) else '0'
            a(f'v_mfma_f32_32x32x16_bf16 {vr(QA,16)}, {vr(b+16+4*ks,4)}, {vr(b+4*ks,4)}, {cc}')
    stamp(2)
    lds_add(F_QDONE, V_T + 8)
    a(f's_mov_b32 s{S_T1}, {f32_bits(QSCALE)}')
    a('s_nop 6')
    for i in range(16):
        a(f'v_mul_f32 v{QA+i}, s{S_T1}, v{QA+i}')
    for i in range(8):
        a(f'v_cvt_pk_bf16_f32 v{V_Q+i}, v{QA+2*i}, v{QA+2*i+1}')
    lds_wait(F_KVOK, 1, V_T + 8)
    stamp(3)

    def load_k(slot, off):
        a(f'buffer_load_dwordx4 {vr(V_K+4*slot,4)}, v{V_OQ}, {ws}, s{S_KOFF} offen offset:{off}{KVSC}')
    def kv_group(c):
        a(f's_mov_b64 exec, s[{S_VM}:{S_VM+1}]')
        for j in range(2):
            sl = (c + j) & 7
            a(f'buffer_load_dwordx4 {vr(V_V+8*sl,4)}, v{V_OV}, {ws}, s{S_KOFF} offen offset:{2048*j}{KVSC}')
            a(f'buffer_load_dwordx4 {vr(V_V+8*sl+4,4)}, v{V_OV}, {ws}, s{S_KOFF} offen offset:{2048*j+512}{KVSC}')
        a('s_mov_b64 exec, -1')
        load_k((c + 1) & 7, 1024)
        load_k((c + 2) & 7, 3072)
        a(f's_add_u32 s{S_KOFF}, s{S_KOFF}, 4096')
    def mfma_s(t_, slot):
        a(f'v_mfma_f32_32x32x16_bf16 {vr(V_S+16*t_,16)}, {vr(V_K+4*slot,4)}, {vr(V_Q+4*t_,4)}, 0')
    def mfma_pv(t_, slot, pp):
        a(f'v_mfma_f32_32x32x16_bf16 {vr(V_O+16*t_,16)}, {vr(V_V+8*slot+4*pp,4)}, {vr(V_P+8*t_+4*pp,4)}, {vr(V_O+16*t_,16)}')
    def cv(t_, i):
        a(f'v_cvt_pk_bf16_f32 v{V_P+8*t_+i}, v{V_S+16*t_+2*i}, v{V_S+16*t_+2*i+1}')

    def attn_pass(tag, sub, first):
        def ex(t_, i):
            r = V_S + 16*t_ + i
            if sub:
                a(f'v_sub_f32 v{r}, v{r}, v{V_M+t_}')
            a(f'v_exp_f32 v{r}, v{r}')
        a(f's_mov_b32 s{S_KOFF}, 0')
        load_k(0, 0)
        a(f's_mov_b32 s{S_KOFF}, 1024')
        for c in range(0, 6, 2):
            kv_group(c)
        for i in range(32):
            a(f'v_mov_b32 v{V_O+i}, 0')
        for i in range(4):
            a(f'v_mov_b32 v{V_P+12+i}, 0')
        a('s_waitcnt vmcnt(18)')
        mfma_s(0, 0)
        a(f's_mov_b32 s{S_CNT}, 8')
        if first:
            stamp(4)
            lds_add(F_AST, V_T + 8)
        a('s_nop 10')
        a.label(f'KG_LOOP{tag}')
        for b in range(8):
            for t_ in range(2):
                ex(t_, 0); ex(t_, 1)
                if t_ == 1:
                    mfma_pv(0, b, 1)
                else:
                    mfma_pv(1, (b - 1) & 7, 1)
                ex(t_, 2); ex(t_, 3); ex(t_, 4); ex(t_, 5)
                if t_ == 1:
                    mfma_s(0, (b + 1) & 7)
                else:
                    mfma_s(1, b)
                ex(t_, 6); ex(t_, 7)
                cv(t_, 0); cv(t_, 1); cv(t_, 2); cv(t_, 3)
                if t_ == 0 and b % 2 == 0:
                    kv_group(b + 6)
                    a('s_waitcnt vmcnt(18)')
                ex(t_, 8); ex(t_, 9)
                mfma_pv(t_, b, 0)
                for i in range(10, 16):
                    ex(t_, i)
                cv(t_, 4); cv(t_, 5); cv(t_, 6); cv(t_, 7)
        a(f's_sub_u32 s{S_CNT}, s{S_CNT}, 1')
        a(f's_cmp_lg_u32 s{S_CNT}, 0')
        a(f's_cbranch_scc1 KG_LOOP{tag}')
        mfma_pv(1, 7, 1)

    attn_pass('A', False, True)
    stamp(5)
    a(f'ds_read_b32 v{V_T}, v{V_Z} offset:{4*F_TAG}')
    a(f's_lshl_b32 s{S_T2}, s{S_QG}, 1')
    a(f's_add_u32 s{S_T2}, s{S_T2}, s{S_A}')
    a(f's_lshl_b32 s{S_T3}, s{S_HG}, 1')
    a(f's_add_u32 s{S_T3}, s{S_T3}, s{S_CT}')
    a(f's_lshl_b32 s{S_T2}, s{S_T2}, 4')
    a(f's_add_u32 s{S_T2}, s{S_T2}, s{S_T3}')
    a(f's_lshl_b32 s{S_T3}, s{S_T2}, 7')
    a(f's_add_u32 s{S_T3}, s{S_T3}, {WS_FL4}')
    a(f's_lshl_b32 s{S_T2}, s{S_T2}, 11')
    a(f's_add_u32 s{S_T2}, s{S_T2}, {WS_O}')
    a(f'v_lshlrev_b32 v{V_T+1}, 4, v0')
    a(f'v_mov_b32 v{V_T+2}, 0')
    a(f's_mov_b32 s{S_T0}, {f32_bits(2.0**-30)}')
    a(f's_mov_b32 s{S_T1}, {f32_bits(2.0**30)}')
    a(f'v_cmp_le_f32 s[{S_C0}:{S_C0+1}], s{S_T0}, v{V_O+8}')
    a(f'v_cmp_ge_f32 s[{S_C1}:{S_C1+1}], s{S_T1}, v{V_O+8}')
    a(f's_and_b64 s[{S_C0}:{S_C0+1}], s[{S_C0}:{S_C0+1}], s[{S_C1}:{S_C1+1}]')
    a(f'v_cmp_le_f32 s[{S_C1}:{S_C1+1}], s{S_T0}, v{V_O+24}')
    a(f's_and_b64 s[{S_C0}:{S_C0+1}], s[{S_C0}:{S_C0+1}], s[{S_C1}:{S_C1+1}]')
    a(f'v_cmp_ge_f32 s[{S_C1}:{S_C1+1}], s{S_T1}, v{V_O+24}')
    a(f's_and_b64 s[{S_C0}:{S_C0+1}], s[{S_C0}:{S_C0+1}], s[{S_C1}:{S_C1+1}]')
    a(f's_cmp_eq_u64 s[{S_C0}:{S_C0+1}], -1')
    a('s_cbranch_scc0 KG_SLOW')
    a.label('KG_OUT')
    a(f'v_rcp_f32 v{V_T+4}, v{V_O+8}')
    a(f'v_rcp_f32 v{V_T+5}, v{V_O+24}')
    a('s_nop 0')
    for t_ in range(2):
        for i in range(8):
            a(f'v_mul_f32 v{V_O+16*t_+i}, v{V_T+4+t_}, v{V_O+16*t_+i}')
        for i in range(4):
            a(f'v_cvt_pk_bf16_f32 v{V_S+4*t_+i}, v{V_O+16*t_+2*i}, v{V_O+16*t_+2*i+1}')
        a(f'buffer_store_dwordx4 {vr(V_S+4*t_,4)}, v{V_T+1}, {ws}, s{S_T2} offen offset:{1024*t_}{SC}')
    a('s_waitcnt vmcnt(0) lgkmcnt(0)')
    stamp(6)
    a(f'v_mov_b32 v{V_T+3}, 1')
    a('s_mov_b64 exec, 1')
    a(f'buffer_store_dword v{V_T}, v{V_T+2}, {ws}, s{S_T3} offen{SC}')
    a(f'ds_add_u32 v{V_Z}, v{V_T+3} offset:{4*F_ADONE}')
    dump()
    a('s_endpgm')

    a.label('KG_SLOW')
    a('s_waitcnt vmcnt(0)')
    a(f'v_mov_b32 v{V_M}, 0xff800000')
    a(f'v_mov_b32 v{V_M+1}, 0xff800000')
    a(f's_mov_b32 s{S_KOFF}, 0')
    a(f's_mov_b32 s{S_CNT}, 64')
    a.label('KG_MAXLOOP')
    load_k(0, 0)
    a(f's_add_u32 s{S_KOFF}, s{S_KOFF}, 2048')
    a('s_waitcnt vmcnt(0)')
    mfma_s(0, 0)
    mfma_s(1, 0)
    a('s_nop 12')
    for t_ in range(2):
        for i in range(8):
            a(f'v_max3_f32 v{V_M+t_}, v{V_S+16*t_+2*i}, v{V_S+16*t_+2*i+1}, v{V_M+t_}')
    a(f's_sub_u32 s{S_CNT}, s{S_CNT}, 1')
    a(f's_cmp_lg_u32 s{S_CNT}, 0')
    a('s_cbranch_scc1 KG_MAXLOOP')
    for t_ in range(2):
        a(f'v_mov_b32 v{V_T+4+t_}, v{V_M+t_}')
    a('s_nop 1')
    for t_ in range(2):
        a(f'v_permlane32_swap_b32 v{V_M+t_}, v{V_T+4+t_}')
    a('s_nop 1')
    for t_ in range(2):
        a(f'v_max_f32 v{V_M+t_}, v{V_M+t_}, v{V_T+4+t_}')
    attn_pass('B', True, False)
    a('s_nop 12')
    a('s_branch KG_OUT')

    a.label('KG_HELP')
    a('s_setprio 2')
    V_I, V_G, V_L16, V_A1, V_A2, V_A3 = 1, 2, 3, 4, 5, 6
    V_U = 8
    u = lambda i: f'v{V_U+i}'
    srd(a, R_X, S_X, 2048 * 1024)
    a(f's_mov_b32 s{S_HW}, s{S_W}')
    a(f'v_and_b32 v{V_I}, 15, v0')
    a(f'v_lshrrev_b32 v{V_G}, 4, v0')
    a(f'v_lshlrev_b32 v{V_L16}, 4, v0')
    a(f's_lshl_b32 s{S_F}, s{S_HG}, 5')
    a(f's_add_u32 s{S_F}, s{S_F}, s{S_QG}')
    a(f's_cmp_eq_u32 s{S_HW}, 0')
    a('s_cbranch_scc1 KG_KV')
    a('s_barrier')
    stamp(1)
    a(f's_cmp_eq_u32 s{S_HW}, 1')
    a('s_cbranch_scc1 KG_WT')

    def thr():
        a(f's_waitcnt vmcnt({THR})')
    def flag_store(base):
        a(f's_lshr_b32 s{S_T0}, s{S_F}, 2')
        a(f's_lshl_b32 s{S_T0}, s{S_T0}, 7')
        a(f's_and_b32 s{S_T1}, s{S_F}, 3')
        a(f's_lshl_b32 s{S_T1}, s{S_T1}, 2')
        a(f's_add_u32 s{S_T0}, s{S_T0}, s{S_T1}')
        a(f's_add_u32 s{S_T0}, s{S_T0}, {base}')
        a(f'v_mov_b32 {u(0)}, 0')
        a(f'v_mov_b32 {u(1)}, s{S_TAG}')
        a('s_mov_b64 exec, 1')
        a(f'buffer_store_dword {u(1)}, {u(0)}, {ws}, s{S_T0} offen{SC}')
        a('s_mov_b64 exec, -1')
    def glob_poll(tag, execmask, sleep, wide=True):
        a(f's_mov_b32 s{S_CNT}, {POLL_LIMIT}')
        a(f'v_lshlrev_b32 {u(0)}, 7, v0')
        a(f's_mov_b64 exec, {execmask}')
        a.label(f'KG_GP{tag}')
        if wide:
            a(f'buffer_load_dwordx4 {vr(V_U+4,4)}, {u(0)}, {ws}, s{S_T1} offen{SC}')
            a('s_waitcnt vmcnt(0)')
            for i in range(4):
                a(f'v_xor_b32 {u(4+i)}, s{S_TAG}, {u(4+i)}')
            a(f'v_or3_b32 {u(4)}, {u(4)}, {u(5)}, {u(6)}')
            a(f'v_or_b32 {u(4)}, {u(4)}, {u(7)}')
            a(f'v_cmp_ne_u32 vcc, 0, {u(4)}')
        else:
            a(f'buffer_load_dword {u(4)}, {u(0)}, {ws}, s{S_T1} offen{SC}')
            a('s_waitcnt vmcnt(0)')
            a(f'v_cmp_ne_u32 vcc, s{S_TAG}, {u(4)}')
        a(f's_sub_u32 s{S_CNT}, s{S_CNT}, 1')
        a(f's_cbranch_scc1 KG_GD{tag}')
        a('s_and_b64 exec, exec, vcc')
        a(f's_cbranch_scc0 KG_GD{tag}')
        a(f's_sleep {sleep}')
        a(f's_branch KG_GP{tag}')
        a.label(f'KG_GD{tag}')
        a('s_mov_b64 exec, -1')

    a(f'v_lshrrev_b32 {u(0)}, 3, v0')
    a(f'v_and_b32 {u(1)}, 7, v0')
    a(f's_cmp_eq_u32 s{S_HW}, 3')
    a('s_cbranch_scc1 KG_LDW')
    def loader(rs, soff, cstep, lbase, vo, flag):
        a(f's_mov_b32 s{S_T2}, 0')
        a(f's_mov_b32 s{S_T3}, {lbase}')
        for c in range(8):
            for w in range(8):
                a(f's_add_u32 m0, s{S_T3}, {w*1024}')
                a(f's_add_u32 s{S_T0}, s{S_T2}, {soff(w)}')
                a(f'buffer_load_dwordx4 {vo(w)}, {rs}, s{S_T0} offen lds')
            if c < 7:
                a(f's_add_u32 s{S_T2}, s{S_T2}, {cstep}')
                a(f's_add_u32 s{S_T3}, s{S_T3}, 8192')
            if c >= LOAD_D:
                a(f's_waitcnt vmcnt({8*LOAD_D})')
                a(f'v_mov_b32 {u(6)}, {c - LOAD_D + 1}')
                a(f'ds_write_b32 v{V_Z}, {u(6)} offset:{4*flag}')
        for c in range(8 - LOAD_D, 8):
            a(f's_waitcnt vmcnt({8*(7-c)})')
            a(f'v_mov_b32 {u(6)}, {c + 1}')
            a(f'ds_write_b32 v{V_Z}, {u(6)} offset:{4*flag}')
    a(f'v_lshrrev_b32 {u(2)}, 2, {u(0)}')
    a(f'v_and_b32 {u(3)}, 3, {u(0)}')
    a(f'v_lshl_add_u32 {u(2)}, {u(2)}, 4, {u(3)}')
    a(f'v_lshlrev_b32 {u(2)}, 15, {u(2)}')
    a(f's_lshl_b32 s{S_T0}, s{S_QG}, 10')
    a(f'v_add_u32 {u(2)}, s{S_T0}, {u(2)}')
    a(f'v_xor_b32 {u(3)}, v{V_G}, {u(1)}')
    a(f'v_lshl_add_u32 {u(4)}, {u(3)}, 4, {u(2)}')
    a(f'v_xor_b32 {u(3)}, 4, {u(3)}')
    a(f'v_lshl_add_u32 {u(5)}, {u(3)}, 4, {u(2)}')
    loader(xs, lambda w: (32*(w >> 2) + 4*(w & 3)) * 32768, 128, L_X, lambda w: u(4 + (w & 1)), F_CX)
    stamp(2)
    a('s_branch KG_H2')
    a.label('KG_LDW')
    srd(a, R_A, S_WQ, 512 * 1024)
    a(f'v_and_b32 {u(2)}, 1, v{V_G}')
    a(f'v_lshlrev_b32 {u(2)}, 2, {u(2)}')
    a(f'v_xor_b32 {u(2)}, {u(2)}, {u(1)}')
    a(f'v_lshlrev_b32 {u(2)}, 4, {u(2)}')
    a(f'v_lshl_add_u32 {u(2)}, {u(0)}, 10, {u(2)}')
    a(f's_lshl_b32 s{S_T0}, s{S_HG}, 7')
    a(f'v_add_u32 {u(4)}, s{S_T0}, {u(2)}')
    loader(ra, lambda w: w * 8192, 65536, L_WQ, lambda w: u(4), F_CW)
    stamp(2)
    a('s_branch KG_H2')

    a.label('KG_KV')
    KX, KW, KA = 16, 80, 144
    S_RB, S_TY = S_P, S_KH
    a(f's_lshr_b32 s{S_RB}, s{S_HG}, 1')
    a(f's_and_b32 s{S_TY}, s{S_HG}, 1')
    a(f's_cmp_eq_u32 s{S_TY}, 1')
    a(f's_cselect_b64 s[{S_C0}:{S_C0+1}], s[{S_WV}:{S_WV+1}], s[{S_WK}:{S_WK+1}]')
    srd(a, R_A, S_C0, 16384)
    srd(a, R_B, S_GT, 1024)
    a(f's_lshl_b32 s{S_T0}, s{S_RB}, 9')
    a(f's_add_u32 s{S_T0}, s{S_T0}, s{S_QG}')
    a(f'v_lshlrev_b32 v{V_A1}, 5, v{V_I}')
    a(f'v_add_u32 v{V_A1}, s{S_T0}, v{V_A1}')
    a(f'v_lshlrev_b32 {u(0)}, 10, v{V_A1}')
    a(f'v_lshl_add_u32 {u(0)}, v{V_G}, 4, {u(0)}')
    for i in range(16):
        a(f's_mov_b32 m0, {L_KW + i*1024}')
        a(f's_movk_i32 s{S_T0}, {i*1024}')
        a(f'buffer_load_dwordx4 v{V_L16}, {ra}, s{S_T0} offen lds')
        a(f'buffer_load_dwordx4 {vr(KX+4*i,4)}, {u(0)}, {xs}, 0 offen offset:{64*i}')
    a(f's_mov_b32 m0, {L_GATE}')
    a('s_nop 0')
    a(f'buffer_load_dwordx4 v{V_L16}, {rb_}, 0 offen lds')
    a('s_barrier')
    stamp(1)
    a(f'v_bfe_u32 {u(1)}, v0, 2, 2')
    a(f'v_and_b32 {u(2)}, 3, v0')
    a(f'v_lshl_add_u32 {u(1)}, v{V_G}, 3, {u(1)}')
    a(f'v_lshlrev_b32 {u(1)}, 5, {u(1)}')
    a(f'v_lshl_add_u32 {u(1)}, {u(2)}, 3, {u(1)}')
    a(f'v_add_u32 v{V_A2}, {L_KW}, {u(1)}')
    a(f's_lshl_b32 s{S_T2}, s{S_QG}, 12')
    a(f's_lshr_b32 s{S_T0}, s{S_RB}, 1')
    a(f's_lshl_b32 s{S_T0}, s{S_T0}, 11')
    a(f's_add_u32 s{S_T2}, s{S_T2}, s{S_T0}')
    a(f's_and_b32 s{S_T0}, s{S_RB}, 1')
    a(f's_lshl_b32 s{S_T0}, s{S_T0}, 9')
    a(f's_add_u32 s{S_T2}, s{S_T2}, s{S_T0}')
    a(f's_add_u32 s{S_T2}, s{S_T2}, {WS_KV}')
    a(f'v_and_b32 {u(2)}, 1, v{V_G}')
    a(f'v_lshrrev_b32 {u(3)}, 1, v{V_G}')
    a(f'v_lshlrev_b32 {u(4)}, 5, v{V_I}')
    a(f'v_lshl_add_u32 {u(4)}, {u(2)}, 4, {u(4)}')
    a(f'v_lshl_add_u32 {u(4)}, {u(3)}, 3, {u(4)}')
    a(f'v_lshlrev_b32 {u(5)}, 8, {u(2)}')
    a(f'v_lshl_add_u32 {u(5)}, v{V_I}, 4, {u(5)}')
    a(f'v_lshl_add_u32 {u(5)}, {u(3)}, 3, {u(5)}')
    a(f'v_add_u32 {u(5)}, 1024, {u(5)}')
    a('s_waitcnt vmcnt(1)')
    stamp(2)
    def kv_reads(ks):
        a(f'ds_read_b64_tr_b16 {vr(KW+4*ks,2)}, v{V_A2} offset:{ks*1024}')
        a(f'ds_read_b64_tr_b16 {vr(KW+4*ks+2,2)}, v{V_A2} offset:{ks*1024+128}')
    for ks in range(7):
        kv_reads(ks)
    a(f's_cmp_eq_u32 s{S_TY}, 1')
    a('s_cbranch_scc1 KG_KV1')
    for ty in range(2):
        if ty == 1:
            a.label('KG_KV1')
        for ks in range(16):
            n_out = min(6, 15 - ks)
            a(f's_waitcnt lgkmcnt({2*n_out})')
            cc = vr(KA + 4*(ks & 1), 4) if ks >= 2 else '0'
            if ty == 0:
                a(f'v_mfma_f32_16x16x32_bf16 {vr(KA+4*(ks&1),4)}, {vr(KW+4*ks,4)}, {vr(KX+4*ks,4)}, {cc}')
            else:
                a(f'v_mfma_f32_16x16x32_bf16 {vr(KA+4*(ks&1),4)}, {vr(KX+4*ks,4)}, {vr(KW+4*ks,4)}, {cc}')
            if ks + 7 < 16:
                kv_reads(ks + 7)
        a('s_nop 7')
        for i in range(4):
            a(f'v_add_f32 v{KA+i}, v{KA+i}, v{KA+4+i}')
        a(f'v_cvt_pk_bf16_f32 v{KA+8}, v{KA}, v{KA+1}')
        a(f'v_cvt_pk_bf16_f32 v{KA+9}, v{KA+2}, v{KA+3}')
        a(f'buffer_store_dwordx2 {vr(KA+8,2)}, {u(4+ty)}, {ws}, s{S_T2} offen{SC}')
        lds_wait(F_TAGOK, 1, V_U)
        get_tag(V_U)
        a('s_waitcnt vmcnt(0)')
        flag_store(WS_FL1)
        a(f'v_mov_b32 {u(1)}, 1')
        a(f'ds_write_b32 v{V_Z}, {u(1)} offset:{4*F_KVPUB}')
        stamp(3)
        if ty == 1:
            a('s_branch KG_H2')
        else:
            a(f'v_lshlrev_b32 {u(2)}, 4, v{V_G}')
            a(f'v_add_u32 {u(2)}, {L_GATE}, {u(2)}')
            for half in range(2):
                for k8 in range(8):
                    ks = 8*half + k8
                    a(f'ds_read_b128 {vr(KW+4*ks,4)}, {u(2)} offset:{64*ks}')
                for k8 in range(8):
                    ks = 8*half + k8
                    a(f's_waitcnt lgkmcnt({7-k8})')
                    cc = vr(KA, 4) if ks else '0'
                    a(f'v_mfma_f32_16x16x32_bf16 {vr(KA,4)}, {vr(KW+4*ks,4)}, {vr(KX+4*ks,4)}, {cc}')
            a(f's_lshl_b32 s{S_T0}, s{S_QG}, 6')
            a(f's_lshr_b32 s{S_T1}, s{S_RB}, 1')
            a(f's_lshl_b32 s{S_T1}, s{S_T1}, 5')
            a(f's_add_u32 s{S_T0}, s{S_T0}, s{S_T1}')
            a(f's_and_b32 s{S_T1}, s{S_RB}, 1')
            a(f's_lshl_b32 s{S_T1}, s{S_T1}, 2')
            a(f's_add_u32 s{S_T0}, s{S_T0}, s{S_T1}')
            a(f's_lshl_b32 s{S_T0}, s{S_T0}, 2')
            a(f's_add_u32 s{S_T1}, s{S_T0}, {WS_G}')
            a(f'v_lshrrev_b32 {u(2)}, 2, v{V_I}')
            a(f'v_and_b32 {u(4)}, 3, v{V_I}')
            a(f'v_lshl_add_u32 {u(2)}, {u(2)}, 3, {u(4)}')
            a(f'v_lshlrev_b32 {u(2)}, 2, {u(2)}')
            a(f'v_cvt_pk_bf16_f32 {u(3)}, v{KA}, v{KA}')
            a(f'v_lshlrev_b32 {u(3)}, 16, {u(3)}')
            a(f's_mov_b32 s{S_T0}, {f32_bits(-math.log2(math.e))}')
            a(f'v_mul_f32 {u(3)}, s{S_T0}, {u(3)}')
            a(f'v_exp_f32 {u(3)}, {u(3)}')
            a('s_nop 0')
            a(f'v_add_f32 {u(3)}, 1.0, {u(3)}')
            a(f'v_rcp_f32 {u(3)}, {u(3)}')
            a('s_nop 0')
            a(f'v_cvt_pk_bf16_f32 {u(3)}, {u(3)}, {u(3)}')
            a(f'v_lshlrev_b32 {u(3)}, 16, {u(3)}')
            a('s_mov_b64 exec, 0xffff')
            a(f'buffer_store_dword {u(3)}, {u(2)}, {ws}, s{S_T1} offen{SC}')
            a('s_mov_b64 exec, -1')
            a('s_branch KG_H2')

    a.label('KG_WT')
    S_FW, S_G4, S_PT = S_P, S_KH, S_KB
    a(f's_mov_b32 s{S_T3}, {WS_ROOT}')
    a(f'v_mov_b32 {u(2)}, 0')
    a(f'buffer_load_dword {u(3)}, {u(2)}, {ws}, s{S_T3} offen{SC}')
    a('s_waitcnt vmcnt(0)')
    a(f'v_readfirstlane_b32 s{S_TAG}, {u(3)}')
    a(f's_mul_i32 s{S_TAG}, s{S_TAG}, {TAG_M}')
    a(f's_add_u32 s{S_TAG}, s{S_TAG}, {TAG_C}')
    a(f'v_mov_b32 {u(1)}, 1')
    a(f'v_mov_b32 {u(3)}, s{S_TAG}')
    a(f'ds_write_b32 v{V_Z}, {u(3)} offset:{4*F_TAG}')
    a(f'ds_write_b32 v{V_Z}, {u(1)} offset:{4*F_TAGOK}')
    stamp(2)
    lds_wait(F_KVPUB, 1, V_U)
    a(f's_mov_b32 s{S_T1}, {WS_FL1}')
    glob_poll('KV', -1, KV_SLEEP)
    a(f'v_mov_b32 {u(1)}, 1')
    a(f'ds_write_b32 v{V_Z}, {u(1)} offset:{4*F_KVOK}')
    stamp(4)
    a(f's_cmp_lg_u32 s{S_F}, 0')
    a('s_cbranch_scc1 KG_NOROOT')
    a('s_mov_b64 exec, 1')
    a(f'buffer_store_dword {u(3)}, {u(2)}, {ws}, s{S_T3} offen{SC}')
    a('s_mov_b64 exec, -1')
    a.label('KG_NOROOT')
    a(f's_lshr_b32 s{S_FW}, s{S_QG}, 3')
    a(f's_bfe_u32 s{S_G4}, s{S_QG}, 0x20001')
    a(f's_and_b32 s{S_PT}, s{S_QG}, 1')
    a(f's_cmp_eq_u32 s{S_PT}, 1')
    a(f's_cselect_b64 s[{S_C0}:{S_C0+1}], s[{S_WI}:{S_WI+1}], s[{S_WR}:{S_WR+1}]')
    srd(a, R_A, S_C0, 2048 * 514)
    a(f's_lshl_b32 s{S_T3}, s{S_FW}, 4')
    a(f's_lshl_b32 s{S_T1}, s{S_G4}, 8')
    a(f's_add_u32 s{S_T1}, s{S_T1}, s{S_T3}')
    a(f'v_add_u32 {u(2)}, s{S_T1}, v{V_I}')
    a(f'v_mul_u32_u24 {u(2)}, 514, {u(2)}')
    a(f'v_lshl_add_u32 {u(2)}, v{V_G}, 4, {u(2)}')
    a(f's_lshl_b32 s{S_T1}, s{S_HG}, 6')
    a(f'v_add_u32 {u(2)}, s{S_T1}, {u(2)}')
    lds_wait(F_AST, 4, V_U + 4, sleep=4)
    for e in range(8):
        a(f's_mov_b32 s{S_T0}, {(16*(e>>2)+(e&3))*32896}')
        a(f'buffer_load_dwordx4 {vr(16+4*e,4)}, {u(2)}, {ra}, s{S_T0} offen')
        thr()
    a(f's_or_b32 s{S_KOFF}, s{S_HG}, s{S_G4}')
    a(f's_cmp_lg_u32 s{S_KOFF}, 0')
    a('s_cbranch_scc1 KG_WT1')
    a(f'v_lshl_add_u32 {u(3)}, v{V_G}, 8, v{V_I}')
    a(f'v_add_u32 {u(3)}, s{S_T3}, {u(3)}')
    a(f'v_mul_u32_u24 {u(3)}, 514, {u(3)}')
    for e in range(8):
        a(f's_mov_b32 s{S_T0}, {(16*(e>>2)+(e&3))*32896}')
        a(f'buffer_load_ushort v{80+e}, {u(3)}, {ra}, s{S_T0} offen offset:512')
    a.label('KG_WT1')
    a(f's_mov_b32 s{S_C0}, 0x05040100')
    a(f's_mov_b32 s{S_C0+1}, 0x07060302')
    a(f'v_lshlrev_b32 {u(2)}, 16, v{V_G}')
    a(f'v_lshl_add_u32 {u(2)}, v{V_I}, 4, {u(2)}')
    a(f's_lshl_b32 s{S_T1}, s{S_HG}, 18')
    a(f's_lshl_b32 s{S_T2}, s{S_FW}, 11')
    a(f's_lshl_b32 s{S_T0}, s{S_PT}, 10')
    a(f's_add_u32 s{S_T2}, s{S_T2}, s{S_T0}')
    a(f's_add_u32 s{S_T2}, s{S_T2}, {WS_WT}')
    a(f's_add_u32 s{S_T1}, s{S_T1}, s{S_T2}')
    a(f's_lshl_b32 s{S_T0}, s{S_G4}, 8')
    a(f's_add_u32 s{S_T1}, s{S_T1}, s{S_T0}')
    a('s_waitcnt vmcnt(0)')
    stamp(3)
    for ph in range(8):
        for q in range(4):
            lo = 16 + 4*(2*q) + (ph >> 1); hi = 16 + 4*(2*q+1) + (ph >> 1)
            a(f'v_perm_b32 v{48+4*ph+q}, v{hi}, v{lo}, s{S_C0+(ph&1)}')
    for ph in range(8):
        a(f's_add_u32 s{S_T0}, s{S_T1}, {8192*ph}')
        a(f'buffer_store_dwordx4 {vr(48+4*ph,4)}, {u(2)}, {ws}, s{S_T0} offen{SC}')
    a(f's_cmp_lg_u32 s{S_KOFF}, 0')
    a('s_cbranch_scc1 KG_WT2')
    for q in range(4):
        a(f'v_lshl_or_b32 v{88+q}, v{81+2*q}, 16, v{80+2*q}')
    a(f's_add_u32 s{S_T0}, s{S_T2}, {256*8192}')
    a(f'buffer_store_dwordx4 {vr(88,4)}, v{V_L16}, {ws}, s{S_T0} offen{SC}')
    a.label('KG_WT2')
    a('s_waitcnt vmcnt(0)')

    a.label('KG_H2')
    HT, HX, HA = 16, 80, 144
    if E('NOHELP', 0) == 1:
        dump()
        a('s_endpgm')
    lds_wait(F_AST, 4, V_U + 4, sleep=4)
    table_srd(a, R_TB, 'TAB_F', 512 * 1024, 'f')
    a(f's_and_b32 s{S_A}, s{S_HW}, 1')
    a(f's_lshr_b32 s{S_CT}, s{S_HW}, 1')
    a(f's_lshl_b32 s{S_T2}, s{S_HG}, 16')
    a(f's_lshl_b32 s{S_T0}, s{S_CT}, 10')
    a(f's_add_u32 s{S_T2}, s{S_T2}, s{S_T0}')
    def tload(i):
        if i % 2 == 0:
            a(f's_add_u32 s{S_T3}, s{S_T2}, {i*2048}')
        a(f'buffer_load_dwordx4 {vr(HT+4*(i%16),4)}, v{V_L16}, {tb}, s{S_T3} offen offset:{(i%2)*2048}')
    PD = THR + 1
    for i in range(PD):
        tload(i)
    a(f'v_and_b32 {u(4)}, 31, v0')
    a(f'v_lshrrev_b32 {u(5)}, 5, v0')
    a(f'v_bfe_u32 {u(6)}, v0, 1, 3')
    a(f's_lshl_b32 s{S_T0}, s{S_A}, 12')
    a(f'v_lshlrev_b32 {u(7)}, 7, {u(4)}')
    a(f'v_add_u32 {u(7)}, s{S_T0}, {u(7)}')
    for ks in range(4):
        a(f'v_add_u32 v{HA+ks}, {2*ks}, {u(5)}')
        a(f'v_xor_b32 v{HA+ks}, v{HA+ks}, {u(6)}')
        a(f'v_lshl_add_u32 {u(ks)}, v{HA+ks}, 4, {u(7)}')
    a(f'v_lshlrev_b32 v{V_A1}, 12, {u(4)}')
    a(f'v_lshl_add_u32 v{V_A1}, {u(5)}, 5, v{V_A1}')
    get_tag(V_U + 4)
    stamp(5)
    def xread(i):
        a(f'ds_read_b128 {vr(HX+4*(i%16),4)}, {u(i&3)} offset:{(i>>2)*8192}')
    for i in range(8):
        xread(i)
    for i in range(32):
        a(f's_waitcnt vmcnt({min(PD-1, 31-i)}) lgkmcnt({min(7, 31-i)})')
        if i + PD < 32: tload(i + PD)
        cc = vr(HA, 16) if i else '0'
        a(f'v_mfma_f32_32x32x16_bf16 {vr(HA,16)}, {vr(HX+4*(i%16),4)}, {vr(HT+4*(i%16),4)}, {cc}')
        if i + 8 < 32: xread(i + 8)
    a(f's_lshl_b32 s{S_T0}, s{S_HG}, 18')
    a(f's_lshl_b32 s{S_T1}, s{S_CT}, 17')
    a(f's_add_u32 s{S_T0}, s{S_T0}, s{S_T1}')
    a(f's_lshl_b32 s{S_T1}, s{S_QG}, 7')
    a(f's_add_u32 s{S_T0}, s{S_T0}, s{S_T1}')
    a(f's_lshl_b32 s{S_T1}, s{S_A}, 6')
    a(f's_add_u32 s{S_T0}, s{S_T0}, s{S_T1}')
    a(f's_add_u32 s{S_T0}, s{S_T0}, {WS_X1T}')
    a('s_nop 4')
    for i in range(8):
        a(f'v_cvt_pk_bf16_f32 v{160+i}, v{HA+2*i}, v{HA+2*i+1}')
    for q in range(2):
        a(f'buffer_store_dwordx4 {vr(160+4*q,4)}, v{V_A1}, {ws}, s{S_T0} offen offset:{16*q}{SC}')
    a('s_waitcnt vmcnt(0)')
    stamp(6)
    lds_add(F_J1, V_U + 2)

    V_T1 = 16
    V_T2 = 64
    V_D = 88
    V_TW = 104
    V_XX = 120
    V_W = 136
    V_AC = 152
    S_FW = S_HW
    table_srd(a, R_TB, 'TAB_K2', 24576 + 6144 + 32768, 'k2')
    O_T1, O_T2, O_TW1, O_TW2 = 0, 24576, 30720, 30720 + 16384
    a(f's_lshr_b32 s{S_MH}, s{S_FW}, 1')
    a(f's_and_b32 s{S_NH}, s{S_FW}, 1')
    a(f's_cmp_lg_u32 s{S_HW}, 0')
    a('s_cbranch_scc1 KG_S1A')
    lds_wait(F_J1, 4, V_U, sleep=4)
    flag_store(WS_FL2)
    a.label('KG_S1A')
    a(f's_mul_i32 s{S_T0}, s{S_MH}, 12288')
    for i in range(12):
        if i % 4 == 0 and i:
            a(f's_add_u32 s{S_T0}, s{S_T0}, 4096')
        a(f'buffer_load_dwordx4 {vr(V_T1+4*i,4)}, v{V_L16}, {tb}, s{S_T0} offen offset:{(i%4)*1024}')
        thr()
    a(f's_lshl_b32 s{S_T2}, s{S_FW}, 12')
    a(f's_add_u32 s{S_T0}, s{S_T2}, {O_TW1}')
    for i in range(4):
        a(f'buffer_load_dwordx4 {vr(V_TW+4*i,4)}, v{V_L16}, {tb}, s{S_T0} offen offset:{i*1024}')
        thr()
    a(f's_mov_b32 s{S_T0}, {O_T2}')
    a(f's_mov_b32 s{S_T1}, {O_T2+4096}')
    for i in range(6):
        a(f'buffer_load_dwordx4 {vr(V_T2+4*i,4)}, v{V_L16}, {tb}, s{S_T0+(i>>2)} offen offset:{(i%4)*1024}')
        thr()
    a(f's_cmp_lg_u32 s{S_HW}, 0')
    a('s_cbranch_scc1 KG_S1W')
    a(f's_lshl_b32 s{S_T1}, s{S_HG}, 10')
    a(f's_add_u32 s{S_T1}, s{S_T1}, {WS_FL2}')
    glob_poll('S1', 0xff, 16)
    a(f'v_mov_b32 {u(1)}, 1')
    a(f'ds_write_b32 v{V_Z}, {u(1)} offset:{4*F_S1OK}')
    a.label('KG_S1W')
    lds_wait(F_S1OK, 1, V_U, sleep=4)
    stamp(7)
    a(f'v_lshlrev_b32 v{V_A1}, 7, v{V_I}')
    a(f'v_lshl_add_u32 v{V_A1}, v{V_G}, 4, v{V_A1}')
    a(f's_lshl_b32 s{S_T0}, s{S_F}, 13')
    a(f's_lshl_b32 s{S_T1}, s{S_NH}, 11')
    a(f's_add_u32 s{S_T0}, s{S_T0}, s{S_T1}')
    a(f's_add_u32 s{S_T0}, s{S_T0}, {WS_X1T}')
    a(f's_add_u32 s{S_T1}, s{S_T0}, 4096')
    for part in range(2):
        for ks in range(2):
            a(f'buffer_load_dwordx4 {vr(V_D+8*part+4*ks,4)}, v{V_A1}, {ws}, s{S_T0+part} offen offset:{64*ks}{SC}')
    a(f's_lshl_b32 s{S_T0}, s{S_FW}, 4')
    a(f'v_lshl_add_u32 v{V_A3}, v{V_G}, 8, v{V_I}')
    a(f'v_add_u32 v{V_A3}, s{S_T0}, v{V_A3}')
    a(f's_lshl_b32 s{S_T0}, s{S_F}, 13')
    a(f's_lshl_b32 s{S_T1}, s{S_FW}, 11')
    a(f's_add_u32 s{S_T1}, s{S_T1}, {WS_WT}')
    a(f's_add_u32 s{S_T0}, s{S_T0}, s{S_T1}')
    a(f's_add_u32 s{S_T1}, s{S_T1}, {256*8192}')
    for part in range(2):
        a(f'buffer_load_dwordx4 {vr(V_W+8*part+4,4)}, v{V_L16}, {ws}, s{S_T0} offen offset:{1024*part}{SC}')
    for part in range(2):
        a(f'buffer_load_dwordx4 {vr(V_XX+8*part+4,4)}, v{V_L16}, {ws}, s{S_T1} offen offset:{1024*part}{SC}')

    def mf(d, x, y, c):
        cc = vr(d, 4) if c else '0'
        a(f'v_mfma_f32_16x16x32_bf16 {vr(d,4)}, {vr(x,4)}, {vr(y,4)}, {cc}')
    def t1(nt, ks, v): return V_T1 + 4 * ((nt * 2 + ks) * 3 + v)
    def t2(mt, v): return V_T2 + 4 * (mt * 3 + v)
    def cmul_pack(dst):
        for t_ in range(2):
            for r in range(4):
                ar, ai = V_AC + 8*t_ + r, V_AC + 8*t_ + 4 + r
                c_, s_ = V_TW + 8*t_ + r, V_TW + 8*t_ + 4 + r
                uu = V_U + (r & 1) * 2
                a(f'v_mul_f32 v{uu}, v{ar}, v{c_}')
                a(f'v_mul_f32 v{uu+1}, v{ar}, v{s_}')
                a(f'v_fma_f32 v{ar}, -v{ai}, v{s_}, v{uu}')
                a(f'v_fma_f32 v{ai}, v{ai}, v{c_}, v{uu+1}')
        for i in range(8):
            a(f'v_cvt_pk_bf16_f32 v{dst+i}, v{V_AC+2*i}, v{V_AC+2*i+1}')
    def sync(flag):
        a('s_waitcnt lgkmcnt(0)')
        lds_add(flag, V_U)
        lds_wait(flag, 4, V_U, sleep=2)

    a('s_waitcnt vmcnt(4)')
    zr = lambda ks: V_D + 4*ks
    zi = lambda ks: V_D + 8 + 4*ks
    for ks in range(2):
        for nt in range(2):
            mf(V_AC + 8*nt, zr(ks), t1(nt, ks, 0), ks)
            mf(V_AC + 8*nt + 4, zi(ks), t1(nt, ks, 0), ks)
        for nt in range(2):
            mf(V_AC + 8*nt, zi(ks), t1(nt, ks, 2), 1)
            mf(V_AC + 8*nt + 4, zr(ks), t1(nt, ks, 1), 1)
    a(f's_mul_i32 s{S_T0}, s{S_MH}, 2560')
    a(f's_lshl_b32 s{S_T1}, s{S_NH}, 3')
    a(f's_add_u32 s{S_T0}, s{S_T0}, s{S_T1}')
    a(f'v_mul_u32_u24 v{V_A1}, 80, v{V_I}')
    a(f'v_lshl_add_u32 v{V_A1}, v{V_G}, 4, v{V_A1}')
    a(f'v_add_u32 v{V_A1}, {L_APR}, v{V_A1}')
    a(f'v_add_u32 {u(4)}, s{S_T0}, v{V_A1}')
    a('s_nop 4')
    cmul_pack(V_D)
    for nt in range(2):
        a(f'ds_write_b64 {u(4)}, {vr(V_D+4*nt,2)} offset:{1280*nt}')
        a(f'ds_write_b64 {u(4)}, {vr(V_D+4*nt+2,2)} offset:{L_API-L_APR+1280*nt}')
    a(f's_add_u32 s{S_T0}, s{S_T2}, {O_TW2}')
    for i in range(4):
        a(f'buffer_load_dwordx4 {vr(V_TW+4*i,4)}, v{V_L16}, {tb}, s{S_T0} offen offset:{i*1024}')
    sync(F_SY0)
    a(f's_mul_i32 s{S_T0}, s{S_FW}, 1280')
    a(f'v_add_u32 {u(4)}, s{S_T0}, v{V_A1}')
    a(f'ds_read_b128 {vr(V_D,4)}, {u(4)}')
    a(f'ds_read_b128 {vr(V_D+4,4)}, {u(4)} offset:{L_API-L_APR}')
    a('s_waitcnt vmcnt(4) lgkmcnt(0)')
    for mt in range(2):
        mf(V_AC + 8*mt, t2(mt, 0), V_D, 0)
        mf(V_AC + 8*mt + 4, t2(mt, 0), V_D + 4, 0)
    for mt in range(2):
        mf(V_AC + 8*mt, t2(mt, 2), V_D + 4, 1)
        mf(V_AC + 8*mt + 4, t2(mt, 1), V_D, 1)
    def unpack(base):
        for part in range(2):
            b = base + 8*part
            for q in range(4):
                a(f'v_lshlrev_b32 v{b+2*q}, 16, v{b+4+q}')
                a(f'v_and_b32 v{b+2*q+1}, 0xffff0000, v{b+4+q}')
    unpack(V_W)
    a(f's_cmp_eq_u32 s{S_F}, 0')
    a('s_cbranch_scc1 KG_SPECIAL')
    for e in range(8):
        mt, r = e >> 2, e & 3
        ar, ai = V_AC + 8*mt + r, V_AC + 8*mt + 4 + r
        c_, s_ = V_W + e, V_W + 8 + e
        uu = V_U + (r & 1) * 2
        a(f'v_mul_f32 v{uu}, v{ar}, v{c_}')
        a(f'v_mul_f32 v{uu+1}, v{ar}, v{s_}')
        a(f'v_fma_f32 v{ar}, -v{ai}, v{s_}, v{uu}')
        a(f'v_fma_f32 v{ai}, v{ai}, v{c_}, v{uu+1}')
    a.label('KG_STEP3')
    for mt in range(2):
        for part in range(2):
            for q in range(2):
                src = V_AC + 8*mt + 4*part + 2*q
                a(f'v_cvt_pk_bf16_f32 v{V_D+4*part+2*mt+q}, v{src}, v{src+1}')
    a('s_nop 1')
    for mt in range(2):
        mf(V_AC + 8*mt, V_D, t2(mt, 0), 0)
        mf(V_AC + 8*mt + 4, V_D + 4, t2(mt, 0), 0)
    for mt in range(2):
        mf(V_AC + 8*mt, V_D + 4, t2(mt, 1), 1)
        mf(V_AC + 8*mt + 4, V_D, t2(mt, 2), 1)
    a(f'v_mul_u32_u24 v{V_A1}, 144, v{V_I}')
    a(f'v_add_u32 v{V_A1}, {L_CPR}, v{V_A1}')
    a(f's_lshl_b32 s{S_T0}, s{S_FW}, 5')
    a(f'v_lshl_add_u32 {u(4)}, v{V_G}, 3, v{V_A1}')
    a(f'v_add_u32 {u(4)}, s{S_T0}, {u(4)}')
    a('s_waitcnt vmcnt(0)')
    a('s_nop 4')
    cmul_pack(V_D)
    for mt in range(2):
        a(f'ds_write_b64 {u(4)}, {vr(V_D+4*mt,2)} offset:{2304*mt}')
        a(f'ds_write_b64 {u(4)}, {vr(V_D+4*mt+2,2)} offset:{L_CPI-L_CPR+2304*mt}')
    sync(F_SY1)
    a(f's_mul_i32 s{S_T0}, s{S_NH}, 2304')
    a(f'v_lshl_add_u32 {u(4)}, v{V_G}, 4, v{V_A1}')
    a(f'v_add_u32 {u(4)}, s{S_T0}, {u(4)}')
    for part in range(2):
        for ks in range(2):
            a(f'ds_read_b128 {vr(V_D+8*part+4*ks,4)}, {u(4)} offset:{(L_CPI-L_CPR)*part+64*ks}')
    a('s_waitcnt lgkmcnt(0)')
    for ks in range(2):
        for nt in range(2):
            mf(V_AC + 8*nt, t1(nt, ks, 0), zr(ks), ks)
            mf(V_AC + 8*nt + 4, t1(nt, ks, 0), zi(ks), ks)
        for nt in range(2):
            mf(V_AC + 8*nt, t1(nt, ks, 1), zi(ks), 1)
            mf(V_AC + 8*nt + 4, t1(nt, ks, 2), zr(ks), 1)
    a(f'v_lshlrev_b32 {u(4)}, 7, v{V_I}')
    a(f'v_lshl_add_u32 {u(4)}, v{V_G}, 4, {u(4)}')
    a(f's_lshl_b32 s{S_T0}, s{S_F}, 13')
    a(f's_lshl_b32 s{S_T1}, s{S_NH}, 11')
    a(f's_add_u32 s{S_T0}, s{S_T0}, s{S_T1}')
    a(f's_lshl_b32 s{S_T1}, s{S_MH}, 6')
    a(f's_add_u32 s{S_T0}, s{S_T0}, s{S_T1}')
    a(f's_add_u32 s{S_T0}, s{S_T0}, {WS_Y1T}')
    a(f's_add_u32 s{S_T1}, s{S_T0}, 4096')
    for part in range(2):
        for nt in range(2):
            for q in range(2):
                src = V_AC + 8*nt + 4*part + 2*q
                a(f'v_cvt_pk_bf16_f32 v{V_D+4*part+2*nt+q}, v{src}, v{src+1}')
    for part in range(2):
        a(f'buffer_store_dwordx4 {vr(V_D+4*part,4)}, {u(4)}, {ws}, s{S_T0+part} offen{SC}')
    a('s_waitcnt vmcnt(0)')
    stamp(8)
    lds_add(F_J2, V_U)
    if E('NOHELP', 0) == 2:
        dump()
        a('s_endpgm')

    AB, AA, FR, LF = 16, 32, 48, 176
    V_DM, V_RA, V_RY, V_OUT, V_GT, V_DW = 208, 209, 210, 211, 212, 213
    S_MI, S_NI = S_CT, S_A
    srd(a, R_A, S_WO, 512 * 1024)
    srd(a, R_OUT, S_OUT, 2048 * 1024)
    table_srd(a, R_TB, 'TAB_FINV', 512 * 1024, 'fi')
    a(f'v_lshrrev_b32 {u(0)}, 3, v0')
    a(f'v_and_b32 {u(1)}, 7, v0')
    a(f'v_and_b32 {u(2)}, 1, v{V_G}')
    a(f'v_lshlrev_b32 {u(3)}, 2, {u(2)}')
    a(f'v_xor_b32 {u(3)}, {u(3)}, {u(1)}')
    a(f'v_lshlrev_b32 {u(3)}, 4, {u(3)}')
    a(f'v_lshl_add_u32 {u(4)}, {u(0)}, 10, {u(3)}')
    a(f'v_mov_b32 v{V_DW}, {u(4)}')
    a(f's_lshl_b32 s{S_T3}, s{S_HW}, 14')
    a(f'v_lshl_add_u32 v{V_DM}, {u(0)}, 12, {u(3)}')
    a(f'v_and_b32 {u(0)}, 31, v0')
    a(f'v_lshrrev_b32 {u(1)}, 5, v0')
    a(f'v_bfe_u32 {u(3)}, v0, 2, 2')
    a(f'v_and_b32 {u(4)}, 3, v0')
    a(f'v_lshrrev_b32 {u(5)}, 1, {u(4)}')
    a(f'v_and_b32 {u(4)}, 1, {u(4)}')
    a(f'v_lshrrev_b32 {u(6)}, 1, {u(3)}')
    a(f'v_lshlrev_b32 {u(6)}, 2, {u(6)}')
    a(f'v_lshl_add_u32 {u(7)}, {u(4)}, 1, {u(2)}')
    a(f's_lshl_b32 s{S_T0}, s{S_MI}, 2')
    a(f'v_add_u32 {u(7)}, s{S_T0}, {u(7)}')
    a(f'v_xor_b32 {u(7)}, {u(7)}, {u(6)}')
    a(f'v_lshlrev_b32 {u(7)}, 4, {u(7)}')
    a(f'v_lshl_add_u32 {u(7)}, {u(5)}, 3, {u(7)}')
    a(f'v_lshl_add_u32 v{V_RA}, {u(1)}, 2, {u(3)}')
    a(f'v_lshl_add_u32 v{V_RA}, v{V_RA}, 7, {u(7)}')
    a(f'v_lshl_add_u32 {u(7)}, {u(2)}, 1, {u(5)}')
    a(f's_lshl_b32 s{S_T0}, s{S_NI}, 2')
    a(f'v_add_u32 {u(7)}, s{S_T0}, {u(7)}')
    a(f'v_xor_b32 {u(7)}, {u(7)}, {u(6)}')
    a(f'v_lshlrev_b32 {u(7)}, 4, {u(7)}')
    a(f'v_lshl_add_u32 {u(7)}, {u(4)}, 3, {u(7)}')
    a(f'v_lshl_add_u32 v{V_RY}, {u(1)}, 3, {u(3)}')
    a(f'v_lshl_add_u32 v{V_RY}, v{V_RY}, 7, {u(7)}')
    a(f'v_add_u32 v{V_RY}, {L_Y}, v{V_RY}')
    a(f'v_bfe_u32 {u(5)}, {u(0)}, 2, 1')
    a(f'v_lshrrev_b32 {u(6)}, 3, {u(0)}')
    a(f'v_and_b32 {u(7)}, 3, {u(0)}')
    a(f'v_lshl_add_u32 {u(7)}, {u(5)}, 4, {u(7)}')
    a(f'v_lshl_add_u32 {u(7)}, {u(6)}, 2, {u(7)}')
    a(f'v_lshlrev_b32 {u(7)}, 15, {u(7)}')
    a(f'v_lshl_add_u32 {u(7)}, {u(1)}, 5, {u(7)}')
    a(f's_lshl_b32 s{S_T0}, s{S_NI}, 20')
    a(f's_lshl_b32 s{S_T1}, s{S_QG}, 10')
    a(f's_add_u32 s{S_T0}, s{S_T0}, s{S_T1}')
    a(f's_lshl_b32 s{S_T1}, s{S_HG}, 7')
    a(f's_add_u32 s{S_T0}, s{S_T0}, s{S_T1}')
    a(f's_lshl_b32 s{S_T1}, s{S_MI}, 6')
    a(f's_add_u32 s{S_T0}, s{S_T0}, s{S_T1}')
    a(f'v_add_u32 v{V_OUT}, s{S_T0}, {u(7)}')
    a(f'v_lshlrev_b32 v{V_GT}, 2, {u(0)}')
    a(f's_cmp_lg_u32 s{S_HW}, 0')
    a('s_cbranch_scc1 KG_S2A')
    lds_wait(F_J2, 4, V_U, sleep=4)
    flag_store(WS_FL3)
    a.label('KG_S2A')
    a(f's_lshl_b32 s{S_T2}, s{S_HG}, 16')
    a(f's_lshl_b32 s{S_T0}, s{S_MI}, 10')
    a(f's_add_u32 s{S_T2}, s{S_T2}, s{S_T0}')
    for i in range(32):
        if i % 2 == 0:
            a(f's_add_u32 s{S_T0}, s{S_T2}, {i*2048}')
        a(f'buffer_load_dwordx4 {vr(FR+4*i,4)}, v{V_L16}, {tb}, s{S_T0} offen offset:{(i%2)*2048}')
        thr()
    a(f's_cmp_lg_u32 s{S_HW}, 0')
    a('s_cbranch_scc1 KG_S2W')
    a(f's_mov_b32 s{S_T1}, {WS_FL3}')
    glob_poll('S2', -1, 16)
    a(f'v_mov_b32 {u(1)}, 1')
    a(f'ds_write_b32 v{V_Z}, {u(1)} offset:{4*F_S2OK}')
    a.label('KG_S2W')
    lds_wait(F_S2OK, 1, V_U, sleep=4)
    stamp(9)
    a(f's_lshl_b32 s{S_T2}, s{S_HW}, 19')
    a(f's_lshl_b32 s{S_T0}, s{S_QG}, 7')
    a(f's_add_u32 s{S_T2}, s{S_T2}, s{S_T0}')
    a(f's_add_u32 s{S_T2}, s{S_T2}, {WS_Y1T}')
    for i in range(16):
        a(f's_add_u32 m0, s{S_T3}, {L_Y + i*1024}')
        a(f's_add_u32 s{S_T0}, s{S_T2}, {i*32768}')
        a(f'buffer_load_dwordx4 v{V_DM}, {ws}, s{S_T0} offen{SC} lds')
        thr()
    a(f's_lshl_b32 s{S_T0}, s{S_QG}, 8')
    a(f's_lshl_b32 s{S_T1}, s{S_NI}, 7')
    a(f's_add_u32 s{S_T0}, s{S_T0}, s{S_T1}')
    a(f's_add_u32 s{S_T0}, s{S_T0}, {WS_G}')
    a(f'buffer_load_dword v{V_GT}, v{V_GT}, {ws}, s{S_T0} offen{SC}')
    a('s_waitcnt vmcnt(0)')
    sync(F_J3)
    def lread(i, addr, second):
        a(f'ds_read_b64_tr_b16 {vr(LF+4*(i%8),2)}, v{addr} offset:{i*2048}')
        a(f'ds_read_b64_tr_b16 {vr(LF+4*(i%8)+2,2)}, v{addr} offset:{i*2048+second}')
    for i in range(6):
        lread(i, V_RY, 512)
    for i in range(32):
        a(f's_waitcnt lgkmcnt({2*min(5, 31-i)})')
        cc = vr(AB, 16) if i else '0'
        a(f'v_mfma_f32_32x32x16_bf16 {vr(AB,16)}, {vr(FR+4*i,4)}, {vr(LF+4*(i%8),4)}, {cc}')
        if i + 6 < 32: lread(i + 6, V_RY, 512)
    stamp(10)
    if E('NOHELP', 0) == 3:
        dump()
        a('s_endpgm')
    a(f's_lshl_b32 s{S_T2}, s{S_HW}, 17')
    a(f's_lshl_b32 s{S_T0}, s{S_HG}, 7')
    a(f's_add_u32 s{S_T2}, s{S_T2}, s{S_T0}')
    for i in range(16):
        a(f's_add_u32 m0, s{S_T3}, {L_WO + i*1024}')
        a(f's_add_u32 s{S_T0}, s{S_T2}, {i*8192}')
        a(f'buffer_load_dwordx4 v{V_DW}, {ra}, s{S_T0} offen lds')
        thr()
    a('s_waitcnt vmcnt(0)')
    sync(F_J4)
    for i in range(6):
        lread(i, V_RA, 1024)
    stamp(4)
    lds_wait(F_ADONE, 1, V_U, sleep=4)
    a(f's_lshl_b32 s{S_T2}, s{S_QG}, 1')
    a(f's_add_u32 s{S_T2}, s{S_T2}, s{S_NI}')
    a(f's_lshl_b32 s{S_T1}, s{S_T2}, 11')
    a(f's_add_u32 s{S_T1}, s{S_T1}, {WS_FL4}')
    a(f's_lshl_b32 s{S_T2}, s{S_T2}, 15')
    a(f's_add_u32 s{S_T2}, s{S_T2}, {WS_O}')
    glob_poll('O', 0xffff, O_SLEEP, wide=False)
    stamp(11)
    for i in range(32):
        if i % 4 == 0 and i:
            a(f's_add_u32 s{S_T2}, s{S_T2}, 4096')
        a(f'buffer_load_dwordx4 {vr(FR+4*i,4)}, v{V_L16}, {ws}, s{S_T2} offen offset:{(i%4)*1024}{OSC}')
    for i in range(32):
        a(f's_waitcnt vmcnt({31-i}) lgkmcnt({2*min(5, 31-i)})')
        cc = vr(AA, 16) if i else '0'
        a(f'v_mfma_f32_32x32x16_bf16 {vr(AA,16)}, {vr(LF+4*(i%8),4)}, {vr(FR+4*i,4)}, {cc}')
        if i + 6 < 32: lread(i + 6, V_RA, 1024)
    a('s_nop 11')
    for i in range(16):
        a(f'v_sub_f32 v{AA+i}, v{AA+i}, v{AB+i}')
        a(f'v_fma_f32 v{AA+i}, v{V_GT}, v{AA+i}, v{AB+i}')
    for i in range(8):
        a(f'v_cvt_pk_bf16_f32 v{LF+i}, v{AA+2*i}, v{AA+2*i+1}')
    for q in range(2):
        a(f'buffer_store_dwordx4 {vr(LF+4*q,4)}, v{V_OUT}, {sr(R_OUT,4)}, 0 offen offset:{16*q}')
    dump()
    a('s_endpgm')

    a.label('KG_SPECIAL')
    unpack(V_XX)
    lds_wait(F_QDONE, 4, V_U)
    a(f'v_lshlrev_b32 {u(4)}, 2, v{V_A3}')
    a(f'v_add_u32 {u(6)}, {L_SP}, {u(4)}')
    for e in range(8):
        mt, r = e >> 2, e & 3
        srcs = [V_AC + 8*mt + r, V_AC + 8*mt + 4 + r, V_W + e, V_W + 8 + e, V_XX + e, V_XX + 8 + e]
        for pl, s_ in enumerate(srcs):
            a(f'ds_write_b32 {u(6)}, v{s_} offset:{8192*pl + 256*(16*mt+r)}')
    sync(F_SY2)
    a(f's_mov_b32 s{S_T0}, {f32_bits(0.125)}')
    for e in range(8):
        mt, r = e >> 2, e & 3
        zr_, zi_ = V_AC + 8*mt + r, V_AC + 8*mt + 4 + r
        a0r, a0i, a1r, a1i = V_W + e, V_W + 8 + e, V_XX + e, V_XX + 8 + e
        a(f'v_sub_u32 {u(5)}, {8192 - 256*(16*mt+r)}, {u(4)}')
        a(f'v_and_b32 {u(5)}, 8188, {u(5)}')
        a(f'v_add_u32 {u(5)}, {L_SP}, {u(5)}')
        n = V_D
        for pl in range(6):
            a(f'ds_read_b32 v{n+pl}, {u(5)} offset:{8192*pl}')
        a('s_waitcnt lgkmcnt(0)')
        znr, zni, b0r, b0i, b1r, b1i = [n + i for i in range(6)]
        a(f'v_add_f32 v{b0r}, v{a0r}, v{b0r}')
        a(f'v_sub_f32 v{b0i}, v{a0i}, v{b0i}')
        a(f'v_add_f32 v{b1r}, v{a1r}, v{b1r}')
        a(f'v_sub_f32 v{b1i}, v{a1i}, v{b1i}')
        pr, pi_, mr, mi = n + 6, n + 7, n + 8, n + 9
        a(f'v_add_f32 v{pr}, v{b0r}, v{b1r}')
        a(f'v_add_f32 v{pi_}, v{b0i}, v{b1i}')
        a(f'v_sub_f32 v{mr}, v{b0r}, v{b1r}')
        a(f'v_sub_f32 v{mi}, v{b0i}, v{b1i}')
        rr, ri = n + 10, n + 11
        a(f'v_mul_f32 v{rr}, v{zr_}, v{pr}')
        a(f'v_mul_f32 v{ri}, v{zr_}, v{pi_}')
        a(f'v_fma_f32 v{rr}, -v{zi_}, v{pi_}, v{rr}')
        a(f'v_fma_f32 v{ri}, v{zi_}, v{pr}, v{ri}')
        a(f'v_fma_f32 v{rr}, v{znr}, v{mr}, v{rr}')
        a(f'v_fma_f32 v{ri}, v{znr}, v{mi}, v{ri}')
        a(f'v_fma_f32 v{rr}, v{zni}, v{mi}, v{rr}')
        a(f'v_fma_f32 v{ri}, -v{zni}, v{mr}, v{ri}')
        a(f'v_mul_f32 v{zr_}, s{S_T0}, v{rr}')
        a(f'v_mul_f32 v{zi_}, s{S_T0}, v{ri}')
    a('s_branch KG_STEP3')
    a.label('KG_END')
    a('s_endpgm')
    return 216, (102 if ST in (5, 6) else NS)

def build_g(path):
    a = Asm()
    hdr = open(f'cdna_kernels/{NAME}.s.ref').read().split('\n')
    for l in hdr:
        if l.startswith(';') and '@launch' not in l and 'Override launch' not in l and 'grid=ceil' not in l:
            a.raw(l)
    kn = NAME + '_kernel'
    if E('PLAIN', 0):
        a.raw(f'; @launch grid=(256,1,1) block=(512,1,1) lds={KG_LDS}')
    else:
        a.raw(f'; @launch kernel={kn} grid=(256,1,1) block=(512,1,1) lds={KG_LDS}')
    a.raw('.amdgcn_target "amdgcn-amd-amdhsa--gfx950"')
    a.raw('.text')
    v, s = gen_g(a, kn)
    a.raw('.section .rodata,"a"')
    kernel_desc(a, kn, v, s)
    gen_tables(a)
    gen_k2.gen_tables_k2(a)
    gen_k3.gen_tables_k3(a)
    open(path, 'w').write(a.text())

if __name__ == '__main__':
    build_g(sys.argv[1] if len(sys.argv) > 1 else 'g.s')
```

```python
from gen import *
import gen_k2, gen_k3
from gen_k2 import YSCALE
import os

WS_ROOT = 0x240000
WS_FL1 = 0x244000
WS_FL2 = 0x248000
WS_FL3 = 0x24C000
WS_FL4 = 0x260000
TAG_M, TAG_C = 0x9E3779B1, 0x7F4A7C15
WS_KVT = 0x000000

L_X = 0
L_WQ = 65536
L_FLAG = 131072
L_KW = L_FLAG + 256
L_GATE = L_KW + 16384
KG_LDS = 163840
L_APR = L_KW; L_API = L_APR + 5120
L_CPR = L_API + 5120; L_CPI = L_CPR + 4608
L_MX = L_KW
L_MXM = L_KW + 20480
assert L_CPI + 4608 <= L_MXM and L_MX + 8 * 2304 <= L_MXM and L_MXM + 4096 <= KG_LDS and L_GATE + 1024 <= L_MXM
L_SP = L_WQ
L_WO = L_X
L_Y = L_WQ
F_CX, F_CW = 0, 1
F_CC, F_MG, F_MM, F_PG, F_QX = 0, 8, 16, 40, 48
L_QX = L_GATE + 1024
assert L_QX + 8192 <= KG_LDS
F_N, F_TAG, F_QDONE, F_J1, F_S1OK, F_SY0, F_SY1, F_SY2, F_J2, F_S2OK, F_J3, F_TAGOK, F_ADONE, F_J4, F_KVS, F_GI, F_PRE = range(24, 41)
F_Q = 8
L_PRE = L_KW
NWAVE = 8
WS_G = 0x230000
E = lambda k, d: int(os.environ.get(k, str(d)))
LOAD_D = E('LOAD_D', 6)
KV_SLEEP = E('KV_SLEEP', 4)
O_SLEEP = E('O_SLEEP', 2)
THR = E('THR', 3)
LD_PRE = E('LD_PRE', 0)
KV_BAR = E('KV_BAR', 15)
FAIR = E('FAIR', 1)
KV_LAG = E('KV_LAG', 0)
TF_LAG = E('TF_LAG', 1)
WT_LAG = E('WT_LAG', 8)
G_DELAY = E('G_DELAY', 8)
Q7_SLEEP = E('Q7_SLEEP', 0)
H2_PD = E('H2_PD', 12)
KVSC = ' sc1' if E('KVSC1', 0) else ''
OSC = ' sc1' if E('OSC1', 0) else ''
SC = ' sc1'
POLL_LIMIT = 1 << 18
NSTAMP = 12

def gen_g(a, name):
    kernel_header(a, name)
    S_X, S_WQ, S_WK, S_WV, S_WO, S_WS, S_WR, S_WI, S_GT, S_OUT = 4, 6, 8, 10, 12, 14, 16, 18, 20, 22
    R_X, R_WS, R_A, R_B, R_TB, R_OUT = 24, 28, 32, 36, 40, 44
    S_W, S_QG, S_HG, S_T0, S_T1, S_T2, S_T3, S_CNT, S_KOFF, S_KB, S_P, S_KH = 48, 49, 50, 51, 52, 53, 54, 55, 56, 57, 58, 59
    S_VM = 60; S_C0 = 62; S_C1 = 64
    S_CT, S_A, S_F, S_HW, S_MH, S_NH, S_SEEN, S_LIM, S_TAG = 3, 66, 67, 68, 69, 70, 71, 72, 73
    NS = 74
    SB = 74
    ws = sr(R_WS, 4); xs = sr(R_X, 4); ra = sr(R_A, 4); rb_ = sr(R_B, 4); tb = sr(R_TB, 4)
    TM = 's_memrealtime' if ST in (5, 7) else 's_memtime'
    duid = [0]
    def stamp(i):
        if ST in (5, 6, 7):
            a(f'{TM} s[{SB+2*i}:{SB+1+2*i}]')
    def dump(kind=0):
        n = NSTAMP
        if ST == 7:
            duid[0] += 1
            a('s_waitcnt vmcnt(0)')
            a(f'{TM} s[{SB+2*n}:{SB+1+2*n}]')
            a(f's_load_dwordx2 s[{R_A}:{R_A+1}], s[0:1], 80')
            a(f's_mov_b32 s{R_A+2}, 256')
            a(f's_mov_b32 s{R_A+3}, 0x20000')
            a('s_waitcnt lgkmcnt(0)')
            a('s_mov_b64 exec, 1')
            a('v_mov_b32 v0, 0')
            a(f's_cmp_lg_u32 s{S_W}, {4 if kind else 0}')
            a(f's_cbranch_scc1 KG_DD{duid[0]}')
            if kind:
                a(f's_not_b32 s{S_T0}, s{SB}')
                a(f'v_mov_b32 v2, s{S_T0}')
                a(f'buffer_atomic_umax v2, v0, {ra}, 0 offen offset:0')
                L = [(2, 0), (3, 2), (4, 3), (5, 4), (6, 5), (7, 12)]
            else:
                a(f'v_mov_b32 v2, s{SB+24}')
                a(f'buffer_atomic_umax v2, v0, {ra}, 0 offen offset:4')
                L = [(8, 3), (9, 5), (10, 6), (11, 7), (12, 8), (13, 9), (14, 11), (15, 12)]
            for k, (sl, st_) in enumerate(L):
                a(f'v_mov_b32 v{3+k}, s{SB+2*st_}')
                a(f'buffer_atomic_add v{3+k}, v0, {ra}, 0 offen offset:{4*sl}')
            a.label(f'KG_DD{duid[0]}')
        if ST in (5, 6):
            a('s_waitcnt vmcnt(0)')
            a(f'{TM} s[{SB+2*n}:{SB+1+2*n}]')
            a('s_mov_b64 exec, 1')
            a(f's_lshl_b32 s{S_T0}, s2, 4')
            a(f's_add_u32 s{S_T0}, s{S_T0}, s{S_W}')
            a(f's_lshl_b32 s{S_T0}, s{S_T0}, 6')
            a(f's_add_u32 s{S_T0}, s{S_T0}, {0xC00000}')
            a('s_waitcnt lgkmcnt(0)')
            a(f's_mov_b32 s{R_WS+2}, 0x1000000')
            a('v_mov_b32 v0, 0')
            for i in range(n + 1):
                a(f'v_mov_b32 v2, s{SB+2*i}')
                a(f'buffer_store_dword v2, v0, {ws}, s{S_T0} offen offset:{4*i}')
                a('s_nop 1')

    a('s_cmp_ge_u32 s2, 256')
    a('s_cbranch_scc1 KG_END')
    if ST in (5, 6, 7):
        for i in range(NSTAMP + 1):
            a(f's_mov_b32 s{SB+2*i}, 0')
    stamp(0)
    a(f's_load_dwordx8 s[{S_X}:{S_X+7}], s[0:1], 0')
    a(f's_load_dwordx2 s[{S_WS}:{S_WS+1}], s[0:1], 88')
    a(f's_load_dwordx4 s[{S_GT}:{S_GT+3}], s[0:1], 64')
    a(f's_load_dwordx2 s[{S_WO}:{S_WO+1}], s[0:1], 32')
    a(f's_load_dwordx4 s[{S_WR}:{S_WR+3}], s[0:1], 48')
    a('v_lshrrev_b32 v1, 6, v0')
    a('v_and_b32 v0, 63, v0')
    a(f's_and_b32 s{S_T0}, s2, 7')
    a(f'v_readfirstlane_b32 s{S_W}, v1')
    a(f's_lshl_b32 s{S_T0}, s{S_T0}, 2')
    a(f's_lshr_b32 s{S_QG}, s2, 6')
    a(f's_add_u32 s{S_QG}, s{S_QG}, s{S_T0}')
    a(f's_bfe_u32 s{S_HG}, s2, 0x30003')
    a(f's_mov_b32 s{S_LIM}, {1<<21}')
    V_Z = 7
    a(f'v_mov_b32 v{V_Z}, {L_FLAG}')
    a(f's_cmp_lg_u32 s{S_W}, 0')
    a('s_cbranch_scc1 KG_B0')
    a(f'v_lshl_add_u32 v2, v0, 2, v{V_Z}')
    a('v_mov_b32 v3, 0')
    a('ds_write_b32 v2, v3')
    a('s_waitcnt lgkmcnt(0)')
    a.label('KG_B0')
    a(f's_cmp_lt_u32 s{S_W}, 4')
    a('s_cbranch_scc1 KG_HELP')

    uid = [0]
    def lds_wait(flag, val, vtmp, sleep=1, addr=None, sdst=None):
        uid[0] += 1; u = uid[0]
        addr = V_Z if addr is None else addr
        sdst = S_T0 if sdst is None else sdst
        a.label(f'KG_LW{u}')
        a(f'ds_read_b32 v{vtmp}, v{addr} offset:{4*flag}')
        a('s_waitcnt lgkmcnt(0)')
        a(f'v_readfirstlane_b32 s{sdst}, v{vtmp}')
        a(f's_cmp_ge_u32 s{sdst}, {val}')
        a(f's_cbranch_scc1 KG_LD{u}')
        a(f's_sleep {sleep}')
        a(f's_sub_u32 s{S_LIM}, s{S_LIM}, 1')
        a(f's_cbranch_scc0 KG_LW{u}')
        a(f's_mov_b32 s{S_LIM}, 0')
        a.label(f'KG_LD{u}')
    def lds_add(flag, vtmp):
        a(f'v_mov_b32 v{vtmp}, 1')
        a('s_mov_b64 exec, 1')
        a(f'ds_add_u32 v{V_Z}, v{vtmp} offset:{4*flag}')
        a('s_mov_b64 exec, -1')
    def get_tag(vtmp):
        a(f'ds_read_b32 v{vtmp}, v{V_Z} offset:{4*F_TAG}')
        a('s_waitcnt lgkmcnt(0)')
        a(f'v_readfirstlane_b32 s{S_TAG}, v{vtmp}')

    V_OQ, V_OV = 2, 3
    V_M = 4
    V_H = 6
    V_Q = 8
    V_S = 16
    V_P = 48
    V_O = 64
    V_K = 96
    V_V = 128
    V_T = 192
    S_N = S_KH
    V_QA, V_QV, V_LK, V_LV = V_T + 16, V_T + 17, V_T + 18, V_T + 19
    a(f's_and_b32 s{S_CT}, s{S_W}, 1')
    a(f's_bfe_u32 s{S_A}, s{S_W}, 0x10001')
    a(f's_mov_b32 s{S_N}, 0')
    a('v_and_b32 v1, 31, v0')
    a(f'v_lshrrev_b32 v{V_H}, 5, v0')
    V_XA = V_T
    V_WA = V_T + 4
    t = lambda i: f'v{V_T+8+i}'
    a(f'v_bfe_u32 {t(0)}, v0, 1, 3')
    a(f's_lshl_b32 s{S_T0}, s{S_A}, 12')
    a(f'v_lshlrev_b32 {t(1)}, 7, v1')
    a(f'v_add_u32 {t(1)}, s{S_T0}, {t(1)}')
    for ks in range(4):
        a(f'v_add_u32 {t(2)}, {2*ks}, v{V_H}')
        a(f'v_xor_b32 {t(2)}, {t(2)}, {t(0)}')
        a(f'v_lshl_add_u32 v{V_XA+ks}, {t(2)}, 4, {t(1)}')
    a(f'v_bfe_u32 {t(0)}, v0, 2, 2')
    a(f'v_and_b32 {t(1)}, 3, v0')
    a(f'v_bfe_u32 {t(2)}, v0, 4, 1')
    a(f'v_lshl_add_u32 {t(3)}, v{V_H}, 3, {t(0)}')
    a(f'v_lshlrev_b32 {t(3)}, 7, {t(3)}')
    a(f'v_lshrrev_b32 {t(4)}, 1, {t(1)}')
    a(f'v_and_b32 {t(5)}, 1, {t(1)}')
    a(f'v_lshrrev_b32 {t(6)}, 1, {t(0)}')
    a(f'v_lshlrev_b32 {t(6)}, 2, {t(6)}')
    a(f'v_lshl_add_u32 {t(7)}, {t(2)}, 1, {t(4)}')
    a(f's_lshl_b32 s{S_T0}, s{S_CT}, 2')
    a(f'v_add_u32 {t(7)}, s{S_T0}, {t(7)}')
    a(f'v_xor_b32 {t(7)}, {t(7)}, {t(6)}')
    a(f'v_lshl_add_u32 {t(7)}, {t(7)}, 4, {t(3)}')
    a(f'v_lshl_add_u32 v{V_WA}, {t(5)}, 3, {t(7)}')
    a(f'v_add_u32 v{V_WA}, {L_WQ}, v{V_WA}')
    a(f'v_lshlrev_b32 v{V_OQ}, 5, v1')
    a(f'v_lshl_add_u32 v{V_OQ}, v{V_H}, 4, v{V_OQ}')
    a(f'v_and_b32 v{V_OV}, 15, v0')
    a(f'v_lshlrev_b32 v{V_OV}, 4, v{V_OV}')
    a(f'v_lshl_add_u32 v{V_OV}, v{V_H}, 8, v{V_OV}')
    a(f'v_add_u32 v{V_OV}, 1024, v{V_OV}')
    a(f'v_add_u32 v{V_LK}, {L_PRE}, v{V_OQ}')
    a(f'v_add_u32 v{V_LV}, {L_PRE}, v{V_OV}')
    a(f'v_add_u32 v{V_QA}, {4*(F_Q+1)}, v{V_Z}')
    a(f's_mov_b32 s{S_VM}, 0xffff')
    a(f's_mov_b32 s{S_VM+1}, 0xffff')
    a(f'v_and_b32 {t(0)}, 27, v1')
    a(f'v_cmp_eq_u32 vcc, 16, {t(0)}')
    a(f'v_mov_b32 {t(1)}, 0x3f803f80')
    a(f'v_mov_b32 v{V_M}, 0')
    a(f'v_mov_b32 v{V_M+1}, 0')
    a(f'v_cndmask_b32 {t(1)}, 0, {t(1)}, vcc')
    for i in range(64):
        a(f'v_mov_b32 v{V_V+i}, {t(1)}')
    QA = V_S
    QB = (V_O, V_S + 16)
    a(f's_mov_b32 s{S_SEEN}, 0')
    a('s_waitcnt lgkmcnt(0)')
    srd(a, R_WS, S_WS, WS_SIZE)
    a('s_barrier')
    stamp(1)
    def q_wait(c):
        a(f's_cmp_gt_u32 s{S_SEEN}, {c}')
        a(f's_cbranch_scc1 KG_QG{c}')
        a.label(f'KG_QP{c}')
        a(f'ds_read_b64 {vr(V_T+8,2)}, v{V_Z} offset:{4*F_CX}')
        a('s_waitcnt lgkmcnt(0)')
        a(f'v_min_u32 {t(0)}, {t(0)}, {t(1)}')
        a('s_nop 0')
        a(f'v_readfirstlane_b32 s{S_SEEN}, {t(0)}')
        a(f's_cmp_gt_u32 s{S_SEEN}, {c}')
        a(f's_cbranch_scc1 KG_QG{c}')
        if c < 7 or Q7_SLEEP:
            a('s_sleep 1')
        a(f's_sub_u32 s{S_LIM}, s{S_LIM}, 1')
        a(f's_cbranch_scc0 KG_QP{c}')
        a(f's_mov_b32 s{S_LIM}, 0')
        a.label(f'KG_QG{c}')
    def q_reads(c):
        b = QB[c & 1]
        for ks in range(4):
            a(f'ds_read_b128 {vr(b+4*ks,4)}, v{V_XA+ks} offset:{c*8192}')
            a(f'ds_read_b64_tr_b16 {vr(b+16+4*ks,2)}, v{V_WA} offset:{c*8192+ks*2048}')
            a(f'ds_read_b64_tr_b16 {vr(b+16+4*ks+2,2)}, v{V_WA} offset:{c*8192+ks*2048+512}')
    for c in range(8):
        q_wait(c); q_reads(c)
        b = QB[c & 1]
        for ks in range(4):
            a(f's_waitcnt lgkmcnt({9 - 3*ks})')
            cc = vr(QA, 16) if (c or ks) else '0'
            a(f'v_mfma_f32_32x32x16_bf16 {vr(QA,16)}, {vr(b+16+4*ks,4)}, {vr(b+4*ks,4)}, {cc}')
    stamp(2)
    spins = []
    def pre_check(n):
        uid[0] += 1; u = uid[0]
        a(f's_cmp_lt_u32 s{S_N}, {n}')
        a(f's_cbranch_scc1 KG_SP{u}')
        a.label(f'KG_SR{u}')
        spins.append(('pre', u, n))
    def q_check():
        uid[0] += 1; u = uid[0]
        a(f's_cmp_eq_u32 s{S_KOFF}, 0')
        a(f's_cbranch_scc1 KG_SP{u}')
        a.label(f'KG_SR{u}')
        a(f'v_add_u32 v{V_QA}, 4, v{V_QA}')
        spins.append(('q', u, 0))
    def emit_spins():
        for kind, u, n in spins:
            a.label(f'KG_SP{u}')
            if kind == 'pre':
                a(f'ds_read_b32 v{V_T+8}, v{V_Z} offset:{4*F_PRE}')
                a('s_waitcnt lgkmcnt(0)')
                a(f'v_readfirstlane_b32 s{S_N}, v{V_T+8}')
                a(f's_cmp_ge_u32 s{S_N}, {n}')
                a(f's_cbranch_scc1 KG_SR{u}')
            else:
                a(f'ds_read_b32 v{V_T+8}, v{V_QA}')
                a('s_waitcnt lgkmcnt(0)')
                a(f'v_readfirstlane_b32 s{S_KOFF}, v{V_T+8}')
                a('s_nop 3')
                a(f's_cmp_lg_u32 s{S_KOFF}, 0')
                a(f's_cbranch_scc1 KG_SR{u}')
                a('s_sleep 1')
            a(f's_sub_u32 s{S_LIM}, s{S_LIM}, 1')
            a(f's_cbranch_scc0 KG_SP{u}')
            a(f's_mov_b32 s{S_LIM}, 0')
            a(f's_branch KG_SR{u}')
        spins.clear()

    def load_k(slot, off):
        a(f'buffer_load_dwordx4 {vr(V_K+4*slot,4)}, v{V_OQ}, {ws}, s{S_KOFF} offen offset:{off}{KVSC}')
    def kv_group(c, adv=True):
        load_k(c & 7, 0)
        load_k((c + 1) & 7, 2048)
        a(f's_mov_b64 exec, s[{S_VM}:{S_VM+1}]')
        for j in range(2):
            sl = (c + j) & 7
            a(f'buffer_load_dwordx4 {vr(V_V+8*sl,4)}, v{V_OV}, {ws}, s{S_KOFF} offen offset:{2048*j}{KVSC}')
            a(f'buffer_load_dwordx4 {vr(V_V+8*sl+4,4)}, v{V_OV}, {ws}, s{S_KOFF} offen offset:{2048*j+512}{KVSC}')
        a('s_mov_b64 exec, -1')
        if adv:
            a(f's_add_u32 s{S_KOFF}, s{S_KOFF}, 4096')
    def pre_reads(c):
        a(f'ds_read_b128 {vr(V_K+4*c,4)}, v{V_LK} offset:{2048*c}')
        a(f's_mov_b64 exec, s[{S_VM}:{S_VM+1}]')
        a(f'ds_read_b128 {vr(V_V+8*c,4)}, v{V_LV} offset:{2048*c}')
        a(f'ds_read_b128 {vr(V_V+8*c+4,4)}, v{V_LV} offset:{2048*c+512}')
        a('s_mov_b64 exec, -1')
    def mfma_s(t_, slot):
        a(f'v_mfma_f32_32x32x16_bf16 {vr(V_S+16*t_,16)}, {vr(V_K+4*slot,4)}, {vr(V_Q+4*t_,4)}, 0')
    def mfma_pv(t_, slot, pp, zero=False):
        cc = '0' if zero else vr(V_O+16*t_, 16)
        a(f'v_mfma_f32_32x32x16_bf16 {vr(V_O+16*t_,16)}, {vr(V_V+8*slot+4*pp,4)}, {vr(V_P+8*t_+4*pp,4)}, {cc}')
    def cv(t_, i):
        a(f'v_cvt_pk_bf16_f32 v{V_P+8*t_+i}, v{V_S+16*t_+2*i}, v{V_S+16*t_+2*i+1}')

    def body(sub, peel, dyn):
        def ex(t_, i):
            r = V_S + 16*t_ + i
            if sub:
                a(f'v_sub_f32 v{r}, v{r}, v{V_M+t_}')
            a(f'v_exp_f32 v{r}, v{r}')
        for b in range(8):
            for t_ in range(2):
                if peel and t_ == 0 and b < 7:
                    pre_check(b + 2)
                    pre_reads(b + 1)
                    if b == 1:
                        a(f'ds_read_b32 v{V_QV}, v{V_QA}')
                ex(t_, 0); ex(t_, 1)
                if t_ == 1:
                    mfma_pv(0, b, 1)
                elif not (peel and b == 0):
                    mfma_pv(1, (b - 1) & 7, 1)
                ex(t_, 2); ex(t_, 3); ex(t_, 4); ex(t_, 5)
                if t_ == 1:
                    if peel and b < 7:
                        a('s_waitcnt lgkmcnt(0)')
                    elif b & 1:
                        a('s_waitcnt vmcnt(12)' + (' lgkmcnt(0)' if (dyn and b == 1) else ''))
                    mfma_s(0, (b + 1) & 7)
                    if dyn and b == 1:
                        a(f'v_readfirstlane_b32 s{S_KOFF}, v{V_QV}')
                    if peel and b == 6:
                        lds_add(F_QDONE, V_T + 8)
                else:
                    mfma_s(1, b)
                ex(t_, 6); ex(t_, 7)
                cv(t_, 0); cv(t_, 1); cv(t_, 2); cv(t_, 3)
                if t_ == 0 and b % 2 == 0 and not E('NOKV', 0) and not (peel and b == 0):
                    if dyn and b == 2:
                        q_check()
                    kv_group(b + 6, adv=not (dyn and b == 0))
                    if dyn and b == 0:
                        a(f'ds_read_b32 v{V_QV}, v{V_QA}')
                ex(t_, 8); ex(t_, 9)
                mfma_pv(t_, b, 0, zero=(peel and b == 0))
                for i in range(10, 16):
                    ex(t_, i)
                cv(t_, 4); cv(t_, 5); cv(t_, 6); cv(t_, 7)

    def attn_pass(tag, sub, first):
        if first:
            pre_check(1)
            pre_reads(0)
            stamp(3)
            a('s_nop 4')
            for i in range(8):
                a(f'v_cvt_pk_bf16_f32 v{V_Q+i}, v{QA+2*i}, v{QA+2*i+1}')
            a('s_waitcnt lgkmcnt(0)')
            mfma_s(0, 0)
            a(f's_mov_b32 s{S_CNT}, 7')
            stamp(4)
            a('s_nop 4')
            body(False, True, True)
        else:
            a(f's_mov_b32 s{S_KOFF}, {WS_KV}')
            for c in range(0, 6, 2):
                kv_group(c)
            for i in range(32):
                a(f'v_mov_b32 v{V_O+i}, 0')
            for i in range(4):
                a(f'v_mov_b32 v{V_P+12+i}, 0')
            a('s_waitcnt vmcnt(12)')
            mfma_s(0, 0)
            a(f's_mov_b32 s{S_CNT}, 8')
            a('s_nop 10')
        a.label(f'KG_LOOP{tag}')
        body(sub, False, first)
        a(f's_sub_u32 s{S_CNT}, s{S_CNT}, 1')
        a(f's_cmp_lg_u32 s{S_CNT}, 0')
        a(f's_cbranch_scc1 KG_LOOP{tag}')
        mfma_pv(1, 7, 1)

    attn_pass('A', False, True)
    stamp(5)
    a(f'ds_read_b32 v{V_T}, v{V_Z} offset:{4*F_TAG}')
    a(f's_lshl_b32 s{S_T2}, s{S_QG}, 1')
    a(f's_add_u32 s{S_T2}, s{S_T2}, s{S_A}')
    a(f's_lshl_b32 s{S_T3}, s{S_HG}, 1')
    a(f's_add_u32 s{S_T3}, s{S_T3}, s{S_CT}')
    a(f's_lshl_b32 s{S_T2}, s{S_T2}, 4')
    a(f's_add_u32 s{S_T2}, s{S_T2}, s{S_T3}')
    a(f's_lshl_b32 s{S_T3}, s{S_T2}, 7')
    a(f's_add_u32 s{S_T3}, s{S_T3}, {WS_FL4}')
    a(f's_lshl_b32 s{S_T2}, s{S_T2}, 11')
    a(f's_add_u32 s{S_T2}, s{S_T2}, {WS_O}')
    a(f'v_lshlrev_b32 v{V_T+1}, 4, v0')
    a(f'v_mov_b32 v{V_T+2}, 0')
    a(f's_mov_b32 s{S_T0}, {f32_bits(2.0**-30)}')
    a(f's_mov_b32 s{S_T1}, {f32_bits(2.0**30)}')
    a(f'v_cmp_le_f32 s[{S_C0}:{S_C0+1}], s{S_T0}, v{V_O+8}')
    a(f'v_cmp_ge_f32 s[{S_C1}:{S_C1+1}], s{S_T1}, v{V_O+8}')
    a(f's_and_b64 s[{S_C0}:{S_C0+1}], s[{S_C0}:{S_C0+1}], s[{S_C1}:{S_C1+1}]')
    a(f'v_cmp_le_f32 s[{S_C1}:{S_C1+1}], s{S_T0}, v{V_O+24}')
    a(f's_and_b64 s[{S_C0}:{S_C0+1}], s[{S_C0}:{S_C0+1}], s[{S_C1}:{S_C1+1}]')
    a(f'v_cmp_ge_f32 s[{S_C1}:{S_C1+1}], s{S_T1}, v{V_O+24}')
    a(f's_and_b64 s[{S_C0}:{S_C0+1}], s[{S_C0}:{S_C0+1}], s[{S_C1}:{S_C1+1}]')
    a(f's_cmp_eq_u64 s[{S_C0}:{S_C0+1}], -1')
    a('s_cbranch_scc0 KG_SLOW')
    a.label('KG_OUT')
    a(f'v_rcp_f32 v{V_T+4}, v{V_O+8}')
    a(f'v_rcp_f32 v{V_T+5}, v{V_O+24}')
    a('s_nop 0')
    for t_ in range(2):
        for i in range(8):
            a(f'v_mul_f32 v{V_O+16*t_+i}, v{V_T+4+t_}, v{V_O+16*t_+i}')
        for i in range(4):
            a(f'v_cvt_pk_bf16_f32 v{V_S+4*t_+i}, v{V_O+16*t_+2*i}, v{V_O+16*t_+2*i+1}')
        a(f'buffer_store_dwordx4 {vr(V_S+4*t_,4)}, v{V_T+1}, {ws}, s{S_T2} offen offset:{1024*t_}{SC}')
    a('s_waitcnt vmcnt(0) lgkmcnt(0)')
    stamp(6)
    a(f'v_mov_b32 v{V_T+3}, 1')
    a('s_mov_b64 exec, 1')
    a(f'buffer_store_dword v{V_T}, v{V_T+2}, {ws}, s{S_T3} offen{SC}')
    a(f'ds_add_u32 v{V_Z}, v{V_T+3} offset:{4*F_ADONE}')
    dump(1)
    a('s_endpgm')
    emit_spins()

    a.label('KG_SLOW')
    lds_wait(F_N, 127, V_T + 8)
    a('s_waitcnt vmcnt(0)')
    a(f'v_mov_b32 v{V_M}, 0xff800000')
    a(f'v_mov_b32 v{V_M+1}, 0xff800000')
    a(f's_mov_b32 s{S_KOFF}, {WS_KV}')
    a(f's_mov_b32 s{S_CNT}, 64')
    a.label('KG_MAXLOOP')
    load_k(0, 0)
    a(f's_add_u32 s{S_KOFF}, s{S_KOFF}, 2048')
    a('s_waitcnt vmcnt(0)')
    mfma_s(0, 0)
    mfma_s(1, 0)
    a('s_nop 12')
    for t_ in range(2):
        for i in range(8):
            a(f'v_max3_f32 v{V_M+t_}, v{V_S+16*t_+2*i}, v{V_S+16*t_+2*i+1}, v{V_M+t_}')
    a(f's_sub_u32 s{S_CNT}, s{S_CNT}, 1')
    a(f's_cmp_lg_u32 s{S_CNT}, 0')
    a('s_cbranch_scc1 KG_MAXLOOP')
    for t_ in range(2):
        a(f'v_mov_b32 v{V_T+4+t_}, v{V_M+t_}')
    a('s_nop 1')
    for t_ in range(2):
        a(f'v_permlane32_swap_b32 v{V_M+t_}, v{V_T+4+t_}')
    a('s_nop 1')
    for t_ in range(2):
        a(f'v_max_f32 v{V_M+t_}, v{V_M+t_}, v{V_T+4+t_}')
    attn_pass('B', True, False)
    a('s_nop 12')
    a('s_branch KG_OUT')

    a.label('KG_HELP')
    a('s_setprio 2')
    V_I, V_G, V_L16, V_A1, V_A2, V_A3 = 1, 2, 3, 4, 5, 6
    V_U = 8
    u = lambda i: f'v{V_U+i}'
    a(f's_mov_b32 s{S_HW}, s{S_W}')
    a(f'v_and_b32 v{V_I}, 15, v0')
    a(f'v_lshrrev_b32 v{V_G}, 4, v0')
    a(f'v_lshlrev_b32 v{V_L16}, 4, v0')
    a(f's_lshl_b32 s{S_F}, s{S_HG}, 5')
    a(f's_add_u32 s{S_F}, s{S_F}, s{S_QG}')
    a('s_waitcnt lgkmcnt(0)')
    srd(a, R_X, S_X, 2048 * 1024)
    srd(a, R_WS, S_WS, WS_SIZE)
    a(f's_cmp_eq_u32 s{S_HW}, 0')
    a('s_cbranch_scc1 KG_KV')
    a(f's_cmp_eq_u32 s{S_HW}, 1')
    a('s_cbranch_scc1 KG_TAG')
    a('s_branch KG_H2')

    def thr():
        a(f's_waitcnt vmcnt({THR})')
    def flag_store(base, idx=None):
        idx = f's{S_F}' if idx is None else idx
        a(f's_lshr_b32 s{S_T0}, {idx}, 2')
        a(f's_lshl_b32 s{S_T0}, s{S_T0}, 7')
        a(f's_and_b32 s{S_T1}, {idx}, 3')
        a(f's_lshl_b32 s{S_T1}, s{S_T1}, 2')
        a(f's_add_u32 s{S_T0}, s{S_T0}, s{S_T1}')
        a(f's_add_u32 s{S_T0}, s{S_T0}, {base}')
        a(f'v_mov_b32 {u(0)}, 0')
        a(f'v_mov_b32 {u(1)}, s{S_TAG}')
        a('s_mov_b64 exec, 1')
        a(f'buffer_store_dword {u(1)}, {u(0)}, {ws}, s{S_T0} offen{SC}')
        a('s_mov_b64 exec, -1')
    def join_flag(cnt, n, base):
        uid[0] += 1; k = uid[0]
        a(f'v_mov_b32 {u(0)}, 1')
        a('s_waitcnt vmcnt(0)')
        a('s_mov_b64 exec, 1')
        a(f'ds_add_rtn_u32 {u(1)}, v{V_Z}, {u(0)} offset:{4*cnt}')
        a('s_mov_b64 exec, -1')
        a('s_waitcnt lgkmcnt(0)')
        a(f'v_readfirstlane_b32 s{S_T0}, {u(1)}')
        a(f's_cmp_lg_u32 s{S_T0}, {n-1}')
        a(f's_cbranch_scc1 KG_JN{k}')
        flag_store(base)
        a.label(f'KG_JN{k}')
    def glob_poll(tag, execmask, sleep, wide=True, lsh=7):
        a(f's_mov_b32 s{S_CNT}, {POLL_LIMIT}')
        a(f'v_lshlrev_b32 {u(0)}, {lsh}, v0')
        if execmask == 0xffffffff:
            a('s_mov_b32 exec_hi, 0')
        else:
            a(f's_mov_b64 exec, {execmask}')
        a.label(f'KG_GP{tag}')
        if wide:
            a(f'buffer_load_dwordx4 {vr(V_U+4,4)}, {u(0)}, {ws}, s{S_T1} offen{SC}')
            a('s_waitcnt vmcnt(0)')
            for i in range(4):
                a(f'v_xor_b32 {u(4+i)}, s{S_TAG}, {u(4+i)}')
            a(f'v_or3_b32 {u(4)}, {u(4)}, {u(5)}, {u(6)}')
            a(f'v_or_b32 {u(4)}, {u(4)}, {u(7)}')
            a(f'v_cmp_ne_u32 vcc, 0, {u(4)}')
        else:
            a(f'buffer_load_dword {u(4)}, {u(0)}, {ws}, s{S_T1} offen{SC}')
            a('s_waitcnt vmcnt(0)')
            a(f'v_cmp_ne_u32 vcc, s{S_TAG}, {u(4)}')
        a(f's_sub_u32 s{S_CNT}, s{S_CNT}, 1')
        a(f's_cbranch_scc1 KG_GD{tag}')
        if tag == 'KV':
            S_DN = S_VM
            a(f's_and_b64 s[{S_C0}:{S_C0+1}], exec, vcc')
            a(f's_or_b64 s[{S_C1}:{S_C1+1}], s[{S_C0}:{S_C0+1}], s[{S_DN}:{S_DN+1}]')
            a('s_mov_b64 exec, -1')
            for c in range(8):
                m = 0xff << (8 * (c & 3))
                a(f's_and_b32 s{S_T0}, s{S_C1+(c>>2)}, {hex(m)}')
                a(f's_cbranch_scc1 KG_QS{c}')
                a(f's_or_b32 s{S_DN+(c>>2)}, s{S_DN+(c>>2)}, {hex(m)}')
                a(f'v_mov_b32 {u(1)}, {WS_KV + c*16384}')
                a(f'ds_write_b32 v{V_A2}, {u(1)}')
                a(f'v_add_u32 v{V_A2}, 4, v{V_A2}')
                a.label(f'KG_QS{c}')
            a(f's_and_b64 exec, s[{S_C0}:{S_C0+1}], s[{S_C0}:{S_C0+1}]')
        else:
            a('s_and_b64 exec, exec, vcc')
        a(f's_cbranch_scc0 KG_GD{tag}')
        a(f's_sleep {sleep}')
        a(f's_branch KG_GP{tag}')
        a.label(f'KG_GD{tag}')
        a('s_mov_b64 exec, -1')

    a.label('KG_KV')
    KX, KW, KA = 16, 80, 144
    S_RB, S_TY, S_KQ = S_P, S_KH, S_KB
    a(f's_mov_b32 s{S_KQ}, s{S_QG}')
    a(f's_lshr_b32 s{S_RB}, s{S_HG}, 1')
    a(f's_and_b32 s{S_TY}, s{S_HG}, 1')
    a(f's_cmp_eq_u32 s{S_TY}, 1')
    a(f's_cselect_b64 s[{S_C0}:{S_C0+1}], s[{S_WV}:{S_WV+1}], s[{S_WK}:{S_WK+1}]')
    srd(a, R_A, S_C0, 16384)
    srd(a, R_B, S_GT, 1024)
    a(f's_lshl_b32 s{S_T0}, s{S_RB}, 9')
    a(f's_add_u32 s{S_T0}, s{S_T0}, s{S_KQ}')
    a(f'v_lshlrev_b32 v{V_A1}, 5, v{V_I}')
    a(f'v_add_u32 v{V_A1}, s{S_T0}, v{V_A1}')
    a(f'v_lshlrev_b32 {u(0)}, 10, v{V_A1}')
    a(f'v_lshl_add_u32 {u(0)}, v{V_G}, 4, {u(0)}')
    for i in range(16):
        a(f's_mov_b32 m0, {L_KW + i*1024}')
        a(f's_movk_i32 s{S_T0}, {i*1024}')
        a(f'buffer_load_dwordx4 v{V_L16}, {ra}, s{S_T0} offen lds')
        a(f'buffer_load_dwordx4 {vr(KX+4*i,4)}, {u(0)}, {xs}, 0 offen offset:{64*i}')
        if i == KV_BAR:
            a('s_barrier')
            stamp(1)
    a(f's_mov_b32 m0, {L_GATE}')
    a('s_nop 0')
    a(f'buffer_load_dwordx4 v{V_L16}, {rb_}, 0 offen lds')
    a(f'v_bfe_u32 {u(1)}, v0, 2, 2')
    a(f'v_and_b32 {u(2)}, 3, v0')
    a(f'v_lshl_add_u32 {u(1)}, v{V_G}, 3, {u(1)}')
    a(f'v_lshlrev_b32 {u(1)}, 5, {u(1)}')
    a(f'v_lshl_add_u32 {u(1)}, {u(2)}, 3, {u(1)}')
    a(f'v_add_u32 v{V_A2}, {L_KW}, {u(1)}')
    a(f's_lshl_b32 s{S_T2}, s{S_QG}, 12')
    a(f's_lshr_b32 s{S_T0}, s{S_RB}, 1')
    a(f's_lshl_b32 s{S_T0}, s{S_T0}, 11')
    a(f's_add_u32 s{S_T2}, s{S_T2}, s{S_T0}')
    a(f's_and_b32 s{S_T0}, s{S_RB}, 1')
    a(f's_lshl_b32 s{S_T0}, s{S_T0}, 9')
    a(f's_add_u32 s{S_T2}, s{S_T2}, s{S_T0}')
    a(f's_lshl_b32 s{S_T3}, s{S_T2}, 1')
    a(f's_add_u32 s{S_T2}, s{S_T2}, {WS_KV}')
    assert WS_KVT == 0
    a(f's_lshl_b32 s{S_KOFF}, s{S_QG}, 3')
    a(f's_add_u32 s{S_KOFF}, s{S_KOFF}, s{S_HG}')
    lds_wait(F_TAGOK, 1, V_U)
    get_tag(V_U)
    a(f'v_and_b32 {u(2)}, 1, v{V_G}')
    a(f'v_lshrrev_b32 {u(3)}, 1, v{V_G}')
    a(f'v_lshlrev_b32 {u(4)}, 5, v{V_I}')
    a(f'v_lshl_add_u32 {u(4)}, {u(2)}, 4, {u(4)}')
    a(f'v_lshl_add_u32 {u(4)}, {u(3)}, 3, {u(4)}')
    a(f'v_lshlrev_b32 {u(5)}, 8, {u(2)}')
    a(f'v_lshl_add_u32 {u(5)}, v{V_I}, 4, {u(5)}')
    a(f'v_lshl_add_u32 {u(5)}, {u(3)}, 3, {u(5)}')
    a(f'v_add_u32 {u(5)}, 1024, {u(5)}')
    a(f'v_lshlrev_b32 {u(6)}, 1, {u(4)}')
    a(f'v_lshlrev_b32 {u(7)}, 1, {u(5)}')
    a(f'v_mov_b32 v{KA+10}, s{S_TAG}')
    a(f'v_mov_b32 v{KA+11}, s{S_TAG}')
    a(f'v_mov_b32 v{KA+12}, 1')
    a(f's_mov_b32 s{S_T1}, {f32_bits(QSCALE)}')
    a('s_waitcnt vmcnt(1)')
    stamp(2)
    def kv_reads(ks):
        a(f'ds_read_b64_tr_b16 {vr(KW+4*ks,2)}, v{V_A2} offset:{ks*1024}')
        a(f'ds_read_b64_tr_b16 {vr(KW+4*ks+2,2)}, v{V_A2} offset:{ks*1024+128}')
    for ks in range(7):
        kv_reads(ks)
    a(f's_cmp_eq_u32 s{S_TY}, 1')
    a('s_cbranch_scc1 KG_KV1')
    for ty in range(2):
        if ty == 1:
            a.label('KG_KV1')
        for ks in range(16):
            n_out = min(6, 15 - ks)
            a(f's_waitcnt lgkmcnt({2*n_out})')
            cc = vr(KA + 4*(ks & 1), 4) if ks >= 2 else '0'
            if ty == 0:
                a(f'v_mfma_f32_16x16x32_bf16 {vr(KA+4*(ks&1),4)}, {vr(KW+4*ks,4)}, {vr(KX+4*ks,4)}, {cc}')
            else:
                a(f'v_mfma_f32_16x16x32_bf16 {vr(KA+4*(ks&1),4)}, {vr(KX+4*ks,4)}, {vr(KW+4*ks,4)}, {cc}')
            if ks + 7 < 16:
                kv_reads(ks + 7)
        a('s_nop 7')
        for i in range(4):
            a(f'v_add_f32 v{KA+i}, v{KA+i}, v{KA+4+i}')
        if ty == 0:
            for i in range(4):
                a(f'v_mul_f32 v{KA+i}, s{S_T1}, v{KA+i}')
        a(f'v_cvt_pk_bf16_f32 v{KA+8}, v{KA}, v{KA+1}')
        a(f'v_cvt_pk_bf16_f32 v{KA+9}, v{KA+2}, v{KA+3}')
        a(f'buffer_store_dwordx4 {vr(KA+8,4)}, {u(6+ty)}, {ws}, s{S_T3} offen{SC}')
        a(f'buffer_store_dwordx2 {vr(KA+8,2)}, {u(4+ty)}, {ws}, s{S_T2} offen{SC}')
        a(f'ds_write_b32 v{V_Z}, v{KA+12} offset:{4*F_KVS}')
        stamp(1)
        a('s_waitcnt vmcnt(0)')
        flag_store(WS_FL1, f's{S_KOFF}')
        stamp(3)
        if ty == 1:
            a('s_branch KG_WT')
        else:
            a(f'v_lshlrev_b32 {u(2)}, 4, v{V_G}')
            a(f'v_add_u32 {u(2)}, {L_GATE}, {u(2)}')
            for half in range(2):
                for k8 in range(8):
                    ks = 8*half + k8
                    a(f'ds_read_b128 {vr(KW+4*ks,4)}, {u(2)} offset:{64*ks}')
                for k8 in range(8):
                    ks = 8*half + k8
                    a(f's_waitcnt lgkmcnt({7-k8})')
                    cc = vr(KA, 4) if ks else '0'
                    a(f'v_mfma_f32_16x16x32_bf16 {vr(KA,4)}, {vr(KW+4*ks,4)}, {vr(KX+4*ks,4)}, {cc}')
            a(f's_lshl_b32 s{S_T0}, s{S_KQ}, 6')
            a(f's_lshr_b32 s{S_T1}, s{S_RB}, 1')
            a(f's_lshl_b32 s{S_T1}, s{S_T1}, 5')
            a(f's_add_u32 s{S_T0}, s{S_T0}, s{S_T1}')
            a(f's_and_b32 s{S_T1}, s{S_RB}, 1')
            a(f's_lshl_b32 s{S_T1}, s{S_T1}, 2')
            a(f's_add_u32 s{S_T0}, s{S_T0}, s{S_T1}')
            a(f's_lshl_b32 s{S_T0}, s{S_T0}, 2')
            a(f's_add_u32 s{S_T1}, s{S_T0}, {WS_G}')
            a(f'v_lshrrev_b32 {u(2)}, 2, v{V_I}')
            a(f'v_and_b32 {u(4)}, 3, v{V_I}')
            a(f'v_lshl_add_u32 {u(2)}, {u(2)}, 3, {u(4)}')
            a(f'v_lshlrev_b32 {u(2)}, 2, {u(2)}')
            a(f'v_cvt_pk_bf16_f32 {u(3)}, v{KA}, v{KA}')
            a(f'v_lshlrev_b32 {u(3)}, 16, {u(3)}')
            a(f's_mov_b32 s{S_T0}, {f32_bits(-math.log2(math.e))}')
            a(f'v_mul_f32 {u(3)}, s{S_T0}, {u(3)}')
            a(f'v_exp_f32 {u(3)}, {u(3)}')
            a('s_nop 0')
            a(f'v_add_f32 {u(3)}, 1.0, {u(3)}')
            a(f'v_rcp_f32 {u(3)}, {u(3)}')
            a('s_nop 0')
            a(f'v_cvt_pk_bf16_f32 {u(3)}, {u(3)}, {u(3)}')
            a(f'v_lshlrev_b32 {u(3)}, 16, {u(3)}')
            a('s_mov_b64 exec, 0xffff')
            a(f'buffer_store_dword {u(3)}, {u(2)}, {ws}, s{S_T1} offen{SC}')
            a('s_mov_b64 exec, -1')
            a('s_branch KG_WT')

    a.label('KG_TAG')
    a(f's_mov_b32 s{S_T3}, {WS_ROOT}')
    a(f'v_mov_b32 {u(2)}, 0')
    a(f'buffer_load_dword {u(3)}, {u(2)}, {ws}, s{S_T3} offen{SC}')
    a('s_barrier')
    stamp(1)
    a('s_waitcnt vmcnt(0)')
    a(f'v_readfirstlane_b32 s{S_TAG}, {u(3)}')
    a(f's_mul_i32 s{S_TAG}, s{S_TAG}, {TAG_M}')
    a(f's_add_u32 s{S_TAG}, s{S_TAG}, {TAG_C}')
    a(f'v_mov_b32 {u(1)}, 1')
    a(f'v_mov_b32 {u(3)}, s{S_TAG}')
    a(f'ds_write_b32 v{V_Z}, {u(3)} offset:{4*F_TAG}')
    a(f'ds_write_b32 v{V_Z}, {u(1)} offset:{4*F_TAGOK}')
    a(f'v_mov_b32 {u(4)}, {WS_KV}')
    a(f'ds_write_b32 v{V_Z}, {u(4)} offset:{4*(F_Q+8)}')
    stamp(2)
    GR = 16
    V_GW, V_QW = V_A1, V_A2
    S_PEND, S_GB, S_DN = S_P, S_KH, S_VM
    a(f's_and_b32 s{S_T0}, s2, 7')
    a(f's_lshl_b32 s{S_GB}, s{S_T0}, 15')
    a(f's_lshl_b32 s{S_T0}, s{S_T0}, 3')
    a(f's_mov_b64 s[{S_DN}:{S_DN+1}], 0xff')
    a(f's_lshl_b64 s[{S_DN}:{S_DN+1}], s[{S_DN}:{S_DN+1}], s{S_T0}')
    a(f's_movk_i32 s{S_PEND}, 0x1ff')
    a(f'v_lshlrev_b32 v{V_GW}, 3, v0')
    a(f'v_add_u32 v{V_GW}, {L_PRE}, v{V_GW}')
    a(f'v_add_u32 v{V_QW}, {4*(F_Q+1)}, v{V_Z}')
    lds_wait(F_KVS, 1, V_U + 4, sleep=1)
    if G_DELAY:
        a(f's_sleep {G_DELAY}')
    def g_loads(c):
        a(f's_add_u32 s{S_T0}, s{S_GB}, {c*4096}')
        for j in range(4):
            a(f'buffer_load_dwordx4 {vr(GR+16*c+4*j,4)}, v{V_L16}, {ws}, s{S_T0} offen offset:{1024*j}{SC}')
    def g_check(c, k):
        for j in range(4):
            a(f'v_cmpx_eq_u32 vcc, s{S_TAG}, v{GR+16*c+4*j+2}')
        a('s_cmp_eq_u64 exec, -1')
        a('s_mov_b64 exec, -1')
        a(f's_cbranch_scc0 KG_GF{k}_{c}')
        for j in range(4):
            a(f'ds_write_b64 v{V_GW}, {vr(GR+16*c+4*j,2)} offset:{2048*c+512*j}')
        a(f's_bitset0_b32 s{S_PEND}, {c}')
        a(f's_ff1_i32_b32 s{S_T0}, s{S_PEND}')
        a(f'v_mov_b32 {u(4)}, s{S_T0}')
        a(f'ds_write_b32 v{V_Z}, {u(4)} offset:{4*F_PRE}')
        a.label(f'KG_GF{k}_{c}')
    for c in range(8):
        g_loads(c)
    a(f'ds_write_b32 v{V_Z}, {u(1)} offset:{4*F_GI}')
    stamp(1)
    for c in range(8):
        a(f's_waitcnt vmcnt({4*(7-c)})')
        g_check(c, 0)
    stamp(5)
    a(f's_mov_b32 s{S_CNT}, {POLL_LIMIT}')
    a.label('KG_GR')
    a(f's_cmp_eq_u32 s{S_PEND}, 0x100')
    a('s_cbranch_scc1 KG_GE')
    for c in range(8):
        a(f's_bitcmp1_b32 s{S_PEND}, {c}')
        a(f's_cbranch_scc0 KG_GL{c}')
        g_loads(c)
        a.label(f'KG_GL{c}')
    a('s_waitcnt vmcnt(0)')
    for c in range(8):
        a(f's_bitcmp1_b32 s{S_PEND}, {c}')
        a(f's_cbranch_scc0 KG_GF1_{c}')
        g_check(c, 1)
    a(f's_sub_u32 s{S_CNT}, s{S_CNT}, 1')
    a('s_cbranch_scc0 KG_GR')
    a.label('KG_GE')
    stamp(6)
    a(f's_mov_b32 s{S_T1}, {WS_FL1}')
    glob_poll('KV', -1, KV_SLEEP)
    a(f'v_mov_b32 {u(1)}, 127')
    a(f'ds_write_b32 v{V_Z}, {u(1)} offset:{4*F_N}')
    stamp(3)
    a('s_cmp_lg_u32 s2, 0')
    a('s_cbranch_scc1 KG_H3')
    a('s_mov_b64 exec, 1')
    a(f'buffer_store_dword {u(3)}, {u(2)}, {ws}, s{S_T3} offen{SC}')
    a('s_mov_b64 exec, -1')
    a('s_branch KG_H3')

    a.label('KG_WT')
    if WT_LAG == 127:
        lds_wait(F_N, 127, V_U, sleep=2)
    elif WT_LAG == 100:
        lds_wait(F_Q + 1, 1, V_U, sleep=2)
    elif WT_LAG:
        lds_wait(F_PRE, WT_LAG, V_U, sleep=2)
    S_FW, S_G4, S_PT = S_P, S_KH, S_KB
    a(f's_lshr_b32 s{S_FW}, s{S_QG}, 3')
    a(f's_bfe_u32 s{S_G4}, s{S_QG}, 0x20001')
    a(f's_and_b32 s{S_PT}, s{S_QG}, 1')
    a(f's_cmp_eq_u32 s{S_PT}, 1')
    a(f's_cselect_b64 s[{S_C0}:{S_C0+1}], s[{S_WI}:{S_WI+1}], s[{S_WR}:{S_WR+1}]')
    srd(a, R_A, S_C0, 2048 * 514)
    a(f's_lshl_b32 s{S_T3}, s{S_FW}, 4')
    a(f's_lshl_b32 s{S_T1}, s{S_G4}, 8')
    a(f's_add_u32 s{S_T1}, s{S_T1}, s{S_T3}')
    a(f'v_add_u32 {u(2)}, s{S_T1}, v{V_I}')
    a(f'v_mul_u32_u24 {u(2)}, 514, {u(2)}')
    a(f'v_lshl_add_u32 {u(2)}, v{V_G}, 4, {u(2)}')
    a(f's_lshl_b32 s{S_T1}, s{S_HG}, 6')
    a(f'v_add_u32 {u(2)}, s{S_T1}, {u(2)}')
    for e in range(8):
        a(f's_mov_b32 s{S_T0}, {(16*(e>>2)+(e&3))*32896}')
        a(f'buffer_load_dwordx4 {vr(16+4*e,4)}, {u(2)}, {ra}, s{S_T0} offen')
    a(f's_or_b32 s{S_KOFF}, s{S_HG}, s{S_G4}')
    a(f's_cmp_lg_u32 s{S_KOFF}, 0')
    a('s_cbranch_scc1 KG_WT1')
    a(f'v_lshl_add_u32 {u(3)}, v{V_G}, 8, v{V_I}')
    a(f'v_add_u32 {u(3)}, s{S_T3}, {u(3)}')
    a(f'v_mul_u32_u24 {u(3)}, 514, {u(3)}')
    for e in range(8):
        a(f's_mov_b32 s{S_T0}, {(16*(e>>2)+(e&3))*32896}')
        a(f'buffer_load_ushort v{80+e}, {u(3)}, {ra}, s{S_T0} offen offset:512')
    a.label('KG_WT1')
    a(f's_mov_b32 s{S_C0}, 0x05040100')
    a(f's_mov_b32 s{S_C0+1}, 0x07060302')
    a(f'v_lshlrev_b32 {u(2)}, 16, v{V_G}')
    a(f'v_lshl_add_u32 {u(2)}, v{V_I}, 4, {u(2)}')
    a(f's_lshl_b32 s{S_T1}, s{S_HG}, 18')
    a(f's_lshl_b32 s{S_T2}, s{S_FW}, 11')
    a(f's_lshl_b32 s{S_T0}, s{S_PT}, 10')
    a(f's_add_u32 s{S_T2}, s{S_T2}, s{S_T0}')
    a(f's_add_u32 s{S_T2}, s{S_T2}, {WS_WT}')
    a(f's_add_u32 s{S_T1}, s{S_T1}, s{S_T2}')
    a(f's_lshl_b32 s{S_T0}, s{S_G4}, 8')
    a(f's_add_u32 s{S_T1}, s{S_T1}, s{S_T0}')
    a('s_waitcnt vmcnt(0)')
    stamp(5)
    for ph in range(8):
        for q in range(4):
            lo = 16 + 4*(2*q) + (ph >> 1); hi = 16 + 4*(2*q+1) + (ph >> 1)
            a(f'v_perm_b32 v{48+4*ph+q}, v{hi}, v{lo}, s{S_C0+(ph&1)}')
    for ph in range(8):
        a(f's_add_u32 s{S_T0}, s{S_T1}, {8192*ph}')
        a(f'buffer_store_dwordx4 {vr(48+4*ph,4)}, {u(2)}, {ws}, s{S_T0} offen{SC}')
    a(f's_cmp_lg_u32 s{S_KOFF}, 0')
    a('s_cbranch_scc1 KG_J1')
    for q in range(4):
        a(f'v_lshl_or_b32 v{88+q}, v{81+2*q}, 16, v{80+2*q}')
    a(f's_add_u32 s{S_T0}, s{S_T2}, {256*8192}')
    a(f'buffer_store_dwordx4 {vr(88,4)}, v{V_L16}, {ws}, s{S_T0} offen{SC}')
    a('s_branch KG_J1')

    a.label('KG_H2')
    HT, HX, HA = 16, 64, 128
    table_srd(a, R_TB, 'TAB_F', 512 * 1024, 'f')
    a(f's_and_b32 s{S_CT}, s{S_HW}, 1')
    a(f's_lshl_b32 s{S_T2}, s{S_HG}, 16')
    a(f's_lshl_b32 s{S_T0}, s{S_CT}, 10')
    a(f's_add_u32 s{S_T2}, s{S_T2}, s{S_T0}')
    a(f's_mov_b32 s{S_KOFF}, s{S_T2}')
    a(f'v_lshrrev_b32 {u(0)}, 3, v0')
    a(f'v_and_b32 {u(1)}, 7, v0')
    a(f's_cmp_eq_u32 s{S_HW}, 3')
    a('s_cbranch_scc1 KG_LDW')
    def loader(rs, soff, cstep, lbase, vo, flag):
        a(f's_mov_b32 s{S_T2}, 0')
        a(f's_mov_b32 s{S_T3}, {lbase}')
        if LD_PRE == 0:
            a('s_barrier')
            stamp(1)
        HD = 8 * LOAD_D // 2
        n = 0
        pub = 0
        for c in range(8):
            for w in range(8):
                a(f's_add_u32 m0, s{S_T3}, {w*1024}')
                a(f's_add_u32 s{S_T0}, s{S_T2}, {soff(w)}')
                a(f'buffer_load_dwordx4 {vo(w)}, {rs}, s{S_T0} offen lds')
                n += 1
                if n == LD_PRE:
                    a('s_barrier')
                    stamp(1)
                if n % 4 == 0 and n > HD:
                    a(f's_waitcnt vmcnt({HD})')
                    if (n - HD) // 8 > pub:
                        pub = (n - HD) // 8
                        a(f'v_mov_b32 {u(6)}, {pub}')
                        a(f'ds_write_b32 v{V_Z}, {u(6)} offset:{4*flag}')
            if c < 7:
                a(f's_add_u32 s{S_T2}, s{S_T2}, {cstep}')
                a(f's_add_u32 s{S_T3}, s{S_T3}, 8192')
        for c in range(pub, 8):
            a(f's_waitcnt vmcnt({8*(7-c)})')
            a(f'v_mov_b32 {u(6)}, {c + 1}')
            a(f'ds_write_b32 v{V_Z}, {u(6)} offset:{4*flag}')
    a(f'v_lshrrev_b32 {u(2)}, 2, {u(0)}')
    a(f'v_and_b32 {u(3)}, 3, {u(0)}')
    a(f'v_lshl_add_u32 {u(2)}, {u(2)}, 4, {u(3)}')
    a(f'v_lshlrev_b32 {u(2)}, 15, {u(2)}')
    a(f's_lshl_b32 s{S_T0}, s{S_QG}, 10')
    a(f'v_add_u32 {u(2)}, s{S_T0}, {u(2)}')
    a(f'v_xor_b32 {u(3)}, v{V_G}, {u(1)}')
    a(f'v_lshl_add_u32 {u(4)}, {u(3)}, 4, {u(2)}')
    a(f'v_xor_b32 {u(3)}, 4, {u(3)}')
    a(f'v_lshl_add_u32 {u(5)}, {u(3)}, 4, {u(2)}')
    loader(xs, lambda w: (32*(w >> 2) + 4*(w & 3)) * 32768, 128, L_X, lambda w: u(4 + (w & 1)), F_CX)
    a('s_branch KG_H2B')
    a.label('KG_LDW')
    srd(a, R_A, S_WQ, 512 * 1024)
    a(f'v_and_b32 {u(2)}, 1, v{V_G}')
    a(f'v_lshlrev_b32 {u(2)}, 2, {u(2)}')
    a(f'v_xor_b32 {u(2)}, {u(2)}, {u(1)}')
    a(f'v_lshlrev_b32 {u(2)}, 4, {u(2)}')
    a(f'v_lshl_add_u32 {u(2)}, {u(0)}, 10, {u(2)}')
    a(f's_lshl_b32 s{S_T0}, s{S_HG}, 7')
    a(f'v_add_u32 {u(4)}, s{S_T0}, {u(2)}')
    loader(ra, lambda w: w * 8192, 65536, L_WQ, lambda w: u(4), F_CW)
    a.label('KG_H2B')
    stamp(2)
    a(f's_mov_b32 s{S_T2}, s{S_KOFF}')
    if TF_LAG == 1:
        lds_wait(F_GI, 1, V_U, sleep=2)
    elif TF_LAG == 100:
        lds_wait(F_Q + 1, 1, V_U, sleep=2)
    elif TF_LAG:
        lds_wait(F_PRE, TF_LAG, V_U, sleep=2)
    def tload(i):
        if i % 2 == 0:
            a(f's_add_u32 s{S_T3}, s{S_T2}, {i*2048}')
        a(f'buffer_load_dwordx4 {vr(HT+4*(i%12),4)}, v{V_L16}, {tb}, s{S_T3} offen offset:{(i%2)*2048}')
    PD = H2_PD
    assert PD <= 12
    for i in range(PD):
        tload(i)
    a(f'v_and_b32 {u(4)}, 31, v0')
    a(f'v_lshrrev_b32 {u(5)}, 5, v0')
    a(f'v_bfe_u32 {u(6)}, v0, 1, 3')
    a(f'v_lshlrev_b32 {u(7)}, 7, {u(4)}')
    for ks in range(4):
        a(f'v_add_u32 v{HA+ks}, {2*ks}, {u(5)}')
        a(f'v_xor_b32 v{HA+ks}, v{HA+ks}, {u(6)}')
        a(f'v_lshl_add_u32 {u(ks)}, v{HA+ks}, 4, {u(7)}')
    a(f'v_lshlrev_b32 v{V_A1}, 12, {u(4)}')
    a(f'v_lshl_add_u32 v{V_A1}, {u(5)}, 5, v{V_A1}')
    stamp(5)
    lds_wait(F_CX, 8, V_U + 4, sleep=2)
    def xreads(c):
        for ks in range(4):
            for aa in range(2):
                a(f'ds_read_b128 {vr(HX+32*(c&1)+16*aa+4*ks,4)}, {u(ks)} offset:{c*8192+4096*aa}')
    xreads(0)
    for c in range(8):
        if c < 7:
            xreads(c + 1)
        for ks in range(4):
            i = 4*c + ks
            a(f's_waitcnt vmcnt({min(PD-1, 31-i)}) lgkmcnt({2*(3-ks) + (8 if c < 7 else 0)})')
            for aa in range(2):
                cc = vr(HA + 16*aa, 16) if i else '0'
                a(f'v_mfma_f32_32x32x16_bf16 {vr(HA+16*aa,16)}, {vr(HX+32*(c&1)+16*aa+4*ks,4)}, {vr(HT+4*(i%12),4)}, {cc}')
            if i + PD < 32: tload(i + PD)
    a(f's_lshl_b32 s{S_T0}, s{S_HG}, 18')
    a(f's_lshl_b32 s{S_T1}, s{S_CT}, 17')
    a(f's_add_u32 s{S_T0}, s{S_T0}, s{S_T1}')
    a(f's_lshl_b32 s{S_T1}, s{S_QG}, 7')
    a(f's_add_u32 s{S_T0}, s{S_T0}, s{S_T1}')
    a(f's_add_u32 s{S_T2}, s{S_T0}, {WS_X1T}')
    lds_wait(F_TAGOK, 1, V_U)
    get_tag(V_U)
    a('s_nop 4')
    for i in range(16):
        a(f'v_cvt_pk_bf16_f32 v{HX+i}, v{HA+2*i}, v{HA+2*i+1}')
    for aa in range(2):
        for q in range(2):
            a(f'buffer_store_dwordx4 {vr(HX+8*aa+4*q,4)}, v{V_A1}, {ws}, s{S_T2} offen offset:{64*aa+16*q}{SC}')
    a.label('KG_J1')
    join_flag(F_J1, 3, WS_FL2)
    stamp(6)
    a.label('KG_H3')
    if E('NOHELP', 0) == 1:
        lds_add(F_J2, V_U)
        dump()
        a('s_endpgm')

    V_T1 = 16
    V_T2 = 64
    V_D = 88
    V_TW = 104
    V_XX = 120
    V_W = 136
    V_AC = 152
    S_FW = S_HW
    table_srd(a, R_TB, 'TAB_K2', 24576 + 6144 + 32768, 'k2')
    O_T1, O_T2, O_TW1, O_TW2 = 0, 24576, 30720, 30720 + 16384
    a(f's_lshr_b32 s{S_MH}, s{S_FW}, 1')
    a(f's_and_b32 s{S_NH}, s{S_FW}, 1')
    a(f's_mul_i32 s{S_T0}, s{S_MH}, 12288')
    for i in range(12):
        if i % 4 == 0 and i:
            a(f's_add_u32 s{S_T0}, s{S_T0}, 4096')
        a(f'buffer_load_dwordx4 {vr(V_T1+4*i,4)}, v{V_L16}, {tb}, s{S_T0} offen offset:{(i%4)*1024}')
        thr()
    a(f's_lshl_b32 s{S_T2}, s{S_FW}, 12')
    a(f's_add_u32 s{S_T0}, s{S_T2}, {O_TW1}')
    for i in range(4):
        a(f'buffer_load_dwordx4 {vr(V_TW+4*i,4)}, v{V_L16}, {tb}, s{S_T0} offen offset:{i*1024}')
        thr()
    a(f's_mov_b32 s{S_T0}, {O_T2}')
    a(f's_mov_b32 s{S_T1}, {O_T2+4096}')
    for i in range(6):
        a(f'buffer_load_dwordx4 {vr(V_T2+4*i,4)}, v{V_L16}, {tb}, s{S_T0+(i>>2)} offen offset:{(i%4)*1024}')
        thr()
    a(f's_cmp_lg_u32 s{S_HW}, 1')
    a('s_cbranch_scc1 KG_S1W')
    a(f's_lshl_b32 s{S_T1}, s{S_HG}, 10')
    a(f's_add_u32 s{S_T1}, s{S_T1}, {WS_FL2}')
    glob_poll('S1', 0xff, 16)
    a(f'v_mov_b32 {u(1)}, 1')
    a(f'ds_write_b32 v{V_Z}, {u(1)} offset:{4*F_S1OK}')
    a.label('KG_S1W')
    lds_wait(F_S1OK, 1, V_U, sleep=4)
    lds_wait(F_QDONE, 4, V_U)
    stamp(7)
    a(f'v_lshlrev_b32 v{V_A1}, 7, v{V_I}')
    a(f'v_lshl_add_u32 v{V_A1}, v{V_G}, 4, v{V_A1}')
    a(f's_lshl_b32 s{S_T0}, s{S_F}, 13')
    a(f's_lshl_b32 s{S_T1}, s{S_NH}, 11')
    a(f's_add_u32 s{S_T0}, s{S_T0}, s{S_T1}')
    a(f's_add_u32 s{S_T0}, s{S_T0}, {WS_X1T}')
    a(f's_add_u32 s{S_T1}, s{S_T0}, 4096')
    for part in range(2):
        for ks in range(2):
            a(f'buffer_load_dwordx4 {vr(V_D+8*part+4*ks,4)}, v{V_A1}, {ws}, s{S_T0+part} offen offset:{64*ks}{SC}')
    a(f's_lshl_b32 s{S_T0}, s{S_FW}, 4')
    a(f'v_lshl_add_u32 v{V_A3}, v{V_G}, 8, v{V_I}')
    a(f'v_add_u32 v{V_A3}, s{S_T0}, v{V_A3}')
    a(f's_lshl_b32 s{S_T0}, s{S_F}, 13')
    a(f's_lshl_b32 s{S_T1}, s{S_FW}, 11')
    a(f's_add_u32 s{S_T1}, s{S_T1}, {WS_WT}')
    a(f's_add_u32 s{S_T0}, s{S_T0}, s{S_T1}')
    a(f's_add_u32 s{S_T1}, s{S_T1}, {256*8192}')
    for part in range(2):
        a(f'buffer_load_dwordx4 {vr(V_W+8*part+4,4)}, v{V_L16}, {ws}, s{S_T0} offen offset:{1024*part}{SC}')
    for part in range(2):
        a(f'buffer_load_dwordx4 {vr(V_XX+8*part+4,4)}, v{V_L16}, {ws}, s{S_T1} offen offset:{1024*part}{SC}')

    def mf(d, x, y, c):
        cc = vr(d, 4) if c else '0'
        a(f'v_mfma_f32_16x16x32_bf16 {vr(d,4)}, {vr(x,4)}, {vr(y,4)}, {cc}')
    def t1(nt, ks, v): return V_T1 + 4 * ((nt * 2 + ks) * 3 + v)
    def t2(mt, v): return V_T2 + 4 * (mt * 3 + v)
    def cmul_pack(dst):
        for t_ in range(2):
            for r in range(4):
                ar, ai = V_AC + 8*t_ + r, V_AC + 8*t_ + 4 + r
                c_, s_ = V_TW + 8*t_ + r, V_TW + 8*t_ + 4 + r
                uu = V_U + (r & 1) * 2
                a(f'v_mul_f32 v{uu}, v{ar}, v{c_}')
                a(f'v_mul_f32 v{uu+1}, v{ar}, v{s_}')
                a(f'v_fma_f32 v{ar}, -v{ai}, v{s_}, v{uu}')
                a(f'v_fma_f32 v{ai}, v{ai}, v{c_}, v{uu+1}')
        for i in range(8):
            a(f'v_cvt_pk_bf16_f32 v{dst+i}, v{V_AC+2*i}, v{V_AC+2*i+1}')
    def sync(flag):
        a('s_waitcnt lgkmcnt(0)')
        lds_add(flag, V_U)
        lds_wait(flag, 4, V_U, sleep=2)

    a('s_waitcnt vmcnt(4)')
    zr = lambda ks: V_D + 4*ks
    zi = lambda ks: V_D + 8 + 4*ks
    for ks in range(2):
        for nt in range(2):
            mf(V_AC + 8*nt, zr(ks), t1(nt, ks, 0), ks)
            mf(V_AC + 8*nt + 4, zi(ks), t1(nt, ks, 0), ks)
        for nt in range(2):
            mf(V_AC + 8*nt, zi(ks), t1(nt, ks, 2), 1)
            mf(V_AC + 8*nt + 4, zr(ks), t1(nt, ks, 1), 1)
    a(f's_mul_i32 s{S_T0}, s{S_MH}, 2560')
    a(f's_lshl_b32 s{S_T1}, s{S_NH}, 3')
    a(f's_add_u32 s{S_T0}, s{S_T0}, s{S_T1}')
    a(f'v_mul_u32_u24 v{V_A1}, 80, v{V_I}')
    a(f'v_lshl_add_u32 v{V_A1}, v{V_G}, 4, v{V_A1}')
    a(f'v_add_u32 v{V_A1}, {L_APR}, v{V_A1}')
    a(f'v_add_u32 {u(4)}, s{S_T0}, v{V_A1}')
    a('s_nop 4')
    cmul_pack(V_D)
    for nt in range(2):
        a(f'ds_write_b64 {u(4)}, {vr(V_D+4*nt,2)} offset:{1280*nt}')
        a(f'ds_write_b64 {u(4)}, {vr(V_D+4*nt+2,2)} offset:{L_API-L_APR+1280*nt}')
    a(f's_add_u32 s{S_T0}, s{S_T2}, {O_TW2}')
    for i in range(4):
        a(f'buffer_load_dwordx4 {vr(V_TW+4*i,4)}, v{V_L16}, {tb}, s{S_T0} offen offset:{i*1024}')
    sync(F_SY0)
    a(f's_mul_i32 s{S_T0}, s{S_FW}, 1280')
    a(f'v_add_u32 {u(4)}, s{S_T0}, v{V_A1}')
    a(f'ds_read_b128 {vr(V_D,4)}, {u(4)}')
    a(f'ds_read_b128 {vr(V_D+4,4)}, {u(4)} offset:{L_API-L_APR}')
    a('s_waitcnt vmcnt(4) lgkmcnt(0)')
    for mt in range(2):
        mf(V_AC + 8*mt, t2(mt, 0), V_D, 0)
        mf(V_AC + 8*mt + 4, t2(mt, 0), V_D + 4, 0)
    for mt in range(2):
        mf(V_AC + 8*mt, t2(mt, 2), V_D + 4, 1)
        mf(V_AC + 8*mt + 4, t2(mt, 1), V_D, 1)
    def unpack(base):
        for part in range(2):
            b = base + 8*part
            for q in range(4):
                a(f'v_lshlrev_b32 v{b+2*q}, 16, v{b+4+q}')
                a(f'v_and_b32 v{b+2*q+1}, 0xffff0000, v{b+4+q}')
    unpack(V_W)
    a(f's_cmp_eq_u32 s{S_F}, 0')
    a('s_cbranch_scc1 KG_SPECIAL')
    for e in range(8):
        mt, r = e >> 2, e & 3
        ar, ai = V_AC + 8*mt + r, V_AC + 8*mt + 4 + r
        c_, s_ = V_W + e, V_W + 8 + e
        uu = V_U + (r & 1) * 2
        a(f'v_mul_f32 v{uu}, v{ar}, v{c_}')
        a(f'v_mul_f32 v{uu+1}, v{ar}, v{s_}')
        a(f'v_fma_f32 v{ar}, -v{ai}, v{s_}, v{uu}')
        a(f'v_fma_f32 v{ai}, v{ai}, v{c_}, v{uu+1}')
    a.label('KG_STEP3')
    for mt in range(2):
        for part in range(2):
            for q in range(2):
                src = V_AC + 8*mt + 4*part + 2*q
                a(f'v_cvt_pk_bf16_f32 v{V_D+4*part+2*mt+q}, v{src}, v{src+1}')
    a('s_nop 1')
    for mt in range(2):
        mf(V_AC + 8*mt, V_D, t2(mt, 0), 0)
        mf(V_AC + 8*mt + 4, V_D + 4, t2(mt, 0), 0)
    for mt in range(2):
        mf(V_AC + 8*mt, V_D + 4, t2(mt, 1), 1)
        mf(V_AC + 8*mt + 4, V_D, t2(mt, 2), 1)
    a(f'v_mul_u32_u24 v{V_A1}, 144, v{V_I}')
    a(f'v_add_u32 v{V_A1}, {L_CPR}, v{V_A1}')
    a(f's_lshl_b32 s{S_T0}, s{S_FW}, 5')
    a(f'v_lshl_add_u32 {u(4)}, v{V_G}, 3, v{V_A1}')
    a(f'v_add_u32 {u(4)}, s{S_T0}, {u(4)}')
    a('s_waitcnt vmcnt(0)')
    a('s_nop 4')
    cmul_pack(V_D)
    for mt in range(2):
        a(f'ds_write_b64 {u(4)}, {vr(V_D+4*mt,2)} offset:{2304*mt}')
        a(f'ds_write_b64 {u(4)}, {vr(V_D+4*mt+2,2)} offset:{L_CPI-L_CPR+2304*mt}')
    sync(F_SY1)
    a(f's_mul_i32 s{S_T0}, s{S_NH}, 2304')
    a(f'v_lshl_add_u32 {u(4)}, v{V_G}, 4, v{V_A1}')
    a(f'v_add_u32 {u(4)}, s{S_T0}, {u(4)}')
    for part in range(2):
        for ks in range(2):
            a(f'ds_read_b128 {vr(V_D+8*part+4*ks,4)}, {u(4)} offset:{(L_CPI-L_CPR)*part+64*ks}')
    a('s_waitcnt lgkmcnt(0)')
    for ks in range(2):
        for nt in range(2):
            mf(V_AC + 8*nt, t1(nt, ks, 0), zr(ks), ks)
            mf(V_AC + 8*nt + 4, t1(nt, ks, 0), zi(ks), ks)
        for nt in range(2):
            mf(V_AC + 8*nt, t1(nt, ks, 1), zi(ks), 1)
            mf(V_AC + 8*nt + 4, t1(nt, ks, 2), zr(ks), 1)
    a(f'v_lshlrev_b32 {u(4)}, 7, v{V_I}')
    a(f'v_lshl_add_u32 {u(4)}, v{V_G}, 4, {u(4)}')
    a(f's_lshl_b32 s{S_T0}, s{S_F}, 13')
    a(f's_lshl_b32 s{S_T1}, s{S_NH}, 11')
    a(f's_add_u32 s{S_T0}, s{S_T0}, s{S_T1}')
    a(f's_lshl_b32 s{S_T1}, s{S_MH}, 6')
    a(f's_add_u32 s{S_T0}, s{S_T0}, s{S_T1}')
    a(f's_add_u32 s{S_T0}, s{S_T0}, {WS_Y1T}')
    a(f's_add_u32 s{S_T1}, s{S_T0}, 4096')
    for part in range(2):
        for nt in range(2):
            for q in range(2):
                src = V_AC + 8*nt + 4*part + 2*q
                a(f'v_cvt_pk_bf16_f32 v{V_D+4*part+2*nt+q}, v{src}, v{src+1}')
    for part in range(2):
        a(f'buffer_store_dwordx4 {vr(V_D+4*part,4)}, {u(4)}, {ws}, s{S_T0+part} offen{SC}')
    join_flag(F_J2, 4, WS_FL3)
    stamp(8)
    if E('NOHELP', 0) == 2:
        dump()
        a('s_endpgm')

    AB, AA, LF, FR = 16, 32, 48, 80
    NFR = 32
    V_DM, V_RA, V_RY, V_OUT, V_GT, V_DW = 208, 209, 210, 211, 212, 213
    S_MI, S_NI = S_CT, S_A
    a(f's_lshr_b32 s{S_MI}, s{S_HW}, 1')
    a(f's_and_b32 s{S_NI}, s{S_HW}, 1')
    srd(a, R_A, S_WO, 512 * 1024)
    srd(a, R_OUT, S_OUT, 2048 * 1024)
    table_srd(a, R_TB, 'TAB_FINV', 512 * 1024, 'fi')
    a(f'v_lshrrev_b32 {u(0)}, 3, v0')
    a(f'v_and_b32 {u(1)}, 7, v0')
    a(f'v_and_b32 {u(2)}, 1, v{V_G}')
    a(f'v_lshlrev_b32 {u(3)}, 2, {u(2)}')
    a(f'v_xor_b32 {u(3)}, {u(3)}, {u(1)}')
    a(f'v_lshlrev_b32 {u(3)}, 4, {u(3)}')
    a(f'v_lshl_add_u32 {u(4)}, {u(0)}, 10, {u(3)}')
    a(f'v_mov_b32 v{V_DW}, {u(4)}')
    a(f's_lshl_b32 s{S_T3}, s{S_HW}, 14')
    a(f'v_lshl_add_u32 v{V_DM}, {u(0)}, 12, {u(3)}')
    a(f'v_and_b32 {u(0)}, 31, v0')
    a(f'v_lshrrev_b32 {u(1)}, 5, v0')
    a(f'v_bfe_u32 {u(3)}, v0, 2, 2')
    a(f'v_and_b32 {u(4)}, 3, v0')
    a(f'v_lshrrev_b32 {u(5)}, 1, {u(4)}')
    a(f'v_and_b32 {u(4)}, 1, {u(4)}')
    a(f'v_lshrrev_b32 {u(6)}, 1, {u(3)}')
    a(f'v_lshlrev_b32 {u(6)}, 2, {u(6)}')
    a(f'v_lshl_add_u32 {u(7)}, {u(4)}, 1, {u(2)}')
    a(f's_lshl_b32 s{S_T0}, s{S_MI}, 2')
    a(f'v_add_u32 {u(7)}, s{S_T0}, {u(7)}')
    a(f'v_xor_b32 {u(7)}, {u(7)}, {u(6)}')
    a(f'v_lshlrev_b32 {u(7)}, 4, {u(7)}')
    a(f'v_lshl_add_u32 {u(7)}, {u(5)}, 3, {u(7)}')
    a(f'v_lshl_add_u32 v{V_RA}, {u(1)}, 2, {u(3)}')
    a(f'v_lshl_add_u32 v{V_RA}, v{V_RA}, 7, {u(7)}')
    a(f'v_lshl_add_u32 {u(7)}, {u(2)}, 1, {u(5)}')
    a(f's_lshl_b32 s{S_T0}, s{S_NI}, 2')
    a(f'v_add_u32 {u(7)}, s{S_T0}, {u(7)}')
    a(f'v_xor_b32 {u(7)}, {u(7)}, {u(6)}')
    a(f'v_lshlrev_b32 {u(7)}, 4, {u(7)}')
    a(f'v_lshl_add_u32 {u(7)}, {u(4)}, 3, {u(7)}')
    a(f'v_lshl_add_u32 v{V_RY}, {u(1)}, 3, {u(3)}')
    a(f'v_lshl_add_u32 v{V_RY}, v{V_RY}, 7, {u(7)}')
    a(f'v_add_u32 v{V_RY}, {L_Y}, v{V_RY}')
    a(f'v_bfe_u32 {u(5)}, {u(0)}, 2, 1')
    a(f'v_lshrrev_b32 {u(6)}, 3, {u(0)}')
    a(f'v_and_b32 {u(7)}, 3, {u(0)}')
    a(f'v_lshl_add_u32 {u(7)}, {u(5)}, 4, {u(7)}')
    a(f'v_lshl_add_u32 {u(7)}, {u(6)}, 2, {u(7)}')
    a(f'v_lshlrev_b32 {u(7)}, 15, {u(7)}')
    a(f'v_lshl_add_u32 {u(7)}, {u(1)}, 5, {u(7)}')
    a(f's_lshl_b32 s{S_T0}, s{S_NI}, 20')
    a(f's_lshl_b32 s{S_T1}, s{S_QG}, 10')
    a(f's_add_u32 s{S_T0}, s{S_T0}, s{S_T1}')
    a(f's_lshl_b32 s{S_T1}, s{S_HG}, 7')
    a(f's_add_u32 s{S_T0}, s{S_T0}, s{S_T1}')
    a(f's_lshl_b32 s{S_T1}, s{S_MI}, 6')
    a(f's_add_u32 s{S_T0}, s{S_T0}, s{S_T1}')
    a(f'v_add_u32 v{V_OUT}, s{S_T0}, {u(7)}')
    a(f'v_lshlrev_b32 v{V_GT}, 2, {u(0)}')
    S_FI = S_KOFF
    a(f's_lshl_b32 s{S_FI}, s{S_HG}, 16')
    a(f's_lshl_b32 s{S_T0}, s{S_MI}, 10')
    a(f's_add_u32 s{S_FI}, s{S_FI}, s{S_T0}')
    def fload(i):
        if i % 2 == 0:
            a(f's_add_u32 s{S_KB}, s{S_FI}, {i*2048}')
        a(f'buffer_load_dwordx4 {vr(FR+4*(i%NFR),4)}, v{V_L16}, {tb}, s{S_KB} offen offset:{(i%2)*2048}')
    for i in range(NFR):
        fload(i)
        thr()
    a(f's_cmp_lg_u32 s{S_HW}, 1')
    a('s_cbranch_scc1 KG_S2W')
    a(f's_mov_b32 s{S_T1}, {WS_FL3}')
    glob_poll('S2', -1, 16)
    a(f'v_mov_b32 {u(1)}, 1')
    a(f'ds_write_b32 v{V_Z}, {u(1)} offset:{4*F_S2OK}')
    a.label('KG_S2W')
    lds_wait(F_S2OK, 1, V_U, sleep=4)
    lds_wait(F_QDONE, 4, V_U)
    stamp(9)
    a(f's_lshl_b32 s{S_T2}, s{S_HW}, 19')
    a(f's_lshl_b32 s{S_T0}, s{S_QG}, 7')
    a(f's_add_u32 s{S_T2}, s{S_T2}, s{S_T0}')
    a(f's_add_u32 s{S_T2}, s{S_T2}, {WS_Y1T}')
    for i in range(16):
        a(f's_add_u32 m0, s{S_T3}, {L_Y + i*1024}')
        a(f's_add_u32 s{S_T0}, s{S_T2}, {i*32768}')
        a(f'buffer_load_dwordx4 v{V_DM}, {ws}, s{S_T0} offen{SC} lds')
        thr()
    a(f's_lshl_b32 s{S_T0}, s{S_QG}, 8')
    a(f's_lshl_b32 s{S_T1}, s{S_NI}, 7')
    a(f's_add_u32 s{S_T0}, s{S_T0}, s{S_T1}')
    a(f's_add_u32 s{S_T0}, s{S_T0}, {WS_G}')
    a(f'buffer_load_dword v{V_GT}, v{V_GT}, {ws}, s{S_T0} offen{SC}')
    a('s_waitcnt vmcnt(0)')
    sync(F_J3)
    def lread(i, addr, second):
        a(f'ds_read_b64_tr_b16 {vr(LF+4*(i%8),2)}, v{addr} offset:{i*2048}')
        a(f'ds_read_b64_tr_b16 {vr(LF+4*(i%8)+2,2)}, v{addr} offset:{i*2048+second}')
    for i in range(6):
        lread(i, V_RY, 512)
    for i in range(32):
        if i >= NFR:
            a(f's_waitcnt vmcnt({31-i}) lgkmcnt({2*min(5, 31-i)})')
        else:
            a(f's_waitcnt lgkmcnt({2*min(5, 31-i)})')
        cc = vr(AB, 16) if i else '0'
        a(f'v_mfma_f32_32x32x16_bf16 {vr(AB,16)}, {vr(FR+4*(i%NFR),4)}, {vr(LF+4*(i%8),4)}, {cc}')
        if i + NFR < 32: fload(i + NFR)
        if i + 6 < 32: lread(i + 6, V_RY, 512)
    stamp(10)
    if E('NOHELP', 0) == 3:
        dump()
        a('s_endpgm')
    a(f's_lshl_b32 s{S_T2}, s{S_HW}, 17')
    a(f's_lshl_b32 s{S_T0}, s{S_HG}, 7')
    a(f's_add_u32 s{S_T2}, s{S_T2}, s{S_T0}')
    for i in range(16):
        a(f's_add_u32 m0, s{S_T3}, {L_WO + i*1024}')
        a(f's_add_u32 s{S_T0}, s{S_T2}, {i*8192}')
        a(f'buffer_load_dwordx4 v{V_DW}, {ra}, s{S_T0} offen lds')
        thr()
    a('s_waitcnt vmcnt(0)')
    sync(F_J4)
    for i in range(6):
        lread(i, V_RA, 1024)
    stamp(4)
    lds_wait(F_ADONE, 1, V_U, sleep=4)
    a(f's_lshl_b32 s{S_T2}, s{S_QG}, 1')
    a(f's_add_u32 s{S_T2}, s{S_T2}, s{S_NI}')
    a(f's_lshl_b32 s{S_T1}, s{S_T2}, 11')
    a(f's_add_u32 s{S_T1}, s{S_T1}, {WS_FL4}')
    a(f's_lshl_b32 s{S_T2}, s{S_T2}, 15')
    a(f's_add_u32 s{S_T2}, s{S_T2}, {WS_O}')
    glob_poll('O', 0xffff, O_SLEEP, wide=False)
    stamp(11)
    def oload(i):
        if i % 4 == 0 and i:
            a(f's_add_u32 s{S_T2}, s{S_T2}, 4096')
        a(f'buffer_load_dwordx4 {vr(FR+4*(i%NFR),4)}, v{V_L16}, {ws}, s{S_T2} offen offset:{(i%4)*1024}{OSC}')
    for i in range(NFR):
        oload(i)
    for i in range(32):
        nout = (min(31, i + NFR - 1) - i)
        a(f's_waitcnt vmcnt({nout}) lgkmcnt({2*min(5, 31-i)})')
        cc = vr(AA, 16) if i else '0'
        a(f'v_mfma_f32_32x32x16_bf16 {vr(AA,16)}, {vr(LF+4*(i%8),4)}, {vr(FR+4*(i%NFR),4)}, {cc}')
        if i + NFR < 32: oload(i + NFR)
        if i + 6 < 32: lread(i + 6, V_RA, 1024)
    a('s_nop 11')
    for i in range(16):
        a(f'v_sub_f32 v{AA+i}, v{AA+i}, v{AB+i}')
        a(f'v_fma_f32 v{AA+i}, v{V_GT}, v{AA+i}, v{AB+i}')
    for i in range(8):
        a(f'v_cvt_pk_bf16_f32 v{LF+i}, v{AA+2*i}, v{AA+2*i+1}')
    for q in range(2):
        a(f'buffer_store_dwordx4 {vr(LF+4*q,4)}, v{V_OUT}, {sr(R_OUT,4)}, 0 offen offset:{16*q}')
    dump()
    a('s_endpgm')

    a.label('KG_SPECIAL')
    unpack(V_XX)
    lds_wait(F_QDONE, 4, V_U)
    a(f'v_lshlrev_b32 {u(4)}, 2, v{V_A3}')
    a(f'v_add_u32 {u(6)}, {L_SP}, {u(4)}')
    for e in range(8):
        mt, r = e >> 2, e & 3
        srcs = [V_AC + 8*mt + r, V_AC + 8*mt + 4 + r, V_W + e, V_W + 8 + e, V_XX + e, V_XX + 8 + e]
        for pl, s_ in enumerate(srcs):
            a(f'ds_write_b32 {u(6)}, v{s_} offset:{8192*pl + 256*(16*mt+r)}')
    sync(F_SY2)
    a(f's_mov_b32 s{S_T0}, {f32_bits(0.125)}')
    for e in range(8):
        mt, r = e >> 2, e & 3
        zr_, zi_ = V_AC + 8*mt + r, V_AC + 8*mt + 4 + r
        a0r, a0i, a1r, a1i = V_W + e, V_W + 8 + e, V_XX + e, V_XX + 8 + e
        a(f'v_sub_u32 {u(5)}, {8192 - 256*(16*mt+r)}, {u(4)}')
        a(f'v_and_b32 {u(5)}, 8188, {u(5)}')
        a(f'v_add_u32 {u(5)}, {L_SP}, {u(5)}')
        n = V_D
        for pl in range(6):
            a(f'ds_read_b32 v{n+pl}, {u(5)} offset:{8192*pl}')
        a('s_waitcnt lgkmcnt(0)')
        znr, zni, b0r, b0i, b1r, b1i = [n + i for i in range(6)]
        a(f'v_add_f32 v{b0r}, v{a0r}, v{b0r}')
        a(f'v_sub_f32 v{b0i}, v{a0i}, v{b0i}')
        a(f'v_add_f32 v{b1r}, v{a1r}, v{b1r}')
        a(f'v_sub_f32 v{b1i}, v{a1i}, v{b1i}')
        pr, pi_, mr, mi = n + 6, n + 7, n + 8, n + 9
        a(f'v_add_f32 v{pr}, v{b0r}, v{b1r}')
        a(f'v_add_f32 v{pi_}, v{b0i}, v{b1i}')
        a(f'v_sub_f32 v{mr}, v{b0r}, v{b1r}')
        a(f'v_sub_f32 v{mi}, v{b0i}, v{b1i}')
        rr, ri = n + 10, n + 11
        a(f'v_mul_f32 v{rr}, v{zr_}, v{pr}')
        a(f'v_mul_f32 v{ri}, v{zr_}, v{pi_}')
        a(f'v_fma_f32 v{rr}, -v{zi_}, v{pi_}, v{rr}')
        a(f'v_fma_f32 v{ri}, v{zi_}, v{pr}, v{ri}')
        a(f'v_fma_f32 v{rr}, v{znr}, v{mr}, v{rr}')
        a(f'v_fma_f32 v{ri}, v{znr}, v{mi}, v{ri}')
        a(f'v_fma_f32 v{rr}, v{zni}, v{mi}, v{rr}')
        a(f'v_fma_f32 v{ri}, -v{zni}, v{mr}, v{ri}')
        a(f'v_mul_f32 v{zr_}, s{S_T0}, v{rr}')
        a(f'v_mul_f32 v{zi_}, s{S_T0}, v{ri}')
    a('s_branch KG_STEP3')
    a.label('KG_END')
    a('s_endpgm')
    return 216, (102 if ST in (5, 6, 7) else NS)

def build_g(path):
    a = Asm()
    hdr = open(f'cdna_kernels/{NAME}.s.ref').read().split('\n')
    for l in hdr:
        if l.startswith(';') and '@launch' not in l and 'Override launch' not in l and 'grid=ceil' not in l:
            a.raw(l)
    kn = NAME + '_kernel'
    if E('PLAIN', 0):
        a.raw(f'; @launch grid=(256,1,1) block=(512,1,1) lds={KG_LDS}')
    else:
        a.raw(f'; @launch kernel={kn} grid=(256,1,1) block=(512,1,1) lds={KG_LDS}')
    a.raw('.amdgcn_target "amdgcn-amd-amdhsa--gfx950"')
    a.raw('.text')
    v, s = gen_g(a, kn)
    a.raw('.section .rodata,"a"')
    kernel_desc(a, kn, v, s)
    gen_tables(a)
    gen_k2.gen_tables_k2(a)
    gen_k3.gen_tables_k3(a)
    open(path, 'w').write(a.text())

if __name__ == '__main__':
    build_g(sys.argv[1] if len(sys.argv) > 1 else 'j.s')
```

```python
from gen import *
import gen_k2, gen_k3
from gen_k2 import YSCALE
import os

WS_ROOT = 0x240000
WS_FL1 = 0x244000
WS_FL2 = 0x248000
WS_FL3 = 0x24C000
WS_FL4 = 0x260000
TAG_M, TAG_C = 0x9E3779B1, 0x7F4A7C15
WS_KVT = 0x000000

L_X = 0
L_WQ = 65536
L_FLAG = 131072
L_KW = L_FLAG + 256
L_GATE = L_KW + 16384
KG_LDS = 163840
L_APR = L_KW; L_API = L_APR + 5120
L_CPR = L_API + 5120; L_CPI = L_CPR + 4608
L_MX = L_KW
L_MXM = L_KW + 20480
assert L_CPI + 4608 <= L_MXM and L_MX + 8 * 2304 <= L_MXM and L_MXM + 4096 <= KG_LDS and L_GATE + 1024 <= L_MXM
L_SP = L_WQ
L_WO = L_X
L_Y = L_WQ
F_CX, F_CW = 0, 1
F_CC, F_MG, F_MM, F_PG, F_QX = 0, 8, 16, 40, 48
L_QX = L_GATE + 1024
assert L_QX + 8192 <= KG_LDS
F_N, F_TAG, F_QDONE, F_J1, F_S1OK, F_SY0, F_SY1, F_SY2, F_J2, F_S2OK, F_J3, F_TAGOK, F_ADONE, F_J4, F_KVS, F_GI, F_PRE = range(24, 41)
F_Q = 8
L_PRE = L_KW
NWAVE = 8
WS_G = 0x230000
E = lambda k, d: int(os.environ.get(k, str(d)))
LOAD_D = E('LOAD_D', 6)
KV_SLEEP = E('KV_SLEEP', 4)
O_SLEEP = E('O_SLEEP', 2)
THR = E('THR', 3)
LD_PRE = E('LD_PRE', 24)
KV_BAR = E('KV_BAR', 15)
FAIR = E('FAIR', 1)
KV_LAG = E('KV_LAG', 0)
TF_LAG = E('TF_LAG', 8)
WT_LAG = E('WT_LAG', 8)
G_DELAY = E('G_DELAY', 12)
Q7_SLEEP = E('Q7_SLEEP', 0)
H2_PD = E('H2_PD', 12)
KVSC = ' sc1' if E('KVSC1', 0) else ''
OSC = ' sc1' if E('OSC1', 0) else ''
SC = ' sc1'
POLL_LIMIT = 1 << 18
NSTAMP = 12
KP_DELAY = E('KP_DELAY', 20)
PEEL_B = E('PEEL_B', 4)
PRI = E('PRI', 7)
LST = E('LST', 0)

def gen_g(a, name):
    kernel_header(a, name)
    S_X, S_WQ, S_WK, S_WV, S_WO, S_WS, S_WR, S_WI, S_GT, S_OUT = 4, 6, 8, 10, 12, 14, 16, 18, 20, 22
    R_X, R_WS, R_A, R_B, R_TB, R_OUT = 24, 28, 32, 36, 40, 44
    S_W, S_QG, S_HG, S_T0, S_T1, S_T2, S_T3, S_CNT, S_KOFF, S_KB, S_P, S_KH = 48, 49, 50, 51, 52, 53, 54, 55, 56, 57, 58, 59
    S_VM = 60; S_C0 = 62; S_C1 = 64
    S_CT, S_A, S_F, S_HW, S_MH, S_NH, S_SEEN, S_LIM, S_TAG = 3, 66, 67, 68, 69, 70, 71, 72, 73
    NS = 74
    SB = 74
    ws = sr(R_WS, 4); xs = sr(R_X, 4); ra = sr(R_A, 4); rb_ = sr(R_B, 4); tb = sr(R_TB, 4)
    TM = 's_memrealtime' if ST in (5, 7) else 's_memtime'
    duid = [0]
    def stamp(i):
        if ST in (5, 6, 7):
            a(f'{TM} s[{SB+2*i}:{SB+1+2*i}]')
    def dump(kind=0):
        n = NSTAMP
        if ST == 7:
            duid[0] += 1
            a('s_waitcnt vmcnt(0)')
            a(f'{TM} s[{SB+2*n}:{SB+1+2*n}]')
            a(f's_load_dwordx2 s[{R_A}:{R_A+1}], s[0:1], 80')
            a(f's_mov_b32 s{R_A+2}, 256')
            a(f's_mov_b32 s{R_A+3}, 0x20000')
            a('s_waitcnt lgkmcnt(0)')
            a('s_mov_b64 exec, 1')
            a('v_mov_b32 v0, 0')
            a(f's_cmp_lg_u32 s{S_W}, {4 if kind else 0}')
            a(f's_cbranch_scc1 KG_DD{duid[0]}')
            if kind:
                a(f's_not_b32 s{S_T0}, s{SB}')
                a(f'v_mov_b32 v2, s{S_T0}')
                a(f'buffer_atomic_umax v2, v0, {ra}, 0 offen offset:0')
                L = [(2, 0), (3, 2), (4, 3), (5, 4), (6, 5), (7, 12)]
            else:
                a(f'v_mov_b32 v2, s{SB+24}')
                a(f'buffer_atomic_umax v2, v0, {ra}, 0 offen offset:4')
                L = [(8, 3), (9, 5), (10, 6), (11, 7), (12, 8), (13, 9), (14, 11), (15, 12)]
            for k, (sl, st_) in enumerate(L):
                a(f'v_mov_b32 v{3+k}, s{SB+2*st_}')
                a(f'buffer_atomic_add v{3+k}, v0, {ra}, 0 offen offset:{4*sl}')
            a.label(f'KG_DD{duid[0]}')
        if ST in (5, 6):
            a('s_waitcnt vmcnt(0)')
            a(f'{TM} s[{SB+2*n}:{SB+1+2*n}]')
            a('s_mov_b64 exec, 1')
            a(f's_lshl_b32 s{S_T0}, s2, 4')
            a(f's_add_u32 s{S_T0}, s{S_T0}, s{S_W}')
            a(f's_lshl_b32 s{S_T0}, s{S_T0}, 6')
            a(f's_add_u32 s{S_T0}, s{S_T0}, {0xC00000}')
            a('s_waitcnt lgkmcnt(0)')
            a(f's_mov_b32 s{R_WS+2}, 0x1000000')
            a('v_mov_b32 v0, 0')
            if LST and kind:
                a('s_mov_b64 exec, 0xffff')
                a('v_mbcnt_lo_u32_b32 v3, -1, 0')
                a('v_lshlrev_b32 v3, 2, v3')
                a(f'v_add_u32 v3, 0x100000, v3')
                a(f'buffer_store_dword v{192+23}, v3, {ws}, s{S_T0} offen')
                a('s_mov_b64 exec, 1')
            for i in range(n + 1):
                a(f'v_mov_b32 v2, s{SB+2*i}')
                a(f'buffer_store_dword v2, v0, {ws}, s{S_T0} offen offset:{4*i}')
                a('s_nop 1')

    a('s_cmp_ge_u32 s2, 256')
    a('s_cbranch_scc1 KG_END')
    if ST in (5, 6, 7):
        for i in range(NSTAMP + 1):
            a(f's_mov_b32 s{SB+2*i}, 0')
    stamp(0)
    a(f's_load_dwordx8 s[{S_X}:{S_X+7}], s[0:1], 0')
    a(f's_load_dwordx2 s[{S_WS}:{S_WS+1}], s[0:1], 88')
    a(f's_load_dwordx4 s[{S_GT}:{S_GT+3}], s[0:1], 64')
    a(f's_load_dwordx2 s[{S_WO}:{S_WO+1}], s[0:1], 32')
    a(f's_load_dwordx4 s[{S_WR}:{S_WR+3}], s[0:1], 48')
    a('v_lshrrev_b32 v1, 6, v0')
    a('v_and_b32 v0, 63, v0')
    a(f's_and_b32 s{S_T0}, s2, 7')
    a(f'v_readfirstlane_b32 s{S_W}, v1')
    a(f's_lshl_b32 s{S_T0}, s{S_T0}, 2')
    a(f's_lshr_b32 s{S_QG}, s2, 6')
    a(f's_add_u32 s{S_QG}, s{S_QG}, s{S_T0}')
    a(f's_bfe_u32 s{S_HG}, s2, 0x30003')
    a(f's_mov_b32 s{S_LIM}, {1<<21}')
    V_Z = 7
    a(f'v_mov_b32 v{V_Z}, {L_FLAG}')
    a(f's_cmp_lg_u32 s{S_W}, 0')
    a('s_cbranch_scc1 KG_B0')
    a(f'v_lshl_add_u32 v2, v0, 2, v{V_Z}')
    a('v_mov_b32 v3, 0')
    a('ds_write_b32 v2, v3')
    a('s_waitcnt lgkmcnt(0)')
    a.label('KG_B0')
    a(f's_cmp_lt_u32 s{S_W}, 4')
    a('s_cbranch_scc1 KG_HELP')

    uid = [0]
    def lds_wait(flag, val, vtmp, sleep=1, addr=None, sdst=None):
        uid[0] += 1; u = uid[0]
        addr = V_Z if addr is None else addr
        sdst = S_T0 if sdst is None else sdst
        a.label(f'KG_LW{u}')
        a(f'ds_read_b32 v{vtmp}, v{addr} offset:{4*flag}')
        a('s_waitcnt lgkmcnt(0)')
        a(f'v_readfirstlane_b32 s{sdst}, v{vtmp}')
        a(f's_cmp_ge_u32 s{sdst}, {val}')
        a(f's_cbranch_scc1 KG_LD{u}')
        a(f's_sleep {sleep}')
        a(f's_sub_u32 s{S_LIM}, s{S_LIM}, 1')
        a(f's_cbranch_scc0 KG_LW{u}')
        a(f's_mov_b32 s{S_LIM}, 0')
        a.label(f'KG_LD{u}')
    def lds_add(flag, vtmp):
        a(f'v_mov_b32 v{vtmp}, 1')
        a('s_mov_b64 exec, 1')
        a(f'ds_add_u32 v{V_Z}, v{vtmp} offset:{4*flag}')
        a('s_mov_b64 exec, -1')
    def get_tag(vtmp):
        a(f'ds_read_b32 v{vtmp}, v{V_Z} offset:{4*F_TAG}')
        a('s_waitcnt lgkmcnt(0)')
        a(f'v_readfirstlane_b32 s{S_TAG}, v{vtmp}')

    V_OQ, V_OV = 2, 3
    V_M = 4
    V_H = 6
    V_Q = 8
    V_S = 16
    V_P = 48
    V_O = 64
    V_K = 96
    V_V = 128
    V_T = 192
    S_N = S_KH
    V_QA, V_QV, V_LK, V_LV = V_T + 16, V_T + 17, V_T + 18, V_T + 19
    a('s_setprio 1')
    a(f's_and_b32 s{S_CT}, s{S_W}, 1')
    a(f's_bfe_u32 s{S_A}, s{S_W}, 0x10001')
    a(f's_mov_b32 s{S_N}, 0')
    a('v_and_b32 v1, 31, v0')
    a(f'v_lshrrev_b32 v{V_H}, 5, v0')
    V_XA = V_T
    V_WA = V_T + 4
    t = lambda i: f'v{V_T+8+i}'
    a(f'v_bfe_u32 {t(0)}, v0, 1, 3')
    a(f's_lshl_b32 s{S_T0}, s{S_A}, 12')
    a(f'v_lshlrev_b32 {t(1)}, 7, v1')
    a(f'v_add_u32 {t(1)}, s{S_T0}, {t(1)}')
    for ks in range(4):
        a(f'v_add_u32 {t(2)}, {2*ks}, v{V_H}')
        a(f'v_xor_b32 {t(2)}, {t(2)}, {t(0)}')
        a(f'v_lshl_add_u32 v{V_XA+ks}, {t(2)}, 4, {t(1)}')
    a(f'v_bfe_u32 {t(0)}, v0, 2, 2')
    a(f'v_and_b32 {t(1)}, 3, v0')
    a(f'v_bfe_u32 {t(2)}, v0, 4, 1')
    a(f'v_lshl_add_u32 {t(3)}, v{V_H}, 3, {t(0)}')
    a(f'v_lshlrev_b32 {t(3)}, 7, {t(3)}')
    a(f'v_lshrrev_b32 {t(4)}, 1, {t(1)}')
    a(f'v_and_b32 {t(5)}, 1, {t(1)}')
    a(f'v_lshrrev_b32 {t(6)}, 1, {t(0)}')
    a(f'v_lshlrev_b32 {t(6)}, 2, {t(6)}')
    a(f'v_lshl_add_u32 {t(7)}, {t(2)}, 1, {t(4)}')
    a(f's_lshl_b32 s{S_T0}, s{S_CT}, 2')
    a(f'v_add_u32 {t(7)}, s{S_T0}, {t(7)}')
    a(f'v_xor_b32 {t(7)}, {t(7)}, {t(6)}')
    a(f'v_lshl_add_u32 {t(7)}, {t(7)}, 4, {t(3)}')
    a(f'v_lshl_add_u32 v{V_WA}, {t(5)}, 3, {t(7)}')
    a(f'v_add_u32 v{V_WA}, {L_WQ}, v{V_WA}')
    a(f'v_lshlrev_b32 v{V_OQ}, 5, v1')
    a(f'v_lshl_add_u32 v{V_OQ}, v{V_H}, 4, v{V_OQ}')
    a(f'v_and_b32 v{V_OV}, 15, v0')
    a(f'v_lshlrev_b32 v{V_OV}, 4, v{V_OV}')
    a(f'v_lshl_add_u32 v{V_OV}, v{V_H}, 8, v{V_OV}')
    a(f'v_add_u32 v{V_OV}, 1024, v{V_OV}')
    a(f'v_add_u32 v{V_LK}, {L_PRE}, v{V_OQ}')
    a(f'v_add_u32 v{V_LV}, {L_PRE}, v{V_OV}')
    a(f'v_add_u32 v{V_QA}, {4*(F_Q+1)}, v{V_Z}')
    a(f's_mov_b32 s{S_VM}, 0xffff')
    a(f's_mov_b32 s{S_VM+1}, 0xffff')
    a(f'v_and_b32 {t(0)}, 27, v1')
    a(f'v_cmp_eq_u32 vcc, 16, {t(0)}')
    a(f'v_mov_b32 {t(1)}, 0x3f803f80')
    a(f'v_mov_b32 v{V_M}, 0')
    a(f'v_mov_b32 v{V_M+1}, 0')
    a(f'v_cndmask_b32 {t(1)}, 0, {t(1)}, vcc')
    for i in range(64):
        a(f'v_mov_b32 v{V_V+i}, {t(1)}')
    QA = V_S
    QB = (V_O, V_S + 16)
    a(f's_mov_b32 s{S_SEEN}, 0')
    a('s_waitcnt lgkmcnt(0)')
    srd(a, R_WS, S_WS, WS_SIZE)
    a('s_barrier')
    stamp(1)
    def q_wait(c):
        a(f's_cmp_gt_u32 s{S_SEEN}, {c}')
        a(f's_cbranch_scc1 KG_QG{c}')
        a.label(f'KG_QP{c}')
        a(f'ds_read_b64 {vr(V_T+8,2)}, v{V_Z} offset:{4*F_CX}')
        a('s_waitcnt lgkmcnt(0)')
        a(f'v_min_u32 {t(0)}, {t(0)}, {t(1)}')
        a('s_nop 0')
        a(f'v_readfirstlane_b32 s{S_SEEN}, {t(0)}')
        a(f's_cmp_gt_u32 s{S_SEEN}, {c}')
        a(f's_cbranch_scc1 KG_QG{c}')
        if c < 7 or Q7_SLEEP:
            a('s_sleep 1')
        a(f's_sub_u32 s{S_LIM}, s{S_LIM}, 1')
        a(f's_cbranch_scc0 KG_QP{c}')
        a(f's_mov_b32 s{S_LIM}, 0')
        a.label(f'KG_QG{c}')
    def q_reads(c):
        b = QB[c & 1]
        for ks in range(4):
            a(f'ds_read_b128 {vr(b+4*ks,4)}, v{V_XA+ks} offset:{c*8192}')
            a(f'ds_read_b64_tr_b16 {vr(b+16+4*ks,2)}, v{V_WA} offset:{c*8192+ks*2048}')
            a(f'ds_read_b64_tr_b16 {vr(b+16+4*ks+2,2)}, v{V_WA} offset:{c*8192+ks*2048+512}')
    for c in range(8):
        q_wait(c); q_reads(c)
        b = QB[c & 1]
        for ks in range(4):
            a(f's_waitcnt lgkmcnt({9 - 3*ks})')
            cc = vr(QA, 16) if (c or ks) else '0'
            a(f'v_mfma_f32_32x32x16_bf16 {vr(QA,16)}, {vr(b+16+4*ks,4)}, {vr(b+4*ks,4)}, {cc}')
    stamp(2)
    spins = []
    def pre_check(n):
        uid[0] += 1; u = uid[0]
        a(f's_cmp_lt_u32 s{S_N}, {n}')
        a(f's_cbranch_scc1 KG_SP{u}')
        a.label(f'KG_SR{u}')
        spins.append(('pre', u, n))
    def q_check():
        uid[0] += 1; u = uid[0]
        a(f's_cmp_eq_u32 s{S_KOFF}, 0')
        a(f's_cbranch_scc1 KG_SP{u}')
        a.label(f'KG_SR{u}')
        a(f'v_add_u32 v{V_QA}, 4, v{V_QA}')
        spins.append(('q', u, 0))
    def emit_spins():
        for kind, u, n in spins:
            a.label(f'KG_SP{u}')
            if kind == 'pre':
                a(f'ds_read_b32 v{V_T+8}, v{V_Z} offset:{4*F_PRE}')
                a('s_waitcnt lgkmcnt(0)')
                a(f'v_readfirstlane_b32 s{S_N}, v{V_T+8}')
                a(f's_cmp_ge_u32 s{S_N}, {n}')
                a(f's_cbranch_scc1 KG_SR{u}')
            else:
                a(f'ds_read_b32 v{V_T+8}, v{V_QA}')
                a('s_waitcnt lgkmcnt(0)')
                a(f'v_readfirstlane_b32 s{S_KOFF}, v{V_T+8}')
                a('s_nop 3')
                a(f's_cmp_lg_u32 s{S_KOFF}, 0')
                a(f's_cbranch_scc1 KG_SR{u}')
                a('s_sleep 1')
            a(f's_sub_u32 s{S_LIM}, s{S_LIM}, 1')
            a(f's_cbranch_scc0 KG_SP{u}')
            a(f's_mov_b32 s{S_LIM}, 0')
            a(f's_branch KG_SR{u}')
        spins.clear()

    def load_k(slot, off):
        a(f'buffer_load_dwordx4 {vr(V_K+4*slot,4)}, v{V_OQ}, {ws}, s{S_KOFF} offen offset:{off}{KVSC}')
    def kv_group(c, adv=True):
        load_k(c & 7, 0)
        load_k((c + 1) & 7, 2048)
        a(f's_mov_b64 exec, s[{S_VM}:{S_VM+1}]')
        for j in range(2):
            sl = (c + j) & 7
            a(f'buffer_load_dwordx4 {vr(V_V+8*sl,4)}, v{V_OV}, {ws}, s{S_KOFF} offen offset:{2048*j}{KVSC}')
            a(f'buffer_load_dwordx4 {vr(V_V+8*sl+4,4)}, v{V_OV}, {ws}, s{S_KOFF} offen offset:{2048*j+512}{KVSC}')
        a('s_mov_b64 exec, -1')
        if adv:
            a(f's_add_u32 s{S_KOFF}, s{S_KOFF}, 4096')
    def pre_reads(c):
        a(f'ds_read_b128 {vr(V_K+4*c,4)}, v{V_LK} offset:{2048*c}')
        a(f's_mov_b64 exec, s[{S_VM}:{S_VM+1}]')
        a(f'ds_read_b128 {vr(V_V+8*c,4)}, v{V_LV} offset:{2048*c}')
        a(f'ds_read_b128 {vr(V_V+8*c+4,4)}, v{V_LV} offset:{2048*c+512}')
        a('s_mov_b64 exec, -1')
    def mfma_s(t_, slot):
        a(f'v_mfma_f32_32x32x16_bf16 {vr(V_S+16*t_,16)}, {vr(V_K+4*slot,4)}, {vr(V_Q+4*t_,4)}, 0')
    def mfma_pv(t_, slot, pp, zero=False):
        cc = '0' if zero else vr(V_O+16*t_, 16)
        a(f'v_mfma_f32_32x32x16_bf16 {vr(V_O+16*t_,16)}, {vr(V_V+8*slot+4*pp,4)}, {vr(V_P+8*t_+4*pp,4)}, {cc}')
    def cv(t_, i):
        a(f'v_cvt_pk_bf16_f32 v{V_P+8*t_+i}, v{V_S+16*t_+2*i}, v{V_S+16*t_+2*i+1}')

    def kv_list(c, adv=True):
        L = []
        L.append(f'buffer_load_dwordx4 {vr(V_K+4*(c&7),4)}, v{V_OQ}, {ws}, s{S_KOFF} offen offset:0{KVSC}')
        L.append(f'buffer_load_dwordx4 {vr(V_K+4*((c+1)&7),4)}, v{V_OQ}, {ws}, s{S_KOFF} offen offset:2048{KVSC}')
        for j in range(2):
            sl = (c + j) & 7
            L.append(f'buffer_load_dwordx4 {vr(V_V+8*sl,4)}, v{V_OV}, {ws}, s{S_KOFF} offen offset:{2048*j}{KVSC}')
            L.append(f'buffer_load_dwordx4 {vr(V_V+8*sl+4,4)}, v{V_OV}, {ws}, s{S_KOFF} offen offset:{2048*j+512}{KVSC}')
        if adv:
            L.append(f's_add_u32 s{S_KOFF}, s{S_KOFF}, 4096')
        return L
    SPREAD = E('SPREAD', 0)
    LDSX = E('LDSX', 0)
    if LDSX:
        def kv_list(c, adv=True):
            L = []
            for j in range(2):
                sl = (c + j) & 7
                L.append(f'ds_read_b128 {vr(V_K+4*sl,4)}, v{V_LK} offset:{2048*sl}')
            for j in range(2):
                sl = (c + j) & 7
                L.append(f'ds_read_b128 {vr(V_V+8*sl,4)}, v{V_LV} offset:{2048*sl}')
                L.append(f'ds_read_b128 {vr(V_V+8*sl+4,4)}, v{V_LV} offset:{2048*sl+512}')
            return L
        def kv_group(c, adv=True):
            L = kv_list(c)
            a(L[0]); a(L[1])
            a(f's_mov_b64 exec, s[{S_VM}:{S_VM+1}]')
            for x in L[2:]: a(x)
            a('s_mov_b64 exec, -1')
    YW = E('YW', 0)
    def body(sub, peel, dyn):
        pend = []
        def ex(t_, i):
            r = V_S + 16*t_ + i
            if sub:
                a(f'v_sub_f32 v{r}, v{r}, v{V_M+t_}')
            a(f'v_exp_f32 v{r}, v{r}')
            if pend:
                a(pend.pop(0))
        for b in range(8):
            for t_ in range(2):
                if peel and t_ == 0 and LST:
                    a('s_memtime s[100:101]')
                if peel and t_ == 0 and b < 7:
                    pre_check(b + 2)
                    pre_reads(b + 1)
                    if b == PEEL_B - 1:
                        a(f'ds_read_b32 v{V_QV}, v{V_QA}')
                ex(t_, 0); ex(t_, 1)
                if t_ == 1:
                    mfma_pv(0, b, 1)
                elif not (peel and b == 0):
                    mfma_pv(1, (b - 1) & 7, 1)
                ex(t_, 2); ex(t_, 3); ex(t_, 4); ex(t_, 5)
                if t_ == 1:
                    if peel and b < 7:
                        a('s_waitcnt lgkmcnt(0)')
                    elif b & 1:
                        a('s_waitcnt vmcnt(12)' + (' lgkmcnt(0)' if (dyn and b == 1) else ''))
                    if peel and LST:
                        if b == 7: a('s_waitcnt lgkmcnt(0)')
                        a(f'v_writelane_b32 v{V_T+23}, s100, {8+b}')
                    mfma_s(0, (b + 1) & 7)
                    if dyn and b == (PEEL_B - 1 if peel else 1):
                        a(f'v_readfirstlane_b32 s{S_KOFF}, v{V_QV}')
                        if LST and not peel:
                            a(f'v_writelane_b32 v{V_T+23}, s100, m0')
                    if peel and b == 6:
                        lds_add(F_QDONE, V_T + 8)
                else:
                    mfma_s(1, b)
                do_kv = t_ == 0 and b % 2 == 0 and not E('NOKV', 0) and not peel
                if peel and t_ == 0 and PEEL_B <= b < PEEL_B + 3 and not E('NOKV', 0):
                    if b == PEEL_B:
                        q_check()
                    kv_group(8 + 2 * (b - PEEL_B))
                if do_kv and SPREAD:
                    if dyn and b == 2:
                        q_check()
                    pend += kv_list(b + 6, adv=not (dyn and b == 0))
                    if dyn and b == 0:
                        pend.append(f'ds_read_b32 v{V_QV}, v{V_QA}')
                if do_kv and not SPREAD:
                    if dyn and b == 2:
                        q_check()
                    kv_group(b + 6, adv=not (dyn and b == 0))
                    if dyn and b == 0:
                        a(f'ds_read_b32 v{V_QV}, v{V_QA}')
                ex(t_, 6); ex(t_, 7)
                cv(t_, 0); cv(t_, 1); cv(t_, 2); cv(t_, 3)
                ex(t_, 8); ex(t_, 9)
                mfma_pv(t_, b, 0, zero=(peel and b == 0))
                for i in range(10, 16):
                    ex(t_, i)
                cv(t_, 4); cv(t_, 5); cv(t_, 6); cv(t_, 7)
                assert not pend

    def attn_pass(tag, sub, first):
        if first:
            pre_check(1)
            pre_reads(0)
            stamp(3)
            a('s_nop 4')
            for i in range(8):
                a(f'v_cvt_pk_bf16_f32 v{V_Q+i}, v{QA+2*i}, v{QA+2*i+1}')
            a('s_waitcnt lgkmcnt(0)')
            mfma_s(0, 0)
            a(f's_mov_b32 s{S_CNT}, 7')
            stamp(4)
            a('s_nop 4')
            body(False, True, True)
        else:
            a(f's_mov_b32 s{S_KOFF}, {WS_KV}')
            for c in range(0, 6, 2):
                kv_group(c)
            for i in range(32):
                a(f'v_mov_b32 v{V_O+i}, 0')
            for i in range(4):
                a(f'v_mov_b32 v{V_P+12+i}, 0')
            a('s_waitcnt vmcnt(12)')
            mfma_s(0, 0)
            a(f's_mov_b32 s{S_CNT}, 8')
            a('s_nop 10')
        a.label(f'KG_LOOP{tag}')
        if LST and first:
            a('s_memtime s[100:101]')
            a(f's_mov_b32 m0, s{S_CNT}')
        body(sub, False, first)
        a(f's_sub_u32 s{S_CNT}, s{S_CNT}, 1')
        a(f's_cmp_lg_u32 s{S_CNT}, 0')
        a(f's_cbranch_scc1 KG_LOOP{tag}')
        mfma_pv(1, 7, 1)

    attn_pass('A', False, True)
    stamp(5)
    a(f'ds_read_b32 v{V_T}, v{V_Z} offset:{4*F_TAG}')
    a(f's_lshl_b32 s{S_T2}, s{S_QG}, 1')
    a(f's_add_u32 s{S_T2}, s{S_T2}, s{S_A}')
    a(f's_lshl_b32 s{S_T3}, s{S_HG}, 1')
    a(f's_add_u32 s{S_T3}, s{S_T3}, s{S_CT}')
    a(f's_lshl_b32 s{S_T2}, s{S_T2}, 4')
    a(f's_add_u32 s{S_T2}, s{S_T2}, s{S_T3}')
    a(f's_lshl_b32 s{S_T3}, s{S_T2}, 7')
    a(f's_add_u32 s{S_T3}, s{S_T3}, {WS_FL4}')
    a(f's_lshl_b32 s{S_T2}, s{S_T2}, 11')
    a(f's_add_u32 s{S_T2}, s{S_T2}, {WS_O}')
    a(f'v_lshlrev_b32 v{V_T+1}, 4, v0')
    a(f'v_mov_b32 v{V_T+2}, 0')
    a(f's_mov_b32 s{S_T0}, {f32_bits(2.0**-30)}')
    a(f's_mov_b32 s{S_T1}, {f32_bits(2.0**30)}')
    a(f'v_cmp_le_f32 s[{S_C0}:{S_C0+1}], s{S_T0}, v{V_O+8}')
    a(f'v_cmp_ge_f32 s[{S_C1}:{S_C1+1}], s{S_T1}, v{V_O+8}')
    a(f's_and_b64 s[{S_C0}:{S_C0+1}], s[{S_C0}:{S_C0+1}], s[{S_C1}:{S_C1+1}]')
    a(f'v_cmp_le_f32 s[{S_C1}:{S_C1+1}], s{S_T0}, v{V_O+24}')
    a(f's_and_b64 s[{S_C0}:{S_C0+1}], s[{S_C0}:{S_C0+1}], s[{S_C1}:{S_C1+1}]')
    a(f'v_cmp_ge_f32 s[{S_C1}:{S_C1+1}], s{S_T1}, v{V_O+24}')
    a(f's_and_b64 s[{S_C0}:{S_C0+1}], s[{S_C0}:{S_C0+1}], s[{S_C1}:{S_C1+1}]')
    a(f's_cmp_eq_u64 s[{S_C0}:{S_C0+1}], -1')
    a('s_cbranch_scc0 KG_SLOW')
    a.label('KG_OUT')
    a(f'v_rcp_f32 v{V_T+4}, v{V_O+8}')
    a(f'v_rcp_f32 v{V_T+5}, v{V_O+24}')
    a('s_nop 0')
    for t_ in range(2):
        for i in range(8):
            a(f'v_mul_f32 v{V_O+16*t_+i}, v{V_T+4+t_}, v{V_O+16*t_+i}')
        for i in range(4):
            a(f'v_cvt_pk_bf16_f32 v{V_S+4*t_+i}, v{V_O+16*t_+2*i}, v{V_O+16*t_+2*i+1}')
        a(f'buffer_store_dwordx4 {vr(V_S+4*t_,4)}, v{V_T+1}, {ws}, s{S_T2} offen offset:{1024*t_}{SC}')
    a('s_waitcnt vmcnt(0) lgkmcnt(0)')
    stamp(6)
    a(f'v_mov_b32 v{V_T+3}, 1')
    a('s_mov_b64 exec, 1')
    a(f'buffer_store_dword v{V_T}, v{V_T+2}, {ws}, s{S_T3} offen{SC}')
    a(f'ds_add_u32 v{V_Z}, v{V_T+3} offset:{4*F_ADONE}')
    dump(1)
    a('s_endpgm')
    emit_spins()

    a.label('KG_SLOW')
    lds_wait(F_N, 127, V_T + 8)
    a('s_waitcnt vmcnt(0)')
    a(f'v_mov_b32 v{V_M}, 0xff800000')
    a(f'v_mov_b32 v{V_M+1}, 0xff800000')
    a(f's_mov_b32 s{S_KOFF}, {WS_KV}')
    a(f's_mov_b32 s{S_CNT}, 64')
    a.label('KG_MAXLOOP')
    load_k(0, 0)
    a(f's_add_u32 s{S_KOFF}, s{S_KOFF}, 2048')
    a('s_waitcnt vmcnt(0)')
    mfma_s(0, 0)
    mfma_s(1, 0)
    a('s_nop 12')
    for t_ in range(2):
        for i in range(8):
            a(f'v_max3_f32 v{V_M+t_}, v{V_S+16*t_+2*i}, v{V_S+16*t_+2*i+1}, v{V_M+t_}')
    a(f's_sub_u32 s{S_CNT}, s{S_CNT}, 1')
    a(f's_cmp_lg_u32 s{S_CNT}, 0')
    a('s_cbranch_scc1 KG_MAXLOOP')
    for t_ in range(2):
        a(f'v_mov_b32 v{V_T+4+t_}, v{V_M+t_}')
    a('s_nop 1')
    for t_ in range(2):
        a(f'v_permlane32_swap_b32 v{V_M+t_}, v{V_T+4+t_}')
    a('s_nop 1')
    for t_ in range(2):
        a(f'v_max_f32 v{V_M+t_}, v{V_M+t_}, v{V_T+4+t_}')
    attn_pass('B', True, False)
    a('s_nop 12')
    a('s_branch KG_OUT')

    a.label('KG_HELP')
    a('s_setprio 2')
    V_I, V_G, V_L16, V_A1, V_A2, V_A3 = 1, 2, 3, 4, 5, 6
    V_U = 8
    u = lambda i: f'v{V_U+i}'
    a(f's_mov_b32 s{S_HW}, s{S_W}')
    a(f'v_and_b32 v{V_I}, 15, v0')
    a(f'v_lshrrev_b32 v{V_G}, 4, v0')
    a(f'v_lshlrev_b32 v{V_L16}, 4, v0')
    a(f's_lshl_b32 s{S_F}, s{S_HG}, 5')
    a(f's_add_u32 s{S_F}, s{S_F}, s{S_QG}')
    a('s_waitcnt lgkmcnt(0)')
    srd(a, R_X, S_X, 2048 * 1024)
    srd(a, R_WS, S_WS, WS_SIZE)
    a(f's_cmp_eq_u32 s{S_HW}, 0')
    a('s_cbranch_scc1 KG_KV')
    a(f's_cmp_eq_u32 s{S_HW}, 1')
    a('s_cbranch_scc1 KG_TAG')
    a('s_branch KG_H2')

    def thr():
        a(f's_waitcnt vmcnt({THR})')
    def flag_store(base, idx=None):
        idx = f's{S_F}' if idx is None else idx
        a(f's_lshr_b32 s{S_T0}, {idx}, 2')
        a(f's_lshl_b32 s{S_T0}, s{S_T0}, 7')
        a(f's_and_b32 s{S_T1}, {idx}, 3')
        a(f's_lshl_b32 s{S_T1}, s{S_T1}, 2')
        a(f's_add_u32 s{S_T0}, s{S_T0}, s{S_T1}')
        a(f's_add_u32 s{S_T0}, s{S_T0}, {base}')
        a(f'v_mov_b32 {u(0)}, 0')
        a(f'v_mov_b32 {u(1)}, s{S_TAG}')
        a('s_mov_b64 exec, 1')
        a(f'buffer_store_dword {u(1)}, {u(0)}, {ws}, s{S_T0} offen{SC}')
        a('s_mov_b64 exec, -1')
    def join_flag(cnt, n, base):
        uid[0] += 1; k = uid[0]
        a(f'v_mov_b32 {u(0)}, 1')
        a('s_waitcnt vmcnt(0)')
        a('s_mov_b64 exec, 1')
        a(f'ds_add_rtn_u32 {u(1)}, v{V_Z}, {u(0)} offset:{4*cnt}')
        a('s_mov_b64 exec, -1')
        a('s_waitcnt lgkmcnt(0)')
        a(f'v_readfirstlane_b32 s{S_T0}, {u(1)}')
        a(f's_cmp_lg_u32 s{S_T0}, {n-1}')
        a(f's_cbranch_scc1 KG_JN{k}')
        flag_store(base)
        a.label(f'KG_JN{k}')
    def glob_poll(tag, execmask, sleep, wide=True, lsh=7):
        a(f's_mov_b32 s{S_CNT}, {POLL_LIMIT}')
        a(f'v_lshlrev_b32 {u(0)}, {lsh}, v0')
        if execmask == 0xffffffff:
            a('s_mov_b32 exec_hi, 0')
        else:
            a(f's_mov_b64 exec, {execmask}')
        a.label(f'KG_GP{tag}')
        if wide:
            a(f'buffer_load_dwordx4 {vr(V_U+4,4)}, {u(0)}, {ws}, s{S_T1} offen{SC}')
            a('s_waitcnt vmcnt(0)')
            for i in range(4):
                a(f'v_xor_b32 {u(4+i)}, s{S_TAG}, {u(4+i)}')
            a(f'v_or3_b32 {u(4)}, {u(4)}, {u(5)}, {u(6)}')
            a(f'v_or_b32 {u(4)}, {u(4)}, {u(7)}')
            a(f'v_cmp_ne_u32 vcc, 0, {u(4)}')
        else:
            a(f'buffer_load_dword {u(4)}, {u(0)}, {ws}, s{S_T1} offen{SC}')
            a('s_waitcnt vmcnt(0)')
            a(f'v_cmp_ne_u32 vcc, s{S_TAG}, {u(4)}')
        a(f's_sub_u32 s{S_CNT}, s{S_CNT}, 1')
        a(f's_cbranch_scc1 KG_GD{tag}')
        if tag == 'KV':
            S_DN = S_VM
            a(f's_and_b64 s[{S_C0}:{S_C0+1}], exec, vcc')
            a(f's_or_b64 s[{S_C1}:{S_C1+1}], s[{S_C0}:{S_C0+1}], s[{S_DN}:{S_DN+1}]')
            a('s_mov_b64 exec, -1')
            for c in range(8):
                m = 0xff << (8 * (c & 3))
                a(f's_and_b32 s{S_T0}, s{S_C1+(c>>2)}, {hex(m)}')
                a(f's_cbranch_scc1 KG_QS{c}')
                a(f's_or_b32 s{S_DN+(c>>2)}, s{S_DN+(c>>2)}, {hex(m)}')
                a(f'v_mov_b32 {u(1)}, {WS_KV + c*16384}')
                a(f'ds_write_b32 v{V_A2}, {u(1)}')
                a(f'v_add_u32 v{V_A2}, 4, v{V_A2}')
                a.label(f'KG_QS{c}')
            a(f's_and_b64 exec, s[{S_C0}:{S_C0+1}], s[{S_C0}:{S_C0+1}]')
        else:
            a('s_and_b64 exec, exec, vcc')
        a(f's_cbranch_scc0 KG_GD{tag}')
        a(f's_sleep {sleep}')
        a(f's_branch KG_GP{tag}')
        a.label(f'KG_GD{tag}')
        a('s_mov_b64 exec, -1')

    a.label('KG_KV')
    KX, KW, KA = 16, 80, 144
    S_RB, S_TY, S_KQ = S_P, S_KH, S_KB
    a(f's_mov_b32 s{S_KQ}, s{S_QG}')
    a(f's_lshr_b32 s{S_RB}, s{S_HG}, 1')
    a(f's_and_b32 s{S_TY}, s{S_HG}, 1')
    a(f's_cmp_eq_u32 s{S_TY}, 1')
    a(f's_cselect_b64 s[{S_C0}:{S_C0+1}], s[{S_WV}:{S_WV+1}], s[{S_WK}:{S_WK+1}]')
    srd(a, R_A, S_C0, 16384)
    srd(a, R_B, S_GT, 1024)
    a(f's_lshl_b32 s{S_T0}, s{S_RB}, 9')
    a(f's_add_u32 s{S_T0}, s{S_T0}, s{S_KQ}')
    a(f'v_lshlrev_b32 v{V_A1}, 5, v{V_I}')
    a(f'v_add_u32 v{V_A1}, s{S_T0}, v{V_A1}')
    a(f'v_lshlrev_b32 {u(0)}, 10, v{V_A1}')
    a(f'v_lshl_add_u32 {u(0)}, v{V_G}, 4, {u(0)}')
    for i in range(16):
        a(f's_mov_b32 m0, {L_KW + i*1024}')
        a(f's_movk_i32 s{S_T0}, {i*1024}')
        a(f'buffer_load_dwordx4 v{V_L16}, {ra}, s{S_T0} offen lds')
        a(f'buffer_load_dwordx4 {vr(KX+4*i,4)}, {u(0)}, {xs}, 0 offen offset:{64*i}')
        if i == KV_BAR:
            a('s_barrier')
            stamp(1)
    a(f's_mov_b32 m0, {L_GATE}')
    a('s_nop 0')
    a(f'buffer_load_dwordx4 v{V_L16}, {rb_}, 0 offen lds')
    a(f'v_bfe_u32 {u(1)}, v0, 2, 2')
    a(f'v_and_b32 {u(2)}, 3, v0')
    a(f'v_lshl_add_u32 {u(1)}, v{V_G}, 3, {u(1)}')
    a(f'v_lshlrev_b32 {u(1)}, 5, {u(1)}')
    a(f'v_lshl_add_u32 {u(1)}, {u(2)}, 3, {u(1)}')
    a(f'v_add_u32 v{V_A2}, {L_KW}, {u(1)}')
    a(f's_lshl_b32 s{S_T2}, s{S_QG}, 12')
    a(f's_lshr_b32 s{S_T0}, s{S_RB}, 1')
    a(f's_lshl_b32 s{S_T0}, s{S_T0}, 11')
    a(f's_add_u32 s{S_T2}, s{S_T2}, s{S_T0}')
    a(f's_and_b32 s{S_T0}, s{S_RB}, 1')
    a(f's_lshl_b32 s{S_T0}, s{S_T0}, 9')
    a(f's_add_u32 s{S_T2}, s{S_T2}, s{S_T0}')
    a(f's_lshl_b32 s{S_T3}, s{S_T2}, 1')
    a(f's_add_u32 s{S_T2}, s{S_T2}, {WS_KV}')
    assert WS_KVT == 0
    a(f's_lshl_b32 s{S_KOFF}, s{S_QG}, 3')
    a(f's_add_u32 s{S_KOFF}, s{S_KOFF}, s{S_HG}')
    lds_wait(F_TAGOK, 1, V_U)
    get_tag(V_U)
    a(f'v_and_b32 {u(2)}, 1, v{V_G}')
    a(f'v_lshrrev_b32 {u(3)}, 1, v{V_G}')
    a(f'v_lshlrev_b32 {u(4)}, 5, v{V_I}')
    a(f'v_lshl_add_u32 {u(4)}, {u(2)}, 4, {u(4)}')
    a(f'v_lshl_add_u32 {u(4)}, {u(3)}, 3, {u(4)}')
    a(f'v_lshlrev_b32 {u(5)}, 8, {u(2)}')
    a(f'v_lshl_add_u32 {u(5)}, v{V_I}, 4, {u(5)}')
    a(f'v_lshl_add_u32 {u(5)}, {u(3)}, 3, {u(5)}')
    a(f'v_add_u32 {u(5)}, 1024, {u(5)}')
    a(f'v_lshlrev_b32 {u(6)}, 1, {u(4)}')
    a(f'v_lshlrev_b32 {u(7)}, 1, {u(5)}')
    a(f'v_mov_b32 v{KA+10}, s{S_TAG}')
    a(f'v_mov_b32 v{KA+11}, s{S_TAG}')
    a(f'v_mov_b32 v{KA+12}, 1')
    a(f's_mov_b32 s{S_T1}, {f32_bits(QSCALE)}')
    a('s_waitcnt vmcnt(1)')
    stamp(2)
    def kv_reads(ks):
        a(f'ds_read_b64_tr_b16 {vr(KW+4*ks,2)}, v{V_A2} offset:{ks*1024}')
        a(f'ds_read_b64_tr_b16 {vr(KW+4*ks+2,2)}, v{V_A2} offset:{ks*1024+128}')
    for ks in range(7):
        kv_reads(ks)
    a(f's_cmp_eq_u32 s{S_TY}, 1')
    a('s_cbranch_scc1 KG_KV1')
    for ty in range(2):
        if ty == 1:
            a.label('KG_KV1')
        for ks in range(16):
            n_out = min(6, 15 - ks)
            a(f's_waitcnt lgkmcnt({2*n_out})')
            cc = vr(KA + 4*(ks & 1), 4) if ks >= 2 else '0'
            if ty == 0:
                a(f'v_mfma_f32_16x16x32_bf16 {vr(KA+4*(ks&1),4)}, {vr(KW+4*ks,4)}, {vr(KX+4*ks,4)}, {cc}')
            else:
                a(f'v_mfma_f32_16x16x32_bf16 {vr(KA+4*(ks&1),4)}, {vr(KX+4*ks,4)}, {vr(KW+4*ks,4)}, {cc}')
            if ks + 7 < 16:
                kv_reads(ks + 7)
        a('s_nop 7')
        for i in range(4):
            a(f'v_add_f32 v{KA+i}, v{KA+i}, v{KA+4+i}')
        if ty == 0:
            for i in range(4):
                a(f'v_mul_f32 v{KA+i}, s{S_T1}, v{KA+i}')
        a(f'v_cvt_pk_bf16_f32 v{KA+8}, v{KA}, v{KA+1}')
        a(f'v_cvt_pk_bf16_f32 v{KA+9}, v{KA+2}, v{KA+3}')
        a(f'buffer_store_dwordx4 {vr(KA+8,4)}, {u(6+ty)}, {ws}, s{S_T3} offen{SC}')
        a(f'buffer_store_dwordx2 {vr(KA+8,2)}, {u(4+ty)}, {ws}, s{S_T2} offen{SC}')
        a(f'ds_write_b32 v{V_Z}, v{KA+12} offset:{4*F_KVS}')
        stamp(1)
        a('s_waitcnt vmcnt(0)')
        flag_store(WS_FL1, f's{S_KOFF}')
        stamp(3)
        if ty == 1:
            a('s_branch KG_KP')
        else:
            a(f'v_lshlrev_b32 {u(2)}, 4, v{V_G}')
            a(f'v_add_u32 {u(2)}, {L_GATE}, {u(2)}')
            for half in range(2):
                for k8 in range(8):
                    ks = 8*half + k8
                    a(f'ds_read_b128 {vr(KW+4*ks,4)}, {u(2)} offset:{64*ks}')
                for k8 in range(8):
                    ks = 8*half + k8
                    a(f's_waitcnt lgkmcnt({7-k8})')
                    cc = vr(KA, 4) if ks else '0'
                    a(f'v_mfma_f32_16x16x32_bf16 {vr(KA,4)}, {vr(KW+4*ks,4)}, {vr(KX+4*ks,4)}, {cc}')
            a(f's_lshl_b32 s{S_T0}, s{S_KQ}, 6')
            a(f's_lshr_b32 s{S_T1}, s{S_RB}, 1')
            a(f's_lshl_b32 s{S_T1}, s{S_T1}, 5')
            a(f's_add_u32 s{S_T0}, s{S_T0}, s{S_T1}')
            a(f's_and_b32 s{S_T1}, s{S_RB}, 1')
            a(f's_lshl_b32 s{S_T1}, s{S_T1}, 2')
            a(f's_add_u32 s{S_T0}, s{S_T0}, s{S_T1}')
            a(f's_lshl_b32 s{S_T0}, s{S_T0}, 2')
            a(f's_add_u32 s{S_T1}, s{S_T0}, {WS_G}')
            a(f'v_lshrrev_b32 {u(2)}, 2, v{V_I}')
            a(f'v_and_b32 {u(4)}, 3, v{V_I}')
            a(f'v_lshl_add_u32 {u(2)}, {u(2)}, 3, {u(4)}')
            a(f'v_lshlrev_b32 {u(2)}, 2, {u(2)}')
            a(f'v_cvt_pk_bf16_f32 {u(3)}, v{KA}, v{KA}')
            a(f'v_lshlrev_b32 {u(3)}, 16, {u(3)}')
            a(f's_mov_b32 s{S_T0}, {f32_bits(-math.log2(math.e))}')
            a(f'v_mul_f32 {u(3)}, s{S_T0}, {u(3)}')
            a(f'v_exp_f32 {u(3)}, {u(3)}')
            a('s_nop 0')
            a(f'v_add_f32 {u(3)}, 1.0, {u(3)}')
            a(f'v_rcp_f32 {u(3)}, {u(3)}')
            a('s_nop 0')
            a(f'v_cvt_pk_bf16_f32 {u(3)}, {u(3)}, {u(3)}')
            a(f'v_lshlrev_b32 {u(3)}, 16, {u(3)}')
            a('s_mov_b64 exec, 0xffff')
            a(f'buffer_store_dword {u(3)}, {u(2)}, {ws}, s{S_T1} offen{SC}')
            a('s_mov_b64 exec, -1')
            a('s_branch KG_KP')

    a.label('KG_TAG')
    a(f's_mov_b32 s{S_T3}, {WS_ROOT}')
    a(f'v_mov_b32 {u(2)}, 0')
    a(f'buffer_load_dword {u(3)}, {u(2)}, {ws}, s{S_T3} offen{SC}')
    a('s_barrier')
    stamp(1)
    a('s_waitcnt vmcnt(0)')
    a(f'v_readfirstlane_b32 s{S_TAG}, {u(3)}')
    a(f's_mul_i32 s{S_TAG}, s{S_TAG}, {TAG_M}')
    a(f's_add_u32 s{S_TAG}, s{S_TAG}, {TAG_C}')
    a(f'v_mov_b32 {u(1)}, 1')
    a(f'v_mov_b32 {u(3)}, s{S_TAG}')
    a(f'ds_write_b32 v{V_Z}, {u(3)} offset:{4*F_TAG}')
    a(f'ds_write_b32 v{V_Z}, {u(1)} offset:{4*F_TAGOK}')
    a(f'v_mov_b32 {u(4)}, {WS_KV}')
    a(f'ds_write_b32 v{V_Z}, {u(4)} offset:{4*(F_Q+8)}')
    stamp(2)
    GR = 16
    V_GW, V_QW = V_A1, V_A2
    S_PEND, S_GB, S_DN = S_P, S_KH, S_VM
    a(f's_and_b32 s{S_T0}, s2, 7')
    a(f's_lshl_b32 s{S_GB}, s{S_T0}, 15')
    a(f's_lshl_b32 s{S_T0}, s{S_T0}, 3')
    a(f's_mov_b64 s[{S_DN}:{S_DN+1}], 0xff')
    a(f's_lshl_b64 s[{S_DN}:{S_DN+1}], s[{S_DN}:{S_DN+1}], s{S_T0}')
    a(f's_movk_i32 s{S_PEND}, 0x1ff')
    a(f'v_lshlrev_b32 v{V_GW}, 3, v0')
    a(f'v_add_u32 v{V_GW}, {L_PRE}, v{V_GW}')
    a(f'v_add_u32 v{V_QW}, {4*(F_Q+1)}, v{V_Z}')
    lds_wait(F_KVS, 1, V_U + 4, sleep=1)
    if G_DELAY:
        a(f's_sleep {G_DELAY}')
    def g_loads(c, sc=SC):
        a(f's_add_u32 s{S_T0}, s{S_GB}, {c*4096}')
        for j in range(4):
            a(f'buffer_load_dwordx4 {vr(GR+16*c+4*j,4)}, v{V_L16}, {ws}, s{S_T0} offen offset:{1024*j}{sc}')
    def g_check(c, k):
        for j in range(4):
            a(f'v_cmpx_eq_u32 vcc, s{S_TAG}, v{GR+16*c+4*j+2}')
        a('s_cmp_eq_u64 exec, -1')
        a('s_mov_b64 exec, -1')
        a(f's_cbranch_scc0 KG_GF{k}_{c}')
        for j in range(4):
            a(f'ds_write_b64 v{V_GW}, {vr(GR+16*c+4*j,2)} offset:{2048*c+512*j}')
        a(f's_bitset0_b32 s{S_PEND}, {c}')
        a(f's_ff1_i32_b32 s{S_T0}, s{S_PEND}')
        a(f'v_mov_b32 {u(4)}, s{S_T0}')
        a(f'ds_write_b32 v{V_Z}, {u(4)} offset:{4*F_PRE}')
        a.label(f'KG_GF{k}_{c}')
    for c in range(8):
        g_loads(c, '' if E('G_PLAIN', 0) else SC)
    a(f'ds_write_b32 v{V_Z}, {u(1)} offset:{4*F_GI}')
    stamp(1)
    for c in range(8):
        a(f's_waitcnt vmcnt({4*(7-c)})')
        g_check(c, 0)
    stamp(5)
    a(f's_mov_b32 s{S_CNT}, {POLL_LIMIT}')
    a.label('KG_GR')
    a(f's_cmp_eq_u32 s{S_PEND}, 0x100')
    a('s_cbranch_scc1 KG_GE')
    for c in range(8):
        a(f's_bitcmp1_b32 s{S_PEND}, {c}')
        a(f's_cbranch_scc0 KG_GL{c}')
        g_loads(c)
        a.label(f'KG_GL{c}')
    a('s_waitcnt vmcnt(0)')
    for c in range(8):
        a(f's_bitcmp1_b32 s{S_PEND}, {c}')
        a(f's_cbranch_scc0 KG_GF1_{c}')
        g_check(c, 1)
    a(f's_sub_u32 s{S_CNT}, s{S_CNT}, 1')
    a('s_cbranch_scc0 KG_GR')
    a.label('KG_GE')
    stamp(6)
    a('s_branch KG_WT')
    a.label('KG_KP')
    a(f's_and_b32 s{S_T0}, s2, 7')
    a(f's_lshl_b32 s{S_T0}, s{S_T0}, 3')
    a(f's_mov_b64 s[{S_DN}:{S_DN+1}], 0xff')
    a(f's_lshl_b64 s[{S_DN}:{S_DN+1}], s[{S_DN}:{S_DN+1}], s{S_T0}')
    a(f'v_add_u32 v{V_QW}, {4*(F_Q+1)}, v{V_Z}')
    a(f's_mov_b32 s{S_T1}, {WS_FL1}')
    if KP_DELAY:
        a(f's_sleep {KP_DELAY}')
    glob_poll('KV', -1, KV_SLEEP)
    a(f'v_mov_b32 {u(1)}, 127')
    a(f'ds_write_b32 v{V_Z}, {u(1)} offset:{4*F_N}')
    stamp(5)
    a('s_cmp_lg_u32 s2, 0')
    a('s_cbranch_scc1 KG_H3')
    a(f's_mov_b32 s{S_T3}, {WS_ROOT}')
    a(f'v_mov_b32 {u(2)}, 0')
    a(f'v_mov_b32 {u(3)}, s{S_TAG}')
    a('s_mov_b64 exec, 1')
    a(f'buffer_store_dword {u(3)}, {u(2)}, {ws}, s{S_T3} offen{SC}')
    a('s_mov_b64 exec, -1')
    a('s_branch KG_H3')

    a.label('KG_WT')
    if WT_LAG == 127:
        lds_wait(F_N, 127, V_U, sleep=2)
    elif WT_LAG == 100:
        lds_wait(F_Q + 1, 1, V_U, sleep=2)
    elif WT_LAG == 200:
        lds_wait(F_QDONE, 4, V_U, sleep=2)
    elif WT_LAG:
        lds_wait(F_PRE, WT_LAG, V_U, sleep=2)
    S_FW, S_G4, S_PT = S_P, S_KH, S_KB
    a(f's_lshr_b32 s{S_FW}, s{S_QG}, 3')
    a(f's_bfe_u32 s{S_G4}, s{S_QG}, 0x20001')
    a(f's_and_b32 s{S_PT}, s{S_QG}, 1')
    a(f's_cmp_eq_u32 s{S_PT}, 1')
    a(f's_cselect_b64 s[{S_C0}:{S_C0+1}], s[{S_WI}:{S_WI+1}], s[{S_WR}:{S_WR+1}]')
    srd(a, R_A, S_C0, 2048 * 514)
    a(f's_lshl_b32 s{S_T3}, s{S_FW}, 4')
    a(f's_lshl_b32 s{S_T1}, s{S_G4}, 8')
    a(f's_add_u32 s{S_T1}, s{S_T1}, s{S_T3}')
    a(f'v_add_u32 {u(2)}, s{S_T1}, v{V_I}')
    a(f'v_mul_u32_u24 {u(2)}, 514, {u(2)}')
    a(f'v_lshl_add_u32 {u(2)}, v{V_G}, 4, {u(2)}')
    a(f's_lshl_b32 s{S_T1}, s{S_HG}, 6')
    a(f'v_add_u32 {u(2)}, s{S_T1}, {u(2)}')
    a(f'v_and_b32 {u(4)}, 2, {u(2)}')
    a(f'v_and_b32 {u(2)}, -4, {u(2)}')
    for e in range(8):
        a(f's_mov_b32 s{S_T0}, {(16*(e>>2)+(e&3))*32896}')
        a(f'buffer_load_dwordx4 {vr(16+4*e,4)}, {u(2)}, {ra}, s{S_T0} offen')
        a(f'buffer_load_dword v{96+e}, {u(2)}, {ra}, s{S_T0} offen offset:16')
    a(f's_or_b32 s{S_KOFF}, s{S_HG}, s{S_G4}')
    a(f's_cmp_lg_u32 s{S_KOFF}, 0')
    a('s_cbranch_scc1 KG_WT1')
    a(f'v_lshl_add_u32 {u(3)}, v{V_G}, 8, v{V_I}')
    a(f'v_add_u32 {u(3)}, s{S_T3}, {u(3)}')
    a(f'v_mul_u32_u24 {u(3)}, 514, {u(3)}')
    for e in range(8):
        a(f's_mov_b32 s{S_T0}, {(16*(e>>2)+(e&3))*32896}')
        a(f'buffer_load_ushort v{80+e}, {u(3)}, {ra}, s{S_T0} offen offset:512')
    a.label('KG_WT1')
    a(f's_mov_b32 s{S_C0}, 0x05040100')
    a(f's_mov_b32 s{S_C0+1}, 0x07060302')
    a(f'v_lshlrev_b32 {u(2)}, 16, v{V_G}')
    a(f'v_lshl_add_u32 {u(2)}, v{V_I}, 4, {u(2)}')
    a(f's_lshl_b32 s{S_T1}, s{S_HG}, 18')
    a(f's_lshl_b32 s{S_T2}, s{S_FW}, 11')
    a(f's_lshl_b32 s{S_T0}, s{S_PT}, 10')
    a(f's_add_u32 s{S_T2}, s{S_T2}, s{S_T0}')
    a(f's_add_u32 s{S_T2}, s{S_T2}, {WS_WT}')
    a(f's_add_u32 s{S_T1}, s{S_T1}, s{S_T2}')
    a(f's_lshl_b32 s{S_T0}, s{S_G4}, 8')
    a(f's_add_u32 s{S_T1}, s{S_T1}, s{S_T0}')
    a('s_waitcnt vmcnt(0)')
    stamp(3)
    for e in range(8):
        for j in range(4):
            hi = 16 + 4*e + j + 1 if j < 3 else 96 + e
            a(f'v_alignbyte_b32 v{16+4*e+j}, v{hi}, v{16+4*e+j}, {u(4)}')
    for ph in range(8):
        for q in range(4):
            lo = 16 + 4*(2*q) + (ph >> 1); hi = 16 + 4*(2*q+1) + (ph >> 1)
            a(f'v_perm_b32 v{48+4*ph+q}, v{hi}, v{lo}, s{S_C0+(ph&1)}')
    for ph in range(8):
        a(f's_add_u32 s{S_T0}, s{S_T1}, {8192*ph}')
        if not E('WT_NOST', 0): a(f'buffer_store_dwordx4 {vr(48+4*ph,4)}, {u(2)}, {ws}, s{S_T0} offen{SC}')
    a(f's_cmp_lg_u32 s{S_KOFF}, 0')
    a('s_cbranch_scc1 KG_J1')
    for q in range(4):
        a(f'v_lshl_or_b32 v{88+q}, v{81+2*q}, 16, v{80+2*q}')
    a(f's_add_u32 s{S_T0}, s{S_T2}, {256*8192}')
    a(f'buffer_store_dwordx4 {vr(88,4)}, v{V_L16}, {ws}, s{S_T0} offen{SC}')
    a('s_branch KG_J1')

    a.label('KG_H2')
    HT, HX, HA = 16, 64, 128
    table_srd(a, R_TB, 'TAB_F', 512 * 1024, 'f')
    a(f's_and_b32 s{S_CT}, s{S_HW}, 1')
    a(f's_lshl_b32 s{S_T2}, s{S_HG}, 16')
    a(f's_lshl_b32 s{S_T0}, s{S_CT}, 10')
    a(f's_add_u32 s{S_T2}, s{S_T2}, s{S_T0}')
    a(f's_mov_b32 s{S_KOFF}, s{S_T2}')
    a(f'v_lshrrev_b32 {u(0)}, 3, v0')
    a(f'v_and_b32 {u(1)}, 7, v0')
    a(f's_cmp_eq_u32 s{S_HW}, 3')
    a('s_cbranch_scc1 KG_LDW')
    def loader(rs, soff, cstep, lbase, vo, flag):
        a(f's_mov_b32 s{S_T2}, 0')
        a(f's_mov_b32 s{S_T3}, {lbase}')
        if LD_PRE == 0:
            a('s_barrier')
            stamp(1)
        HD = 8 * LOAD_D // 2
        n = 0
        pub = 0
        for c in range(8):
            for w in range(8):
                a(f's_add_u32 m0, s{S_T3}, {w*1024}')
                a(f's_add_u32 s{S_T0}, s{S_T2}, {soff(w)}')
                a(f'buffer_load_dwordx4 {vo(w)}, {rs}, s{S_T0} offen lds')
                n += 1
                if n == LD_PRE:
                    a('s_barrier')
                    stamp(1)
                if n % 4 == 0 and n > HD:
                    a(f's_waitcnt vmcnt({HD})')
                    if (n - HD) // 8 > pub:
                        pub = (n - HD) // 8
                        a(f'v_mov_b32 {u(6)}, {pub}')
                        a(f'ds_write_b32 v{V_Z}, {u(6)} offset:{4*flag}')
            if c < 7:
                a(f's_add_u32 s{S_T2}, s{S_T2}, {cstep}')
                a(f's_add_u32 s{S_T3}, s{S_T3}, 8192')
        for c in range(pub, 8):
            a(f's_waitcnt vmcnt({8*(7-c)})')
            a(f'v_mov_b32 {u(6)}, {c + 1}')
            a(f'ds_write_b32 v{V_Z}, {u(6)} offset:{4*flag}')
    a(f'v_lshrrev_b32 {u(2)}, 2, {u(0)}')
    a(f'v_and_b32 {u(3)}, 3, {u(0)}')
    a(f'v_lshl_add_u32 {u(2)}, {u(2)}, 4, {u(3)}')
    a(f'v_lshlrev_b32 {u(2)}, 15, {u(2)}')
    a(f's_lshl_b32 s{S_T0}, s{S_QG}, 10')
    a(f'v_add_u32 {u(2)}, s{S_T0}, {u(2)}')
    a(f'v_xor_b32 {u(3)}, v{V_G}, {u(1)}')
    a(f'v_lshl_add_u32 {u(4)}, {u(3)}, 4, {u(2)}')
    a(f'v_xor_b32 {u(3)}, 4, {u(3)}')
    a(f'v_lshl_add_u32 {u(5)}, {u(3)}, 4, {u(2)}')
    loader(xs, lambda w: (32*(w >> 2) + 4*(w & 3)) * 32768, 128, L_X, lambda w: u(4 + (w & 1)), F_CX)
    a('s_branch KG_H2B')
    a.label('KG_LDW')
    srd(a, R_A, S_WQ, 512 * 1024)
    a(f'v_and_b32 {u(2)}, 1, v{V_G}')
    a(f'v_lshlrev_b32 {u(2)}, 2, {u(2)}')
    a(f'v_xor_b32 {u(2)}, {u(2)}, {u(1)}')
    a(f'v_lshlrev_b32 {u(2)}, 4, {u(2)}')
    a(f'v_lshl_add_u32 {u(2)}, {u(0)}, 10, {u(2)}')
    a(f's_lshl_b32 s{S_T0}, s{S_HG}, 7')
    a(f'v_add_u32 {u(4)}, s{S_T0}, {u(2)}')
    loader(ra, lambda w: w * 8192, 65536, L_WQ, lambda w: u(4), F_CW)
    a.label('KG_H2B')
    stamp(2)
    a(f's_mov_b32 s{S_T2}, s{S_KOFF}')
    if TF_LAG == 1:
        lds_wait(F_GI, 1, V_U, sleep=2)
    elif TF_LAG == 100:
        lds_wait(F_Q + 1, 1, V_U, sleep=2)
    elif TF_LAG == 200:
        lds_wait(F_QDONE, 4, V_U, sleep=2)
    elif TF_LAG:
        lds_wait(F_PRE, TF_LAG, V_U, sleep=2)
    def tload(i):
        if i % 2 == 0:
            a(f's_add_u32 s{S_T3}, s{S_T2}, {i*2048}')
        a(f'buffer_load_dwordx4 {vr(HT+4*(i%12),4)}, v{V_L16}, {tb}, s{S_T3} offen offset:{(i%2)*2048}')
    PD = H2_PD
    assert PD <= 12
    for i in range(PD):
        tload(i)
    a(f'v_and_b32 {u(4)}, 31, v0')
    a(f'v_lshrrev_b32 {u(5)}, 5, v0')
    a(f'v_bfe_u32 {u(6)}, v0, 1, 3')
    a(f'v_lshlrev_b32 {u(7)}, 7, {u(4)}')
    for ks in range(4):
        a(f'v_add_u32 v{HA+ks}, {2*ks}, {u(5)}')
        a(f'v_xor_b32 v{HA+ks}, v{HA+ks}, {u(6)}')
        a(f'v_lshl_add_u32 {u(ks)}, v{HA+ks}, 4, {u(7)}')
    a(f'v_lshlrev_b32 v{V_A1}, 12, {u(4)}')
    a(f'v_lshl_add_u32 v{V_A1}, {u(5)}, 5, v{V_A1}')
    stamp(5)
    lds_wait(F_CX, 8, V_U + 4, sleep=2)
    def xreads(c):
        for ks in range(4):
            for aa in range(2):
                a(f'ds_read_b128 {vr(HX+32*(c&1)+16*aa+4*ks,4)}, {u(ks)} offset:{c*8192+4096*aa}')
    if PRI & 1: a('s_setprio 0')
    xreads(0)
    for c in range(8):
        if c < 7:
            xreads(c + 1)
        for ks in range(4):
            i = 4*c + ks
            a(f's_waitcnt vmcnt({min(PD-1, 31-i)}) lgkmcnt({2*(3-ks) + (8 if c < 7 else 0)})')
            for aa in range(2):
                cc = vr(HA + 16*aa, 16) if i else '0'
                a(f'v_mfma_f32_32x32x16_bf16 {vr(HA+16*aa,16)}, {vr(HX+32*(c&1)+16*aa+4*ks,4)}, {vr(HT+4*(i%12),4)}, {cc}')
            if i + PD < 32: tload(i + PD)
    if PRI & 1: a('s_setprio 2')
    a(f's_lshl_b32 s{S_T0}, s{S_HG}, 18')
    a(f's_lshl_b32 s{S_T1}, s{S_CT}, 17')
    a(f's_add_u32 s{S_T0}, s{S_T0}, s{S_T1}')
    a(f's_lshl_b32 s{S_T1}, s{S_QG}, 7')
    a(f's_add_u32 s{S_T0}, s{S_T0}, s{S_T1}')
    a(f's_add_u32 s{S_T2}, s{S_T0}, {WS_X1T}')
    lds_wait(F_TAGOK, 1, V_U)
    get_tag(V_U)
    a('s_nop 4')
    for i in range(16):
        a(f'v_cvt_pk_bf16_f32 v{HX+i}, v{HA+2*i}, v{HA+2*i+1}')
    for aa in range(2):
        for q in range(2):
            a(f'buffer_store_dwordx4 {vr(HX+8*aa+4*q,4)}, v{V_A1}, {ws}, s{S_T2} offen offset:{64*aa+16*q}{SC}')
    a.label('KG_J1')
    join_flag(F_J1, 3, WS_FL2)
    stamp(6)
    a.label('KG_H3')
    if E('NOHELP', 0) == 1:
        lds_add(F_J2, V_U)
        dump()
        a('s_endpgm')

    V_T1 = 16
    V_T2 = 64
    V_D = 88
    V_TW = 104
    V_XX = 120
    V_W = 136
    V_AC = 152
    S_FW = S_HW
    table_srd(a, R_TB, 'TAB_K2', 24576 + 6144 + 32768, 'k2')
    O_T1, O_T2, O_TW1, O_TW2 = 0, 24576, 30720, 30720 + 16384
    a(f's_lshr_b32 s{S_MH}, s{S_FW}, 1')
    a(f's_and_b32 s{S_NH}, s{S_FW}, 1')
    a(f's_mul_i32 s{S_T0}, s{S_MH}, 12288')
    for i in range(12):
        if i % 4 == 0 and i:
            a(f's_add_u32 s{S_T0}, s{S_T0}, 4096')
        a(f'buffer_load_dwordx4 {vr(V_T1+4*i,4)}, v{V_L16}, {tb}, s{S_T0} offen offset:{(i%4)*1024}')
        thr()
    a(f's_lshl_b32 s{S_T2}, s{S_FW}, 12')
    a(f's_add_u32 s{S_T0}, s{S_T2}, {O_TW1}')
    for i in range(4):
        a(f'buffer_load_dwordx4 {vr(V_TW+4*i,4)}, v{V_L16}, {tb}, s{S_T0} offen offset:{i*1024}')
        thr()
    a(f's_mov_b32 s{S_T0}, {O_T2}')
    a(f's_mov_b32 s{S_T1}, {O_T2+4096}')
    for i in range(6):
        a(f'buffer_load_dwordx4 {vr(V_T2+4*i,4)}, v{V_L16}, {tb}, s{S_T0+(i>>2)} offen offset:{(i%4)*1024}')
        thr()
    a(f's_cmp_lg_u32 s{S_HW}, 1')
    a('s_cbranch_scc1 KG_S1W')
    a(f's_lshl_b32 s{S_T1}, s{S_HG}, 10')
    a(f's_add_u32 s{S_T1}, s{S_T1}, {WS_FL2}')
    glob_poll('S1', 0xff, 16)
    a(f'v_mov_b32 {u(1)}, 1')
    a(f'ds_write_b32 v{V_Z}, {u(1)} offset:{4*F_S1OK}')
    a.label('KG_S1W')
    lds_wait(F_S1OK, 1, V_U, sleep=4)
    lds_wait(F_QDONE, 4, V_U)
    stamp(7)
    a(f'v_lshlrev_b32 v{V_A1}, 7, v{V_I}')
    a(f'v_lshl_add_u32 v{V_A1}, v{V_G}, 4, v{V_A1}')
    a(f's_lshl_b32 s{S_T0}, s{S_F}, 13')
    a(f's_lshl_b32 s{S_T1}, s{S_NH}, 11')
    a(f's_add_u32 s{S_T0}, s{S_T0}, s{S_T1}')
    a(f's_add_u32 s{S_T0}, s{S_T0}, {WS_X1T}')
    a(f's_add_u32 s{S_T1}, s{S_T0}, 4096')
    for part in range(2):
        for ks in range(2):
            a(f'buffer_load_dwordx4 {vr(V_D+8*part+4*ks,4)}, v{V_A1}, {ws}, s{S_T0+part} offen offset:{64*ks}{SC}')
    a(f's_lshl_b32 s{S_T0}, s{S_FW}, 4')
    a(f'v_lshl_add_u32 v{V_A3}, v{V_G}, 8, v{V_I}')
    a(f'v_add_u32 v{V_A3}, s{S_T0}, v{V_A3}')
    a(f's_lshl_b32 s{S_T0}, s{S_F}, 13')
    a(f's_lshl_b32 s{S_T1}, s{S_FW}, 11')
    a(f's_add_u32 s{S_T1}, s{S_T1}, {WS_WT}')
    a(f's_add_u32 s{S_T0}, s{S_T0}, s{S_T1}')
    a(f's_add_u32 s{S_T1}, s{S_T1}, {256*8192}')
    for part in range(2):
        a(f'buffer_load_dwordx4 {vr(V_W+8*part+4,4)}, v{V_L16}, {ws}, s{S_T0} offen offset:{1024*part}{SC}')
    for part in range(2):
        a(f'buffer_load_dwordx4 {vr(V_XX+8*part+4,4)}, v{V_L16}, {ws}, s{S_T1} offen offset:{1024*part}{SC}')

    def mf(d, x, y, c):
        cc = vr(d, 4) if c else '0'
        a(f'v_mfma_f32_16x16x32_bf16 {vr(d,4)}, {vr(x,4)}, {vr(y,4)}, {cc}')
    def t1(nt, ks, v): return V_T1 + 4 * ((nt * 2 + ks) * 3 + v)
    def t2(mt, v): return V_T2 + 4 * (mt * 3 + v)
    def cmul_pack(dst):
        for t_ in range(2):
            for r in range(4):
                ar, ai = V_AC + 8*t_ + r, V_AC + 8*t_ + 4 + r
                c_, s_ = V_TW + 8*t_ + r, V_TW + 8*t_ + 4 + r
                uu = V_U + (r & 1) * 2
                a(f'v_mul_f32 v{uu}, v{ar}, v{c_}')
                a(f'v_mul_f32 v{uu+1}, v{ar}, v{s_}')
                a(f'v_fma_f32 v{ar}, -v{ai}, v{s_}, v{uu}')
                a(f'v_fma_f32 v{ai}, v{ai}, v{c_}, v{uu+1}')
        for i in range(8):
            a(f'v_cvt_pk_bf16_f32 v{dst+i}, v{V_AC+2*i}, v{V_AC+2*i+1}')
    def sync(flag):
        a('s_waitcnt lgkmcnt(0)')
        lds_add(flag, V_U)
        lds_wait(flag, 4, V_U, sleep=2)

    def lo():
        if PRI & 4: a('s_setprio 0')
    def hi():
        if PRI & 4: a('s_setprio 2')
    lo()
    a('s_waitcnt vmcnt(4)')
    zr = lambda ks: V_D + 4*ks
    zi = lambda ks: V_D + 8 + 4*ks
    for ks in range(2):
        for nt in range(2):
            mf(V_AC + 8*nt, zr(ks), t1(nt, ks, 0), ks)
            mf(V_AC + 8*nt + 4, zi(ks), t1(nt, ks, 0), ks)
        for nt in range(2):
            mf(V_AC + 8*nt, zi(ks), t1(nt, ks, 2), 1)
            mf(V_AC + 8*nt + 4, zr(ks), t1(nt, ks, 1), 1)
    hi()
    a(f's_mul_i32 s{S_T0}, s{S_MH}, 2560')
    a(f's_lshl_b32 s{S_T1}, s{S_NH}, 3')
    a(f's_add_u32 s{S_T0}, s{S_T0}, s{S_T1}')
    a(f'v_mul_u32_u24 v{V_A1}, 80, v{V_I}')
    a(f'v_lshl_add_u32 v{V_A1}, v{V_G}, 4, v{V_A1}')
    a(f'v_add_u32 v{V_A1}, {L_APR}, v{V_A1}')
    a(f'v_add_u32 {u(4)}, s{S_T0}, v{V_A1}')
    a('s_nop 4')
    cmul_pack(V_D)
    for nt in range(2):
        a(f'ds_write_b64 {u(4)}, {vr(V_D+4*nt,2)} offset:{1280*nt}')
        a(f'ds_write_b64 {u(4)}, {vr(V_D+4*nt+2,2)} offset:{L_API-L_APR+1280*nt}')
    a(f's_add_u32 s{S_T0}, s{S_T2}, {O_TW2}')
    for i in range(4):
        a(f'buffer_load_dwordx4 {vr(V_TW+4*i,4)}, v{V_L16}, {tb}, s{S_T0} offen offset:{i*1024}')
    sync(F_SY0)
    a(f's_mul_i32 s{S_T0}, s{S_FW}, 1280')
    a(f'v_add_u32 {u(4)}, s{S_T0}, v{V_A1}')
    a(f'ds_read_b128 {vr(V_D,4)}, {u(4)}')
    a(f'ds_read_b128 {vr(V_D+4,4)}, {u(4)} offset:{L_API-L_APR}')
    lo()
    a('s_waitcnt vmcnt(4) lgkmcnt(0)')
    for mt in range(2):
        mf(V_AC + 8*mt, t2(mt, 0), V_D, 0)
        mf(V_AC + 8*mt + 4, t2(mt, 0), V_D + 4, 0)
    for mt in range(2):
        mf(V_AC + 8*mt, t2(mt, 2), V_D + 4, 1)
        mf(V_AC + 8*mt + 4, t2(mt, 1), V_D, 1)
    hi()
    def unpack(base):
        for part in range(2):
            b = base + 8*part
            for q in range(4):
                a(f'v_lshlrev_b32 v{b+2*q}, 16, v{b+4+q}')
                a(f'v_and_b32 v{b+2*q+1}, 0xffff0000, v{b+4+q}')
    unpack(V_W)
    a(f's_cmp_eq_u32 s{S_F}, 0')
    a('s_cbranch_scc1 KG_SPECIAL')
    for e in range(8):
        mt, r = e >> 2, e & 3
        ar, ai = V_AC + 8*mt + r, V_AC + 8*mt + 4 + r
        c_, s_ = V_W + e, V_W + 8 + e
        uu = V_U + (r & 1) * 2
        a(f'v_mul_f32 v{uu}, v{ar}, v{c_}')
        a(f'v_mul_f32 v{uu+1}, v{ar}, v{s_}')
        a(f'v_fma_f32 v{ar}, -v{ai}, v{s_}, v{uu}')
        a(f'v_fma_f32 v{ai}, v{ai}, v{c_}, v{uu+1}')
    a.label('KG_STEP3')
    for mt in range(2):
        for part in range(2):
            for q in range(2):
                src = V_AC + 8*mt + 4*part + 2*q
                a(f'v_cvt_pk_bf16_f32 v{V_D+4*part+2*mt+q}, v{src}, v{src+1}')
    lo()
    a('s_nop 1')
    for mt in range(2):
        mf(V_AC + 8*mt, V_D, t2(mt, 0), 0)
        mf(V_AC + 8*mt + 4, V_D + 4, t2(mt, 0), 0)
    for mt in range(2):
        mf(V_AC + 8*mt, V_D + 4, t2(mt, 1), 1)
        mf(V_AC + 8*mt + 4, V_D, t2(mt, 2), 1)
    hi()
    a(f'v_mul_u32_u24 v{V_A1}, 144, v{V_I}')
    a(f'v_add_u32 v{V_A1}, {L_CPR}, v{V_A1}')
    a(f's_lshl_b32 s{S_T0}, s{S_FW}, 5')
    a(f'v_lshl_add_u32 {u(4)}, v{V_G}, 3, v{V_A1}')
    a(f'v_add_u32 {u(4)}, s{S_T0}, {u(4)}')
    a('s_waitcnt vmcnt(0)')
    a('s_nop 4')
    cmul_pack(V_D)
    for mt in range(2):
        a(f'ds_write_b64 {u(4)}, {vr(V_D+4*mt,2)} offset:{2304*mt}')
        a(f'ds_write_b64 {u(4)}, {vr(V_D+4*mt+2,2)} offset:{L_CPI-L_CPR+2304*mt}')
    sync(F_SY1)
    a(f's_mul_i32 s{S_T0}, s{S_NH}, 2304')
    a(f'v_lshl_add_u32 {u(4)}, v{V_G}, 4, v{V_A1}')
    a(f'v_add_u32 {u(4)}, s{S_T0}, {u(4)}')
    for part in range(2):
        for ks in range(2):
            a(f'ds_read_b128 {vr(V_D+8*part+4*ks,4)}, {u(4)} offset:{(L_CPI-L_CPR)*part+64*ks}')
    lo()
    a('s_waitcnt lgkmcnt(0)')
    for ks in range(2):
        for nt in range(2):
            mf(V_AC + 8*nt, t1(nt, ks, 0), zr(ks), ks)
            mf(V_AC + 8*nt + 4, t1(nt, ks, 0), zi(ks), ks)
        for nt in range(2):
            mf(V_AC + 8*nt, t1(nt, ks, 1), zi(ks), 1)
            mf(V_AC + 8*nt + 4, t1(nt, ks, 2), zr(ks), 1)
    hi()
    a(f'v_lshlrev_b32 {u(4)}, 7, v{V_I}')
    a(f'v_lshl_add_u32 {u(4)}, v{V_G}, 4, {u(4)}')
    a(f's_lshl_b32 s{S_T0}, s{S_F}, 13')
    a(f's_lshl_b32 s{S_T1}, s{S_NH}, 11')
    a(f's_add_u32 s{S_T0}, s{S_T0}, s{S_T1}')
    a(f's_lshl_b32 s{S_T1}, s{S_MH}, 6')
    a(f's_add_u32 s{S_T0}, s{S_T0}, s{S_T1}')
    a(f's_add_u32 s{S_T0}, s{S_T0}, {WS_Y1T}')
    a(f's_add_u32 s{S_T1}, s{S_T0}, 4096')
    for part in range(2):
        for nt in range(2):
            for q in range(2):
                src = V_AC + 8*nt + 4*part + 2*q
                a(f'v_cvt_pk_bf16_f32 v{V_D+4*part+2*nt+q}, v{src}, v{src+1}')
    for part in range(2):
        a(f'buffer_store_dwordx4 {vr(V_D+4*part,4)}, {u(4)}, {ws}, s{S_T0+part} offen{SC}')
    join_flag(F_J2, 4, WS_FL3)
    stamp(8)
    if E('NOHELP', 0) == 2:
        dump()
        a('s_endpgm')

    AB, AA, LF, FR = 16, 32, 48, 80
    NFR = 32
    V_DM, V_RA, V_RY, V_OUT, V_GT, V_DW = 208, 209, 210, 211, 212, 213
    S_MI, S_NI = S_CT, S_A
    a(f's_lshr_b32 s{S_MI}, s{S_HW}, 1')
    a(f's_and_b32 s{S_NI}, s{S_HW}, 1')
    srd(a, R_A, S_WO, 512 * 1024)
    srd(a, R_OUT, S_OUT, 2048 * 1024)
    table_srd(a, R_TB, 'TAB_FINV', 512 * 1024, 'fi')
    a(f'v_lshrrev_b32 {u(0)}, 3, v0')
    a(f'v_and_b32 {u(1)}, 7, v0')
    a(f'v_and_b32 {u(2)}, 1, v{V_G}')
    a(f'v_lshlrev_b32 {u(3)}, 2, {u(2)}')
    a(f'v_xor_b32 {u(3)}, {u(3)}, {u(1)}')
    a(f'v_lshlrev_b32 {u(3)}, 4, {u(3)}')
    a(f'v_lshl_add_u32 {u(4)}, {u(0)}, 10, {u(3)}')
    a(f'v_mov_b32 v{V_DW}, {u(4)}')
    a(f's_lshl_b32 s{S_T3}, s{S_HW}, 14')
    a(f'v_lshl_add_u32 v{V_DM}, {u(0)}, 12, {u(3)}')
    a(f'v_and_b32 {u(0)}, 31, v0')
    a(f'v_lshrrev_b32 {u(1)}, 5, v0')
    a(f'v_bfe_u32 {u(3)}, v0, 2, 2')
    a(f'v_and_b32 {u(4)}, 3, v0')
    a(f'v_lshrrev_b32 {u(5)}, 1, {u(4)}')
    a(f'v_and_b32 {u(4)}, 1, {u(4)}')
    a(f'v_lshrrev_b32 {u(6)}, 1, {u(3)}')
    a(f'v_lshlrev_b32 {u(6)}, 2, {u(6)}')
    a(f'v_lshl_add_u32 {u(7)}, {u(4)}, 1, {u(2)}')
    a(f's_lshl_b32 s{S_T0}, s{S_MI}, 2')
    a(f'v_add_u32 {u(7)}, s{S_T0}, {u(7)}')
    a(f'v_xor_b32 {u(7)}, {u(7)}, {u(6)}')
    a(f'v_lshlrev_b32 {u(7)}, 4, {u(7)}')
    a(f'v_lshl_add_u32 {u(7)}, {u(5)}, 3, {u(7)}')
    a(f'v_lshl_add_u32 v{V_RA}, {u(1)}, 2, {u(3)}')
    a(f'v_lshl_add_u32 v{V_RA}, v{V_RA}, 7, {u(7)}')
    a(f'v_lshl_add_u32 {u(7)}, {u(2)}, 1, {u(5)}')
    a(f's_lshl_b32 s{S_T0}, s{S_NI}, 2')
    a(f'v_add_u32 {u(7)}, s{S_T0}, {u(7)}')
    a(f'v_xor_b32 {u(7)}, {u(7)}, {u(6)}')
    a(f'v_lshlrev_b32 {u(7)}, 4, {u(7)}')
    a(f'v_lshl_add_u32 {u(7)}, {u(4)}, 3, {u(7)}')
    a(f'v_lshl_add_u32 v{V_RY}, {u(1)}, 3, {u(3)}')
    a(f'v_lshl_add_u32 v{V_RY}, v{V_RY}, 7, {u(7)}')
    a(f'v_add_u32 v{V_RY}, {L_Y}, v{V_RY}')
    a(f'v_bfe_u32 {u(5)}, {u(0)}, 2, 1')
    a(f'v_lshrrev_b32 {u(6)}, 3, {u(0)}')
    a(f'v_and_b32 {u(7)}, 3, {u(0)}')
    a(f'v_lshl_add_u32 {u(7)}, {u(5)}, 4, {u(7)}')
    a(f'v_lshl_add_u32 {u(7)}, {u(6)}, 2, {u(7)}')
    a(f'v_lshlrev_b32 {u(7)}, 15, {u(7)}')
    a(f'v_lshl_add_u32 {u(7)}, {u(1)}, 5, {u(7)}')
    a(f's_lshl_b32 s{S_T0}, s{S_NI}, 20')
    a(f's_lshl_b32 s{S_T1}, s{S_QG}, 10')
    a(f's_add_u32 s{S_T0}, s{S_T0}, s{S_T1}')
    a(f's_lshl_b32 s{S_T1}, s{S_HG}, 7')
    a(f's_add_u32 s{S_T0}, s{S_T0}, s{S_T1}')
    a(f's_lshl_b32 s{S_T1}, s{S_MI}, 6')
    a(f's_add_u32 s{S_T0}, s{S_T0}, s{S_T1}')
    a(f'v_add_u32 v{V_OUT}, s{S_T0}, {u(7)}')
    a(f'v_lshlrev_b32 v{V_GT}, 2, {u(0)}')
    S_FI = S_KOFF
    a(f's_lshl_b32 s{S_FI}, s{S_HG}, 16')
    a(f's_lshl_b32 s{S_T0}, s{S_MI}, 10')
    a(f's_add_u32 s{S_FI}, s{S_FI}, s{S_T0}')
    def fload(i):
        if i % 2 == 0:
            a(f's_add_u32 s{S_KB}, s{S_FI}, {i*2048}')
        a(f'buffer_load_dwordx4 {vr(FR+4*(i%NFR),4)}, v{V_L16}, {tb}, s{S_KB} offen offset:{(i%2)*2048}')
    for i in range(NFR):
        fload(i)
        thr()
    a(f's_cmp_lg_u32 s{S_HW}, 1')
    a('s_cbranch_scc1 KG_S2W')
    a(f's_mov_b32 s{S_T1}, {WS_FL3}')
    glob_poll('S2', -1, 16)
    a(f'v_mov_b32 {u(1)}, 1')
    a(f'ds_write_b32 v{V_Z}, {u(1)} offset:{4*F_S2OK}')
    a.label('KG_S2W')
    lds_wait(F_S2OK, 1, V_U, sleep=4)
    lds_wait(F_QDONE, 4, V_U)
    stamp(9)
    a(f's_lshl_b32 s{S_T2}, s{S_HW}, 19')
    a(f's_lshl_b32 s{S_T0}, s{S_QG}, 7')
    a(f's_add_u32 s{S_T2}, s{S_T2}, s{S_T0}')
    a(f's_add_u32 s{S_T2}, s{S_T2}, {WS_Y1T}')
    for i in range(16):
        a(f's_add_u32 m0, s{S_T3}, {L_Y + i*1024}')
        a(f's_add_u32 s{S_T0}, s{S_T2}, {i*32768}')
        a(f'buffer_load_dwordx4 v{V_DM}, {ws}, s{S_T0} offen{SC} lds')
        thr()
    a(f's_lshl_b32 s{S_T0}, s{S_QG}, 8')
    a(f's_lshl_b32 s{S_T1}, s{S_NI}, 7')
    a(f's_add_u32 s{S_T0}, s{S_T0}, s{S_T1}')
    a(f's_add_u32 s{S_T0}, s{S_T0}, {WS_G}')
    a(f'buffer_load_dword v{V_GT}, v{V_GT}, {ws}, s{S_T0} offen{SC}')
    a('s_waitcnt vmcnt(0)')
    sync(F_J3)
    def lread(i, addr, second):
        a(f'ds_read_b64_tr_b16 {vr(LF+4*(i%8),2)}, v{addr} offset:{i*2048}')
        a(f'ds_read_b64_tr_b16 {vr(LF+4*(i%8)+2,2)}, v{addr} offset:{i*2048+second}')
    if PRI & 2: a('s_setprio 0')
    for i in range(6):
        lread(i, V_RY, 512)
    for i in range(32):
        if i >= NFR:
            a(f's_waitcnt vmcnt({31-i}) lgkmcnt({2*min(5, 31-i)})')
        else:
            a(f's_waitcnt lgkmcnt({2*min(5, 31-i)})')
        cc = vr(AB, 16) if i else '0'
        a(f'v_mfma_f32_32x32x16_bf16 {vr(AB,16)}, {vr(FR+4*(i%NFR),4)}, {vr(LF+4*(i%8),4)}, {cc}')
        if i + NFR < 32: fload(i + NFR)
        if i + 6 < 32: lread(i + 6, V_RY, 512)
    if PRI & 2: a('s_setprio 2')
    stamp(10)
    if E('NOHELP', 0) == 3:
        dump()
        a('s_endpgm')
    a(f's_lshl_b32 s{S_T2}, s{S_HW}, 17')
    a(f's_lshl_b32 s{S_T0}, s{S_HG}, 7')
    a(f's_add_u32 s{S_T2}, s{S_T2}, s{S_T0}')
    for i in range(16):
        a(f's_add_u32 m0, s{S_T3}, {L_WO + i*1024}')
        a(f's_add_u32 s{S_T0}, s{S_T2}, {i*8192}')
        a(f'buffer_load_dwordx4 v{V_DW}, {ra}, s{S_T0} offen lds')
        thr()
    a('s_waitcnt vmcnt(0)')
    sync(F_J4)
    for i in range(6):
        lread(i, V_RA, 1024)
    stamp(4)
    lds_wait(F_ADONE, 1, V_U, sleep=4)
    a(f's_lshl_b32 s{S_T2}, s{S_QG}, 1')
    a(f's_add_u32 s{S_T2}, s{S_T2}, s{S_NI}')
    a(f's_lshl_b32 s{S_T1}, s{S_T2}, 11')
    a(f's_add_u32 s{S_T1}, s{S_T1}, {WS_FL4}')
    a(f's_lshl_b32 s{S_T2}, s{S_T2}, 15')
    a(f's_add_u32 s{S_T2}, s{S_T2}, {WS_O}')
    glob_poll('O', 0xffff, O_SLEEP, wide=False)
    stamp(11)
    def oload(i):
        if i % 4 == 0 and i:
            a(f's_add_u32 s{S_T2}, s{S_T2}, 4096')
        a(f'buffer_load_dwordx4 {vr(FR+4*(i%NFR),4)}, v{V_L16}, {ws}, s{S_T2} offen offset:{(i%4)*1024}{OSC}')
    for i in range(NFR):
        oload(i)
    for i in range(32):
        nout = (min(31, i + NFR - 1) - i)
        a(f's_waitcnt vmcnt({nout}) lgkmcnt({2*min(5, 31-i)})')
        cc = vr(AA, 16) if i else '0'
        a(f'v_mfma_f32_32x32x16_bf16 {vr(AA,16)}, {vr(LF+4*(i%8),4)}, {vr(FR+4*(i%NFR),4)}, {cc}')
        if i + NFR < 32: oload(i + NFR)
        if i + 6 < 32: lread(i + 6, V_RA, 1024)
    a('s_nop 11')
    for i in range(16):
        a(f'v_sub_f32 v{AA+i}, v{AA+i}, v{AB+i}')
        a(f'v_fma_f32 v{AA+i}, v{V_GT}, v{AA+i}, v{AB+i}')
    for i in range(8):
        a(f'v_cvt_pk_bf16_f32 v{LF+i}, v{AA+2*i}, v{AA+2*i+1}')
    for q in range(2):
        a(f'buffer_store_dwordx4 {vr(LF+4*q,4)}, v{V_OUT}, {sr(R_OUT,4)}, 0 offen offset:{16*q}')
    dump()
    a('s_endpgm')

    a.label('KG_SPECIAL')
    unpack(V_XX)
    lds_wait(F_QDONE, 4, V_U)
    a(f'v_lshlrev_b32 {u(4)}, 2, v{V_A3}')
    a(f'v_add_u32 {u(6)}, {L_SP}, {u(4)}')
    for e in range(8):
        mt, r = e >> 2, e & 3
        srcs = [V_AC + 8*mt + r, V_AC + 8*mt + 4 + r, V_W + e, V_W + 8 + e, V_XX + e, V_XX + 8 + e]
        for pl, s_ in enumerate(srcs):
            a(f'ds_write_b32 {u(6)}, v{s_} offset:{8192*pl + 256*(16*mt+r)}')
    sync(F_SY2)
    a(f's_mov_b32 s{S_T0}, {f32_bits(0.125)}')
    for e in range(8):
        mt, r = e >> 2, e & 3
        zr_, zi_ = V_AC + 8*mt + r, V_AC + 8*mt + 4 + r
        a0r, a0i, a1r, a1i = V_W + e, V_W + 8 + e, V_XX + e, V_XX + 8 + e
        a(f'v_sub_u32 {u(5)}, {8192 - 256*(16*mt+r)}, {u(4)}')
        a(f'v_and_b32 {u(5)}, 8188, {u(5)}')
        a(f'v_add_u32 {u(5)}, {L_SP}, {u(5)}')
        n = V_D
        for pl in range(6):
            a(f'ds_read_b32 v{n+pl}, {u(5)} offset:{8192*pl}')
        a('s_waitcnt lgkmcnt(0)')
        znr, zni, b0r, b0i, b1r, b1i = [n + i for i in range(6)]
        a(f'v_add_f32 v{b0r}, v{a0r}, v{b0r}')
        a(f'v_sub_f32 v{b0i}, v{a0i}, v{b0i}')
        a(f'v_add_f32 v{b1r}, v{a1r}, v{b1r}')
        a(f'v_sub_f32 v{b1i}, v{a1i}, v{b1i}')
        pr, pi_, mr, mi = n + 6, n + 7, n + 8, n + 9
        a(f'v_add_f32 v{pr}, v{b0r}, v{b1r}')
        a(f'v_add_f32 v{pi_}, v{b0i}, v{b1i}')
        a(f'v_sub_f32 v{mr}, v{b0r}, v{b1r}')
        a(f'v_sub_f32 v{mi}, v{b0i}, v{b1i}')
        rr, ri = n + 10, n + 11
        a(f'v_mul_f32 v{rr}, v{zr_}, v{pr}')
        a(f'v_mul_f32 v{ri}, v{zr_}, v{pi_}')
        a(f'v_fma_f32 v{rr}, -v{zi_}, v{pi_}, v{rr}')
        a(f'v_fma_f32 v{ri}, v{zi_}, v{pr}, v{ri}')
        a(f'v_fma_f32 v{rr}, v{znr}, v{mr}, v{rr}')
        a(f'v_fma_f32 v{ri}, v{znr}, v{mi}, v{ri}')
        a(f'v_fma_f32 v{rr}, v{zni}, v{mi}, v{rr}')
        a(f'v_fma_f32 v{ri}, -v{zni}, v{mr}, v{ri}')
        a(f'v_mul_f32 v{zr_}, s{S_T0}, v{rr}')
        a(f'v_mul_f32 v{zi_}, s{S_T0}, v{ri}')
    a('s_branch KG_STEP3')
    a.label('KG_END')
    a('s_endpgm')
    return 216, (102 if ST in (5, 6, 7) else NS)

def build_g(path):
    a = Asm()
    hdr = open(f'cdna_kernels/{NAME}.s.ref').read().split('\n')
    for l in hdr:
        if l.startswith(';') and '@launch' not in l and 'Override launch' not in l and 'grid=ceil' not in l:
            a.raw(l)
    kn = NAME + '_kernel'
    if E('PLAIN', 0):
        a.raw(f'; @launch grid=(256,1,1) block=(512,1,1) lds={KG_LDS}')
    else:
        a.raw(f'; @launch kernel={kn} grid=(256,1,1) block=(512,1,1) lds={KG_LDS}')
    a.raw('.amdgcn_target "amdgcn-amd-amdhsa--gfx950"')
    a.raw('.text')
    v, s = gen_g(a, kn)
    a.raw('.section .rodata,"a"')
    kernel_desc(a, kn, v, s)
    gen_tables(a)
    gen_k2.gen_tables_k2(a)
    gen_k3.gen_tables_k3(a)
    open(path, 'w').write(a.text())

if __name__ == '__main__':
    build_g(sys.argv[1] if len(sys.argv) > 1 else 'j.s')
```

```python
from gen import *
import gen_k2, gen_k3
from gen_k2 import YSCALE
import os

WS_ROOT = 0x240000
WS_FL1 = 0x244000
WS_FL2 = 0x248000
WS_FL3 = 0x24C000
WS_FL4 = 0x260000
TAG_M, TAG_C = 0x9E3779B1, 0x7F4A7C15
WS_KVT = 0x000000

L_X = 0
L_WQ = 65536
L_FLAG = 131072
L_KW = L_FLAG + 256
L_GATE = L_KW + 16384
KG_LDS = 163840
L_APR = L_KW; L_API = L_APR + 5120
L_CPR = L_API + 5120; L_CPI = L_CPR + 4608
L_MX = L_KW
L_MXM = L_KW + 20480
assert L_CPI + 4608 <= L_MXM and L_MX + 8 * 2304 <= L_MXM and L_MXM + 4096 <= KG_LDS and L_GATE + 1024 <= L_MXM
L_SP = L_WQ
L_SPW = L_X + 49152
L_WO = L_X
L_Y = L_WQ
F_CX, F_CW = 0, 1
F_CC, F_MG, F_MM, F_PG, F_QX = 0, 8, 16, 40, 48
L_QX = L_GATE + 1024
assert L_QX + 8192 <= KG_LDS
F_N, F_TAG, F_QDONE, F_J1, F_S1OK, F_SY0, F_SY1, F_SY2, F_J2, F_S2OK, F_J3, F_TAGOK, F_ADONE, F_J4, F_KVS, F_GI, F_PRE = range(24, 41)
F_PGW = 8
F_POS, F_H2 = 12, 13
L_PRE = L_KW
NWAVE = 8
WS_G = 0x230000
E = lambda k, d: int(os.environ.get(k, str(d)))
LOAD_D = E('LOAD_D', 6)
KV_SLEEP = E('KV_SLEEP', 4)
O_SLEEP = E('O_SLEEP', 2)
THR = E('THR', 15)
LD_PRE = E('LD_PRE', 24)
KV_BAR = E('KV_BAR', 15)
FAIR = E('FAIR', 1)
KV_LAG = E('KV_LAG', 0)
TF_LAG = E('TF_LAG', 1)
WT_LAG = E('WT_LAG', 8)
G_DELAY = E('G_DELAY', 12)
Q7_SLEEP = E('Q7_SLEEP', 0)
H2_PD = E('H2_PD', 12)
KVSC = ' sc1' if E('KVSC1', 0) else ''
OSC = ' sc1' if E('OSC1', 0) else ''
SC = ' sc1'
POLL_LIMIT = 1 << 18
NSTAMP = 12
NFO = E('NFO', 10)
TST = E('TST', 0)
OST = '' if E('OPLAIN', 0) else ' sc1'
S1_SLEEP = E('S1_SLEEP', 4)
S2_SLEEP = E('S2_SLEEP', 8)
SPSC = ' sc1' if E('SPSC1', 0) else ''
KP_DELAY = E('KP_DELAY', 0)
PEEL_B = E('PEEL_B', 4)
PRI = E('PRI', 7)
LST = E('LST', 0)

def gen_g(a, name):
    kernel_header(a, name)
    S_X, S_WQ, S_WK, S_WV, S_WO, S_WS, S_WR, S_WI, S_GT, S_OUT = 4, 6, 8, 10, 12, 14, 16, 18, 20, 22
    R_X, R_WS, R_A, R_B, R_TB, R_OUT = 24, 28, 32, 36, 40, 44
    S_W, S_QG, S_HG, S_T0, S_T1, S_T2, S_T3, S_CNT, S_KOFF, S_KB, S_P, S_KH = 48, 49, 50, 51, 52, 53, 54, 55, 56, 57, 58, 59
    S_VM = 60; S_C0 = 62; S_C1 = 64
    S_CT, S_A, S_F, S_HW, S_MH, S_NH, S_SEEN, S_LIM, S_TAG = 3, 66, 67, 68, 69, 70, 71, 72, 73
    NS = 74
    SB = 74
    ws = sr(R_WS, 4); xs = sr(R_X, 4); ra = sr(R_A, 4); rb_ = sr(R_B, 4); tb = sr(R_TB, 4)
    TM = 's_memrealtime' if ST in (5, 7) else 's_memtime'
    duid = [0]
    def stamp(i):
        if ST in (5, 6, 7):
            a(f'{TM} s[{SB+2*i}:{SB+1+2*i}]')
    def dump(kind=0):
        n = NSTAMP
        if ST == 7:
            duid[0] += 1
            a('s_waitcnt vmcnt(0)')
            a(f'{TM} s[{SB+2*n}:{SB+1+2*n}]')
            a(f's_load_dwordx2 s[{R_A}:{R_A+1}], s[0:1], 80')
            a(f's_mov_b32 s{R_A+2}, 256')
            a(f's_mov_b32 s{R_A+3}, 0x20000')
            a('s_waitcnt lgkmcnt(0)')
            a('s_mov_b64 exec, 1')
            a('v_mov_b32 v0, 0')
            a(f's_cmp_lg_u32 s{S_W}, {4 if kind else 0}')
            a(f's_cbranch_scc1 KG_DD{duid[0]}')
            if kind:
                a(f's_not_b32 s{S_T0}, s{SB}')
                a(f'v_mov_b32 v2, s{S_T0}')
                a(f'buffer_atomic_umax v2, v0, {ra}, 0 offen offset:0')
                L = [(2, 0), (3, 2), (4, 3), (5, 4), (6, 5), (7, 12)]
            else:
                a(f'v_mov_b32 v2, s{SB+24}')
                a(f'buffer_atomic_umax v2, v0, {ra}, 0 offen offset:4')
                L = [(8, 3), (9, 5), (10, 6), (11, 7), (12, 8), (13, 9), (14, 11), (15, 12)]
            for k, (sl, st_) in enumerate(L):
                a(f'v_mov_b32 v{3+k}, s{SB+2*st_}')
                a(f'buffer_atomic_add v{3+k}, v0, {ra}, 0 offen offset:{4*sl}')
            a.label(f'KG_DD{duid[0]}')
        if ST in (5, 6):
            a('s_waitcnt vmcnt(0)')
            a(f'{TM} s[{SB+2*n}:{SB+1+2*n}]')
            a('s_mov_b64 exec, 1')
            a(f's_lshl_b32 s{S_T0}, s2, 4')
            a(f's_add_u32 s{S_T0}, s{S_T0}, s{S_W}')
            a(f's_lshl_b32 s{S_T0}, s{S_T0}, 6')
            a(f's_add_u32 s{S_T0}, s{S_T0}, {0xC00000}')
            a('s_waitcnt lgkmcnt(0)')
            a(f's_mov_b32 s{R_WS+2}, 0x1000000')
            a('v_mov_b32 v0, 0')
            if LST and kind:
                a('s_mov_b64 exec, 0xffff')
                a('v_mbcnt_lo_u32_b32 v3, -1, 0')
                a('v_lshlrev_b32 v3, 2, v3')
                a(f'v_add_u32 v3, 0x100000, v3')
                a(f'buffer_store_dword v{192+23}, v3, {ws}, s{S_T0} offen')
                a('s_mov_b64 exec, 1')
            for i in range(n + 1):
                a(f'v_mov_b32 v2, s{SB+2*i}')
                a(f'buffer_store_dword v2, v0, {ws}, s{S_T0} offen offset:{4*i}')
                a('s_nop 1')

    a('s_cmp_ge_u32 s2, 256')
    a('s_cbranch_scc1 KG_END')
    if ST in (5, 6, 7):
        for i in range(NSTAMP + 1):
            a(f's_mov_b32 s{SB+2*i}, 0')
    stamp(0)
    a(f's_load_dwordx8 s[{S_X}:{S_X+7}], s[0:1], 0')
    a(f's_load_dwordx2 s[{S_WS}:{S_WS+1}], s[0:1], 88')
    a(f's_load_dwordx4 s[{S_GT}:{S_GT+3}], s[0:1], 64')
    a(f's_load_dwordx2 s[{S_WO}:{S_WO+1}], s[0:1], 32')
    a(f's_load_dwordx4 s[{S_WR}:{S_WR+3}], s[0:1], 48')
    a('v_lshrrev_b32 v1, 6, v0')
    a('v_and_b32 v0, 63, v0')
    a(f's_and_b32 s{S_T0}, s2, 7')
    a(f'v_readfirstlane_b32 s{S_W}, v1')
    a(f's_lshl_b32 s{S_T0}, s{S_T0}, 2')
    a(f's_lshr_b32 s{S_QG}, s2, 6')
    a(f's_add_u32 s{S_QG}, s{S_QG}, s{S_T0}')
    a(f's_bfe_u32 s{S_HG}, s2, 0x30003')
    a(f's_mov_b32 s{S_LIM}, {1<<21}')
    V_Z = 7
    a(f'v_mov_b32 v{V_Z}, {L_FLAG}')
    a(f's_cmp_lg_u32 s{S_W}, 0')
    a('s_cbranch_scc1 KG_B0')
    a(f'v_lshl_add_u32 v2, v0, 2, v{V_Z}')
    a('v_mov_b32 v3, 0')
    a('ds_write_b32 v2, v3')
    a('s_waitcnt lgkmcnt(0)')
    a.label('KG_B0')
    a(f's_cmp_lt_u32 s{S_W}, 4')
    a('s_cbranch_scc1 KG_HELP')

    uid = [0]
    def lds_wait(flag, val, vtmp, sleep=1, addr=None, sdst=None):
        uid[0] += 1; u = uid[0]
        addr = V_Z if addr is None else addr
        sdst = S_T0 if sdst is None else sdst
        a.label(f'KG_LW{u}')
        a(f'ds_read_b32 v{vtmp}, v{addr} offset:{4*flag}')
        a('s_waitcnt lgkmcnt(0)')
        a(f'v_readfirstlane_b32 s{sdst}, v{vtmp}')
        a(f's_cmp_ge_u32 s{sdst}, {val}')
        a(f's_cbranch_scc1 KG_LD{u}')
        a(f's_sleep {sleep}')
        a(f's_sub_u32 s{S_LIM}, s{S_LIM}, 1')
        a(f's_cbranch_scc0 KG_LW{u}')
        a(f's_mov_b32 s{S_LIM}, 0')
        a.label(f'KG_LD{u}')
    def lds_add(flag, vtmp):
        a(f'v_mov_b32 v{vtmp}, 1')
        a('s_mov_b64 exec, 1')
        a(f'ds_add_u32 v{V_Z}, v{vtmp} offset:{4*flag}')
        a('s_mov_b64 exec, -1')
    def get_tag(vtmp):
        a(f'ds_read_b32 v{vtmp}, v{V_Z} offset:{4*F_TAG}')
        a('s_waitcnt lgkmcnt(0)')
        a(f'v_readfirstlane_b32 s{S_TAG}, v{vtmp}')

    V_OQ, V_OV = 2, 3
    V_M = 4
    V_H = 6
    V_Q = 8
    V_S = 16
    V_P = 48
    V_O = 64
    V_K = 96
    V_V = 128
    V_T = 192
    S_N = S_KH
    V_PGA, V_PGV, V_LK = V_T + 16, V_T + 17, V_T + 18
    a('s_setprio 1')
    a(f's_and_b32 s{S_CT}, s{S_W}, 1')
    a(f's_bfe_u32 s{S_A}, s{S_W}, 0x10001')
    a(f's_mov_b32 s{S_N}, 0')
    a('v_and_b32 v1, 31, v0')
    a(f'v_lshrrev_b32 v{V_H}, 5, v0')
    V_XA = V_T
    V_WA = V_T + 4
    t = lambda i: f'v{V_T+8+i}'
    a(f'v_bfe_u32 {t(0)}, v0, 1, 3')
    a(f's_lshl_b32 s{S_T0}, s{S_A}, 12')
    a(f'v_lshlrev_b32 {t(1)}, 7, v1')
    a(f'v_add_u32 {t(1)}, s{S_T0}, {t(1)}')
    for ks in range(4):
        a(f'v_add_u32 {t(2)}, {2*ks}, v{V_H}')
        a(f'v_xor_b32 {t(2)}, {t(2)}, {t(0)}')
        a(f'v_lshl_add_u32 v{V_XA+ks}, {t(2)}, 4, {t(1)}')
    a(f'v_bfe_u32 {t(0)}, v0, 2, 2')
    a(f'v_and_b32 {t(1)}, 3, v0')
    a(f'v_bfe_u32 {t(2)}, v0, 4, 1')
    a(f'v_lshl_add_u32 {t(3)}, v{V_H}, 3, {t(0)}')
    a(f'v_lshlrev_b32 {t(3)}, 7, {t(3)}')
    a(f'v_lshrrev_b32 {t(4)}, 1, {t(1)}')
    a(f'v_and_b32 {t(5)}, 1, {t(1)}')
    a(f'v_lshrrev_b32 {t(6)}, 1, {t(0)}')
    a(f'v_lshlrev_b32 {t(6)}, 2, {t(6)}')
    a(f'v_lshl_add_u32 {t(7)}, {t(2)}, 1, {t(4)}')
    a(f's_lshl_b32 s{S_T0}, s{S_CT}, 2')
    a(f'v_add_u32 {t(7)}, s{S_T0}, {t(7)}')
    a(f'v_xor_b32 {t(7)}, {t(7)}, {t(6)}')
    a(f'v_lshl_add_u32 {t(7)}, {t(7)}, 4, {t(3)}')
    a(f'v_lshl_add_u32 v{V_WA}, {t(5)}, 3, {t(7)}')
    a(f'v_add_u32 v{V_WA}, {L_WQ}, v{V_WA}')
    a(f'v_lshlrev_b32 v{V_OQ}, 4, v0')
    a(f'v_add_u32 v{V_LK}, {L_PRE}, v{V_OQ}')
    a(f's_lshl_b32 s{S_T0}, s{S_W}, 2')
    a(f'v_add_u32 v{V_PGA}, s{S_T0}, v{V_Z}')
    a(f'v_mov_b32 v{V_PGV}, 1')
    a(f's_mov_b32 s{S_VM}, 0xffff')
    a(f's_mov_b32 s{S_VM+1}, 0xffff')
    a(f'v_and_b32 {t(0)}, 27, v1')
    a(f'v_cmp_eq_u32 vcc, 16, {t(0)}')
    a(f'v_mov_b32 {t(1)}, 0x3f803f80')
    a(f'v_mov_b32 v{V_M}, 0')
    a(f'v_mov_b32 v{V_M+1}, 0')
    a(f'v_cndmask_b32 {t(1)}, 0, {t(1)}, vcc')
    for i in range(64):
        a(f'v_mov_b32 v{V_V+i}, {t(1)}')
    QA = V_S
    QB = (V_O, V_S + 16)
    a(f's_mov_b32 s{S_SEEN}, 0')
    a('s_waitcnt lgkmcnt(0)')
    srd(a, R_WS, S_WS, WS_SIZE)
    a('s_barrier')
    stamp(1)
    def q_wait(c):
        a(f's_cmp_gt_u32 s{S_SEEN}, {c}')
        a(f's_cbranch_scc1 KG_QG{c}')
        a.label(f'KG_QP{c}')
        a(f'ds_read_b64 {vr(V_T+8,2)}, v{V_Z} offset:{4*F_CX}')
        a('s_waitcnt lgkmcnt(0)')
        a(f'v_min_u32 {t(0)}, {t(0)}, {t(1)}')
        a('s_nop 0')
        a(f'v_readfirstlane_b32 s{S_SEEN}, {t(0)}')
        a(f's_cmp_gt_u32 s{S_SEEN}, {c}')
        a(f's_cbranch_scc1 KG_QG{c}')
        if c < 7 or Q7_SLEEP:
            a('s_sleep 1')
        a(f's_sub_u32 s{S_LIM}, s{S_LIM}, 1')
        a(f's_cbranch_scc0 KG_QP{c}')
        a(f's_mov_b32 s{S_LIM}, 0')
        a.label(f'KG_QG{c}')
    def q_reads(c):
        b = QB[c & 1]
        for ks in range(4):
            a(f'ds_read_b128 {vr(b+4*ks,4)}, v{V_XA+ks} offset:{c*8192}')
            a(f'ds_read_b64_tr_b16 {vr(b+16+4*ks,2)}, v{V_WA} offset:{c*8192+ks*2048}')
            a(f'ds_read_b64_tr_b16 {vr(b+16+4*ks+2,2)}, v{V_WA} offset:{c*8192+ks*2048+512}')
    for c in range(8):
        q_wait(c); q_reads(c)
        b = QB[c & 1]
        for ks in range(4):
            a(f's_waitcnt lgkmcnt({9 - 3*ks})')
            cc = vr(QA, 16) if (c or ks) else '0'
            a(f'v_mfma_f32_32x32x16_bf16 {vr(QA,16)}, {vr(b+16+4*ks,4)}, {vr(b+4*ks,4)}, {cc}')
    def progress():
        a(f'ds_write_b32 v{V_PGA}, v{V_PGV} offset:{4*(F_PGW-4)}')
    progress()
    stamp(2)
    spins = []
    def pre_check(n):
        uid[0] += 1; u = uid[0]
        a(f's_cmp_lt_u32 s{S_N}, {n}')
        a(f's_cbranch_scc1 KG_SP{u}')
        a.label(f'KG_SR{u}')
        spins.append(('pre', u, n))
    def pos_check():
        uid[0] += 1; u = uid[0]
        a(f's_cmp_lt_u32 s{S_KOFF}, s{S_KB}')
        a(f's_cbranch_scc1 KG_SP{u}')
        a.label(f'KG_SR{u}')
        spins.append(('q', u, 0))
    def emit_spins():
        for kind, u, n in spins:
            a.label(f'KG_SP{u}')
            if kind == 'pre':
                a(f'ds_read_b32 v{V_T+8}, v{V_Z} offset:{4*F_PRE}')
                a('s_waitcnt lgkmcnt(0)')
                a(f'v_readfirstlane_b32 s{S_N}, v{V_T+8}')
                a(f's_cmp_ge_u32 s{S_N}, {n}')
                a(f's_cbranch_scc1 KG_SR{u}')
            else:
                a(f'ds_read_b32 v{V_T+8}, v{V_Z} offset:{4*F_POS}')
                a('s_waitcnt lgkmcnt(0)')
                a(f'v_readfirstlane_b32 s{S_KOFF}, v{V_T+8}')
                a(f's_cmp_ge_u32 s{S_KOFF}, s{S_KB}')
                a(f's_cbranch_scc1 KG_SR{u}')
                a('s_sleep 1')
            a(f's_sub_u32 s{S_LIM}, s{S_LIM}, 1')
            a(f's_cbranch_scc0 KG_SP{u}')
            a(f's_mov_b32 s{S_LIM}, 0')
            a(f's_branch KG_SR{u}')
        spins.clear()

    def load_k(slot, off):
        a(f'buffer_load_dwordx4 {vr(V_K+4*slot,4)}, v{V_OQ}, {ws}, s{S_KOFF} offen offset:{off}{KVSC}')
    def kv_group(c, adv=True):
        load_k(c & 7, 0)
        load_k((c + 1) & 7, 2048)
        a(f's_mov_b64 exec, s[{S_VM}:{S_VM+1}]')
        for j in range(2):
            sl = (c + j) & 7
            a(f'buffer_load_dwordx4 {vr(V_V+8*sl,4)}, v{V_OQ}, {ws}, s{S_KOFF} offen offset:{2048*j+1024}{KVSC}')
            a(f'buffer_load_dwordx4 {vr(V_V+8*sl+4,4)}, v{V_OQ}, {ws}, s{S_KOFF} offen offset:{2048*j+1280}{KVSC}')
        a('s_mov_b64 exec, -1')
        if adv:
            a(f's_add_u32 s{S_KOFF}, s{S_KOFF}, 4096')
    def pre_reads(c, n=1):
        for j in range(c, c + n):
            a(f'ds_read_b128 {vr(V_K+4*j,4)}, v{V_LK} offset:{2048*j}')
        a(f's_mov_b64 exec, s[{S_VM}:{S_VM+1}]')
        for j in range(c, c + n):
            a(f'ds_read_b128 {vr(V_V+8*j,4)}, v{V_LK} offset:{2048*j+1024}')
            a(f'ds_read_b128 {vr(V_V+8*j+4,4)}, v{V_LK} offset:{2048*j+1280}')
        a('s_mov_b64 exec, -1')
    def mfma_s(t_, slot):
        a(f'v_mfma_f32_32x32x16_bf16 {vr(V_S+16*t_,16)}, {vr(V_K+4*slot,4)}, {vr(V_Q+4*t_,4)}, 0')
    def mfma_pv(t_, slot, pp, zero=False):
        cc = '0' if zero else vr(V_O+16*t_, 16)
        a(f'v_mfma_f32_32x32x16_bf16 {vr(V_O+16*t_,16)}, {vr(V_V+8*slot+4*pp,4)}, {vr(V_P+8*t_+4*pp,4)}, {cc}')
    def cv(t_, i):
        a(f'v_cvt_pk_bf16_f32 v{V_P+8*t_+i}, v{V_S+16*t_+2*i}, v{V_S+16*t_+2*i+1}')

    def body(sub, peel, lds):
        def ex(t_, i):
            r = V_S + 16*t_ + i
            if sub:
                a(f'v_sub_f32 v{r}, v{r}, v{V_M+t_}')
            a(f'v_exp_f32 v{r}, v{r}')
        for b in range(8):
            for t_ in range(2):
                if peel and t_ == 0 and LST:
                    a('s_memtime s[100:101]')
                ex(t_, 0); ex(t_, 1)
                if t_ == 1:
                    mfma_pv(0, b, 1)
                elif not (peel and b == 0):
                    mfma_pv(1, (b - 1) & 7, 1)
                if peel and t_ == 0 and b < 7:
                    pre_check(b + 2)
                    pre_reads(b + 1)
                ex(t_, 2); ex(t_, 3); ex(t_, 4); ex(t_, 5)
                if t_ == 1:
                    if peel or (lds and b in (1, 7)):
                        a('s_waitcnt lgkmcnt(0)')
                    elif not lds and b & 1:
                        a('s_waitcnt vmcnt(12)')
                    if peel and LST:
                        a(f'v_writelane_b32 v{V_T+23}, s100, {8+b}')
                    mfma_s(0, (b + 1) & 7)
                    if lds and b == (6 if peel else 1):
                        progress()
                    if LST and lds and not peel and b == 1:
                        a(f'v_writelane_b32 v{V_T+23}, s100, m0')
                    if peel and b == 6:
                        pos_check()
                        pre_reads(0, 2)
                else:
                    mfma_s(1, b)
                    if peel and b == 6:
                        a(f'v_add_u32 v{V_PGV}, 1, v{V_PGV}')
                    if peel and b == 7:
                        pre_reads(2, 2)
                    if lds and not peel and b == 0:
                        pre_reads(4, 4)
                        a(f'v_add_u32 v{V_PGV}, 1, v{V_PGV}')
                    if lds and not peel and b == 4:
                        pos_check()
                        pre_reads(0, 4)
                    if not lds and b % 2 == 0:
                        kv_group(b + 6)
                ex(t_, 6); ex(t_, 7)
                cv(t_, 0); cv(t_, 1); cv(t_, 2); cv(t_, 3)
                if peel and b == 6 and t_ == 0:
                    a(f'v_add_u32 v{V_LK}, {L_WQ - L_PRE}, v{V_LK}')
                if lds and not peel and b == 3 and t_ == 0:
                    a(f'v_add_u32 v{V_LK}, 0x4000, v{V_LK}')
                    a(f's_add_u32 s{S_KB}, s{S_KB}, 1')
                    a(f'v_and_b32 v{V_LK}, 0x1ffff, v{V_LK}')
                ex(t_, 8); ex(t_, 9)
                mfma_pv(t_, b, 0, zero=(peel and b == 0))
                for i in range(10, 16):
                    ex(t_, i)
                cv(t_, 4); cv(t_, 5); cv(t_, 6); cv(t_, 7)

    def attn_pass(tag, sub, first):
        if first:
            pre_check(1)
            pre_reads(0)
            stamp(3)
            a('s_nop 4')
            for i in range(8):
                a(f'v_cvt_pk_bf16_f32 v{V_Q+i}, v{QA+2*i}, v{QA+2*i+1}')
            a('s_waitcnt lgkmcnt(0)')
            mfma_s(0, 0)
            a(f's_mov_b32 s{S_CNT}, 7')
            a(f's_mov_b32 s{S_KOFF}, 0')
            a(f's_mov_b32 s{S_KB}, 1')
            stamp(4)
            a('s_nop 4')
            body(False, True, True)
        else:
            a(f's_mov_b32 s{S_KOFF}, {WS_KV}')
            for c in range(0, 6, 2):
                kv_group(c)
            for i in range(32):
                a(f'v_mov_b32 v{V_O+i}, 0')
            for i in range(4):
                a(f'v_mov_b32 v{V_P+12+i}, 0')
            a('s_waitcnt vmcnt(12)')
            mfma_s(0, 0)
            a(f's_mov_b32 s{S_CNT}, 8')
            a('s_nop 10')
        a.label(f'KG_LOOP{tag}')
        if LST and first:
            a('s_memtime s[100:101]')
            a(f's_mov_b32 m0, s{S_CNT}')
        body(sub, False, first)
        a(f's_sub_u32 s{S_CNT}, s{S_CNT}, 1')
        a(f's_cmp_lg_u32 s{S_CNT}, 0')
        a(f's_cbranch_scc1 KG_LOOP{tag}')
        mfma_pv(1, 7, 1)

    attn_pass('A', False, True)
    stamp(5)
    a(f'ds_read_b32 v{V_T}, v{V_Z} offset:{4*F_TAG}')
    a(f's_lshl_b32 s{S_T2}, s{S_QG}, 1')
    a(f's_add_u32 s{S_T2}, s{S_T2}, s{S_A}')
    a(f's_lshl_b32 s{S_T3}, s{S_HG}, 1')
    a(f's_add_u32 s{S_T3}, s{S_T3}, s{S_CT}')
    a(f's_lshl_b32 s{S_T2}, s{S_T2}, 4')
    a(f's_add_u32 s{S_T2}, s{S_T2}, s{S_T3}')
    a(f's_lshl_b32 s{S_T3}, s{S_T2}, 7')
    a(f's_add_u32 s{S_T3}, s{S_T3}, {WS_FL4}')
    a(f's_lshl_b32 s{S_T2}, s{S_T2}, 11')
    a(f's_add_u32 s{S_T2}, s{S_T2}, {WS_O}')
    a(f'v_lshlrev_b32 v{V_T+1}, 4, v0')
    a(f'v_mov_b32 v{V_T+2}, 0')
    a(f's_mov_b32 s{S_T0}, {f32_bits(2.0**-30)}')
    a(f's_mov_b32 s{S_T1}, {f32_bits(2.0**30)}')
    a(f'v_cmp_le_f32 s[{S_C0}:{S_C0+1}], s{S_T0}, v{V_O+8}')
    a(f'v_cmp_ge_f32 s[{S_C1}:{S_C1+1}], s{S_T1}, v{V_O+8}')
    a(f's_and_b64 s[{S_C0}:{S_C0+1}], s[{S_C0}:{S_C0+1}], s[{S_C1}:{S_C1+1}]')
    a(f'v_cmp_le_f32 s[{S_C1}:{S_C1+1}], s{S_T0}, v{V_O+24}')
    a(f's_and_b64 s[{S_C0}:{S_C0+1}], s[{S_C0}:{S_C0+1}], s[{S_C1}:{S_C1+1}]')
    a(f'v_cmp_ge_f32 s[{S_C1}:{S_C1+1}], s{S_T1}, v{V_O+24}')
    a(f's_and_b64 s[{S_C0}:{S_C0+1}], s[{S_C0}:{S_C0+1}], s[{S_C1}:{S_C1+1}]')
    a(f's_cmp_eq_u64 s[{S_C0}:{S_C0+1}], -1')
    a('s_cbranch_scc0 KG_SLOW')
    a.label('KG_OUT')
    a(f'v_rcp_f32 v{V_T+4}, v{V_O+8}')
    a(f'v_rcp_f32 v{V_T+5}, v{V_O+24}')
    a('s_nop 0')
    for t_ in range(2):
        for i in range(8):
            a(f'v_mul_f32 v{V_O+16*t_+i}, v{V_T+4+t_}, v{V_O+16*t_+i}')
        for i in range(4):
            a(f'v_cvt_pk_bf16_f32 v{V_S+4*t_+i}, v{V_O+16*t_+2*i}, v{V_O+16*t_+2*i+1}')
        a(f'buffer_store_dwordx4 {vr(V_S+4*t_,4)}, v{V_T+1}, {ws}, s{S_T2} offen offset:{1024*t_}{OST}')
    a('s_waitcnt vmcnt(0) lgkmcnt(0)')
    stamp(6)
    a(f'v_mov_b32 v{V_T+3}, 1')
    a('s_mov_b64 exec, 1')
    a(f'buffer_store_dword v{V_T}, v{V_T+2}, {ws}, s{S_T3} offen{OST}')
    a(f'ds_add_u32 v{V_Z}, v{V_T+3} offset:{4*F_ADONE}')
    dump(1)
    a('s_endpgm')
    emit_spins()

    a.label('KG_SLOW')
    lds_wait(F_N, 127, V_T + 8)
    a('s_waitcnt vmcnt(0)')
    a(f'v_mov_b32 v{V_M}, 0xff800000')
    a(f'v_mov_b32 v{V_M+1}, 0xff800000')
    a(f's_mov_b32 s{S_KOFF}, {WS_KV}')
    a(f's_mov_b32 s{S_CNT}, 64')
    a.label('KG_MAXLOOP')
    load_k(0, 0)
    a(f's_add_u32 s{S_KOFF}, s{S_KOFF}, 2048')
    a('s_waitcnt vmcnt(0)')
    mfma_s(0, 0)
    mfma_s(1, 0)
    a('s_nop 12')
    for t_ in range(2):
        for i in range(8):
            a(f'v_max3_f32 v{V_M+t_}, v{V_S+16*t_+2*i}, v{V_S+16*t_+2*i+1}, v{V_M+t_}')
    a(f's_sub_u32 s{S_CNT}, s{S_CNT}, 1')
    a(f's_cmp_lg_u32 s{S_CNT}, 0')
    a('s_cbranch_scc1 KG_MAXLOOP')
    for t_ in range(2):
        a(f'v_mov_b32 v{V_T+4+t_}, v{V_M+t_}')
    a('s_nop 1')
    for t_ in range(2):
        a(f'v_permlane32_swap_b32 v{V_M+t_}, v{V_T+4+t_}')
    a('s_nop 1')
    for t_ in range(2):
        a(f'v_max_f32 v{V_M+t_}, v{V_M+t_}, v{V_T+4+t_}')
    attn_pass('B', True, False)
    a('s_nop 12')
    a('s_branch KG_OUT')

    a.label('KG_HELP')
    a('s_setprio 2')
    V_I, V_G, V_L16, V_A1, V_A2, V_A3 = 1, 2, 3, 4, 5, 6
    V_U = 8
    u = lambda i: f'v{V_U+i}'
    a(f's_mov_b32 s{S_HW}, s{S_W}')
    a(f'v_and_b32 v{V_I}, 15, v0')
    a(f'v_lshrrev_b32 v{V_G}, 4, v0')
    a(f'v_lshlrev_b32 v{V_L16}, 4, v0')
    a(f's_lshl_b32 s{S_F}, s{S_HG}, 5')
    a(f's_add_u32 s{S_F}, s{S_F}, s{S_QG}')
    a('s_waitcnt lgkmcnt(0)')
    srd(a, R_X, S_X, 2048 * 1024)
    srd(a, R_WS, S_WS, WS_SIZE)
    a(f's_cmp_eq_u32 s{S_HW}, 0')
    a('s_cbranch_scc1 KG_KV')
    a(f's_cmp_eq_u32 s{S_HW}, 1')
    a('s_cbranch_scc1 KG_TAG')
    a('s_branch KG_H2')

    def pg_wait(val, sleep=2):
        uid[0] += 1; k = uid[0]
        a.label(f'KG_PW{k}')
        a(f'ds_read_b128 {vr(V_U+4,4)}, v{V_Z} offset:{4*F_PGW}')
        a('s_waitcnt lgkmcnt(0)')
        a(f'v_min3_u32 {u(4)}, {u(4)}, {u(5)}, {u(6)}')
        a(f'v_min_u32 {u(4)}, {u(4)}, {u(7)}')
        a('s_nop 0')
        a(f'v_readfirstlane_b32 s{S_T0}, {u(4)}')
        a(f's_cmp_ge_u32 s{S_T0}, {val}')
        a(f's_cbranch_scc1 KG_PD{k}')
        a(f's_sleep {sleep}')
        a(f's_sub_u32 s{S_LIM}, s{S_LIM}, 1')
        a(f's_cbranch_scc0 KG_PW{k}')
        a(f's_mov_b32 s{S_LIM}, 0')
        a.label(f'KG_PD{k}')
    def kv_dma(s_cls, s_lds):
        for q in range(4):
            a(f's_mov_b32 m0, s{s_lds}')
            a(f's_add_u32 s{s_lds}, s{s_lds}, 4096')
            for j in range(4):
                a(f'buffer_load_dwordx4 v{V_L16}, {ws}, s{s_cls} offen offset:{1024*j}{KVSC} lds')
            a(f's_add_u32 s{s_cls}, s{s_cls}, 4096')
    def thr():
        a(f's_waitcnt vmcnt({THR})')
    def flag_store(base, idx=None):
        idx = f's{S_F}' if idx is None else idx
        a(f's_lshr_b32 s{S_T0}, {idx}, 2')
        a(f's_lshl_b32 s{S_T0}, s{S_T0}, 7')
        a(f's_and_b32 s{S_T1}, {idx}, 3')
        a(f's_lshl_b32 s{S_T1}, s{S_T1}, 2')
        a(f's_add_u32 s{S_T0}, s{S_T0}, s{S_T1}')
        a(f's_add_u32 s{S_T0}, s{S_T0}, {base}')
        a(f'v_mov_b32 {u(0)}, 0')
        a(f'v_mov_b32 {u(1)}, s{S_TAG}')
        a('s_mov_b64 exec, 1')
        a(f'buffer_store_dword {u(1)}, {u(0)}, {ws}, s{S_T0} offen{SC}')
        a('s_mov_b64 exec, -1')
    def join_flag(cnt, n, base):
        uid[0] += 1; k = uid[0]
        a(f'v_mov_b32 {u(0)}, 1')
        a('s_waitcnt vmcnt(0)')
        a('s_mov_b64 exec, 1')
        a(f'ds_add_rtn_u32 {u(1)}, v{V_Z}, {u(0)} offset:{4*cnt}')
        a('s_mov_b64 exec, -1')
        a('s_waitcnt lgkmcnt(0)')
        a(f'v_readfirstlane_b32 s{S_T0}, {u(1)}')
        a(f's_cmp_lg_u32 s{S_T0}, {n-1}')
        a(f's_cbranch_scc1 KG_JN{k}')
        flag_store(base)
        a.label(f'KG_JN{k}')
    S_NQ, S_NEW, S_LB, S_QU, S_PUB = S_P, S_KH, S_KB, S_SEEN, S_KOFF
    def glob_poll(tag, execmask, sleep, wide=True, lsh=7):
        a(f's_mov_b32 s{S_CNT}, {POLL_LIMIT}')
        a(f'v_lshlrev_b32 {u(0)}, {lsh}, v0')
        if execmask == 0xffffffff:
            a('s_mov_b32 exec_hi, 0')
        else:
            a(f's_mov_b64 exec, {execmask}')
        a.label(f'KG_GP{tag}')
        if wide:
            a(f'buffer_load_dwordx4 {vr(V_U+4,4)}, {u(0)}, {ws}, s{S_T1} offen{SC}')
            a('s_waitcnt vmcnt(0)')
            for i in range(4):
                a(f'v_xor_b32 {u(4+i)}, s{S_TAG}, {u(4+i)}')
            a(f'v_or3_b32 {u(4)}, {u(4)}, {u(5)}, {u(6)}')
            a(f'v_or_b32 {u(4)}, {u(4)}, {u(7)}')
            a(f'v_cmp_ne_u32 vcc, 0, {u(4)}')
        else:
            a(f'buffer_load_dword {u(4)}, {u(0)}, {ws}, s{S_T1} offen{SC}')
            a('s_waitcnt vmcnt(0)')
            a(f'v_cmp_ne_u32 vcc, s{S_TAG}, {u(4)}')
        a(f's_sub_u32 s{S_CNT}, s{S_CNT}, 1')
        a(f's_cbranch_scc1 KG_GD{tag}')
        if tag == 'KV':
            S_DN = S_VM
            a(f's_and_b64 s[{S_C0}:{S_C0+1}], exec, vcc')
            a(f's_or_b64 s[{S_C1}:{S_C1+1}], s[{S_C0}:{S_C0+1}], s[{S_DN}:{S_DN+1}]')
            a('s_mov_b64 exec, -1')
            a(f's_mov_b32 s{S_NEW}, 0')
            for c in range(8):
                m = 0xff << (8 * (c & 3))
                a(f's_and_b32 s{S_T0}, s{S_C1+(c>>2)}, {hex(m)}')
                a(f's_cselect_b32 s{S_T0}, 0, {hex(m)}')
                a(f's_cselect_b32 s{S_T2}, 0, {1 << c}')
                a(f's_or_b32 s{S_DN+(c>>2)}, s{S_DN+(c>>2)}, s{S_T0}')
                a(f's_or_b32 s{S_NEW}, s{S_NEW}, s{S_T2}')
            a('s_cbranch_scc0 KG_QE')
            a.label('KG_QL')
            a(f's_ff1_i32_b32 s{S_T0}, s{S_NEW}')
            a(f's_bitset0_b32 s{S_NEW}, s{S_T0}')
            a(f's_add_u32 s{S_NQ}, s{S_NQ}, 1')
            a(f's_cmp_gt_u32 s{S_NQ}, 4')
            a('s_cbranch_scc1 KG_QQ')
            a(f's_lshl_b32 s{S_T0}, s{S_T0}, 14')
            a(f's_add_u32 s{S_T0}, s{S_T0}, {WS_KV}')
            kv_dma(S_T0, S_LB)
            a('s_branch KG_QN')
            a.label('KG_QQ')
            a(f's_lshl_b32 s{S_QU}, s{S_QU}, 3')
            a(f's_or_b32 s{S_QU}, s{S_QU}, s{S_T0}')
            a.label('KG_QN')
            a(f's_cmp_lg_u32 s{S_NEW}, 0')
            a('s_cbranch_scc1 KG_QL')
            a(f's_min_u32 s{S_T2}, s{S_NQ}, 4')
            for k in (3, 2, 1, 0):
                a(f's_sub_i32 s{S_T0}, s{S_T2}, {k}')
                a(f's_cmp_gt_i32 s{S_T0}, s{S_PUB}')
                a(f's_cbranch_scc0 KG_QP{k}x')
                a(f's_mov_b32 s{S_PUB}, s{S_T0}')
                a(f'v_mov_b32 {u(1)}, s{S_T0}')
                a(f's_waitcnt vmcnt({16*k})')
                a(f'ds_write_b32 v{V_Z}, {u(1)} offset:{4*F_POS}')
                a.label(f'KG_QP{k}x')
            a.label('KG_QE')
            a(f's_and_b64 exec, s[{S_C0}:{S_C0+1}], s[{S_C0}:{S_C0+1}]')
        else:
            a('s_and_b64 exec, exec, vcc')
        a(f's_cbranch_scc0 KG_GD{tag}')
        a(f's_sleep {sleep}')
        a(f's_branch KG_GP{tag}')
        a.label(f'KG_GD{tag}')
        a('s_mov_b64 exec, -1')

    a.label('KG_KV')
    KX, KW, KA = 16, 80, 144
    S_RB, S_TY, S_KQ = S_P, S_KH, S_KB
    a(f's_mov_b32 s{S_KQ}, s{S_QG}')
    a(f's_lshr_b32 s{S_RB}, s{S_HG}, 1')
    a(f's_and_b32 s{S_TY}, s{S_HG}, 1')
    a(f's_cmp_eq_u32 s{S_TY}, 1')
    a(f's_cselect_b64 s[{S_C0}:{S_C0+1}], s[{S_WV}:{S_WV+1}], s[{S_WK}:{S_WK+1}]')
    srd(a, R_A, S_C0, 16384)
    srd(a, R_B, S_GT, 1024)
    a(f's_lshl_b32 s{S_T0}, s{S_RB}, 9')
    a(f's_add_u32 s{S_T0}, s{S_T0}, s{S_KQ}')
    a(f'v_lshlrev_b32 v{V_A1}, 5, v{V_I}')
    a(f'v_add_u32 v{V_A1}, s{S_T0}, v{V_A1}')
    a(f'v_lshlrev_b32 {u(0)}, 10, v{V_A1}')
    a(f'v_lshl_add_u32 {u(0)}, v{V_G}, 4, {u(0)}')
    for i in range(16):
        a(f's_mov_b32 m0, {L_KW + i*1024}')
        a(f's_movk_i32 s{S_T0}, {i*1024}')
        a(f'buffer_load_dwordx4 v{V_L16}, {ra}, s{S_T0} offen lds')
        a(f'buffer_load_dwordx4 {vr(KX+4*i,4)}, {u(0)}, {xs}, 0 offen offset:{64*i}')
        if i == KV_BAR:
            a('s_barrier')
            stamp(1)
    a(f's_mov_b32 m0, {L_GATE}')
    a('s_nop 0')
    a(f'buffer_load_dwordx4 v{V_L16}, {rb_}, 0 offen lds')
    a(f'v_bfe_u32 {u(1)}, v0, 2, 2')
    a(f'v_and_b32 {u(2)}, 3, v0')
    a(f'v_lshl_add_u32 {u(1)}, v{V_G}, 3, {u(1)}')
    a(f'v_lshlrev_b32 {u(1)}, 5, {u(1)}')
    a(f'v_lshl_add_u32 {u(1)}, {u(2)}, 3, {u(1)}')
    a(f'v_add_u32 v{V_A2}, {L_KW}, {u(1)}')
    a(f's_lshl_b32 s{S_T2}, s{S_QG}, 12')
    a(f's_lshr_b32 s{S_T0}, s{S_RB}, 1')
    a(f's_lshl_b32 s{S_T0}, s{S_T0}, 11')
    a(f's_add_u32 s{S_T2}, s{S_T2}, s{S_T0}')
    a(f's_and_b32 s{S_T0}, s{S_RB}, 1')
    a(f's_lshl_b32 s{S_T0}, s{S_T0}, 8')
    a(f's_add_u32 s{S_T2}, s{S_T2}, s{S_T0}')
    a(f's_lshl_b32 s{S_T0}, s{S_TY}, 10')
    a(f's_add_u32 s{S_T2}, s{S_T2}, s{S_T0}')
    a(f's_lshl_b32 s{S_T3}, s{S_T2}, 1')
    a(f's_add_u32 s{S_T2}, s{S_T2}, {WS_KV}')
    assert WS_KVT == 0
    a(f's_lshl_b32 s{S_KOFF}, s{S_QG}, 3')
    a(f's_add_u32 s{S_KOFF}, s{S_KOFF}, s{S_HG}')
    lds_wait(F_TAGOK, 1, V_U)
    get_tag(V_U)
    a(f'v_and_b32 {u(2)}, 1, v{V_G}')
    a(f'v_lshrrev_b32 {u(3)}, 1, v{V_G}')
    a(f'v_lshlrev_b32 {u(4)}, 9, {u(2)}')
    a(f'v_lshl_add_u32 {u(4)}, v{V_I}, 4, {u(4)}')
    a(f'v_lshl_add_u32 {u(4)}, {u(3)}, 3, {u(4)}')
    a(f'v_lshlrev_b32 {u(6)}, 1, {u(4)}')
    a(f'v_mov_b32 v{KA+10}, s{S_TAG}')
    a(f'v_mov_b32 v{KA+11}, s{S_TAG}')
    a(f'v_mov_b32 v{KA+12}, 1')
    a(f's_mov_b32 s{S_T1}, {f32_bits(QSCALE)}')
    a('s_waitcnt vmcnt(1)')
    stamp(2)
    def kv_reads(ks):
        a(f'ds_read_b64_tr_b16 {vr(KW+4*ks,2)}, v{V_A2} offset:{ks*1024}')
        a(f'ds_read_b64_tr_b16 {vr(KW+4*ks+2,2)}, v{V_A2} offset:{ks*1024+128}')
    for ks in range(7):
        kv_reads(ks)
    a(f's_cmp_eq_u32 s{S_TY}, 1')
    a('s_cbranch_scc1 KG_KV1')
    for ty in range(2):
        if ty == 1:
            a.label('KG_KV1')
        for ks in range(16):
            n_out = min(6, 15 - ks)
            a(f's_waitcnt lgkmcnt({2*n_out})')
            cc = vr(KA + 4*(ks & 1), 4) if ks >= 2 else '0'
            if ty == 0:
                a(f'v_mfma_f32_16x16x32_bf16 {vr(KA+4*(ks&1),4)}, {vr(KW+4*ks,4)}, {vr(KX+4*ks,4)}, {cc}')
            else:
                a(f'v_mfma_f32_16x16x32_bf16 {vr(KA+4*(ks&1),4)}, {vr(KX+4*ks,4)}, {vr(KW+4*ks,4)}, {cc}')
            if ks + 7 < 16:
                kv_reads(ks + 7)
        a('s_nop 7')
        for i in range(4):
            a(f'v_add_f32 v{KA+i}, v{KA+i}, v{KA+4+i}')
        if ty == 0:
            for i in range(4):
                a(f'v_mul_f32 v{KA+i}, s{S_T1}, v{KA+i}')
        a(f'v_cvt_pk_bf16_f32 v{KA+8}, v{KA}, v{KA+1}')
        a(f'v_cvt_pk_bf16_f32 v{KA+9}, v{KA+2}, v{KA+3}')
        a(f'buffer_store_dwordx4 {vr(KA+8,4)}, {u(6)}, {ws}, s{S_T3} offen{SC}')
        a(f'buffer_store_dwordx2 {vr(KA+8,2)}, {u(4)}, {ws}, s{S_T2} offen{SC}')
        a(f'ds_write_b32 v{V_Z}, v{KA+12} offset:{4*F_KVS}')
        stamp(1)
        a('s_waitcnt vmcnt(0)')
        flag_store(WS_FL1, f's{S_KOFF}')
        stamp(3)
        if ty == 1:
            a('s_branch KG_KP')
        else:
            a(f'v_lshlrev_b32 {u(2)}, 4, v{V_G}')
            a(f'v_add_u32 {u(2)}, {L_GATE}, {u(2)}')
            for half in range(2):
                for k8 in range(8):
                    ks = 8*half + k8
                    a(f'ds_read_b128 {vr(KW+4*ks,4)}, {u(2)} offset:{64*ks}')
                for k8 in range(8):
                    ks = 8*half + k8
                    a(f's_waitcnt lgkmcnt({7-k8})')
                    cc = vr(KA, 4) if ks else '0'
                    a(f'v_mfma_f32_16x16x32_bf16 {vr(KA,4)}, {vr(KW+4*ks,4)}, {vr(KX+4*ks,4)}, {cc}')
            a(f's_lshl_b32 s{S_T0}, s{S_KQ}, 6')
            a(f's_lshr_b32 s{S_T1}, s{S_RB}, 1')
            a(f's_lshl_b32 s{S_T1}, s{S_T1}, 5')
            a(f's_add_u32 s{S_T0}, s{S_T0}, s{S_T1}')
            a(f's_and_b32 s{S_T1}, s{S_RB}, 1')
            a(f's_lshl_b32 s{S_T1}, s{S_T1}, 2')
            a(f's_add_u32 s{S_T0}, s{S_T0}, s{S_T1}')
            a(f's_lshl_b32 s{S_T0}, s{S_T0}, 2')
            a(f's_add_u32 s{S_T1}, s{S_T0}, {WS_G}')
            a(f'v_lshrrev_b32 {u(2)}, 2, v{V_I}')
            a(f'v_and_b32 {u(4)}, 3, v{V_I}')
            a(f'v_lshl_add_u32 {u(2)}, {u(2)}, 3, {u(4)}')
            a(f'v_lshlrev_b32 {u(2)}, 2, {u(2)}')
            a(f'v_cvt_pk_bf16_f32 {u(3)}, v{KA}, v{KA}')
            a(f'v_lshlrev_b32 {u(3)}, 16, {u(3)}')
            a(f's_mov_b32 s{S_T0}, {f32_bits(-math.log2(math.e))}')
            a(f'v_mul_f32 {u(3)}, s{S_T0}, {u(3)}')
            a(f'v_exp_f32 {u(3)}, {u(3)}')
            a('s_nop 0')
            a(f'v_add_f32 {u(3)}, 1.0, {u(3)}')
            a(f'v_rcp_f32 {u(3)}, {u(3)}')
            a('s_nop 0')
            a(f'v_cvt_pk_bf16_f32 {u(3)}, {u(3)}, {u(3)}')
            a(f'v_lshlrev_b32 {u(3)}, 16, {u(3)}')
            a('s_mov_b64 exec, 0xffff')
            a(f'buffer_store_dword {u(3)}, {u(2)}, {ws}, s{S_T1} offen{SC}')
            a('s_mov_b64 exec, -1')
            a('s_branch KG_KP')

    a.label('KG_TAG')
    a(f's_mov_b32 s{S_T3}, {WS_ROOT}')
    a(f'v_mov_b32 {u(2)}, 0')
    a(f'buffer_load_dword {u(3)}, {u(2)}, {ws}, s{S_T3} offen{SC}')
    a('s_barrier')
    stamp(1)
    a('s_waitcnt vmcnt(0)')
    a(f'v_readfirstlane_b32 s{S_TAG}, {u(3)}')
    a(f's_mul_i32 s{S_TAG}, s{S_TAG}, {TAG_M}')
    a(f's_add_u32 s{S_TAG}, s{S_TAG}, {TAG_C}')
    a(f'v_mov_b32 {u(1)}, 1')
    a(f'v_mov_b32 {u(3)}, s{S_TAG}')
    a(f'ds_write_b32 v{V_Z}, {u(3)} offset:{4*F_TAG}')
    a(f'ds_write_b32 v{V_Z}, {u(1)} offset:{4*F_TAGOK}')
    stamp(2)
    GR = 16
    V_GW, V_QW = V_A1, V_A2
    S_PEND, S_GB, S_DN = S_P, S_KH, S_VM
    a(f's_and_b32 s{S_T0}, s2, 7')
    a(f's_lshl_b32 s{S_GB}, s{S_T0}, 15')
    a(f's_movk_i32 s{S_PEND}, 0x1ff')
    a(f'v_lshlrev_b32 v{V_GW}, 3, v0')
    a(f'v_add_u32 v{V_GW}, {L_PRE}, v{V_GW}')
    lds_wait(F_KVS, 1, V_U + 4, sleep=1)
    if G_DELAY:
        a(f's_sleep {G_DELAY}')
    def g_loads(c, sc=SC):
        a(f's_add_u32 s{S_T0}, s{S_GB}, {c*4096}')
        for j in range(4):
            a(f'buffer_load_dwordx4 {vr(GR+16*c+4*j,4)}, v{V_L16}, {ws}, s{S_T0} offen offset:{1024*j}{sc}')
    def g_check(c, k):
        for j in range(4):
            a(f'v_cmpx_eq_u32 vcc, s{S_TAG}, v{GR+16*c+4*j+2}')
        a('s_cmp_eq_u64 exec, -1')
        a('s_mov_b64 exec, -1')
        a(f's_cbranch_scc0 KG_GF{k}_{c}')
        for j in range(4):
            a(f'ds_write_b64 v{V_GW}, {vr(GR+16*c+4*j,2)} offset:{2048*c+512*j}')
        a(f's_bitset0_b32 s{S_PEND}, {c}')
        a(f's_ff1_i32_b32 s{S_T0}, s{S_PEND}')
        a(f'v_mov_b32 {u(4)}, s{S_T0}')
        a(f'ds_write_b32 v{V_Z}, {u(4)} offset:{4*F_PRE}')
        a.label(f'KG_GF{k}_{c}')
    for c in range(8):
        g_loads(c, '' if E('G_PLAIN', 0) else SC)
    a(f'ds_write_b32 v{V_Z}, {u(1)} offset:{4*F_GI}')
    stamp(1)
    for c in range(8):
        a(f's_waitcnt vmcnt({4*(7-c)})')
        g_check(c, 0)
    stamp(5)
    a(f's_mov_b32 s{S_CNT}, {POLL_LIMIT}')
    a.label('KG_GR')
    a(f's_cmp_eq_u32 s{S_PEND}, 0x100')
    a('s_cbranch_scc1 KG_GE')
    for c in range(8):
        a(f's_bitcmp1_b32 s{S_PEND}, {c}')
        a(f's_cbranch_scc0 KG_GL{c}')
        g_loads(c)
        a.label(f'KG_GL{c}')
    a('s_waitcnt vmcnt(0)')
    for c in range(8):
        a(f's_bitcmp1_b32 s{S_PEND}, {c}')
        a(f's_cbranch_scc0 KG_GF1_{c}')
        g_check(c, 1)
    a(f's_sub_u32 s{S_CNT}, s{S_CNT}, 1')
    a('s_cbranch_scc0 KG_GR')
    a.label('KG_GE')
    stamp(6)
    a('s_branch KG_WT')
    a.label('KG_KP')
    a(f's_and_b32 s{S_T0}, s2, 7')
    a(f's_lshl_b32 s{S_T0}, s{S_T0}, 3')
    a(f's_mov_b64 s[{S_DN}:{S_DN+1}], 0xff')
    a(f's_lshl_b64 s[{S_DN}:{S_DN+1}], s[{S_DN}:{S_DN+1}], s{S_T0}')
    a(f's_mov_b32 s{S_NQ}, 0')
    a(f's_mov_b32 s{S_QU}, 0')
    a(f's_mov_b32 s{S_PUB}, 0')
    a(f's_mov_b32 s{S_LB}, {L_WQ}')
    pg_wait(1)
    a(f's_mov_b32 s{S_T1}, {WS_FL1}')
    if KP_DELAY:
        a(f's_sleep {KP_DELAY}')
    glob_poll('KV', -1, KV_SLEEP)
    a(f'v_mov_b32 {u(1)}, 127')
    a(f'ds_write_b32 v{V_Z}, {u(1)} offset:{4*F_N}')
    stamp(5)
    a('s_cmp_lg_u32 s2, 0')
    a('s_cbranch_scc1 KG_H3')
    a(f's_mov_b32 s{S_T3}, {WS_ROOT}')
    a(f'v_mov_b32 {u(2)}, 0')
    a(f'v_mov_b32 {u(3)}, s{S_TAG}')
    a('s_mov_b64 exec, 1')
    a(f'buffer_store_dword {u(3)}, {u(2)}, {ws}, s{S_T3} offen{SC}')
    a('s_mov_b64 exec, -1')
    a('s_branch KG_H3')

    a.label('KG_WT')
    if WT_LAG == 127:
        lds_wait(F_N, 127, V_U, sleep=2)
    elif WT_LAG == 100:
        lds_wait(F_POS, 1, V_U, sleep=2)
    elif WT_LAG:
        lds_wait(F_PRE, WT_LAG, V_U, sleep=2)
    S_FW, S_G4, S_PT = S_P, S_KH, S_KB
    a(f's_lshr_b32 s{S_FW}, s{S_QG}, 3')
    a(f's_bfe_u32 s{S_G4}, s{S_QG}, 0x20001')
    a(f's_and_b32 s{S_PT}, s{S_QG}, 1')
    a(f's_cmp_eq_u32 s{S_PT}, 1')
    a(f's_cselect_b64 s[{S_C0}:{S_C0+1}], s[{S_WI}:{S_WI+1}], s[{S_WR}:{S_WR+1}]')
    srd(a, R_A, S_C0, 2048 * 514)
    a(f's_lshl_b32 s{S_T3}, s{S_FW}, 4')
    a(f's_lshl_b32 s{S_T1}, s{S_G4}, 8')
    a(f's_add_u32 s{S_T1}, s{S_T1}, s{S_T3}')
    a(f'v_add_u32 {u(2)}, s{S_T1}, v{V_I}')
    a(f'v_mul_u32_u24 {u(2)}, 514, {u(2)}')
    a(f'v_lshl_add_u32 {u(2)}, v{V_G}, 4, {u(2)}')
    a(f's_lshl_b32 s{S_T1}, s{S_HG}, 6')
    a(f'v_add_u32 {u(2)}, s{S_T1}, {u(2)}')
    a(f'v_and_b32 {u(4)}, 2, {u(2)}')
    a(f'v_and_b32 {u(2)}, -4, {u(2)}')
    for e in range(8):
        a(f's_mov_b32 s{S_T0}, {(16*(e>>2)+(e&3))*32896}')
        a(f'buffer_load_dwordx4 {vr(16+4*e,4)}, {u(2)}, {ra}, s{S_T0} offen')
        a(f'buffer_load_dword v{96+e}, {u(2)}, {ra}, s{S_T0} offen offset:16')
    a(f's_or_b32 s{S_KOFF}, s{S_HG}, s{S_G4}')
    a(f's_cmp_lg_u32 s{S_KOFF}, 0')
    a('s_cbranch_scc1 KG_WT1')
    a(f'v_lshl_add_u32 {u(3)}, v{V_G}, 8, v{V_I}')
    a(f'v_add_u32 {u(3)}, s{S_T3}, {u(3)}')
    a(f'v_mul_u32_u24 {u(3)}, 514, {u(3)}')
    for e in range(8):
        a(f's_mov_b32 s{S_T0}, {(16*(e>>2)+(e&3))*32896}')
        a(f'buffer_load_ushort v{80+e}, {u(3)}, {ra}, s{S_T0} offen offset:512')
    a.label('KG_WT1')
    a(f's_mov_b32 s{S_C0}, 0x05040100')
    a(f's_mov_b32 s{S_C0+1}, 0x07060302')
    a(f'v_lshlrev_b32 {u(2)}, 16, v{V_G}')
    a(f'v_lshl_add_u32 {u(2)}, v{V_I}, 4, {u(2)}')
    a(f's_lshl_b32 s{S_T1}, s{S_HG}, 18')
    a(f's_lshl_b32 s{S_T2}, s{S_FW}, 11')
    a(f's_lshl_b32 s{S_T0}, s{S_PT}, 10')
    a(f's_add_u32 s{S_T2}, s{S_T2}, s{S_T0}')
    a(f's_add_u32 s{S_T2}, s{S_T2}, {WS_WT}')
    a(f's_add_u32 s{S_T1}, s{S_T1}, s{S_T2}')
    a(f's_lshl_b32 s{S_T0}, s{S_G4}, 8')
    a(f's_add_u32 s{S_T1}, s{S_T1}, s{S_T0}')
    a('s_waitcnt vmcnt(0)')
    stamp(3)
    for e in range(8):
        for j in range(4):
            hi = 16 + 4*e + j + 1 if j < 3 else 96 + e
            a(f'v_alignbyte_b32 v{16+4*e+j}, v{hi}, v{16+4*e+j}, {u(4)}')
    for ph in range(8):
        for q in range(4):
            lo = 16 + 4*(2*q) + (ph >> 1); hi = 16 + 4*(2*q+1) + (ph >> 1)
            a(f'v_perm_b32 v{48+4*ph+q}, v{hi}, v{lo}, s{S_C0+(ph&1)}')
    for ph in range(8):
        a(f's_add_u32 s{S_T0}, s{S_T1}, {8192*ph}')
        if not E('WT_NOST', 0): a(f'buffer_store_dwordx4 {vr(48+4*ph,4)}, {u(2)}, {ws}, s{S_T0} offen{SC}')
    a(f's_cmp_lg_u32 s{S_KOFF}, 0')
    a('s_cbranch_scc1 KG_J1')
    for q in range(4):
        a(f'v_lshl_or_b32 v{88+q}, v{81+2*q}, 16, v{80+2*q}')
    a(f's_add_u32 s{S_T0}, s{S_T2}, {256*8192}')
    a(f'buffer_store_dwordx4 {vr(88,4)}, v{V_L16}, {ws}, s{S_T0} offen{SC}')
    a('s_branch KG_J1')

    a.label('KG_H2')
    HT, HX, HA = 16, 64, 128
    table_srd(a, R_TB, 'TAB_F', 512 * 1024, 'f')
    a(f's_and_b32 s{S_CT}, s{S_HW}, 1')
    a(f's_lshl_b32 s{S_T2}, s{S_HG}, 16')
    a(f's_lshl_b32 s{S_T0}, s{S_CT}, 10')
    a(f's_add_u32 s{S_T2}, s{S_T2}, s{S_T0}')
    a(f's_mov_b32 s{S_KOFF}, s{S_T2}')
    a(f'v_lshrrev_b32 {u(0)}, 3, v0')
    a(f'v_and_b32 {u(1)}, 7, v0')
    a(f's_cmp_eq_u32 s{S_HW}, 3')
    a('s_cbranch_scc1 KG_LDW')
    def loader(rs, soff, cstep, lbase, vo, flag):
        a(f's_mov_b32 s{S_T2}, 0')
        a(f's_mov_b32 s{S_T3}, {lbase}')
        if LD_PRE == 0:
            a('s_barrier')
            stamp(1)
        HD = 8 * LOAD_D // 2
        n = 0
        pub = 0
        for c in range(8):
            for w in range(8):
                a(f's_add_u32 m0, s{S_T3}, {w*1024}')
                a(f's_add_u32 s{S_T0}, s{S_T2}, {soff(w)}')
                a(f'buffer_load_dwordx4 {vo(w)}, {rs}, s{S_T0} offen lds')
                n += 1
                if n == LD_PRE:
                    a('s_barrier')
                    stamp(1)
                if n % 4 == 0 and n > HD:
                    a(f's_waitcnt vmcnt({HD})')
                    if (n - HD) // 8 > pub:
                        pub = (n - HD) // 8
                        a(f'v_mov_b32 {u(6)}, {pub}')
                        a(f'ds_write_b32 v{V_Z}, {u(6)} offset:{4*flag}')
            if c < 7:
                a(f's_add_u32 s{S_T2}, s{S_T2}, {cstep}')
                a(f's_add_u32 s{S_T3}, s{S_T3}, 8192')
        for c in range(pub, 8):
            a(f's_waitcnt vmcnt({8*(7-c)})')
            a(f'v_mov_b32 {u(6)}, {c + 1}')
            a(f'ds_write_b32 v{V_Z}, {u(6)} offset:{4*flag}')
    a(f'v_lshrrev_b32 {u(2)}, 2, {u(0)}')
    a(f'v_and_b32 {u(3)}, 3, {u(0)}')
    a(f'v_lshl_add_u32 {u(2)}, {u(2)}, 4, {u(3)}')
    a(f'v_lshlrev_b32 {u(2)}, 15, {u(2)}')
    a(f's_lshl_b32 s{S_T0}, s{S_QG}, 10')
    a(f'v_add_u32 {u(2)}, s{S_T0}, {u(2)}')
    a(f'v_xor_b32 {u(3)}, v{V_G}, {u(1)}')
    a(f'v_lshl_add_u32 {u(4)}, {u(3)}, 4, {u(2)}')
    a(f'v_xor_b32 {u(3)}, 4, {u(3)}')
    a(f'v_lshl_add_u32 {u(5)}, {u(3)}, 4, {u(2)}')
    loader(xs, lambda w: (32*(w >> 2) + 4*(w & 3)) * 32768, 128, L_X, lambda w: u(4 + (w & 1)), F_CX)
    a('s_branch KG_H2B')
    a.label('KG_LDW')
    srd(a, R_A, S_WQ, 512 * 1024)
    a(f'v_and_b32 {u(2)}, 1, v{V_G}')
    a(f'v_lshlrev_b32 {u(2)}, 2, {u(2)}')
    a(f'v_xor_b32 {u(2)}, {u(2)}, {u(1)}')
    a(f'v_lshlrev_b32 {u(2)}, 4, {u(2)}')
    a(f'v_lshl_add_u32 {u(2)}, {u(0)}, 10, {u(2)}')
    a(f's_lshl_b32 s{S_T0}, s{S_HG}, 7')
    a(f'v_add_u32 {u(4)}, s{S_T0}, {u(2)}')
    loader(ra, lambda w: w * 8192, 65536, L_WQ, lambda w: u(4), F_CW)
    a.label('KG_H2B')
    stamp(2)
    a(f's_mov_b32 s{S_T2}, s{S_KOFF}')
    if TF_LAG == 1:
        lds_wait(F_GI, 1, V_U, sleep=2)
    elif TF_LAG == 100:
        lds_wait(F_POS, 1, V_U, sleep=2)
    elif TF_LAG:
        lds_wait(F_PRE, TF_LAG, V_U, sleep=2)
    def tload(i):
        if i % 2 == 0:
            a(f's_add_u32 s{S_T3}, s{S_T2}, {i*2048}')
        a(f'buffer_load_dwordx4 {vr(HT+4*(i%12),4)}, v{V_L16}, {tb}, s{S_T3} offen offset:{(i%2)*2048}')
    PD = H2_PD
    assert PD <= 12
    for i in range(PD):
        tload(i)
    a(f'v_and_b32 {u(4)}, 31, v0')
    a(f'v_lshrrev_b32 {u(5)}, 5, v0')
    a(f'v_bfe_u32 {u(6)}, v0, 1, 3')
    a(f'v_lshlrev_b32 {u(7)}, 7, {u(4)}')
    for ks in range(4):
        a(f'v_add_u32 v{HA+ks}, {2*ks}, {u(5)}')
        a(f'v_xor_b32 v{HA+ks}, v{HA+ks}, {u(6)}')
        a(f'v_lshl_add_u32 {u(ks)}, v{HA+ks}, 4, {u(7)}')
    a(f'v_lshlrev_b32 v{V_A1}, 12, {u(4)}')
    a(f'v_lshl_add_u32 v{V_A1}, {u(5)}, 5, v{V_A1}')
    stamp(5)
    lds_wait(F_CX, 8, V_U + 4, sleep=2)
    def xreads(c):
        for ks in range(4):
            for aa in range(2):
                a(f'ds_read_b128 {vr(HX+32*(c&1)+16*aa+4*ks,4)}, {u(ks)} offset:{c*8192+4096*aa}')
    if PRI & 1: a('s_setprio 0')
    xreads(0)
    for c in range(8):
        if c < 7:
            xreads(c + 1)
        for ks in range(4):
            i = 4*c + ks
            a(f's_waitcnt vmcnt({min(PD-1, 31-i)}) lgkmcnt({2*(3-ks) + (8 if c < 7 else 0)})')
            for aa in range(2):
                cc = vr(HA + 16*aa, 16) if i else '0'
                a(f'v_mfma_f32_32x32x16_bf16 {vr(HA+16*aa,16)}, {vr(HX+32*(c&1)+16*aa+4*ks,4)}, {vr(HT+4*(i%12),4)}, {cc}')
            if i + PD < 32: tload(i + PD)
    if PRI & 1: a('s_setprio 2')
    lds_add(F_H2, V_U)
    a(f's_lshl_b32 s{S_T0}, s{S_HG}, 18')
    a(f's_lshl_b32 s{S_T1}, s{S_CT}, 17')
    a(f's_add_u32 s{S_T0}, s{S_T0}, s{S_T1}')
    a(f's_lshl_b32 s{S_T1}, s{S_QG}, 7')
    a(f's_add_u32 s{S_T0}, s{S_T0}, s{S_T1}')
    a(f's_add_u32 s{S_T2}, s{S_T0}, {WS_X1T}')
    lds_wait(F_TAGOK, 1, V_U)
    get_tag(V_U)
    a('s_nop 4')
    for i in range(16):
        a(f'v_cvt_pk_bf16_f32 v{HX+i}, v{HA+2*i}, v{HA+2*i+1}')
    for aa in range(2):
        for q in range(2):
            a(f'buffer_store_dwordx4 {vr(HX+8*aa+4*q,4)}, v{V_A1}, {ws}, s{S_T2} offen offset:{64*aa+16*q}{SC}')
    a.label('KG_J1')
    join_flag(F_J1, 3, WS_FL2)
    stamp(6)
    a.label('KG_H3')
    if E('NOHELP', 0) == 1:
        lds_add(F_J2, V_U)
        dump()
        a('s_endpgm')

    V_T1 = 16
    V_T2 = 64
    V_D = 88
    V_TW = 104
    V_XX = 120
    V_W = 136
    V_AC = 152
    S_FW = S_HW
    table_srd(a, R_TB, 'TAB_K2', 24576 + 6144 + 32768, 'k2')
    O_T1, O_T2, O_TW1, O_TW2 = 0, 24576, 30720, 30720 + 16384
    a(f's_lshr_b32 s{S_MH}, s{S_FW}, 1')
    a(f's_and_b32 s{S_NH}, s{S_FW}, 1')
    a(f's_mul_i32 s{S_T0}, s{S_MH}, 12288')
    for i in range(12):
        if i % 4 == 0 and i:
            a(f's_add_u32 s{S_T0}, s{S_T0}, 4096')
        a(f'buffer_load_dwordx4 {vr(V_T1+4*i,4)}, v{V_L16}, {tb}, s{S_T0} offen offset:{(i%4)*1024}')
        thr()
    a(f's_lshl_b32 s{S_T2}, s{S_FW}, 12')
    a(f's_add_u32 s{S_T0}, s{S_T2}, {O_TW1}')
    for i in range(4):
        a(f'buffer_load_dwordx4 {vr(V_TW+4*i,4)}, v{V_L16}, {tb}, s{S_T0} offen offset:{i*1024}')
        thr()
    a(f's_mov_b32 s{S_T0}, {O_T2}')
    a(f's_mov_b32 s{S_T1}, {O_T2+4096}')
    for i in range(6):
        a(f'buffer_load_dwordx4 {vr(V_T2+4*i,4)}, v{V_L16}, {tb}, s{S_T0+(i>>2)} offen offset:{(i%4)*1024}')
        thr()
    a(f's_lshl_b32 s{S_T0}, s{S_FW}, 4')
    a(f'v_lshl_add_u32 v{V_A3}, v{V_G}, 8, v{V_I}')
    a(f'v_add_u32 v{V_A3}, s{S_T0}, v{V_A3}')
    a(f's_cmp_eq_u32 s{S_F}, 0')
    a('s_cbranch_scc1 KG_SPA')
    a.label('KG_SPAR')
    a(f's_cmp_lg_u32 s{S_HW}, 0')
    a('s_cbranch_scc1 KG_PCE')
    lds_wait(F_H2, 2, V_U, sleep=4)
    a(f's_mov_b32 s{S_LB}, {L_X}')
    for k in range(3):
        a(f's_bfe_u32 s{S_T0}, s{S_QU}, {hex(0x30000 + 3*(2-k))}')
        a(f's_lshl_b32 s{S_T0}, s{S_T0}, 14')
        a(f's_add_u32 s{S_T0}, s{S_T0}, {WS_KV}')
        kv_dma(S_T0, S_LB)
    a(f'v_mov_b32 {u(1)}, 8')
    a('s_waitcnt vmcnt(0)')
    a(f'ds_write_b32 v{V_Z}, {u(1)} offset:{4*F_POS}')
    stamp(6)
    a.label('KG_PCE')
    a(f's_cmp_lg_u32 s{S_HW}, 1')
    a('s_cbranch_scc1 KG_S1W')
    a(f's_lshl_b32 s{S_T1}, s{S_HG}, 10')
    a(f's_add_u32 s{S_T1}, s{S_T1}, {WS_FL2}')
    glob_poll('S1', 0xff, S1_SLEEP)
    a(f'v_mov_b32 {u(1)}, 1')
    a(f'ds_write_b32 v{V_Z}, {u(1)} offset:{4*F_S1OK}')
    a.label('KG_S1W')
    pg_wait(3)
    lds_wait(F_S1OK, 1, V_U, sleep=4)
    stamp(7)
    a(f'v_lshlrev_b32 v{V_A1}, 7, v{V_I}')
    a(f'v_lshl_add_u32 v{V_A1}, v{V_G}, 4, v{V_A1}')
    a(f's_lshl_b32 s{S_T0}, s{S_F}, 13')
    a(f's_lshl_b32 s{S_T1}, s{S_NH}, 11')
    a(f's_add_u32 s{S_T0}, s{S_T0}, s{S_T1}')
    a(f's_add_u32 s{S_T0}, s{S_T0}, {WS_X1T}')
    a(f's_add_u32 s{S_T1}, s{S_T0}, 4096')
    for part in range(2):
        for ks in range(2):
            a(f'buffer_load_dwordx4 {vr(V_D+8*part+4*ks,4)}, v{V_A1}, {ws}, s{S_T0+part} offen offset:{64*ks}{SC}')
    a(f's_lshl_b32 s{S_T0}, s{S_F}, 13')
    a(f's_lshl_b32 s{S_T1}, s{S_FW}, 11')
    a(f's_add_u32 s{S_T1}, s{S_T1}, {WS_WT}')
    a(f's_add_u32 s{S_T0}, s{S_T0}, s{S_T1}')
    a(f's_cmp_lg_u32 s{S_F}, 0')
    a('s_cbranch_scc1 KG_NXX')
    a(f's_add_u32 s{S_T1}, s{S_T1}, {256*8192}')
    for part in range(2):
        a(f'buffer_load_dwordx4 {vr(V_XX+8*part+4,4)}, v{V_L16}, {ws}, s{S_T1} offen offset:{1024*part}{SC}')
    a.label('KG_NXX')
    for part in range(2):
        a(f'buffer_load_dwordx4 {vr(V_W+8*part+4,4)}, v{V_L16}, {ws}, s{S_T0} offen offset:{1024*part}{SC}')

    def mf(d, x, y, c):
        cc = vr(d, 4) if c else '0'
        a(f'v_mfma_f32_16x16x32_bf16 {vr(d,4)}, {vr(x,4)}, {vr(y,4)}, {cc}')
    def t1(nt, ks, v): return V_T1 + 4 * ((nt * 2 + ks) * 3 + v)
    def t2(mt, v): return V_T2 + 4 * (mt * 3 + v)
    def cmul_pack(dst):
        for t_ in range(2):
            for r in range(4):
                ar, ai = V_AC + 8*t_ + r, V_AC + 8*t_ + 4 + r
                c_, s_ = V_TW + 8*t_ + r, V_TW + 8*t_ + 4 + r
                uu = V_U + (r & 1) * 2
                a(f'v_mul_f32 v{uu}, v{ar}, v{c_}')
                a(f'v_mul_f32 v{uu+1}, v{ar}, v{s_}')
                a(f'v_fma_f32 v{ar}, -v{ai}, v{s_}, v{uu}')
                a(f'v_fma_f32 v{ai}, v{ai}, v{c_}, v{uu+1}')
        for i in range(8):
            a(f'v_cvt_pk_bf16_f32 v{dst+i}, v{V_AC+2*i}, v{V_AC+2*i+1}')
    def sync(flag):
        a('s_waitcnt lgkmcnt(0)')
        lds_add(flag, V_U)
        lds_wait(flag, 4, V_U, sleep=2)

    def lo():
        if PRI & 4: a('s_setprio 0')
    def hi():
        if PRI & 4: a('s_setprio 2')
    lo()
    a('s_waitcnt vmcnt(2)')
    zr = lambda ks: V_D + 4*ks
    zi = lambda ks: V_D + 8 + 4*ks
    for ks in range(2):
        for nt in range(2):
            mf(V_AC + 8*nt, zr(ks), t1(nt, ks, 0), ks)
            mf(V_AC + 8*nt + 4, zi(ks), t1(nt, ks, 0), ks)
        for nt in range(2):
            mf(V_AC + 8*nt, zi(ks), t1(nt, ks, 2), 1)
            mf(V_AC + 8*nt + 4, zr(ks), t1(nt, ks, 1), 1)
    hi()
    a(f's_cmp_eq_u32 s{S_F}, 0')
    a('s_cbranch_scc1 KG_SPB')
    a.label('KG_SPBR')
    a(f's_mul_i32 s{S_T0}, s{S_MH}, 2560')
    a(f's_lshl_b32 s{S_T1}, s{S_NH}, 3')
    a(f's_add_u32 s{S_T0}, s{S_T0}, s{S_T1}')
    a(f'v_mul_u32_u24 v{V_A1}, 80, v{V_I}')
    a(f'v_lshl_add_u32 v{V_A1}, v{V_G}, 4, v{V_A1}')
    a(f'v_add_u32 v{V_A1}, {L_APR}, v{V_A1}')
    a(f'v_add_u32 {u(4)}, s{S_T0}, v{V_A1}')
    a('s_nop 4')
    cmul_pack(V_D)
    for nt in range(2):
        a(f'ds_write_b64 {u(4)}, {vr(V_D+4*nt,2)} offset:{1280*nt}')
        a(f'ds_write_b64 {u(4)}, {vr(V_D+4*nt+2,2)} offset:{L_API-L_APR+1280*nt}')
    a(f's_add_u32 s{S_T0}, s{S_T2}, {O_TW2}')
    for i in range(4):
        a(f'buffer_load_dwordx4 {vr(V_TW+4*i,4)}, v{V_L16}, {tb}, s{S_T0} offen offset:{i*1024}')
    sync(F_SY0)
    a(f's_mul_i32 s{S_T0}, s{S_FW}, 1280')
    a(f'v_add_u32 {u(4)}, s{S_T0}, v{V_A1}')
    a(f'ds_read_b128 {vr(V_D,4)}, {u(4)}')
    a(f'ds_read_b128 {vr(V_D+4,4)}, {u(4)} offset:{L_API-L_APR}')
    lo()
    a('s_waitcnt vmcnt(4) lgkmcnt(0)')
    for mt in range(2):
        mf(V_AC + 8*mt, t2(mt, 0), V_D, 0)
        mf(V_AC + 8*mt + 4, t2(mt, 0), V_D + 4, 0)
    for mt in range(2):
        mf(V_AC + 8*mt, t2(mt, 2), V_D + 4, 1)
        mf(V_AC + 8*mt + 4, t2(mt, 1), V_D, 1)
    hi()
    def unpack(base):
        for part in range(2):
            b = base + 8*part
            for q in range(4):
                a(f'v_lshlrev_b32 v{b+2*q}, 16, v{b+4+q}')
                a(f'v_and_b32 v{b+2*q+1}, 0xffff0000, v{b+4+q}')
    unpack(V_W)
    a(f's_cmp_eq_u32 s{S_F}, 0')
    a('s_cbranch_scc1 KG_SPECIAL')
    for e in range(8):
        mt, r = e >> 2, e & 3
        ar, ai = V_AC + 8*mt + r, V_AC + 8*mt + 4 + r
        c_, s_ = V_W + e, V_W + 8 + e
        uu = V_U + (r & 1) * 2
        a(f'v_mul_f32 v{uu}, v{ar}, v{c_}')
        a(f'v_mul_f32 v{uu+1}, v{ar}, v{s_}')
        a(f'v_fma_f32 v{ar}, -v{ai}, v{s_}, v{uu}')
        a(f'v_fma_f32 v{ai}, v{ai}, v{c_}, v{uu+1}')
    a.label('KG_STEP3')
    for mt in range(2):
        for part in range(2):
            for q in range(2):
                src = V_AC + 8*mt + 4*part + 2*q
                a(f'v_cvt_pk_bf16_f32 v{V_D+4*part+2*mt+q}, v{src}, v{src+1}')
    lo()
    a('s_nop 1')
    for mt in range(2):
        mf(V_AC + 8*mt, V_D, t2(mt, 0), 0)
        mf(V_AC + 8*mt + 4, V_D + 4, t2(mt, 0), 0)
    for mt in range(2):
        mf(V_AC + 8*mt, V_D + 4, t2(mt, 1), 1)
        mf(V_AC + 8*mt + 4, V_D, t2(mt, 2), 1)
    hi()
    a(f'v_mul_u32_u24 v{V_A1}, 144, v{V_I}')
    a(f'v_add_u32 v{V_A1}, {L_CPR}, v{V_A1}')
    a(f's_lshl_b32 s{S_T0}, s{S_FW}, 5')
    a(f'v_lshl_add_u32 {u(4)}, v{V_G}, 3, v{V_A1}')
    a(f'v_add_u32 {u(4)}, s{S_T0}, {u(4)}')
    a('s_waitcnt vmcnt(0)')
    a('s_nop 4')
    cmul_pack(V_D)
    for mt in range(2):
        a(f'ds_write_b64 {u(4)}, {vr(V_D+4*mt,2)} offset:{2304*mt}')
        a(f'ds_write_b64 {u(4)}, {vr(V_D+4*mt+2,2)} offset:{L_CPI-L_CPR+2304*mt}')
    sync(F_SY1)
    a(f's_mul_i32 s{S_T0}, s{S_NH}, 2304')
    a(f'v_lshl_add_u32 {u(4)}, v{V_G}, 4, v{V_A1}')
    a(f'v_add_u32 {u(4)}, s{S_T0}, {u(4)}')
    for part in range(2):
        for ks in range(2):
            a(f'ds_read_b128 {vr(V_D+8*part+4*ks,4)}, {u(4)} offset:{(L_CPI-L_CPR)*part+64*ks}')
    lo()
    a('s_waitcnt lgkmcnt(0)')
    for ks in range(2):
        for nt in range(2):
            mf(V_AC + 8*nt, t1(nt, ks, 0), zr(ks), ks)
            mf(V_AC + 8*nt + 4, t1(nt, ks, 0), zi(ks), ks)
        for nt in range(2):
            mf(V_AC + 8*nt, t1(nt, ks, 1), zi(ks), 1)
            mf(V_AC + 8*nt + 4, t1(nt, ks, 2), zr(ks), 1)
    hi()
    a(f'v_lshlrev_b32 {u(4)}, 7, v{V_I}')
    a(f'v_lshl_add_u32 {u(4)}, v{V_G}, 4, {u(4)}')
    a(f's_lshl_b32 s{S_T0}, s{S_F}, 13')
    a(f's_lshl_b32 s{S_T1}, s{S_NH}, 11')
    a(f's_add_u32 s{S_T0}, s{S_T0}, s{S_T1}')
    a(f's_lshl_b32 s{S_T1}, s{S_MH}, 6')
    a(f's_add_u32 s{S_T0}, s{S_T0}, s{S_T1}')
    a(f's_add_u32 s{S_T0}, s{S_T0}, {WS_Y1T}')
    a(f's_add_u32 s{S_T1}, s{S_T0}, 4096')
    for part in range(2):
        for nt in range(2):
            for q in range(2):
                src = V_AC + 8*nt + 4*part + 2*q
                a(f'v_cvt_pk_bf16_f32 v{V_D+4*part+2*nt+q}, v{src}, v{src+1}')
    for part in range(2):
        a(f'buffer_store_dwordx4 {vr(V_D+4*part,4)}, {u(4)}, {ws}, s{S_T0+part} offen{SC}')
    join_flag(F_J2, 4, WS_FL3)
    stamp(8)
    if E('NOHELP', 0) == 2:
        dump()
        a('s_endpgm')

    AB, AA, LF, FR = 16, 32, 48, 80
    NFR = 32
    V_DM, V_RA, V_RY, V_OUT, V_GT, V_DW = 208, 209, 210, 211, 212, 213
    S_MI, S_NI = S_CT, S_A
    a(f's_lshr_b32 s{S_MI}, s{S_HW}, 1')
    a(f's_and_b32 s{S_NI}, s{S_HW}, 1')
    srd(a, R_A, S_WO, 512 * 1024)
    srd(a, R_OUT, S_OUT, 2048 * 1024)
    table_srd(a, R_TB, 'TAB_FINV', 512 * 1024, 'fi')
    a(f'v_lshrrev_b32 {u(0)}, 3, v0')
    a(f'v_and_b32 {u(1)}, 7, v0')
    a(f'v_and_b32 {u(2)}, 1, v{V_G}')
    a(f'v_lshlrev_b32 {u(3)}, 2, {u(2)}')
    a(f'v_xor_b32 {u(3)}, {u(3)}, {u(1)}')
    a(f'v_lshlrev_b32 {u(3)}, 4, {u(3)}')
    a(f'v_lshl_add_u32 {u(4)}, {u(0)}, 10, {u(3)}')
    a(f'v_mov_b32 v{V_DW}, {u(4)}')
    a(f's_lshl_b32 s{S_T3}, s{S_HW}, 14')
    a(f'v_lshl_add_u32 v{V_DM}, {u(0)}, 12, {u(3)}')
    a(f'v_and_b32 {u(0)}, 31, v0')
    a(f'v_lshrrev_b32 {u(1)}, 5, v0')
    a(f'v_bfe_u32 {u(3)}, v0, 2, 2')
    a(f'v_and_b32 {u(4)}, 3, v0')
    a(f'v_lshrrev_b32 {u(5)}, 1, {u(4)}')
    a(f'v_and_b32 {u(4)}, 1, {u(4)}')
    a(f'v_lshrrev_b32 {u(6)}, 1, {u(3)}')
    a(f'v_lshlrev_b32 {u(6)}, 2, {u(6)}')
    a(f'v_lshl_add_u32 {u(7)}, {u(4)}, 1, {u(2)}')
    a(f's_lshl_b32 s{S_T0}, s{S_MI}, 2')
    a(f'v_add_u32 {u(7)}, s{S_T0}, {u(7)}')
    a(f'v_xor_b32 {u(7)}, {u(7)}, {u(6)}')
    a(f'v_lshlrev_b32 {u(7)}, 4, {u(7)}')
    a(f'v_lshl_add_u32 {u(7)}, {u(5)}, 3, {u(7)}')
    a(f'v_lshl_add_u32 v{V_RA}, {u(1)}, 2, {u(3)}')
    a(f'v_lshl_add_u32 v{V_RA}, v{V_RA}, 7, {u(7)}')
    a(f'v_lshl_add_u32 {u(7)}, {u(2)}, 1, {u(5)}')
    a(f's_lshl_b32 s{S_T0}, s{S_NI}, 2')
    a(f'v_add_u32 {u(7)}, s{S_T0}, {u(7)}')
    a(f'v_xor_b32 {u(7)}, {u(7)}, {u(6)}')
    a(f'v_lshlrev_b32 {u(7)}, 4, {u(7)}')
    a(f'v_lshl_add_u32 {u(7)}, {u(4)}, 3, {u(7)}')
    a(f'v_lshl_add_u32 v{V_RY}, {u(1)}, 3, {u(3)}')
    a(f'v_lshl_add_u32 v{V_RY}, v{V_RY}, 7, {u(7)}')
    a(f'v_add_u32 v{V_RY}, {L_Y}, v{V_RY}')
    a(f'v_bfe_u32 {u(5)}, {u(0)}, 2, 1')
    a(f'v_lshrrev_b32 {u(6)}, 3, {u(0)}')
    a(f'v_and_b32 {u(7)}, 3, {u(0)}')
    a(f'v_lshl_add_u32 {u(7)}, {u(5)}, 4, {u(7)}')
    a(f'v_lshl_add_u32 {u(7)}, {u(6)}, 2, {u(7)}')
    a(f'v_lshlrev_b32 {u(7)}, 15, {u(7)}')
    a(f'v_lshl_add_u32 {u(7)}, {u(1)}, 5, {u(7)}')
    a(f's_lshl_b32 s{S_T0}, s{S_NI}, 20')
    a(f's_lshl_b32 s{S_T1}, s{S_QG}, 10')
    a(f's_add_u32 s{S_T0}, s{S_T0}, s{S_T1}')
    a(f's_lshl_b32 s{S_T1}, s{S_HG}, 7')
    a(f's_add_u32 s{S_T0}, s{S_T0}, s{S_T1}')
    a(f's_lshl_b32 s{S_T1}, s{S_MI}, 6')
    a(f's_add_u32 s{S_T0}, s{S_T0}, s{S_T1}')
    a(f'v_add_u32 v{V_OUT}, s{S_T0}, {u(7)}')
    a(f'v_lshlrev_b32 v{V_GT}, 2, {u(0)}')
    S_FI = S_KOFF
    a(f's_lshl_b32 s{S_FI}, s{S_HG}, 16')
    a(f's_lshl_b32 s{S_T0}, s{S_MI}, 10')
    a(f's_add_u32 s{S_FI}, s{S_FI}, s{S_T0}')
    def fload(i):
        if i % 2 == 0:
            a(f's_add_u32 s{S_KB}, s{S_FI}, {i*2048}')
        a(f'buffer_load_dwordx4 {vr(FR+4*(i%NFR),4)}, v{V_L16}, {tb}, s{S_KB} offen offset:{(i%2)*2048}')
    for i in range(NFR):
        fload(i)
        thr()
    def wo_dma():
        a(f's_lshl_b32 s{S_T2}, s{S_HW}, 17')
        a(f's_lshl_b32 s{S_T0}, s{S_HG}, 7')
        a(f's_add_u32 s{S_T2}, s{S_T2}, s{S_T0}')
        for i in range(16):
            a(f's_add_u32 m0, s{S_T3}, {L_WO + i*1024}')
            a(f's_add_u32 s{S_T0}, s{S_T2}, {i*8192}')
            a(f'buffer_load_dwordx4 v{V_DW}, {ra}, s{S_T0} offen lds')
            thr()
    a(f's_sub_u32 s{S_T0}, s{S_HW}, 1')
    a(f's_cmp_le_u32 s{S_T0}, 1')
    a('s_cbranch_scc1 KG_WOE')
    pg_wait(7, 4)
    wo_dma()
    a.label('KG_WOE')
    a(f's_cmp_lg_u32 s{S_HW}, 1')
    a('s_cbranch_scc1 KG_S2W')
    a(f's_mov_b32 s{S_T1}, {WS_FL3}')
    glob_poll('S2', -1, S2_SLEEP)
    a(f'v_mov_b32 {u(1)}, 1')
    a(f'ds_write_b32 v{V_Z}, {u(1)} offset:{4*F_S2OK}')
    a.label('KG_S2W')
    pg_wait(6, 4)
    lds_wait(F_S2OK, 1, V_U, sleep=4)
    stamp(9)
    a(f's_lshl_b32 s{S_T2}, s{S_HW}, 19')
    a(f's_lshl_b32 s{S_T0}, s{S_QG}, 7')
    a(f's_add_u32 s{S_T2}, s{S_T2}, s{S_T0}')
    a(f's_add_u32 s{S_T2}, s{S_T2}, {WS_Y1T}')
    for i in range(16):
        a(f's_add_u32 m0, s{S_T3}, {L_Y + i*1024}')
        a(f's_add_u32 s{S_T0}, s{S_T2}, {i*32768}')
        a(f'buffer_load_dwordx4 v{V_DM}, {ws}, s{S_T0} offen{SC} lds')
        thr()
    a(f's_lshl_b32 s{S_T0}, s{S_QG}, 8')
    a(f's_lshl_b32 s{S_T1}, s{S_NI}, 7')
    a(f's_add_u32 s{S_T0}, s{S_T0}, s{S_T1}')
    a(f's_add_u32 s{S_T0}, s{S_T0}, {WS_G}')
    a(f'buffer_load_dword v{V_GT}, v{V_GT}, {ws}, s{S_T0} offen{SC}')
    a('s_waitcnt vmcnt(0)')
    sync(F_J3)
    def lread(i, addr, second):
        a(f'ds_read_b64_tr_b16 {vr(LF+4*(i%8),2)}, v{addr} offset:{i*2048}')
        a(f'ds_read_b64_tr_b16 {vr(LF+4*(i%8)+2,2)}, v{addr} offset:{i*2048+second}')
    if PRI & 2: a('s_setprio 0')
    for i in range(6):
        lread(i, V_RY, 512)
    for i in range(32):
        if i >= NFR:
            a(f's_waitcnt vmcnt({31-i}) lgkmcnt({2*min(5, 31-i)})')
        else:
            a(f's_waitcnt lgkmcnt({2*min(5, 31-i)})')
        cc = vr(AB, 16) if i else '0'
        a(f'v_mfma_f32_32x32x16_bf16 {vr(AB,16)}, {vr(FR+4*(i%NFR),4)}, {vr(LF+4*(i%8),4)}, {cc}')
        if i + NFR < 32: fload(i + NFR)
        if i + 6 < 32: lread(i + 6, V_RY, 512)
    if PRI & 2: a('s_setprio 2')
    stamp(10)
    if E('NOHELP', 0) == 3:
        dump()
        a('s_endpgm')
    a(f's_sub_u32 s{S_T0}, s{S_HW}, 1')
    a(f's_cmp_gt_u32 s{S_T0}, 1')
    a('s_cbranch_scc1 KG_WOL')
    pg_wait(9, 2)
    wo_dma()
    a.label('KG_WOL')
    a('s_waitcnt vmcnt(0)')
    sync(F_J4)
    for i in range(6):
        lread(i, V_RA, 1024)
    stamp(4)
    lds_wait(F_ADONE, 1, V_U, sleep=4)
    a(f's_lshl_b32 s{S_T2}, s{S_QG}, 1')
    a(f's_add_u32 s{S_T2}, s{S_T2}, s{S_NI}')
    a(f's_lshl_b32 s{S_T1}, s{S_T2}, 11')
    a(f's_add_u32 s{S_T1}, s{S_T1}, {WS_FL4}')
    a(f's_lshl_b32 s{S_T2}, s{S_T2}, 15')
    a(f's_add_u32 s{S_T2}, s{S_T2}, {WS_O}')
    glob_poll('O', 0xffff, O_SLEEP, wide=False)
    stamp(11)
    def oload(i):
        if i % 4 == 0 and i:
            a(f's_add_u32 s{S_T2}, s{S_T2}, 4096')
        a(f'buffer_load_dwordx4 {vr(FR+4*(i%NFR),4)}, v{V_L16}, {ws}, s{S_T2} offen offset:{(i%4)*1024}{OSC}')
    for i in range(NFO):
        oload(i)
    if TST: stamp(1)
    for i in range(32):
        nout = (min(31, i + NFO - 1) - i)
        a(f's_waitcnt vmcnt({nout}) lgkmcnt({2*min(5, 31-i)})')
        if TST and i in (0, 16, 31):
            stamp({0: 2, 16: 3, 31: 5}[i]); a('s_waitcnt lgkmcnt(0)')
        cc = vr(AA, 16) if i else '0'
        a(f'v_mfma_f32_32x32x16_bf16 {vr(AA,16)}, {vr(LF+4*(i%8),4)}, {vr(FR+4*(i%NFR),4)}, {cc}')
        if i + NFO < 32: oload(i + NFO)
        if i + 6 < 32: lread(i + 6, V_RA, 1024)
    a('s_nop 11')
    for i in range(16):
        a(f'v_sub_f32 v{AA+i}, v{AA+i}, v{AB+i}')
        a(f'v_fma_f32 v{AA+i}, v{V_GT}, v{AA+i}, v{AB+i}')
    for i in range(8):
        a(f'v_cvt_pk_bf16_f32 v{LF+i}, v{AA+2*i}, v{AA+2*i+1}')
    for q in range(2):
        a(f'buffer_store_dwordx4 {vr(LF+4*q,4)}, v{V_OUT}, {sr(R_OUT,4)}, 0 offen offset:{16*q}')
    if TST: stamp(6)
    dump()
    a('s_endpgm')

    SG, SL, SD = 168, 176, 184
    a.label('KG_SPA')
    a(f's_mov_b32 s{S_T0}, {L_SP}')
    a(f's_mov_b32 s{S_T1}, {L_SPW}')
    for e in range(8):
        k_ = u(4 + (e & 1))
        a(f'v_sub_u32 {k_}, {2048 - 64*(e&3) - 1024*(e>>2)}, v{V_A3}')
        a(f'v_and_b32 {k_}, 2047, {k_}')
        a(f'v_lshl_add_u32 v{SL+e}, {k_}, 2, s{S_T0}')
        a(f'v_lshl_add_u32 v{SG+e}, {k_}, 3, s{S_T1}')
    a('s_branch KG_SPAR')
    a.label('KG_SPB')
    a(f's_mov_b32 s{S_C0}, 0x05040100')
    a(f's_mov_b32 s{S_C0+1}, 0x07060302')
    a(f's_mov_b32 s{S_T1}, {L_SPW}')
    a(f'v_lshl_add_u32 {u(4)}, v{V_A3}, 3, s{S_T1}')
    a('s_waitcnt vmcnt(0)')
    for e in range(8):
        for j, base in enumerate((V_W, V_XX)):
            a(f'v_perm_b32 v{SD+2*e+j}, v{base+12+(e>>1)}, v{base+4+(e>>1)}, s{S_C0+(e&1)}')
        a(f'ds_write_b64 {u(4)}, {vr(SD+2*e,2)} offset:{512*(e&3) + 8192*(e>>2)}')
    a('s_branch KG_SPBR')
    a.label('KG_SPECIAL')
    for e in range(8):
        a(f'ds_read_b64 {vr(SD+2*e,2)}, v{SG+e}')
    a(f'v_lshlrev_b32 {u(4)}, 2, v{V_A3}')
    a(f'v_add_u32 {u(6)}, {L_SP}, {u(4)}')
    for e in range(8):
        mt, r = e >> 2, e & 3
        a(f'ds_write2st64_b32 {u(6)}, v{V_AC+8*mt+r}, v{V_AC+8*mt+4+r} offset0:{16*mt+r} offset1:{32+16*mt+r}')
    a(f'v_mov_b32 {u(0)}, 1')
    a('s_waitcnt lgkmcnt(0)')
    a('s_mov_b64 exec, 1')
    a(f'ds_add_u32 v{V_Z}, {u(0)} offset:{4*F_SY2}')
    a('s_mov_b64 exec, -1')
    unpack(V_XX)
    for e in range(8):
        a0r, a0i, a1r, a1i = V_W + e, V_W + 8 + e, V_XX + e, V_XX + 8 + e
        b0r, b0i, b1r, b1i = SD + 16, SD + 2*e, SD + 17, SD + 2*e + 1
        a(f'v_lshlrev_b32 v{b0r}, 16, v{b0i}')
        a(f'v_lshlrev_b32 v{b1r}, 16, v{b1i}')
        a(f'v_and_b32 v{b0i}, 0xffff0000, v{b0i}')
        a(f'v_and_b32 v{b1i}, 0xffff0000, v{b1i}')
        a(f'v_add_f32 v{b0r}, v{a0r}, v{b0r}')
        a(f'v_sub_f32 v{b0i}, v{a0i}, v{b0i}')
        a(f'v_add_f32 v{b1r}, v{a1r}, v{b1r}')
        a(f'v_sub_f32 v{b1i}, v{a1i}, v{b1i}')
        a(f'v_add_f32 v{a0r}, v{b0r}, v{b1r}')
        a(f'v_add_f32 v{a0i}, v{b0i}, v{b1i}')
        a(f'v_sub_f32 v{a1r}, v{b0r}, v{b1r}')
        a(f'v_sub_f32 v{a1i}, v{b0i}, v{b1i}')
    lds_wait(F_SY2, 4, V_U, sleep=1)
    for e in range(8):
        a(f'ds_read2st64_b32 {vr(V_D+2*e,2)}, v{SL+e} offset0:0 offset1:32')
    a(f's_mov_b32 s{S_T0}, {f32_bits(0.125)}')
    for e in range(8):
        mt, r = e >> 2, e & 3
        zr_, zi_ = V_AC + 8*mt + r, V_AC + 8*mt + 4 + r
        pr, pi_, mr, mi = V_W + e, V_W + 8 + e, V_XX + e, V_XX + 8 + e
        znr, zni = V_D + 2*e, V_D + 2*e + 1
        rr, ri = SD + 2*e, SD + 2*e + 1
        a(f'v_mul_f32 v{rr}, v{zr_}, v{pr}')
        a(f'v_mul_f32 v{ri}, v{zr_}, v{pi_}')
        a(f'v_fma_f32 v{rr}, -v{zi_}, v{pi_}, v{rr}')
        a(f'v_fma_f32 v{ri}, v{zi_}, v{pr}, v{ri}')
        a(f's_waitcnt lgkmcnt({7-e})')
        a(f'v_fma_f32 v{rr}, v{znr}, v{mr}, v{rr}')
        a(f'v_fma_f32 v{ri}, v{znr}, v{mi}, v{ri}')
        a(f'v_fma_f32 v{rr}, v{zni}, v{mi}, v{rr}')
        a(f'v_fma_f32 v{ri}, -v{zni}, v{mr}, v{ri}')
        a(f'v_mul_f32 v{zr_}, s{S_T0}, v{rr}')
        a(f'v_mul_f32 v{zi_}, s{S_T0}, v{ri}')
    a('s_branch KG_STEP3')
    a.label('KG_END')
    a('s_endpgm')
    return 216, (102 if ST in (5, 6, 7) else NS)

def build_g(path):
    a = Asm()
    hdr = open(f'cdna_kernels/{NAME}.s.ref').read().split('\n')
    for l in hdr:
        if l.startswith(';') and '@launch' not in l and 'Override launch' not in l and 'grid=ceil' not in l:
            a.raw(l)
    kn = NAME + '_kernel'
    if E('PLAIN', 0):
        a.raw(f'; @launch grid=(256,1,1) block=(512,1,1) lds={KG_LDS}')
    else:
        a.raw(f'; @launch kernel={kn} grid=(256,1,1) block=(512,1,1) lds={KG_LDS}')
    a.raw('.amdgcn_target "amdgcn-amd-amdhsa--gfx950"')
    a.raw('.text')
    v, s = gen_g(a, kn)
    a.raw('.section .rodata,"a"')
    kernel_desc(a, kn, v, s)
    gen_tables(a)
    gen_k2.gen_tables_k2(a)
    gen_k3.gen_tables_k3(a)
    open(path, 'w').write(a.text())

if __name__ == '__main__':
    build_g(sys.argv[1] if len(sys.argv) > 1 else 'j.s')
```

```python
from gen import *
import gen_k2, gen_k3
from gen_k2 import YSCALE
import os

WS_ROOT = 0x240000
WS_FL1 = 0x244000
WS_FL2 = 0x248000
WS_FL3 = 0x24C000
WS_FL4 = 0x260000
TAG_M, TAG_C = 0x9E3779B1, 0x7F4A7C15
WS_XC = 0x250000
FORCE_GL = int(os.environ.get('FORCE_GL', '0'))
WS_KVT = 0x000000

L_X = 0
L_WQ = 65536
L_FLAG = 131072
L_KW = L_FLAG + 256
L_GATE = L_KW + 16384
KG_LDS = 163840
L_APR = L_KW; L_API = L_APR + 5120
L_CPR = L_API + 5120; L_CPI = L_CPR + 4608
L_MX = L_KW
L_MXM = L_KW + 20480
assert L_CPI + 4608 <= L_MXM and L_MX + 8 * 2304 <= L_MXM and L_MXM + 4096 <= KG_LDS and L_GATE + 1024 <= L_MXM
L_SP = L_WQ
L_SPW = L_X + 49152
L_WO = L_X
L_Y = L_WQ
F_CX, F_CW = 0, 1
F_CC, F_MG, F_MM, F_PG, F_QX = 0, 8, 16, 40, 48
L_QX = L_GATE + 1024
assert L_QX + 8192 <= KG_LDS
F_N, F_TAG, F_QDONE, F_J1, F_S1OK, F_SY0, F_SY1, F_SY2, F_J2, F_S2OK, F_J3, F_TAGOK, F_ADONE, F_J4, F_KVS, F_GI, F_PRE = range(24, 41)
F_PGW = 8
F_LOC = 14
F_POS, F_H2 = 12, 13
L_PRE = L_KW
NWAVE = 8
WS_G = 0x230000
E = lambda k, d: int(os.environ.get(k, str(d)))
LOAD_D = E('LOAD_D', 6)
KV_SLEEP = E('KV_SLEEP', 4)
O_SLEEP = E('O_SLEEP', 2)
THR = E('THR', 15)
LD_PRE = E('LD_PRE', 24)
KV_BAR = E('KV_BAR', 15)
FAIR = E('FAIR', 1)
KV_LAG = E('KV_LAG', 0)
TF_LAG = E('TF_LAG', 1)
WT_LAG = E('WT_LAG', 8)
G_DELAY = E('G_DELAY', 12)
Q7_SLEEP = E('Q7_SLEEP', 0)
H2_PD = E('H2_PD', 12)
KVSC = ' sc1' if E('KVSC1', 0) else ''
OSC = ' sc1' if E('OSC1', 0) else ''
SC = ' sc1'
POLL_LIMIT = 1 << 18
NSTAMP = 12
OF_STEP = E('OF_STEP', 12)
NFO = E('NFO', 10)
TST = E('TST', 0)
OST = '' if E('OPLAIN', 0) else ' sc1'
S1_SLEEP = E('S1_SLEEP', 4)
S2_SLEEP = E('S2_SLEEP', 8)
SPSC = ' sc1' if E('SPSC1', 0) else ''
KP_DELAY = E('KP_DELAY', 0)
PEEL_B = E('PEEL_B', 4)
PRI = E('PRI', 7)
LST = E('LST', 0)
OUTSC = {0: '', 1: ' sc1', 2: ' nt', 3: ' sc0 sc1', 4: ' sc1 nt'}[E('OUTSC', 0)]

def gen_g(a, name):
    kernel_header(a, name)
    S_X, S_WQ, S_WK, S_WV, S_WO, S_WS, S_WR, S_WI, S_GT, S_OUT = 4, 6, 8, 10, 12, 14, 16, 18, 20, 22
    R_X, R_WS, R_A, R_B, R_TB, R_OUT = 24, 28, 32, 36, 40, 44
    S_W, S_QG, S_HG, S_T0, S_T1, S_T2, S_T3, S_CNT, S_KOFF, S_KB, S_P, S_KH = 48, 49, 50, 51, 52, 53, 54, 55, 56, 57, 58, 59
    S_VM = 60; S_C0 = 62; S_C1 = 64
    S_CT, S_A, S_F, S_HW, S_MH, S_NH, S_SEEN, S_LIM, S_TAG = 3, 66, 67, 68, 69, 70, 71, 72, 73
    NS = 74
    SB = 74
    ws = sr(R_WS, 4); xs = sr(R_X, 4); ra = sr(R_A, 4); rb_ = sr(R_B, 4); tb = sr(R_TB, 4)
    TM = 's_memrealtime' if ST in (5, 7) else 's_memtime'
    duid = [0]
    def stamp(i):
        if ST in (5, 6, 7):
            a(f'{TM} s[{SB+2*i}:{SB+1+2*i}]')
    def dump(kind=0):
        n = NSTAMP
        if ST == 7:
            duid[0] += 1
            a('s_waitcnt vmcnt(0)')
            a(f'{TM} s[{SB+2*n}:{SB+1+2*n}]')
            a(f's_load_dwordx2 s[{R_A}:{R_A+1}], s[0:1], 80')
            a(f's_mov_b32 s{R_A+2}, 256')
            a(f's_mov_b32 s{R_A+3}, 0x20000')
            a('s_waitcnt lgkmcnt(0)')
            a('s_mov_b64 exec, 1')
            a('v_mov_b32 v0, 0')
            a(f's_cmp_lg_u32 s{S_W}, {4 if kind else 0}')
            a(f's_cbranch_scc1 KG_DD{duid[0]}')
            if kind:
                a(f's_not_b32 s{S_T0}, s{SB}')
                a(f'v_mov_b32 v2, s{S_T0}')
                a(f'buffer_atomic_umax v2, v0, {ra}, 0 offen offset:0')
                L = [(2, 0), (3, 2), (4, 3), (5, 4), (6, 5), (7, 12)]
            else:
                a(f'v_mov_b32 v2, s{SB+24}')
                a(f'buffer_atomic_umax v2, v0, {ra}, 0 offen offset:4')
                L = [(8, 3), (9, 5), (10, 6), (11, 7), (12, 8), (13, 9), (14, 11), (15, 12)]
            for k, (sl, st_) in enumerate(L):
                a(f'v_mov_b32 v{3+k}, s{SB+2*st_}')
                a(f'buffer_atomic_add v{3+k}, v0, {ra}, 0 offen offset:{4*sl}')
            a.label(f'KG_DD{duid[0]}')
        if ST in (5, 6):
            a('s_waitcnt vmcnt(0)')
            a(f'{TM} s[{SB+2*n}:{SB+1+2*n}]')
            a('s_mov_b64 exec, 1')
            a(f's_lshl_b32 s{S_T0}, s2, 4')
            a(f's_add_u32 s{S_T0}, s{S_T0}, s{S_W}')
            a(f's_lshl_b32 s{S_T0}, s{S_T0}, 6')
            a(f's_add_u32 s{S_T0}, s{S_T0}, {0xC00000}')
            a('s_waitcnt lgkmcnt(0)')
            a(f's_mov_b32 s{R_WS+2}, 0x1000000')
            a('v_mov_b32 v0, 0')
            if LST and kind:
                a('s_mov_b64 exec, 0xffff')
                a('v_mbcnt_lo_u32_b32 v3, -1, 0')
                a('v_lshlrev_b32 v3, 2, v3')
                a(f'v_add_u32 v3, 0x100000, v3')
                a(f'buffer_store_dword v{192+23}, v3, {ws}, s{S_T0} offen')
                a('s_mov_b64 exec, 1')
            for i in range(n + 1):
                a(f'v_mov_b32 v2, s{SB+2*i}')
                a(f'buffer_store_dword v2, v0, {ws}, s{S_T0} offen offset:{4*i}')
                a('s_nop 1')

    a('s_cmp_ge_u32 s2, 256')
    a('s_cbranch_scc1 KG_END')
    if ST in (5, 6, 7):
        for i in range(NSTAMP + 1):
            a(f's_mov_b32 s{SB+2*i}, 0')
    stamp(0)
    a(f's_load_dwordx8 s[{S_X}:{S_X+7}], s[0:1], 0')
    a(f's_load_dwordx2 s[{S_WS}:{S_WS+1}], s[0:1], 88')
    a(f's_load_dwordx4 s[{S_GT}:{S_GT+3}], s[0:1], 64')
    a(f's_load_dwordx2 s[{S_WO}:{S_WO+1}], s[0:1], 32')
    a(f's_load_dwordx4 s[{S_WR}:{S_WR+3}], s[0:1], 48')
    a('v_lshrrev_b32 v1, 6, v0')
    a('v_and_b32 v0, 63, v0')
    a(f's_and_b32 s{S_T0}, s2, 7')
    a(f'v_readfirstlane_b32 s{S_W}, v1')
    a(f's_lshl_b32 s{S_T0}, s{S_T0}, 2')
    a(f's_lshr_b32 s{S_QG}, s2, 6')
    a(f's_add_u32 s{S_QG}, s{S_QG}, s{S_T0}')
    a(f's_bfe_u32 s{S_HG}, s2, 0x30003')
    a(f's_mov_b32 s{S_LIM}, {1<<21}')
    V_Z = 7
    a(f'v_mov_b32 v{V_Z}, {L_FLAG}')
    a(f's_cmp_lg_u32 s{S_W}, 0')
    a('s_cbranch_scc1 KG_B0')
    a(f'v_lshl_add_u32 v2, v0, 2, v{V_Z}')
    a('v_mov_b32 v3, 0')
    a('ds_write_b32 v2, v3')
    a('s_waitcnt lgkmcnt(0)')
    a.label('KG_B0')
    a(f's_cmp_lt_u32 s{S_W}, 4')
    a('s_cbranch_scc1 KG_HELP')

    uid = [0]
    def lds_wait(flag, val, vtmp, sleep=1, addr=None, sdst=None):
        uid[0] += 1; u = uid[0]
        addr = V_Z if addr is None else addr
        sdst = S_T0 if sdst is None else sdst
        a.label(f'KG_LW{u}')
        a(f'ds_read_b32 v{vtmp}, v{addr} offset:{4*flag}')
        a('s_waitcnt lgkmcnt(0)')
        a(f'v_readfirstlane_b32 s{sdst}, v{vtmp}')
        a(f's_cmp_ge_u32 s{sdst}, {val}')
        a(f's_cbranch_scc1 KG_LD{u}')
        a(f's_sleep {sleep}')
        a(f's_sub_u32 s{S_LIM}, s{S_LIM}, 1')
        a(f's_cbranch_scc0 KG_LW{u}')
        a(f's_mov_b32 s{S_LIM}, 0')
        a.label(f'KG_LD{u}')
    def lds_add(flag, vtmp):
        a(f'v_mov_b32 v{vtmp}, 1')
        a('s_mov_b64 exec, 1')
        a(f'ds_add_u32 v{V_Z}, v{vtmp} offset:{4*flag}')
        a('s_mov_b64 exec, -1')
    def get_tag(vtmp):
        a(f'ds_read_b32 v{vtmp}, v{V_Z} offset:{4*F_TAG}')
        a('s_waitcnt lgkmcnt(0)')
        a(f'v_readfirstlane_b32 s{S_TAG}, v{vtmp}')

    V_OQ, V_OV = 2, 3
    V_M = 4
    V_H = 6
    V_Q = 8
    V_S = 16
    V_P = 48
    V_O = 64
    V_K = 96
    V_V = 128
    V_T = 192
    S_N = S_KH
    V_PGA, V_PGV, V_LK = V_T + 16, V_T + 17, V_T + 18
    a('s_setprio 1')
    a(f's_and_b32 s{S_CT}, s{S_W}, 1')
    a(f's_bfe_u32 s{S_A}, s{S_W}, 0x10001')
    a(f's_mov_b32 s{S_N}, 0')
    a('v_and_b32 v1, 31, v0')
    a(f'v_lshrrev_b32 v{V_H}, 5, v0')
    V_XA = V_T
    V_WA = V_T + 4
    t = lambda i: f'v{V_T+8+i}'
    a(f'v_bfe_u32 {t(0)}, v0, 1, 3')
    a(f's_lshl_b32 s{S_T0}, s{S_A}, 12')
    a(f'v_lshlrev_b32 {t(1)}, 7, v1')
    a(f'v_add_u32 {t(1)}, s{S_T0}, {t(1)}')
    for ks in range(4):
        a(f'v_add_u32 {t(2)}, {2*ks}, v{V_H}')
        a(f'v_xor_b32 {t(2)}, {t(2)}, {t(0)}')
        a(f'v_lshl_add_u32 v{V_XA+ks}, {t(2)}, 4, {t(1)}')
    a(f'v_bfe_u32 {t(0)}, v0, 2, 2')
    a(f'v_and_b32 {t(1)}, 3, v0')
    a(f'v_bfe_u32 {t(2)}, v0, 4, 1')
    a(f'v_lshl_add_u32 {t(3)}, v{V_H}, 3, {t(0)}')
    a(f'v_lshlrev_b32 {t(3)}, 7, {t(3)}')
    a(f'v_lshrrev_b32 {t(4)}, 1, {t(1)}')
    a(f'v_and_b32 {t(5)}, 1, {t(1)}')
    a(f'v_lshrrev_b32 {t(6)}, 1, {t(0)}')
    a(f'v_lshlrev_b32 {t(6)}, 2, {t(6)}')
    a(f'v_lshl_add_u32 {t(7)}, {t(2)}, 1, {t(4)}')
    a(f's_lshl_b32 s{S_T0}, s{S_CT}, 2')
    a(f'v_add_u32 {t(7)}, s{S_T0}, {t(7)}')
    a(f'v_xor_b32 {t(7)}, {t(7)}, {t(6)}')
    a(f'v_lshl_add_u32 {t(7)}, {t(7)}, 4, {t(3)}')
    a(f'v_lshl_add_u32 v{V_WA}, {t(5)}, 3, {t(7)}')
    a(f'v_add_u32 v{V_WA}, {L_WQ}, v{V_WA}')
    a(f'v_lshlrev_b32 v{V_OQ}, 4, v0')
    a(f'v_add_u32 v{V_LK}, {L_PRE}, v{V_OQ}')
    a(f's_lshl_b32 s{S_T0}, s{S_W}, 2')
    a(f'v_add_u32 v{V_PGA}, s{S_T0}, v{V_Z}')
    a(f'v_mov_b32 v{V_PGV}, 1')
    a(f's_mov_b32 s{S_VM}, 0xffff')
    a(f's_mov_b32 s{S_VM+1}, 0xffff')
    a(f'v_and_b32 {t(0)}, 27, v1')
    a(f'v_cmp_eq_u32 vcc, 16, {t(0)}')
    a(f'v_mov_b32 {t(1)}, 0x3f803f80')
    a(f'v_mov_b32 v{V_M}, 0')
    a(f'v_mov_b32 v{V_M+1}, 0')
    a(f'v_cndmask_b32 {t(1)}, 0, {t(1)}, vcc')
    for i in range(64):
        a(f'v_mov_b32 v{V_V+i}, {t(1)}')
    QA = V_S
    QB = (V_O, V_S + 16)
    a(f's_mov_b32 s{S_SEEN}, 0')
    a('s_waitcnt lgkmcnt(0)')
    srd(a, R_WS, S_WS, WS_SIZE)
    a('s_barrier')
    stamp(1)
    def q_wait(c):
        a(f's_cmp_gt_u32 s{S_SEEN}, {c}')
        a(f's_cbranch_scc1 KG_QG{c}')
        a.label(f'KG_QP{c}')
        a(f'ds_read_b64 {vr(V_T+8,2)}, v{V_Z} offset:{4*F_CX}')
        a('s_waitcnt lgkmcnt(0)')
        a(f'v_min_u32 {t(0)}, {t(0)}, {t(1)}')
        a('s_nop 0')
        a(f'v_readfirstlane_b32 s{S_SEEN}, {t(0)}')
        a(f's_cmp_gt_u32 s{S_SEEN}, {c}')
        a(f's_cbranch_scc1 KG_QG{c}')
        if c < 7 or Q7_SLEEP:
            a('s_sleep 1')
        a(f's_sub_u32 s{S_LIM}, s{S_LIM}, 1')
        a(f's_cbranch_scc0 KG_QP{c}')
        a(f's_mov_b32 s{S_LIM}, 0')
        a.label(f'KG_QG{c}')
    def q_reads(c):
        b = QB[c & 1]
        for ks in range(4):
            a(f'ds_read_b128 {vr(b+4*ks,4)}, v{V_XA+ks} offset:{c*8192}')
            a(f'ds_read_b64_tr_b16 {vr(b+16+4*ks,2)}, v{V_WA} offset:{c*8192+ks*2048}')
            a(f'ds_read_b64_tr_b16 {vr(b+16+4*ks+2,2)}, v{V_WA} offset:{c*8192+ks*2048+512}')
    for c in range(8):
        q_wait(c); q_reads(c)
        b = QB[c & 1]
        for ks in range(4):
            a(f's_waitcnt lgkmcnt({9 - 3*ks})')
            cc = vr(QA, 16) if (c or ks) else '0'
            a(f'v_mfma_f32_32x32x16_bf16 {vr(QA,16)}, {vr(b+16+4*ks,4)}, {vr(b+4*ks,4)}, {cc}')
    def progress():
        a(f'ds_write_b32 v{V_PGA}, v{V_PGV} offset:{4*(F_PGW-4)}')
    progress()
    stamp(2)
    spins = []
    def pre_check(n):
        uid[0] += 1; u = uid[0]
        a(f's_cmp_lt_u32 s{S_N}, {n}')
        a(f's_cbranch_scc1 KG_SP{u}')
        a.label(f'KG_SR{u}')
        spins.append(('pre', u, n))
    def pos_check():
        uid[0] += 1; u = uid[0]
        a(f's_cmp_lt_u32 s{S_KOFF}, s{S_KB}')
        a(f's_cbranch_scc1 KG_SP{u}')
        a.label(f'KG_SR{u}')
        spins.append(('q', u, 0))
    def emit_spins():
        for kind, u, n in spins:
            a.label(f'KG_SP{u}')
            if kind == 'pre':
                a(f'ds_read_b32 v{V_T+8}, v{V_Z} offset:{4*F_PRE}')
                a('s_waitcnt lgkmcnt(0)')
                a(f'v_readfirstlane_b32 s{S_N}, v{V_T+8}')
                a(f's_cmp_ge_u32 s{S_N}, {n}')
                a(f's_cbranch_scc1 KG_SR{u}')
            else:
                a(f'ds_read_b32 v{V_T+8}, v{V_Z} offset:{4*F_POS}')
                a('s_waitcnt lgkmcnt(0)')
                a(f'v_readfirstlane_b32 s{S_KOFF}, v{V_T+8}')
                a(f's_cmp_ge_u32 s{S_KOFF}, s{S_KB}')
                a(f's_cbranch_scc1 KG_SR{u}')
                a('s_sleep 1')
            a(f's_sub_u32 s{S_LIM}, s{S_LIM}, 1')
            a(f's_cbranch_scc0 KG_SP{u}')
            a(f's_mov_b32 s{S_LIM}, 0')
            a(f's_branch KG_SR{u}')
        spins.clear()

    def load_k(slot, off):
        a(f'buffer_load_dwordx4 {vr(V_K+4*slot,4)}, v{V_OQ}, {ws}, s{S_KOFF} offen offset:{off}{KVSC}')
    def kv_group(c, adv=True):
        load_k(c & 7, 0)
        load_k((c + 1) & 7, 2048)
        a(f's_mov_b64 exec, s[{S_VM}:{S_VM+1}]')
        for j in range(2):
            sl = (c + j) & 7
            a(f'buffer_load_dwordx4 {vr(V_V+8*sl,4)}, v{V_OQ}, {ws}, s{S_KOFF} offen offset:{2048*j+1024}{KVSC}')
            a(f'buffer_load_dwordx4 {vr(V_V+8*sl+4,4)}, v{V_OQ}, {ws}, s{S_KOFF} offen offset:{2048*j+1280}{KVSC}')
        a('s_mov_b64 exec, -1')
        if adv:
            a(f's_add_u32 s{S_KOFF}, s{S_KOFF}, 4096')
    def pre_reads(c, n=1):
        for j in range(c, c + n):
            a(f'ds_read_b128 {vr(V_K+4*j,4)}, v{V_LK} offset:{2048*j}')
        a(f's_mov_b64 exec, s[{S_VM}:{S_VM+1}]')
        for j in range(c, c + n):
            a(f'ds_read_b128 {vr(V_V+8*j,4)}, v{V_LK} offset:{2048*j+1024}')
            a(f'ds_read_b128 {vr(V_V+8*j+4,4)}, v{V_LK} offset:{2048*j+1280}')
        a('s_mov_b64 exec, -1')
    def mfma_s(t_, slot):
        a(f'v_mfma_f32_32x32x16_bf16 {vr(V_S+16*t_,16)}, {vr(V_K+4*slot,4)}, {vr(V_Q+4*t_,4)}, 0')
    def mfma_pv(t_, slot, pp, zero=False):
        cc = '0' if zero else vr(V_O+16*t_, 16)
        a(f'v_mfma_f32_32x32x16_bf16 {vr(V_O+16*t_,16)}, {vr(V_V+8*slot+4*pp,4)}, {vr(V_P+8*t_+4*pp,4)}, {cc}')
    def cv(t_, i):
        a(f'v_cvt_pk_bf16_f32 v{V_P+8*t_+i}, v{V_S+16*t_+2*i}, v{V_S+16*t_+2*i+1}')

    def body(sub, peel, lds):
        def ex(t_, i):
            r = V_S + 16*t_ + i
            if sub:
                a(f'v_sub_f32 v{r}, v{r}, v{V_M+t_}')
            a(f'v_exp_f32 v{r}, v{r}')
        for b in range(8):
            for t_ in range(2):
                if peel and t_ == 0 and LST:
                    a('s_memtime s[100:101]')
                ex(t_, 0); ex(t_, 1)
                if t_ == 1:
                    mfma_pv(0, b, 1)
                elif not (peel and b == 0):
                    mfma_pv(1, (b - 1) & 7, 1)
                if peel and t_ == 0 and b < 7:
                    pre_check(b + 2)
                    pre_reads(b + 1)
                ex(t_, 2); ex(t_, 3); ex(t_, 4); ex(t_, 5)
                if t_ == 1:
                    if peel or (lds and b in (1, 7)):
                        a('s_waitcnt lgkmcnt(0)')
                    elif not lds and b & 1:
                        a('s_waitcnt vmcnt(12)')
                    if peel and LST:
                        a(f'v_writelane_b32 v{V_T+23}, s100, {8+b}')
                    mfma_s(0, (b + 1) & 7)
                    if lds and b == (6 if peel else 1):
                        progress()
                    if LST and lds and not peel and b == 1:
                        a(f'v_writelane_b32 v{V_T+23}, s100, m0')
                    if peel and b == 6:
                        pos_check()
                        pre_reads(0, 2)
                else:
                    mfma_s(1, b)
                    if peel and b == 6:
                        a(f'v_add_u32 v{V_PGV}, 1, v{V_PGV}')
                    if peel and b == 7:
                        pre_reads(2, 2)
                    if lds and not peel and b == 0:
                        pre_reads(4, 4)
                        a(f'v_add_u32 v{V_PGV}, 1, v{V_PGV}')
                    if lds and not peel and b == 4:
                        pos_check()
                        pre_reads(0, 4)
                    if not lds and b % 2 == 0:
                        kv_group(b + 6)
                ex(t_, 6); ex(t_, 7)
                cv(t_, 0); cv(t_, 1); cv(t_, 2); cv(t_, 3)
                if peel and b == 6 and t_ == 0:
                    a(f'v_add_u32 v{V_LK}, {L_WQ - L_PRE}, v{V_LK}')
                if lds and not peel and b == 3 and t_ == 0:
                    a(f'v_add_u32 v{V_LK}, 0x4000, v{V_LK}')
                    a(f's_add_u32 s{S_KB}, s{S_KB}, 1')
                    a(f'v_and_b32 v{V_LK}, 0x1ffff, v{V_LK}')
                ex(t_, 8); ex(t_, 9)
                mfma_pv(t_, b, 0, zero=(peel and b == 0))
                for i in range(10, 16):
                    ex(t_, i)
                cv(t_, 4); cv(t_, 5); cv(t_, 6); cv(t_, 7)

    def attn_pass(tag, sub, first):
        if first:
            pre_check(1)
            pre_reads(0)
            stamp(3)
            a('s_nop 4')
            for i in range(8):
                a(f'v_cvt_pk_bf16_f32 v{V_Q+i}, v{QA+2*i}, v{QA+2*i+1}')
            a('s_waitcnt lgkmcnt(0)')
            mfma_s(0, 0)
            a(f's_mov_b32 s{S_CNT}, 6')
            a(f's_mov_b32 s{S_KOFF}, 0')
            a(f's_mov_b32 s{S_KB}, 1')
            stamp(4)
            a('s_nop 4')
            body(False, True, True)
        else:
            a(f's_mov_b32 s{S_KOFF}, {WS_KV}')
            for c in range(0, 6, 2):
                kv_group(c)
            for i in range(32):
                a(f'v_mov_b32 v{V_O+i}, 0')
            for i in range(4):
                a(f'v_mov_b32 v{V_P+12+i}, 0')
            a('s_waitcnt vmcnt(12)')
            mfma_s(0, 0)
            a(f's_mov_b32 s{S_CNT}, 8')
            a('s_nop 10')
        a.label(f'KG_LOOP{tag}')
        if LST and first:
            a('s_memtime s[100:101]')
            a(f's_mov_b32 m0, s{S_CNT}')
        body(sub, False, first)
        a(f's_sub_u32 s{S_CNT}, s{S_CNT}, 1')
        a(f's_cmp_lg_u32 s{S_CNT}, 0')
        a(f's_cbranch_scc1 KG_LOOP{tag}')
        if first:
            last_body()
        else:
            mfma_pv(1, 7, 1)

    S_OA, S_FA, S_LOC, S_BAD = S_P, S_SEEN, S_MH, S_NH
    V_TG, V_ZR, V_PK, V_RC = V_T, V_T + 2, V_T + 4, V_T + 9
    outl = []
    def st2(ins):
        uid[0] += 1; k = uid[0]
        a(f's_cmp_eq_u32 s{S_LOC}, 1')
        a(f's_cbranch_scc0 KG_SG{k}')
        a(ins)
        a.label(f'KG_SH{k}')
        outl.append((k, ins))
    def rng(t_):
        a(f'v_cmp_le_f32 s[{S_C0}:{S_C0+1}], s{S_T0}, v{V_O+16*t_+8}')
        a(f'v_cmp_ge_f32 s[{S_C1}:{S_C1+1}], s{S_T1}, v{V_O+16*t_+8}')
        a(f'v_rcp_f32 v{V_RC}, v{V_O+16*t_+8}')
        a(f's_and_b64 s[{S_C0}:{S_C0+1}], s[{S_C0}:{S_C0+1}], s[{S_C1}:{S_C1+1}]')
        a(f's_cmp_eq_u64 s[{S_C0}:{S_C0+1}], -1')
    def o_store(t_):
        for i in range(8):
            a(f'v_mul_f32 v{V_O+16*t_+i}, v{V_RC}, v{V_O+16*t_+i}')
        for i in range(4):
            a(f'v_cvt_pk_bf16_f32 v{V_PK+i}, v{V_O+16*t_+2*i}, v{V_O+16*t_+2*i+1}')
        st2(f'buffer_store_dwordx4 {vr(V_PK,4)}, v{V_OQ}, {ws}, s{S_OA} offen offset:{1024*t_}')
    def o_flag(t_):
        a('s_mov_b64 exec, 1')
        st2(f'buffer_store_dword v{V_TG}, v{V_ZR}, {ws}, s{S_FA} offen offset:{4*t_}')
        a('s_mov_b64 exec, -1')
    def last_body():
        steps = [(0, c) for c in range(8)] + [(1, c) for c in range(8)]
        def pv(tile, buf, slot, pp):
            a(f'v_mfma_f32_32x32x16_bf16 {vr(V_O+16*tile,16)}, {vr(V_V+8*slot+4*pp,4)}, {vr(V_P+8*buf+4*pp,4)}, {vr(V_O+16*tile,16)}')
        def ex(p_, i):
            a(f'v_exp_f32 v{V_S+16*p_+i}, v{V_S+16*p_+i}')
        for n, (tile, c) in enumerate(steps):
            p_ = n & 1
            pt, pc = steps[n - 1] if n else (1, 7)
            ex(p_, 0); ex(p_, 1)
            pv(pt, 1 - p_, pc, 1)
            ex(p_, 2); ex(p_, 3); ex(p_, 4); ex(p_, 5)
            if n == 2:
                a('s_waitcnt lgkmcnt(0)')
            if n < 15:
                nt, nc = steps[n + 1]
                a(f'v_mfma_f32_32x32x16_bf16 {vr(V_S+16*(1-p_),16)}, {vr(V_K+4*nc,4)}, {vr(V_Q+4*nt,4)}, 0')
            if n == 0:
                pre_reads(4, 4)
                a(f'ds_read_b32 v{V_TG}, v{V_Z} offset:{4*F_TAG}')
                a(f'ds_read_b32 v{V_ZR}, v{V_Z} offset:{4*F_LOC}')
                a(f'v_add_u32 v{V_PGV}, 1, v{V_PGV}')
            if n == 2:
                progress()
                a(f'v_readfirstlane_b32 s{S_LOC}, v{V_ZR}')
                a(f'v_mov_b32 v{V_ZR}, 0')
            if n == 9:
                rng(0)
                a(f's_cselect_b32 s{S_BAD}, 0, 1')
                a('s_cbranch_scc0 KG_L9')
                o_store(0)
                a.label('KG_L9')
            if n == OF_STEP:
                a(f's_cmp_lg_u32 s{S_BAD}, 0')
                a('s_cbranch_scc1 KG_L12')
                a('s_waitcnt vmcnt(0)')
                o_flag(0)
                a(f'ds_write_b32 v{V_Z}, v{V_PGV} offset:{4*F_ADONE}')
                a.label('KG_L12')
            ex(p_, 6); ex(p_, 7)
            cv(p_, 0); cv(p_, 1); cv(p_, 2); cv(p_, 3)
            ex(p_, 8); ex(p_, 9)
            pv(tile, p_, c, 0)
            for i in range(10, 16):
                ex(p_, i)
            cv(p_, 4); cv(p_, 5); cv(p_, 6); cv(p_, 7)
        a('s_nop 1')
        pv(1, 1, 7, 1)

    a(f's_lshl_b32 s{S_T2}, s{S_QG}, 1')
    a(f's_add_u32 s{S_T2}, s{S_T2}, s{S_A}')
    a(f's_lshl_b32 s{S_T3}, s{S_HG}, 1')
    a(f's_add_u32 s{S_T3}, s{S_T3}, s{S_CT}')
    a(f's_lshl_b32 s{S_T2}, s{S_T2}, 4')
    a(f's_add_u32 s{S_T2}, s{S_T2}, s{S_T3}')
    a(f's_lshl_b32 s{S_FA}, s{S_T2}, 7')
    a(f's_add_u32 s{S_FA}, s{S_FA}, {WS_FL4}')
    a(f's_lshl_b32 s{S_OA}, s{S_T2}, 11')
    a(f's_add_u32 s{S_OA}, s{S_OA}, {WS_O}')
    a(f's_mov_b32 s{S_T0}, {f32_bits(2.0**-30)}')
    a(f's_mov_b32 s{S_T1}, {f32_bits(2.0**30)}')
    attn_pass('A', False, True)
    stamp(5)
    a('s_nop 12')
    rng(1)
    a('s_cbranch_scc0 KG_SLOW')
    a(f's_cmp_lg_u32 s{S_BAD}, 0')
    a('s_cbranch_scc1 KG_SLOW')
    a.label('KG_OUT')
    o_store(1)
    a('s_waitcnt vmcnt(0)')
    stamp(6)
    o_flag(1)
    dump(1)
    a('s_endpgm')
    emit_spins()

    a.label('KG_SLOW')
    lds_wait(F_N, 127, V_T + 8, sdst=S_T2)
    a('s_waitcnt vmcnt(0)')
    a(f'v_mov_b32 v{V_M}, 0xff800000')
    a(f'v_mov_b32 v{V_M+1}, 0xff800000')
    a(f's_mov_b32 s{S_KOFF}, {WS_KV}')
    a(f's_mov_b32 s{S_CNT}, 64')
    a.label('KG_MAXLOOP')
    load_k(0, 0)
    a(f's_add_u32 s{S_KOFF}, s{S_KOFF}, 2048')
    a('s_waitcnt vmcnt(0)')
    mfma_s(0, 0)
    mfma_s(1, 0)
    a('s_nop 12')
    for t_ in range(2):
        for i in range(8):
            a(f'v_max3_f32 v{V_M+t_}, v{V_S+16*t_+2*i}, v{V_S+16*t_+2*i+1}, v{V_M+t_}')
    a(f's_sub_u32 s{S_CNT}, s{S_CNT}, 1')
    a(f's_cmp_lg_u32 s{S_CNT}, 0')
    a('s_cbranch_scc1 KG_MAXLOOP')
    for t_ in range(2):
        a(f'v_mov_b32 v{V_T+4+t_}, v{V_M+t_}')
    a('s_nop 1')
    for t_ in range(2):
        a(f'v_permlane32_swap_b32 v{V_M+t_}, v{V_T+4+t_}')
    a('s_nop 1')
    for t_ in range(2):
        a(f'v_max_f32 v{V_M+t_}, v{V_M+t_}, v{V_T+4+t_}')
    attn_pass('B', True, False)
    a('s_nop 12')
    a(f'v_rcp_f32 v{V_RC}, v{V_O+8}')
    a('s_nop 0')
    o_store(0)
    a('s_waitcnt vmcnt(0)')
    o_flag(0)
    a(f'ds_write_b32 v{V_Z}, v{V_PGV} offset:{4*F_ADONE}')
    a(f'v_rcp_f32 v{V_RC}, v{V_O+24}')
    a('s_nop 0')
    a('s_branch KG_OUT')
    for k, ins in outl:
        a.label(f'KG_SG{k}')
        a(ins + SC)
        a(f's_branch KG_SH{k}')

    a.label('KG_HELP')
    a('s_setprio 2')
    V_I, V_G, V_L16, V_A1, V_A2, V_A3 = 1, 2, 3, 4, 5, 6
    V_U = 8
    u = lambda i: f'v{V_U+i}'
    a(f's_mov_b32 s{S_HW}, s{S_W}')
    a(f'v_and_b32 v{V_I}, 15, v0')
    a(f'v_lshrrev_b32 v{V_G}, 4, v0')
    a(f'v_lshlrev_b32 v{V_L16}, 4, v0')
    a(f's_lshl_b32 s{S_F}, s{S_HG}, 5')
    a(f's_add_u32 s{S_F}, s{S_F}, s{S_QG}')
    a('s_waitcnt lgkmcnt(0)')
    srd(a, R_X, S_X, 2048 * 1024)
    srd(a, R_WS, S_WS, WS_SIZE)
    a(f's_cmp_eq_u32 s{S_HW}, 0')
    a('s_cbranch_scc1 KG_KV')
    a(f's_cmp_eq_u32 s{S_HW}, 1')
    a('s_cbranch_scc1 KG_TAG')
    a('s_branch KG_H2')

    def pg_wait(val, sleep=2):
        uid[0] += 1; k = uid[0]
        a.label(f'KG_PW{k}')
        a(f'ds_read_b128 {vr(V_U+4,4)}, v{V_Z} offset:{4*F_PGW}')
        a('s_waitcnt lgkmcnt(0)')
        a(f'v_min3_u32 {u(4)}, {u(4)}, {u(5)}, {u(6)}')
        a(f'v_min_u32 {u(4)}, {u(4)}, {u(7)}')
        a('s_nop 0')
        a(f'v_readfirstlane_b32 s{S_T0}, {u(4)}')
        a(f's_cmp_ge_u32 s{S_T0}, {val}')
        a(f's_cbranch_scc1 KG_PD{k}')
        a(f's_sleep {sleep}')
        a(f's_sub_u32 s{S_LIM}, s{S_LIM}, 1')
        a(f's_cbranch_scc0 KG_PW{k}')
        a(f's_mov_b32 s{S_LIM}, 0')
        a.label(f'KG_PD{k}')
    def kv_dma(s_cls, s_lds):
        for q in range(4):
            a(f's_mov_b32 m0, s{s_lds}')
            a(f's_add_u32 s{s_lds}, s{s_lds}, 4096')
            for j in range(4):
                a(f'buffer_load_dwordx4 v{V_L16}, {ws}, s{s_cls} offen offset:{1024*j}{KVSC} lds')
            a(f's_add_u32 s{s_cls}, s{s_cls}, 4096')
    def thr():
        a(f's_waitcnt vmcnt({THR})')
    S_TGX = S_MH
    def flag_store(base, idx=None, stag=None):
        idx = f's{S_F}' if idx is None else idx
        stag = S_TAG if stag is None else stag
        a(f's_lshr_b32 s{S_T0}, {idx}, 2')
        a(f's_lshl_b32 s{S_T0}, s{S_T0}, 7')
        a(f's_and_b32 s{S_T1}, {idx}, 3')
        a(f's_lshl_b32 s{S_T1}, s{S_T1}, 2')
        a(f's_add_u32 s{S_T0}, s{S_T0}, s{S_T1}')
        a(f's_add_u32 s{S_T0}, s{S_T0}, {base}')
        a(f'v_mov_b32 {u(0)}, 0')
        a(f'v_mov_b32 {u(1)}, s{stag}')
        a('s_mov_b64 exec, 1')
        a(f'buffer_store_dword {u(1)}, {u(0)}, {ws}, s{S_T0} offen{SC}')
        a('s_mov_b64 exec, -1')
    def join_flag(cnt, n, base):
        uid[0] += 1; k = uid[0]
        a(f'v_mov_b32 {u(0)}, 1')
        a('s_waitcnt vmcnt(0)')
        a('s_mov_b64 exec, 1')
        a(f'ds_add_rtn_u32 {u(1)}, v{V_Z}, {u(0)} offset:{4*cnt}')
        a('s_mov_b64 exec, -1')
        a('s_waitcnt lgkmcnt(0)')
        a(f'v_readfirstlane_b32 s{S_T0}, {u(1)}')
        a(f's_cmp_lg_u32 s{S_T0}, {n-1}')
        a(f's_cbranch_scc1 KG_JN{k}')
        flag_store(base)
        a.label(f'KG_JN{k}')
    S_NQ, S_NEW, S_LB, S_QU, S_PUB = S_P, S_KH, S_KB, S_SEEN, S_KOFF
    def glob_poll(tag, execmask, sleep, wide=True, lsh=7):
        a(f's_mov_b32 s{S_CNT}, {POLL_LIMIT}')
        a(f'v_lshlrev_b32 {u(0)}, {lsh}, v0')
        if execmask == 0xffffffff:
            a('s_mov_b32 exec_hi, 0')
        else:
            a(f's_mov_b64 exec, {execmask}')
        a.label(f'KG_GP{tag}')
        if wide:
            a(f'buffer_load_dwordx4 {vr(V_U+4,4)}, {u(0)}, {ws}, s{S_T1} offen{SC}')
            a('s_waitcnt vmcnt(0)')
            for i in range(4):
                a(f'v_xor_b32 {u(4+i)}, s{S_TGX if tag == "KV" else S_TAG}, {u(4+i)}')
            a(f'v_or3_b32 {u(4)}, {u(4)}, {u(5)}, {u(6)}')
            a(f'v_or_b32 {u(4)}, {u(4)}, {u(7)}')
            if tag == 'KV':
                a(f'v_lshlrev_b32 {u(5)}, 4, {u(4)}')
                a(f'v_cmp_ne_u32 vcc, 0, {u(5)}')
            else:
                a(f'v_cmp_ne_u32 vcc, 0, {u(4)}')
        else:
            a(f'buffer_load_dword {u(4)}, {u(0)}, {ws}, s{S_T1} offen{SC}')
            a('s_waitcnt vmcnt(0)')
            a(f'v_cmp_ne_u32 vcc, s{S_TAG}, {u(4)}')
        a(f's_sub_u32 s{S_CNT}, s{S_CNT}, 1')
        a(f's_cbranch_scc1 KG_GD{tag}')
        if tag == 'KV':
            S_DN = S_VM
            a(f's_and_b64 s[{S_C0}:{S_C0+1}], exec, vcc')
            a(f's_or_b64 s[{S_C1}:{S_C1+1}], s[{S_C0}:{S_C0+1}], s[{S_DN}:{S_DN+1}]')
            a('s_mov_b64 exec, -1')
            a(f's_mov_b32 s{S_NEW}, 0')
            for c in range(8):
                m = 0xff << (8 * (c & 3))
                a(f's_and_b32 s{S_T0}, s{S_C1+(c>>2)}, {hex(m)}')
                a(f's_cselect_b32 s{S_T0}, 0, {hex(m)}')
                a(f's_cselect_b32 s{S_T2}, 0, {1 << c}')
                a(f's_or_b32 s{S_DN+(c>>2)}, s{S_DN+(c>>2)}, s{S_T0}')
                a(f's_or_b32 s{S_NEW}, s{S_NEW}, s{S_T2}')
            a('s_cbranch_scc0 KG_QE')
            a.label('KG_QL')
            a(f's_ff1_i32_b32 s{S_T0}, s{S_NEW}')
            a(f's_bitset0_b32 s{S_NEW}, s{S_T0}')
            a(f's_add_u32 s{S_NQ}, s{S_NQ}, 1')
            a(f's_cmp_gt_u32 s{S_NQ}, 4')
            a('s_cbranch_scc1 KG_QQ')
            a(f's_lshl_b32 s{S_T0}, s{S_T0}, 14')
            a(f's_add_u32 s{S_T0}, s{S_T0}, {WS_KV}')
            kv_dma(S_T0, S_LB)
            a('s_branch KG_QN')
            a.label('KG_QQ')
            a(f's_lshl_b32 s{S_QU}, s{S_QU}, 3')
            a(f's_or_b32 s{S_QU}, s{S_QU}, s{S_T0}')
            a.label('KG_QN')
            a(f's_cmp_lg_u32 s{S_NEW}, 0')
            a('s_cbranch_scc1 KG_QL')
            a(f's_min_u32 s{S_T2}, s{S_NQ}, 4')
            for k in (3, 2, 1, 0):
                a(f's_sub_i32 s{S_T0}, s{S_T2}, {k}')
                a(f's_cmp_gt_i32 s{S_T0}, s{S_PUB}')
                a(f's_cbranch_scc0 KG_QP{k}x')
                a(f's_mov_b32 s{S_PUB}, s{S_T0}')
                a(f'v_mov_b32 {u(1)}, s{S_T0}')
                a(f's_waitcnt vmcnt({16*k})')
                a(f'ds_write_b32 v{V_Z}, {u(1)} offset:{4*F_POS}')
                a.label(f'KG_QP{k}x')
            a.label('KG_QE')
            a(f's_and_b64 exec, s[{S_C0}:{S_C0+1}], s[{S_C0}:{S_C0+1}]')
        else:
            a('s_and_b64 exec, exec, vcc')
        a(f's_cbranch_scc0 KG_GD{tag}')
        a(f's_sleep {sleep}')
        a(f's_branch KG_GP{tag}')
        a.label(f'KG_GD{tag}')
        a('s_mov_b64 exec, -1')

    a.label('KG_KV')
    KX, KW, KA = 16, 80, 144
    S_RB, S_TY, S_KQ = S_P, S_KH, S_KB
    a(f's_mov_b32 s{S_KQ}, s{S_QG}')
    a(f's_lshr_b32 s{S_RB}, s{S_HG}, 1')
    a(f's_and_b32 s{S_TY}, s{S_HG}, 1')
    a(f's_cmp_eq_u32 s{S_TY}, 1')
    a(f's_cselect_b64 s[{S_C0}:{S_C0+1}], s[{S_WV}:{S_WV+1}], s[{S_WK}:{S_WK+1}]')
    srd(a, R_A, S_C0, 16384)
    srd(a, R_B, S_GT, 1024)
    a(f's_lshl_b32 s{S_T0}, s{S_RB}, 9')
    a(f's_add_u32 s{S_T0}, s{S_T0}, s{S_KQ}')
    a(f'v_lshlrev_b32 v{V_A1}, 5, v{V_I}')
    a(f'v_add_u32 v{V_A1}, s{S_T0}, v{V_A1}')
    a(f'v_lshlrev_b32 {u(0)}, 10, v{V_A1}')
    a(f'v_lshl_add_u32 {u(0)}, v{V_G}, 4, {u(0)}')
    for i in range(16):
        a(f's_mov_b32 m0, {L_KW + i*1024}')
        a(f's_movk_i32 s{S_T0}, {i*1024}')
        a(f'buffer_load_dwordx4 v{V_L16}, {ra}, s{S_T0} offen lds')
        a(f'buffer_load_dwordx4 {vr(KX+4*i,4)}, {u(0)}, {xs}, 0 offen offset:{64*i}')
        if i == KV_BAR:
            a('s_barrier')
            stamp(1)
    a(f's_mov_b32 m0, {L_GATE}')
    a('s_nop 0')
    a(f'buffer_load_dwordx4 v{V_L16}, {rb_}, 0 offen lds')
    a(f'v_bfe_u32 {u(1)}, v0, 2, 2')
    a(f'v_and_b32 {u(2)}, 3, v0')
    a(f'v_lshl_add_u32 {u(1)}, v{V_G}, 3, {u(1)}')
    a(f'v_lshlrev_b32 {u(1)}, 5, {u(1)}')
    a(f'v_lshl_add_u32 {u(1)}, {u(2)}, 3, {u(1)}')
    a(f'v_add_u32 v{V_A2}, {L_KW}, {u(1)}')
    a(f's_lshl_b32 s{S_T2}, s{S_QG}, 12')
    a(f's_lshr_b32 s{S_T0}, s{S_RB}, 1')
    a(f's_lshl_b32 s{S_T0}, s{S_T0}, 11')
    a(f's_add_u32 s{S_T2}, s{S_T2}, s{S_T0}')
    a(f's_and_b32 s{S_T0}, s{S_RB}, 1')
    a(f's_lshl_b32 s{S_T0}, s{S_T0}, 8')
    a(f's_add_u32 s{S_T2}, s{S_T2}, s{S_T0}')
    a(f's_lshl_b32 s{S_T0}, s{S_TY}, 10')
    a(f's_add_u32 s{S_T2}, s{S_T2}, s{S_T0}')
    a(f's_lshl_b32 s{S_T3}, s{S_T2}, 1')
    a(f's_add_u32 s{S_T2}, s{S_T2}, {WS_KV}')
    assert WS_KVT == 0
    a(f's_lshl_b32 s{S_KOFF}, s{S_QG}, 3')
    a(f's_add_u32 s{S_KOFF}, s{S_KOFF}, s{S_HG}')
    lds_wait(F_TAGOK, 1, V_U)
    get_tag(V_U)
    a(f'v_and_b32 {u(2)}, 1, v{V_G}')
    a(f'v_lshrrev_b32 {u(3)}, 1, v{V_G}')
    a(f'v_lshlrev_b32 {u(4)}, 9, {u(2)}')
    a(f'v_lshl_add_u32 {u(4)}, v{V_I}, 4, {u(4)}')
    a(f'v_lshl_add_u32 {u(4)}, {u(3)}, 3, {u(4)}')
    a(f'v_lshlrev_b32 {u(6)}, 1, {u(4)}')
    a(f'v_mov_b32 v{KA+10}, s{S_TAG}')
    a(f'v_mov_b32 v{KA+11}, s{S_TAG}')
    a(f'v_mov_b32 v{KA+12}, 1')
    a(f's_getreg_b32 s{S_T0}, hwreg(HW_REG_XCC_ID, 0, 4)')
    a(f's_lshl_b32 s{S_T0}, s{S_T0}, 28')
    a(f's_xor_b32 s{S_TGX}, s{S_TAG}, s{S_T0}')
    a(f's_mov_b32 s{S_T1}, {f32_bits(QSCALE)}')
    a('s_waitcnt vmcnt(1)')
    stamp(2)
    def kv_reads(ks):
        a(f'ds_read_b64_tr_b16 {vr(KW+4*ks,2)}, v{V_A2} offset:{ks*1024}')
        a(f'ds_read_b64_tr_b16 {vr(KW+4*ks+2,2)}, v{V_A2} offset:{ks*1024+128}')
    for ks in range(7):
        kv_reads(ks)
    a(f's_cmp_eq_u32 s{S_TY}, 1')
    a('s_cbranch_scc1 KG_KV1')
    for ty in range(2):
        if ty == 1:
            a.label('KG_KV1')
        for ks in range(16):
            n_out = min(6, 15 - ks)
            a(f's_waitcnt lgkmcnt({2*n_out})')
            cc = vr(KA + 4*(ks & 1), 4) if ks >= 2 else '0'
            if ty == 0:
                a(f'v_mfma_f32_16x16x32_bf16 {vr(KA+4*(ks&1),4)}, {vr(KW+4*ks,4)}, {vr(KX+4*ks,4)}, {cc}')
            else:
                a(f'v_mfma_f32_16x16x32_bf16 {vr(KA+4*(ks&1),4)}, {vr(KX+4*ks,4)}, {vr(KW+4*ks,4)}, {cc}')
            if ks + 7 < 16:
                kv_reads(ks + 7)
        a('s_nop 7')
        for i in range(4):
            a(f'v_add_f32 v{KA+i}, v{KA+i}, v{KA+4+i}')
        if ty == 0:
            for i in range(4):
                a(f'v_mul_f32 v{KA+i}, s{S_T1}, v{KA+i}')
        a(f'v_cvt_pk_bf16_f32 v{KA+8}, v{KA}, v{KA+1}')
        a(f'v_cvt_pk_bf16_f32 v{KA+9}, v{KA+2}, v{KA+3}')
        a(f'buffer_store_dwordx4 {vr(KA+8,4)}, {u(6)}, {ws}, s{S_T3} offen{SC}')
        a(f'buffer_store_dwordx2 {vr(KA+8,2)}, {u(4)}, {ws}, s{S_T2} offen{SC}')
        a(f'ds_write_b32 v{V_Z}, v{KA+12} offset:{4*F_KVS}')
        stamp(1)
        a('s_waitcnt vmcnt(0)')
        flag_store(WS_FL1, f's{S_KOFF}', S_TGX)
        stamp(3)
        if ty == 1:
            a('s_branch KG_KP')
        else:
            a(f'v_lshlrev_b32 {u(2)}, 4, v{V_G}')
            a(f'v_add_u32 {u(2)}, {L_GATE}, {u(2)}')
            for half in range(2):
                for k8 in range(8):
                    ks = 8*half + k8
                    a(f'ds_read_b128 {vr(KW+4*ks,4)}, {u(2)} offset:{64*ks}')
                for k8 in range(8):
                    ks = 8*half + k8
                    a(f's_waitcnt lgkmcnt({7-k8})')
                    cc = vr(KA, 4) if ks else '0'
                    a(f'v_mfma_f32_16x16x32_bf16 {vr(KA,4)}, {vr(KW+4*ks,4)}, {vr(KX+4*ks,4)}, {cc}')
            a(f's_lshl_b32 s{S_T0}, s{S_KQ}, 6')
            a(f's_lshr_b32 s{S_T1}, s{S_RB}, 1')
            a(f's_lshl_b32 s{S_T1}, s{S_T1}, 5')
            a(f's_add_u32 s{S_T0}, s{S_T0}, s{S_T1}')
            a(f's_and_b32 s{S_T1}, s{S_RB}, 1')
            a(f's_lshl_b32 s{S_T1}, s{S_T1}, 2')
            a(f's_add_u32 s{S_T0}, s{S_T0}, s{S_T1}')
            a(f's_lshl_b32 s{S_T0}, s{S_T0}, 2')
            a(f's_add_u32 s{S_T1}, s{S_T0}, {WS_G}')
            a(f'v_lshrrev_b32 {u(2)}, 2, v{V_I}')
            a(f'v_and_b32 {u(4)}, 3, v{V_I}')
            a(f'v_lshl_add_u32 {u(2)}, {u(2)}, 3, {u(4)}')
            a(f'v_lshlrev_b32 {u(2)}, 2, {u(2)}')
            a(f'v_cvt_pk_bf16_f32 {u(3)}, v{KA}, v{KA}')
            a(f'v_lshlrev_b32 {u(3)}, 16, {u(3)}')
            a(f's_mov_b32 s{S_T0}, {f32_bits(-math.log2(math.e))}')
            a(f'v_mul_f32 {u(3)}, s{S_T0}, {u(3)}')
            a(f'v_exp_f32 {u(3)}, {u(3)}')
            a('s_nop 0')
            a(f'v_add_f32 {u(3)}, 1.0, {u(3)}')
            a(f'v_rcp_f32 {u(3)}, {u(3)}')
            a('s_nop 0')
            a(f'v_cvt_pk_bf16_f32 {u(3)}, {u(3)}, {u(3)}')
            a(f'v_lshlrev_b32 {u(3)}, 16, {u(3)}')
            a('s_mov_b64 exec, 0xffff')
            a(f'buffer_store_dword {u(3)}, {u(2)}, {ws}, s{S_T1} offen{SC}')
            a('s_mov_b64 exec, -1')
            a('s_branch KG_KP')

    a.label('KG_TAG')
    a(f's_mov_b32 s{S_T3}, {WS_ROOT}')
    a(f'v_mov_b32 {u(2)}, 0')
    a(f'buffer_load_dword {u(3)}, {u(2)}, {ws}, s{S_T3} offen{SC}')
    a('s_barrier')
    stamp(1)
    a('s_waitcnt vmcnt(0)')
    a(f'v_readfirstlane_b32 s{S_TAG}, {u(3)}')
    a(f's_mul_i32 s{S_TAG}, s{S_TAG}, {TAG_M}')
    a(f's_add_u32 s{S_TAG}, s{S_TAG}, {TAG_C}')
    a(f'v_mov_b32 {u(1)}, 1')
    a(f'v_mov_b32 {u(3)}, s{S_TAG}')
    a(f'ds_write_b32 v{V_Z}, {u(3)} offset:{4*F_TAG}')
    a(f'ds_write_b32 v{V_Z}, {u(1)} offset:{4*F_TAGOK}')
    stamp(2)
    GR = 16
    V_GW, V_QW = V_A1, V_A2
    S_PEND, S_GB, S_DN = S_P, S_KH, S_VM
    a(f's_and_b32 s{S_T0}, s2, 7')
    a(f's_lshl_b32 s{S_GB}, s{S_T0}, 15')
    a(f's_movk_i32 s{S_PEND}, 0x1ff')
    a(f'v_lshlrev_b32 v{V_GW}, 3, v0')
    a(f'v_add_u32 v{V_GW}, {L_PRE}, v{V_GW}')
    lds_wait(F_KVS, 1, V_U + 4, sleep=1)
    if G_DELAY:
        a(f's_sleep {G_DELAY}')
    def g_loads(c, sc=SC):
        a(f's_add_u32 s{S_T0}, s{S_GB}, {c*4096}')
        for j in range(4):
            a(f'buffer_load_dwordx4 {vr(GR+16*c+4*j,4)}, v{V_L16}, {ws}, s{S_T0} offen offset:{1024*j}{sc}')
    def g_check(c, k):
        for j in range(4):
            a(f'v_cmpx_eq_u32 vcc, s{S_TAG}, v{GR+16*c+4*j+2}')
        a('s_cmp_eq_u64 exec, -1')
        a('s_mov_b64 exec, -1')
        a(f's_cbranch_scc0 KG_GF{k}_{c}')
        for j in range(4):
            a(f'ds_write_b64 v{V_GW}, {vr(GR+16*c+4*j,2)} offset:{2048*c+512*j}')
        a(f's_bitset0_b32 s{S_PEND}, {c}')
        a(f's_ff1_i32_b32 s{S_T0}, s{S_PEND}')
        a(f'v_mov_b32 {u(4)}, s{S_T0}')
        a(f'ds_write_b32 v{V_Z}, {u(4)} offset:{4*F_PRE}')
        a.label(f'KG_GF{k}_{c}')
    for c in range(8):
        g_loads(c, '' if E('G_PLAIN', 0) else SC)
    a(f'ds_write_b32 v{V_Z}, {u(1)} offset:{4*F_GI}')
    stamp(1)
    for c in range(8):
        a(f's_waitcnt vmcnt({4*(7-c)})')
        g_check(c, 0)
    stamp(5)
    a(f's_mov_b32 s{S_CNT}, {POLL_LIMIT}')
    a.label('KG_GR')
    a(f's_cmp_eq_u32 s{S_PEND}, 0x100')
    a('s_cbranch_scc1 KG_GE')
    for c in range(8):
        a(f's_bitcmp1_b32 s{S_PEND}, {c}')
        a(f's_cbranch_scc0 KG_GL{c}')
        g_loads(c)
        a.label(f'KG_GL{c}')
    a('s_waitcnt vmcnt(0)')
    for c in range(8):
        a(f's_bitcmp1_b32 s{S_PEND}, {c}')
        a(f's_cbranch_scc0 KG_GF1_{c}')
        g_check(c, 1)
    a(f's_sub_u32 s{S_CNT}, s{S_CNT}, 1')
    a('s_cbranch_scc0 KG_GR')
    a.label('KG_GE')
    stamp(6)
    a('s_branch KG_WT')
    a.label('KG_KP')
    a(f's_and_b32 s{S_T0}, s2, 7')
    a(f's_lshl_b32 s{S_T0}, s{S_T0}, 3')
    a(f's_mov_b64 s[{S_DN}:{S_DN+1}], 0xff')
    a(f's_lshl_b64 s[{S_DN}:{S_DN+1}], s[{S_DN}:{S_DN+1}], s{S_T0}')
    a(f's_mov_b32 s{S_NQ}, 0')
    a(f's_mov_b32 s{S_QU}, 0')
    a(f's_mov_b32 s{S_PUB}, 0')
    a(f's_mov_b32 s{S_LB}, {L_WQ}')
    pg_wait(1)
    a(f's_mov_b32 s{S_T1}, {WS_FL1}')
    if KP_DELAY:
        a(f's_sleep {KP_DELAY}')
    glob_poll('KV', -1, KV_SLEEP)
    a(f'v_mov_b32 {u(1)}, 127')
    a(f'ds_write_b32 v{V_Z}, {u(1)} offset:{4*F_N}')
    stamp(5)
    a(f's_lshl_b32 s{S_T0}, s{S_QG}, 1')
    a(f's_add_u32 s{S_T1}, s{S_T0}, 1')
    a(f'v_readlane_b32 s{S_T0}, {u(4)}, s{S_T0}')
    a(f'v_readlane_b32 s{S_T1}, {u(4)}, s{S_T1}')
    a('s_nop 1')
    a(f's_or_b32 s{S_T0}, s{S_T0}, s{S_T1}')
    a(f's_cmp_eq_u32 s{S_T0}, 0')
    a(f's_cselect_b32 s{S_T0}, {2 if FORCE_GL else 1}, 2')
    a(f'v_mov_b32 {u(4)}, s{S_T0}')
    a(f'ds_write_b32 v{V_Z}, {u(4)} offset:{4*F_LOC}')
    a('s_cmp_lg_u32 s2, 0')
    a('s_cbranch_scc1 KG_H3')
    a(f's_mov_b32 s{S_T3}, {WS_ROOT}')
    a(f'v_mov_b32 {u(2)}, 0')
    a(f'v_mov_b32 {u(3)}, s{S_TAG}')
    a('s_mov_b64 exec, 1')
    a(f'buffer_store_dword {u(3)}, {u(2)}, {ws}, s{S_T3} offen{SC}')
    a('s_mov_b64 exec, -1')
    a('s_branch KG_H3')

    a.label('KG_WT')
    if WT_LAG == 127:
        lds_wait(F_N, 127, V_U, sleep=2)
    elif WT_LAG == 100:
        lds_wait(F_POS, 1, V_U, sleep=2)
    elif WT_LAG:
        lds_wait(F_PRE, WT_LAG, V_U, sleep=2)
    S_FW, S_G4, S_PT = S_P, S_KH, S_KB
    a(f's_lshr_b32 s{S_FW}, s{S_QG}, 3')
    a(f's_bfe_u32 s{S_G4}, s{S_QG}, 0x20001')
    a(f's_and_b32 s{S_PT}, s{S_QG}, 1')
    a(f's_cmp_eq_u32 s{S_PT}, 1')
    a(f's_cselect_b64 s[{S_C0}:{S_C0+1}], s[{S_WI}:{S_WI+1}], s[{S_WR}:{S_WR+1}]')
    srd(a, R_A, S_C0, 2048 * 514)
    a(f's_lshl_b32 s{S_T3}, s{S_FW}, 4')
    a(f's_lshl_b32 s{S_T1}, s{S_G4}, 8')
    a(f's_add_u32 s{S_T1}, s{S_T1}, s{S_T3}')
    a(f'v_add_u32 {u(2)}, s{S_T1}, v{V_I}')
    a(f'v_mul_u32_u24 {u(2)}, 514, {u(2)}')
    a(f'v_lshl_add_u32 {u(2)}, v{V_G}, 4, {u(2)}')
    a(f's_lshl_b32 s{S_T1}, s{S_HG}, 6')
    a(f'v_add_u32 {u(2)}, s{S_T1}, {u(2)}')
    a(f'v_and_b32 {u(4)}, 2, {u(2)}')
    a(f'v_and_b32 {u(2)}, -4, {u(2)}')
    for e in range(8):
        a(f's_mov_b32 s{S_T0}, {(16*(e>>2)+(e&3))*32896}')
        a(f'buffer_load_dwordx4 {vr(16+4*e,4)}, {u(2)}, {ra}, s{S_T0} offen')
        a(f'buffer_load_dword v{96+e}, {u(2)}, {ra}, s{S_T0} offen offset:16')
    a(f's_or_b32 s{S_KOFF}, s{S_HG}, s{S_G4}')
    a(f's_cmp_lg_u32 s{S_KOFF}, 0')
    a('s_cbranch_scc1 KG_WT1')
    a(f'v_lshl_add_u32 {u(3)}, v{V_G}, 8, v{V_I}')
    a(f'v_add_u32 {u(3)}, s{S_T3}, {u(3)}')
    a(f'v_mul_u32_u24 {u(3)}, 514, {u(3)}')
    for e in range(8):
        a(f's_mov_b32 s{S_T0}, {(16*(e>>2)+(e&3))*32896}')
        a(f'buffer_load_ushort v{80+e}, {u(3)}, {ra}, s{S_T0} offen offset:512')
    a.label('KG_WT1')
    a(f's_mov_b32 s{S_C0}, 0x05040100')
    a(f's_mov_b32 s{S_C0+1}, 0x07060302')
    a(f'v_lshlrev_b32 {u(2)}, 16, v{V_G}')
    a(f'v_lshl_add_u32 {u(2)}, v{V_I}, 4, {u(2)}')
    a(f's_lshl_b32 s{S_T1}, s{S_HG}, 18')
    a(f's_lshl_b32 s{S_T2}, s{S_FW}, 11')
    a(f's_lshl_b32 s{S_T0}, s{S_PT}, 10')
    a(f's_add_u32 s{S_T2}, s{S_T2}, s{S_T0}')
    a(f's_add_u32 s{S_T2}, s{S_T2}, {WS_WT}')
    a(f's_add_u32 s{S_T1}, s{S_T1}, s{S_T2}')
    a(f's_lshl_b32 s{S_T0}, s{S_G4}, 8')
    a(f's_add_u32 s{S_T1}, s{S_T1}, s{S_T0}')
    a('s_waitcnt vmcnt(0)')
    stamp(3)
    for e in range(8):
        for j in range(4):
            hi = 16 + 4*e + j + 1 if j < 3 else 96 + e
            a(f'v_alignbyte_b32 v{16+4*e+j}, v{hi}, v{16+4*e+j}, {u(4)}')
    for ph in range(8):
        for q in range(4):
            lo = 16 + 4*(2*q) + (ph >> 1); hi = 16 + 4*(2*q+1) + (ph >> 1)
            a(f'v_perm_b32 v{48+4*ph+q}, v{hi}, v{lo}, s{S_C0+(ph&1)}')
    for ph in range(8):
        a(f's_add_u32 s{S_T0}, s{S_T1}, {8192*ph}')
        if not E('WT_NOST', 0): a(f'buffer_store_dwordx4 {vr(48+4*ph,4)}, {u(2)}, {ws}, s{S_T0} offen{SC}')
    a(f's_cmp_lg_u32 s{S_KOFF}, 0')
    a('s_cbranch_scc1 KG_J1')
    for q in range(4):
        a(f'v_lshl_or_b32 v{88+q}, v{81+2*q}, 16, v{80+2*q}')
    a(f's_add_u32 s{S_T0}, s{S_T2}, {256*8192}')
    a(f'buffer_store_dwordx4 {vr(88,4)}, v{V_L16}, {ws}, s{S_T0} offen{SC}')
    a('s_branch KG_J1')

    a.label('KG_H2')
    HT, HX, HA = 16, 64, 128
    table_srd(a, R_TB, 'TAB_F', 512 * 1024, 'f')
    a(f's_and_b32 s{S_CT}, s{S_HW}, 1')
    a(f's_lshl_b32 s{S_T2}, s{S_HG}, 16')
    a(f's_lshl_b32 s{S_T0}, s{S_CT}, 10')
    a(f's_add_u32 s{S_T2}, s{S_T2}, s{S_T0}')
    a(f's_mov_b32 s{S_KOFF}, s{S_T2}')
    a(f'v_lshrrev_b32 {u(0)}, 3, v0')
    a(f'v_and_b32 {u(1)}, 7, v0')
    a(f's_cmp_eq_u32 s{S_HW}, 3')
    a('s_cbranch_scc1 KG_LDW')
    def loader(rs, soff, cstep, lbase, vo, flag):
        a(f's_mov_b32 s{S_T2}, 0')
        a(f's_mov_b32 s{S_T3}, {lbase}')
        if LD_PRE == 0:
            a('s_barrier')
            stamp(1)
        HD = 8 * LOAD_D // 2
        n = 0
        pub = 0
        for c in range(8):
            for w in range(8):
                a(f's_add_u32 m0, s{S_T3}, {w*1024}')
                a(f's_add_u32 s{S_T0}, s{S_T2}, {soff(w)}')
                a(f'buffer_load_dwordx4 {vo(w)}, {rs}, s{S_T0} offen lds')
                n += 1
                if n == LD_PRE:
                    a('s_barrier')
                    stamp(1)
                if n % 4 == 0 and n > HD:
                    a(f's_waitcnt vmcnt({HD})')
                    if (n - HD) // 8 > pub:
                        pub = (n - HD) // 8
                        a(f'v_mov_b32 {u(6)}, {pub}')
                        a(f'ds_write_b32 v{V_Z}, {u(6)} offset:{4*flag}')
            if c < 7:
                a(f's_add_u32 s{S_T2}, s{S_T2}, {cstep}')
                a(f's_add_u32 s{S_T3}, s{S_T3}, 8192')
        for c in range(pub, 8):
            a(f's_waitcnt vmcnt({8*(7-c)})')
            a(f'v_mov_b32 {u(6)}, {c + 1}')
            a(f'ds_write_b32 v{V_Z}, {u(6)} offset:{4*flag}')
    a(f'v_lshrrev_b32 {u(2)}, 2, {u(0)}')
    a(f'v_and_b32 {u(3)}, 3, {u(0)}')
    a(f'v_lshl_add_u32 {u(2)}, {u(2)}, 4, {u(3)}')
    a(f'v_lshlrev_b32 {u(2)}, 15, {u(2)}')
    a(f's_lshl_b32 s{S_T0}, s{S_QG}, 10')
    a(f'v_add_u32 {u(2)}, s{S_T0}, {u(2)}')
    a(f'v_xor_b32 {u(3)}, v{V_G}, {u(1)}')
    a(f'v_lshl_add_u32 {u(4)}, {u(3)}, 4, {u(2)}')
    a(f'v_xor_b32 {u(3)}, 4, {u(3)}')
    a(f'v_lshl_add_u32 {u(5)}, {u(3)}, 4, {u(2)}')
    loader(xs, lambda w: (32*(w >> 2) + 4*(w & 3)) * 32768, 128, L_X, lambda w: u(4 + (w & 1)), F_CX)
    a('s_branch KG_H2B')
    a.label('KG_LDW')
    srd(a, R_A, S_WQ, 512 * 1024)
    a(f'v_and_b32 {u(2)}, 1, v{V_G}')
    a(f'v_lshlrev_b32 {u(2)}, 2, {u(2)}')
    a(f'v_xor_b32 {u(2)}, {u(2)}, {u(1)}')
    a(f'v_lshlrev_b32 {u(2)}, 4, {u(2)}')
    a(f'v_lshl_add_u32 {u(2)}, {u(0)}, 10, {u(2)}')
    a(f's_lshl_b32 s{S_T0}, s{S_HG}, 7')
    a(f'v_add_u32 {u(4)}, s{S_T0}, {u(2)}')
    loader(ra, lambda w: w * 8192, 65536, L_WQ, lambda w: u(4), F_CW)
    a.label('KG_H2B')
    stamp(2)
    a(f's_mov_b32 s{S_T2}, s{S_KOFF}')
    if TF_LAG == 1:
        lds_wait(F_GI, 1, V_U, sleep=2)
    elif TF_LAG == 100:
        lds_wait(F_POS, 1, V_U, sleep=2)
    elif TF_LAG:
        lds_wait(F_PRE, TF_LAG, V_U, sleep=2)
    def tload(i):
        if i % 2 == 0:
            a(f's_add_u32 s{S_T3}, s{S_T2}, {i*2048}')
        a(f'buffer_load_dwordx4 {vr(HT+4*(i%12),4)}, v{V_L16}, {tb}, s{S_T3} offen offset:{(i%2)*2048}')
    PD = H2_PD
    assert PD <= 12
    for i in range(PD):
        tload(i)
    a(f'v_and_b32 {u(4)}, 31, v0')
    a(f'v_lshrrev_b32 {u(5)}, 5, v0')
    a(f'v_bfe_u32 {u(6)}, v0, 1, 3')
    a(f'v_lshlrev_b32 {u(7)}, 7, {u(4)}')
    for ks in range(4):
        a(f'v_add_u32 v{HA+ks}, {2*ks}, {u(5)}')
        a(f'v_xor_b32 v{HA+ks}, v{HA+ks}, {u(6)}')
        a(f'v_lshl_add_u32 {u(ks)}, v{HA+ks}, 4, {u(7)}')
    a(f'v_lshlrev_b32 v{V_A1}, 12, {u(4)}')
    a(f'v_lshl_add_u32 v{V_A1}, {u(5)}, 5, v{V_A1}')
    stamp(5)
    lds_wait(F_CX, 8, V_U + 4, sleep=2)
    def xreads(c):
        for ks in range(4):
            for aa in range(2):
                a(f'ds_read_b128 {vr(HX+32*(c&1)+16*aa+4*ks,4)}, {u(ks)} offset:{c*8192+4096*aa}')
    if PRI & 1: a('s_setprio 0')
    xreads(0)
    for c in range(8):
        if c < 7:
            xreads(c + 1)
        for ks in range(4):
            i = 4*c + ks
            a(f's_waitcnt vmcnt({min(PD-1, 31-i)}) lgkmcnt({2*(3-ks) + (8 if c < 7 else 0)})')
            for aa in range(2):
                cc = vr(HA + 16*aa, 16) if i else '0'
                a(f'v_mfma_f32_32x32x16_bf16 {vr(HA+16*aa,16)}, {vr(HX+32*(c&1)+16*aa+4*ks,4)}, {vr(HT+4*(i%12),4)}, {cc}')
            if i + PD < 32: tload(i + PD)
    if PRI & 1: a('s_setprio 2')
    lds_add(F_H2, V_U)
    a(f's_lshl_b32 s{S_T0}, s{S_HG}, 18')
    a(f's_lshl_b32 s{S_T1}, s{S_CT}, 17')
    a(f's_add_u32 s{S_T0}, s{S_T0}, s{S_T1}')
    a(f's_lshl_b32 s{S_T1}, s{S_QG}, 7')
    a(f's_add_u32 s{S_T0}, s{S_T0}, s{S_T1}')
    a(f's_add_u32 s{S_T2}, s{S_T0}, {WS_X1T}')
    lds_wait(F_TAGOK, 1, V_U)
    get_tag(V_U)
    a('s_nop 4')
    for i in range(16):
        a(f'v_cvt_pk_bf16_f32 v{HX+i}, v{HA+2*i}, v{HA+2*i+1}')
    for aa in range(2):
        for q in range(2):
            a(f'buffer_store_dwordx4 {vr(HX+8*aa+4*q,4)}, v{V_A1}, {ws}, s{S_T2} offen offset:{64*aa+16*q}{SC}')
    a.label('KG_J1')
    join_flag(F_J1, 3, WS_FL2)
    stamp(6)
    a.label('KG_H3')
    if E('NOHELP', 0) == 1:
        lds_add(F_J2, V_U)
        dump()
        a('s_endpgm')

    V_T1 = 16
    V_T2 = 64
    V_D = 88
    V_TW = 104
    V_XX = 120
    V_W = 136
    V_AC = 152
    S_FW = S_HW
    table_srd(a, R_TB, 'TAB_K2', 24576 + 6144 + 32768, 'k2')
    O_T1, O_T2, O_TW1, O_TW2 = 0, 24576, 30720, 30720 + 16384
    a(f's_lshr_b32 s{S_MH}, s{S_FW}, 1')
    a(f's_and_b32 s{S_NH}, s{S_FW}, 1')
    a(f's_mul_i32 s{S_T0}, s{S_MH}, 12288')
    for i in range(12):
        if i % 4 == 0 and i:
            a(f's_add_u32 s{S_T0}, s{S_T0}, 4096')
        a(f'buffer_load_dwordx4 {vr(V_T1+4*i,4)}, v{V_L16}, {tb}, s{S_T0} offen offset:{(i%4)*1024}')
        thr()
    a(f's_lshl_b32 s{S_T2}, s{S_FW}, 12')
    a(f's_add_u32 s{S_T0}, s{S_T2}, {O_TW1}')
    for i in range(4):
        a(f'buffer_load_dwordx4 {vr(V_TW+4*i,4)}, v{V_L16}, {tb}, s{S_T0} offen offset:{i*1024}')
        thr()
    a(f's_mov_b32 s{S_T0}, {O_T2}')
    a(f's_mov_b32 s{S_T1}, {O_T2+4096}')
    for i in range(6):
        a(f'buffer_load_dwordx4 {vr(V_T2+4*i,4)}, v{V_L16}, {tb}, s{S_T0+(i>>2)} offen offset:{(i%4)*1024}')
        thr()
    a(f's_lshl_b32 s{S_T0}, s{S_FW}, 4')
    a(f'v_lshl_add_u32 v{V_A3}, v{V_G}, 8, v{V_I}')
    a(f'v_add_u32 v{V_A3}, s{S_T0}, v{V_A3}')
    a(f's_cmp_eq_u32 s{S_F}, 0')
    a('s_cbranch_scc1 KG_SPA')
    a.label('KG_SPAR')
    a(f's_cmp_lg_u32 s{S_HW}, 0')
    a('s_cbranch_scc1 KG_PCE')
    lds_wait(F_H2, 2, V_U, sleep=4)
    a(f's_mov_b32 s{S_LB}, {L_X}')
    for k in range(3):
        a(f's_bfe_u32 s{S_T0}, s{S_QU}, {hex(0x30000 + 3*(2-k))}')
        a(f's_lshl_b32 s{S_T0}, s{S_T0}, 14')
        a(f's_add_u32 s{S_T0}, s{S_T0}, {WS_KV}')
        kv_dma(S_T0, S_LB)
    a(f'v_mov_b32 {u(1)}, 8')
    a('s_waitcnt vmcnt(0)')
    a(f'ds_write_b32 v{V_Z}, {u(1)} offset:{4*F_POS}')
    stamp(6)
    a.label('KG_PCE')
    a(f's_cmp_lg_u32 s{S_HW}, 1')
    a('s_cbranch_scc1 KG_S1W')
    a(f's_lshl_b32 s{S_T1}, s{S_HG}, 10')
    a(f's_add_u32 s{S_T1}, s{S_T1}, {WS_FL2}')
    glob_poll('S1', 0xff, S1_SLEEP)
    a(f'v_mov_b32 {u(1)}, 1')
    a(f'ds_write_b32 v{V_Z}, {u(1)} offset:{4*F_S1OK}')
    a.label('KG_S1W')
    pg_wait(3)
    lds_wait(F_S1OK, 1, V_U, sleep=4)
    stamp(7)
    a(f'v_lshlrev_b32 v{V_A1}, 7, v{V_I}')
    a(f'v_lshl_add_u32 v{V_A1}, v{V_G}, 4, v{V_A1}')
    a(f's_lshl_b32 s{S_T0}, s{S_F}, 13')
    a(f's_lshl_b32 s{S_T1}, s{S_NH}, 11')
    a(f's_add_u32 s{S_T0}, s{S_T0}, s{S_T1}')
    a(f's_add_u32 s{S_T0}, s{S_T0}, {WS_X1T}')
    a(f's_add_u32 s{S_T1}, s{S_T0}, 4096')
    for part in range(2):
        for ks in range(2):
            a(f'buffer_load_dwordx4 {vr(V_D+8*part+4*ks,4)}, v{V_A1}, {ws}, s{S_T0+part} offen offset:{64*ks}{SC}')
    a(f's_lshl_b32 s{S_T0}, s{S_F}, 13')
    a(f's_lshl_b32 s{S_T1}, s{S_FW}, 11')
    a(f's_add_u32 s{S_T1}, s{S_T1}, {WS_WT}')
    a(f's_add_u32 s{S_T0}, s{S_T0}, s{S_T1}')
    a(f's_cmp_lg_u32 s{S_F}, 0')
    a('s_cbranch_scc1 KG_NXX')
    a(f's_add_u32 s{S_T1}, s{S_T1}, {256*8192}')
    for part in range(2):
        a(f'buffer_load_dwordx4 {vr(V_XX+8*part+4,4)}, v{V_L16}, {ws}, s{S_T1} offen offset:{1024*part}{SC}')
    a.label('KG_NXX')
    for part in range(2):
        a(f'buffer_load_dwordx4 {vr(V_W+8*part+4,4)}, v{V_L16}, {ws}, s{S_T0} offen offset:{1024*part}{SC}')

    def mf(d, x, y, c):
        cc = vr(d, 4) if c else '0'
        a(f'v_mfma_f32_16x16x32_bf16 {vr(d,4)}, {vr(x,4)}, {vr(y,4)}, {cc}')
    def t1(nt, ks, v): return V_T1 + 4 * ((nt * 2 + ks) * 3 + v)
    def t2(mt, v): return V_T2 + 4 * (mt * 3 + v)
    def cmul_pack(dst):
        for t_ in range(2):
            for r in range(4):
                ar, ai = V_AC + 8*t_ + r, V_AC + 8*t_ + 4 + r
                c_, s_ = V_TW + 8*t_ + r, V_TW + 8*t_ + 4 + r
                uu = V_U + (r & 1) * 2
                a(f'v_mul_f32 v{uu}, v{ar}, v{c_}')
                a(f'v_mul_f32 v{uu+1}, v{ar}, v{s_}')
                a(f'v_fma_f32 v{ar}, -v{ai}, v{s_}, v{uu}')
                a(f'v_fma_f32 v{ai}, v{ai}, v{c_}, v{uu+1}')
        for i in range(8):
            a(f'v_cvt_pk_bf16_f32 v{dst+i}, v{V_AC+2*i}, v{V_AC+2*i+1}')
    def sync(flag):
        a('s_waitcnt lgkmcnt(0)')
        lds_add(flag, V_U)
        lds_wait(flag, 4, V_U, sleep=2)

    def lo():
        if PRI & 4: a('s_setprio 0')
    def hi():
        if PRI & 4: a('s_setprio 2')
    lo()
    a('s_waitcnt vmcnt(2)')
    zr = lambda ks: V_D + 4*ks
    zi = lambda ks: V_D + 8 + 4*ks
    for ks in range(2):
        for nt in range(2):
            mf(V_AC + 8*nt, zr(ks), t1(nt, ks, 0), ks)
            mf(V_AC + 8*nt + 4, zi(ks), t1(nt, ks, 0), ks)
        for nt in range(2):
            mf(V_AC + 8*nt, zi(ks), t1(nt, ks, 2), 1)
            mf(V_AC + 8*nt + 4, zr(ks), t1(nt, ks, 1), 1)
    hi()
    a(f's_cmp_eq_u32 s{S_F}, 0')
    a('s_cbranch_scc1 KG_SPB')
    a.label('KG_SPBR')
    a(f's_mul_i32 s{S_T0}, s{S_MH}, 2560')
    a(f's_lshl_b32 s{S_T1}, s{S_NH}, 3')
    a(f's_add_u32 s{S_T0}, s{S_T0}, s{S_T1}')
    a(f'v_mul_u32_u24 v{V_A1}, 80, v{V_I}')
    a(f'v_lshl_add_u32 v{V_A1}, v{V_G}, 4, v{V_A1}')
    a(f'v_add_u32 v{V_A1}, {L_APR}, v{V_A1}')
    a(f'v_add_u32 {u(4)}, s{S_T0}, v{V_A1}')
    a('s_nop 4')
    cmul_pack(V_D)
    for nt in range(2):
        a(f'ds_write_b64 {u(4)}, {vr(V_D+4*nt,2)} offset:{1280*nt}')
        a(f'ds_write_b64 {u(4)}, {vr(V_D+4*nt+2,2)} offset:{L_API-L_APR+1280*nt}')
    a(f's_add_u32 s{S_T0}, s{S_T2}, {O_TW2}')
    for i in range(4):
        a(f'buffer_load_dwordx4 {vr(V_TW+4*i,4)}, v{V_L16}, {tb}, s{S_T0} offen offset:{i*1024}')
    sync(F_SY0)
    a(f's_mul_i32 s{S_T0}, s{S_FW}, 1280')
    a(f'v_add_u32 {u(4)}, s{S_T0}, v{V_A1}')
    a(f'ds_read_b128 {vr(V_D,4)}, {u(4)}')
    a(f'ds_read_b128 {vr(V_D+4,4)}, {u(4)} offset:{L_API-L_APR}')
    lo()
    a('s_waitcnt vmcnt(4) lgkmcnt(0)')
    for mt in range(2):
        mf(V_AC + 8*mt, t2(mt, 0), V_D, 0)
        mf(V_AC + 8*mt + 4, t2(mt, 0), V_D + 4, 0)
    for mt in range(2):
        mf(V_AC + 8*mt, t2(mt, 2), V_D + 4, 1)
        mf(V_AC + 8*mt + 4, t2(mt, 1), V_D, 1)
    hi()
    def unpack(base):
        for part in range(2):
            b = base + 8*part
            for q in range(4):
                a(f'v_lshlrev_b32 v{b+2*q}, 16, v{b+4+q}')
                a(f'v_and_b32 v{b+2*q+1}, 0xffff0000, v{b+4+q}')
    unpack(V_W)
    a(f's_cmp_eq_u32 s{S_F}, 0')
    a('s_cbranch_scc1 KG_SPECIAL')
    for e in range(8):
        mt, r = e >> 2, e & 3
        ar, ai = V_AC + 8*mt + r, V_AC + 8*mt + 4 + r
        c_, s_ = V_W + e, V_W + 8 + e
        uu = V_U + (r & 1) * 2
        a(f'v_mul_f32 v{uu}, v{ar}, v{c_}')
        a(f'v_mul_f32 v{uu+1}, v{ar}, v{s_}')
        a(f'v_fma_f32 v{ar}, -v{ai}, v{s_}, v{uu}')
        a(f'v_fma_f32 v{ai}, v{ai}, v{c_}, v{uu+1}')
    a.label('KG_STEP3')
    for mt in range(2):
        for part in range(2):
            for q in range(2):
                src = V_AC + 8*mt + 4*part + 2*q
                a(f'v_cvt_pk_bf16_f32 v{V_D+4*part+2*mt+q}, v{src}, v{src+1}')
    lo()
    a('s_nop 1')
    for mt in range(2):
        mf(V_AC + 8*mt, V_D, t2(mt, 0), 0)
        mf(V_AC + 8*mt + 4, V_D + 4, t2(mt, 0), 0)
    for mt in range(2):
        mf(V_AC + 8*mt, V_D + 4, t2(mt, 1), 1)
        mf(V_AC + 8*mt + 4, V_D, t2(mt, 2), 1)
    hi()
    a(f'v_mul_u32_u24 v{V_A1}, 144, v{V_I}')
    a(f'v_add_u32 v{V_A1}, {L_CPR}, v{V_A1}')
    a(f's_lshl_b32 s{S_T0}, s{S_FW}, 5')
    a(f'v_lshl_add_u32 {u(4)}, v{V_G}, 3, v{V_A1}')
    a(f'v_add_u32 {u(4)}, s{S_T0}, {u(4)}')
    a('s_waitcnt vmcnt(0)')
    a('s_nop 4')
    cmul_pack(V_D)
    for mt in range(2):
        a(f'ds_write_b64 {u(4)}, {vr(V_D+4*mt,2)} offset:{2304*mt}')
        a(f'ds_write_b64 {u(4)}, {vr(V_D+4*mt+2,2)} offset:{L_CPI-L_CPR+2304*mt}')
    sync(F_SY1)
    a(f's_mul_i32 s{S_T0}, s{S_NH}, 2304')
    a(f'v_lshl_add_u32 {u(4)}, v{V_G}, 4, v{V_A1}')
    a(f'v_add_u32 {u(4)}, s{S_T0}, {u(4)}')
    for part in range(2):
        for ks in range(2):
            a(f'ds_read_b128 {vr(V_D+8*part+4*ks,4)}, {u(4)} offset:{(L_CPI-L_CPR)*part+64*ks}')
    lo()
    a('s_waitcnt lgkmcnt(0)')
    for ks in range(2):
        for nt in range(2):
            mf(V_AC + 8*nt, t1(nt, ks, 0), zr(ks), ks)
            mf(V_AC + 8*nt + 4, t1(nt, ks, 0), zi(ks), ks)
        for nt in range(2):
            mf(V_AC + 8*nt, t1(nt, ks, 1), zi(ks), 1)
            mf(V_AC + 8*nt + 4, t1(nt, ks, 2), zr(ks), 1)
    hi()
    a(f'v_lshlrev_b32 {u(4)}, 7, v{V_I}')
    a(f'v_lshl_add_u32 {u(4)}, v{V_G}, 4, {u(4)}')
    a(f's_lshl_b32 s{S_T0}, s{S_F}, 13')
    a(f's_lshl_b32 s{S_T1}, s{S_NH}, 11')
    a(f's_add_u32 s{S_T0}, s{S_T0}, s{S_T1}')
    a(f's_lshl_b32 s{S_T1}, s{S_MH}, 6')
    a(f's_add_u32 s{S_T0}, s{S_T0}, s{S_T1}')
    a(f's_add_u32 s{S_T0}, s{S_T0}, {WS_Y1T}')
    a(f's_add_u32 s{S_T1}, s{S_T0}, 4096')
    for part in range(2):
        for nt in range(2):
            for q in range(2):
                src = V_AC + 8*nt + 4*part + 2*q
                a(f'v_cvt_pk_bf16_f32 v{V_D+4*part+2*nt+q}, v{src}, v{src+1}')
    for part in range(2):
        a(f'buffer_store_dwordx4 {vr(V_D+4*part,4)}, {u(4)}, {ws}, s{S_T0+part} offen{SC}')
    join_flag(F_J2, 4, WS_FL3)
    stamp(8)
    if E('NOHELP', 0) == 2:
        dump()
        a('s_endpgm')

    AB, AA, LF, FR = 16, 32, 48, 80
    NFR = 32
    V_DM, V_RA, V_RY, V_OUT, V_GT, V_DW = 208, 209, 210, 211, 212, 213
    S_MI, S_NI = S_CT, S_A
    a(f's_lshr_b32 s{S_MI}, s{S_HW}, 1')
    a(f's_and_b32 s{S_NI}, s{S_HW}, 1')
    srd(a, R_A, S_WO, 512 * 1024)
    srd(a, R_OUT, S_OUT, 2048 * 1024)
    table_srd(a, R_TB, 'TAB_FINV', 512 * 1024, 'fi')
    a(f'v_lshrrev_b32 {u(0)}, 3, v0')
    a(f'v_and_b32 {u(1)}, 7, v0')
    a(f'v_and_b32 {u(2)}, 1, v{V_G}')
    a(f'v_lshlrev_b32 {u(3)}, 2, {u(2)}')
    a(f'v_xor_b32 {u(3)}, {u(3)}, {u(1)}')
    a(f'v_lshlrev_b32 {u(3)}, 4, {u(3)}')
    a(f'v_lshl_add_u32 {u(4)}, {u(0)}, 10, {u(3)}')
    a(f'v_mov_b32 v{V_DW}, {u(4)}')
    a(f's_lshl_b32 s{S_T3}, s{S_HW}, 14')
    a(f'v_lshl_add_u32 v{V_DM}, {u(0)}, 12, {u(3)}')
    a(f'v_and_b32 {u(0)}, 31, v0')
    a(f'v_lshrrev_b32 {u(1)}, 5, v0')
    a(f'v_bfe_u32 {u(3)}, v0, 2, 2')
    a(f'v_and_b32 {u(4)}, 3, v0')
    a(f'v_lshrrev_b32 {u(5)}, 1, {u(4)}')
    a(f'v_and_b32 {u(4)}, 1, {u(4)}')
    a(f'v_lshrrev_b32 {u(6)}, 1, {u(3)}')
    a(f'v_lshlrev_b32 {u(6)}, 2, {u(6)}')
    a(f'v_lshl_add_u32 {u(7)}, {u(4)}, 1, {u(2)}')
    a(f's_lshl_b32 s{S_T0}, s{S_MI}, 2')
    a(f'v_add_u32 {u(7)}, s{S_T0}, {u(7)}')
    a(f'v_xor_b32 {u(7)}, {u(7)}, {u(6)}')
    a(f'v_lshlrev_b32 {u(7)}, 4, {u(7)}')
    a(f'v_lshl_add_u32 {u(7)}, {u(5)}, 3, {u(7)}')
    a(f'v_lshl_add_u32 v{V_RA}, {u(1)}, 2, {u(3)}')
    a(f'v_lshl_add_u32 v{V_RA}, v{V_RA}, 7, {u(7)}')
    a(f'v_lshl_add_u32 {u(7)}, {u(2)}, 1, {u(5)}')
    a(f's_lshl_b32 s{S_T0}, s{S_NI}, 2')
    a(f'v_add_u32 {u(7)}, s{S_T0}, {u(7)}')
    a(f'v_xor_b32 {u(7)}, {u(7)}, {u(6)}')
    a(f'v_lshlrev_b32 {u(7)}, 4, {u(7)}')
    a(f'v_lshl_add_u32 {u(7)}, {u(4)}, 3, {u(7)}')
    a(f'v_lshl_add_u32 v{V_RY}, {u(1)}, 3, {u(3)}')
    a(f'v_lshl_add_u32 v{V_RY}, v{V_RY}, 7, {u(7)}')
    a(f'v_add_u32 v{V_RY}, {L_Y}, v{V_RY}')
    a(f'v_bfe_u32 {u(5)}, {u(0)}, 2, 1')
    a(f'v_lshrrev_b32 {u(6)}, 3, {u(0)}')
    a(f'v_and_b32 {u(7)}, 3, {u(0)}')
    a(f'v_lshl_add_u32 {u(7)}, {u(5)}, 4, {u(7)}')
    a(f'v_lshl_add_u32 {u(7)}, {u(6)}, 2, {u(7)}')
    a(f'v_lshlrev_b32 {u(7)}, 15, {u(7)}')
    a(f'v_lshl_add_u32 {u(7)}, {u(1)}, 5, {u(7)}')
    a(f's_lshl_b32 s{S_T0}, s{S_NI}, 20')
    a(f's_lshl_b32 s{S_T1}, s{S_QG}, 10')
    a(f's_add_u32 s{S_T0}, s{S_T0}, s{S_T1}')
    a(f's_lshl_b32 s{S_T1}, s{S_HG}, 7')
    a(f's_add_u32 s{S_T0}, s{S_T0}, s{S_T1}')
    a(f's_lshl_b32 s{S_T1}, s{S_MI}, 6')
    a(f's_add_u32 s{S_T0}, s{S_T0}, s{S_T1}')
    a(f'v_add_u32 v{V_OUT}, s{S_T0}, {u(7)}')
    a(f'v_lshlrev_b32 v{V_GT}, 2, {u(0)}')
    S_FI = S_KOFF
    a(f's_lshl_b32 s{S_FI}, s{S_HG}, 16')
    a(f's_lshl_b32 s{S_T0}, s{S_MI}, 10')
    a(f's_add_u32 s{S_FI}, s{S_FI}, s{S_T0}')
    def fload(i):
        if i % 2 == 0:
            a(f's_add_u32 s{S_KB}, s{S_FI}, {i*2048}')
        a(f'buffer_load_dwordx4 {vr(FR+4*(i%NFR),4)}, v{V_L16}, {tb}, s{S_KB} offen offset:{(i%2)*2048}')
    for i in range(NFR):
        fload(i)
        thr()
    def wo_dma():
        a(f's_lshl_b32 s{S_T2}, s{S_HW}, 17')
        a(f's_lshl_b32 s{S_T0}, s{S_HG}, 7')
        a(f's_add_u32 s{S_T2}, s{S_T2}, s{S_T0}')
        a(f's_cmp_eq_u32 s{S_HW}, 2')
        a(f's_cselect_b32 s{S_T1}, {L_KW}, s{S_T3}')
        assert L_WO == 0
        for i in range(16):
            a(f's_add_u32 m0, s{S_T1}, {i*1024}')
            a(f's_add_u32 s{S_T0}, s{S_T2}, {i*8192}')
            a(f'buffer_load_dwordx4 v{V_DW}, {ra}, s{S_T0} offen lds')
            thr()
    a(f's_cmp_lt_u32 s{S_HW}, 2')
    a('s_cbranch_scc1 KG_WOE')
    lds_wait(F_J2, 4, V_U, sleep=2)
    wo_dma()
    a.label('KG_WOE')
    a(f's_cmp_lg_u32 s{S_HW}, 1')
    a('s_cbranch_scc1 KG_S2W')
    a(f's_mov_b32 s{S_T1}, {WS_FL3}')
    glob_poll('S2', -1, S2_SLEEP)
    a(f'v_mov_b32 {u(1)}, 1')
    a(f'ds_write_b32 v{V_Z}, {u(1)} offset:{4*F_S2OK}')
    a.label('KG_S2W')
    pg_wait(6, 4)
    lds_wait(F_S2OK, 1, V_U, sleep=4)
    stamp(9)
    a(f's_lshl_b32 s{S_T2}, s{S_HW}, 19')
    a(f's_lshl_b32 s{S_T0}, s{S_QG}, 7')
    a(f's_add_u32 s{S_T2}, s{S_T2}, s{S_T0}')
    a(f's_add_u32 s{S_T2}, s{S_T2}, {WS_Y1T}')
    for i in range(16):
        a(f's_add_u32 m0, s{S_T3}, {L_Y + i*1024}')
        a(f's_add_u32 s{S_T0}, s{S_T2}, {i*32768}')
        a(f'buffer_load_dwordx4 v{V_DM}, {ws}, s{S_T0} offen{SC} lds')
        thr()
    a(f's_lshl_b32 s{S_T0}, s{S_QG}, 8')
    a(f's_lshl_b32 s{S_T1}, s{S_NI}, 7')
    a(f's_add_u32 s{S_T0}, s{S_T0}, s{S_T1}')
    a(f's_add_u32 s{S_T0}, s{S_T0}, {WS_G}')
    a(f'buffer_load_dword v{V_GT}, v{V_GT}, {ws}, s{S_T0} offen{SC}')
    a('s_waitcnt vmcnt(0)')
    sync(F_J3)
    def lread(i, addr, second):
        a(f'ds_read_b64_tr_b16 {vr(LF+4*(i%8),2)}, v{addr} offset:{i*2048}')
        a(f'ds_read_b64_tr_b16 {vr(LF+4*(i%8)+2,2)}, v{addr} offset:{i*2048+second}')
    if PRI & 2: a('s_setprio 0')
    for i in range(6):
        lread(i, V_RY, 512)
    for i in range(32):
        if i >= NFR:
            a(f's_waitcnt vmcnt({31-i}) lgkmcnt({2*min(5, 31-i)})')
        else:
            a(f's_waitcnt lgkmcnt({2*min(5, 31-i)})')
        cc = vr(AB, 16) if i else '0'
        a(f'v_mfma_f32_32x32x16_bf16 {vr(AB,16)}, {vr(FR+4*(i%NFR),4)}, {vr(LF+4*(i%8),4)}, {cc}')
        if i + NFR < 32: fload(i + NFR)
        if i + 6 < 32: lread(i + 6, V_RY, 512)
    if PRI & 2: a('s_setprio 2')
    stamp(10)
    if E('NOHELP', 0) == 3:
        dump()
        a('s_endpgm')
    a(f's_cmp_ge_u32 s{S_HW}, 2')
    a('s_cbranch_scc1 KG_WOL')
    pg_wait(8, 2)
    wo_dma()
    a.label('KG_WOL')
    a(f'v_add_u32 v{V_RY}, {L_KW}, v{V_RA}')
    a('s_waitcnt vmcnt(0)')
    sync(F_J4)
    FW = FR + 64
    def wread(t_):
        for p_ in range(16):
            i = 2*p_ + t_
            ad, off = (V_RY, (i & 7) * 2048) if (i >> 3) == 2 else (V_RA, i * 2048)
            a(f'ds_read_b64_tr_b16 {vr(FW+4*p_,2)}, v{ad} offset:{off}')
            a(f'ds_read_b64_tr_b16 {vr(FW+4*p_+2,2)}, v{ad} offset:{off+1024}')
    a(f's_lshl_b32 s{S_T2}, s{S_QG}, 1')
    a(f's_add_u32 s{S_T2}, s{S_T2}, s{S_NI}')
    a(f's_lshl_b32 s{S_KOFF}, s{S_T2}, 11')
    a(f's_add_u32 s{S_KOFF}, s{S_KOFF}, {WS_FL4}')
    a(f's_lshl_b32 s{S_T2}, s{S_T2}, 15')
    a(f's_add_u32 s{S_T2}, s{S_T2}, {WS_O}')
    for t_ in range(2):
        wread(t_)
        if t_ == 0:
            stamp(4)
            lds_wait(F_ADONE, 1, V_U, sleep=4)
        a(f's_add_u32 s{S_T1}, s{S_KOFF}, {4*t_}')
        glob_poll(f'O{t_}', 0xffff, O_SLEEP, wide=False)
        stamp(11 if t_ else 3)
        def oload(p_):
            if p_ % 2 == 0:
                a(f's_add_u32 s{S_KB}, s{S_T2}, {p_*2048}')
            a(f'buffer_load_dwordx4 {vr(FR+4*p_,4)}, v{V_L16}, {ws}, s{S_KB} offen offset:{(p_%2)*2048+1024*t_}{OSC}')
        for p_ in range(NFO):
            oload(p_)
        if TST and t_: stamp(1)
        if t_ == 0 and PRI & 2: a('s_setprio 0')
        for p_ in range(16):
            nout = (min(15, p_ + NFO - 1) - p_)
            a(f's_waitcnt vmcnt({nout})' + (' lgkmcnt(0)' if p_ == 0 else ''))
            if TST and t_ and p_ in (0, 15):
                stamp({0: 2, 15: 5}[p_])
            cc = vr(AA, 16) if (p_ or t_) else '0'
            a(f'v_mfma_f32_32x32x16_bf16 {vr(AA,16)}, {vr(FW+4*p_,4)}, {vr(FR+4*p_,4)}, {cc}')
            if p_ + NFO < 16: oload(p_ + NFO)
        if t_ == 0 and PRI & 2: a('s_setprio 2')
        if t_ == 0: stamp(5)
    a('s_nop 11')
    for i in range(16):
        a(f'v_sub_f32 v{AA+i}, v{AA+i}, v{AB+i}')
        a(f'v_fma_f32 v{AA+i}, v{V_GT}, v{AA+i}, v{AB+i}')
    for i in range(8):
        a(f'v_cvt_pk_bf16_f32 v{LF+i}, v{AA+2*i}, v{AA+2*i+1}')
    for q in range(2):
        a(f'buffer_store_dwordx4 {vr(LF+4*q,4)}, v{V_OUT}, {sr(R_OUT,4)}, 0 offen offset:{16*q}{OUTSC}')
    if TST: stamp(6)
    dump()
    a('s_endpgm')

    SG, SL, SD = 168, 176, 184
    a.label('KG_SPA')
    a(f's_mov_b32 s{S_T0}, {L_SP}')
    a(f's_mov_b32 s{S_T1}, {L_SPW}')
    for e in range(8):
        k_ = u(4 + (e & 1))
        a(f'v_sub_u32 {k_}, {2048 - 64*(e&3) - 1024*(e>>2)}, v{V_A3}')
        a(f'v_and_b32 {k_}, 2047, {k_}')
        a(f'v_lshl_add_u32 v{SL+e}, {k_}, 2, s{S_T0}')
        a(f'v_lshl_add_u32 v{SG+e}, {k_}, 3, s{S_T1}')
    a('s_branch KG_SPAR')
    a.label('KG_SPB')
    a(f's_mov_b32 s{S_C0}, 0x05040100')
    a(f's_mov_b32 s{S_C0+1}, 0x07060302')
    a(f's_mov_b32 s{S_T1}, {L_SPW}')
    a(f'v_lshl_add_u32 {u(4)}, v{V_A3}, 3, s{S_T1}')
    a('s_waitcnt vmcnt(0)')
    for e in range(8):
        for j, base in enumerate((V_W, V_XX)):
            a(f'v_perm_b32 v{SD+2*e+j}, v{base+12+(e>>1)}, v{base+4+(e>>1)}, s{S_C0+(e&1)}')
        a(f'ds_write_b64 {u(4)}, {vr(SD+2*e,2)} offset:{512*(e&3) + 8192*(e>>2)}')
    a('s_branch KG_SPBR')
    a.label('KG_SPECIAL')
    for e in range(8):
        a(f'ds_read_b64 {vr(SD+2*e,2)}, v{SG+e}')
    a(f'v_lshlrev_b32 {u(4)}, 2, v{V_A3}')
    a(f'v_add_u32 {u(6)}, {L_SP}, {u(4)}')
    for e in range(8):
        mt, r = e >> 2, e & 3
        a(f'ds_write2st64_b32 {u(6)}, v{V_AC+8*mt+r}, v{V_AC+8*mt+4+r} offset0:{16*mt+r} offset1:{32+16*mt+r}')
    a(f'v_mov_b32 {u(0)}, 1')
    a('s_waitcnt lgkmcnt(0)')
    a('s_mov_b64 exec, 1')
    a(f'ds_add_u32 v{V_Z}, {u(0)} offset:{4*F_SY2}')
    a('s_mov_b64 exec, -1')
    unpack(V_XX)
    for e in range(8):
        a0r, a0i, a1r, a1i = V_W + e, V_W + 8 + e, V_XX + e, V_XX + 8 + e
        b0r, b0i, b1r, b1i = SD + 16, SD + 2*e, SD + 17, SD + 2*e + 1
        a(f'v_lshlrev_b32 v{b0r}, 16, v{b0i}')
        a(f'v_lshlrev_b32 v{b1r}, 16, v{b1i}')
        a(f'v_and_b32 v{b0i}, 0xffff0000, v{b0i}')
        a(f'v_and_b32 v{b1i}, 0xffff0000, v{b1i}')
        a(f'v_add_f32 v{b0r}, v{a0r}, v{b0r}')
        a(f'v_sub_f32 v{b0i}, v{a0i}, v{b0i}')
        a(f'v_add_f32 v{b1r}, v{a1r}, v{b1r}')
        a(f'v_sub_f32 v{b1i}, v{a1i}, v{b1i}')
        a(f'v_add_f32 v{a0r}, v{b0r}, v{b1r}')
        a(f'v_add_f32 v{a0i}, v{b0i}, v{b1i}')
        a(f'v_sub_f32 v{a1r}, v{b0r}, v{b1r}')
        a(f'v_sub_f32 v{a1i}, v{b0i}, v{b1i}')
    lds_wait(F_SY2, 4, V_U, sleep=1)
    for e in range(8):
        a(f'ds_read2st64_b32 {vr(V_D+2*e,2)}, v{SL+e} offset0:0 offset1:32')
    a(f's_mov_b32 s{S_T0}, {f32_bits(0.125)}')
    for e in range(8):
        mt, r = e >> 2, e & 3
        zr_, zi_ = V_AC + 8*mt + r, V_AC + 8*mt + 4 + r
        pr, pi_, mr, mi = V_W + e, V_W + 8 + e, V_XX + e, V_XX + 8 + e
        znr, zni = V_D + 2*e, V_D + 2*e + 1
        rr, ri = SD + 2*e, SD + 2*e + 1
        a(f'v_mul_f32 v{rr}, v{zr_}, v{pr}')
        a(f'v_mul_f32 v{ri}, v{zr_}, v{pi_}')
        a(f'v_fma_f32 v{rr}, -v{zi_}, v{pi_}, v{rr}')
        a(f'v_fma_f32 v{ri}, v{zi_}, v{pr}, v{ri}')
        a(f's_waitcnt lgkmcnt({7-e})')
        a(f'v_fma_f32 v{rr}, v{znr}, v{mr}, v{rr}')
        a(f'v_fma_f32 v{ri}, v{znr}, v{mi}, v{ri}')
        a(f'v_fma_f32 v{rr}, v{zni}, v{mi}, v{rr}')
        a(f'v_fma_f32 v{ri}, -v{zni}, v{mr}, v{ri}')
        a(f'v_mul_f32 v{zr_}, s{S_T0}, v{rr}')
        a(f'v_mul_f32 v{zi_}, s{S_T0}, v{ri}')
    a('s_branch KG_STEP3')
    a.label('KG_END')
    a('s_endpgm')
    return 216, (102 if ST in (5, 6, 7) else NS)

def build_g(path):
    a = Asm()
    hdr = open(f'cdna_kernels/{NAME}.s.ref').read().split('\n')
    for l in hdr:
        if l.startswith(';') and '@launch' not in l and 'Override launch' not in l and 'grid=ceil' not in l:
            a.raw(l)
    kn = NAME + '_kernel'
    if E('PLAIN', 0):
        a.raw(f'; @launch grid=(256,1,1) block=(512,1,1) lds={KG_LDS}')
    else:
        a.raw(f'; @launch kernel={kn} grid=(256,1,1) block=(512,1,1) lds={KG_LDS}')
    a.raw('.amdgcn_target "amdgcn-amd-amdhsa--gfx950"')
    a.raw('.text')
    v, s = gen_g(a, kn)
    a.raw('.section .rodata,"a"')
    kernel_desc(a, kn, v, s)
    gen_tables(a)
    gen_k2.gen_tables_k2(a)
    gen_k3.gen_tables_k3(a)
    open(path, 'w').write(a.text())

if __name__ == '__main__':
    build_g(sys.argv[1] if len(sys.argv) > 1 else 'j.s')
```

```python
from gen import *
import gen_k2, gen_k3
from gen_k2 import YSCALE
import os

WS_ROOT = 0x240000
WS_FL1 = 0x244000
WS_FL2 = 0x248000
WS_FL3 = 0x24C000
WS_FL4 = 0x260000
TAG_M, TAG_C = 0x9E3779B1, 0x7F4A7C15
WS_XC = 0x250000
FORCE_GL = int(os.environ.get('FORCE_GL', '0'))
WS_KVT = 0x000000

L_X = 0
L_WQ = 65536
L_FLAG = 131072
L_KW = L_FLAG + 256
L_GATE = L_KW + 16384
KG_LDS = 163840
L_APR = L_KW; L_API = L_APR + 5120
L_CPR = L_API + 5120; L_CPI = L_CPR + 4608
L_MX = L_KW
L_MXM = L_KW + 20480
assert L_CPI + 4608 <= L_MXM and L_MX + 8 * 2304 <= L_MXM and L_MXM + 4096 <= KG_LDS and L_GATE + 1024 <= L_MXM
L_SP = L_WQ
L_SPW = L_X + 49152
L_WO = L_X
L_Y = L_WQ
F_CX, F_CW = 0, 1
F_CC, F_MG, F_MM, F_PG, F_QX = 0, 8, 16, 40, 48
L_QX = L_GATE + 1024
assert L_QX + 8192 <= KG_LDS
F_N, F_TAG, F_QDONE, F_J1, F_S1OK, F_SY0, F_SY1, F_SY2, F_J2, F_S2OK, F_J3, F_TAGOK, F_ADONE, F_J4, F_KVS, F_GI, F_PRE = range(24, 41)
F_PRE = 2
F_PGW = 8
F_KX = 15
F_LOC = 14
F_POS, F_H2 = 12, 13
L_PRE = L_KW
NWAVE = 8
WS_G = 0x230000
E = lambda k, d: int(os.environ.get(k, str(d)))
LOAD_D = E('LOAD_D', 6)
KV_SLEEP = E('KV_SLEEP', 4)
O_SLEEP = E('O_SLEEP', 2)
THR = E('THR', 15)
LD_PRE = E('LD_PRE', 0)
KV_BAR = E('KV_BAR', 15)
FAIR = E('FAIR', 1)
KV_LAG = E('KV_LAG', 0)
TF_LAG = E('TF_LAG', 1)
WT_LAG = E('WT_LAG', 8)
G_DELAY = E('G_DELAY', 12)
Q7_SLEEP = E('Q7_SLEEP', 0)
H2_PD = E('H2_PD', 12)
KVSC = ' sc1' if E('KVSC1', 0) else ''
OSC = ' sc1' if E('OSC1', 0) else ''
SC = ' sc1'
POLL_LIMIT = 1 << 18
NSTAMP = 12
OF_STEP = E('OF_STEP', 12)
NFO = E('NFO', 10)
TST = E('TST', 0)
OST = '' if E('OPLAIN', 0) else ' sc1'
S1_SLEEP = E('S1_SLEEP', 4)
S2_SLEEP = E('S2_SLEEP', 8)
SPSC = ' sc1' if E('SPSC1', 0) else ''
KP_DELAY = E('KP_DELAY', 0)
PEEL_B = E('PEEL_B', 4)
PRI = E('PRI', 7)
LST = E('LST', 0)
G_EARLY = E('G_EARLY', 8)
G_TRIG = E('G_TRIG', 7)
QPIPE = E('QPIPE', 2)
EPOLL = E('EPOLL', 8)
TOUCH = E('TOUCH', 1)
FST = E('FST', 0)
PRET = E('PRET', 1)
OUTSC = {0: '', 1: ' sc1', 2: ' nt', 3: ' sc0 sc1', 4: ' sc1 nt'}[E('OUTSC', 0)]

def gen_g(a, name):
    kernel_header(a, name)
    S_X, S_WQ, S_WK, S_WV, S_WO, S_WS, S_WR, S_WI, S_GT, S_OUT = 4, 6, 8, 10, 12, 14, 16, 18, 20, 22
    R_X, R_WS, R_A, R_B, R_TB, R_OUT = 24, 28, 32, 36, 40, 44
    S_W, S_QG, S_HG, S_T0, S_T1, S_T2, S_T3, S_CNT, S_KOFF, S_KB, S_P, S_KH = 48, 49, 50, 51, 52, 53, 54, 55, 56, 57, 58, 59
    S_VM = 60; S_C0 = 62; S_C1 = 64
    S_CT, S_A, S_F, S_HW, S_MH, S_NH, S_SEEN, S_LIM, S_TAG = 3, 66, 67, 68, 69, 70, 71, 72, 73
    NS = 74
    SB = 74
    ws = sr(R_WS, 4); xs = sr(R_X, 4); ra = sr(R_A, 4); rb_ = sr(R_B, 4); tb = sr(R_TB, 4)
    TM = 's_memrealtime' if ST in (5, 7) else 's_memtime'
    duid = [0]
    def stamp(i, f=0):
        if FST and (i >= 7) != bool(f):
            if i >= 7 or f: return
        if f and not FST: return
        if ST in (5, 6, 7):
            a(f'{TM} s[{SB+2*i}:{SB+1+2*i}]')
    def dump(kind=0):
        n = NSTAMP
        if ST == 7:
            duid[0] += 1
            a('s_waitcnt vmcnt(0)')
            a(f'{TM} s[{SB+2*n}:{SB+1+2*n}]')
            a(f's_load_dwordx2 s[{R_A}:{R_A+1}], s[0:1], 80')
            a(f's_mov_b32 s{R_A+2}, 256')
            a(f's_mov_b32 s{R_A+3}, 0x20000')
            a('s_waitcnt lgkmcnt(0)')
            a('s_mov_b64 exec, 1')
            a('v_mov_b32 v0, 0')
            a(f's_cmp_lg_u32 s{S_W}, {4 if kind else 0}')
            a(f's_cbranch_scc1 KG_DD{duid[0]}')
            if kind:
                a(f's_not_b32 s{S_T0}, s{SB}')
                a(f'v_mov_b32 v2, s{S_T0}')
                a(f'buffer_atomic_umax v2, v0, {ra}, 0 offen offset:0')
                L = [(2, 0), (3, 2), (4, 3), (5, 4), (6, 5), (7, 12)]
            else:
                a(f'v_mov_b32 v2, s{SB+24}')
                a(f'buffer_atomic_umax v2, v0, {ra}, 0 offen offset:4')
                L = [(8, 3), (9, 5), (10, 6), (11, 7), (12, 8), (13, 9), (14, 11), (15, 12)]
            for k, (sl, st_) in enumerate(L):
                a(f'v_mov_b32 v{3+k}, s{SB+2*st_}')
                a(f'buffer_atomic_add v{3+k}, v0, {ra}, 0 offen offset:{4*sl}')
            a.label(f'KG_DD{duid[0]}')
        if ST in (5, 6):
            a('s_waitcnt vmcnt(0)')
            a(f'{TM} s[{SB+2*n}:{SB+1+2*n}]')
            a('s_mov_b64 exec, 1')
            a(f's_lshl_b32 s{S_T0}, s2, 4')
            a(f's_add_u32 s{S_T0}, s{S_T0}, s{S_W}')
            a(f's_lshl_b32 s{S_T0}, s{S_T0}, 6')
            a(f's_add_u32 s{S_T0}, s{S_T0}, {0xC00000}')
            a('s_waitcnt lgkmcnt(0)')
            a(f's_mov_b32 s{R_WS+2}, 0x1000000')
            a('v_mov_b32 v0, 0')
            if LST and kind:
                a('s_mov_b64 exec, 0xffff')
                a('v_mbcnt_lo_u32_b32 v3, -1, 0')
                a('v_lshlrev_b32 v3, 2, v3')
                a(f'v_add_u32 v3, 0x100000, v3')
                a(f'buffer_store_dword v{192+23}, v3, {ws}, s{S_T0} offen')
                a('s_mov_b64 exec, 1')
            for i in range(n + 1):
                a(f'v_mov_b32 v2, s{SB+2*i}')
                a(f'buffer_store_dword v2, v0, {ws}, s{S_T0} offen offset:{4*i}')
                a('s_nop 1')

    a('s_cmp_ge_u32 s2, 256')
    a('s_cbranch_scc1 KG_END')
    if ST in (5, 6, 7):
        for i in range(NSTAMP + 1):
            a(f's_mov_b32 s{SB+2*i}, 0')
    stamp(0)
    a(f's_load_dwordx8 s[{S_X}:{S_X+7}], s[0:1], 0')
    a(f's_load_dwordx2 s[{S_WS}:{S_WS+1}], s[0:1], 88')
    a(f's_load_dwordx4 s[{S_GT}:{S_GT+3}], s[0:1], 64')
    a(f's_load_dwordx2 s[{S_WO}:{S_WO+1}], s[0:1], 32')
    a(f's_load_dwordx4 s[{S_WR}:{S_WR+3}], s[0:1], 48')
    a('v_lshrrev_b32 v1, 6, v0')
    a('v_and_b32 v0, 63, v0')
    a(f's_and_b32 s{S_T0}, s2, 7')
    a(f'v_readfirstlane_b32 s{S_W}, v1')
    a(f's_lshl_b32 s{S_T0}, s{S_T0}, 2')
    a(f's_lshr_b32 s{S_QG}, s2, 6')
    a(f's_add_u32 s{S_QG}, s{S_QG}, s{S_T0}')
    a(f's_bfe_u32 s{S_HG}, s2, 0x30003')
    a(f's_mov_b32 s{S_LIM}, {1<<21}')
    V_Z = 7
    a(f'v_mov_b32 v{V_Z}, {L_FLAG}')
    V_I, V_G, V_L16, V_A1, V_A2, V_A3 = 1, 2, 3, 4, 5, 6
    V_U = 8
    u = lambda i: f'v{V_U+i}'
    KX, KW, KA = 16, 80, 144
    S_RB, S_TY, S_KQ = S_P, S_KH, S_KB
    a(f'v_and_b32 v{V_I}, 15, v0')
    a(f'v_lshrrev_b32 v{V_G}, 4, v0')
    a(f'v_lshlrev_b32 v{V_L16}, 4, v0')
    a(f's_mov_b32 s{S_HW}, s{S_W}')
    a(f's_cmp_lg_u32 s{S_W}, 0')
    a('s_cbranch_scc1 KG_N0')
    a('s_setprio 2')
    a(f'v_lshl_add_u32 {u(1)}, v0, 2, v{V_Z}')
    a(f'v_mov_b32 {u(2)}, 0')
    a(f'ds_write_b32 {u(1)}, {u(2)}')
    def xaddr():
        a(f'v_lshrrev_b32 {u(0)}, 3, v0')
        a(f'v_and_b32 {u(1)}, 7, v0')
        a(f'v_lshrrev_b32 {u(2)}, 2, {u(0)}')
        a(f'v_and_b32 {u(3)}, 3, {u(0)}')
        a(f'v_lshl_add_u32 {u(2)}, {u(2)}, 4, {u(3)}')
        a(f'v_lshlrev_b32 {u(2)}, 15, {u(2)}')
        a(f's_lshl_b32 s{S_T0}, s{S_QG}, 10')
        a(f'v_add_u32 {u(2)}, s{S_T0}, {u(2)}')
        a(f'v_xor_b32 {u(3)}, v{V_G}, {u(1)}')
        a(f'v_lshl_add_u32 {u(4)}, {u(3)}, 4, {u(2)}')
        a(f'v_xor_b32 {u(3)}, 4, {u(3)}')
        a(f'v_lshl_add_u32 {u(5)}, {u(3)}, 4, {u(2)}')
        a(f'v_add_u32 {u(5)}, {131072 - 1024}, {u(5)}')
    def xpair(sd, sl, sp):
        a(f's_lshr_b32 s{sd}, s{sp}, 1')
        a(f's_lshl_b32 s{sd}, s{sd}, 20')
        a(f's_and_b32 s{sl}, s{sp}, 1')
        a(f's_lshl_b32 s{sl}, s{sl}, 18')
        a(f's_add_u32 s{sd}, s{sd}, s{sl}')
        a(f's_lshl_b32 s{sl}, s{sp}, 11')
    a(f's_lshr_b32 s{S_RB}, s{S_HG}, 1')
    a(f's_and_b32 s{S_TY}, s{S_HG}, 1')
    xaddr()
    xpair(S_T2, S_T3, S_RB)
    a(f's_mov_b32 s{R_A+2}, 16384')
    a(f's_mov_b32 s{R_A+3}, 0x20000')
    a(f's_mov_b32 s{R_X+2}, {2048 * 1024}')
    a(f's_mov_b32 s{R_X+3}, 0x20000')
    a(f's_mov_b32 m0, s{S_T3}')
    a(f's_cmp_eq_u32 s{S_TY}, 1')
    a('s_waitcnt lgkmcnt(0)')
    stamp(8, 1)
    a(f's_cselect_b64 s[{R_A}:{R_A+1}], s[{S_WV}:{S_WV+1}], s[{S_WK}:{S_WK+1}]')
    a(f's_mov_b64 s[{R_X}:{R_X+1}], s[{S_X}:{S_X+1}]')
    for c in range(8):
        if c:
            a(f's_add_u32 m0, s{S_T3}, {c*8192}')
            a(f's_add_u32 s{S_T2}, s{S_T2}, 128')
        a(f'buffer_load_dwordx4 {u(4)}, {xs}, s{S_T2} offen lds')
        a(f'buffer_load_dwordx4 {u(5)}, {xs}, s{S_T2} offen offset:1024 lds')
        if c == 0: stamp(10, 1)
    for q in range(4):
        a(f's_mov_b32 m0, {L_KW + q*4096}')
        a(f's_movk_i32 s{S_T0}, {q*4096}')
        for j in range(4):
            a(f'buffer_load_dwordx4 v{V_L16}, {ra}, s{S_T0} offen offset:{j*1024} lds')
    srd(a, R_B, S_GT, 1024)
    a(f's_mov_b32 m0, {L_GATE}')
    a(f's_lshr_b32 s{S_T2}, s2, 3')
    a(f'buffer_load_dwordx4 v{V_L16}, {rb_}, 0 offen lds')
    if TOUCH:
        srd(a, R_TB, S_WQ, 512 * 1024)
        a(f'v_lshlrev_b32 {u(2)}, 7, v0')
        a(f's_lshl_b32 s{S_T0}, s{S_T2}, 14')
        a(f's_add_u32 s{S_T1}, s{S_T0}, 8192')
        a(f'buffer_load_dword v{KA+16}, {u(2)}, {tb}, s{S_T0} offen')
        a(f'buffer_load_dword v{KA+17}, {u(2)}, {tb}, s{S_T1} offen')
        a(f'v_and_b32 {u(3)}, 32, v0')
        a(f'v_lshlrev_b32 {u(3)}, 10, {u(3)}')
        a(f'v_and_b32 {u(2)}, 0xfff, {u(2)}')
        a(f'v_add_u32 {u(3)}, {u(3)}, {u(2)}')
        a(f's_and_b32 s{S_T3}, s2, 7')
        a(f's_lshl_b32 s{S_T3}, s{S_T3}, 12')
        a(f's_lshl_b32 s{S_T0}, s{S_T2}, 16')
        a(f's_add_u32 s{S_T3}, s{S_T3}, s{S_T0}')
        a(f'buffer_load_dword v{KA+18}, {u(3)}, {xs}, s{S_T3} offen')
    stamp(11, 1)
    a('s_barrier')
    stamp(1)
    a('s_branch KG_KV')
    a.label('KG_N0')
    a(f's_cmp_lt_u32 s{S_W}, 4')
    a('s_cbranch_scc1 KG_N1')
    if PRET:
        a(f's_getpc_b64 s[{R_A}:{R_A+1}]')
        a.label('KG_PC')
        a(f's_mov_b32 s{R_A+2}, KG_END-KG_PC')
        a(f's_mov_b32 s{R_A+3}, 0x20000')
        a(f's_lshl_b32 s{S_T0}, s{S_W}, 13')
        a(f's_sub_u32 s{S_T1}, s{S_T0}, 0x8000')
        a(f'v_lshlrev_b32 v212, 7, v0')
        a(f'buffer_load_dword v213, v212, {ra}, s{S_T1} offen')
        a(f'buffer_load_dword v214, v212, {ra}, s{S_T0} offen')
    a('s_branch KG_ATT')
    a.label('KG_N1')
    a('s_setprio 2')
    a(f's_cmp_lg_u32 s{S_W}, 1')
    a('s_cbranch_scc1 KG_N2')
    a(f's_mov_b32 s{S_T3}, {WS_ROOT}')
    a(f'v_mov_b32 {u(2)}, 0')
    a('s_waitcnt lgkmcnt(0)')
    srd(a, R_WS, S_WS, WS_SIZE)
    a(f'buffer_load_dword {u(3)}, {u(2)}, {ws}, s{S_T3} offen{SC}')
    a('s_barrier')
    stamp(1)
    a('s_branch KG_TAG')
    a.label('KG_N2')
    S_O, S_L = S_P, S_P + 4
    assert S_O + 8 <= S_A
    S_PV = S_NH
    LK = LOAD_D // 2
    assert L_X == 0 and 1 <= LK <= 7
    a(f's_mov_b32 s{S_PV}, {-LK}')
    a(f's_mov_b32 s{R_A+3}, 0x20000')
    a(f's_cmp_eq_u32 s{S_HW}, 3')
    a('s_cbranch_scc1 KG_LDW')
    def ld_tail(tag, n, flag, first=None):
        a(f'v_mov_b32 {u(6)}, s{S_PV}')
        a(f's_cmp_le_i32 s{S_PV}, 0')
        a(f's_cbranch_scc1 KG_LL{tag}')
        if first: first()
        a(f's_waitcnt vmcnt({n*LK})')
        a(f'ds_write_b32 v{V_Z}, {u(6)} offset:{4*flag}')
        stamp(9, 1)
        if FST:
            a(f's_cmp_lg_u32 s{S_PV}, 1')
            a(f's_cbranch_scc1 KG_FS{tag}')
            stamp(7, 1)
            a.label(f'KG_FS{tag}')
        a(f's_cmp_lt_i32 s{S_PV}, {8-LK}')
        a(f's_cbranch_scc1 KG_LL{tag}')
        for j in range(LK):
            a(f'v_mov_b32 {u(6)}, {8-LK+1+j}')
            a(f's_waitcnt vmcnt({n*(LK-1-j)})')
            a(f'ds_write_b32 v{V_Z}, {u(6)} offset:{4*flag}')
            if j < 2: stamp(10 + j, 1)
        a('s_branch KG_H2B')
    xaddr()
    a(f's_lshr_b32 s{S_T1}, s{S_HG}, 1')
    for k in range(3):
        a(f's_add_u32 s{S_T1}, s{S_T1}, 1')
        a(f's_and_b32 s{S_T1}, s{S_T1}, 3')
        xpair(S_O + k, S_L + k, S_T1)
    a(f's_mov_b32 s{R_A+2}, {2048 * 1024}')
    a(f's_mov_b32 s{S_T2}, 0')
    a('s_waitcnt lgkmcnt(0)')
    a(f's_mov_b64 s[{R_A}:{R_A+1}], s[{S_X}:{S_X+1}]')
    stamp(8, 1)
    a('s_barrier')
    stamp(1)
    a.label('KG_LLX')
    a(f's_add_i32 s{S_PV}, s{S_PV}, 1')
    for k in range(3):
        a(f's_mov_b32 m0, s{S_L+k}')
        a(f's_add_u32 s{S_L+k}, s{S_L+k}, 8192')
        a(f'buffer_load_dwordx4 {u(4)}, {ra}, s{S_O+k} offen lds')
        a(f'buffer_load_dwordx4 {u(5)}, {ra}, s{S_O+k} offen offset:1024 lds')
        a(f's_add_u32 s{S_O+k}, s{S_O+k}, 128')
    def kx_wait():
        a(f's_cmp_lg_u32 s{S_T2}, 0')
        a('s_cbranch_scc1 KG_KXD')
        a.label('KG_KXW')
        a(f'ds_read_b32 {u(7)}, v{V_Z} offset:{4*F_KX}')
        a('s_waitcnt lgkmcnt(0)')
        a(f'v_readfirstlane_b32 s{S_T2}, {u(7)}')
        a(f's_cmp_lg_u32 s{S_T2}, 0')
        a('s_cbranch_scc1 KG_KXD')
        a('s_sleep 1')
        a(f's_sub_u32 s{S_LIM}, s{S_LIM}, 1')
        a('s_cbranch_scc0 KG_KXW')
        a(f's_mov_b32 s{S_LIM}, 0')
        a.label('KG_KXD')
    ld_tail('X', 6, F_CX, kx_wait)
    a.label('KG_LDW')
    a(f'v_lshrrev_b32 {u(0)}, 3, v0')
    a(f'v_and_b32 {u(1)}, 7, v0')
    a(f'v_and_b32 {u(2)}, 1, v{V_G}')
    a(f'v_lshlrev_b32 {u(2)}, 2, {u(2)}')
    a(f'v_xor_b32 {u(2)}, {u(2)}, {u(1)}')
    a(f'v_lshlrev_b32 {u(2)}, 4, {u(2)}')
    a(f'v_lshl_add_u32 {u(2)}, {u(0)}, 10, {u(2)}')
    a(f's_lshl_b32 s{S_T0}, s{S_HG}, 7')
    a(f'v_add_u32 {u(2)}, s{S_T0}, {u(2)}')
    for j in range(1, 4):
        a(f'v_add_u32 {u(2+j)}, {7168*j}, {u(2)}')
    a(f's_mov_b32 s{S_O}, 0')
    a(f's_mov_b32 s{S_L}, {L_WQ}')
    a(f's_mov_b32 s{R_A+2}, {512 * 1024}')
    a('s_waitcnt lgkmcnt(0)')
    a(f's_mov_b64 s[{R_A}:{R_A+1}], s[{S_WQ}:{S_WQ+1}]')
    stamp(8, 1)
    a('s_barrier')
    stamp(1)
    a.label('KG_LLW')
    a(f's_add_i32 s{S_PV}, s{S_PV}, 1')
    for k in range(2):
        a(f's_mov_b32 m0, s{S_L}')
        a(f's_add_u32 s{S_L}, s{S_L}, 4096')
        for j in range(4):
            a(f'buffer_load_dwordx4 {u(2+j)}, {ra}, s{S_O} offen offset:{1024*j} lds')
        a(f's_add_u32 s{S_O}, s{S_O}, 32768')
        if k == 0: a(f's_waitcnt vmcnt({8*LK})')
    ld_tail('W', 8, F_CW)

    uid = [0]
    def lds_wait(flag, val, vtmp, sleep=1, addr=None, sdst=None):
        uid[0] += 1; u = uid[0]
        addr = V_Z if addr is None else addr
        sdst = S_T0 if sdst is None else sdst
        a.label(f'KG_LW{u}')
        a(f'ds_read_b32 v{vtmp}, v{addr} offset:{4*flag}')
        a('s_waitcnt lgkmcnt(0)')
        a(f'v_readfirstlane_b32 s{sdst}, v{vtmp}')
        a(f's_cmp_ge_u32 s{sdst}, {val}')
        a(f's_cbranch_scc1 KG_LD{u}')
        a(f's_sleep {sleep}')
        a(f's_sub_u32 s{S_LIM}, s{S_LIM}, 1')
        a(f's_cbranch_scc0 KG_LW{u}')
        a(f's_mov_b32 s{S_LIM}, 0')
        a.label(f'KG_LD{u}')
    def lds_add(flag, vtmp):
        a(f'v_mov_b32 v{vtmp}, 1')
        a('s_mov_b64 exec, 1')
        a(f'ds_add_u32 v{V_Z}, v{vtmp} offset:{4*flag}')
        a('s_mov_b64 exec, -1')
    def get_tag(vtmp):
        a(f'ds_read_b32 v{vtmp}, v{V_Z} offset:{4*F_TAG}')
        a('s_waitcnt lgkmcnt(0)')
        a(f'v_readfirstlane_b32 s{S_TAG}, v{vtmp}')

    V_OQ, V_OV = 2, 3
    V_M = 4
    V_H = 6
    V_Q = 8
    V_S = 16
    V_P = 48
    V_O = 64
    V_K = 96
    V_V = 128
    V_T = 192
    S_N = S_KH
    V_PGA, V_PGV, V_LK = V_T + 16, V_T + 17, V_T + 18
    a.label('KG_ATT')
    a('s_setprio 1')
    a(f's_and_b32 s{S_CT}, s{S_W}, 1')
    a(f's_bfe_u32 s{S_A}, s{S_W}, 0x10001')
    a(f's_mov_b32 s{S_N}, 0')
    a('v_and_b32 v1, 31, v0')
    a(f'v_lshrrev_b32 v{V_H}, 5, v0')
    V_XA = V_T
    V_WA = V_T + 4
    t = lambda i: f'v{V_T+8+i}'
    a(f'v_bfe_u32 {t(0)}, v0, 1, 3')
    a(f's_lshl_b32 s{S_T0}, s{S_A}, 12')
    a(f'v_lshlrev_b32 {t(1)}, 7, v1')
    a(f'v_add_u32 {t(1)}, s{S_T0}, {t(1)}')
    for ks in range(4):
        a(f'v_add_u32 {t(2)}, {2*ks}, v{V_H}')
        a(f'v_xor_b32 {t(2)}, {t(2)}, {t(0)}')
        a(f'v_lshl_add_u32 v{V_XA+ks}, {t(2)}, 4, {t(1)}')
    a(f'v_bfe_u32 {t(0)}, v0, 2, 2')
    a(f'v_and_b32 {t(1)}, 3, v0')
    a(f'v_bfe_u32 {t(2)}, v0, 4, 1')
    a(f'v_lshl_add_u32 {t(3)}, v{V_H}, 3, {t(0)}')
    a(f'v_lshlrev_b32 {t(3)}, 7, {t(3)}')
    a(f'v_lshrrev_b32 {t(4)}, 1, {t(1)}')
    a(f'v_and_b32 {t(5)}, 1, {t(1)}')
    a(f'v_lshrrev_b32 {t(6)}, 1, {t(0)}')
    a(f'v_lshlrev_b32 {t(6)}, 2, {t(6)}')
    a(f'v_lshl_add_u32 {t(7)}, {t(2)}, 1, {t(4)}')
    a(f's_lshl_b32 s{S_T0}, s{S_CT}, 2')
    a(f'v_add_u32 {t(7)}, s{S_T0}, {t(7)}')
    a(f'v_xor_b32 {t(7)}, {t(7)}, {t(6)}')
    a(f'v_lshl_add_u32 {t(7)}, {t(7)}, 4, {t(3)}')
    a(f'v_lshl_add_u32 v{V_WA}, {t(5)}, 3, {t(7)}')
    a(f'v_add_u32 v{V_WA}, {L_WQ}, v{V_WA}')
    a(f'v_lshlrev_b32 v{V_OQ}, 4, v0')
    a(f'v_add_u32 v{V_LK}, {L_PRE}, v{V_OQ}')
    a(f's_lshl_b32 s{S_T0}, s{S_W}, 2')
    a(f'v_add_u32 v{V_PGA}, s{S_T0}, v{V_Z}')
    a(f'v_mov_b32 v{V_PGV}, 1')
    a(f's_mov_b32 s{S_VM}, 0xffff')
    a(f's_mov_b32 s{S_VM+1}, 0xffff')
    a(f'v_and_b32 {t(0)}, 27, v1')
    a(f'v_cmp_eq_u32 vcc, 16, {t(0)}')
    a(f'v_mov_b32 {t(1)}, 0x3f803f80')
    a(f'v_mov_b32 v{V_M}, 0')
    a(f'v_mov_b32 v{V_M+1}, 0')
    a(f'v_cndmask_b32 {t(1)}, 0, {t(1)}, vcc')
    for i in range(64):
        a(f'v_mov_b32 v{V_V+i}, {t(1)}')
    QA = V_S
    if QPIPE == 2:
        for i in range(16):
            a(f'v_mov_b32 v{QA+i}, 0')
    QB = (V_O, V_S + 16)
    a(f's_mov_b32 s{S_SEEN}, 0')
    a('s_waitcnt lgkmcnt(0)')
    srd(a, R_WS, S_WS, WS_SIZE)
    stamp(11, 1)
    a('s_barrier')
    stamp(1)
    def q_wait(c):
        a(f's_cmp_gt_u32 s{S_SEEN}, {c}')
        a(f's_cbranch_scc1 KG_QG{c}')
        a.label(f'KG_QP{c}')
        a(f'ds_read_b64 {vr(V_T+8,2)}, v{V_Z} offset:{4*F_CX}')
        a('s_waitcnt lgkmcnt(0)')
        a(f'v_min_u32 {t(0)}, {t(0)}, {t(1)}')
        a('s_nop 0')
        a(f'v_readfirstlane_b32 s{S_SEEN}, {t(0)}')
        a(f's_cmp_gt_u32 s{S_SEEN}, {c}')
        a(f's_cbranch_scc1 KG_QG{c}')
        if c < 7 or Q7_SLEEP:
            a('s_sleep 1')
        a(f's_sub_u32 s{S_LIM}, s{S_LIM}, 1')
        a(f's_cbranch_scc0 KG_QP{c}')
        a(f's_mov_b32 s{S_LIM}, 0')
        a.label(f'KG_QG{c}')
        if c in (0, 4, 6, 7): stamp({0: 7, 4: 8, 6: 9, 7: 10}[c], 1)
    def q_reads(c):
        b = QB[c & 1]
        for ks in range(4):
            a(f'ds_read_b128 {vr(b+4*ks,4)}, v{V_XA+ks} offset:{c*8192}')
            a(f'ds_read_b64_tr_b16 {vr(b+16+4*ks,2)}, v{V_WA} offset:{c*8192+ks*2048}')
            a(f'ds_read_b64_tr_b16 {vr(b+16+4*ks+2,2)}, v{V_WA} offset:{c*8192+ks*2048+512}')
    def progress():
        a(f'ds_write_b32 v{V_PGA}, v{V_PGV} offset:{4*(F_PGW-4)}')
    spins = []
    def pre_check(n):
        uid[0] += 1; u = uid[0]
        a(f's_cmp_lt_u32 s{S_N}, {n}')
        a(f's_cbranch_scc1 KG_SP{u}')
        a.label(f'KG_SR{u}')
        spins.append(('pre', u, n))
    def pos_check():
        uid[0] += 1; u = uid[0]
        a(f's_cmp_lt_u32 s{S_KOFF}, s{S_KB}')
        a(f's_cbranch_scc1 KG_SP{u}')
        a.label(f'KG_SR{u}')
        spins.append(('q', u, 0))
    def emit_spins():
        for kind, u, n in spins:
            a.label(f'KG_SP{u}')
            if kind == 'pre':
                a(f'ds_read_b32 v{V_T+8}, v{V_Z} offset:{4*F_PRE}')
                a('s_waitcnt lgkmcnt(0)')
                a(f'v_readfirstlane_b32 s{S_N}, v{V_T+8}')
                a(f's_cmp_ge_u32 s{S_N}, {n}')
                a(f's_cbranch_scc1 KG_SR{u}')
            else:
                a(f'ds_read_b32 v{V_T+8}, v{V_Z} offset:{4*F_POS}')
                a('s_waitcnt lgkmcnt(0)')
                a(f'v_readfirstlane_b32 s{S_KOFF}, v{V_T+8}')
                a(f's_cmp_ge_u32 s{S_KOFF}, s{S_KB}')
                a(f's_cbranch_scc1 KG_SR{u}')
                a('s_sleep 1')
            a(f's_sub_u32 s{S_LIM}, s{S_LIM}, 1')
            a(f's_cbranch_scc0 KG_SP{u}')
            a(f's_mov_b32 s{S_LIM}, 0')
            a(f's_branch KG_SR{u}')
        spins.clear()

    def load_k(slot, off):
        a(f'buffer_load_dwordx4 {vr(V_K+4*slot,4)}, v{V_OQ}, {ws}, s{S_KOFF} offen offset:{off}{KVSC}')
    def kv_group(c, adv=True):
        load_k(c & 7, 0)
        load_k((c + 1) & 7, 2048)
        a(f's_mov_b64 exec, s[{S_VM}:{S_VM+1}]')
        for j in range(2):
            sl = (c + j) & 7
            a(f'buffer_load_dwordx4 {vr(V_V+8*sl,4)}, v{V_OQ}, {ws}, s{S_KOFF} offen offset:{2048*j+1024}{KVSC}')
            a(f'buffer_load_dwordx4 {vr(V_V+8*sl+4,4)}, v{V_OQ}, {ws}, s{S_KOFF} offen offset:{2048*j+1280}{KVSC}')
        a('s_mov_b64 exec, -1')
        if adv:
            a(f's_add_u32 s{S_KOFF}, s{S_KOFF}, 4096')
    def pre_reads(c, n=1):
        for j in range(c, c + n):
            a(f'ds_read_b128 {vr(V_K+4*j,4)}, v{V_LK} offset:{2048*j}')
        a(f's_mov_b64 exec, s[{S_VM}:{S_VM+1}]')
        for j in range(c, c + n):
            a(f'ds_read_b128 {vr(V_V+8*j,4)}, v{V_LK} offset:{2048*j+1024}')
            a(f'ds_read_b128 {vr(V_V+8*j+4,4)}, v{V_LK} offset:{2048*j+1280}')
        a('s_mov_b64 exec, -1')
    def mfma_s(t_, slot):
        a(f'v_mfma_f32_32x32x16_bf16 {vr(V_S+16*t_,16)}, {vr(V_K+4*slot,4)}, {vr(V_Q+4*t_,4)}, 0')
    def mfma_pv(t_, slot, pp, zero=False):
        cc = '0' if zero else vr(V_O+16*t_, 16)
        a(f'v_mfma_f32_32x32x16_bf16 {vr(V_O+16*t_,16)}, {vr(V_V+8*slot+4*pp,4)}, {vr(V_P+8*t_+4*pp,4)}, {cc}')
    def cv(t_, i):
        a(f'v_cvt_pk_bf16_f32 v{V_P+8*t_+i}, v{V_S+16*t_+2*i}, v{V_S+16*t_+2*i+1}')

    if QPIPE == 2:
        S_QC = S_CNT
        def qw(k):
            a(f's_cmp_gt_u32 s{S_SEEN}, s{S_QC}')
            a(f's_cbranch_scc0 KG_QS{k}')
            a.label(f'KG_QR{k}')
        def qm(b, wait=True):
            for ks in range(4):
                if wait: a(f's_waitcnt lgkmcnt({min(15, 21 - 3*ks)})')
                a(f'v_mfma_f32_32x32x16_bf16 {vr(QA,16)}, {vr(b+16+4*ks,4)}, {vr(b+4*ks,4)}, {vr(QA,16)}')
        a(f's_mov_b32 s{S_QC}, 0')
        a('s_branch KG_QS0')
        for k in range(3):
            a.label(f'KG_QS{k}')
            a(f'ds_read_b64 {vr(V_T+8,2)}, v{V_Z} offset:{4*F_CX}')
            a('s_waitcnt lgkmcnt(0)')
            a(f'v_min_u32 {t(0)}, {t(0)}, {t(1)}')
            a('s_nop 0')
            a(f'v_readfirstlane_b32 s{S_SEEN}, {t(0)}')
            a(f's_cmp_gt_u32 s{S_SEEN}, s{S_QC}')
            a(f's_cbranch_scc1 KG_QR{k}')
            a('s_sleep 1')
            a(f's_sub_u32 s{S_LIM}, s{S_LIM}, 1')
            a(f's_cbranch_scc0 KG_QS{k}')
            a(f's_mov_b32 s{S_LIM}, 0')
            a(f's_branch KG_QR{k}')
        def fread():
            a(f'ds_read_b128 {vr(V_T+8,4)}, v{V_Z} offset:{4*F_CX}')
        def qg(n_, cn, ks):
            a(f'ds_read_b128 {vr(n_+4*ks,4)}, v{V_XA+ks} offset:{cn*8192}')
            a(f'ds_read_b64_tr_b16 {vr(n_+16+4*ks,2)}, v{V_WA} offset:{cn*8192+ks*2048}')
            a(f'ds_read_b64_tr_b16 {vr(n_+16+4*ks+2,2)}, v{V_WA} offset:{cn*8192+ks*2048+512}')
        def qf(b, ks):
            a(f'v_mfma_f32_32x32x16_bf16 {vr(QA,16)}, {vr(b+16+4*ks,4)}, {vr(b+4*ks,4)}, {vr(QA,16)}')
        a.label('KG_QR0')
        fread()
        q_reads(0)
        def qstep(cn):
            b = QB[1 - cn]; n_ = QB[cn]
            a('s_waitcnt lgkmcnt(9)')
            qf(b, 0)
            a(f'v_min_u32 {t(0)}, {t(0)}, {t(1)}')
            a(f's_add_u32 s{S_QC}, s{S_QC}, 1')
            a(f'v_readfirstlane_b32 s{S_SEEN}, {t(0)}')
            if cn == 0:
                for r in [V_XA + ks for ks in range(4)] + [V_WA]:
                    a(f'v_add_u32 v{r}, 0x4000, v{r}')
            qw(1 + cn)
            fread()
            qg(n_, cn, 0)
            for ks in range(1, 4):
                a('s_waitcnt lgkmcnt(10)')
                qf(b, ks)
                qg(n_, cn, ks)
        a.label('KG_QLP')
        qstep(1)
        a(f's_cmp_eq_u32 s{S_QC}, 7')
        a('s_cbranch_scc1 KG_QX')
        qstep(0)
        a('s_branch KG_QLP')
        a.label('KG_QX')
        if E('QST', 0):
            stamp(7); a('s_waitcnt lgkmcnt(0)')
        a('s_waitcnt lgkmcnt(9)')
        qf(QB[1], 0)
        a(f'v_readfirstlane_b32 s{S_N}, {t(2)}')
        pre_check(1)
        pre_reads(0)
        for ks in range(1, 4):
            a(f's_waitcnt lgkmcnt({12 - 3*ks})')
            qf(QB[1], ks)
        progress()
        stamp(2)
    elif QPIPE:
        q_wait(0); q_reads(0)
        for c in range(8):
            if c < 7:
                q_wait(c + 1); q_reads(c + 1)
            else:
                a('s_waitcnt lgkmcnt(0)')
                progress()
                stamp(2)
                pre_check(1)
                pre_reads(0)
            b = QB[c & 1]
            for ks in range(4):
                if c < 7: a(f's_waitcnt lgkmcnt({min(15, 21 - 3*ks)})')
                cc = vr(QA, 16) if (c or ks) else '0'
                a(f'v_mfma_f32_32x32x16_bf16 {vr(QA,16)}, {vr(b+16+4*ks,4)}, {vr(b+4*ks,4)}, {cc}')
    else:
        for c in range(8):
            q_wait(c); q_reads(c)
            b = QB[c & 1]
            for ks in range(4):
                a(f's_waitcnt lgkmcnt({9 - 3*ks})')
                cc = vr(QA, 16) if (c or ks) else '0'
                a(f'v_mfma_f32_32x32x16_bf16 {vr(QA,16)}, {vr(b+16+4*ks,4)}, {vr(b+4*ks,4)}, {cc}')
        progress()
        stamp(2)

    def body(sub, peel, lds):
        def ex(t_, i):
            r = V_S + 16*t_ + i
            if sub:
                a(f'v_sub_f32 v{r}, v{r}, v{V_M+t_}')
            a(f'v_exp_f32 v{r}, v{r}')
        for b in range(8):
            for t_ in range(2):
                if peel and t_ == 0 and LST:
                    a('s_memtime s[100:101]')
                ex(t_, 0); ex(t_, 1)
                if t_ == 1:
                    mfma_pv(0, b, 1)
                elif not (peel and b == 0):
                    mfma_pv(1, (b - 1) & 7, 1)
                if peel and t_ == 0 and b < 7:
                    pre_check(b + 2)
                    pre_reads(b + 1)
                ex(t_, 2); ex(t_, 3); ex(t_, 4); ex(t_, 5)
                if t_ == 1:
                    if peel or (lds and b in (1, 7)):
                        a('s_waitcnt lgkmcnt(0)')
                    elif not lds and b & 1:
                        a('s_waitcnt vmcnt(12)')
                    if peel and LST:
                        a(f'v_writelane_b32 v{V_T+23}, s100, {8+b}')
                    mfma_s(0, (b + 1) & 7)
                    if lds and b == (6 if peel else 1):
                        progress()
                    if LST and lds and not peel and b == 1:
                        a(f'v_writelane_b32 v{V_T+23}, s100, m0')
                    if peel and b == 6:
                        pos_check()
                        pre_reads(0, 2)
                else:
                    mfma_s(1, b)
                    if peel and b == 6:
                        a(f'v_add_u32 v{V_PGV}, 1, v{V_PGV}')
                    if peel and b == 7:
                        pre_reads(2, 2)
                    if lds and not peel and b == 0:
                        pre_reads(4, 4)
                        a(f'v_add_u32 v{V_PGV}, 1, v{V_PGV}')
                    if lds and not peel and b == 4:
                        pos_check()
                        pre_reads(0, 4)
                    if not lds and b % 2 == 0:
                        kv_group(b + 6)
                ex(t_, 6); ex(t_, 7)
                cv(t_, 0); cv(t_, 1); cv(t_, 2); cv(t_, 3)
                if peel and b == 6 and t_ == 0:
                    a(f'v_add_u32 v{V_LK}, {L_WQ - L_PRE}, v{V_LK}')
                if lds and not peel and b == 3 and t_ == 0:
                    a(f'v_add_u32 v{V_LK}, 0x4000, v{V_LK}')
                    a(f's_add_u32 s{S_KB}, s{S_KB}, 1')
                    a(f'v_and_b32 v{V_LK}, 0x1ffff, v{V_LK}')
                ex(t_, 8); ex(t_, 9)
                mfma_pv(t_, b, 0, zero=(peel and b == 0))
                for i in range(10, 16):
                    ex(t_, i)
                cv(t_, 4); cv(t_, 5); cv(t_, 6); cv(t_, 7)

    def attn_pass(tag, sub, first):
        if first:
            if not QPIPE:
                pre_check(1)
                pre_reads(0)
            stamp(3)
            a('s_nop 4')
            for i in range(8):
                a(f'v_cvt_pk_bf16_f32 v{V_Q+i}, v{QA+2*i}, v{QA+2*i+1}')
            a('s_waitcnt lgkmcnt(0)')
            mfma_s(0, 0)
            a(f's_mov_b32 s{S_CNT}, 6')
            a(f's_mov_b32 s{S_KOFF}, 0')
            a(f's_mov_b32 s{S_KB}, 1')
            stamp(4)
            a('s_nop 4')
            body(False, True, True)
        else:
            a(f's_mov_b32 s{S_KOFF}, {WS_KV}')
            for c in range(0, 6, 2):
                kv_group(c)
            for i in range(32):
                a(f'v_mov_b32 v{V_O+i}, 0')
            for i in range(4):
                a(f'v_mov_b32 v{V_P+12+i}, 0')
            a('s_waitcnt vmcnt(12)')
            mfma_s(0, 0)
            a(f's_mov_b32 s{S_CNT}, 8')
            a('s_nop 10')
        a.label(f'KG_LOOP{tag}')
        if LST and first:
            a('s_memtime s[100:101]')
            a(f's_mov_b32 m0, s{S_CNT}')
        body(sub, False, first)
        a(f's_sub_u32 s{S_CNT}, s{S_CNT}, 1')
        a(f's_cmp_lg_u32 s{S_CNT}, 0')
        a(f's_cbranch_scc1 KG_LOOP{tag}')
        if first:
            last_body()
        else:
            mfma_pv(1, 7, 1)

    S_OA, S_FA, S_LOC, S_BAD = S_P, S_SEEN, S_MH, S_NH
    V_TG, V_ZR, V_PK, V_RC = V_T, V_T + 2, V_T + 4, V_T + 9
    outl = []
    def st2(ins):
        uid[0] += 1; k = uid[0]
        a(f's_cmp_eq_u32 s{S_LOC}, 1')
        a(f's_cbranch_scc0 KG_SG{k}')
        a(ins)
        a.label(f'KG_SH{k}')
        outl.append((k, ins))
    def rng(t_):
        a(f'v_cmp_le_f32 s[{S_C0}:{S_C0+1}], s{S_T0}, v{V_O+16*t_+8}')
        a(f'v_cmp_ge_f32 s[{S_C1}:{S_C1+1}], s{S_T1}, v{V_O+16*t_+8}')
        a(f'v_rcp_f32 v{V_RC}, v{V_O+16*t_+8}')
        a(f's_and_b64 s[{S_C0}:{S_C0+1}], s[{S_C0}:{S_C0+1}], s[{S_C1}:{S_C1+1}]')
        a(f's_cmp_eq_u64 s[{S_C0}:{S_C0+1}], -1')
    def o_store(t_):
        for i in range(8):
            a(f'v_mul_f32 v{V_O+16*t_+i}, v{V_RC}, v{V_O+16*t_+i}')
        for i in range(4):
            a(f'v_cvt_pk_bf16_f32 v{V_PK+i}, v{V_O+16*t_+2*i}, v{V_O+16*t_+2*i+1}')
        st2(f'buffer_store_dwordx4 {vr(V_PK,4)}, v{V_OQ}, {ws}, s{S_OA} offen offset:{1024*t_}')
    def o_flag(t_):
        a('s_mov_b64 exec, 1')
        st2(f'buffer_store_dword v{V_TG}, v{V_ZR}, {ws}, s{S_FA} offen offset:{4*t_}')
        a('s_mov_b64 exec, -1')
    def last_body():
        steps = [(0, c) for c in range(8)] + [(1, c) for c in range(8)]
        def pv(tile, buf, slot, pp):
            a(f'v_mfma_f32_32x32x16_bf16 {vr(V_O+16*tile,16)}, {vr(V_V+8*slot+4*pp,4)}, {vr(V_P+8*buf+4*pp,4)}, {vr(V_O+16*tile,16)}')
        def ex(p_, i):
            a(f'v_exp_f32 v{V_S+16*p_+i}, v{V_S+16*p_+i}')
        for n, (tile, c) in enumerate(steps):
            p_ = n & 1
            pt, pc = steps[n - 1] if n else (1, 7)
            ex(p_, 0); ex(p_, 1)
            pv(pt, 1 - p_, pc, 1)
            ex(p_, 2); ex(p_, 3); ex(p_, 4); ex(p_, 5)
            if n == 2:
                a('s_waitcnt lgkmcnt(0)')
            if n < 15:
                nt, nc = steps[n + 1]
                a(f'v_mfma_f32_32x32x16_bf16 {vr(V_S+16*(1-p_),16)}, {vr(V_K+4*nc,4)}, {vr(V_Q+4*nt,4)}, 0')
            if n == 0:
                pre_reads(4, 4)
                a(f'ds_read_b32 v{V_TG}, v{V_Z} offset:{4*F_TAG}')
                a(f'ds_read_b32 v{V_ZR}, v{V_Z} offset:{4*F_LOC}')
                a(f'v_add_u32 v{V_PGV}, 1, v{V_PGV}')
            if n == 2:
                progress()
                a(f'v_readfirstlane_b32 s{S_LOC}, v{V_ZR}')
                a(f'v_mov_b32 v{V_ZR}, 0')
            if n == 9:
                rng(0)
                a(f's_cselect_b32 s{S_BAD}, 0, 1')
                a('s_cbranch_scc0 KG_L9')
                o_store(0)
                a.label('KG_L9')
            if n == OF_STEP:
                a(f's_cmp_lg_u32 s{S_BAD}, 0')
                a('s_cbranch_scc1 KG_L12')
                a('s_waitcnt vmcnt(0)')
                o_flag(0)
                a(f'ds_write_b32 v{V_Z}, v{V_PGV} offset:{4*F_ADONE}')
                a.label('KG_L12')
            ex(p_, 6); ex(p_, 7)
            cv(p_, 0); cv(p_, 1); cv(p_, 2); cv(p_, 3)
            ex(p_, 8); ex(p_, 9)
            pv(tile, p_, c, 0)
            for i in range(10, 16):
                ex(p_, i)
            cv(p_, 4); cv(p_, 5); cv(p_, 6); cv(p_, 7)
        a('s_nop 1')
        pv(1, 1, 7, 1)

    a(f's_lshl_b32 s{S_T2}, s{S_QG}, 1')
    a(f's_add_u32 s{S_T2}, s{S_T2}, s{S_A}')
    a(f's_lshl_b32 s{S_T3}, s{S_HG}, 1')
    a(f's_add_u32 s{S_T3}, s{S_T3}, s{S_CT}')
    a(f's_lshl_b32 s{S_T2}, s{S_T2}, 4')
    a(f's_add_u32 s{S_T2}, s{S_T2}, s{S_T3}')
    a(f's_lshl_b32 s{S_FA}, s{S_T2}, 7')
    a(f's_add_u32 s{S_FA}, s{S_FA}, {WS_FL4}')
    a(f's_lshl_b32 s{S_OA}, s{S_T2}, 11')
    a(f's_add_u32 s{S_OA}, s{S_OA}, {WS_O}')
    a(f's_mov_b32 s{S_T0}, {f32_bits(2.0**-30)}')
    a(f's_mov_b32 s{S_T1}, {f32_bits(2.0**30)}')
    attn_pass('A', False, True)
    stamp(5)
    a('s_nop 12')
    rng(1)
    a('s_cbranch_scc0 KG_SLOW')
    a(f's_cmp_lg_u32 s{S_BAD}, 0')
    a('s_cbranch_scc1 KG_SLOW')
    a.label('KG_OUT')
    o_store(1)
    a('s_waitcnt vmcnt(0)')
    stamp(6)
    o_flag(1)
    dump(1)
    a('s_endpgm')
    emit_spins()

    a.label('KG_SLOW')
    lds_wait(F_N, 127, V_T + 8, sdst=S_T2)
    a('s_waitcnt vmcnt(0)')
    a(f'v_mov_b32 v{V_M}, 0xff800000')
    a(f'v_mov_b32 v{V_M+1}, 0xff800000')
    a(f's_mov_b32 s{S_KOFF}, {WS_KV}')
    a(f's_mov_b32 s{S_CNT}, 64')
    a.label('KG_MAXLOOP')
    load_k(0, 0)
    a(f's_add_u32 s{S_KOFF}, s{S_KOFF}, 2048')
    a('s_waitcnt vmcnt(0)')
    mfma_s(0, 0)
    mfma_s(1, 0)
    a('s_nop 12')
    for t_ in range(2):
        for i in range(8):
            a(f'v_max3_f32 v{V_M+t_}, v{V_S+16*t_+2*i}, v{V_S+16*t_+2*i+1}, v{V_M+t_}')
    a(f's_sub_u32 s{S_CNT}, s{S_CNT}, 1')
    a(f's_cmp_lg_u32 s{S_CNT}, 0')
    a('s_cbranch_scc1 KG_MAXLOOP')
    for t_ in range(2):
        a(f'v_mov_b32 v{V_T+4+t_}, v{V_M+t_}')
    a('s_nop 1')
    for t_ in range(2):
        a(f'v_permlane32_swap_b32 v{V_M+t_}, v{V_T+4+t_}')
    a('s_nop 1')
    for t_ in range(2):
        a(f'v_max_f32 v{V_M+t_}, v{V_M+t_}, v{V_T+4+t_}')
    attn_pass('B', True, False)
    a('s_nop 12')
    a(f'v_rcp_f32 v{V_RC}, v{V_O+8}')
    a('s_nop 0')
    o_store(0)
    a('s_waitcnt vmcnt(0)')
    o_flag(0)
    a(f'ds_write_b32 v{V_Z}, v{V_PGV} offset:{4*F_ADONE}')
    a(f'v_rcp_f32 v{V_RC}, v{V_O+24}')
    a('s_nop 0')
    a('s_branch KG_OUT')
    for k, ins in outl:
        a.label(f'KG_SG{k}')
        a(ins + SC)
        a(f's_branch KG_SH{k}')

    def hsetup():
        a(f's_lshl_b32 s{S_F}, s{S_HG}, 5')
        a(f's_add_u32 s{S_F}, s{S_F}, s{S_QG}')
        srd(a, R_WS, S_WS, WS_SIZE)

    def pg_wait(val, sleep=2, vb=V_U+4):
        uid[0] += 1; k = uid[0]
        a.label(f'KG_PW{k}')
        a(f'ds_read_b128 {vr(vb,4)}, v{V_Z} offset:{4*F_PGW}')
        a('s_waitcnt lgkmcnt(0)')
        a(f'v_min3_u32 v{vb}, v{vb}, v{vb+1}, v{vb+2}')
        a(f'v_min_u32 v{vb}, v{vb}, v{vb+3}')
        a('s_nop 0')
        a(f'v_readfirstlane_b32 s{S_T0}, v{vb}')
        a(f's_cmp_ge_u32 s{S_T0}, {val}')
        a(f's_cbranch_scc1 KG_PD{k}')
        a(f's_sleep {sleep}')
        a(f's_sub_u32 s{S_LIM}, s{S_LIM}, 1')
        a(f's_cbranch_scc0 KG_PW{k}')
        a(f's_mov_b32 s{S_LIM}, 0')
        a.label(f'KG_PD{k}')
    def kv_dma(s_cls, s_lds):
        for q in range(4):
            a(f's_mov_b32 m0, s{s_lds}')
            a(f's_add_u32 s{s_lds}, s{s_lds}, 4096')
            for j in range(4):
                a(f'buffer_load_dwordx4 v{V_L16}, {ws}, s{s_cls} offen offset:{1024*j}{KVSC} lds')
            a(f's_add_u32 s{s_cls}, s{s_cls}, 4096')
    def thr():
        a(f's_waitcnt vmcnt({THR})')
    S_TGX = S_MH
    def flag_store(base, idx=None, stag=None):
        idx = f's{S_F}' if idx is None else idx
        stag = S_TAG if stag is None else stag
        a(f's_lshr_b32 s{S_T0}, {idx}, 2')
        a(f's_lshl_b32 s{S_T0}, s{S_T0}, 7')
        a(f's_and_b32 s{S_T1}, {idx}, 3')
        a(f's_lshl_b32 s{S_T1}, s{S_T1}, 2')
        a(f's_add_u32 s{S_T0}, s{S_T0}, s{S_T1}')
        a(f's_add_u32 s{S_T0}, s{S_T0}, {base}')
        a(f'v_mov_b32 {u(0)}, 0')
        a(f'v_mov_b32 {u(1)}, s{stag}')
        a('s_mov_b64 exec, 1')
        a(f'buffer_store_dword {u(1)}, {u(0)}, {ws}, s{S_T0} offen{SC}')
        a('s_mov_b64 exec, -1')
    def join_flag(cnt, n, base):
        uid[0] += 1; k = uid[0]
        a(f'v_mov_b32 {u(0)}, 1')
        a('s_waitcnt vmcnt(0)')
        a('s_mov_b64 exec, 1')
        a(f'ds_add_rtn_u32 {u(1)}, v{V_Z}, {u(0)} offset:{4*cnt}')
        a('s_mov_b64 exec, -1')
        a('s_waitcnt lgkmcnt(0)')
        a(f'v_readfirstlane_b32 s{S_T0}, {u(1)}')
        a(f's_cmp_lg_u32 s{S_T0}, {n-1}')
        a(f's_cbranch_scc1 KG_JN{k}')
        flag_store(base)
        a.label(f'KG_JN{k}')
    S_NQ, S_NEW, S_LB, S_QU, S_PUB = S_P, S_KH, S_KB, S_SEEN, S_KOFF
    def glob_poll(tag, execmask, sleep, wide=True, lsh=7):
        a(f's_mov_b32 s{S_CNT}, {POLL_LIMIT}')
        a(f'v_lshlrev_b32 {u(0)}, {lsh}, v0')
        if execmask == 0xffffffff:
            a('s_mov_b32 exec_hi, 0')
        else:
            a(f's_mov_b64 exec, {execmask}')
        a.label(f'KG_GP{tag}')
        if wide:
            a(f'buffer_load_dwordx4 {vr(V_U+4,4)}, {u(0)}, {ws}, s{S_T1} offen{SC}')
            a('s_waitcnt vmcnt(0)')
            for i in range(4):
                a(f'v_xor_b32 {u(4+i)}, s{S_TGX if tag == "KV" else S_TAG}, {u(4+i)}')
            a(f'v_or3_b32 {u(4)}, {u(4)}, {u(5)}, {u(6)}')
            a(f'v_or_b32 {u(4)}, {u(4)}, {u(7)}')
            if tag == 'KV':
                a(f'v_lshlrev_b32 {u(5)}, 4, {u(4)}')
                a(f'v_cmp_ne_u32 vcc, 0, {u(5)}')
            else:
                a(f'v_cmp_ne_u32 vcc, 0, {u(4)}')
        else:
            a(f'buffer_load_dword {u(4)}, {u(0)}, {ws}, s{S_T1} offen{SC}')
            a('s_waitcnt vmcnt(0)')
            a(f'v_cmp_ne_u32 vcc, s{S_TAG}, {u(4)}')
        a(f's_sub_u32 s{S_CNT}, s{S_CNT}, 1')
        a(f's_cbranch_scc1 KG_GD{tag}')
        if tag == 'KV':
            S_DN = S_VM
            a(f's_and_b64 s[{S_C0}:{S_C0+1}], exec, vcc')
            a(f's_or_b64 s[{S_C1}:{S_C1+1}], s[{S_C0}:{S_C0+1}], s[{S_DN}:{S_DN+1}]')
            a('s_mov_b64 exec, -1')
            for c in range(8):
                m = 0xff << (8 * (c & 3))
                a(f's_and_b32 s{S_T0}, s{S_C1+(c>>2)}, {hex(m)}')
                a(f's_cselect_b32 s{S_T0}, 0, {hex(m)}')
                a(f's_cselect_b32 s{S_T2}, 0, {1 << c}')
                a(f's_or_b32 s{S_DN+(c>>2)}, s{S_DN+(c>>2)}, s{S_T0}')
                a(f's_or_b32 s{S_NEW}, s{S_NEW}, s{S_T2}')
            a('s_cbranch_scc0 KG_QE')
            a(f's_cmp_lg_u32 s{S_NQ}, 0')
            a('s_cbranch_scc1 KG_QL')
            pg_wait(1, 1, 16)
            a.label('KG_QL')
            a(f's_ff1_i32_b32 s{S_T0}, s{S_NEW}')
            a(f's_bitset0_b32 s{S_NEW}, s{S_T0}')
            a(f's_cmp_ge_u32 s{S_NQ}, 4')
            a('s_cbranch_scc1 KG_QQ')
            a(f'v_mov_b32 {u(1)}, s{S_NQ}')
            a(f's_add_u32 s{S_NQ}, s{S_NQ}, 1')
            a(f's_lshl_b32 s{S_T0}, s{S_T0}, 14')
            a(f's_add_u32 s{S_T0}, s{S_T0}, {WS_KV}')
            kv_dma(S_T0, S_LB)
            a('s_waitcnt vmcnt(16)')
            a(f'ds_write_b32 v{V_Z}, {u(1)} offset:{4*F_POS}')
            a('s_branch KG_QN')
            a.label('KG_QQ')
            a(f's_lshl_b32 s{S_QU}, s{S_QU}, 3')
            a(f's_or_b32 s{S_QU}, s{S_QU}, s{S_T0}')
            a.label('KG_QN')
            a(f's_cmp_lg_u32 s{S_NEW}, 0')
            a('s_cbranch_scc1 KG_QL')
            a(f'v_mov_b32 {u(1)}, s{S_NQ}')
            a('s_waitcnt vmcnt(0)')
            a(f'ds_write_b32 v{V_Z}, {u(1)} offset:{4*F_POS}')
            a.label('KG_QE')
            a(f's_and_b64 exec, s[{S_C0}:{S_C0+1}], s[{S_C0}:{S_C0+1}]')
        else:
            a('s_and_b64 exec, exec, vcc')
        a(f's_cbranch_scc0 KG_GD{tag}')
        a(f's_sleep {sleep}')
        a(f's_branch KG_GP{tag}')
        a.label(f'KG_GD{tag}')
        a('s_mov_b64 exec, -1')

    a.label('KG_KV')
    stamp(9, 1)
    hsetup()
    a(f's_mov_b32 s{S_KQ}, s{S_QG}')
    a(f'v_bfe_u32 {u(1)}, v0, 2, 2')
    a(f'v_and_b32 {u(2)}, 3, v0')
    a(f'v_lshl_add_u32 {u(1)}, v{V_G}, 3, {u(1)}')
    a(f'v_lshlrev_b32 {u(1)}, 5, {u(1)}')
    a(f'v_lshl_add_u32 {u(1)}, {u(2)}, 3, {u(1)}')
    a(f'v_add_u32 v{V_A2}, {L_KW}, {u(1)}')
    a(f's_lshl_b32 s{S_T2}, s{S_QG}, 12')
    a(f's_lshr_b32 s{S_T0}, s{S_RB}, 1')
    a(f's_lshl_b32 s{S_T0}, s{S_T0}, 11')
    a(f's_add_u32 s{S_T2}, s{S_T2}, s{S_T0}')
    a(f's_and_b32 s{S_T0}, s{S_RB}, 1')
    a(f's_lshl_b32 s{S_T0}, s{S_T0}, 8')
    a(f's_add_u32 s{S_T2}, s{S_T2}, s{S_T0}')
    a(f's_lshl_b32 s{S_T0}, s{S_TY}, 10')
    a(f's_add_u32 s{S_T2}, s{S_T2}, s{S_T0}')
    a(f's_lshl_b32 s{S_T3}, s{S_T2}, 1')
    a(f's_add_u32 s{S_T2}, s{S_T2}, {WS_KV}')
    assert WS_KVT == 0
    a(f's_lshl_b32 s{S_KOFF}, s{S_QG}, 3')
    a(f's_add_u32 s{S_KOFF}, s{S_KOFF}, s{S_HG}')
    lds_wait(F_TAGOK, 1, V_U)
    get_tag(V_U)
    a(f'v_and_b32 {u(2)}, 1, v{V_G}')
    a(f'v_lshrrev_b32 {u(3)}, 1, v{V_G}')
    a(f'v_lshlrev_b32 {u(4)}, 9, {u(2)}')
    a(f'v_lshl_add_u32 {u(4)}, v{V_I}, 4, {u(4)}')
    a(f'v_lshl_add_u32 {u(4)}, {u(3)}, 3, {u(4)}')
    a(f'v_lshlrev_b32 {u(6)}, 1, {u(4)}')
    a(f'v_mov_b32 v{KA+10}, s{S_TAG}')
    a(f'v_mov_b32 v{KA+11}, s{S_TAG}')
    a(f'v_mov_b32 v{KA+12}, 1')
    a(f's_getreg_b32 s{S_T0}, hwreg(HW_REG_XCC_ID, 0, 4)')
    a(f's_lshl_b32 s{S_T0}, s{S_T0}, 28')
    a(f's_xor_b32 s{S_TGX}, s{S_TAG}, s{S_T0}')
    a(f's_mov_b32 s{S_T1}, {f32_bits(QSCALE)}')
    a(f'v_lshrrev_b32 {u(2)}, 1, v{V_I}')
    a(f'v_xor_b32 {u(2)}, v{V_G}, {u(2)}')
    a(f'v_lshlrev_b32 {u(2)}, 4, {u(2)}')
    a(f'v_lshl_add_u32 {u(2)}, v{V_I}, 7, {u(2)}')
    a(f's_lshl_b32 s{S_T0}, s{S_RB}, 11')
    a(f'v_add_u32 {u(2)}, s{S_T0}, {u(2)}')
    a(f'v_xor_b32 {u(3)}, 64, {u(2)}')
    a(f's_waitcnt vmcnt({16 + (4 if TOUCH else 1)})')
    a(f'ds_write_b32 v{V_Z}, v{KA+12} offset:{4*F_KX}')
    for ks in range(16):
        a(f'ds_read_b128 {vr(KX+4*ks,4)}, {u(2+(ks&1))} offset:{(ks>>1)*8192}')
    a(f's_waitcnt vmcnt({4 if TOUCH else 1}) lgkmcnt(0)')
    stamp(2)
    def kv_reads(ks):
        a(f'ds_read_b64_tr_b16 {vr(KW+4*ks,2)}, v{V_A2} offset:{ks*1024}')
        a(f'ds_read_b64_tr_b16 {vr(KW+4*ks+2,2)}, v{V_A2} offset:{ks*1024+128}')
    for ks in range(7):
        kv_reads(ks)
    a(f's_cmp_eq_u32 s{S_TY}, 1')
    a('s_cbranch_scc1 KG_KV1')
    for ty in range(2):
        if ty == 1:
            a.label('KG_KV1')
        for ks in range(16):
            n_out = min(6, 15 - ks)
            a(f's_waitcnt lgkmcnt({2*n_out})')
            cc = vr(KA + 4*(ks & 1), 4) if ks >= 2 else '0'
            if ty == 0:
                a(f'v_mfma_f32_16x16x32_bf16 {vr(KA+4*(ks&1),4)}, {vr(KW+4*ks,4)}, {vr(KX+4*ks,4)}, {cc}')
            else:
                a(f'v_mfma_f32_16x16x32_bf16 {vr(KA+4*(ks&1),4)}, {vr(KX+4*ks,4)}, {vr(KW+4*ks,4)}, {cc}')
            if ks + 7 < 16:
                kv_reads(ks + 7)
        a('s_nop 7')
        for i in range(4):
            a(f'v_add_f32 v{KA+i}, v{KA+i}, v{KA+4+i}')
        if ty == 0:
            for i in range(4):
                a(f'v_mul_f32 v{KA+i}, s{S_T1}, v{KA+i}')
        a(f'v_cvt_pk_bf16_f32 v{KA+8}, v{KA}, v{KA+1}')
        a(f'v_cvt_pk_bf16_f32 v{KA+9}, v{KA+2}, v{KA+3}')
        a(f'buffer_store_dwordx4 {vr(KA+8,4)}, {u(6)}, {ws}, s{S_T3} offen{SC}')
        a(f'buffer_store_dwordx2 {vr(KA+8,2)}, {u(4)}, {ws}, s{S_T2} offen{SC}')
        a(f'ds_write_b32 v{V_Z}, v{KA+12} offset:{4*F_KVS}')
        stamp(1)
        a('s_waitcnt vmcnt(0)')
        flag_store(WS_FL1, f's{S_KOFF}', S_TGX)
        stamp(3)
        if ty == 1:
            a('s_branch KG_KP')
        else:
            a(f'v_lshlrev_b32 {u(2)}, 4, v{V_G}')
            a(f'v_add_u32 {u(2)}, {L_GATE}, {u(2)}')
            for half in range(2):
                for k8 in range(8):
                    ks = 8*half + k8
                    a(f'ds_read_b128 {vr(KW+4*ks,4)}, {u(2)} offset:{64*ks}')
                for k8 in range(8):
                    ks = 8*half + k8
                    a(f's_waitcnt lgkmcnt({7-k8})')
                    cc = vr(KA, 4) if ks else '0'
                    a(f'v_mfma_f32_16x16x32_bf16 {vr(KA,4)}, {vr(KW+4*ks,4)}, {vr(KX+4*ks,4)}, {cc}')
            a(f's_lshl_b32 s{S_T0}, s{S_KQ}, 8')
            a(f's_lshl_b32 s{S_T1}, s{S_RB}, 6')
            a(f's_add_u32 s{S_T0}, s{S_T0}, s{S_T1}')
            a(f's_add_u32 s{S_T1}, s{S_T0}, {WS_G}')
            a(f'v_lshlrev_b32 {u(2)}, 2, v{V_I}')
            a('s_nop 6')
            a(f'v_cvt_pk_bf16_f32 {u(3)}, v{KA}, v{KA}')
            a(f'v_lshlrev_b32 {u(3)}, 16, {u(3)}')
            a(f's_mov_b32 s{S_T0}, {f32_bits(-math.log2(math.e))}')
            a(f'v_mul_f32 {u(3)}, s{S_T0}, {u(3)}')
            a(f'v_exp_f32 {u(3)}, {u(3)}')
            a('s_nop 0')
            a(f'v_add_f32 {u(3)}, 1.0, {u(3)}')
            a(f'v_rcp_f32 {u(3)}, {u(3)}')
            a('s_nop 0')
            a(f'v_cvt_pk_bf16_f32 {u(3)}, {u(3)}, {u(3)}')
            a(f'v_lshlrev_b32 {u(3)}, 16, {u(3)}')
            a('s_mov_b64 exec, 0xffff')
            a(f'buffer_store_dword {u(3)}, {u(2)}, {ws}, s{S_T1} offen{SC}')
            a('s_mov_b64 exec, -1')
            a('s_branch KG_KP')

    a.label('KG_TAG')
    stamp(9, 1)
    hsetup()
    a('s_waitcnt vmcnt(0)')
    a(f'v_readfirstlane_b32 s{S_TAG}, {u(3)}')
    a(f's_mul_i32 s{S_TAG}, s{S_TAG}, {TAG_M}')
    a(f's_add_u32 s{S_TAG}, s{S_TAG}, {TAG_C}')
    a(f'v_mov_b32 {u(1)}, 1')
    a(f'v_mov_b32 {u(3)}, s{S_TAG}')
    a(f'ds_write_b32 v{V_Z}, {u(3)} offset:{4*F_TAG}')
    a(f'ds_write_b32 v{V_Z}, {u(1)} offset:{4*F_TAGOK}')
    stamp(2)
    GR = 16
    V_GW, V_QW = V_A1, V_A2
    S_PEND, S_GB, S_DN = S_P, S_KH, S_VM
    a(f's_and_b32 s{S_T0}, s2, 7')
    a(f's_lshl_b32 s{S_GB}, s{S_T0}, 15')
    a(f's_movk_i32 s{S_PEND}, 0x1ff')
    a(f'v_lshlrev_b32 v{V_GW}, 3, v0')
    a(f'v_add_u32 v{V_GW}, {L_PRE}, v{V_GW}')
    lds_wait(F_KVS, 1, V_U + 4, sleep=1)
    if G_DELAY:
        a(f's_sleep {G_DELAY}')
    def g_loads(c, sc=SC):
        a(f's_add_u32 s{S_T0}, s{S_GB}, {c*4096}')
        for j in range(4):
            a(f'buffer_load_dwordx4 {vr(GR+16*c+4*j,4)}, v{V_L16}, {ws}, s{S_T0} offen offset:{1024*j}{sc}')
    def g_check(c, k):
        for j in range(4):
            a(f'v_cmpx_eq_u32 vcc, s{S_TAG}, v{GR+16*c+4*j+2}')
        a('s_cmp_eq_u64 exec, -1')
        a('s_mov_b64 exec, -1')
        a(f's_cbranch_scc0 KG_GF{k}_{c}')
        for j in range(4):
            a(f'ds_write_b64 v{V_GW}, {vr(GR+16*c+4*j,2)} offset:{512*j}')
        a(f'v_add_u32 {u(6)}, 1, {u(6)}')
        a(f's_bitset0_b32 s{S_PEND}, {c}')
        a(f'v_add_u32 v{V_GW}, 0x800, v{V_GW}')
        a(f'ds_write_b32 v{V_Z}, {u(6)} offset:{4*F_PRE}')
        a.label(f'KG_GF{k}_{c}')
    def g_round(c0, c1, gi):
        for c in range(c0, c1):
            g_loads(c)
        if gi:
            a(f'ds_write_b32 v{V_Z}, {u(1)} offset:{4*F_GI}')
            stamp(1)
        for c in range(c0, c1):
            a(f's_waitcnt vmcnt({4*(c1-1-c)})')
            g_check(c, 0)
    S_AL = S_KB
    a(f'v_mov_b32 {u(6)}, 0')
    g_round(0, G_EARLY, G_EARLY == 8)
    stamp(5)
    a(f's_movk_i32 s{S_AL}, {(1 << G_EARLY) - 1}')
    a(f's_mov_b32 s{S_CNT}, {POLL_LIMIT}')
    a.label('KG_GR')
    a(f's_sub_u32 s{S_CNT}, s{S_CNT}, 1')
    a('s_cbranch_scc1 KG_GE')
    a(f's_cmp_eq_u32 s{S_PEND}, 0x100')
    a('s_cbranch_scc1 KG_GE')
    if G_EARLY < 8:
        a(f's_cmp_eq_u32 s{S_AL}, 0xff')
        a('s_cbranch_scc1 KG_GA')
        a(f'ds_read_b64 {vr(V_U+4,2)}, v{V_Z} offset:{4*F_CX}')
        a('s_waitcnt lgkmcnt(0)')
        a(f'v_min_u32 {u(4)}, {u(4)}, {u(5)}')
        a('s_nop 0')
        a(f'v_readfirstlane_b32 s{S_T0}, {u(4)}')
        a(f's_cmp_lt_u32 s{S_T0}, {G_TRIG}')
        a('s_cbranch_scc1 KG_GA')
        a(f's_movk_i32 s{S_AL}, 0xff')
        g_round(G_EARLY, 8, True)
        a('s_branch KG_GR')
        a.label('KG_GA')
    a(f's_and_b32 s{S_T2}, s{S_PEND}, s{S_AL}')
    a('s_cbranch_scc1 KG_GB')
    a('s_sleep 1')
    a('s_branch KG_GR')
    a.label('KG_GB')
    for c in range(8):
        a(f's_bitcmp1_b32 s{S_T2}, {c}')
        a(f's_cbranch_scc0 KG_GL{c}')
        g_loads(c)
        a.label(f'KG_GL{c}')
    a('s_waitcnt vmcnt(0)')
    for c in range(8):
        a(f's_bitcmp1_b32 s{S_T2}, {c}')
        a(f's_cbranch_scc0 KG_GF1_{c}')
        g_check(c, 1)
    a('s_branch KG_GR')
    a.label('KG_GE')
    stamp(6)
    a('s_branch KG_WT')
    a.label('KG_KP')
    a(f's_and_b32 s{S_T0}, s2, 7')
    a(f's_lshl_b32 s{S_T0}, s{S_T0}, 3')
    a(f's_mov_b64 s[{S_DN}:{S_DN+1}], 0xff')
    a(f's_lshl_b64 s[{S_DN}:{S_DN+1}], s[{S_DN}:{S_DN+1}], s{S_T0}')
    a(f's_mov_b32 s{S_NQ}, 0')
    a(f's_mov_b32 s{S_QU}, 0')
    a(f's_mov_b32 s{S_NEW}, 0')
    a(f's_mov_b32 s{S_LB}, {L_WQ}')
    if not EPOLL: pg_wait(1)
    elif EPOLL > 1:
        lds_wait(F_CW, EPOLL, V_U, sleep=2)
        lds_wait(F_CX, EPOLL, V_U, sleep=2)
    a(f's_mov_b32 s{S_T1}, {WS_FL1}')
    if KP_DELAY:
        a(f's_sleep {KP_DELAY}')
    glob_poll('KV', -1, KV_SLEEP)
    a(f'v_mov_b32 {u(1)}, 127')
    a(f'ds_write_b32 v{V_Z}, {u(1)} offset:{4*F_N}')
    stamp(5)
    a(f's_lshl_b32 s{S_T0}, s{S_QG}, 1')
    a(f's_add_u32 s{S_T1}, s{S_T0}, 1')
    a(f'v_readlane_b32 s{S_T0}, {u(4)}, s{S_T0}')
    a(f'v_readlane_b32 s{S_T1}, {u(4)}, s{S_T1}')
    a('s_nop 1')
    a(f's_or_b32 s{S_T0}, s{S_T0}, s{S_T1}')
    a(f's_cmp_eq_u32 s{S_T0}, 0')
    a(f's_cselect_b32 s{S_T0}, {2 if FORCE_GL else 1}, 2')
    a(f'v_mov_b32 {u(4)}, s{S_T0}')
    a(f'ds_write_b32 v{V_Z}, {u(4)} offset:{4*F_LOC}')
    a('s_cmp_lg_u32 s2, 0')
    a('s_cbranch_scc1 KG_H3')
    a(f's_mov_b32 s{S_T3}, {WS_ROOT}')
    a(f'v_mov_b32 {u(2)}, 0')
    a(f'v_mov_b32 {u(3)}, s{S_TAG}')
    a('s_mov_b64 exec, 1')
    a(f'buffer_store_dword {u(3)}, {u(2)}, {ws}, s{S_T3} offen{SC}')
    a('s_mov_b64 exec, -1')
    a('s_branch KG_H3')

    a.label('KG_WT')
    if WT_LAG == 127:
        lds_wait(F_N, 127, V_U, sleep=2)
    elif WT_LAG == 100:
        lds_wait(F_POS, 1, V_U, sleep=2)
    elif WT_LAG:
        lds_wait(F_PRE, WT_LAG, V_U, sleep=2)
    S_FW, S_G4, S_PT = S_P, S_KH, S_KB
    a(f's_lshr_b32 s{S_FW}, s{S_QG}, 3')
    a(f's_bfe_u32 s{S_G4}, s{S_QG}, 0x20001')
    a(f's_and_b32 s{S_PT}, s{S_QG}, 1')
    a(f's_cmp_eq_u32 s{S_PT}, 1')
    a(f's_cselect_b64 s[{S_C0}:{S_C0+1}], s[{S_WI}:{S_WI+1}], s[{S_WR}:{S_WR+1}]')
    srd(a, R_A, S_C0, 2048 * 514)
    a(f's_lshl_b32 s{S_T3}, s{S_FW}, 4')
    a(f's_lshl_b32 s{S_T1}, s{S_G4}, 8')
    a(f's_add_u32 s{S_T1}, s{S_T1}, s{S_T3}')
    a(f'v_add_u32 {u(2)}, s{S_T1}, v{V_I}')
    a(f'v_mul_u32_u24 {u(2)}, 514, {u(2)}')
    a(f'v_lshl_add_u32 {u(2)}, v{V_G}, 4, {u(2)}')
    a(f's_lshl_b32 s{S_T1}, s{S_HG}, 6')
    a(f'v_add_u32 {u(2)}, s{S_T1}, {u(2)}')
    a(f'v_and_b32 {u(4)}, 2, {u(2)}')
    a(f'v_and_b32 {u(2)}, -4, {u(2)}')
    for e in range(8):
        a(f's_mov_b32 s{S_T0}, {(16*(e>>2)+(e&3))*32896}')
        a(f'buffer_load_dwordx4 {vr(16+4*e,4)}, {u(2)}, {ra}, s{S_T0} offen')
        a(f'buffer_load_dword v{96+e}, {u(2)}, {ra}, s{S_T0} offen offset:16')
    a(f's_or_b32 s{S_KOFF}, s{S_HG}, s{S_G4}')
    a(f's_cmp_lg_u32 s{S_KOFF}, 0')
    a('s_cbranch_scc1 KG_WT1')
    a(f'v_lshl_add_u32 {u(3)}, v{V_G}, 8, v{V_I}')
    a(f'v_add_u32 {u(3)}, s{S_T3}, {u(3)}')
    a(f'v_mul_u32_u24 {u(3)}, 514, {u(3)}')
    for e in range(8):
        a(f's_mov_b32 s{S_T0}, {(16*(e>>2)+(e&3))*32896}')
        a(f'buffer_load_ushort v{80+e}, {u(3)}, {ra}, s{S_T0} offen offset:512')
    a.label('KG_WT1')
    a(f's_mov_b32 s{S_C0}, 0x05040100')
    a(f's_mov_b32 s{S_C0+1}, 0x07060302')
    a(f'v_lshlrev_b32 {u(2)}, 16, v{V_G}')
    a(f'v_lshl_add_u32 {u(2)}, v{V_I}, 4, {u(2)}')
    a(f's_lshl_b32 s{S_T1}, s{S_HG}, 18')
    a(f's_lshl_b32 s{S_T2}, s{S_FW}, 11')
    a(f's_lshl_b32 s{S_T0}, s{S_PT}, 10')
    a(f's_add_u32 s{S_T2}, s{S_T2}, s{S_T0}')
    a(f's_add_u32 s{S_T2}, s{S_T2}, {WS_WT}')
    a(f's_add_u32 s{S_T1}, s{S_T1}, s{S_T2}')
    a(f's_lshl_b32 s{S_T0}, s{S_G4}, 8')
    a(f's_add_u32 s{S_T1}, s{S_T1}, s{S_T0}')
    a('s_waitcnt vmcnt(0)')
    stamp(3)
    for e in range(8):
        for j in range(4):
            hi = 16 + 4*e + j + 1 if j < 3 else 96 + e
            a(f'v_alignbyte_b32 v{16+4*e+j}, v{hi}, v{16+4*e+j}, {u(4)}')
    for ph in range(8):
        for q in range(4):
            lo = 16 + 4*(2*q) + (ph >> 1); hi = 16 + 4*(2*q+1) + (ph >> 1)
            a(f'v_perm_b32 v{48+4*ph+q}, v{hi}, v{lo}, s{S_C0+(ph&1)}')
    for ph in range(8):
        a(f's_add_u32 s{S_T0}, s{S_T1}, {8192*ph}')
        if not E('WT_NOST', 0): a(f'buffer_store_dwordx4 {vr(48+4*ph,4)}, {u(2)}, {ws}, s{S_T0} offen{SC}')
    a(f's_cmp_lg_u32 s{S_KOFF}, 0')
    a('s_cbranch_scc1 KG_J1')
    for q in range(4):
        a(f'v_lshl_or_b32 v{88+q}, v{81+2*q}, 16, v{80+2*q}')
    a(f's_add_u32 s{S_T0}, s{S_T2}, {256*8192}')
    a(f'buffer_store_dwordx4 {vr(88,4)}, v{V_L16}, {ws}, s{S_T0} offen{SC}')
    a('s_branch KG_J1')

    HT, HX, HA = 16, 64, 128
    a.label('KG_H2B')
    stamp(2)
    hsetup()
    table_srd(a, R_TB, 'TAB_F', 512 * 1024, 'f')
    a(f's_and_b32 s{S_CT}, s{S_HW}, 1')
    a(f's_lshl_b32 s{S_T2}, s{S_HG}, 16')
    a(f's_lshl_b32 s{S_T0}, s{S_CT}, 10')
    a(f's_add_u32 s{S_T2}, s{S_T2}, s{S_T0}')
    if TF_LAG == 1:
        lds_wait(F_GI, 1, V_U, sleep=2)
    elif TF_LAG == 100:
        lds_wait(F_POS, 1, V_U, sleep=2)
    elif TF_LAG:
        lds_wait(F_PRE, TF_LAG, V_U, sleep=2)
    def tload(i):
        if i % 2 == 0:
            a(f's_add_u32 s{S_T3}, s{S_T2}, {i*2048}')
        a(f'buffer_load_dwordx4 {vr(HT+4*(i%12),4)}, v{V_L16}, {tb}, s{S_T3} offen offset:{(i%2)*2048}')
    PD = H2_PD
    assert PD <= 12
    for i in range(PD):
        tload(i)
    a(f'v_and_b32 {u(4)}, 31, v0')
    a(f'v_lshrrev_b32 {u(5)}, 5, v0')
    a(f'v_bfe_u32 {u(6)}, v0, 1, 3')
    a(f'v_lshlrev_b32 {u(7)}, 7, {u(4)}')
    for ks in range(4):
        a(f'v_add_u32 v{HA+ks}, {2*ks}, {u(5)}')
        a(f'v_xor_b32 v{HA+ks}, v{HA+ks}, {u(6)}')
        a(f'v_lshl_add_u32 {u(ks)}, v{HA+ks}, 4, {u(7)}')
    a(f'v_lshlrev_b32 v{V_A1}, 12, {u(4)}')
    a(f'v_lshl_add_u32 v{V_A1}, {u(5)}, 5, v{V_A1}')
    stamp(5)
    lds_wait(F_CX, 8, V_U + 4, sleep=2)
    def xreads(c):
        for ks in range(4):
            for aa in range(2):
                a(f'ds_read_b128 {vr(HX+32*(c&1)+16*aa+4*ks,4)}, {u(ks)} offset:{c*8192+4096*aa}')
    if PRI & 1: a('s_setprio 0')
    xreads(0)
    for c in range(8):
        if c < 7:
            xreads(c + 1)
        for ks in range(4):
            i = 4*c + ks
            a(f's_waitcnt vmcnt({min(PD-1, 31-i)}) lgkmcnt({2*(3-ks) + (8 if c < 7 else 0)})')
            for aa in range(2):
                cc = vr(HA + 16*aa, 16) if i else '0'
                a(f'v_mfma_f32_32x32x16_bf16 {vr(HA+16*aa,16)}, {vr(HX+32*(c&1)+16*aa+4*ks,4)}, {vr(HT+4*(i%12),4)}, {cc}')
            if i + PD < 32: tload(i + PD)
    if PRI & 1: a('s_setprio 2')
    lds_add(F_H2, V_U)
    a(f's_lshl_b32 s{S_T0}, s{S_HG}, 18')
    a(f's_lshl_b32 s{S_T1}, s{S_CT}, 17')
    a(f's_add_u32 s{S_T0}, s{S_T0}, s{S_T1}')
    a(f's_lshl_b32 s{S_T1}, s{S_QG}, 7')
    a(f's_add_u32 s{S_T0}, s{S_T0}, s{S_T1}')
    a(f's_add_u32 s{S_T2}, s{S_T0}, {WS_X1T}')
    lds_wait(F_TAGOK, 1, V_U)
    get_tag(V_U)
    a('s_nop 4')
    for i in range(16):
        a(f'v_cvt_pk_bf16_f32 v{HX+i}, v{HA+2*i}, v{HA+2*i+1}')
    for aa in range(2):
        for q in range(2):
            a(f'buffer_store_dwordx4 {vr(HX+8*aa+4*q,4)}, v{V_A1}, {ws}, s{S_T2} offen offset:{64*aa+16*q}{SC}')
    a.label('KG_J1')
    join_flag(F_J1, 3, WS_FL2)
    stamp(6)
    a.label('KG_H3')
    if E('NOHELP', 0) == 1:
        lds_add(F_J2, V_U)
        dump()
        a('s_endpgm')

    V_T1 = 16
    V_T2 = 64
    V_D = 88
    V_TW = 104
    V_XX = 120
    V_W = 136
    V_AC = 152
    S_FW = S_HW
    table_srd(a, R_TB, 'TAB_K2', 24576 + 6144 + 32768, 'k2')
    O_T1, O_T2, O_TW1, O_TW2 = 0, 24576, 30720, 30720 + 16384
    a(f's_lshr_b32 s{S_MH}, s{S_FW}, 1')
    a(f's_and_b32 s{S_NH}, s{S_FW}, 1')
    a(f's_mul_i32 s{S_T0}, s{S_MH}, 12288')
    for i in range(12):
        if i % 4 == 0 and i:
            a(f's_add_u32 s{S_T0}, s{S_T0}, 4096')
        a(f'buffer_load_dwordx4 {vr(V_T1+4*i,4)}, v{V_L16}, {tb}, s{S_T0} offen offset:{(i%4)*1024}')
        thr()
    a(f's_lshl_b32 s{S_T2}, s{S_FW}, 12')
    a(f's_add_u32 s{S_T0}, s{S_T2}, {O_TW1}')
    for i in range(4):
        a(f'buffer_load_dwordx4 {vr(V_TW+4*i,4)}, v{V_L16}, {tb}, s{S_T0} offen offset:{i*1024}')
        thr()
    a(f's_mov_b32 s{S_T0}, {O_T2}')
    a(f's_mov_b32 s{S_T1}, {O_T2+4096}')
    for i in range(6):
        a(f'buffer_load_dwordx4 {vr(V_T2+4*i,4)}, v{V_L16}, {tb}, s{S_T0+(i>>2)} offen offset:{(i%4)*1024}')
        thr()
    a(f's_lshl_b32 s{S_T0}, s{S_FW}, 4')
    a(f'v_lshl_add_u32 v{V_A3}, v{V_G}, 8, v{V_I}')
    a(f'v_add_u32 v{V_A3}, s{S_T0}, v{V_A3}')
    a(f's_cmp_eq_u32 s{S_F}, 0')
    a('s_cbranch_scc1 KG_SPA')
    a.label('KG_SPAR')
    a(f's_cmp_lg_u32 s{S_HW}, 0')
    a('s_cbranch_scc1 KG_PCE')
    lds_wait(F_H2, 2, V_U, sleep=4)
    a(f's_mov_b32 s{S_LB}, {L_X}')
    for k in range(3):
        a(f's_bfe_u32 s{S_T0}, s{S_QU}, {hex(0x30000 + 3*(2-k))}')
        a(f's_lshl_b32 s{S_T0}, s{S_T0}, 14')
        a(f's_add_u32 s{S_T0}, s{S_T0}, {WS_KV}')
        kv_dma(S_T0, S_LB)
    a(f'v_mov_b32 {u(1)}, 8')
    a('s_waitcnt vmcnt(0)')
    a(f'ds_write_b32 v{V_Z}, {u(1)} offset:{4*F_POS}')
    stamp(6)
    a.label('KG_PCE')
    a(f's_cmp_lg_u32 s{S_HW}, 1')
    a('s_cbranch_scc1 KG_S1W')
    a(f's_lshl_b32 s{S_T1}, s{S_HG}, 10')
    a(f's_add_u32 s{S_T1}, s{S_T1}, {WS_FL2}')
    glob_poll('S1', 0xff, S1_SLEEP)
    a(f'v_mov_b32 {u(1)}, 1')
    a(f'ds_write_b32 v{V_Z}, {u(1)} offset:{4*F_S1OK}')
    a.label('KG_S1W')
    pg_wait(3)
    lds_wait(F_S1OK, 1, V_U, sleep=4)
    stamp(7)
    a(f'v_lshlrev_b32 v{V_A1}, 7, v{V_I}')
    a(f'v_lshl_add_u32 v{V_A1}, v{V_G}, 4, v{V_A1}')
    a(f's_lshl_b32 s{S_T0}, s{S_F}, 13')
    a(f's_lshl_b32 s{S_T1}, s{S_NH}, 11')
    a(f's_add_u32 s{S_T0}, s{S_T0}, s{S_T1}')
    a(f's_add_u32 s{S_T0}, s{S_T0}, {WS_X1T}')
    a(f's_add_u32 s{S_T1}, s{S_T0}, 4096')
    for part in range(2):
        for ks in range(2):
            a(f'buffer_load_dwordx4 {vr(V_D+8*part+4*ks,4)}, v{V_A1}, {ws}, s{S_T0+part} offen offset:{64*ks}{SC}')
    a(f's_lshl_b32 s{S_T0}, s{S_F}, 13')
    a(f's_lshl_b32 s{S_T1}, s{S_FW}, 11')
    a(f's_add_u32 s{S_T1}, s{S_T1}, {WS_WT}')
    a(f's_add_u32 s{S_T0}, s{S_T0}, s{S_T1}')
    a(f's_cmp_lg_u32 s{S_F}, 0')
    a('s_cbranch_scc1 KG_NXX')
    a(f's_add_u32 s{S_T1}, s{S_T1}, {256*8192}')
    for part in range(2):
        a(f'buffer_load_dwordx4 {vr(V_XX+8*part+4,4)}, v{V_L16}, {ws}, s{S_T1} offen offset:{1024*part}{SC}')
    a.label('KG_NXX')
    for part in range(2):
        a(f'buffer_load_dwordx4 {vr(V_W+8*part+4,4)}, v{V_L16}, {ws}, s{S_T0} offen offset:{1024*part}{SC}')

    def mf(d, x, y, c):
        cc = vr(d, 4) if c else '0'
        a(f'v_mfma_f32_16x16x32_bf16 {vr(d,4)}, {vr(x,4)}, {vr(y,4)}, {cc}')
    def t1(nt, ks, v): return V_T1 + 4 * ((nt * 2 + ks) * 3 + v)
    def t2(mt, v): return V_T2 + 4 * (mt * 3 + v)
    def cmul_pack(dst):
        for t_ in range(2):
            for r in range(4):
                ar, ai = V_AC + 8*t_ + r, V_AC + 8*t_ + 4 + r
                c_, s_ = V_TW + 8*t_ + r, V_TW + 8*t_ + 4 + r
                uu = V_U + (r & 1) * 2
                a(f'v_mul_f32 v{uu}, v{ar}, v{c_}')
                a(f'v_mul_f32 v{uu+1}, v{ar}, v{s_}')
                a(f'v_fma_f32 v{ar}, -v{ai}, v{s_}, v{uu}')
                a(f'v_fma_f32 v{ai}, v{ai}, v{c_}, v{uu+1}')
        for i in range(8):
            a(f'v_cvt_pk_bf16_f32 v{dst+i}, v{V_AC+2*i}, v{V_AC+2*i+1}')
    def sync(flag):
        a('s_waitcnt lgkmcnt(0)')
        lds_add(flag, V_U)
        lds_wait(flag, 4, V_U, sleep=2)

    def lo():
        if PRI & 4: a('s_setprio 0')
    def hi():
        if PRI & 4: a('s_setprio 2')
    lo()
    a('s_waitcnt vmcnt(2)')
    zr = lambda ks: V_D + 4*ks
    zi = lambda ks: V_D + 8 + 4*ks
    for ks in range(2):
        for nt in range(2):
            mf(V_AC + 8*nt, zr(ks), t1(nt, ks, 0), ks)
            mf(V_AC + 8*nt + 4, zi(ks), t1(nt, ks, 0), ks)
        for nt in range(2):
            mf(V_AC + 8*nt, zi(ks), t1(nt, ks, 2), 1)
            mf(V_AC + 8*nt + 4, zr(ks), t1(nt, ks, 1), 1)
    hi()
    a(f's_cmp_eq_u32 s{S_F}, 0')
    a('s_cbranch_scc1 KG_SPB')
    a.label('KG_SPBR')
    a(f's_mul_i32 s{S_T0}, s{S_MH}, 2560')
    a(f's_lshl_b32 s{S_T1}, s{S_NH}, 3')
    a(f's_add_u32 s{S_T0}, s{S_T0}, s{S_T1}')
    a(f'v_mul_u32_u24 v{V_A1}, 80, v{V_I}')
    a(f'v_lshl_add_u32 v{V_A1}, v{V_G}, 4, v{V_A1}')
    a(f'v_add_u32 v{V_A1}, {L_APR}, v{V_A1}')
    a(f'v_add_u32 {u(4)}, s{S_T0}, v{V_A1}')
    a('s_nop 4')
    cmul_pack(V_D)
    for nt in range(2):
        a(f'ds_write_b64 {u(4)}, {vr(V_D+4*nt,2)} offset:{1280*nt}')
        a(f'ds_write_b64 {u(4)}, {vr(V_D+4*nt+2,2)} offset:{L_API-L_APR+1280*nt}')
    a(f's_add_u32 s{S_T0}, s{S_T2}, {O_TW2}')
    for i in range(4):
        a(f'buffer_load_dwordx4 {vr(V_TW+4*i,4)}, v{V_L16}, {tb}, s{S_T0} offen offset:{i*1024}')
    sync(F_SY0)
    a(f's_mul_i32 s{S_T0}, s{S_FW}, 1280')
    a(f'v_add_u32 {u(4)}, s{S_T0}, v{V_A1}')
    a(f'ds_read_b128 {vr(V_D,4)}, {u(4)}')
    a(f'ds_read_b128 {vr(V_D+4,4)}, {u(4)} offset:{L_API-L_APR}')
    lo()
    a('s_waitcnt vmcnt(4) lgkmcnt(0)')
    for mt in range(2):
        mf(V_AC + 8*mt, t2(mt, 0), V_D, 0)
        mf(V_AC + 8*mt + 4, t2(mt, 0), V_D + 4, 0)
    for mt in range(2):
        mf(V_AC + 8*mt, t2(mt, 2), V_D + 4, 1)
        mf(V_AC + 8*mt + 4, t2(mt, 1), V_D, 1)
    hi()
    def unpack(base):
        for part in range(2):
            b = base + 8*part
            for q in range(4):
                a(f'v_lshlrev_b32 v{b+2*q}, 16, v{b+4+q}')
                a(f'v_and_b32 v{b+2*q+1}, 0xffff0000, v{b+4+q}')
    unpack(V_W)
    a(f's_cmp_eq_u32 s{S_F}, 0')
    a('s_cbranch_scc1 KG_SPECIAL')
    for e in range(8):
        mt, r = e >> 2, e & 3
        ar, ai = V_AC + 8*mt + r, V_AC + 8*mt + 4 + r
        c_, s_ = V_W + e, V_W + 8 + e
        uu = V_U + (r & 1) * 2
        a(f'v_mul_f32 v{uu}, v{ar}, v{c_}')
        a(f'v_mul_f32 v{uu+1}, v{ar}, v{s_}')
        a(f'v_fma_f32 v{ar}, -v{ai}, v{s_}, v{uu}')
        a(f'v_fma_f32 v{ai}, v{ai}, v{c_}, v{uu+1}')
    a.label('KG_STEP3')
    for mt in range(2):
        for part in range(2):
            for q in range(2):
                src = V_AC + 8*mt + 4*part + 2*q
                a(f'v_cvt_pk_bf16_f32 v{V_D+4*part+2*mt+q}, v{src}, v{src+1}')
    lo()
    a('s_nop 1')
    for mt in range(2):
        mf(V_AC + 8*mt, V_D, t2(mt, 0), 0)
        mf(V_AC + 8*mt + 4, V_D + 4, t2(mt, 0), 0)
    for mt in range(2):
        mf(V_AC + 8*mt, V_D + 4, t2(mt, 1), 1)
        mf(V_AC + 8*mt + 4, V_D, t2(mt, 2), 1)
    hi()
    a(f'v_mul_u32_u24 v{V_A1}, 144, v{V_I}')
    a(f'v_add_u32 v{V_A1}, {L_CPR}, v{V_A1}')
    a(f's_lshl_b32 s{S_T0}, s{S_FW}, 5')
    a(f'v_lshl_add_u32 {u(4)}, v{V_G}, 3, v{V_A1}')
    a(f'v_add_u32 {u(4)}, s{S_T0}, {u(4)}')
    a('s_waitcnt vmcnt(0)')
    a('s_nop 4')
    cmul_pack(V_D)
    for mt in range(2):
        a(f'ds_write_b64 {u(4)}, {vr(V_D+4*mt,2)} offset:{2304*mt}')
        a(f'ds_write_b64 {u(4)}, {vr(V_D+4*mt+2,2)} offset:{L_CPI-L_CPR+2304*mt}')
    sync(F_SY1)
    a(f's_mul_i32 s{S_T0}, s{S_NH}, 2304')
    a(f'v_lshl_add_u32 {u(4)}, v{V_G}, 4, v{V_A1}')
    a(f'v_add_u32 {u(4)}, s{S_T0}, {u(4)}')
    for part in range(2):
        for ks in range(2):
            a(f'ds_read_b128 {vr(V_D+8*part+4*ks,4)}, {u(4)} offset:{(L_CPI-L_CPR)*part+64*ks}')
    lo()
    a('s_waitcnt lgkmcnt(0)')
    for ks in range(2):
        for nt in range(2):
            mf(V_AC + 8*nt, t1(nt, ks, 0), zr(ks), ks)
            mf(V_AC + 8*nt + 4, t1(nt, ks, 0), zi(ks), ks)
        for nt in range(2):
            mf(V_AC + 8*nt, t1(nt, ks, 1), zi(ks), 1)
            mf(V_AC + 8*nt + 4, t1(nt, ks, 2), zr(ks), 1)
    hi()
    a(f'v_lshlrev_b32 {u(4)}, 7, v{V_I}')
    a(f'v_lshl_add_u32 {u(4)}, v{V_G}, 4, {u(4)}')
    a(f's_lshl_b32 s{S_T0}, s{S_F}, 13')
    a(f's_lshl_b32 s{S_T1}, s{S_NH}, 11')
    a(f's_add_u32 s{S_T0}, s{S_T0}, s{S_T1}')
    a(f's_lshl_b32 s{S_T1}, s{S_MH}, 6')
    a(f's_add_u32 s{S_T0}, s{S_T0}, s{S_T1}')
    a(f's_add_u32 s{S_T0}, s{S_T0}, {WS_Y1T}')
    a(f's_add_u32 s{S_T1}, s{S_T0}, 4096')
    for part in range(2):
        for nt in range(2):
            for q in range(2):
                src = V_AC + 8*nt + 4*part + 2*q
                a(f'v_cvt_pk_bf16_f32 v{V_D+4*part+2*nt+q}, v{src}, v{src+1}')
    for part in range(2):
        a(f'buffer_store_dwordx4 {vr(V_D+4*part,4)}, {u(4)}, {ws}, s{S_T0+part} offen{SC}')
    join_flag(F_J2, 4, WS_FL3)
    stamp(8)
    if E('NOHELP', 0) == 2:
        dump()
        a('s_endpgm')

    AB, AA, LF, FR = 16, 32, 48, 80
    NFR = 32
    V_DM, V_RA, V_RY, V_OUT, V_GT, V_DW = 208, 209, 210, 211, 212, 213
    S_MI, S_NI = S_CT, S_A
    a(f's_lshr_b32 s{S_MI}, s{S_HW}, 1')
    a(f's_and_b32 s{S_NI}, s{S_HW}, 1')
    srd(a, R_A, S_WO, 512 * 1024)
    srd(a, R_OUT, S_OUT, 2048 * 1024)
    table_srd(a, R_TB, 'TAB_FINV', 512 * 1024, 'fi')
    a(f'v_lshrrev_b32 {u(0)}, 3, v0')
    a(f'v_and_b32 {u(1)}, 7, v0')
    a(f'v_and_b32 {u(2)}, 1, v{V_G}')
    a(f'v_lshlrev_b32 {u(3)}, 2, {u(2)}')
    a(f'v_xor_b32 {u(3)}, {u(3)}, {u(1)}')
    a(f'v_lshlrev_b32 {u(3)}, 4, {u(3)}')
    a(f'v_lshl_add_u32 {u(4)}, {u(0)}, 10, {u(3)}')
    a(f'v_mov_b32 v{V_DW}, {u(4)}')
    a(f's_lshl_b32 s{S_T3}, s{S_HW}, 14')
    a(f'v_lshl_add_u32 v{V_DM}, {u(0)}, 12, {u(3)}')
    a(f'v_and_b32 {u(0)}, 31, v0')
    a(f'v_lshrrev_b32 {u(1)}, 5, v0')
    a(f'v_bfe_u32 {u(3)}, v0, 2, 2')
    a(f'v_and_b32 {u(4)}, 3, v0')
    a(f'v_lshrrev_b32 {u(5)}, 1, {u(4)}')
    a(f'v_and_b32 {u(4)}, 1, {u(4)}')
    a(f'v_lshrrev_b32 {u(6)}, 1, {u(3)}')
    a(f'v_lshlrev_b32 {u(6)}, 2, {u(6)}')
    a(f'v_lshl_add_u32 {u(7)}, {u(4)}, 1, {u(2)}')
    a(f's_lshl_b32 s{S_T0}, s{S_MI}, 2')
    a(f'v_add_u32 {u(7)}, s{S_T0}, {u(7)}')
    a(f'v_xor_b32 {u(7)}, {u(7)}, {u(6)}')
    a(f'v_lshlrev_b32 {u(7)}, 4, {u(7)}')
    a(f'v_lshl_add_u32 {u(7)}, {u(5)}, 3, {u(7)}')
    a(f'v_lshl_add_u32 v{V_RA}, {u(1)}, 2, {u(3)}')
    a(f'v_lshl_add_u32 v{V_RA}, v{V_RA}, 7, {u(7)}')
    a(f'v_lshl_add_u32 {u(7)}, {u(2)}, 1, {u(5)}')
    a(f's_lshl_b32 s{S_T0}, s{S_NI}, 2')
    a(f'v_add_u32 {u(7)}, s{S_T0}, {u(7)}')
    a(f'v_xor_b32 {u(7)}, {u(7)}, {u(6)}')
    a(f'v_lshlrev_b32 {u(7)}, 4, {u(7)}')
    a(f'v_lshl_add_u32 {u(7)}, {u(4)}, 3, {u(7)}')
    a(f'v_lshl_add_u32 v{V_RY}, {u(1)}, 3, {u(3)}')
    a(f'v_lshl_add_u32 v{V_RY}, v{V_RY}, 7, {u(7)}')
    a(f'v_add_u32 v{V_RY}, {L_Y}, v{V_RY}')
    a(f'v_bfe_u32 {u(5)}, {u(0)}, 2, 1')
    a(f'v_lshrrev_b32 {u(6)}, 3, {u(0)}')
    a(f'v_and_b32 {u(7)}, 3, {u(0)}')
    a(f'v_lshl_add_u32 {u(7)}, {u(5)}, 4, {u(7)}')
    a(f'v_lshl_add_u32 {u(7)}, {u(6)}, 2, {u(7)}')
    a(f'v_lshlrev_b32 {u(7)}, 15, {u(7)}')
    a(f'v_lshl_add_u32 {u(7)}, {u(1)}, 5, {u(7)}')
    a(f's_lshl_b32 s{S_T0}, s{S_NI}, 20')
    a(f's_lshl_b32 s{S_T1}, s{S_QG}, 10')
    a(f's_add_u32 s{S_T0}, s{S_T0}, s{S_T1}')
    a(f's_lshl_b32 s{S_T1}, s{S_HG}, 7')
    a(f's_add_u32 s{S_T0}, s{S_T0}, s{S_T1}')
    a(f's_lshl_b32 s{S_T1}, s{S_MI}, 6')
    a(f's_add_u32 s{S_T0}, s{S_T0}, s{S_T1}')
    a(f'v_add_u32 v{V_OUT}, s{S_T0}, {u(7)}')
    a(f'v_lshlrev_b32 v{V_GT}, 2, {u(0)}')
    S_FI = S_KOFF
    a(f's_lshl_b32 s{S_FI}, s{S_HG}, 16')
    a(f's_lshl_b32 s{S_T0}, s{S_MI}, 10')
    a(f's_add_u32 s{S_FI}, s{S_FI}, s{S_T0}')
    def fload(i):
        if i % 2 == 0:
            a(f's_add_u32 s{S_KB}, s{S_FI}, {i*2048}')
        a(f'buffer_load_dwordx4 {vr(FR+4*(i%NFR),4)}, v{V_L16}, {tb}, s{S_KB} offen offset:{(i%2)*2048}')
    for i in range(NFR):
        fload(i)
        thr()
    def wo_dma():
        a(f's_lshl_b32 s{S_T2}, s{S_HW}, 17')
        a(f's_lshl_b32 s{S_T0}, s{S_HG}, 7')
        a(f's_add_u32 s{S_T2}, s{S_T2}, s{S_T0}')
        a(f's_cmp_eq_u32 s{S_HW}, 2')
        a(f's_cselect_b32 s{S_T1}, {L_KW}, s{S_T3}')
        assert L_WO == 0
        for i in range(16):
            a(f's_add_u32 m0, s{S_T1}, {i*1024}')
            a(f's_add_u32 s{S_T0}, s{S_T2}, {i*8192}')
            a(f'buffer_load_dwordx4 v{V_DW}, {ra}, s{S_T0} offen lds')
            thr()
    a(f's_cmp_lt_u32 s{S_HW}, 2')
    a('s_cbranch_scc1 KG_WOE')
    lds_wait(F_J2, 4, V_U, sleep=2)
    wo_dma()
    a.label('KG_WOE')
    a(f's_cmp_lg_u32 s{S_HW}, 1')
    a('s_cbranch_scc1 KG_S2W')
    a(f's_mov_b32 s{S_T1}, {WS_FL3}')
    glob_poll('S2', -1, S2_SLEEP)
    a(f'v_mov_b32 {u(1)}, 1')
    a(f'ds_write_b32 v{V_Z}, {u(1)} offset:{4*F_S2OK}')
    a.label('KG_S2W')
    pg_wait(6, 4)
    lds_wait(F_S2OK, 1, V_U, sleep=4)
    stamp(9)
    a(f's_lshl_b32 s{S_T2}, s{S_HW}, 19')
    a(f's_lshl_b32 s{S_T0}, s{S_QG}, 7')
    a(f's_add_u32 s{S_T2}, s{S_T2}, s{S_T0}')
    a(f's_add_u32 s{S_T2}, s{S_T2}, {WS_Y1T}')
    for i in range(16):
        a(f's_add_u32 m0, s{S_T3}, {L_Y + i*1024}')
        a(f's_add_u32 s{S_T0}, s{S_T2}, {i*32768}')
        a(f'buffer_load_dwordx4 v{V_DM}, {ws}, s{S_T0} offen{SC} lds')
        thr()
    a(f's_lshl_b32 s{S_T0}, s{S_QG}, 8')
    a(f's_lshl_b32 s{S_T1}, s{S_NI}, 7')
    a(f's_add_u32 s{S_T0}, s{S_T0}, s{S_T1}')
    a(f's_add_u32 s{S_T0}, s{S_T0}, {WS_G}')
    a(f'buffer_load_dword v{V_GT}, v{V_GT}, {ws}, s{S_T0} offen{SC}')
    a('s_waitcnt vmcnt(0)')
    sync(F_J3)
    def lread(i, addr, second):
        a(f'ds_read_b64_tr_b16 {vr(LF+4*(i%8),2)}, v{addr} offset:{i*2048}')
        a(f'ds_read_b64_tr_b16 {vr(LF+4*(i%8)+2,2)}, v{addr} offset:{i*2048+second}')
    if PRI & 2: a('s_setprio 0')
    for i in range(6):
        lread(i, V_RY, 512)
    for i in range(32):
        if i >= NFR:
            a(f's_waitcnt vmcnt({31-i}) lgkmcnt({2*min(5, 31-i)})')
        else:
            a(f's_waitcnt lgkmcnt({2*min(5, 31-i)})')
        cc = vr(AB, 16) if i else '0'
        a(f'v_mfma_f32_32x32x16_bf16 {vr(AB,16)}, {vr(FR+4*(i%NFR),4)}, {vr(LF+4*(i%8),4)}, {cc}')
        if i + NFR < 32: fload(i + NFR)
        if i + 6 < 32: lread(i + 6, V_RY, 512)
    if PRI & 2: a('s_setprio 2')
    stamp(10)
    if E('NOHELP', 0) == 3:
        dump()
        a('s_endpgm')
    a(f's_cmp_ge_u32 s{S_HW}, 2')
    a('s_cbranch_scc1 KG_WOL')
    pg_wait(8, 2)
    wo_dma()
    a.label('KG_WOL')
    a(f'v_add_u32 v{V_RY}, {L_KW}, v{V_RA}')
    a('s_waitcnt vmcnt(0)')
    sync(F_J4)
    FW = FR + 64
    def wread(t_):
        for p_ in range(16):
            i = 2*p_ + t_
            ad, off = (V_RY, (i & 7) * 2048) if (i >> 3) == 2 else (V_RA, i * 2048)
            a(f'ds_read_b64_tr_b16 {vr(FW+4*p_,2)}, v{ad} offset:{off}')
            a(f'ds_read_b64_tr_b16 {vr(FW+4*p_+2,2)}, v{ad} offset:{off+1024}')
    a(f's_lshl_b32 s{S_T2}, s{S_QG}, 1')
    a(f's_add_u32 s{S_T2}, s{S_T2}, s{S_NI}')
    a(f's_lshl_b32 s{S_KOFF}, s{S_T2}, 11')
    a(f's_add_u32 s{S_KOFF}, s{S_KOFF}, {WS_FL4}')
    a(f's_lshl_b32 s{S_T2}, s{S_T2}, 15')
    a(f's_add_u32 s{S_T2}, s{S_T2}, {WS_O}')
    for t_ in range(2):
        wread(t_)
        if t_ == 0:
            stamp(4)
            lds_wait(F_ADONE, 1, V_U, sleep=4)
        a(f's_add_u32 s{S_T1}, s{S_KOFF}, {4*t_}')
        glob_poll(f'O{t_}', 0xffff, O_SLEEP, wide=False)
        stamp(11 if t_ else 3)
        def oload(p_):
            if p_ % 2 == 0:
                a(f's_add_u32 s{S_KB}, s{S_T2}, {p_*2048}')
            a(f'buffer_load_dwordx4 {vr(FR+4*p_,4)}, v{V_L16}, {ws}, s{S_KB} offen offset:{(p_%2)*2048+1024*t_}{OSC}')
        for p_ in range(NFO):
            oload(p_)
        if TST and t_: stamp(1)
        if t_ == 0 and PRI & 2: a('s_setprio 0')
        for p_ in range(16):
            nout = (min(15, p_ + NFO - 1) - p_)
            a(f's_waitcnt vmcnt({nout})' + (' lgkmcnt(0)' if p_ == 0 else ''))
            if TST and t_ and p_ in (0, 15):
                stamp({0: 2, 15: 5}[p_])
            cc = vr(AA, 16) if (p_ or t_) else '0'
            a(f'v_mfma_f32_32x32x16_bf16 {vr(AA,16)}, {vr(FW+4*p_,4)}, {vr(FR+4*p_,4)}, {cc}')
            if p_ + NFO < 16: oload(p_ + NFO)
        if t_ == 0 and PRI & 2: a('s_setprio 2')
        if t_ == 0: stamp(5)
    a('s_nop 11')
    for i in range(16):
        a(f'v_sub_f32 v{AA+i}, v{AA+i}, v{AB+i}')
        a(f'v_fma_f32 v{AA+i}, v{V_GT}, v{AA+i}, v{AB+i}')
    for i in range(8):
        a(f'v_cvt_pk_bf16_f32 v{LF+i}, v{AA+2*i}, v{AA+2*i+1}')
    for q in range(2):
        a(f'buffer_store_dwordx4 {vr(LF+4*q,4)}, v{V_OUT}, {sr(R_OUT,4)}, 0 offen offset:{16*q}{OUTSC}')
    if TST: stamp(6)
    dump()
    a('s_endpgm')

    SG, SL, SD = 168, 176, 184
    a.label('KG_SPA')
    a(f's_mov_b32 s{S_T0}, {L_SP}')
    a(f's_mov_b32 s{S_T1}, {L_SPW}')
    for e in range(8):
        k_ = u(4 + (e & 1))
        a(f'v_sub_u32 {k_}, {2048 - 64*(e&3) - 1024*(e>>2)}, v{V_A3}')
        a(f'v_and_b32 {k_}, 2047, {k_}')
        a(f'v_lshl_add_u32 v{SL+e}, {k_}, 2, s{S_T0}')
        a(f'v_lshl_add_u32 v{SG+e}, {k_}, 3, s{S_T1}')
    a('s_branch KG_SPAR')
    a.label('KG_SPB')
    a(f's_mov_b32 s{S_C0}, 0x05040100')
    a(f's_mov_b32 s{S_C0+1}, 0x07060302')
    a(f's_mov_b32 s{S_T1}, {L_SPW}')
    a(f'v_lshl_add_u32 {u(4)}, v{V_A3}, 3, s{S_T1}')
    a('s_waitcnt vmcnt(0)')
    for e in range(8):
        for j, base in enumerate((V_W, V_XX)):
            a(f'v_perm_b32 v{SD+2*e+j}, v{base+12+(e>>1)}, v{base+4+(e>>1)}, s{S_C0+(e&1)}')
        a(f'ds_write_b64 {u(4)}, {vr(SD+2*e,2)} offset:{512*(e&3) + 8192*(e>>2)}')
    a('s_branch KG_SPBR')
    a.label('KG_SPECIAL')
    for e in range(8):
        a(f'ds_read_b64 {vr(SD+2*e,2)}, v{SG+e}')
    a(f'v_lshlrev_b32 {u(4)}, 2, v{V_A3}')
    a(f'v_add_u32 {u(6)}, {L_SP}, {u(4)}')
    for e in range(8):
        mt, r = e >> 2, e & 3
        a(f'ds_write2st64_b32 {u(6)}, v{V_AC+8*mt+r}, v{V_AC+8*mt+4+r} offset0:{16*mt+r} offset1:{32+16*mt+r}')
    a(f'v_mov_b32 {u(0)}, 1')
    a('s_waitcnt lgkmcnt(0)')
    a('s_mov_b64 exec, 1')
    a(f'ds_add_u32 v{V_Z}, {u(0)} offset:{4*F_SY2}')
    a('s_mov_b64 exec, -1')
    unpack(V_XX)
    for e in range(8):
        a0r, a0i, a1r, a1i = V_W + e, V_W + 8 + e, V_XX + e, V_XX + 8 + e
        b0r, b0i, b1r, b1i = SD + 16, SD + 2*e, SD + 17, SD + 2*e + 1
        a(f'v_lshlrev_b32 v{b0r}, 16, v{b0i}')
        a(f'v_lshlrev_b32 v{b1r}, 16, v{b1i}')
        a(f'v_and_b32 v{b0i}, 0xffff0000, v{b0i}')
        a(f'v_and_b32 v{b1i}, 0xffff0000, v{b1i}')
        a(f'v_add_f32 v{b0r}, v{a0r}, v{b0r}')
        a(f'v_sub_f32 v{b0i}, v{a0i}, v{b0i}')
        a(f'v_add_f32 v{b1r}, v{a1r}, v{b1r}')
        a(f'v_sub_f32 v{b1i}, v{a1i}, v{b1i}')
        a(f'v_add_f32 v{a0r}, v{b0r}, v{b1r}')
        a(f'v_add_f32 v{a0i}, v{b0i}, v{b1i}')
        a(f'v_sub_f32 v{a1r}, v{b0r}, v{b1r}')
        a(f'v_sub_f32 v{a1i}, v{b0i}, v{b1i}')
    lds_wait(F_SY2, 4, V_U, sleep=1)
    for e in range(8):
        a(f'ds_read2st64_b32 {vr(V_D+2*e,2)}, v{SL+e} offset0:0 offset1:32')
    a(f's_mov_b32 s{S_T0}, {f32_bits(0.125)}')
    for e in range(8):
        mt, r = e >> 2, e & 3
        zr_, zi_ = V_AC + 8*mt + r, V_AC + 8*mt + 4 + r
        pr, pi_, mr, mi = V_W + e, V_W + 8 + e, V_XX + e, V_XX + 8 + e
        znr, zni = V_D + 2*e, V_D + 2*e + 1
        rr, ri = SD + 2*e, SD + 2*e + 1
        a(f'v_mul_f32 v{rr}, v{zr_}, v{pr}')
        a(f'v_mul_f32 v{ri}, v{zr_}, v{pi_}')
        a(f'v_fma_f32 v{rr}, -v{zi_}, v{pi_}, v{rr}')
        a(f'v_fma_f32 v{ri}, v{zi_}, v{pr}, v{ri}')
        a(f's_waitcnt lgkmcnt({7-e})')
        a(f'v_fma_f32 v{rr}, v{znr}, v{mr}, v{rr}')
        a(f'v_fma_f32 v{ri}, v{znr}, v{mi}, v{ri}')
        a(f'v_fma_f32 v{rr}, v{zni}, v{mi}, v{rr}')
        a(f'v_fma_f32 v{ri}, -v{zni}, v{mr}, v{ri}')
        a(f'v_mul_f32 v{zr_}, s{S_T0}, v{rr}')
        a(f'v_mul_f32 v{zi_}, s{S_T0}, v{ri}')
    a('s_branch KG_STEP3')
    a.label('KG_END')
    a('s_endpgm')
    return 216, (102 if ST in (5, 6, 7) else NS)

def build_g(path):
    a = Asm()
    hdr = open(f'cdna_kernels/{NAME}.s.ref').read().split('\n')
    for l in hdr:
        if l.startswith(';') and '@launch' not in l and 'Override launch' not in l and 'grid=ceil' not in l:
            a.raw(l)
    kn = NAME + '_kernel'
    if E('PLAIN', 0):
        a.raw(f'; @launch grid=(256,1,1) block=(512,1,1) lds={KG_LDS}')
    else:
        a.raw(f'; @launch kernel={kn} grid=(256,1,1) block=(512,1,1) lds={KG_LDS}')
    a.raw('.amdgcn_target "amdgcn-amd-amdhsa--gfx950"')
    a.raw('.text')
    v, s = gen_g(a, kn)
    a.raw('.section .rodata,"a"')
    kernel_desc(a, kn, v, s)
    gen_tables(a)
    gen_k2.gen_tables_k2(a)
    gen_k3.gen_tables_k3(a)
    open(path, 'w').write(a.text())

if __name__ == '__main__':
    build_g(sys.argv[1] if len(sys.argv) > 1 else 'j.s')
```

```python
from gen import *
import gen_k2, gen_k3
from gen_k2 import YSCALE
import os

WS_ROOT = 0x240000
WS_FL1 = 0x244000
WS_FL2 = 0x248000
WS_FL3 = 0x24C000
WS_FL4 = 0x260000
TAG_M, TAG_C = 0x9E3779B1, 0x7F4A7C15
WS_XC = 0x250000
FORCE_GL = int(os.environ.get('FORCE_GL', '0'))
WS_KVT = 0x000000

L_X = 0
L_WQ = 65536
L_FLAG = 131072
L_KW = L_FLAG + 256
L_GATE = L_KW + 16384
KG_LDS = 163840
L_APR = L_KW; L_API = L_APR + 5120
L_CPR = L_API + 5120; L_CPI = L_CPR + 4608
L_MX = L_KW
L_MXM = L_KW + 20480
assert L_CPI + 4608 <= L_MXM and L_MX + 8 * 2304 <= L_MXM and L_MXM + 4096 <= KG_LDS and L_GATE + 1024 <= L_MXM
L_SP = L_WQ
L_SPW = L_X + 49152
L_WO = L_X
L_Y = L_WQ
F_CX, F_CW = 0, 1
F_CC, F_MG, F_MM, F_PG, F_QX = 0, 8, 16, 40, 48
L_QX = L_GATE + 1024
assert L_QX + 8192 <= KG_LDS
F_N, F_TAG, F_QDONE, F_J1, F_S1OK, F_SY0, F_SY1, F_SY2, F_J2, F_S2OK, F_J3, F_TAGOK, F_ADONE, F_J4, F_KVS, F_GI, F_PRE = range(24, 41)
F_PRE = 2
F_PGW = 8
F_KX = 15
F_WR = 3
F_LOC = 14
F_POS, F_H2 = 12, 13
L_PRE = L_KW
NWAVE = 8
WS_G = 0x230000
E = lambda k, d: int(os.environ.get(k, str(d)))
LOAD_D = E('LOAD_D', 6)
KV_SLEEP = E('KV_SLEEP', 4)
O_SLEEP = E('O_SLEEP', 2)
THR = E('THR', 15)
LD_PRE = E('LD_PRE', 0)
KV_BAR = E('KV_BAR', 15)
FAIR = E('FAIR', 1)
KV_LAG = E('KV_LAG', 0)
TF_LAG = E('TF_LAG', 1)
WT_LAG = E('WT_LAG', 8)
G_DELAY = E('G_DELAY', 12)
Q7_SLEEP = E('Q7_SLEEP', 0)
H2_PD = E('H2_PD', 12)
KVSC = ' sc1' if E('KVSC1', 0) else ''
OSC = ' sc1' if E('OSC1', 0) else ''
SC = ' sc1'
POLL_LIMIT = 1 << 18
NSTAMP = 12
OF_STEP = E('OF_STEP', 12)
O1W = E('O1W', 1)
FI_TOUCH = E('FI_TOUCH', 0)
T2 = E('T2', 1)
ROT = E('ROT', 0)
O_SLEEP1 = E('O_SLEEP1', 0)
NFO = E('NFO', 10)
TST = E('TST', 0)
OST = '' if E('OPLAIN', 0) else ' sc1'
S1_SLEEP = E('S1_SLEEP', 4)
S2_SLEEP = E('S2_SLEEP', 8)
SPSC = ' sc1' if E('SPSC1', 0) else ''
KP_DELAY = E('KP_DELAY', 0)
PEEL_B = E('PEEL_B', 4)
PRI = E('PRI', 7)
LST = E('LST', 0)
G_EARLY = E('G_EARLY', 8)
G_TRIG = E('G_TRIG', 7)
QPIPE = E('QPIPE', 2)
EPOLL = E('EPOLL', 8)
TOUCH = E('TOUCH', 1)
FST = E('FST', 0)
PRET = E('PRET', 1)
OUTSC = {0: '', 1: ' sc1', 2: ' nt', 3: ' sc0 sc1', 4: ' sc1 nt'}[E('OUTSC', 0)]

def gen_g(a, name):
    kernel_header(a, name)
    S_X, S_WQ, S_WK, S_WV, S_WO, S_WS, S_WR, S_WI, S_GT, S_OUT = 4, 6, 8, 10, 12, 14, 16, 18, 20, 22
    R_X, R_WS, R_A, R_B, R_TB, R_OUT = 24, 28, 32, 36, 40, 44
    S_W, S_QG, S_HG, S_T0, S_T1, S_T2, S_T3, S_CNT, S_KOFF, S_KB, S_P, S_KH = 48, 49, 50, 51, 52, 53, 54, 55, 56, 57, 58, 59
    S_VM = 60; S_C0 = 62; S_C1 = 64
    S_CT, S_A, S_F, S_HW, S_MH, S_NH, S_SEEN, S_LIM, S_TAG = 3, 66, 67, 68, 69, 70, 71, 72, 73
    NS = 74
    SB = 74
    ws = sr(R_WS, 4); xs = sr(R_X, 4); ra = sr(R_A, 4); rb_ = sr(R_B, 4); tb = sr(R_TB, 4)
    TM = 's_memrealtime' if ST in (5, 7) else 's_memtime'
    duid = [0]
    def stamp(i, f=0):
        if FST and (i >= 7) != bool(f):
            if i >= 7 or f: return
        if f and not FST: return
        if ST in (5, 6, 7):
            a(f'{TM} s[{SB+2*i}:{SB+1+2*i}]')
    def dump(kind=0):
        n = NSTAMP
        if ST == 7:
            duid[0] += 1
            a('s_waitcnt vmcnt(0)')
            a(f'{TM} s[{SB+2*n}:{SB+1+2*n}]')
            a(f's_load_dwordx2 s[{R_A}:{R_A+1}], s[0:1], 80')
            a(f's_mov_b32 s{R_A+2}, 256')
            a(f's_mov_b32 s{R_A+3}, 0x20000')
            a('s_waitcnt lgkmcnt(0)')
            a('s_mov_b64 exec, 1')
            a('v_mov_b32 v0, 0')
            a(f's_cmp_lg_u32 s{S_W}, {4 if kind else 0}')
            a(f's_cbranch_scc1 KG_DD{duid[0]}')
            if kind:
                a(f's_not_b32 s{S_T0}, s{SB}')
                a(f'v_mov_b32 v2, s{S_T0}')
                a(f'buffer_atomic_umax v2, v0, {ra}, 0 offen offset:0')
                L = [(2, 0), (3, 2), (4, 3), (5, 4), (6, 5), (7, 12)]
            else:
                a(f'v_mov_b32 v2, s{SB+24}')
                a(f'buffer_atomic_umax v2, v0, {ra}, 0 offen offset:4')
                L = [(8, 3), (9, 5), (10, 6), (11, 7), (12, 8), (13, 9), (14, 11), (15, 12)]
            for k, (sl, st_) in enumerate(L):
                a(f'v_mov_b32 v{3+k}, s{SB+2*st_}')
                a(f'buffer_atomic_add v{3+k}, v0, {ra}, 0 offen offset:{4*sl}')
            a.label(f'KG_DD{duid[0]}')
        if ST in (5, 6):
            a('s_waitcnt vmcnt(0)')
            a(f'{TM} s[{SB+2*n}:{SB+1+2*n}]')
            a('s_mov_b64 exec, 1')
            a(f's_lshl_b32 s{S_T0}, s2, 4')
            a(f's_add_u32 s{S_T0}, s{S_T0}, s{S_W}')
            a(f's_lshl_b32 s{S_T0}, s{S_T0}, 6')
            a(f's_add_u32 s{S_T0}, s{S_T0}, {0xC00000}')
            a('s_waitcnt lgkmcnt(0)')
            a(f's_mov_b32 s{R_WS+2}, 0x1000000')
            a('v_mov_b32 v0, 0')
            if LST and kind:
                a('s_mov_b64 exec, 0xffff')
                a('v_mbcnt_lo_u32_b32 v3, -1, 0')
                a('v_lshlrev_b32 v3, 2, v3')
                a(f'v_add_u32 v3, 0x100000, v3')
                a(f'buffer_store_dword v{192+23}, v3, {ws}, s{S_T0} offen')
                a('s_mov_b64 exec, 1')
            for i in range(n + 1):
                a(f'v_mov_b32 v2, s{SB+2*i}')
                a(f'buffer_store_dword v2, v0, {ws}, s{S_T0} offen offset:{4*i}')
                a('s_nop 1')

    a('s_cmp_ge_u32 s2, 256')
    a('s_cbranch_scc1 KG_END')
    if ST in (5, 6, 7):
        for i in range(NSTAMP + 1):
            a(f's_mov_b32 s{SB+2*i}, 0')
    stamp(0)
    a(f's_load_dwordx8 s[{S_X}:{S_X+7}], s[0:1], 0')
    a(f's_load_dwordx2 s[{S_WS}:{S_WS+1}], s[0:1], 88')
    a(f's_load_dwordx4 s[{S_GT}:{S_GT+3}], s[0:1], 64')
    a(f's_load_dwordx2 s[{S_WO}:{S_WO+1}], s[0:1], 32')
    a(f's_load_dwordx4 s[{S_WR}:{S_WR+3}], s[0:1], 48')
    a('v_lshrrev_b32 v1, 6, v0')
    a('v_and_b32 v0, 63, v0')
    a(f's_and_b32 s{S_T0}, s2, 7')
    a(f'v_readfirstlane_b32 s{S_W}, v1')
    a(f's_lshl_b32 s{S_T0}, s{S_T0}, 2')
    a(f's_lshr_b32 s{S_QG}, s2, 6')
    a(f's_add_u32 s{S_QG}, s{S_QG}, s{S_T0}')
    a(f's_bfe_u32 s{S_HG}, s2, 0x30003')
    a(f's_mov_b32 s{S_LIM}, {1<<21}')
    S_ROT = S_F
    if ROT == 1:
        a(f's_lshl_b32 s{S_ROT}, s{S_HG}, 7')
    elif ROT == 2:
        a(f's_lshr_b32 s{S_ROT}, s2, 5')
        a(f's_and_b32 s{S_ROT}, s{S_ROT}, 6')
        a(f's_add_u32 s{S_ROT}, s{S_ROT}, s{S_HG}')
        a(f's_and_b32 s{S_ROT}, s{S_ROT}, 7')
        a(f's_lshl_b32 s{S_ROT}, s{S_ROT}, 7')
    elif ROT == 3:
        a(f's_lshr_b32 s{S_ROT}, s2, 6')
        a(f's_lshl_b32 s{S_ROT}, s{S_ROT}, 8')
    V_Z = 7
    a(f'v_mov_b32 v{V_Z}, {L_FLAG}')
    V_I, V_G, V_L16, V_A1, V_A2, V_A3 = 1, 2, 3, 4, 5, 6
    V_U = 8
    u = lambda i: f'v{V_U+i}'
    KX, KW, KA = 16, 80, 144
    S_RB, S_TY, S_KQ = S_P, S_KH, S_KB
    a(f'v_and_b32 v{V_I}, 15, v0')
    a(f'v_lshrrev_b32 v{V_G}, 4, v0')
    a(f'v_lshlrev_b32 v{V_L16}, 4, v0')
    a(f's_mov_b32 s{S_HW}, s{S_W}')
    a(f's_cmp_lg_u32 s{S_W}, 0')
    a('s_cbranch_scc1 KG_N0')
    a('s_setprio 2')
    a(f'v_lshl_add_u32 {u(1)}, v0, 2, v{V_Z}')
    a(f'v_mov_b32 {u(2)}, 0')
    a(f'ds_write_b32 {u(1)}, {u(2)}')
    def xaddr():
        a(f'v_lshrrev_b32 {u(0)}, 3, v0')
        a(f'v_and_b32 {u(1)}, 7, v0')
        a(f'v_lshrrev_b32 {u(2)}, 2, {u(0)}')
        a(f'v_and_b32 {u(3)}, 3, {u(0)}')
        a(f'v_lshl_add_u32 {u(2)}, {u(2)}, 4, {u(3)}')
        a(f'v_lshlrev_b32 {u(2)}, 15, {u(2)}')
        a(f's_lshl_b32 s{S_T0}, s{S_QG}, 10')
        a(f'v_add_u32 {u(2)}, s{S_T0}, {u(2)}')
        a(f'v_xor_b32 {u(3)}, v{V_G}, {u(1)}')
        a(f'v_lshl_add_u32 {u(4)}, {u(3)}, 4, {u(2)}')
        a(f'v_xor_b32 {u(3)}, 4, {u(3)}')
        a(f'v_lshl_add_u32 {u(5)}, {u(3)}, 4, {u(2)}')
        a(f'v_add_u32 {u(5)}, {131072 - 1024}, {u(5)}')
    def xpair(sd, sl, sp):
        a(f's_lshr_b32 s{sd}, s{sp}, 1')
        a(f's_lshl_b32 s{sd}, s{sd}, 20')
        a(f's_and_b32 s{sl}, s{sp}, 1')
        a(f's_lshl_b32 s{sl}, s{sl}, 18')
        a(f's_add_u32 s{sd}, s{sd}, s{sl}')
        if ROT: a(f's_add_u32 s{sd}, s{sd}, s{S_ROT}')
        a(f's_lshl_b32 s{sl}, s{sp}, 11')
    a(f's_lshr_b32 s{S_RB}, s{S_HG}, 1')
    a(f's_and_b32 s{S_TY}, s{S_HG}, 1')
    xaddr()
    xpair(S_T2, S_T3, S_RB)
    a(f's_mov_b32 s{R_A+2}, 16384')
    a(f's_mov_b32 s{R_A+3}, 0x20000')
    a(f's_mov_b32 s{R_X+2}, {2048 * 1024}')
    a(f's_mov_b32 s{R_X+3}, 0x20000')
    a(f's_mov_b32 m0, s{S_T3}')
    a(f's_cmp_eq_u32 s{S_TY}, 1')
    a('s_waitcnt lgkmcnt(0)')
    stamp(8, 1)
    a(f's_cselect_b64 s[{R_A}:{R_A+1}], s[{S_WV}:{S_WV+1}], s[{S_WK}:{S_WK+1}]')
    a(f's_mov_b64 s[{R_X}:{R_X+1}], s[{S_X}:{S_X+1}]')
    for c in range(8):
        if c:
            a(f's_add_u32 m0, s{S_T3}, {c*8192}')
            a(f's_add_u32 s{S_T2}, s{S_T2}, 128')
            if ROT: a(f's_bitset0_b32 s{S_T2}, 10')
        a(f'buffer_load_dwordx4 {u(4)}, {xs}, s{S_T2} offen lds')
        a(f'buffer_load_dwordx4 {u(5)}, {xs}, s{S_T2} offen offset:1024 lds')
        if c == 0: stamp(10, 1)
    for q in range(4):
        a(f's_mov_b32 m0, {L_KW + q*4096}')
        a(f's_movk_i32 s{S_T0}, {q*4096}')
        for j in range(4):
            a(f'buffer_load_dwordx4 v{V_L16}, {ra}, s{S_T0} offen offset:{j*1024} lds')
    srd(a, R_B, S_GT, 1024)
    a(f's_mov_b32 m0, {L_GATE}')
    a(f's_lshr_b32 s{S_T2}, s2, 3')
    a(f'buffer_load_dwordx4 v{V_L16}, {rb_}, 0 offen lds')
    if TOUCH:
        srd(a, R_TB, S_WQ, 512 * 1024)
        a(f'v_lshlrev_b32 {u(2)}, 7, v0')
        a(f's_lshl_b32 s{S_T0}, s{S_T2}, 14')
        a(f's_add_u32 s{S_T1}, s{S_T0}, 8192')
        a(f'buffer_load_dword v{KA+16}, {u(2)}, {tb}, s{S_T0} offen')
        a(f'buffer_load_dword v{KA+17}, {u(2)}, {tb}, s{S_T1} offen')
        a(f'v_and_b32 {u(3)}, 32, v0')
        a(f'v_lshlrev_b32 {u(3)}, 10, {u(3)}')
        a(f'v_and_b32 {u(2)}, 0xfff, {u(2)}')
        a(f'v_add_u32 {u(3)}, {u(3)}, {u(2)}')
        a(f's_and_b32 s{S_T3}, s2, 7')
        a(f's_lshl_b32 s{S_T3}, s{S_T3}, 12')
        a(f's_lshl_b32 s{S_T0}, s{S_T2}, 16')
        a(f's_add_u32 s{S_T3}, s{S_T3}, s{S_T0}')
        a(f'buffer_load_dword v{KA+18}, {u(3)}, {xs}, s{S_T3} offen')
    stamp(11, 1)
    a('s_barrier')
    stamp(1)
    a('s_branch KG_KV')
    a.label('KG_N0')
    a(f's_cmp_lt_u32 s{S_W}, 4')
    a('s_cbranch_scc1 KG_N1')
    if PRET:
        a(f's_getpc_b64 s[{R_A}:{R_A+1}]')
        a.label('KG_PC')
        a(f's_mov_b32 s{R_A+2}, KG_END-KG_PC')
        a(f's_mov_b32 s{R_A+3}, 0x20000')
        a(f's_lshl_b32 s{S_T0}, s{S_W}, 13')
        a(f's_sub_u32 s{S_T1}, s{S_T0}, 0x8000')
        a(f'v_lshlrev_b32 v212, 7, v0')
        a(f'buffer_load_dword v213, v212, {ra}, s{S_T1} offen')
        a(f'buffer_load_dword v214, v212, {ra}, s{S_T0} offen')
    a('s_branch KG_ATT')
    a.label('KG_N1')
    a('s_setprio 2')
    a(f's_cmp_lg_u32 s{S_W}, 1')
    a('s_cbranch_scc1 KG_N2')
    a(f's_mov_b32 s{S_T3}, {WS_ROOT}')
    a(f'v_mov_b32 {u(2)}, 0')
    a('s_waitcnt lgkmcnt(0)')
    srd(a, R_WS, S_WS, WS_SIZE)
    a(f'buffer_load_dword {u(3)}, {u(2)}, {ws}, s{S_T3} offen{SC}')
    a('s_barrier')
    stamp(1)
    a('s_branch KG_TAG')
    a.label('KG_N2')
    S_O, S_L = S_P, S_P + 4
    assert S_O + 8 <= S_A
    S_PV = S_NH
    LK = LOAD_D // 2
    assert L_X == 0 and 1 <= LK <= 7
    a(f's_mov_b32 s{S_PV}, {-LK}')
    a(f's_mov_b32 s{R_A+3}, 0x20000')
    a(f's_cmp_eq_u32 s{S_HW}, 3')
    a('s_cbranch_scc1 KG_LDW')
    def ld_tail(tag, n, flag, first=None):
        a(f'v_mov_b32 {u(6)}, s{S_PV}')
        a(f's_cmp_le_i32 s{S_PV}, 0')
        a(f's_cbranch_scc1 KG_LL{tag}')
        if first: first()
        a(f's_waitcnt vmcnt({n*LK})')
        a(f'ds_write_b32 v{V_Z}, {u(6)} offset:{4*flag}')
        stamp(9, 1)
        if FST:
            a(f's_cmp_lg_u32 s{S_PV}, 1')
            a(f's_cbranch_scc1 KG_FS{tag}')
            stamp(7, 1)
            a.label(f'KG_FS{tag}')
        a(f's_cmp_lt_i32 s{S_PV}, {8-LK}')
        a(f's_cbranch_scc1 KG_LL{tag}')
        for j in range(LK):
            a(f'v_mov_b32 {u(6)}, {8-LK+1+j}')
            a(f's_waitcnt vmcnt({n*(LK-1-j)})')
            a(f'ds_write_b32 v{V_Z}, {u(6)} offset:{4*flag}')
            if j < 2: stamp(10 + j, 1)
        a('s_branch KG_H2B')
    xaddr()
    a(f's_lshr_b32 s{S_T1}, s{S_HG}, 1')
    for k in range(3):
        a(f's_add_u32 s{S_T1}, s{S_T1}, 1')
        a(f's_and_b32 s{S_T1}, s{S_T1}, 3')
        xpair(S_O + k, S_L + k, S_T1)
    a(f's_mov_b32 s{R_A+2}, {2048 * 1024}')
    a(f's_mov_b32 s{S_T2}, 0')
    a('s_waitcnt lgkmcnt(0)')
    a(f's_mov_b64 s[{R_A}:{R_A+1}], s[{S_X}:{S_X+1}]')
    stamp(8, 1)
    a('s_barrier')
    stamp(1)
    a.label('KG_LLX')
    a(f's_add_i32 s{S_PV}, s{S_PV}, 1')
    for k in range(3):
        a(f's_mov_b32 m0, s{S_L+k}')
        a(f's_add_u32 s{S_L+k}, s{S_L+k}, 8192')
        a(f'buffer_load_dwordx4 {u(4)}, {ra}, s{S_O+k} offen lds')
        a(f'buffer_load_dwordx4 {u(5)}, {ra}, s{S_O+k} offen offset:1024 lds')
        a(f's_add_u32 s{S_O+k}, s{S_O+k}, 128')
        if ROT: a(f's_bitset0_b32 s{S_O+k}, 10')
    def kx_wait():
        a(f's_cmp_lg_u32 s{S_T2}, 0')
        a('s_cbranch_scc1 KG_KXD')
        a.label('KG_KXW')
        a(f'ds_read_b32 {u(7)}, v{V_Z} offset:{4*F_KX}')
        a('s_waitcnt lgkmcnt(0)')
        a(f'v_readfirstlane_b32 s{S_T2}, {u(7)}')
        a(f's_cmp_lg_u32 s{S_T2}, 0')
        a('s_cbranch_scc1 KG_KXD')
        a('s_sleep 1')
        a(f's_sub_u32 s{S_LIM}, s{S_LIM}, 1')
        a('s_cbranch_scc0 KG_KXW')
        a(f's_mov_b32 s{S_LIM}, 0')
        a.label('KG_KXD')
    ld_tail('X', 6, F_CX, kx_wait)
    a.label('KG_LDW')
    a(f'v_lshrrev_b32 {u(0)}, 3, v0')
    a(f'v_and_b32 {u(1)}, 7, v0')
    a(f'v_and_b32 {u(2)}, 1, v{V_G}')
    a(f'v_lshlrev_b32 {u(2)}, 2, {u(2)}')
    a(f'v_xor_b32 {u(2)}, {u(2)}, {u(1)}')
    a(f'v_lshlrev_b32 {u(2)}, 4, {u(2)}')
    a(f'v_lshl_add_u32 {u(2)}, {u(0)}, 10, {u(2)}')
    a(f's_lshl_b32 s{S_T0}, s{S_HG}, 7')
    a(f'v_add_u32 {u(2)}, s{S_T0}, {u(2)}')
    for j in range(1, 4):
        a(f'v_add_u32 {u(2+j)}, {7168*j}, {u(2)}')
    if ROT: a(f's_lshl_b32 s{S_O}, s{S_ROT}, 9')
    else: a(f's_mov_b32 s{S_O}, 0')
    a(f's_mov_b32 s{S_L}, {L_WQ}')
    a(f's_mov_b32 s{R_A+2}, {512 * 1024}')
    a('s_waitcnt lgkmcnt(0)')
    a(f's_mov_b64 s[{R_A}:{R_A+1}], s[{S_WQ}:{S_WQ+1}]')
    stamp(8, 1)
    a('s_barrier')
    stamp(1)
    a.label('KG_LLW')
    a(f's_add_i32 s{S_PV}, s{S_PV}, 1')
    for k in range(2):
        a(f's_mov_b32 m0, s{S_L}')
        a(f's_add_u32 s{S_L}, s{S_L}, 4096')
        for j in range(4):
            a(f'buffer_load_dwordx4 {u(2+j)}, {ra}, s{S_O} offen offset:{1024*j} lds')
        a(f's_add_u32 s{S_O}, s{S_O}, 32768')
        if ROT and k == 1: a(f's_bitset0_b32 s{S_O}, 19')
        if k == 0: a(f's_waitcnt vmcnt({8*LK})')
    ld_tail('W', 8, F_CW)

    uid = [0]
    def lds_wait(flag, val, vtmp, sleep=1, addr=None, sdst=None):
        uid[0] += 1; u = uid[0]
        addr = V_Z if addr is None else addr
        sdst = S_T0 if sdst is None else sdst
        a.label(f'KG_LW{u}')
        a(f'ds_read_b32 v{vtmp}, v{addr} offset:{4*flag}')
        a('s_waitcnt lgkmcnt(0)')
        a(f'v_readfirstlane_b32 s{sdst}, v{vtmp}')
        a(f's_cmp_ge_u32 s{sdst}, {val}')
        a(f's_cbranch_scc1 KG_LD{u}')
        a(f's_sleep {sleep}')
        a(f's_sub_u32 s{S_LIM}, s{S_LIM}, 1')
        a(f's_cbranch_scc0 KG_LW{u}')
        a(f's_mov_b32 s{S_LIM}, 0')
        a.label(f'KG_LD{u}')
    def lds_add(flag, vtmp):
        a(f'v_mov_b32 v{vtmp}, 1')
        a('s_mov_b64 exec, 1')
        a(f'ds_add_u32 v{V_Z}, v{vtmp} offset:{4*flag}')
        a('s_mov_b64 exec, -1')
    def get_tag(vtmp):
        a(f'ds_read_b32 v{vtmp}, v{V_Z} offset:{4*F_TAG}')
        a('s_waitcnt lgkmcnt(0)')
        a(f'v_readfirstlane_b32 s{S_TAG}, v{vtmp}')

    V_OQ, V_OV = 2, 3
    V_M = 4
    V_H = 6
    V_Q = 8
    V_S = 16
    V_P = 48
    V_O = 64
    V_K = 96
    V_V = 128
    V_T = 192
    S_N = S_KH
    V_PGA, V_PGV, V_LK = V_T + 16, V_T + 17, V_T + 18
    a.label('KG_ATT')
    a('s_setprio 1')
    a(f's_and_b32 s{S_CT}, s{S_W}, 1')
    a(f's_bfe_u32 s{S_A}, s{S_W}, 0x10001')
    a(f's_mov_b32 s{S_N}, 0')
    a('v_and_b32 v1, 31, v0')
    a(f'v_lshrrev_b32 v{V_H}, 5, v0')
    V_XA = V_T
    V_WA = V_T + 4
    t = lambda i: f'v{V_T+8+i}'
    a(f'v_bfe_u32 {t(0)}, v0, 1, 3')
    a(f's_lshl_b32 s{S_T0}, s{S_A}, 12')
    a(f'v_lshlrev_b32 {t(1)}, 7, v1')
    a(f'v_add_u32 {t(1)}, s{S_T0}, {t(1)}')
    for ks in range(4):
        a(f'v_add_u32 {t(2)}, {2*ks}, v{V_H}')
        a(f'v_xor_b32 {t(2)}, {t(2)}, {t(0)}')
        a(f'v_lshl_add_u32 v{V_XA+ks}, {t(2)}, 4, {t(1)}')
    a(f'v_bfe_u32 {t(0)}, v0, 2, 2')
    a(f'v_and_b32 {t(1)}, 3, v0')
    a(f'v_bfe_u32 {t(2)}, v0, 4, 1')
    a(f'v_lshl_add_u32 {t(3)}, v{V_H}, 3, {t(0)}')
    a(f'v_lshlrev_b32 {t(3)}, 7, {t(3)}')
    a(f'v_lshrrev_b32 {t(4)}, 1, {t(1)}')
    a(f'v_and_b32 {t(5)}, 1, {t(1)}')
    a(f'v_lshrrev_b32 {t(6)}, 1, {t(0)}')
    a(f'v_lshlrev_b32 {t(6)}, 2, {t(6)}')
    a(f'v_lshl_add_u32 {t(7)}, {t(2)}, 1, {t(4)}')
    a(f's_lshl_b32 s{S_T0}, s{S_CT}, 2')
    a(f'v_add_u32 {t(7)}, s{S_T0}, {t(7)}')
    a(f'v_xor_b32 {t(7)}, {t(7)}, {t(6)}')
    a(f'v_lshl_add_u32 {t(7)}, {t(7)}, 4, {t(3)}')
    a(f'v_lshl_add_u32 v{V_WA}, {t(5)}, 3, {t(7)}')
    a(f'v_add_u32 v{V_WA}, {L_WQ}, v{V_WA}')
    a(f'v_lshlrev_b32 v{V_OQ}, 4, v0')
    a(f'v_add_u32 v{V_LK}, {L_PRE}, v{V_OQ}')
    a(f's_lshl_b32 s{S_T0}, s{S_W}, 2')
    a(f'v_add_u32 v{V_PGA}, s{S_T0}, v{V_Z}')
    a(f'v_mov_b32 v{V_PGV}, 1')
    a(f's_mov_b32 s{S_VM}, 0xffff')
    a(f's_mov_b32 s{S_VM+1}, 0xffff')
    a(f'v_and_b32 {t(0)}, 27, v1')
    a(f'v_cmp_eq_u32 vcc, 16, {t(0)}')
    a(f'v_mov_b32 {t(1)}, 0x3f803f80')
    a(f'v_mov_b32 v{V_M}, 0')
    a(f'v_mov_b32 v{V_M+1}, 0')
    a(f'v_cndmask_b32 {t(1)}, 0, {t(1)}, vcc')
    for i in range(64):
        a(f'v_mov_b32 v{V_V+i}, {t(1)}')
    QA = V_S
    if QPIPE == 2:
        for i in range(16):
            a(f'v_mov_b32 v{QA+i}, 0')
    QB = (V_O, V_S + 16)
    a(f's_mov_b32 s{S_SEEN}, 0')
    a('s_waitcnt lgkmcnt(0)')
    srd(a, R_WS, S_WS, WS_SIZE)
    stamp(11, 1)
    a('s_barrier')
    stamp(1)
    def q_wait(c):
        a(f's_cmp_gt_u32 s{S_SEEN}, {c}')
        a(f's_cbranch_scc1 KG_QG{c}')
        a.label(f'KG_QP{c}')
        a(f'ds_read_b64 {vr(V_T+8,2)}, v{V_Z} offset:{4*F_CX}')
        a('s_waitcnt lgkmcnt(0)')
        a(f'v_min_u32 {t(0)}, {t(0)}, {t(1)}')
        a('s_nop 0')
        a(f'v_readfirstlane_b32 s{S_SEEN}, {t(0)}')
        a(f's_cmp_gt_u32 s{S_SEEN}, {c}')
        a(f's_cbranch_scc1 KG_QG{c}')
        if c < 7 or Q7_SLEEP:
            a('s_sleep 1')
        a(f's_sub_u32 s{S_LIM}, s{S_LIM}, 1')
        a(f's_cbranch_scc0 KG_QP{c}')
        a(f's_mov_b32 s{S_LIM}, 0')
        a.label(f'KG_QG{c}')
        if c in (0, 4, 6, 7): stamp({0: 7, 4: 8, 6: 9, 7: 10}[c], 1)
    def q_reads(c):
        b = QB[c & 1]
        for ks in range(4):
            a(f'ds_read_b128 {vr(b+4*ks,4)}, v{V_XA+ks} offset:{c*8192}')
            a(f'ds_read_b64_tr_b16 {vr(b+16+4*ks,2)}, v{V_WA} offset:{c*8192+ks*2048}')
            a(f'ds_read_b64_tr_b16 {vr(b+16+4*ks+2,2)}, v{V_WA} offset:{c*8192+ks*2048+512}')
    def progress():
        a(f'ds_write_b32 v{V_PGA}, v{V_PGV} offset:{4*(F_PGW-4)}')
    spins = []
    def pre_check(n):
        uid[0] += 1; u = uid[0]
        a(f's_cmp_lt_u32 s{S_N}, {n}')
        a(f's_cbranch_scc1 KG_SP{u}')
        a.label(f'KG_SR{u}')
        spins.append(('pre', u, n))
    def pos_check():
        uid[0] += 1; u = uid[0]
        a(f's_cmp_lt_u32 s{S_KOFF}, s{S_KB}')
        a(f's_cbranch_scc1 KG_SP{u}')
        a.label(f'KG_SR{u}')
        spins.append(('q', u, 0))
    def emit_spins():
        for kind, u, n in spins:
            a.label(f'KG_SP{u}')
            if kind == 'pre':
                a(f'ds_read_b32 v{V_T+8}, v{V_Z} offset:{4*F_PRE}')
                a('s_waitcnt lgkmcnt(0)')
                a(f'v_readfirstlane_b32 s{S_N}, v{V_T+8}')
                a(f's_cmp_ge_u32 s{S_N}, {n}')
                a(f's_cbranch_scc1 KG_SR{u}')
            else:
                a(f'ds_read_b32 v{V_T+8}, v{V_Z} offset:{4*F_POS}')
                a('s_waitcnt lgkmcnt(0)')
                a(f'v_readfirstlane_b32 s{S_KOFF}, v{V_T+8}')
                a(f's_cmp_ge_u32 s{S_KOFF}, s{S_KB}')
                a(f's_cbranch_scc1 KG_SR{u}')
                a('s_sleep 1')
            a(f's_sub_u32 s{S_LIM}, s{S_LIM}, 1')
            a(f's_cbranch_scc0 KG_SP{u}')
            a(f's_mov_b32 s{S_LIM}, 0')
            a(f's_branch KG_SR{u}')
        spins.clear()

    def load_k(slot, off):
        a(f'buffer_load_dwordx4 {vr(V_K+4*slot,4)}, v{V_OQ}, {ws}, s{S_KOFF} offen offset:{off}{KVSC}')
    def kv_group(c, adv=True):
        load_k(c & 7, 0)
        load_k((c + 1) & 7, 2048)
        a(f's_mov_b64 exec, s[{S_VM}:{S_VM+1}]')
        for j in range(2):
            sl = (c + j) & 7
            a(f'buffer_load_dwordx4 {vr(V_V+8*sl,4)}, v{V_OQ}, {ws}, s{S_KOFF} offen offset:{2048*j+1024}{KVSC}')
            a(f'buffer_load_dwordx4 {vr(V_V+8*sl+4,4)}, v{V_OQ}, {ws}, s{S_KOFF} offen offset:{2048*j+1280}{KVSC}')
        a('s_mov_b64 exec, -1')
        if adv:
            a(f's_add_u32 s{S_KOFF}, s{S_KOFF}, 4096')
    def pre_reads(c, n=1):
        for j in range(c, c + n):
            a(f'ds_read_b128 {vr(V_K+4*j,4)}, v{V_LK} offset:{2048*j}')
        a(f's_mov_b64 exec, s[{S_VM}:{S_VM+1}]')
        for j in range(c, c + n):
            a(f'ds_read_b128 {vr(V_V+8*j,4)}, v{V_LK} offset:{2048*j+1024}')
            a(f'ds_read_b128 {vr(V_V+8*j+4,4)}, v{V_LK} offset:{2048*j+1280}')
        a('s_mov_b64 exec, -1')
    def mfma_s(t_, slot):
        a(f'v_mfma_f32_32x32x16_bf16 {vr(V_S+16*t_,16)}, {vr(V_K+4*slot,4)}, {vr(V_Q+4*t_,4)}, 0')
    def mfma_pv(t_, slot, pp, zero=False):
        cc = '0' if zero else vr(V_O+16*t_, 16)
        a(f'v_mfma_f32_32x32x16_bf16 {vr(V_O+16*t_,16)}, {vr(V_V+8*slot+4*pp,4)}, {vr(V_P+8*t_+4*pp,4)}, {cc}')
    def cv(t_, i):
        a(f'v_cvt_pk_bf16_f32 v{V_P+8*t_+i}, v{V_S+16*t_+2*i}, v{V_S+16*t_+2*i+1}')

    if QPIPE == 2:
        S_QC = S_CNT
        def qw(k):
            a(f's_cmp_gt_u32 s{S_SEEN}, s{S_QC}')
            a(f's_cbranch_scc0 KG_QS{k}')
            a.label(f'KG_QR{k}')
        def qm(b, wait=True):
            for ks in range(4):
                if wait: a(f's_waitcnt lgkmcnt({min(15, 21 - 3*ks)})')
                a(f'v_mfma_f32_32x32x16_bf16 {vr(QA,16)}, {vr(b+16+4*ks,4)}, {vr(b+4*ks,4)}, {vr(QA,16)}')
        a(f's_mov_b32 s{S_QC}, 0')
        a('s_branch KG_QS0')
        for k in range(3):
            a.label(f'KG_QS{k}')
            a(f'ds_read_b64 {vr(V_T+8,2)}, v{V_Z} offset:{4*F_CX}')
            a('s_waitcnt lgkmcnt(0)')
            a(f'v_min_u32 {t(0)}, {t(0)}, {t(1)}')
            a('s_nop 0')
            a(f'v_readfirstlane_b32 s{S_SEEN}, {t(0)}')
            a(f's_cmp_gt_u32 s{S_SEEN}, s{S_QC}')
            a(f's_cbranch_scc1 KG_QR{k}')
            a('s_sleep 1')
            a(f's_sub_u32 s{S_LIM}, s{S_LIM}, 1')
            a(f's_cbranch_scc0 KG_QS{k}')
            a(f's_mov_b32 s{S_LIM}, 0')
            a(f's_branch KG_QR{k}')
        def fread():
            a(f'ds_read_b128 {vr(V_T+8,4)}, v{V_Z} offset:{4*F_CX}')
        def qg(n_, cn, ks):
            a(f'ds_read_b128 {vr(n_+4*ks,4)}, v{V_XA+ks} offset:{cn*8192}')
            a(f'ds_read_b64_tr_b16 {vr(n_+16+4*ks,2)}, v{V_WA} offset:{cn*8192+ks*2048}')
            a(f'ds_read_b64_tr_b16 {vr(n_+16+4*ks+2,2)}, v{V_WA} offset:{cn*8192+ks*2048+512}')
        def qf(b, ks):
            a(f'v_mfma_f32_32x32x16_bf16 {vr(QA,16)}, {vr(b+16+4*ks,4)}, {vr(b+4*ks,4)}, {vr(QA,16)}')
        a.label('KG_QR0')
        fread()
        q_reads(0)
        def qstep(cn):
            b = QB[1 - cn]; n_ = QB[cn]
            a('s_waitcnt lgkmcnt(9)')
            qf(b, 0)
            a(f'v_min_u32 {t(0)}, {t(0)}, {t(1)}')
            a(f's_add_u32 s{S_QC}, s{S_QC}, 1')
            a(f'v_readfirstlane_b32 s{S_SEEN}, {t(0)}')
            if cn == 0:
                for r in [V_XA + ks for ks in range(4)] + [V_WA]:
                    a(f'v_add_u32 v{r}, 0x4000, v{r}')
            qw(1 + cn)
            fread()
            qg(n_, cn, 0)
            for ks in range(1, 4):
                a('s_waitcnt lgkmcnt(10)')
                qf(b, ks)
                qg(n_, cn, ks)
        a.label('KG_QLP')
        qstep(1)
        a(f's_cmp_eq_u32 s{S_QC}, 7')
        a('s_cbranch_scc1 KG_QX')
        qstep(0)
        a('s_branch KG_QLP')
        a.label('KG_QX')
        if E('QST', 0):
            stamp(7); a('s_waitcnt lgkmcnt(0)')
        a('s_waitcnt lgkmcnt(9)')
        qf(QB[1], 0)
        a(f'v_readfirstlane_b32 s{S_N}, {t(2)}')
        pre_check(1)
        pre_reads(0)
        for ks in range(1, 4):
            a(f's_waitcnt lgkmcnt({12 - 3*ks})')
            qf(QB[1], ks)
        progress()
        stamp(2)
    elif QPIPE:
        q_wait(0); q_reads(0)
        for c in range(8):
            if c < 7:
                q_wait(c + 1); q_reads(c + 1)
            else:
                a('s_waitcnt lgkmcnt(0)')
                progress()
                stamp(2)
                pre_check(1)
                pre_reads(0)
            b = QB[c & 1]
            for ks in range(4):
                if c < 7: a(f's_waitcnt lgkmcnt({min(15, 21 - 3*ks)})')
                cc = vr(QA, 16) if (c or ks) else '0'
                a(f'v_mfma_f32_32x32x16_bf16 {vr(QA,16)}, {vr(b+16+4*ks,4)}, {vr(b+4*ks,4)}, {cc}')
    else:
        for c in range(8):
            q_wait(c); q_reads(c)
            b = QB[c & 1]
            for ks in range(4):
                a(f's_waitcnt lgkmcnt({9 - 3*ks})')
                cc = vr(QA, 16) if (c or ks) else '0'
                a(f'v_mfma_f32_32x32x16_bf16 {vr(QA,16)}, {vr(b+16+4*ks,4)}, {vr(b+4*ks,4)}, {cc}')
        progress()
        stamp(2)

    def body(sub, peel, lds):
        def ex(t_, i):
            r = V_S + 16*t_ + i
            if sub:
                a(f'v_sub_f32 v{r}, v{r}, v{V_M+t_}')
            a(f'v_exp_f32 v{r}, v{r}')
        for b in range(8):
            for t_ in range(2):
                if peel and t_ == 0 and LST:
                    a('s_memtime s[100:101]')
                ex(t_, 0); ex(t_, 1)
                if t_ == 1:
                    mfma_pv(0, b, 1)
                elif not (peel and b == 0):
                    mfma_pv(1, (b - 1) & 7, 1)
                if peel and t_ == 0 and b < 7:
                    pre_check(b + 2)
                    pre_reads(b + 1)
                ex(t_, 2); ex(t_, 3); ex(t_, 4); ex(t_, 5)
                if t_ == 1:
                    if peel or (lds and b in (1, 7)):
                        a('s_waitcnt lgkmcnt(0)')
                    elif not lds and b & 1:
                        a('s_waitcnt vmcnt(12)')
                    if peel and LST:
                        a(f'v_writelane_b32 v{V_T+23}, s100, {8+b}')
                    mfma_s(0, (b + 1) & 7)
                    if lds and b == (6 if peel else 1):
                        progress()
                    if LST and lds and not peel and b == 1:
                        a(f'v_writelane_b32 v{V_T+23}, s100, m0')
                    if peel and b == 6:
                        pos_check()
                        pre_reads(0, 2)
                else:
                    mfma_s(1, b)
                    if peel and b == 6:
                        a(f'v_add_u32 v{V_PGV}, 1, v{V_PGV}')
                    if peel and b == 7:
                        pre_reads(2, 2)
                    if lds and not peel and b == 0:
                        pre_reads(4, 4)
                        a(f'v_add_u32 v{V_PGV}, 1, v{V_PGV}')
                    if lds and not peel and b == 4:
                        pos_check()
                        pre_reads(0, 4)
                    if not lds and b % 2 == 0:
                        kv_group(b + 6)
                ex(t_, 6); ex(t_, 7)
                cv(t_, 0); cv(t_, 1); cv(t_, 2); cv(t_, 3)
                if peel and b == 6 and t_ == 0:
                    a(f'v_add_u32 v{V_LK}, {L_WQ - L_PRE}, v{V_LK}')
                if lds and not peel and b == 3 and t_ == 0:
                    a(f'v_add_u32 v{V_LK}, 0x4000, v{V_LK}')
                    a(f's_add_u32 s{S_KB}, s{S_KB}, 1')
                    a(f'v_and_b32 v{V_LK}, 0x1ffff, v{V_LK}')
                ex(t_, 8); ex(t_, 9)
                mfma_pv(t_, b, 0, zero=(peel and b == 0))
                for i in range(10, 16):
                    ex(t_, i)
                cv(t_, 4); cv(t_, 5); cv(t_, 6); cv(t_, 7)

    def attn_pass(tag, sub, first):
        if first:
            if not QPIPE:
                pre_check(1)
                pre_reads(0)
            stamp(3)
            a('s_nop 4')
            for i in range(8):
                a(f'v_cvt_pk_bf16_f32 v{V_Q+i}, v{QA+2*i}, v{QA+2*i+1}')
            a('s_waitcnt lgkmcnt(0)')
            mfma_s(0, 0)
            a(f's_mov_b32 s{S_CNT}, 6')
            a(f's_mov_b32 s{S_KOFF}, 0')
            a(f's_mov_b32 s{S_KB}, 1')
            stamp(4)
            a('s_nop 4')
            body(False, True, True)
        else:
            a(f's_mov_b32 s{S_KOFF}, {WS_KV}')
            for c in range(0, 6, 2):
                kv_group(c)
            for i in range(32):
                a(f'v_mov_b32 v{V_O+i}, 0')
            for i in range(4):
                a(f'v_mov_b32 v{V_P+12+i}, 0')
            a('s_waitcnt vmcnt(12)')
            mfma_s(0, 0)
            a(f's_mov_b32 s{S_CNT}, 8')
            a('s_nop 10')
        a.label(f'KG_LOOP{tag}')
        if LST and first:
            a('s_memtime s[100:101]')
            a(f's_mov_b32 m0, s{S_CNT}')
        body(sub, False, first)
        a(f's_sub_u32 s{S_CNT}, s{S_CNT}, 1')
        a(f's_cmp_lg_u32 s{S_CNT}, 0')
        a(f's_cbranch_scc1 KG_LOOP{tag}')
        if first:
            last_body()
        else:
            mfma_pv(1, 7, 1)

    S_OA, S_FA, S_LOC, S_BAD = S_P, S_SEEN, S_MH, S_NH
    V_TG, V_ZR, V_PK, V_RC = V_T, V_T + 2, V_T + 4, V_T + 9
    outl = []
    def st2(ins):
        uid[0] += 1; k = uid[0]
        a(f's_cmp_eq_u32 s{S_LOC}, 1')
        a(f's_cbranch_scc0 KG_SG{k}')
        a(ins)
        a.label(f'KG_SH{k}')
        outl.append((k, ins))
    def rng(t_):
        a(f'v_cmp_le_f32 s[{S_C0}:{S_C0+1}], s{S_T0}, v{V_O+16*t_+8}')
        a(f'v_cmp_ge_f32 s[{S_C1}:{S_C1+1}], s{S_T1}, v{V_O+16*t_+8}')
        a(f'v_rcp_f32 v{V_RC}, v{V_O+16*t_+8}')
        a(f's_and_b64 s[{S_C0}:{S_C0+1}], s[{S_C0}:{S_C0+1}], s[{S_C1}:{S_C1+1}]')
        a(f's_cmp_eq_u64 s[{S_C0}:{S_C0+1}], -1')
    def o_store(t_):
        for i in range(8):
            a(f'v_mul_f32 v{V_O+16*t_+i}, v{V_RC}, v{V_O+16*t_+i}')
        for i in range(4):
            a(f'v_cvt_pk_bf16_f32 v{V_PK+i}, v{V_O+16*t_+2*i}, v{V_O+16*t_+2*i+1}')
        a(f'v_min_u32 v{V_PK+3}, -2, v{V_PK+3}')
        st2(f'buffer_store_dwordx4 {vr(V_PK,4)}, v{V_OQ}, {ws}, s{S_OA} offen offset:{1024*t_}')
    def o_flag(t_):
        a('s_mov_b64 exec, 1')
        st2(f'buffer_store_dword v{V_TG}, v{V_ZR}, {ws}, s{S_FA} offen offset:{4*t_}')
        a('s_mov_b64 exec, -1')
    def last_body():
        steps = [(0, c) for c in range(8)] + [(1, c) for c in range(8)]
        def pv(tile, buf, slot, pp):
            a(f'v_mfma_f32_32x32x16_bf16 {vr(V_O+16*tile,16)}, {vr(V_V+8*slot+4*pp,4)}, {vr(V_P+8*buf+4*pp,4)}, {vr(V_O+16*tile,16)}')
        def ex(p_, i):
            a(f'v_exp_f32 v{V_S+16*p_+i}, v{V_S+16*p_+i}')
        for n, (tile, c) in enumerate(steps):
            p_ = n & 1
            pt, pc = steps[n - 1] if n else (1, 7)
            ex(p_, 0); ex(p_, 1)
            pv(pt, 1 - p_, pc, 1)
            ex(p_, 2); ex(p_, 3); ex(p_, 4); ex(p_, 5)
            if n == 2:
                a('s_waitcnt lgkmcnt(0)')
            if n < 15:
                nt, nc = steps[n + 1]
                a(f'v_mfma_f32_32x32x16_bf16 {vr(V_S+16*(1-p_),16)}, {vr(V_K+4*nc,4)}, {vr(V_Q+4*nt,4)}, 0')
            if n == 0:
                pre_reads(4, 4)
                a(f'ds_read_b32 v{V_ZR}, v{V_Z} offset:{4*F_LOC}')
                a(f'v_add_u32 v{V_PGV}, 1, v{V_PGV}')
            if n == 2:
                progress()
                a(f'v_readfirstlane_b32 s{S_LOC}, v{V_ZR}')
                a(f'v_add_u32 v{V_PGV}, 1, v{V_PGV}')
            if n == 9:
                rng(0)
                a(f's_cselect_b32 s{S_BAD}, 0, 1')
                a('s_cbranch_scc0 KG_L9')
                o_store(0)
                a.label('KG_L9')
            if n == OF_STEP:
                a(f's_cmp_lg_u32 s{S_BAD}, 0')
                a('s_cbranch_scc1 KG_L12')
                a(f'ds_write_b32 v{V_Z}, v{V_PGV} offset:{4*F_ADONE}')
                a.label('KG_L12')
            ex(p_, 6); ex(p_, 7)
            cv(p_, 0); cv(p_, 1); cv(p_, 2); cv(p_, 3)
            ex(p_, 8); ex(p_, 9)
            pv(tile, p_, c, 0)
            for i in range(10, 16):
                ex(p_, i)
            cv(p_, 4); cv(p_, 5); cv(p_, 6); cv(p_, 7)
        a('s_nop 1')
        pv(1, 1, 7, 1)

    a(f's_lshl_b32 s{S_T2}, s{S_QG}, 1')
    a(f's_add_u32 s{S_T2}, s{S_T2}, s{S_A}')
    a(f's_lshl_b32 s{S_T3}, s{S_HG}, 1')
    a(f's_add_u32 s{S_T3}, s{S_T3}, s{S_CT}')
    a(f's_lshl_b32 s{S_T2}, s{S_T2}, 4')
    a(f's_add_u32 s{S_T2}, s{S_T2}, s{S_T3}')
    a(f's_lshl_b32 s{S_OA}, s{S_T2}, 11')
    a(f's_add_u32 s{S_OA}, s{S_OA}, {WS_O}')
    a(f's_mov_b32 s{S_T0}, {f32_bits(2.0**-30)}')
    a(f's_mov_b32 s{S_T1}, {f32_bits(2.0**30)}')
    attn_pass('A', False, True)
    stamp(5)
    a('s_nop 12')
    rng(1)
    a('s_cbranch_scc0 KG_SLOW')
    a(f's_cmp_lg_u32 s{S_BAD}, 0')
    a('s_cbranch_scc1 KG_SLOW')
    a.label('KG_OUT')
    o_store(1)
    progress()
    if ST in (5, 6, 7): a('s_waitcnt vmcnt(0)')
    stamp(6)
    dump(1)
    a('s_endpgm')
    emit_spins()

    a.label('KG_SLOW')
    lds_wait(F_N, 127, V_T + 8, sdst=S_T2)
    a('s_waitcnt vmcnt(0)')
    a(f'v_mov_b32 v{V_M}, 0xff800000')
    a(f'v_mov_b32 v{V_M+1}, 0xff800000')
    a(f's_mov_b32 s{S_KOFF}, {WS_KV}')
    a(f's_mov_b32 s{S_CNT}, 64')
    a.label('KG_MAXLOOP')
    load_k(0, 0)
    a(f's_add_u32 s{S_KOFF}, s{S_KOFF}, 2048')
    a('s_waitcnt vmcnt(0)')
    mfma_s(0, 0)
    mfma_s(1, 0)
    a('s_nop 12')
    for t_ in range(2):
        for i in range(8):
            a(f'v_max3_f32 v{V_M+t_}, v{V_S+16*t_+2*i}, v{V_S+16*t_+2*i+1}, v{V_M+t_}')
    a(f's_sub_u32 s{S_CNT}, s{S_CNT}, 1')
    a(f's_cmp_lg_u32 s{S_CNT}, 0')
    a('s_cbranch_scc1 KG_MAXLOOP')
    for t_ in range(2):
        a(f'v_mov_b32 v{V_T+4+t_}, v{V_M+t_}')
    a('s_nop 1')
    for t_ in range(2):
        a(f'v_permlane32_swap_b32 v{V_M+t_}, v{V_T+4+t_}')
    a('s_nop 1')
    for t_ in range(2):
        a(f'v_max_f32 v{V_M+t_}, v{V_M+t_}, v{V_T+4+t_}')
    attn_pass('B', True, False)
    a('s_nop 12')
    a(f'v_rcp_f32 v{V_RC}, v{V_O+8}')
    a('s_nop 0')
    o_store(0)
    a(f'ds_write_b32 v{V_Z}, v{V_PGV} offset:{4*F_ADONE}')
    a(f'v_rcp_f32 v{V_RC}, v{V_O+24}')
    a('s_nop 0')
    a('s_branch KG_OUT')
    for k, ins in outl:
        a.label(f'KG_SG{k}')
        a(ins + SC)
        a(f's_branch KG_SH{k}')

    def hsetup():
        a(f's_lshl_b32 s{S_F}, s{S_HG}, 5')
        a(f's_add_u32 s{S_F}, s{S_F}, s{S_QG}')
        srd(a, R_WS, S_WS, WS_SIZE)

    def pg_wait(val, sleep=2, vb=V_U+4):
        uid[0] += 1; k = uid[0]
        a.label(f'KG_PW{k}')
        a(f'ds_read_b128 {vr(vb,4)}, v{V_Z} offset:{4*F_PGW}')
        a('s_waitcnt lgkmcnt(0)')
        a(f'v_min3_u32 v{vb}, v{vb}, v{vb+1}, v{vb+2}')
        a(f'v_min_u32 v{vb}, v{vb}, v{vb+3}')
        a('s_nop 0')
        a(f'v_readfirstlane_b32 s{S_T0}, v{vb}')
        a(f's_cmp_ge_u32 s{S_T0}, {val}')
        a(f's_cbranch_scc1 KG_PD{k}')
        a(f's_sleep {sleep}')
        a(f's_sub_u32 s{S_LIM}, s{S_LIM}, 1')
        a(f's_cbranch_scc0 KG_PW{k}')
        a(f's_mov_b32 s{S_LIM}, 0')
        a.label(f'KG_PD{k}')
    def kv_dma(s_cls, s_lds):
        for q in range(4):
            a(f's_mov_b32 m0, s{s_lds}')
            a(f's_add_u32 s{s_lds}, s{s_lds}, 4096')
            for j in range(4):
                a(f'buffer_load_dwordx4 v{V_L16}, {ws}, s{s_cls} offen offset:{1024*j}{KVSC} lds')
            a(f's_add_u32 s{s_cls}, s{s_cls}, 4096')
    def thr():
        a(f's_waitcnt vmcnt({THR})')
    S_TGX = S_MH
    def flag_store(base, idx=None, stag=None):
        idx = f's{S_F}' if idx is None else idx
        stag = S_TAG if stag is None else stag
        a(f's_lshr_b32 s{S_T0}, {idx}, 2')
        a(f's_lshl_b32 s{S_T0}, s{S_T0}, 7')
        a(f's_and_b32 s{S_T1}, {idx}, 3')
        a(f's_lshl_b32 s{S_T1}, s{S_T1}, 2')
        a(f's_add_u32 s{S_T0}, s{S_T0}, s{S_T1}')
        a(f's_add_u32 s{S_T0}, s{S_T0}, {base}')
        a(f'v_mov_b32 {u(0)}, 0')
        a(f'v_mov_b32 {u(1)}, s{stag}')
        a('s_mov_b64 exec, 1')
        a(f'buffer_store_dword {u(1)}, {u(0)}, {ws}, s{S_T0} offen{SC}')
        a('s_mov_b64 exec, -1')
    def join_flag(cnt, n, base):
        uid[0] += 1; k = uid[0]
        a(f'v_mov_b32 {u(0)}, 1')
        a('s_waitcnt vmcnt(0)')
        a('s_mov_b64 exec, 1')
        a(f'ds_add_rtn_u32 {u(1)}, v{V_Z}, {u(0)} offset:{4*cnt}')
        a('s_mov_b64 exec, -1')
        a('s_waitcnt lgkmcnt(0)')
        a(f'v_readfirstlane_b32 s{S_T0}, {u(1)}')
        a(f's_cmp_lg_u32 s{S_T0}, {n-1}')
        a(f's_cbranch_scc1 KG_JN{k}')
        flag_store(base)
        a.label(f'KG_JN{k}')
    S_NQ, S_NEW, S_LB, S_QU, S_PUB = S_P, S_KH, S_KB, S_SEEN, S_KOFF
    def glob_poll(tag, execmask, sleep, wide=True, lsh=7):
        a(f's_mov_b32 s{S_CNT}, {POLL_LIMIT}')
        a(f'v_lshlrev_b32 {u(0)}, {lsh}, v0')
        if execmask == 0xffffffff:
            a('s_mov_b32 exec_hi, 0')
        else:
            a(f's_mov_b64 exec, {execmask}')
        a.label(f'KG_GP{tag}')
        if wide:
            a(f'buffer_load_dwordx4 {vr(V_U+4,4)}, {u(0)}, {ws}, s{S_T1} offen{SC}')
            a('s_waitcnt vmcnt(0)')
            for i in range(4):
                a(f'v_xor_b32 {u(4+i)}, s{S_TGX if tag == "KV" else S_TAG}, {u(4+i)}')
            a(f'v_or3_b32 {u(4)}, {u(4)}, {u(5)}, {u(6)}')
            a(f'v_or_b32 {u(4)}, {u(4)}, {u(7)}')
            if tag == 'KV':
                a(f'v_lshlrev_b32 {u(5)}, 4, {u(4)}')
                a(f'v_cmp_ne_u32 vcc, 0, {u(5)}')
            else:
                a(f'v_cmp_ne_u32 vcc, 0, {u(4)}')
        else:
            a(f'buffer_load_dword {u(4)}, {u(0)}, {ws}, s{S_T1} offen{SC}')
            a('s_waitcnt vmcnt(0)')
            a(f'v_cmp_ne_u32 vcc, s{S_TAG}, {u(4)}')
        a(f's_sub_u32 s{S_CNT}, s{S_CNT}, 1')
        a(f's_cbranch_scc1 KG_GD{tag}')
        if tag == 'KV':
            S_DN = S_VM
            a(f's_and_b64 s[{S_C0}:{S_C0+1}], exec, vcc')
            a(f's_or_b64 s[{S_C1}:{S_C1+1}], s[{S_C0}:{S_C0+1}], s[{S_DN}:{S_DN+1}]')
            a('s_mov_b64 exec, -1')
            for c in range(8):
                m = 0xff << (8 * (c & 3))
                a(f's_and_b32 s{S_T0}, s{S_C1+(c>>2)}, {hex(m)}')
                a(f's_cselect_b32 s{S_T0}, 0, {hex(m)}')
                a(f's_cselect_b32 s{S_T2}, 0, {1 << c}')
                a(f's_or_b32 s{S_DN+(c>>2)}, s{S_DN+(c>>2)}, s{S_T0}')
                a(f's_or_b32 s{S_NEW}, s{S_NEW}, s{S_T2}')
            a('s_cbranch_scc0 KG_QE')
            a(f's_cmp_lg_u32 s{S_NQ}, 0')
            a('s_cbranch_scc1 KG_QL')
            pg_wait(1, 1, 16)
            a.label('KG_QL')
            a(f's_ff1_i32_b32 s{S_T0}, s{S_NEW}')
            a(f's_bitset0_b32 s{S_NEW}, s{S_T0}')
            a(f's_cmp_ge_u32 s{S_NQ}, 4')
            a('s_cbranch_scc1 KG_QQ')
            a(f'v_mov_b32 {u(1)}, s{S_NQ}')
            a(f's_add_u32 s{S_NQ}, s{S_NQ}, 1')
            a(f's_lshl_b32 s{S_T0}, s{S_T0}, 14')
            a(f's_add_u32 s{S_T0}, s{S_T0}, {WS_KV}')
            kv_dma(S_T0, S_LB)
            a('s_waitcnt vmcnt(16)')
            a(f'ds_write_b32 v{V_Z}, {u(1)} offset:{4*F_POS}')
            a('s_branch KG_QN')
            a.label('KG_QQ')
            a(f's_lshl_b32 s{S_QU}, s{S_QU}, 3')
            a(f's_or_b32 s{S_QU}, s{S_QU}, s{S_T0}')
            a.label('KG_QN')
            a(f's_cmp_lg_u32 s{S_NEW}, 0')
            a('s_cbranch_scc1 KG_QL')
            a(f'v_mov_b32 {u(1)}, s{S_NQ}')
            a('s_waitcnt vmcnt(0)')
            a(f'ds_write_b32 v{V_Z}, {u(1)} offset:{4*F_POS}')
            a.label('KG_QE')
            a(f's_and_b64 exec, s[{S_C0}:{S_C0+1}], s[{S_C0}:{S_C0+1}]')
        else:
            a('s_and_b64 exec, exec, vcc')
        a(f's_cbranch_scc0 KG_GD{tag}')
        a(f's_sleep {sleep}')
        a(f's_branch KG_GP{tag}')
        a.label(f'KG_GD{tag}')
        a('s_mov_b64 exec, -1')

    a.label('KG_KV')
    stamp(9, 1)
    hsetup()
    a(f's_mov_b32 s{S_KQ}, s{S_QG}')
    a(f'v_bfe_u32 {u(1)}, v0, 2, 2')
    a(f'v_and_b32 {u(2)}, 3, v0')
    a(f'v_lshl_add_u32 {u(1)}, v{V_G}, 3, {u(1)}')
    a(f'v_lshlrev_b32 {u(1)}, 5, {u(1)}')
    a(f'v_lshl_add_u32 {u(1)}, {u(2)}, 3, {u(1)}')
    a(f'v_add_u32 v{V_A2}, {L_KW}, {u(1)}')
    a(f's_lshl_b32 s{S_T2}, s{S_QG}, 12')
    a(f's_lshr_b32 s{S_T0}, s{S_RB}, 1')
    a(f's_lshl_b32 s{S_T0}, s{S_T0}, 11')
    a(f's_add_u32 s{S_T2}, s{S_T2}, s{S_T0}')
    a(f's_and_b32 s{S_T0}, s{S_RB}, 1')
    a(f's_lshl_b32 s{S_T0}, s{S_T0}, 8')
    a(f's_add_u32 s{S_T2}, s{S_T2}, s{S_T0}')
    a(f's_lshl_b32 s{S_T0}, s{S_TY}, 10')
    a(f's_add_u32 s{S_T2}, s{S_T2}, s{S_T0}')
    a(f's_lshl_b32 s{S_T3}, s{S_T2}, 1')
    a(f's_add_u32 s{S_T2}, s{S_T2}, {WS_KV}')
    assert WS_KVT == 0
    a(f's_lshl_b32 s{S_KOFF}, s{S_QG}, 3')
    a(f's_add_u32 s{S_KOFF}, s{S_KOFF}, s{S_HG}')
    lds_wait(F_TAGOK, 1, V_U)
    get_tag(V_U)
    a(f'v_and_b32 {u(2)}, 1, v{V_G}')
    a(f'v_lshrrev_b32 {u(3)}, 1, v{V_G}')
    a(f'v_lshlrev_b32 {u(4)}, 9, {u(2)}')
    a(f'v_lshl_add_u32 {u(4)}, v{V_I}, 4, {u(4)}')
    a(f'v_lshl_add_u32 {u(4)}, {u(3)}, 3, {u(4)}')
    a(f'v_lshlrev_b32 {u(6)}, 1, {u(4)}')
    a(f'v_mov_b32 v{KA+10}, s{S_TAG}')
    a(f'v_mov_b32 v{KA+11}, s{S_TAG}')
    a(f'v_mov_b32 v{KA+12}, 1')
    a(f's_getreg_b32 s{S_T0}, hwreg(HW_REG_XCC_ID, 0, 4)')
    a(f's_lshl_b32 s{S_T0}, s{S_T0}, 28')
    a(f's_xor_b32 s{S_TGX}, s{S_TAG}, s{S_T0}')
    a(f's_mov_b32 s{S_T1}, {f32_bits(QSCALE)}')
    a(f'v_lshrrev_b32 {u(2)}, 1, v{V_I}')
    a(f'v_xor_b32 {u(2)}, v{V_G}, {u(2)}')
    a(f'v_lshlrev_b32 {u(2)}, 4, {u(2)}')
    a(f'v_lshl_add_u32 {u(2)}, v{V_I}, 7, {u(2)}')
    a(f's_lshl_b32 s{S_T0}, s{S_RB}, 11')
    a(f'v_add_u32 {u(2)}, s{S_T0}, {u(2)}')
    a(f'v_xor_b32 {u(3)}, 64, {u(2)}')
    a(f's_waitcnt vmcnt({16 + (4 if TOUCH else 1)})')
    a(f'ds_write_b32 v{V_Z}, v{KA+12} offset:{4*F_KX}')
    for ks in range(16):
        a(f'ds_read_b128 {vr(KX+4*ks,4)}, {u(2+(ks&1))} offset:{(ks>>1)*8192}')
    a(f's_waitcnt vmcnt({4 if TOUCH else 1}) lgkmcnt(0)')
    stamp(2)
    def kv_reads(ks):
        a(f'ds_read_b64_tr_b16 {vr(KW+4*ks,2)}, v{V_A2} offset:{ks*1024}')
        a(f'ds_read_b64_tr_b16 {vr(KW+4*ks+2,2)}, v{V_A2} offset:{ks*1024+128}')
    for ks in range(7):
        kv_reads(ks)
    a(f's_cmp_eq_u32 s{S_TY}, 1')
    a('s_cbranch_scc1 KG_KV1')
    for ty in range(2):
        if ty == 1:
            a.label('KG_KV1')
        for ks in range(16):
            n_out = min(6, 15 - ks)
            a(f's_waitcnt lgkmcnt({2*n_out})')
            cc = vr(KA + 4*(ks & 1), 4) if ks >= 2 else '0'
            if ty == 0:
                a(f'v_mfma_f32_16x16x32_bf16 {vr(KA+4*(ks&1),4)}, {vr(KW+4*ks,4)}, {vr(KX+4*ks,4)}, {cc}')
            else:
                a(f'v_mfma_f32_16x16x32_bf16 {vr(KA+4*(ks&1),4)}, {vr(KX+4*ks,4)}, {vr(KW+4*ks,4)}, {cc}')
            if ks + 7 < 16:
                kv_reads(ks + 7)
        a('s_nop 7')
        for i in range(4):
            a(f'v_add_f32 v{KA+i}, v{KA+i}, v{KA+4+i}')
        if ty == 0:
            for i in range(4):
                a(f'v_mul_f32 v{KA+i}, s{S_T1}, v{KA+i}')
        a(f'v_cvt_pk_bf16_f32 v{KA+8}, v{KA}, v{KA+1}')
        a(f'v_cvt_pk_bf16_f32 v{KA+9}, v{KA+2}, v{KA+3}')
        a(f'buffer_store_dwordx4 {vr(KA+8,4)}, {u(6)}, {ws}, s{S_T3} offen{SC}')
        a(f'buffer_store_dwordx2 {vr(KA+8,2)}, {u(4)}, {ws}, s{S_T2} offen{SC}')
        a(f'ds_write_b32 v{V_Z}, v{KA+12} offset:{4*F_KVS}')
        stamp(1)
        a('s_waitcnt vmcnt(0)')
        flag_store(WS_FL1, f's{S_KOFF}', S_TGX)
        stamp(3)
        if ty == 1:
            a('s_branch KG_KP')
        else:
            a(f'v_lshlrev_b32 {u(2)}, 4, v{V_G}')
            a(f'v_add_u32 {u(2)}, {L_GATE}, {u(2)}')
            for half in range(2):
                for k8 in range(8):
                    ks = 8*half + k8
                    a(f'ds_read_b128 {vr(KW+4*ks,4)}, {u(2)} offset:{64*ks}')
                for k8 in range(8):
                    ks = 8*half + k8
                    a(f's_waitcnt lgkmcnt({7-k8})')
                    cc = vr(KA, 4) if ks else '0'
                    a(f'v_mfma_f32_16x16x32_bf16 {vr(KA,4)}, {vr(KW+4*ks,4)}, {vr(KX+4*ks,4)}, {cc}')
            a(f's_lshl_b32 s{S_T0}, s{S_KQ}, 8')
            a(f's_lshl_b32 s{S_T1}, s{S_RB}, 6')
            a(f's_add_u32 s{S_T0}, s{S_T0}, s{S_T1}')
            a(f's_add_u32 s{S_T1}, s{S_T0}, {WS_G}')
            a(f'v_lshlrev_b32 {u(2)}, 2, v{V_I}')
            a('s_nop 6')
            a(f'v_cvt_pk_bf16_f32 {u(3)}, v{KA}, v{KA}')
            a(f'v_lshlrev_b32 {u(3)}, 16, {u(3)}')
            a(f's_mov_b32 s{S_T0}, {f32_bits(-math.log2(math.e))}')
            a(f'v_mul_f32 {u(3)}, s{S_T0}, {u(3)}')
            a(f'v_exp_f32 {u(3)}, {u(3)}')
            a('s_nop 0')
            a(f'v_add_f32 {u(3)}, 1.0, {u(3)}')
            a(f'v_rcp_f32 {u(3)}, {u(3)}')
            a('s_nop 0')
            a(f'v_cvt_pk_bf16_f32 {u(3)}, {u(3)}, {u(3)}')
            a(f'v_lshlrev_b32 {u(3)}, 16, {u(3)}')
            a('s_mov_b64 exec, 0xffff')
            a(f'buffer_store_dword {u(3)}, {u(2)}, {ws}, s{S_T1} offen{SC}')
            a('s_mov_b64 exec, -1')
            a('s_branch KG_KP')

    a.label('KG_TAG')
    stamp(9, 1)
    hsetup()
    a('s_waitcnt vmcnt(0)')
    a(f'v_readfirstlane_b32 s{S_TAG}, {u(3)}')
    a(f's_mul_i32 s{S_TAG}, s{S_TAG}, {TAG_M}')
    a(f's_add_u32 s{S_TAG}, s{S_TAG}, {TAG_C}')
    a(f'v_mov_b32 {u(1)}, 1')
    a(f'v_mov_b32 {u(3)}, s{S_TAG}')
    a(f'ds_write_b32 v{V_Z}, {u(3)} offset:{4*F_TAG}')
    a(f'ds_write_b32 v{V_Z}, {u(1)} offset:{4*F_TAGOK}')
    stamp(2)
    GR = 16
    V_GW, V_QW = V_A1, V_A2
    S_PEND, S_GB, S_DN = S_P, S_KH, S_VM
    a(f's_and_b32 s{S_T0}, s2, 7')
    a(f's_lshl_b32 s{S_GB}, s{S_T0}, 15')
    a(f's_movk_i32 s{S_PEND}, 0x1ff')
    a(f'v_lshlrev_b32 v{V_GW}, 3, v0')
    a(f'v_add_u32 v{V_GW}, {L_PRE}, v{V_GW}')
    lds_wait(F_KVS, 1, V_U + 4, sleep=1)
    if G_DELAY:
        a(f's_sleep {G_DELAY}')
    def g_loads(c, sc=SC):
        a(f's_add_u32 s{S_T0}, s{S_GB}, {c*4096}')
        for j in range(4):
            a(f'buffer_load_dwordx4 {vr(GR+16*c+4*j,4)}, v{V_L16}, {ws}, s{S_T0} offen offset:{1024*j}{sc}')
    def g_check(c, k):
        for j in range(4):
            a(f'v_cmpx_eq_u32 vcc, s{S_TAG}, v{GR+16*c+4*j+2}')
        a('s_cmp_eq_u64 exec, -1')
        a('s_mov_b64 exec, -1')
        a(f's_cbranch_scc0 KG_GF{k}_{c}')
        for j in range(4):
            a(f'ds_write_b64 v{V_GW}, {vr(GR+16*c+4*j,2)} offset:{512*j}')
        a(f'v_add_u32 {u(6)}, 1, {u(6)}')
        a(f's_bitset0_b32 s{S_PEND}, {c}')
        a(f'v_add_u32 v{V_GW}, 0x800, v{V_GW}')
        a(f'ds_write_b32 v{V_Z}, {u(6)} offset:{4*F_PRE}')
        a.label(f'KG_GF{k}_{c}')
    def g_round(c0, c1, gi):
        for c in range(c0, c1):
            g_loads(c)
        if gi:
            a(f'ds_write_b32 v{V_Z}, {u(1)} offset:{4*F_GI}')
            stamp(1)
        for c in range(c0, c1):
            a(f's_waitcnt vmcnt({4*(c1-1-c)})')
            g_check(c, 0)
    S_AL = S_KB
    a(f'v_mov_b32 {u(6)}, 0')
    g_round(0, G_EARLY, G_EARLY == 8)
    stamp(5)
    a(f's_movk_i32 s{S_AL}, {(1 << G_EARLY) - 1}')
    a(f's_mov_b32 s{S_CNT}, {POLL_LIMIT}')
    a.label('KG_GR')
    a(f's_sub_u32 s{S_CNT}, s{S_CNT}, 1')
    a('s_cbranch_scc1 KG_GE')
    a(f's_cmp_eq_u32 s{S_PEND}, 0x100')
    a('s_cbranch_scc1 KG_GE')
    if G_EARLY < 8:
        a(f's_cmp_eq_u32 s{S_AL}, 0xff')
        a('s_cbranch_scc1 KG_GA')
        a(f'ds_read_b64 {vr(V_U+4,2)}, v{V_Z} offset:{4*F_CX}')
        a('s_waitcnt lgkmcnt(0)')
        a(f'v_min_u32 {u(4)}, {u(4)}, {u(5)}')
        a('s_nop 0')
        a(f'v_readfirstlane_b32 s{S_T0}, {u(4)}')
        a(f's_cmp_lt_u32 s{S_T0}, {G_TRIG}')
        a('s_cbranch_scc1 KG_GA')
        a(f's_movk_i32 s{S_AL}, 0xff')
        g_round(G_EARLY, 8, True)
        a('s_branch KG_GR')
        a.label('KG_GA')
    a(f's_and_b32 s{S_T2}, s{S_PEND}, s{S_AL}')
    a('s_cbranch_scc1 KG_GB')
    a('s_sleep 1')
    a('s_branch KG_GR')
    a.label('KG_GB')
    for c in range(8):
        a(f's_bitcmp1_b32 s{S_T2}, {c}')
        a(f's_cbranch_scc0 KG_GL{c}')
        g_loads(c)
        a.label(f'KG_GL{c}')
    a('s_waitcnt vmcnt(0)')
    for c in range(8):
        a(f's_bitcmp1_b32 s{S_T2}, {c}')
        a(f's_cbranch_scc0 KG_GF1_{c}')
        g_check(c, 1)
    a('s_branch KG_GR')
    a.label('KG_GE')
    stamp(6)
    a('s_branch KG_WT')
    a.label('KG_KP')
    a(f's_and_b32 s{S_T0}, s2, 7')
    a(f's_lshl_b32 s{S_T0}, s{S_T0}, 3')
    a(f's_mov_b64 s[{S_DN}:{S_DN+1}], 0xff')
    a(f's_lshl_b64 s[{S_DN}:{S_DN+1}], s[{S_DN}:{S_DN+1}], s{S_T0}')
    a(f's_mov_b32 s{S_NQ}, 0')
    a(f's_mov_b32 s{S_QU}, 0')
    a(f's_mov_b32 s{S_NEW}, 0')
    a(f's_mov_b32 s{S_LB}, {L_WQ}')
    if not EPOLL: pg_wait(1)
    elif EPOLL > 1:
        lds_wait(F_CW, EPOLL, V_U, sleep=2)
        lds_wait(F_CX, EPOLL, V_U, sleep=2)
    a(f's_mov_b32 s{S_T1}, {WS_FL1}')
    if KP_DELAY:
        a(f's_sleep {KP_DELAY}')
    glob_poll('KV', -1, KV_SLEEP)
    a(f'v_mov_b32 {u(1)}, 127')
    a(f'ds_write_b32 v{V_Z}, {u(1)} offset:{4*F_N}')
    stamp(5)
    a(f's_lshl_b32 s{S_T0}, s{S_QG}, 1')
    a(f's_add_u32 s{S_T1}, s{S_T0}, 1')
    a(f'v_readlane_b32 s{S_T0}, {u(4)}, s{S_T0}')
    a(f'v_readlane_b32 s{S_T1}, {u(4)}, s{S_T1}')
    a('s_nop 1')
    a(f's_or_b32 s{S_T0}, s{S_T0}, s{S_T1}')
    a(f's_cmp_eq_u32 s{S_T0}, 0')
    a(f's_cselect_b32 s{S_T0}, {2 if FORCE_GL else 1}, 2')
    a(f'v_mov_b32 {u(4)}, s{S_T0}')
    a(f'ds_write_b32 v{V_Z}, {u(4)} offset:{4*F_LOC}')
    for i in range(4):
        a(f'v_mov_b32 {u(4+i)}, -1')
    a(f's_lshl_b32 s{S_T1}, s{S_QG}, 16')
    a(f's_lshl_b32 s{S_T2}, s{S_HG}, 12')
    a(f's_add_u32 s{S_T1}, s{S_T1}, s{S_T2}')
    a(f's_add_u32 s{S_T1}, s{S_T1}, {WS_O}')
    a(f's_add_u32 s{S_T2}, s{S_T1}, 32768')
    a(f's_cmp_eq_u32 s{S_T0}, 1')
    a('s_cbranch_scc1 KG_SE1')
    for sc_ in (SC, ''):
        for k in range(8):
            a(f'buffer_store_dwordx4 {vr(V_U+4,4)}, v{V_L16}, {ws}, s{S_T1+(k>>2)} offen offset:{1024*(k&3)}{sc_}')
        if sc_:
            a('s_branch KG_SE2')
            a.label('KG_SE1')
    a.label('KG_SE2')
    a('s_cmp_lg_u32 s2, 0')
    a('s_cbranch_scc1 KG_H3')
    a(f's_mov_b32 s{S_T3}, {WS_ROOT}')
    a(f'v_mov_b32 {u(2)}, 0')
    a(f'v_mov_b32 {u(3)}, s{S_TAG}')
    a('s_mov_b64 exec, 1')
    a(f'buffer_store_dword {u(3)}, {u(2)}, {ws}, s{S_T3} offen{SC}')
    a('s_mov_b64 exec, -1')
    a('s_branch KG_H3')

    a.label('KG_WT')
    if WT_LAG == 127:
        lds_wait(F_N, 127, V_U, sleep=2)
    elif WT_LAG == 100:
        lds_wait(F_POS, 1, V_U, sleep=2)
    elif WT_LAG:
        lds_wait(F_PRE, WT_LAG, V_U, sleep=2)
    S_FW, S_G4, S_PT = S_P, S_KH, S_KB
    a(f's_lshr_b32 s{S_FW}, s{S_QG}, 3')
    a(f's_bfe_u32 s{S_G4}, s{S_QG}, 0x20001')
    a(f's_and_b32 s{S_PT}, s{S_QG}, 1')
    a(f's_cmp_eq_u32 s{S_PT}, 1')
    a(f's_cselect_b64 s[{S_C0}:{S_C0+1}], s[{S_WI}:{S_WI+1}], s[{S_WR}:{S_WR+1}]')
    srd(a, R_A, S_C0, 2048 * 514)
    a(f's_lshl_b32 s{S_T3}, s{S_FW}, 4')
    a(f's_lshl_b32 s{S_T1}, s{S_G4}, 8')
    a(f's_add_u32 s{S_T1}, s{S_T1}, s{S_T3}')
    a(f'v_add_u32 {u(2)}, s{S_T1}, v{V_I}')
    a(f'v_mul_u32_u24 {u(2)}, 514, {u(2)}')
    a(f'v_lshl_add_u32 {u(2)}, v{V_G}, 4, {u(2)}')
    a(f's_lshl_b32 s{S_T1}, s{S_HG}, 6')
    a(f'v_add_u32 {u(2)}, s{S_T1}, {u(2)}')
    a(f'v_and_b32 {u(4)}, 2, {u(2)}')
    a(f'v_and_b32 {u(2)}, -4, {u(2)}')
    for e in range(8):
        a(f's_mov_b32 s{S_T0}, {(16*(e>>2)+(e&3))*32896}')
        a(f'buffer_load_dwordx4 {vr(16+4*e,4)}, {u(2)}, {ra}, s{S_T0} offen')
        a(f'buffer_load_dword v{96+e}, {u(2)}, {ra}, s{S_T0} offen offset:16')
    a(f's_or_b32 s{S_KOFF}, s{S_HG}, s{S_G4}')
    a(f's_cmp_lg_u32 s{S_KOFF}, 0')
    a('s_cbranch_scc1 KG_WT1')
    a(f'v_lshl_add_u32 {u(3)}, v{V_G}, 8, v{V_I}')
    a(f'v_add_u32 {u(3)}, s{S_T3}, {u(3)}')
    a(f'v_mul_u32_u24 {u(3)}, 514, {u(3)}')
    for e in range(8):
        a(f's_mov_b32 s{S_T0}, {(16*(e>>2)+(e&3))*32896}')
        a(f'buffer_load_ushort v{80+e}, {u(3)}, {ra}, s{S_T0} offen offset:512')
    a.label('KG_WT1')
    a(f's_mov_b32 s{S_C0}, 0x05040100')
    a(f's_mov_b32 s{S_C0+1}, 0x07060302')
    a(f'v_lshlrev_b32 {u(2)}, 16, v{V_G}')
    a(f'v_lshl_add_u32 {u(2)}, v{V_I}, 4, {u(2)}')
    a(f's_lshl_b32 s{S_T1}, s{S_HG}, 18')
    a(f's_lshl_b32 s{S_T2}, s{S_FW}, 11')
    a(f's_lshl_b32 s{S_T0}, s{S_PT}, 10')
    a(f's_add_u32 s{S_T2}, s{S_T2}, s{S_T0}')
    a(f's_add_u32 s{S_T2}, s{S_T2}, {WS_WT}')
    a(f's_add_u32 s{S_T1}, s{S_T1}, s{S_T2}')
    a(f's_lshl_b32 s{S_T0}, s{S_G4}, 8')
    a(f's_add_u32 s{S_T1}, s{S_T1}, s{S_T0}')
    a('s_waitcnt vmcnt(0)')
    stamp(3)
    for e in range(8):
        for j in range(4):
            hi = 16 + 4*e + j + 1 if j < 3 else 96 + e
            a(f'v_alignbyte_b32 v{16+4*e+j}, v{hi}, v{16+4*e+j}, {u(4)}')
    for ph in range(8):
        for q in range(4):
            lo = 16 + 4*(2*q) + (ph >> 1); hi = 16 + 4*(2*q+1) + (ph >> 1)
            a(f'v_perm_b32 v{48+4*ph+q}, v{hi}, v{lo}, s{S_C0+(ph&1)}')
    for ph in range(8):
        a(f's_add_u32 s{S_T0}, s{S_T1}, {8192*ph}')
        if not E('WT_NOST', 0): a(f'buffer_store_dwordx4 {vr(48+4*ph,4)}, {u(2)}, {ws}, s{S_T0} offen{SC}')
    a(f's_cmp_lg_u32 s{S_KOFF}, 0')
    a('s_cbranch_scc1 KG_J1')
    for q in range(4):
        a(f'v_lshl_or_b32 v{88+q}, v{81+2*q}, 16, v{80+2*q}')
    a(f's_add_u32 s{S_T0}, s{S_T2}, {256*8192}')
    a(f'buffer_store_dwordx4 {vr(88,4)}, v{V_L16}, {ws}, s{S_T0} offen{SC}')
    a('s_branch KG_J1')

    HT, HX, HA = 16, 64, 128
    a.label('KG_H2B')
    stamp(2)
    hsetup()
    table_srd(a, R_TB, 'TAB_F', 512 * 1024, 'f')
    a(f's_and_b32 s{S_CT}, s{S_HW}, 1')
    a(f's_lshl_b32 s{S_T2}, s{S_HG}, 16')
    a(f's_lshl_b32 s{S_T0}, s{S_CT}, 10')
    a(f's_add_u32 s{S_T2}, s{S_T2}, s{S_T0}')
    if TF_LAG == 1:
        lds_wait(F_GI, 1, V_U, sleep=2)
    elif TF_LAG == 100:
        lds_wait(F_POS, 1, V_U, sleep=2)
    elif TF_LAG:
        lds_wait(F_PRE, TF_LAG, V_U, sleep=2)
    def tload(i):
        if i % 2 == 0:
            a(f's_add_u32 s{S_T3}, s{S_T2}, {i*2048}')
        a(f'buffer_load_dwordx4 {vr(HT+4*(i%12),4)}, v{V_L16}, {tb}, s{S_T3} offen offset:{(i%2)*2048}')
    PD = H2_PD
    assert PD <= 12
    for i in range(PD):
        tload(i)
    a(f'v_and_b32 {u(4)}, 31, v0')
    a(f'v_lshrrev_b32 {u(5)}, 5, v0')
    a(f'v_bfe_u32 {u(6)}, v0, 1, 3')
    a(f'v_lshlrev_b32 {u(7)}, 7, {u(4)}')
    for ks in range(4):
        a(f'v_add_u32 v{HA+ks}, {2*ks}, {u(5)}')
        a(f'v_xor_b32 v{HA+ks}, v{HA+ks}, {u(6)}')
        a(f'v_lshl_add_u32 {u(ks)}, v{HA+ks}, 4, {u(7)}')
    a(f'v_lshlrev_b32 v{V_A1}, 12, {u(4)}')
    a(f'v_lshl_add_u32 v{V_A1}, {u(5)}, 5, v{V_A1}')
    stamp(5)
    lds_wait(F_CX, 8, V_U + 4, sleep=2)
    def xreads(c):
        for ks in range(4):
            for aa in range(2):
                a(f'ds_read_b128 {vr(HX+32*(c&1)+16*aa+4*ks,4)}, {u(ks)} offset:{c*8192+4096*aa}')
    if PRI & 1: a('s_setprio 0')
    xreads(0)
    for c in range(8):
        if c < 7:
            xreads(c + 1)
        for ks in range(4):
            i = 4*c + ks
            a(f's_waitcnt vmcnt({min(PD-1, 31-i)}) lgkmcnt({2*(3-ks) + (8 if c < 7 else 0)})')
            for aa in range(2):
                cc = vr(HA + 16*aa, 16) if i else '0'
                a(f'v_mfma_f32_32x32x16_bf16 {vr(HA+16*aa,16)}, {vr(HX+32*(c&1)+16*aa+4*ks,4)}, {vr(HT+4*(i%12),4)}, {cc}')
            if i + PD < 32: tload(i + PD)
    if PRI & 1: a('s_setprio 2')
    lds_add(F_H2, V_U)
    a(f's_lshl_b32 s{S_T0}, s{S_HG}, 18')
    a(f's_lshl_b32 s{S_T1}, s{S_CT}, 17')
    a(f's_add_u32 s{S_T0}, s{S_T0}, s{S_T1}')
    a(f's_lshl_b32 s{S_T1}, s{S_QG}, 7')
    a(f's_add_u32 s{S_T0}, s{S_T0}, s{S_T1}')
    a(f's_add_u32 s{S_T2}, s{S_T0}, {WS_X1T}')
    lds_wait(F_TAGOK, 1, V_U)
    get_tag(V_U)
    a('s_nop 4')
    for i in range(16):
        a(f'v_cvt_pk_bf16_f32 v{HX+i}, v{HA+2*i}, v{HA+2*i+1}')
    for aa in range(2):
        for q in range(2):
            a(f'buffer_store_dwordx4 {vr(HX+8*aa+4*q,4)}, v{V_A1}, {ws}, s{S_T2} offen offset:{64*aa+16*q}{SC}')
    a.label('KG_J1')
    join_flag(F_J1, 3, WS_FL2)
    stamp(6)
    a.label('KG_H3')
    if E('NOHELP', 0) == 1:
        lds_add(F_J2, V_U)
        dump()
        a('s_endpgm')

    V_T1 = 16
    V_T2 = 64
    V_D = 88
    V_TW = 104
    V_XX = 120
    V_W = 136
    V_AC = 152
    S_FW = S_HW
    table_srd(a, R_TB, 'TAB_K2', 24576 + 6144 + 32768, 'k2')
    O_T1, O_T2, O_TW1, O_TW2 = 0, 24576, 30720, 30720 + 16384
    a(f's_lshr_b32 s{S_MH}, s{S_FW}, 1')
    a(f's_and_b32 s{S_NH}, s{S_FW}, 1')
    a(f's_mul_i32 s{S_T0}, s{S_MH}, 12288')
    for i in range(12):
        if i % 4 == 0 and i:
            a(f's_add_u32 s{S_T0}, s{S_T0}, 4096')
        a(f'buffer_load_dwordx4 {vr(V_T1+4*i,4)}, v{V_L16}, {tb}, s{S_T0} offen offset:{(i%4)*1024}')
        thr()
    a(f's_lshl_b32 s{S_T2}, s{S_FW}, 12')
    a(f's_add_u32 s{S_T0}, s{S_T2}, {O_TW1}')
    for i in range(4):
        a(f'buffer_load_dwordx4 {vr(V_TW+4*i,4)}, v{V_L16}, {tb}, s{S_T0} offen offset:{i*1024}')
        thr()
    a(f's_mov_b32 s{S_T0}, {O_T2}')
    a(f's_mov_b32 s{S_T1}, {O_T2+4096}')
    for i in range(6):
        a(f'buffer_load_dwordx4 {vr(V_T2+4*i,4)}, v{V_L16}, {tb}, s{S_T0+(i>>2)} offen offset:{(i%4)*1024}')
        thr()
    a(f's_lshl_b32 s{S_T0}, s{S_FW}, 4')
    a(f'v_lshl_add_u32 v{V_A3}, v{V_G}, 8, v{V_I}')
    a(f'v_add_u32 v{V_A3}, s{S_T0}, v{V_A3}')
    a(f's_cmp_eq_u32 s{S_F}, 0')
    a('s_cbranch_scc1 KG_SPA')
    a.label('KG_SPAR')
    if T2:
        a(f's_cmp_lt_u32 s{S_HW}, 2')
        a('s_cbranch_scc1 KG_T2E')
        table_srd(a, R_A, 'TAB_FINV', 512 * 1024, 't2')
        a(f's_cmp_eq_u32 s{S_HW}, 3')
        a(f's_cselect_b64 s[{R_A}:{R_A+1}], s[{S_WO}:{S_WO+1}], s[{R_A}:{R_A+1}]')
        a(f's_lshr_b32 s{S_T0}, s2, 3')
        a(f's_lshl_b32 s{S_T0}, s{S_T0}, 14')
        a(f's_add_u32 s{S_T1}, s{S_T0}, 8192')
        a(f'v_lshlrev_b32 {u(0)}, 7, v0')
        a(f'buffer_load_dword v254, {u(0)}, {ra}, s{S_T0} offen')
        a(f'buffer_load_dword v255, {u(0)}, {ra}, s{S_T1} offen')
        a.label('KG_T2E')
    a(f's_cmp_lg_u32 s{S_HW}, 0')
    a('s_cbranch_scc1 KG_PCE')
    lds_wait(F_H2, 2, V_U, sleep=4)
    a(f's_mov_b32 s{S_LB}, {L_X}')
    for k in range(3):
        a(f's_bfe_u32 s{S_T0}, s{S_QU}, {hex(0x30000 + 3*(2-k))}')
        a(f's_lshl_b32 s{S_T0}, s{S_T0}, 14')
        a(f's_add_u32 s{S_T0}, s{S_T0}, {WS_KV}')
        kv_dma(S_T0, S_LB)
    a(f'v_mov_b32 {u(1)}, 8')
    a('s_waitcnt vmcnt(0)')
    a(f'ds_write_b32 v{V_Z}, {u(1)} offset:{4*F_POS}')
    stamp(6)
    a.label('KG_PCE')
    a(f's_cmp_lg_u32 s{S_HW}, 1')
    a('s_cbranch_scc1 KG_S1W')
    a(f's_lshl_b32 s{S_T1}, s{S_HG}, 10')
    a(f's_add_u32 s{S_T1}, s{S_T1}, {WS_FL2}')
    glob_poll('S1', 0xff, S1_SLEEP)
    a(f'v_mov_b32 {u(1)}, 1')
    a(f'ds_write_b32 v{V_Z}, {u(1)} offset:{4*F_S1OK}')
    a.label('KG_S1W')
    pg_wait(3)
    lds_wait(F_S1OK, 1, V_U, sleep=4)
    stamp(7)
    a(f'v_lshlrev_b32 v{V_A1}, 7, v{V_I}')
    a(f'v_lshl_add_u32 v{V_A1}, v{V_G}, 4, v{V_A1}')
    a(f's_lshl_b32 s{S_T0}, s{S_F}, 13')
    a(f's_lshl_b32 s{S_T1}, s{S_NH}, 11')
    a(f's_add_u32 s{S_T0}, s{S_T0}, s{S_T1}')
    a(f's_add_u32 s{S_T0}, s{S_T0}, {WS_X1T}')
    a(f's_add_u32 s{S_T1}, s{S_T0}, 4096')
    for part in range(2):
        for ks in range(2):
            a(f'buffer_load_dwordx4 {vr(V_D+8*part+4*ks,4)}, v{V_A1}, {ws}, s{S_T0+part} offen offset:{64*ks}{SC}')
    a(f's_lshl_b32 s{S_T0}, s{S_F}, 13')
    a(f's_lshl_b32 s{S_T1}, s{S_FW}, 11')
    a(f's_add_u32 s{S_T1}, s{S_T1}, {WS_WT}')
    a(f's_add_u32 s{S_T0}, s{S_T0}, s{S_T1}')
    a(f's_cmp_lg_u32 s{S_F}, 0')
    a('s_cbranch_scc1 KG_NXX')
    a(f's_add_u32 s{S_T1}, s{S_T1}, {256*8192}')
    for part in range(2):
        a(f'buffer_load_dwordx4 {vr(V_XX+8*part+4,4)}, v{V_L16}, {ws}, s{S_T1} offen offset:{1024*part}{SC}')
    a.label('KG_NXX')
    for part in range(2):
        a(f'buffer_load_dwordx4 {vr(V_W+8*part+4,4)}, v{V_L16}, {ws}, s{S_T0} offen offset:{1024*part}{SC}')

    def mf(d, x, y, c):
        cc = vr(d, 4) if c else '0'
        a(f'v_mfma_f32_16x16x32_bf16 {vr(d,4)}, {vr(x,4)}, {vr(y,4)}, {cc}')
    def t1(nt, ks, v): return V_T1 + 4 * ((nt * 2 + ks) * 3 + v)
    def t2(mt, v): return V_T2 + 4 * (mt * 3 + v)
    def cmul_pack(dst):
        for t_ in range(2):
            for r in range(4):
                ar, ai = V_AC + 8*t_ + r, V_AC + 8*t_ + 4 + r
                c_, s_ = V_TW + 8*t_ + r, V_TW + 8*t_ + 4 + r
                uu = V_U + (r & 1) * 2
                a(f'v_mul_f32 v{uu}, v{ar}, v{c_}')
                a(f'v_mul_f32 v{uu+1}, v{ar}, v{s_}')
                a(f'v_fma_f32 v{ar}, -v{ai}, v{s_}, v{uu}')
                a(f'v_fma_f32 v{ai}, v{ai}, v{c_}, v{uu+1}')
        for i in range(8):
            a(f'v_cvt_pk_bf16_f32 v{dst+i}, v{V_AC+2*i}, v{V_AC+2*i+1}')
    def sync(flag):
        a('s_waitcnt lgkmcnt(0)')
        lds_add(flag, V_U)
        lds_wait(flag, 4, V_U, sleep=2)

    def lo():
        if PRI & 4: a('s_setprio 0')
    def hi():
        if PRI & 4: a('s_setprio 2')
    lo()
    a('s_waitcnt vmcnt(2)')
    zr = lambda ks: V_D + 4*ks
    zi = lambda ks: V_D + 8 + 4*ks
    for ks in range(2):
        for nt in range(2):
            mf(V_AC + 8*nt, zr(ks), t1(nt, ks, 0), ks)
            mf(V_AC + 8*nt + 4, zi(ks), t1(nt, ks, 0), ks)
        for nt in range(2):
            mf(V_AC + 8*nt, zi(ks), t1(nt, ks, 2), 1)
            mf(V_AC + 8*nt + 4, zr(ks), t1(nt, ks, 1), 1)
    hi()
    a(f's_cmp_eq_u32 s{S_F}, 0')
    a('s_cbranch_scc1 KG_SPB')
    a.label('KG_SPBR')
    a(f's_mul_i32 s{S_T0}, s{S_MH}, 2560')
    a(f's_lshl_b32 s{S_T1}, s{S_NH}, 3')
    a(f's_add_u32 s{S_T0}, s{S_T0}, s{S_T1}')
    a(f'v_mul_u32_u24 v{V_A1}, 80, v{V_I}')
    a(f'v_lshl_add_u32 v{V_A1}, v{V_G}, 4, v{V_A1}')
    a(f'v_add_u32 v{V_A1}, {L_APR}, v{V_A1}')
    a(f'v_add_u32 {u(4)}, s{S_T0}, v{V_A1}')
    a('s_nop 4')
    cmul_pack(V_D)
    for nt in range(2):
        a(f'ds_write_b64 {u(4)}, {vr(V_D+4*nt,2)} offset:{1280*nt}')
        a(f'ds_write_b64 {u(4)}, {vr(V_D+4*nt+2,2)} offset:{L_API-L_APR+1280*nt}')
    a(f's_add_u32 s{S_T0}, s{S_T2}, {O_TW2}')
    for i in range(4):
        a(f'buffer_load_dwordx4 {vr(V_TW+4*i,4)}, v{V_L16}, {tb}, s{S_T0} offen offset:{i*1024}')
    sync(F_SY0)
    a(f's_mul_i32 s{S_T0}, s{S_FW}, 1280')
    a(f'v_add_u32 {u(4)}, s{S_T0}, v{V_A1}')
    a(f'ds_read_b128 {vr(V_D,4)}, {u(4)}')
    a(f'ds_read_b128 {vr(V_D+4,4)}, {u(4)} offset:{L_API-L_APR}')
    lo()
    a('s_waitcnt vmcnt(4) lgkmcnt(0)')
    for mt in range(2):
        mf(V_AC + 8*mt, t2(mt, 0), V_D, 0)
        mf(V_AC + 8*mt + 4, t2(mt, 0), V_D + 4, 0)
    for mt in range(2):
        mf(V_AC + 8*mt, t2(mt, 2), V_D + 4, 1)
        mf(V_AC + 8*mt + 4, t2(mt, 1), V_D, 1)
    hi()
    def unpack(base):
        for part in range(2):
            b = base + 8*part
            for q in range(4):
                a(f'v_lshlrev_b32 v{b+2*q}, 16, v{b+4+q}')
                a(f'v_and_b32 v{b+2*q+1}, 0xffff0000, v{b+4+q}')
    unpack(V_W)
    a(f's_cmp_eq_u32 s{S_F}, 0')
    a('s_cbranch_scc1 KG_SPECIAL')
    for e in range(8):
        mt, r = e >> 2, e & 3
        ar, ai = V_AC + 8*mt + r, V_AC + 8*mt + 4 + r
        c_, s_ = V_W + e, V_W + 8 + e
        uu = V_U + (r & 1) * 2
        a(f'v_mul_f32 v{uu}, v{ar}, v{c_}')
        a(f'v_mul_f32 v{uu+1}, v{ar}, v{s_}')
        a(f'v_fma_f32 v{ar}, -v{ai}, v{s_}, v{uu}')
        a(f'v_fma_f32 v{ai}, v{ai}, v{c_}, v{uu+1}')
    a.label('KG_STEP3')
    for mt in range(2):
        for part in range(2):
            for q in range(2):
                src = V_AC + 8*mt + 4*part + 2*q
                a(f'v_cvt_pk_bf16_f32 v{V_D+4*part+2*mt+q}, v{src}, v{src+1}')
    lo()
    a('s_nop 1')
    for mt in range(2):
        mf(V_AC + 8*mt, V_D, t2(mt, 0), 0)
        mf(V_AC + 8*mt + 4, V_D + 4, t2(mt, 0), 0)
    for mt in range(2):
        mf(V_AC + 8*mt, V_D + 4, t2(mt, 1), 1)
        mf(V_AC + 8*mt + 4, V_D, t2(mt, 2), 1)
    hi()
    a(f'v_mul_u32_u24 v{V_A1}, 144, v{V_I}')
    a(f'v_add_u32 v{V_A1}, {L_CPR}, v{V_A1}')
    a(f's_lshl_b32 s{S_T0}, s{S_FW}, 5')
    a(f'v_lshl_add_u32 {u(4)}, v{V_G}, 3, v{V_A1}')
    a(f'v_add_u32 {u(4)}, s{S_T0}, {u(4)}')
    a('s_waitcnt vmcnt(0)')
    a('s_nop 4')
    cmul_pack(V_D)
    for mt in range(2):
        a(f'ds_write_b64 {u(4)}, {vr(V_D+4*mt,2)} offset:{2304*mt}')
        a(f'ds_write_b64 {u(4)}, {vr(V_D+4*mt+2,2)} offset:{L_CPI-L_CPR+2304*mt}')
    sync(F_SY1)
    a(f's_mul_i32 s{S_T0}, s{S_NH}, 2304')
    a(f'v_lshl_add_u32 {u(4)}, v{V_G}, 4, v{V_A1}')
    a(f'v_add_u32 {u(4)}, s{S_T0}, {u(4)}')
    for part in range(2):
        for ks in range(2):
            a(f'ds_read_b128 {vr(V_D+8*part+4*ks,4)}, {u(4)} offset:{(L_CPI-L_CPR)*part+64*ks}')
    lo()
    a('s_waitcnt lgkmcnt(0)')
    for ks in range(2):
        for nt in range(2):
            mf(V_AC + 8*nt, t1(nt, ks, 0), zr(ks), ks)
            mf(V_AC + 8*nt + 4, t1(nt, ks, 0), zi(ks), ks)
        for nt in range(2):
            mf(V_AC + 8*nt, t1(nt, ks, 1), zi(ks), 1)
            mf(V_AC + 8*nt + 4, t1(nt, ks, 2), zr(ks), 1)
    hi()
    a(f'v_lshlrev_b32 {u(4)}, 7, v{V_I}')
    a(f'v_lshl_add_u32 {u(4)}, v{V_G}, 4, {u(4)}')
    a(f's_lshl_b32 s{S_T0}, s{S_F}, 13')
    a(f's_lshl_b32 s{S_T1}, s{S_NH}, 11')
    a(f's_add_u32 s{S_T0}, s{S_T0}, s{S_T1}')
    a(f's_lshl_b32 s{S_T1}, s{S_MH}, 6')
    a(f's_add_u32 s{S_T0}, s{S_T0}, s{S_T1}')
    a(f's_add_u32 s{S_T0}, s{S_T0}, {WS_Y1T}')
    a(f's_add_u32 s{S_T1}, s{S_T0}, 4096')
    for part in range(2):
        for nt in range(2):
            for q in range(2):
                src = V_AC + 8*nt + 4*part + 2*q
                a(f'v_cvt_pk_bf16_f32 v{V_D+4*part+2*nt+q}, v{src}, v{src+1}')
    for part in range(2):
        a(f'buffer_store_dwordx4 {vr(V_D+4*part,4)}, {u(4)}, {ws}, s{S_T0+part} offen{SC}')
    join_flag(F_J2, 4, WS_FL3)
    stamp(8)
    if E('NOHELP', 0) == 2:
        dump()
        a('s_endpgm')

    AB, AA, LF, FR = 16, 32, 32, 64
    NFR = 14
    AX, FI, FW = 48, 64, 128
    V_DM, V_RA, V_RY, V_OUT, V_GT, V_DW = 120, 121, 122, 123, 124, 125
    S_MI, S_NI = S_CT, S_A
    a(f's_lshr_b32 s{S_MI}, s{S_HW}, 1')
    a(f's_and_b32 s{S_NI}, s{S_HW}, 1')
    srd(a, R_A, S_WO, 512 * 1024)
    srd(a, R_OUT, S_OUT, 2048 * 1024)
    table_srd(a, R_TB, 'TAB_FINV', 512 * 1024, 'fi')
    a(f'v_lshrrev_b32 {u(0)}, 3, v0')
    a(f'v_and_b32 {u(1)}, 7, v0')
    a(f'v_and_b32 {u(2)}, 1, v{V_G}')
    a(f'v_lshlrev_b32 {u(3)}, 2, {u(2)}')
    a(f'v_xor_b32 {u(3)}, {u(3)}, {u(1)}')
    a(f'v_lshlrev_b32 {u(3)}, 4, {u(3)}')
    a(f'v_lshl_add_u32 {u(4)}, {u(0)}, 10, {u(3)}')
    a(f'v_mov_b32 v{V_DW}, {u(4)}')
    a(f's_lshl_b32 s{S_T3}, s{S_HW}, 14')
    a(f'v_lshl_add_u32 v{V_DM}, {u(0)}, 12, {u(3)}')
    a(f'v_and_b32 {u(0)}, 31, v0')
    a(f'v_lshrrev_b32 {u(1)}, 5, v0')
    a(f'v_bfe_u32 {u(3)}, v0, 2, 2')
    a(f'v_and_b32 {u(4)}, 3, v0')
    a(f'v_lshrrev_b32 {u(5)}, 1, {u(4)}')
    a(f'v_and_b32 {u(4)}, 1, {u(4)}')
    a(f'v_lshrrev_b32 {u(6)}, 1, {u(3)}')
    a(f'v_lshlrev_b32 {u(6)}, 2, {u(6)}')
    a(f'v_lshl_add_u32 {u(7)}, {u(4)}, 1, {u(2)}')
    a(f's_lshl_b32 s{S_T0}, s{S_MI}, 2')
    a(f'v_add_u32 {u(7)}, s{S_T0}, {u(7)}')
    a(f'v_xor_b32 {u(7)}, {u(7)}, {u(6)}')
    a(f'v_lshlrev_b32 {u(7)}, 4, {u(7)}')
    a(f'v_lshl_add_u32 {u(7)}, {u(5)}, 3, {u(7)}')
    a(f'v_lshl_add_u32 v{V_RA}, {u(1)}, 2, {u(3)}')
    a(f'v_lshl_add_u32 v{V_RA}, v{V_RA}, 7, {u(7)}')
    a(f'v_lshl_add_u32 {u(7)}, {u(2)}, 1, {u(5)}')
    a(f's_lshl_b32 s{S_T0}, s{S_NI}, 2')
    a(f'v_add_u32 {u(7)}, s{S_T0}, {u(7)}')
    a(f'v_xor_b32 {u(7)}, {u(7)}, {u(6)}')
    a(f'v_lshlrev_b32 {u(7)}, 4, {u(7)}')
    a(f'v_lshl_add_u32 {u(7)}, {u(4)}, 3, {u(7)}')
    a(f'v_lshl_add_u32 v{V_RY}, {u(1)}, 3, {u(3)}')
    a(f'v_lshl_add_u32 v{V_RY}, v{V_RY}, 7, {u(7)}')
    a(f'v_add_u32 v{V_RY}, {L_Y}, v{V_RY}')
    a(f'v_bfe_u32 {u(5)}, {u(0)}, 2, 1')
    a(f'v_lshrrev_b32 {u(6)}, 3, {u(0)}')
    a(f'v_and_b32 {u(7)}, 3, {u(0)}')
    a(f'v_lshl_add_u32 {u(7)}, {u(5)}, 4, {u(7)}')
    a(f'v_lshl_add_u32 {u(7)}, {u(6)}, 2, {u(7)}')
    a(f'v_lshlrev_b32 {u(7)}, 15, {u(7)}')
    a(f'v_lshl_add_u32 {u(7)}, {u(1)}, 5, {u(7)}')
    a(f's_lshl_b32 s{S_T0}, s{S_NI}, 20')
    a(f's_lshl_b32 s{S_T1}, s{S_QG}, 10')
    a(f's_add_u32 s{S_T0}, s{S_T0}, s{S_T1}')
    a(f's_lshl_b32 s{S_T1}, s{S_HG}, 7')
    a(f's_add_u32 s{S_T0}, s{S_T0}, s{S_T1}')
    a(f's_lshl_b32 s{S_T1}, s{S_MI}, 6')
    a(f's_add_u32 s{S_T0}, s{S_T0}, s{S_T1}')
    a(f'v_add_u32 v{V_OUT}, s{S_T0}, {u(7)}')
    a(f'v_lshlrev_b32 v{V_GT}, 2, {u(0)}')
    S_FI = S_KOFF
    a(f's_lshl_b32 s{S_FI}, s{S_HG}, 16')
    a(f's_lshl_b32 s{S_T0}, s{S_MI}, 10')
    a(f's_add_u32 s{S_FI}, s{S_FI}, s{S_T0}')
    def fload(i):
        if i % 2 == 0:
            a(f's_add_u32 s{S_KB}, s{S_FI}, {i*2048}')
        a(f'buffer_load_dwordx4 {vr(FR+4*(i%NFR),4)}, v{V_L16}, {tb}, s{S_KB} offen offset:{(i%2)*2048}')
    for i in range(NFR):
        fload(i)
        thr()
    if FI_TOUCH:
        a(f'v_lshlrev_b32 {u(0)}, 7, v0')
        a(f'v_and_b32 {u(1)}, 0x1c00, {u(0)}')
        a(f'v_add_u32 {u(0)}, {u(0)}, {u(1)}')
        for k in range(3):
            a(f's_add_u32 s{S_KB}, s{S_FI}, {(8+8*k)*2048}')
            a(f'buffer_load_dword v{FW+k}, {u(0)}, {tb}, s{S_KB} offen')
    lds_wait(F_J2, 4, V_U, sleep=2)
    pg_wait(4, 2)
    a(f's_lshl_b32 s{S_T2}, s{S_HW}, 17')
    a(f's_lshl_b32 s{S_T0}, s{S_HG}, 7')
    a(f's_add_u32 s{S_T2}, s{S_T2}, s{S_T0}')
    a(f's_add_u32 s{S_T1}, s{S_T3}, {L_WQ}')
    a(f's_cmp_eq_u32 s{S_HW}, 2')
    a(f's_cselect_b32 s{S_T1}, {L_KW}, s{S_T1}')
    a(f's_cmp_eq_u32 s{S_HW}, 3')
    a(f's_cselect_b32 s{S_T1}, s{S_T3}, s{S_T1}')
    for i in range(16):
        a(f's_add_u32 m0, s{S_T1}, {i*1024}')
        a(f's_add_u32 s{S_T0}, s{S_T2}, {i*8192}')
        a(f'buffer_load_dwordx4 v{V_DW}, {ra}, s{S_T0} offen lds')
        thr()
    a(f's_mov_b32 s{S_T0}, {L_WQ}')
    a(f's_mov_b32 s{S_T1}, {L_WQ + 16384}')
    a(f's_cmp_eq_u32 s{S_MI}, 1')
    a(f's_cselect_b32 s{S_T0}, {L_KW}, s{S_T0}')
    a(f's_cselect_b32 s{S_T1}, 49152, s{S_T1}')
    a(f'v_add_u32 v{LF}, s{S_T0}, v{V_RA}')
    a(f'v_add_u32 v{LF+2}, s{S_T1}, v{V_RA}')
    a(f'v_xor_b32 v{LF+1}, 64, v{LF}')
    a(f'v_xor_b32 v{LF+3}, 64, v{LF+2}')
    a('s_waitcnt vmcnt(0)')
    sync(F_J4)
    def fw(j, t_, o): return FW + 64*t_ + 8*j + 4*o
    for t_ in range(2):
        for j in range(8):
            i = 2*j + t_
            for o in range(2):
                ad = LF + 2*(i >> 3) + o
                a(f'ds_read_b64_tr_b16 {vr(fw(j,t_,o),2)}, v{ad} offset:{(i&7)*2048}')
                a(f'ds_read_b64_tr_b16 {vr(fw(j,t_,o)+2,2)}, v{ad} offset:{(i&7)*2048+1024}')
    a('s_waitcnt lgkmcnt(0)')
    lds_add(F_WR, V_U)
    if TST: stamp(6)
    a(f's_cmp_lg_u32 s{S_HW}, 1')
    a('s_cbranch_scc1 KG_S2W')
    a(f's_mov_b32 s{S_T1}, {WS_FL3}')
    glob_poll('S2', -1, S2_SLEEP)
    a(f'v_mov_b32 {u(1)}, 1')
    a(f'ds_write_b32 v{V_Z}, {u(1)} offset:{4*F_S2OK}')
    a.label('KG_S2W')
    pg_wait(6, 4)
    lds_wait(F_WR, 4, V_U, sleep=4)
    lds_wait(F_S2OK, 1, V_U, sleep=4)
    stamp(9)
    a(f's_lshl_b32 s{S_T2}, s{S_HW}, 19')
    a(f's_lshl_b32 s{S_T0}, s{S_QG}, 7')
    a(f's_add_u32 s{S_T2}, s{S_T2}, s{S_T0}')
    a(f's_add_u32 s{S_T2}, s{S_T2}, {WS_Y1T}')
    for i in range(16):
        a(f's_add_u32 m0, s{S_T3}, {L_Y + i*1024}')
        a(f's_add_u32 s{S_T0}, s{S_T2}, {i*32768}')
        a(f'buffer_load_dwordx4 v{V_DM}, {ws}, s{S_T0} offen{SC} lds')
        thr()
    a(f's_lshl_b32 s{S_T0}, s{S_QG}, 8')
    a(f's_lshl_b32 s{S_T1}, s{S_NI}, 7')
    a(f's_add_u32 s{S_T0}, s{S_T0}, s{S_T1}')
    a(f's_add_u32 s{S_T0}, s{S_T0}, {WS_G}')
    a(f'buffer_load_dword v{V_GT}, v{V_GT}, {ws}, s{S_T0} offen{SC}')
    a('s_waitcnt vmcnt(0)')
    sync(F_J3)
    def lread(i, addr, second):
        a(f'ds_read_b64_tr_b16 {vr(LF+4*(i%8),2)}, v{addr} offset:{i*2048}')
        a(f'ds_read_b64_tr_b16 {vr(LF+4*(i%8)+2,2)}, v{addr} offset:{i*2048+second}')
    if PRI & 2: a('s_setprio 0')
    for i in range(6):
        lread(i, V_RY, 512)
    for i in range(32):
        if i >= NFR:
            a(f's_waitcnt vmcnt({min(31, i+NFR-1)-i}) lgkmcnt({2*min(5, 31-i)})')
        else:
            a(f's_waitcnt lgkmcnt({2*min(5, 31-i)})')
        cc = vr(AB, 16) if i else '0'
        a(f'v_mfma_f32_32x32x16_bf16 {vr(AB,16)}, {vr(FR+4*(i%NFR),4)}, {vr(LF+4*(i%8),4)}, {cc}')
        if i + NFR < 32: fload(i + NFR)
        if i + 6 < 32: lread(i + 6, V_RY, 512)
    if PRI & 2: a('s_setprio 2')
    stamp(10)
    if E('NOHELP', 0) == 3:
        dump()
        a('s_endpgm')
    L_EX = L_X + 49152
    F_EX = F_MM
    a(f's_lshl_b32 s{S_T2}, s{S_QG}, 1')
    a(f's_add_u32 s{S_T2}, s{S_T2}, s{S_NI}')
    a(f's_lshl_b32 s{S_T2}, s{S_T2}, 1')
    a(f's_add_u32 s{S_T2}, s{S_T2}, s{S_MI}')
    a(f's_lshl_b32 s{S_T2}, s{S_T2}, 14')
    SBK = [R_X, R_X+1, R_X+2, R_X+3]
    S_PD = S_P
    for k in range(4):
        a(f's_add_u32 s{SBK[k]}, s{S_T2}, {WS_O + 4096*k}')
    a(f'v_sub_f32 {u(1)}, 1.0, v{V_GT}')
    for i in range(4):
        a(f'v_mov_b32 {u(4+i)}, 0')
    a('s_nop 1')
    for r_ in (AA, AX):
        a(f'v_mfma_f32_32x32x16_bf16 {vr(r_,16)}, {vr(V_U+4,4)}, {vr(V_U+4,4)}, 0')
    for i in range(8):
        a(f'v_pk_mul_f32 {vr(AB+2*i,2)}, {vr(AB+2*i,2)}, {vr(V_U,2)} op_sel:[0,1] op_sel_hi:[1,1]')
    a(f'v_mov_b32 v{V_DM}, v{V_GT}')
    a(f's_lshl_b32 s{S_T0}, s{S_HW}, 2')
    a(f'v_add_u32 v{V_DW}, s{S_T0}, v{V_Z}')
    a(f'v_xor_b32 v{V_GT}, 8, v{V_DW}')
    a(f's_lshl_b32 s{S_T0}, s{S_HW}, 12')
    a(f's_add_u32 s{S_T0}, s{S_T0}, {L_EX}')
    a(f'v_add_u32 v{V_RA}, s{S_T0}, v{V_L16}')
    a(f'v_xor_b32 v{V_RY}, 0x2000, v{V_RA}')
    def oload(p_, t_):
        a(f'buffer_load_dwordx4 {vr(FI+4*p_,4)}, v{V_L16}, {ws}, s{SBK[p_>>1]} offen offset:{(p_%2)*2048+1024*t_}{SC}')
    def ocheck(p_, t_, k):
        a(f'v_cmp_eq_u32 vcc, -1, v{FI+4*p_+3}')
        a(f's_cbranch_vccnz KG_OC{t_}{k}_{p_}')
        a(f'v_mfma_f32_32x32x16_bf16 {vr(AX,16)}, {vr(fw(p_,t_,1),4)}, {vr(FI+4*p_,4)}, {vr(AX,16)}')
        a(f'v_mfma_f32_32x32x16_bf16 {vr(AA,16)}, {vr(fw(p_,t_,0),4)}, {vr(FI+4*p_,4)}, {vr(AA,16)}')
        a(f's_bitset0_b32 s{S_PD}, {p_}')
        a.label(f'KG_OC{t_}{k}_{p_}')
    def pend_each(tag, fn):
        for g in range(2):
            a(f's_and_b32 s{S_T0}, s{S_PD}, {hex(0xf << (4*g))}')
            a(f's_cbranch_scc0 KG_OG{tag}_{g}')
            for p_ in range(4*g, 4*g + 4):
                a(f's_bitcmp1_b32 s{S_PD}, {p_}')
                a(f's_cbranch_scc0 KG_OP{tag}_{p_}')
                fn(p_)
                a.label(f'KG_OP{tag}_{p_}')
            a.label(f'KG_OG{tag}_{g}')
    for t_ in range(2):
        a(f's_movk_i32 s{S_PD}, 0xff')
        a(f's_mov_b32 s{S_CNT}, {POLL_LIMIT}')
        if t_ == 0:
            stamp(4)
            lds_wait(F_ADONE, 1, V_U, sleep=4)
            stamp(3)
        elif O1W == 1:
            lds_wait(F_PGW, 10, V_U, sleep=1, addr=V_DW)
            stamp(11)
        elif O1W == 2:
            pg_wait(10, 1)
            stamp(11)
        for p_ in range(8):
            oload(p_, t_)
        for p_ in range(8):
            a(f's_waitcnt vmcnt({7-p_})')
            ocheck(p_, t_, 0)
        if TST and t_: stamp(1)
        a.label(f'KG_OR{t_}')
        a(f's_cmp_eq_u32 s{S_PD}, 0')
        a(f's_cbranch_scc1 KG_OD{t_}')
        a(f's_sub_u32 s{S_CNT}, s{S_CNT}, 1')
        a(f's_cbranch_scc1 KG_OD{t_}')
        sl = O_SLEEP if t_ == 0 else O_SLEEP1
        if sl: a(f's_sleep {sl}')
        pend_each(f'L{t_}', lambda p_: oload(p_, t_))
        a('s_waitcnt vmcnt(0)')
        pend_each(f'C{t_}', lambda p_: ocheck(p_, t_, 1))
        a(f's_branch KG_OR{t_}')
        a.label(f'KG_OD{t_}')
        if t_ == 0: stamp(5)
        elif TST: stamp(2)
    a(f'v_mov_b32 {u(1)}, 1')
    a('s_nop 7')
    for q in range(4):
        a(f'ds_write_b128 v{V_RA}, {vr(AX+4*q,4)} offset:{1024*q}')
    a(f'ds_write_b32 v{V_DW}, {u(1)} offset:{4*F_EX}')
    def ex_reads():
        a(f'ds_read_b32 {u(0)}, v{V_GT} offset:{4*F_EX}')
        for q in range(4):
            a(f'ds_read_b128 {vr(FI+4*q,4)}, v{V_RY} offset:{1024*q}')
    ex_reads()
    for i in range(8):
        a(f'v_pk_fma_f32 {vr(AB+2*i,2)}, {vr(AA+2*i,2)}, {vr(V_DM,2)}, {vr(AB+2*i,2)} op_sel_hi:[1,0,1]')
    a.label('KG_EXL')
    a('s_waitcnt lgkmcnt(4)')
    a(f'v_readfirstlane_b32 s{S_T0}, {u(0)}')
    a(f's_cmp_lg_u32 s{S_T0}, 0')
    a('s_cbranch_scc1 KG_EXD')
    ex_reads()
    a(f's_sub_u32 s{S_LIM}, s{S_LIM}, 1')
    a('s_cbranch_scc0 KG_EXL')
    a.label('KG_EXD')
    for i in range(8):
        if i % 2 == 0: a(f's_waitcnt lgkmcnt({3 - i//2})')
        a(f'v_pk_fma_f32 {vr(AA+2*i,2)}, {vr(FI+2*i,2)}, {vr(V_DM,2)}, {vr(AB+2*i,2)} op_sel_hi:[1,0,1]')
    for i in range(8):
        a(f'v_cvt_pk_bf16_f32 v{LF+i}, v{AA+2*i}, v{AA+2*i+1}')
    for q in range(2):
        a(f'buffer_store_dwordx4 {vr(LF+4*q,4)}, v{V_OUT}, {sr(R_OUT,4)}, 0 offen offset:{16*q}{OUTSC}')
    dump()
    a('s_endpgm')

    SG, SL, SD = 168, 176, 184
    a.label('KG_SPA')
    a(f's_mov_b32 s{S_T0}, {L_SP}')
    a(f's_mov_b32 s{S_T1}, {L_SPW}')
    for e in range(8):
        k_ = u(4 + (e & 1))
        a(f'v_sub_u32 {k_}, {2048 - 64*(e&3) - 1024*(e>>2)}, v{V_A3}')
        a(f'v_and_b32 {k_}, 2047, {k_}')
        a(f'v_lshl_add_u32 v{SL+e}, {k_}, 2, s{S_T0}')
        a(f'v_lshl_add_u32 v{SG+e}, {k_}, 3, s{S_T1}')
    a('s_branch KG_SPAR')
    a.label('KG_SPB')
    a(f's_mov_b32 s{S_C0}, 0x05040100')
    a(f's_mov_b32 s{S_C0+1}, 0x07060302')
    a(f's_mov_b32 s{S_T1}, {L_SPW}')
    a(f'v_lshl_add_u32 {u(4)}, v{V_A3}, 3, s{S_T1}')
    a('s_waitcnt vmcnt(0)')
    for e in range(8):
        for j, base in enumerate((V_W, V_XX)):
            a(f'v_perm_b32 v{SD+2*e+j}, v{base+12+(e>>1)}, v{base+4+(e>>1)}, s{S_C0+(e&1)}')
        a(f'ds_write_b64 {u(4)}, {vr(SD+2*e,2)} offset:{512*(e&3) + 8192*(e>>2)}')
    a('s_branch KG_SPBR')
    a.label('KG_SPECIAL')
    for e in range(8):
        a(f'ds_read_b64 {vr(SD+2*e,2)}, v{SG+e}')
    a(f'v_lshlrev_b32 {u(4)}, 2, v{V_A3}')
    a(f'v_add_u32 {u(6)}, {L_SP}, {u(4)}')
    for e in range(8):
        mt, r = e >> 2, e & 3
        a(f'ds_write2st64_b32 {u(6)}, v{V_AC+8*mt+r}, v{V_AC+8*mt+4+r} offset0:{16*mt+r} offset1:{32+16*mt+r}')
    a(f'v_mov_b32 {u(0)}, 1')
    a('s_waitcnt lgkmcnt(0)')
    a('s_mov_b64 exec, 1')
    a(f'ds_add_u32 v{V_Z}, {u(0)} offset:{4*F_SY2}')
    a('s_mov_b64 exec, -1')
    unpack(V_XX)
    for e in range(8):
        a0r, a0i, a1r, a1i = V_W + e, V_W + 8 + e, V_XX + e, V_XX + 8 + e
        b0r, b0i, b1r, b1i = SD + 16, SD + 2*e, SD + 17, SD + 2*e + 1
        a(f'v_lshlrev_b32 v{b0r}, 16, v{b0i}')
        a(f'v_lshlrev_b32 v{b1r}, 16, v{b1i}')
        a(f'v_and_b32 v{b0i}, 0xffff0000, v{b0i}')
        a(f'v_and_b32 v{b1i}, 0xffff0000, v{b1i}')
        a(f'v_add_f32 v{b0r}, v{a0r}, v{b0r}')
        a(f'v_sub_f32 v{b0i}, v{a0i}, v{b0i}')
        a(f'v_add_f32 v{b1r}, v{a1r}, v{b1r}')
        a(f'v_sub_f32 v{b1i}, v{a1i}, v{b1i}')
        a(f'v_add_f32 v{a0r}, v{b0r}, v{b1r}')
        a(f'v_add_f32 v{a0i}, v{b0i}, v{b1i}')
        a(f'v_sub_f32 v{a1r}, v{b0r}, v{b1r}')
        a(f'v_sub_f32 v{a1i}, v{b0i}, v{b1i}')
    lds_wait(F_SY2, 4, V_U, sleep=1)
    for e in range(8):
        a(f'ds_read2st64_b32 {vr(V_D+2*e,2)}, v{SL+e} offset0:0 offset1:32')
    a(f's_mov_b32 s{S_T0}, {f32_bits(0.125)}')
    for e in range(8):
        mt, r = e >> 2, e & 3
        zr_, zi_ = V_AC + 8*mt + r, V_AC + 8*mt + 4 + r
        pr, pi_, mr, mi = V_W + e, V_W + 8 + e, V_XX + e, V_XX + 8 + e
        znr, zni = V_D + 2*e, V_D + 2*e + 1
        rr, ri = SD + 2*e, SD + 2*e + 1
        a(f'v_mul_f32 v{rr}, v{zr_}, v{pr}')
        a(f'v_mul_f32 v{ri}, v{zr_}, v{pi_}')
        a(f'v_fma_f32 v{rr}, -v{zi_}, v{pi_}, v{rr}')
        a(f'v_fma_f32 v{ri}, v{zi_}, v{pr}, v{ri}')
        a(f's_waitcnt lgkmcnt({7-e})')
        a(f'v_fma_f32 v{rr}, v{znr}, v{mr}, v{rr}')
        a(f'v_fma_f32 v{ri}, v{znr}, v{mi}, v{ri}')
        a(f'v_fma_f32 v{rr}, v{zni}, v{mi}, v{rr}')
        a(f'v_fma_f32 v{ri}, -v{zni}, v{mr}, v{ri}')
        a(f'v_mul_f32 v{zr_}, s{S_T0}, v{rr}')
        a(f'v_mul_f32 v{zi_}, s{S_T0}, v{ri}')
    a('s_branch KG_STEP3')
    a.label('KG_END')
    a('s_endpgm')
    return 256, (102 if ST in (5, 6, 7) else NS)

def build_g(path):
    a = Asm()
    hdr = open(f'cdna_kernels/{NAME}.s.ref').read().split('\n')
    for l in hdr:
        if l.startswith(';') and '@launch' not in l and 'Override launch' not in l and 'grid=ceil' not in l:
            a.raw(l)
    kn = NAME + '_kernel'
    if E('PLAIN', 0):
        a.raw(f'; @launch grid=(256,1,1) block=(512,1,1) lds={KG_LDS}')
    else:
        a.raw(f'; @launch kernel={kn} grid=(256,1,1) block=(512,1,1) lds={KG_LDS}')
    a.raw('.amdgcn_target "amdgcn-amd-amdhsa--gfx950"')
    a.raw('.text')
    v, s = gen_g(a, kn)
    a.raw('.section .rodata,"a"')
    kernel_desc(a, kn, v, s)
    gen_tables(a)
    gen_k2.gen_tables_k2(a)
    gen_k3.gen_tables_k3(a)
    open(path, 'w').write(a.text())

if __name__ == '__main__':
    build_g(sys.argv[1] if len(sys.argv) > 1 else 'j.s')
```

```python
from gen import *
import gen_k2, gen_k3
from gen_k2 import YSCALE
import os

WS_ROOT = 0x240000
WS_FL1 = 0x244000
WS_FL2 = 0x248000
WS_FL3 = 0x24C000
WS_FL4 = 0x260000
TAG_M, TAG_C = 0x9E3779B1, 0x7F4A7C15
WS_XC = 0x250000
FORCE_GL = int(os.environ.get('FORCE_GL', '0'))
WS_KVT = 0x000000

L_X = 0
L_WQ = 65536
L_FLAG = 131072
L_KW = L_FLAG + 256
L_GATE = L_KW + 16384
KG_LDS = 163840
L_APR = L_KW; L_API = L_APR + 5120
L_CPR = L_API + 5120; L_CPI = L_CPR + 4608
L_MX = L_KW
L_MXM = L_KW + 20480
assert L_CPI + 4608 <= L_MXM and L_MX + 8 * 2304 <= L_MXM and L_MXM + 4096 <= KG_LDS and L_GATE + 1024 <= L_MXM
L_SP = L_WQ
L_SPW = L_X + 49152
L_WO = L_X
L_Y = L_WQ
F_CX, F_CW = 0, 1
F_CC, F_MG, F_MM, F_PG, F_QX = 0, 8, 16, 40, 48
L_QX = L_GATE + 1024
assert L_QX + 8192 <= KG_LDS
F_N, F_TAG, F_QDONE, F_J1, F_S1OK, F_SY0, F_SY1, F_SY2, F_J2, F_S2OK, F_J3, F_TAGOK, F_ADONE, F_J4, F_KVS, F_GI, F_PRE = range(24, 41)
F_PRE = 2
F_PGW = 8
F_KX = 15
F_WR = 3
F_LOC = 14
F_POS, F_H2 = 12, 13
L_PRE = L_KW
NWAVE = 8
WS_G = 0x230000
E = lambda k, d: int(os.environ.get(k, str(d)))
LOAD_D = E('LOAD_D', 6)
KV_SLEEP = E('KV_SLEEP', 4)
O_SLEEP = E('O_SLEEP', 2)
THR = E('THR', 15)
LD_PRE = E('LD_PRE', 0)
KV_BAR = E('KV_BAR', 15)
FAIR = E('FAIR', 1)
KV_LAG = E('KV_LAG', 0)
TF_LAG = E('TF_LAG', 1)
WT_LAG = E('WT_LAG', 8)
G_DELAY = E('G_DELAY', 12)
Q7_SLEEP = E('Q7_SLEEP', 0)
H2_PD = E('H2_PD', 12)
KVSC = ' sc1' if E('KVSC1', 0) else ''
OSC = ' sc1' if E('OSC1', 0) else ''
SC = ' sc1'
POLL_LIMIT = 1 << 18
NSTAMP = 12
OF_STEP = E('OF_STEP', 12)
O1W = E('O1W', 1)
FI_TOUCH = E('FI_TOUCH', 0)
T2 = E('T2', 1)
ROT = E('ROT', 0)
LOCSC = {0: '', 1: ' nt', 2: ' sc0', 3: ' sc0 nt'}[E('LOCSC', 1)]
LOCSE = {0: '', 1: ' nt', 2: ' sc0', 3: ' sc0 nt', 4: ' sc1'}[E('LOCSE', 4)]
O_SLEEP1 = E('O_SLEEP1', 0)
NFO = E('NFO', 10)
TST = E('TST', 0)
OST = '' if E('OPLAIN', 0) else ' sc1'
S1_SLEEP = E('S1_SLEEP', 4)
S2_SLEEP = E('S2_SLEEP', 8)
SPSC = ' sc1' if E('SPSC1', 0) else ''
KP_DELAY = E('KP_DELAY', 0)
PEEL_B = E('PEEL_B', 4)
PRI = E('PRI', 7)
LST = E('LST', 0)
G_EARLY = E('G_EARLY', 8)
G_TRIG = E('G_TRIG', 7)
QPIPE = E('QPIPE', 2)
EPOLL = E('EPOLL', 8)
TOUCH = E('TOUCH', 1)
FST = E('FST', 0)
PRET = E('PRET', 1)
OUTSC = {0: '', 1: ' sc1', 2: ' nt', 3: ' sc0 sc1', 4: ' sc1 nt'}[E('OUTSC', 2)]

def gen_g(a, name):
    kernel_header(a, name)
    S_X, S_WQ, S_WK, S_WV, S_WO, S_WS, S_WR, S_WI, S_GT, S_OUT = 4, 6, 8, 10, 12, 14, 16, 18, 20, 22
    R_X, R_WS, R_A, R_B, R_TB, R_OUT = 24, 28, 32, 36, 40, 44
    S_W, S_QG, S_HG, S_T0, S_T1, S_T2, S_T3, S_CNT, S_KOFF, S_KB, S_P, S_KH = 48, 49, 50, 51, 52, 53, 54, 55, 56, 57, 58, 59
    S_VM = 60; S_C0 = 62; S_C1 = 64
    S_CT, S_A, S_F, S_HW, S_MH, S_NH, S_SEEN, S_LIM, S_TAG = 3, 66, 67, 68, 69, 70, 71, 72, 73
    NS = 74
    SB = 74
    ws = sr(R_WS, 4); xs = sr(R_X, 4); ra = sr(R_A, 4); rb_ = sr(R_B, 4); tb = sr(R_TB, 4)
    TM = 's_memrealtime' if ST in (5, 7) else 's_memtime'
    duid = [0]
    def stamp(i, f=0):
        if FST and (i >= 7) != bool(f):
            if i >= 7 or f: return
        if f and not FST: return
        if ST in (5, 6, 7):
            a(f'{TM} s[{SB+2*i}:{SB+1+2*i}]')
    def dump(kind=0):
        n = NSTAMP
        if ST == 7:
            duid[0] += 1
            a('s_waitcnt vmcnt(0)')
            a(f'{TM} s[{SB+2*n}:{SB+1+2*n}]')
            a(f's_load_dwordx2 s[{R_A}:{R_A+1}], s[0:1], 80')
            a(f's_mov_b32 s{R_A+2}, 256')
            a(f's_mov_b32 s{R_A+3}, 0x20000')
            a('s_waitcnt lgkmcnt(0)')
            a('s_mov_b64 exec, 1')
            a('v_mov_b32 v0, 0')
            a(f's_cmp_lg_u32 s{S_W}, {4 if kind else 0}')
            a(f's_cbranch_scc1 KG_DD{duid[0]}')
            if kind:
                a(f's_not_b32 s{S_T0}, s{SB}')
                a(f'v_mov_b32 v2, s{S_T0}')
                a(f'buffer_atomic_umax v2, v0, {ra}, 0 offen offset:0')
                L = [(2, 0), (3, 2), (4, 3), (5, 4), (6, 5), (7, 12)]
            else:
                a(f'v_mov_b32 v2, s{SB+24}')
                a(f'buffer_atomic_umax v2, v0, {ra}, 0 offen offset:4')
                L = [(8, 3), (9, 5), (10, 6), (11, 7), (12, 8), (13, 9), (14, 11), (15, 12)]
            for k, (sl, st_) in enumerate(L):
                a(f'v_mov_b32 v{3+k}, s{SB+2*st_}')
                a(f'buffer_atomic_add v{3+k}, v0, {ra}, 0 offen offset:{4*sl}')
            a.label(f'KG_DD{duid[0]}')
        if ST in (5, 6):
            a('s_waitcnt vmcnt(0)')
            a(f'{TM} s[{SB+2*n}:{SB+1+2*n}]')
            a('s_mov_b64 exec, 1')
            a(f's_lshl_b32 s{S_T0}, s2, 4')
            a(f's_add_u32 s{S_T0}, s{S_T0}, s{S_W}')
            a(f's_lshl_b32 s{S_T0}, s{S_T0}, 6')
            a(f's_add_u32 s{S_T0}, s{S_T0}, {0xC00000}')
            a('s_waitcnt lgkmcnt(0)')
            a(f's_mov_b32 s{R_WS+2}, 0x1000000')
            a('v_mov_b32 v0, 0')
            if LST and kind:
                a('s_mov_b64 exec, 0xffff')
                a('v_mbcnt_lo_u32_b32 v3, -1, 0')
                a('v_lshlrev_b32 v3, 2, v3')
                a(f'v_add_u32 v3, 0x100000, v3')
                a(f'buffer_store_dword v{192+23}, v3, {ws}, s{S_T0} offen')
                a('s_mov_b64 exec, 1')
            for i in range(n + 1):
                a(f'v_mov_b32 v2, s{SB+2*i}')
                a(f'buffer_store_dword v2, v0, {ws}, s{S_T0} offen offset:{4*i}')
                a('s_nop 1')

    a('s_cmp_ge_u32 s2, 256')
    a('s_cbranch_scc1 KG_END')
    if ST in (5, 6, 7):
        for i in range(NSTAMP + 1):
            a(f's_mov_b32 s{SB+2*i}, 0')
    stamp(0)
    a(f's_load_dwordx8 s[{S_X}:{S_X+7}], s[0:1], 0')
    a(f's_load_dwordx2 s[{S_WS}:{S_WS+1}], s[0:1], 88')
    a(f's_load_dwordx4 s[{S_GT}:{S_GT+3}], s[0:1], 64')
    a(f's_load_dwordx2 s[{S_WO}:{S_WO+1}], s[0:1], 32')
    a(f's_load_dwordx4 s[{S_WR}:{S_WR+3}], s[0:1], 48')
    a('v_lshrrev_b32 v1, 6, v0')
    a('v_and_b32 v0, 63, v0')
    a(f's_and_b32 s{S_T0}, s2, 7')
    a(f'v_readfirstlane_b32 s{S_W}, v1')
    a(f's_lshl_b32 s{S_T0}, s{S_T0}, 2')
    a(f's_lshr_b32 s{S_QG}, s2, 6')
    a(f's_add_u32 s{S_QG}, s{S_QG}, s{S_T0}')
    a(f's_bfe_u32 s{S_HG}, s2, 0x30003')
    a(f's_mov_b32 s{S_LIM}, {1<<21}')
    S_ROT = S_F
    if ROT == 1:
        a(f's_lshl_b32 s{S_ROT}, s{S_HG}, 7')
    elif ROT == 2:
        a(f's_lshr_b32 s{S_ROT}, s2, 5')
        a(f's_and_b32 s{S_ROT}, s{S_ROT}, 6')
        a(f's_add_u32 s{S_ROT}, s{S_ROT}, s{S_HG}')
        a(f's_and_b32 s{S_ROT}, s{S_ROT}, 7')
        a(f's_lshl_b32 s{S_ROT}, s{S_ROT}, 7')
    elif ROT == 3:
        a(f's_lshr_b32 s{S_ROT}, s2, 6')
        a(f's_lshl_b32 s{S_ROT}, s{S_ROT}, 8')
    V_Z = 7
    a(f'v_mov_b32 v{V_Z}, {L_FLAG}')
    V_I, V_G, V_L16, V_A1, V_A2, V_A3 = 1, 2, 3, 4, 5, 6
    V_U = 8
    u = lambda i: f'v{V_U+i}'
    KX, KW, KA = 16, 80, 144
    S_RB, S_TY, S_KQ = S_P, S_KH, S_KB
    a(f'v_and_b32 v{V_I}, 15, v0')
    a(f'v_lshrrev_b32 v{V_G}, 4, v0')
    a(f'v_lshlrev_b32 v{V_L16}, 4, v0')
    a(f's_mov_b32 s{S_HW}, s{S_W}')
    a(f's_cmp_lg_u32 s{S_W}, 0')
    a('s_cbranch_scc1 KG_N0')
    a('s_setprio 2')
    a(f'v_lshl_add_u32 {u(1)}, v0, 2, v{V_Z}')
    a(f'v_mov_b32 {u(2)}, 0')
    a(f'ds_write_b32 {u(1)}, {u(2)}')
    def xaddr():
        a(f'v_lshrrev_b32 {u(0)}, 3, v0')
        a(f'v_and_b32 {u(1)}, 7, v0')
        a(f'v_lshrrev_b32 {u(2)}, 2, {u(0)}')
        a(f'v_and_b32 {u(3)}, 3, {u(0)}')
        a(f'v_lshl_add_u32 {u(2)}, {u(2)}, 4, {u(3)}')
        a(f'v_lshlrev_b32 {u(2)}, 15, {u(2)}')
        a(f's_lshl_b32 s{S_T0}, s{S_QG}, 10')
        a(f'v_add_u32 {u(2)}, s{S_T0}, {u(2)}')
        a(f'v_xor_b32 {u(3)}, v{V_G}, {u(1)}')
        a(f'v_lshl_add_u32 {u(4)}, {u(3)}, 4, {u(2)}')
        a(f'v_xor_b32 {u(3)}, 4, {u(3)}')
        a(f'v_lshl_add_u32 {u(5)}, {u(3)}, 4, {u(2)}')
        a(f'v_add_u32 {u(5)}, {131072 - 1024}, {u(5)}')
    def xpair(sd, sl, sp):
        a(f's_lshr_b32 s{sd}, s{sp}, 1')
        a(f's_lshl_b32 s{sd}, s{sd}, 20')
        a(f's_and_b32 s{sl}, s{sp}, 1')
        a(f's_lshl_b32 s{sl}, s{sl}, 18')
        a(f's_add_u32 s{sd}, s{sd}, s{sl}')
        if ROT: a(f's_add_u32 s{sd}, s{sd}, s{S_ROT}')
        a(f's_lshl_b32 s{sl}, s{sp}, 11')
    a(f's_lshr_b32 s{S_RB}, s{S_HG}, 1')
    a(f's_and_b32 s{S_TY}, s{S_HG}, 1')
    xaddr()
    xpair(S_T2, S_T3, S_RB)
    a(f's_mov_b32 s{R_A+2}, 16384')
    a(f's_mov_b32 s{R_A+3}, 0x20000')
    a(f's_mov_b32 s{R_X+2}, {2048 * 1024}')
    a(f's_mov_b32 s{R_X+3}, 0x20000')
    a(f's_mov_b32 m0, s{S_T3}')
    a(f's_cmp_eq_u32 s{S_TY}, 1')
    a('s_waitcnt lgkmcnt(0)')
    stamp(8, 1)
    a(f's_cselect_b64 s[{R_A}:{R_A+1}], s[{S_WV}:{S_WV+1}], s[{S_WK}:{S_WK+1}]')
    a(f's_mov_b64 s[{R_X}:{R_X+1}], s[{S_X}:{S_X+1}]')
    for c in range(8):
        if c:
            a(f's_add_u32 m0, s{S_T3}, {c*8192}')
            a(f's_add_u32 s{S_T2}, s{S_T2}, 128')
            if ROT: a(f's_bitset0_b32 s{S_T2}, 10')
        a(f'buffer_load_dwordx4 {u(4)}, {xs}, s{S_T2} offen lds')
        a(f'buffer_load_dwordx4 {u(5)}, {xs}, s{S_T2} offen offset:1024 lds')
        if c == 0: stamp(10, 1)
    for q in range(4):
        a(f's_mov_b32 m0, {L_KW + q*4096}')
        a(f's_movk_i32 s{S_T0}, {q*4096}')
        for j in range(4):
            a(f'buffer_load_dwordx4 v{V_L16}, {ra}, s{S_T0} offen offset:{j*1024} lds')
    srd(a, R_B, S_GT, 1024)
    a(f's_mov_b32 m0, {L_GATE}')
    a(f's_lshr_b32 s{S_T2}, s2, 3')
    a(f'buffer_load_dwordx4 v{V_L16}, {rb_}, 0 offen lds')
    if TOUCH:
        srd(a, R_TB, S_WQ, 512 * 1024)
        a(f'v_lshlrev_b32 {u(2)}, 7, v0')
        a(f's_lshl_b32 s{S_T0}, s{S_T2}, 14')
        a(f's_add_u32 s{S_T1}, s{S_T0}, 8192')
        a(f'buffer_load_dword v{KA+16}, {u(2)}, {tb}, s{S_T0} offen')
        a(f'buffer_load_dword v{KA+17}, {u(2)}, {tb}, s{S_T1} offen')
        a(f'v_and_b32 {u(3)}, 32, v0')
        a(f'v_lshlrev_b32 {u(3)}, 10, {u(3)}')
        a(f'v_and_b32 {u(2)}, 0xfff, {u(2)}')
        a(f'v_add_u32 {u(3)}, {u(3)}, {u(2)}')
        a(f's_and_b32 s{S_T3}, s2, 7')
        a(f's_lshl_b32 s{S_T3}, s{S_T3}, 12')
        a(f's_lshl_b32 s{S_T0}, s{S_T2}, 16')
        a(f's_add_u32 s{S_T3}, s{S_T3}, s{S_T0}')
        a(f'buffer_load_dword v{KA+18}, {u(3)}, {xs}, s{S_T3} offen')
    stamp(11, 1)
    a('s_barrier')
    stamp(1)
    a('s_branch KG_KV')
    a.label('KG_N0')
    a(f's_cmp_lt_u32 s{S_W}, 4')
    a('s_cbranch_scc1 KG_N1')
    if PRET:
        a(f's_getpc_b64 s[{R_A}:{R_A+1}]')
        a.label('KG_PC')
        a(f's_mov_b32 s{R_A+2}, KG_END-KG_PC')
        a(f's_mov_b32 s{R_A+3}, 0x20000')
        a(f's_lshl_b32 s{S_T0}, s{S_W}, 13')
        a(f's_sub_u32 s{S_T1}, s{S_T0}, 0x8000')
        a(f'v_lshlrev_b32 v212, 7, v0')
        a(f'buffer_load_dword v213, v212, {ra}, s{S_T1} offen')
        a(f'buffer_load_dword v214, v212, {ra}, s{S_T0} offen')
    a('s_branch KG_ATT')
    a.label('KG_N1')
    a('s_setprio 2')
    a(f's_cmp_lg_u32 s{S_W}, 1')
    a('s_cbranch_scc1 KG_N2')
    a(f's_mov_b32 s{S_T3}, {WS_ROOT}')
    a(f'v_mov_b32 {u(2)}, 0')
    a('s_waitcnt lgkmcnt(0)')
    srd(a, R_WS, S_WS, WS_SIZE)
    a(f'buffer_load_dword {u(3)}, {u(2)}, {ws}, s{S_T3} offen{SC}')
    a('s_barrier')
    stamp(1)
    a('s_branch KG_TAG')
    a.label('KG_N2')
    S_O, S_L = S_P, S_P + 4
    assert S_O + 8 <= S_A
    S_PV = S_NH
    LK = LOAD_D // 2
    assert L_X == 0 and 1 <= LK <= 7
    a(f's_mov_b32 s{S_PV}, {-LK}')
    a(f's_mov_b32 s{R_A+3}, 0x20000')
    a(f's_cmp_eq_u32 s{S_HW}, 3')
    a('s_cbranch_scc1 KG_LDW')
    def ld_tail(tag, n, flag, first=None):
        a(f'v_mov_b32 {u(6)}, s{S_PV}')
        a(f's_cmp_le_i32 s{S_PV}, 0')
        a(f's_cbranch_scc1 KG_LL{tag}')
        if first: first()
        a(f's_waitcnt vmcnt({n*LK})')
        a(f'ds_write_b32 v{V_Z}, {u(6)} offset:{4*flag}')
        stamp(9, 1)
        if FST:
            a(f's_cmp_lg_u32 s{S_PV}, 1')
            a(f's_cbranch_scc1 KG_FS{tag}')
            stamp(7, 1)
            a.label(f'KG_FS{tag}')
        a(f's_cmp_lt_i32 s{S_PV}, {8-LK}')
        a(f's_cbranch_scc1 KG_LL{tag}')
        for j in range(LK):
            a(f'v_mov_b32 {u(6)}, {8-LK+1+j}')
            a(f's_waitcnt vmcnt({n*(LK-1-j)})')
            a(f'ds_write_b32 v{V_Z}, {u(6)} offset:{4*flag}')
            if j < 2: stamp(10 + j, 1)
        a('s_branch KG_H2B')
    xaddr()
    a(f's_lshr_b32 s{S_T1}, s{S_HG}, 1')
    for k in range(3):
        a(f's_add_u32 s{S_T1}, s{S_T1}, 1')
        a(f's_and_b32 s{S_T1}, s{S_T1}, 3')
        xpair(S_O + k, S_L + k, S_T1)
    a(f's_mov_b32 s{R_A+2}, {2048 * 1024}')
    a(f's_mov_b32 s{S_T2}, 0')
    a('s_waitcnt lgkmcnt(0)')
    a(f's_mov_b64 s[{R_A}:{R_A+1}], s[{S_X}:{S_X+1}]')
    stamp(8, 1)
    a('s_barrier')
    stamp(1)
    a.label('KG_LLX')
    a(f's_add_i32 s{S_PV}, s{S_PV}, 1')
    for k in range(3):
        a(f's_mov_b32 m0, s{S_L+k}')
        a(f's_add_u32 s{S_L+k}, s{S_L+k}, 8192')
        a(f'buffer_load_dwordx4 {u(4)}, {ra}, s{S_O+k} offen lds')
        a(f'buffer_load_dwordx4 {u(5)}, {ra}, s{S_O+k} offen offset:1024 lds')
        a(f's_add_u32 s{S_O+k}, s{S_O+k}, 128')
        if ROT: a(f's_bitset0_b32 s{S_O+k}, 10')
    def kx_wait():
        a(f's_cmp_lg_u32 s{S_T2}, 0')
        a('s_cbranch_scc1 KG_KXD')
        a.label('KG_KXW')
        a(f'ds_read_b32 {u(7)}, v{V_Z} offset:{4*F_KX}')
        a('s_waitcnt lgkmcnt(0)')
        a(f'v_readfirstlane_b32 s{S_T2}, {u(7)}')
        a(f's_cmp_lg_u32 s{S_T2}, 0')
        a('s_cbranch_scc1 KG_KXD')
        a('s_sleep 1')
        a(f's_sub_u32 s{S_LIM}, s{S_LIM}, 1')
        a('s_cbranch_scc0 KG_KXW')
        a(f's_mov_b32 s{S_LIM}, 0')
        a.label('KG_KXD')
    ld_tail('X', 6, F_CX, kx_wait)
    a.label('KG_LDW')
    a(f'v_lshrrev_b32 {u(0)}, 3, v0')
    a(f'v_and_b32 {u(1)}, 7, v0')
    a(f'v_and_b32 {u(2)}, 1, v{V_G}')
    a(f'v_lshlrev_b32 {u(2)}, 2, {u(2)}')
    a(f'v_xor_b32 {u(2)}, {u(2)}, {u(1)}')
    a(f'v_lshlrev_b32 {u(2)}, 4, {u(2)}')
    a(f'v_lshl_add_u32 {u(2)}, {u(0)}, 10, {u(2)}')
    a(f's_lshl_b32 s{S_T0}, s{S_HG}, 7')
    a(f'v_add_u32 {u(2)}, s{S_T0}, {u(2)}')
    for j in range(1, 4):
        a(f'v_add_u32 {u(2+j)}, {7168*j}, {u(2)}')
    if ROT: a(f's_lshl_b32 s{S_O}, s{S_ROT}, 9')
    else: a(f's_mov_b32 s{S_O}, 0')
    a(f's_mov_b32 s{S_L}, {L_WQ}')
    a(f's_mov_b32 s{R_A+2}, {512 * 1024}')
    a('s_waitcnt lgkmcnt(0)')
    a(f's_mov_b64 s[{R_A}:{R_A+1}], s[{S_WQ}:{S_WQ+1}]')
    stamp(8, 1)
    a('s_barrier')
    stamp(1)
    a.label('KG_LLW')
    a(f's_add_i32 s{S_PV}, s{S_PV}, 1')
    for k in range(2):
        a(f's_mov_b32 m0, s{S_L}')
        a(f's_add_u32 s{S_L}, s{S_L}, 4096')
        for j in range(4):
            a(f'buffer_load_dwordx4 {u(2+j)}, {ra}, s{S_O} offen offset:{1024*j} lds')
        a(f's_add_u32 s{S_O}, s{S_O}, 32768')
        if ROT and k == 1: a(f's_bitset0_b32 s{S_O}, 19')
        if k == 0: a(f's_waitcnt vmcnt({8*LK})')
    ld_tail('W', 8, F_CW)

    uid = [0]
    def lds_wait(flag, val, vtmp, sleep=1, addr=None, sdst=None):
        uid[0] += 1; u = uid[0]
        addr = V_Z if addr is None else addr
        sdst = S_T0 if sdst is None else sdst
        a.label(f'KG_LW{u}')
        a(f'ds_read_b32 v{vtmp}, v{addr} offset:{4*flag}')
        a('s_waitcnt lgkmcnt(0)')
        a(f'v_readfirstlane_b32 s{sdst}, v{vtmp}')
        a(f's_cmp_ge_u32 s{sdst}, {val}')
        a(f's_cbranch_scc1 KG_LD{u}')
        a(f's_sleep {sleep}')
        a(f's_sub_u32 s{S_LIM}, s{S_LIM}, 1')
        a(f's_cbranch_scc0 KG_LW{u}')
        a(f's_mov_b32 s{S_LIM}, 0')
        a.label(f'KG_LD{u}')
    def lds_add(flag, vtmp):
        a(f'v_mov_b32 v{vtmp}, 1')
        a('s_mov_b64 exec, 1')
        a(f'ds_add_u32 v{V_Z}, v{vtmp} offset:{4*flag}')
        a('s_mov_b64 exec, -1')
    def get_tag(vtmp):
        a(f'ds_read_b32 v{vtmp}, v{V_Z} offset:{4*F_TAG}')
        a('s_waitcnt lgkmcnt(0)')
        a(f'v_readfirstlane_b32 s{S_TAG}, v{vtmp}')

    V_OQ, V_OV = 2, 3
    V_M = 4
    V_H = 6
    V_Q = 8
    V_S = 16
    V_P = 48
    V_O = 64
    V_K = 96
    V_V = 128
    V_T = 192
    S_N = S_KH
    V_PGA, V_PGV, V_LK = V_T + 16, V_T + 17, V_T + 18
    a.label('KG_ATT')
    a('s_setprio 1')
    a(f's_and_b32 s{S_CT}, s{S_W}, 1')
    a(f's_bfe_u32 s{S_A}, s{S_W}, 0x10001')
    a(f's_mov_b32 s{S_N}, 0')
    a('v_and_b32 v1, 31, v0')
    a(f'v_lshrrev_b32 v{V_H}, 5, v0')
    V_XA = V_T
    V_WA = V_T + 4
    t = lambda i: f'v{V_T+8+i}'
    a(f'v_bfe_u32 {t(0)}, v0, 1, 3')
    a(f's_lshl_b32 s{S_T0}, s{S_A}, 12')
    a(f'v_lshlrev_b32 {t(1)}, 7, v1')
    a(f'v_add_u32 {t(1)}, s{S_T0}, {t(1)}')
    for ks in range(4):
        a(f'v_add_u32 {t(2)}, {2*ks}, v{V_H}')
        a(f'v_xor_b32 {t(2)}, {t(2)}, {t(0)}')
        a(f'v_lshl_add_u32 v{V_XA+ks}, {t(2)}, 4, {t(1)}')
    a(f'v_bfe_u32 {t(0)}, v0, 2, 2')
    a(f'v_and_b32 {t(1)}, 3, v0')
    a(f'v_bfe_u32 {t(2)}, v0, 4, 1')
    a(f'v_lshl_add_u32 {t(3)}, v{V_H}, 3, {t(0)}')
    a(f'v_lshlrev_b32 {t(3)}, 7, {t(3)}')
    a(f'v_lshrrev_b32 {t(4)}, 1, {t(1)}')
    a(f'v_and_b32 {t(5)}, 1, {t(1)}')
    a(f'v_lshrrev_b32 {t(6)}, 1, {t(0)}')
    a(f'v_lshlrev_b32 {t(6)}, 2, {t(6)}')
    a(f'v_lshl_add_u32 {t(7)}, {t(2)}, 1, {t(4)}')
    a(f's_lshl_b32 s{S_T0}, s{S_CT}, 2')
    a(f'v_add_u32 {t(7)}, s{S_T0}, {t(7)}')
    a(f'v_xor_b32 {t(7)}, {t(7)}, {t(6)}')
    a(f'v_lshl_add_u32 {t(7)}, {t(7)}, 4, {t(3)}')
    a(f'v_lshl_add_u32 v{V_WA}, {t(5)}, 3, {t(7)}')
    a(f'v_add_u32 v{V_WA}, {L_WQ}, v{V_WA}')
    a(f'v_lshlrev_b32 v{V_OQ}, 4, v0')
    a(f'v_add_u32 v{V_LK}, {L_PRE}, v{V_OQ}')
    a(f's_lshl_b32 s{S_T0}, s{S_W}, 2')
    a(f'v_add_u32 v{V_PGA}, s{S_T0}, v{V_Z}')
    a(f'v_mov_b32 v{V_PGV}, 1')
    a(f's_mov_b32 s{S_VM}, 0xffff')
    a(f's_mov_b32 s{S_VM+1}, 0xffff')
    a(f'v_and_b32 {t(0)}, 27, v1')
    a(f'v_cmp_eq_u32 vcc, 16, {t(0)}')
    a(f'v_mov_b32 {t(1)}, 0x3f803f80')
    a(f'v_mov_b32 v{V_M}, 0')
    a(f'v_mov_b32 v{V_M+1}, 0')
    a(f'v_cndmask_b32 {t(1)}, 0, {t(1)}, vcc')
    for i in range(64):
        a(f'v_mov_b32 v{V_V+i}, {t(1)}')
    QA = V_S
    if QPIPE == 2:
        for i in range(16):
            a(f'v_mov_b32 v{QA+i}, 0')
    QB = (V_O, V_S + 16)
    a(f's_mov_b32 s{S_SEEN}, 0')
    a('s_waitcnt lgkmcnt(0)')
    srd(a, R_WS, S_WS, WS_SIZE)
    stamp(11, 1)
    a('s_barrier')
    stamp(1)
    def q_wait(c):
        a(f's_cmp_gt_u32 s{S_SEEN}, {c}')
        a(f's_cbranch_scc1 KG_QG{c}')
        a.label(f'KG_QP{c}')
        a(f'ds_read_b64 {vr(V_T+8,2)}, v{V_Z} offset:{4*F_CX}')
        a('s_waitcnt lgkmcnt(0)')
        a(f'v_min_u32 {t(0)}, {t(0)}, {t(1)}')
        a('s_nop 0')
        a(f'v_readfirstlane_b32 s{S_SEEN}, {t(0)}')
        a(f's_cmp_gt_u32 s{S_SEEN}, {c}')
        a(f's_cbranch_scc1 KG_QG{c}')
        if c < 7 or Q7_SLEEP:
            a('s_sleep 1')
        a(f's_sub_u32 s{S_LIM}, s{S_LIM}, 1')
        a(f's_cbranch_scc0 KG_QP{c}')
        a(f's_mov_b32 s{S_LIM}, 0')
        a.label(f'KG_QG{c}')
        if c in (0, 4, 6, 7): stamp({0: 7, 4: 8, 6: 9, 7: 10}[c], 1)
    def q_reads(c):
        b = QB[c & 1]
        for ks in range(4):
            a(f'ds_read_b128 {vr(b+4*ks,4)}, v{V_XA+ks} offset:{c*8192}')
            a(f'ds_read_b64_tr_b16 {vr(b+16+4*ks,2)}, v{V_WA} offset:{c*8192+ks*2048}')
            a(f'ds_read_b64_tr_b16 {vr(b+16+4*ks+2,2)}, v{V_WA} offset:{c*8192+ks*2048+512}')
    def progress():
        a(f'ds_write_b32 v{V_PGA}, v{V_PGV} offset:{4*(F_PGW-4)}')
    spins = []
    def pre_check(n):
        uid[0] += 1; u = uid[0]
        a(f's_cmp_lt_u32 s{S_N}, {n}')
        a(f's_cbranch_scc1 KG_SP{u}')
        a.label(f'KG_SR{u}')
        spins.append(('pre', u, n))
    def pos_check():
        uid[0] += 1; u = uid[0]
        a(f's_cmp_lt_u32 s{S_KOFF}, s{S_KB}')
        a(f's_cbranch_scc1 KG_SP{u}')
        a.label(f'KG_SR{u}')
        spins.append(('q', u, 0))
    def emit_spins():
        for kind, u, n in spins:
            a.label(f'KG_SP{u}')
            if kind == 'pre':
                a(f'ds_read_b32 v{V_T+8}, v{V_Z} offset:{4*F_PRE}')
                a('s_waitcnt lgkmcnt(0)')
                a(f'v_readfirstlane_b32 s{S_N}, v{V_T+8}')
                a(f's_cmp_ge_u32 s{S_N}, {n}')
                a(f's_cbranch_scc1 KG_SR{u}')
            else:
                a(f'ds_read_b32 v{V_T+8}, v{V_Z} offset:{4*F_POS}')
                a('s_waitcnt lgkmcnt(0)')
                a(f'v_readfirstlane_b32 s{S_KOFF}, v{V_T+8}')
                a(f's_cmp_ge_u32 s{S_KOFF}, s{S_KB}')
                a(f's_cbranch_scc1 KG_SR{u}')
                a('s_sleep 1')
            a(f's_sub_u32 s{S_LIM}, s{S_LIM}, 1')
            a(f's_cbranch_scc0 KG_SP{u}')
            a(f's_mov_b32 s{S_LIM}, 0')
            a(f's_branch KG_SR{u}')
        spins.clear()

    def load_k(slot, off):
        a(f'buffer_load_dwordx4 {vr(V_K+4*slot,4)}, v{V_OQ}, {ws}, s{S_KOFF} offen offset:{off}{KVSC}')
    def kv_group(c, adv=True):
        load_k(c & 7, 0)
        load_k((c + 1) & 7, 2048)
        a(f's_mov_b64 exec, s[{S_VM}:{S_VM+1}]')
        for j in range(2):
            sl = (c + j) & 7
            a(f'buffer_load_dwordx4 {vr(V_V+8*sl,4)}, v{V_OQ}, {ws}, s{S_KOFF} offen offset:{2048*j+1024}{KVSC}')
            a(f'buffer_load_dwordx4 {vr(V_V+8*sl+4,4)}, v{V_OQ}, {ws}, s{S_KOFF} offen offset:{2048*j+1280}{KVSC}')
        a('s_mov_b64 exec, -1')
        if adv:
            a(f's_add_u32 s{S_KOFF}, s{S_KOFF}, 4096')
    def pre_reads(c, n=1):
        for j in range(c, c + n):
            a(f'ds_read_b128 {vr(V_K+4*j,4)}, v{V_LK} offset:{2048*j}')
        a(f's_mov_b64 exec, s[{S_VM}:{S_VM+1}]')
        for j in range(c, c + n):
            a(f'ds_read_b128 {vr(V_V+8*j,4)}, v{V_LK} offset:{2048*j+1024}')
            a(f'ds_read_b128 {vr(V_V+8*j+4,4)}, v{V_LK} offset:{2048*j+1280}')
        a('s_mov_b64 exec, -1')
    def mfma_s(t_, slot):
        a(f'v_mfma_f32_32x32x16_bf16 {vr(V_S+16*t_,16)}, {vr(V_K+4*slot,4)}, {vr(V_Q+4*t_,4)}, 0')
    def mfma_pv(t_, slot, pp, zero=False):
        cc = '0' if zero else vr(V_O+16*t_, 16)
        a(f'v_mfma_f32_32x32x16_bf16 {vr(V_O+16*t_,16)}, {vr(V_V+8*slot+4*pp,4)}, {vr(V_P+8*t_+4*pp,4)}, {cc}')
    def cv(t_, i):
        a(f'v_cvt_pk_bf16_f32 v{V_P+8*t_+i}, v{V_S+16*t_+2*i}, v{V_S+16*t_+2*i+1}')

    if QPIPE == 2:
        S_QC = S_CNT
        def qw(k):
            a(f's_cmp_gt_u32 s{S_SEEN}, s{S_QC}')
            a(f's_cbranch_scc0 KG_QS{k}')
            a.label(f'KG_QR{k}')
        def qm(b, wait=True):
            for ks in range(4):
                if wait: a(f's_waitcnt lgkmcnt({min(15, 21 - 3*ks)})')
                a(f'v_mfma_f32_32x32x16_bf16 {vr(QA,16)}, {vr(b+16+4*ks,4)}, {vr(b+4*ks,4)}, {vr(QA,16)}')
        a(f's_mov_b32 s{S_QC}, 0')
        a('s_branch KG_QS0')
        for k in range(3):
            a.label(f'KG_QS{k}')
            a(f'ds_read_b64 {vr(V_T+8,2)}, v{V_Z} offset:{4*F_CX}')
            a('s_waitcnt lgkmcnt(0)')
            a(f'v_min_u32 {t(0)}, {t(0)}, {t(1)}')
            a('s_nop 0')
            a(f'v_readfirstlane_b32 s{S_SEEN}, {t(0)}')
            a(f's_cmp_gt_u32 s{S_SEEN}, s{S_QC}')
            a(f's_cbranch_scc1 KG_QR{k}')
            a('s_sleep 1')
            a(f's_sub_u32 s{S_LIM}, s{S_LIM}, 1')
            a(f's_cbranch_scc0 KG_QS{k}')
            a(f's_mov_b32 s{S_LIM}, 0')
            a(f's_branch KG_QR{k}')
        def fread():
            a(f'ds_read_b128 {vr(V_T+8,4)}, v{V_Z} offset:{4*F_CX}')
        def qg(n_, cn, ks):
            a(f'ds_read_b128 {vr(n_+4*ks,4)}, v{V_XA+ks} offset:{cn*8192}')
            a(f'ds_read_b64_tr_b16 {vr(n_+16+4*ks,2)}, v{V_WA} offset:{cn*8192+ks*2048}')
            a(f'ds_read_b64_tr_b16 {vr(n_+16+4*ks+2,2)}, v{V_WA} offset:{cn*8192+ks*2048+512}')
        def qf(b, ks):
            a(f'v_mfma_f32_32x32x16_bf16 {vr(QA,16)}, {vr(b+16+4*ks,4)}, {vr(b+4*ks,4)}, {vr(QA,16)}')
        a.label('KG_QR0')
        fread()
        q_reads(0)
        def qstep(cn):
            b = QB[1 - cn]; n_ = QB[cn]
            a('s_waitcnt lgkmcnt(9)')
            qf(b, 0)
            a(f'v_min_u32 {t(0)}, {t(0)}, {t(1)}')
            a(f's_add_u32 s{S_QC}, s{S_QC}, 1')
            a(f'v_readfirstlane_b32 s{S_SEEN}, {t(0)}')
            if cn == 0:
                for r in [V_XA + ks for ks in range(4)] + [V_WA]:
                    a(f'v_add_u32 v{r}, 0x4000, v{r}')
            qw(1 + cn)
            fread()
            qg(n_, cn, 0)
            for ks in range(1, 4):
                a('s_waitcnt lgkmcnt(10)')
                qf(b, ks)
                qg(n_, cn, ks)
        a.label('KG_QLP')
        qstep(1)
        a(f's_cmp_eq_u32 s{S_QC}, 7')
        a('s_cbranch_scc1 KG_QX')
        qstep(0)
        a('s_branch KG_QLP')
        a.label('KG_QX')
        if E('QST', 0):
            stamp(7); a('s_waitcnt lgkmcnt(0)')
        a('s_waitcnt lgkmcnt(9)')
        qf(QB[1], 0)
        a(f'v_readfirstlane_b32 s{S_N}, {t(2)}')
        pre_check(1)
        pre_reads(0)
        for ks in range(1, 4):
            a(f's_waitcnt lgkmcnt({12 - 3*ks})')
            qf(QB[1], ks)
        progress()
        stamp(2)
    elif QPIPE:
        q_wait(0); q_reads(0)
        for c in range(8):
            if c < 7:
                q_wait(c + 1); q_reads(c + 1)
            else:
                a('s_waitcnt lgkmcnt(0)')
                progress()
                stamp(2)
                pre_check(1)
                pre_reads(0)
            b = QB[c & 1]
            for ks in range(4):
                if c < 7: a(f's_waitcnt lgkmcnt({min(15, 21 - 3*ks)})')
                cc = vr(QA, 16) if (c or ks) else '0'
                a(f'v_mfma_f32_32x32x16_bf16 {vr(QA,16)}, {vr(b+16+4*ks,4)}, {vr(b+4*ks,4)}, {cc}')
    else:
        for c in range(8):
            q_wait(c); q_reads(c)
            b = QB[c & 1]
            for ks in range(4):
                a(f's_waitcnt lgkmcnt({9 - 3*ks})')
                cc = vr(QA, 16) if (c or ks) else '0'
                a(f'v_mfma_f32_32x32x16_bf16 {vr(QA,16)}, {vr(b+16+4*ks,4)}, {vr(b+4*ks,4)}, {cc}')
        progress()
        stamp(2)

    def body(sub, peel, lds):
        def ex(t_, i):
            r = V_S + 16*t_ + i
            if sub:
                a(f'v_sub_f32 v{r}, v{r}, v{V_M+t_}')
            a(f'v_exp_f32 v{r}, v{r}')
        for b in range(8):
            for t_ in range(2):
                if peel and t_ == 0 and LST:
                    a('s_memtime s[100:101]')
                ex(t_, 0); ex(t_, 1)
                if t_ == 1:
                    mfma_pv(0, b, 1)
                elif not (peel and b == 0):
                    mfma_pv(1, (b - 1) & 7, 1)
                if peel and t_ == 0 and b < 7:
                    pre_check(b + 2)
                    pre_reads(b + 1)
                ex(t_, 2); ex(t_, 3); ex(t_, 4); ex(t_, 5)
                if t_ == 1:
                    if peel or (lds and b in (1, 7)):
                        a('s_waitcnt lgkmcnt(0)')
                    elif not lds and b & 1:
                        a('s_waitcnt vmcnt(12)')
                    if peel and LST:
                        a(f'v_writelane_b32 v{V_T+23}, s100, {8+b}')
                    mfma_s(0, (b + 1) & 7)
                    if lds and b == (6 if peel else 1):
                        progress()
                    if LST and lds and not peel and b == 1:
                        a(f'v_writelane_b32 v{V_T+23}, s100, m0')
                    if peel and b == 6:
                        pos_check()
                        pre_reads(0, 2)
                else:
                    mfma_s(1, b)
                    if peel and b == 6:
                        a(f'v_add_u32 v{V_PGV}, 1, v{V_PGV}')
                    if peel and b == 7:
                        pre_reads(2, 2)
                    if lds and not peel and b == 0:
                        pre_reads(4, 4)
                        a(f'v_add_u32 v{V_PGV}, 1, v{V_PGV}')
                    if lds and not peel and b == 4:
                        pos_check()
                        pre_reads(0, 4)
                    if not lds and b % 2 == 0:
                        kv_group(b + 6)
                ex(t_, 6); ex(t_, 7)
                cv(t_, 0); cv(t_, 1); cv(t_, 2); cv(t_, 3)
                if peel and b == 6 and t_ == 0:
                    a(f'v_add_u32 v{V_LK}, {L_WQ - L_PRE}, v{V_LK}')
                if lds and not peel and b == 3 and t_ == 0:
                    a(f'v_add_u32 v{V_LK}, 0x4000, v{V_LK}')
                    a(f's_add_u32 s{S_KB}, s{S_KB}, 1')
                    a(f'v_and_b32 v{V_LK}, 0x1ffff, v{V_LK}')
                ex(t_, 8); ex(t_, 9)
                mfma_pv(t_, b, 0, zero=(peel and b == 0))
                for i in range(10, 16):
                    ex(t_, i)
                cv(t_, 4); cv(t_, 5); cv(t_, 6); cv(t_, 7)

    def attn_pass(tag, sub, first):
        if first:
            if not QPIPE:
                pre_check(1)
                pre_reads(0)
            stamp(3)
            a('s_nop 4')
            for i in range(8):
                a(f'v_cvt_pk_bf16_f32 v{V_Q+i}, v{QA+2*i}, v{QA+2*i+1}')
            a('s_waitcnt lgkmcnt(0)')
            mfma_s(0, 0)
            a(f's_mov_b32 s{S_CNT}, 6')
            a(f's_mov_b32 s{S_KOFF}, 0')
            a(f's_mov_b32 s{S_KB}, 1')
            stamp(4)
            a('s_nop 4')
            body(False, True, True)
        else:
            a(f's_mov_b32 s{S_KOFF}, {WS_KV}')
            for c in range(0, 6, 2):
                kv_group(c)
            for i in range(32):
                a(f'v_mov_b32 v{V_O+i}, 0')
            for i in range(4):
                a(f'v_mov_b32 v{V_P+12+i}, 0')
            a('s_waitcnt vmcnt(12)')
            mfma_s(0, 0)
            a(f's_mov_b32 s{S_CNT}, 8')
            a('s_nop 10')
        a.label(f'KG_LOOP{tag}')
        if LST and first:
            a('s_memtime s[100:101]')
            a(f's_mov_b32 m0, s{S_CNT}')
        body(sub, False, first)
        a(f's_sub_u32 s{S_CNT}, s{S_CNT}, 1')
        a(f's_cmp_lg_u32 s{S_CNT}, 0')
        a(f's_cbranch_scc1 KG_LOOP{tag}')
        if first:
            last_body()
        else:
            mfma_pv(1, 7, 1)

    S_OA, S_FA, S_LOC, S_BAD = S_P, S_SEEN, S_MH, S_NH
    V_TG, V_ZR, V_PK, V_RC = V_T, V_T + 2, V_T + 4, V_T + 9
    outl = []
    def st2(ins):
        uid[0] += 1; k = uid[0]
        a(f's_cmp_eq_u32 s{S_LOC}, 1')
        a(f's_cbranch_scc0 KG_SG{k}')
        a(ins + LOCSC)
        a.label(f'KG_SH{k}')
        outl.append((k, ins))
    def rng(t_):
        a(f'v_cmp_le_f32 s[{S_C0}:{S_C0+1}], s{S_T0}, v{V_O+16*t_+8}')
        a(f'v_cmp_ge_f32 s[{S_C1}:{S_C1+1}], s{S_T1}, v{V_O+16*t_+8}')
        a(f'v_rcp_f32 v{V_RC}, v{V_O+16*t_+8}')
        a(f's_and_b64 s[{S_C0}:{S_C0+1}], s[{S_C0}:{S_C0+1}], s[{S_C1}:{S_C1+1}]')
        a(f's_cmp_eq_u64 s[{S_C0}:{S_C0+1}], -1')
    def o_store(t_):
        for i in range(8):
            a(f'v_mul_f32 v{V_O+16*t_+i}, v{V_RC}, v{V_O+16*t_+i}')
        for i in range(4):
            a(f'v_cvt_pk_bf16_f32 v{V_PK+i}, v{V_O+16*t_+2*i}, v{V_O+16*t_+2*i+1}')
        a(f'v_min_u32 v{V_PK+3}, -2, v{V_PK+3}')
        st2(f'buffer_store_dwordx4 {vr(V_PK,4)}, v{V_OQ}, {ws}, s{S_OA} offen offset:{1024*t_}')
    def o_flag(t_):
        a('s_mov_b64 exec, 1')
        st2(f'buffer_store_dword v{V_TG}, v{V_ZR}, {ws}, s{S_FA} offen offset:{4*t_}')
        a('s_mov_b64 exec, -1')
    def last_body():
        steps = [(0, c) for c in range(8)] + [(1, c) for c in range(8)]
        def pv(tile, buf, slot, pp):
            a(f'v_mfma_f32_32x32x16_bf16 {vr(V_O+16*tile,16)}, {vr(V_V+8*slot+4*pp,4)}, {vr(V_P+8*buf+4*pp,4)}, {vr(V_O+16*tile,16)}')
        def ex(p_, i):
            a(f'v_exp_f32 v{V_S+16*p_+i}, v{V_S+16*p_+i}')
        for n, (tile, c) in enumerate(steps):
            p_ = n & 1
            pt, pc = steps[n - 1] if n else (1, 7)
            ex(p_, 0); ex(p_, 1)
            pv(pt, 1 - p_, pc, 1)
            ex(p_, 2); ex(p_, 3); ex(p_, 4); ex(p_, 5)
            if n == 2:
                a('s_waitcnt lgkmcnt(0)')
            if n < 15:
                nt, nc = steps[n + 1]
                a(f'v_mfma_f32_32x32x16_bf16 {vr(V_S+16*(1-p_),16)}, {vr(V_K+4*nc,4)}, {vr(V_Q+4*nt,4)}, 0')
            if n == 0:
                pre_reads(4, 4)
                a(f'ds_read_b32 v{V_ZR}, v{V_Z} offset:{4*F_LOC}')
                a(f'v_add_u32 v{V_PGV}, 1, v{V_PGV}')
            if n == 2:
                progress()
                a(f'v_readfirstlane_b32 s{S_LOC}, v{V_ZR}')
                a(f'v_add_u32 v{V_PGV}, 1, v{V_PGV}')
            if n == 9:
                rng(0)
                a(f's_cselect_b32 s{S_BAD}, 0, 1')
                a('s_cbranch_scc0 KG_L9')
                o_store(0)
                a.label('KG_L9')
            if n == OF_STEP:
                a(f's_cmp_lg_u32 s{S_BAD}, 0')
                a('s_cbranch_scc1 KG_L12')
                a(f'ds_write_b32 v{V_Z}, v{V_PGV} offset:{4*F_ADONE}')
                a.label('KG_L12')
            ex(p_, 6); ex(p_, 7)
            cv(p_, 0); cv(p_, 1); cv(p_, 2); cv(p_, 3)
            ex(p_, 8); ex(p_, 9)
            pv(tile, p_, c, 0)
            for i in range(10, 16):
                ex(p_, i)
            cv(p_, 4); cv(p_, 5); cv(p_, 6); cv(p_, 7)
        a('s_nop 1')
        pv(1, 1, 7, 1)

    a(f's_lshl_b32 s{S_T2}, s{S_QG}, 1')
    a(f's_add_u32 s{S_T2}, s{S_T2}, s{S_A}')
    a(f's_lshl_b32 s{S_T3}, s{S_HG}, 1')
    a(f's_add_u32 s{S_T3}, s{S_T3}, s{S_CT}')
    a(f's_lshl_b32 s{S_T2}, s{S_T2}, 4')
    a(f's_add_u32 s{S_T2}, s{S_T2}, s{S_T3}')
    a(f's_lshl_b32 s{S_OA}, s{S_T2}, 11')
    a(f's_add_u32 s{S_OA}, s{S_OA}, {WS_O}')
    a(f's_mov_b32 s{S_T0}, {f32_bits(2.0**-30)}')
    a(f's_mov_b32 s{S_T1}, {f32_bits(2.0**30)}')
    attn_pass('A', False, True)
    stamp(5)
    a('s_nop 12')
    rng(1)
    a('s_cbranch_scc0 KG_SLOW')
    a(f's_cmp_lg_u32 s{S_BAD}, 0')
    a('s_cbranch_scc1 KG_SLOW')
    a.label('KG_OUT')
    o_store(1)
    progress()
    if ST in (5, 6, 7): a('s_waitcnt vmcnt(0)')
    stamp(6)
    dump(1)
    a('s_endpgm')
    emit_spins()

    a.label('KG_SLOW')
    lds_wait(F_N, 127, V_T + 8, sdst=S_T2)
    a('s_waitcnt vmcnt(0)')
    a(f'v_mov_b32 v{V_M}, 0xff800000')
    a(f'v_mov_b32 v{V_M+1}, 0xff800000')
    a(f's_mov_b32 s{S_KOFF}, {WS_KV}')
    a(f's_mov_b32 s{S_CNT}, 64')
    a.label('KG_MAXLOOP')
    load_k(0, 0)
    a(f's_add_u32 s{S_KOFF}, s{S_KOFF}, 2048')
    a('s_waitcnt vmcnt(0)')
    mfma_s(0, 0)
    mfma_s(1, 0)
    a('s_nop 12')
    for t_ in range(2):
        for i in range(8):
            a(f'v_max3_f32 v{V_M+t_}, v{V_S+16*t_+2*i}, v{V_S+16*t_+2*i+1}, v{V_M+t_}')
    a(f's_sub_u32 s{S_CNT}, s{S_CNT}, 1')
    a(f's_cmp_lg_u32 s{S_CNT}, 0')
    a('s_cbranch_scc1 KG_MAXLOOP')
    for t_ in range(2):
        a(f'v_mov_b32 v{V_T+4+t_}, v{V_M+t_}')
    a('s_nop 1')
    for t_ in range(2):
        a(f'v_permlane32_swap_b32 v{V_M+t_}, v{V_T+4+t_}')
    a('s_nop 1')
    for t_ in range(2):
        a(f'v_max_f32 v{V_M+t_}, v{V_M+t_}, v{V_T+4+t_}')
    attn_pass('B', True, False)
    a('s_nop 12')
    a(f'v_rcp_f32 v{V_RC}, v{V_O+8}')
    a('s_nop 0')
    o_store(0)
    a(f'ds_write_b32 v{V_Z}, v{V_PGV} offset:{4*F_ADONE}')
    a(f'v_rcp_f32 v{V_RC}, v{V_O+24}')
    a('s_nop 0')
    a('s_branch KG_OUT')
    for k, ins in outl:
        a.label(f'KG_SG{k}')
        a(ins + SC)
        a(f's_branch KG_SH{k}')

    def hsetup():
        a(f's_lshl_b32 s{S_F}, s{S_HG}, 5')
        a(f's_add_u32 s{S_F}, s{S_F}, s{S_QG}')
        srd(a, R_WS, S_WS, WS_SIZE)

    def pg_wait(val, sleep=2, vb=V_U+4):
        uid[0] += 1; k = uid[0]
        a.label(f'KG_PW{k}')
        a(f'ds_read_b128 {vr(vb,4)}, v{V_Z} offset:{4*F_PGW}')
        a('s_waitcnt lgkmcnt(0)')
        a(f'v_min3_u32 v{vb}, v{vb}, v{vb+1}, v{vb+2}')
        a(f'v_min_u32 v{vb}, v{vb}, v{vb+3}')
        a('s_nop 0')
        a(f'v_readfirstlane_b32 s{S_T0}, v{vb}')
        a(f's_cmp_ge_u32 s{S_T0}, {val}')
        a(f's_cbranch_scc1 KG_PD{k}')
        a(f's_sleep {sleep}')
        a(f's_sub_u32 s{S_LIM}, s{S_LIM}, 1')
        a(f's_cbranch_scc0 KG_PW{k}')
        a(f's_mov_b32 s{S_LIM}, 0')
        a.label(f'KG_PD{k}')
    def kv_dma(s_cls, s_lds):
        for q in range(4):
            a(f's_mov_b32 m0, s{s_lds}')
            a(f's_add_u32 s{s_lds}, s{s_lds}, 4096')
            for j in range(4):
                a(f'buffer_load_dwordx4 v{V_L16}, {ws}, s{s_cls} offen offset:{1024*j}{KVSC} lds')
            a(f's_add_u32 s{s_cls}, s{s_cls}, 4096')
    def thr():
        a(f's_waitcnt vmcnt({THR})')
    S_TGX = S_MH
    def flag_store(base, idx=None, stag=None):
        idx = f's{S_F}' if idx is None else idx
        stag = S_TAG if stag is None else stag
        a(f's_lshr_b32 s{S_T0}, {idx}, 2')
        a(f's_lshl_b32 s{S_T0}, s{S_T0}, 7')
        a(f's_and_b32 s{S_T1}, {idx}, 3')
        a(f's_lshl_b32 s{S_T1}, s{S_T1}, 2')
        a(f's_add_u32 s{S_T0}, s{S_T0}, s{S_T1}')
        a(f's_add_u32 s{S_T0}, s{S_T0}, {base}')
        a(f'v_mov_b32 {u(0)}, 0')
        a(f'v_mov_b32 {u(1)}, s{stag}')
        a('s_mov_b64 exec, 1')
        a(f'buffer_store_dword {u(1)}, {u(0)}, {ws}, s{S_T0} offen{SC}')
        a('s_mov_b64 exec, -1')
    def join_flag(cnt, n, base):
        uid[0] += 1; k = uid[0]
        a(f'v_mov_b32 {u(0)}, 1')
        a('s_waitcnt vmcnt(0)')
        a('s_mov_b64 exec, 1')
        a(f'ds_add_rtn_u32 {u(1)}, v{V_Z}, {u(0)} offset:{4*cnt}')
        a('s_mov_b64 exec, -1')
        a('s_waitcnt lgkmcnt(0)')
        a(f'v_readfirstlane_b32 s{S_T0}, {u(1)}')
        a(f's_cmp_lg_u32 s{S_T0}, {n-1}')
        a(f's_cbranch_scc1 KG_JN{k}')
        flag_store(base)
        a.label(f'KG_JN{k}')
    S_NQ, S_NEW, S_LB, S_QU, S_PUB = S_P, S_KH, S_KB, S_SEEN, S_KOFF
    def glob_poll(tag, execmask, sleep, wide=True, lsh=7):
        a(f's_mov_b32 s{S_CNT}, {POLL_LIMIT}')
        a(f'v_lshlrev_b32 {u(0)}, {lsh}, v0')
        if execmask == 0xffffffff:
            a('s_mov_b32 exec_hi, 0')
        else:
            a(f's_mov_b64 exec, {execmask}')
        a.label(f'KG_GP{tag}')
        if wide:
            a(f'buffer_load_dwordx4 {vr(V_U+4,4)}, {u(0)}, {ws}, s{S_T1} offen{SC}')
            a('s_waitcnt vmcnt(0)')
            for i in range(4):
                a(f'v_xor_b32 {u(4+i)}, s{S_TGX if tag == "KV" else S_TAG}, {u(4+i)}')
            a(f'v_or3_b32 {u(4)}, {u(4)}, {u(5)}, {u(6)}')
            a(f'v_or_b32 {u(4)}, {u(4)}, {u(7)}')
            if tag == 'KV':
                a(f'v_lshlrev_b32 {u(5)}, 4, {u(4)}')
                a(f'v_cmp_ne_u32 vcc, 0, {u(5)}')
            else:
                a(f'v_cmp_ne_u32 vcc, 0, {u(4)}')
        else:
            a(f'buffer_load_dword {u(4)}, {u(0)}, {ws}, s{S_T1} offen{SC}')
            a('s_waitcnt vmcnt(0)')
            a(f'v_cmp_ne_u32 vcc, s{S_TAG}, {u(4)}')
        a(f's_sub_u32 s{S_CNT}, s{S_CNT}, 1')
        a(f's_cbranch_scc1 KG_GD{tag}')
        if tag == 'KV':
            S_DN = S_VM
            a(f's_and_b64 s[{S_C0}:{S_C0+1}], exec, vcc')
            a(f's_or_b64 s[{S_C1}:{S_C1+1}], s[{S_C0}:{S_C0+1}], s[{S_DN}:{S_DN+1}]')
            a('s_mov_b64 exec, -1')
            for c in range(8):
                m = 0xff << (8 * (c & 3))
                a(f's_and_b32 s{S_T0}, s{S_C1+(c>>2)}, {hex(m)}')
                a(f's_cselect_b32 s{S_T0}, 0, {hex(m)}')
                a(f's_cselect_b32 s{S_T2}, 0, {1 << c}')
                a(f's_or_b32 s{S_DN+(c>>2)}, s{S_DN+(c>>2)}, s{S_T0}')
                a(f's_or_b32 s{S_NEW}, s{S_NEW}, s{S_T2}')
            a('s_cbranch_scc0 KG_QE')
            a(f's_cmp_lg_u32 s{S_NQ}, 0')
            a('s_cbranch_scc1 KG_QL')
            pg_wait(1, 1, 16)
            a.label('KG_QL')
            a(f's_ff1_i32_b32 s{S_T0}, s{S_NEW}')
            a(f's_bitset0_b32 s{S_NEW}, s{S_T0}')
            a(f's_cmp_ge_u32 s{S_NQ}, 4')
            a('s_cbranch_scc1 KG_QQ')
            a(f'v_mov_b32 {u(1)}, s{S_NQ}')
            a(f's_add_u32 s{S_NQ}, s{S_NQ}, 1')
            a(f's_lshl_b32 s{S_T0}, s{S_T0}, 14')
            a(f's_add_u32 s{S_T0}, s{S_T0}, {WS_KV}')
            kv_dma(S_T0, S_LB)
            a('s_waitcnt vmcnt(16)')
            a(f'ds_write_b32 v{V_Z}, {u(1)} offset:{4*F_POS}')
            a('s_branch KG_QN')
            a.label('KG_QQ')
            a(f's_lshl_b32 s{S_QU}, s{S_QU}, 3')
            a(f's_or_b32 s{S_QU}, s{S_QU}, s{S_T0}')
            a.label('KG_QN')
            a(f's_cmp_lg_u32 s{S_NEW}, 0')
            a('s_cbranch_scc1 KG_QL')
            a(f'v_mov_b32 {u(1)}, s{S_NQ}')
            a('s_waitcnt vmcnt(0)')
            a(f'ds_write_b32 v{V_Z}, {u(1)} offset:{4*F_POS}')
            a.label('KG_QE')
            a(f's_and_b64 exec, s[{S_C0}:{S_C0+1}], s[{S_C0}:{S_C0+1}]')
        else:
            a('s_and_b64 exec, exec, vcc')
        a(f's_cbranch_scc0 KG_GD{tag}')
        a(f's_sleep {sleep}')
        a(f's_branch KG_GP{tag}')
        a.label(f'KG_GD{tag}')
        a('s_mov_b64 exec, -1')

    a.label('KG_KV')
    stamp(9, 1)
    hsetup()
    a(f's_mov_b32 s{S_KQ}, s{S_QG}')
    a(f'v_bfe_u32 {u(1)}, v0, 2, 2')
    a(f'v_and_b32 {u(2)}, 3, v0')
    a(f'v_lshl_add_u32 {u(1)}, v{V_G}, 3, {u(1)}')
    a(f'v_lshlrev_b32 {u(1)}, 5, {u(1)}')
    a(f'v_lshl_add_u32 {u(1)}, {u(2)}, 3, {u(1)}')
    a(f'v_add_u32 v{V_A2}, {L_KW}, {u(1)}')
    a(f's_lshl_b32 s{S_T2}, s{S_QG}, 12')
    a(f's_lshr_b32 s{S_T0}, s{S_RB}, 1')
    a(f's_lshl_b32 s{S_T0}, s{S_T0}, 11')
    a(f's_add_u32 s{S_T2}, s{S_T2}, s{S_T0}')
    a(f's_and_b32 s{S_T0}, s{S_RB}, 1')
    a(f's_lshl_b32 s{S_T0}, s{S_T0}, 8')
    a(f's_add_u32 s{S_T2}, s{S_T2}, s{S_T0}')
    a(f's_lshl_b32 s{S_T0}, s{S_TY}, 10')
    a(f's_add_u32 s{S_T2}, s{S_T2}, s{S_T0}')
    a(f's_lshl_b32 s{S_T3}, s{S_T2}, 1')
    a(f's_add_u32 s{S_T2}, s{S_T2}, {WS_KV}')
    assert WS_KVT == 0
    a(f's_lshl_b32 s{S_KOFF}, s{S_QG}, 3')
    a(f's_add_u32 s{S_KOFF}, s{S_KOFF}, s{S_HG}')
    lds_wait(F_TAGOK, 1, V_U)
    get_tag(V_U)
    a(f'v_and_b32 {u(2)}, 1, v{V_G}')
    a(f'v_lshrrev_b32 {u(3)}, 1, v{V_G}')
    a(f'v_lshlrev_b32 {u(4)}, 9, {u(2)}')
    a(f'v_lshl_add_u32 {u(4)}, v{V_I}, 4, {u(4)}')
    a(f'v_lshl_add_u32 {u(4)}, {u(3)}, 3, {u(4)}')
    a(f'v_lshlrev_b32 {u(6)}, 1, {u(4)}')
    a(f'v_mov_b32 v{KA+10}, s{S_TAG}')
    a(f'v_mov_b32 v{KA+11}, s{S_TAG}')
    a(f'v_mov_b32 v{KA+12}, 1')
    a(f's_getreg_b32 s{S_T0}, hwreg(HW_REG_XCC_ID, 0, 4)')
    a(f's_lshl_b32 s{S_T0}, s{S_T0}, 28')
    a(f's_xor_b32 s{S_TGX}, s{S_TAG}, s{S_T0}')
    a(f's_mov_b32 s{S_T1}, {f32_bits(QSCALE)}')
    a(f'v_lshrrev_b32 {u(2)}, 1, v{V_I}')
    a(f'v_xor_b32 {u(2)}, v{V_G}, {u(2)}')
    a(f'v_lshlrev_b32 {u(2)}, 4, {u(2)}')
    a(f'v_lshl_add_u32 {u(2)}, v{V_I}, 7, {u(2)}')
    a(f's_lshl_b32 s{S_T0}, s{S_RB}, 11')
    a(f'v_add_u32 {u(2)}, s{S_T0}, {u(2)}')
    a(f'v_xor_b32 {u(3)}, 64, {u(2)}')
    a(f's_waitcnt vmcnt({16 + (4 if TOUCH else 1)})')
    a(f'ds_write_b32 v{V_Z}, v{KA+12} offset:{4*F_KX}')
    for ks in range(16):
        a(f'ds_read_b128 {vr(KX+4*ks,4)}, {u(2+(ks&1))} offset:{(ks>>1)*8192}')
    a(f's_waitcnt vmcnt({4 if TOUCH else 1}) lgkmcnt(0)')
    stamp(2)
    def kv_reads(ks):
        a(f'ds_read_b64_tr_b16 {vr(KW+4*ks,2)}, v{V_A2} offset:{ks*1024}')
        a(f'ds_read_b64_tr_b16 {vr(KW+4*ks+2,2)}, v{V_A2} offset:{ks*1024+128}')
    for ks in range(7):
        kv_reads(ks)
    a(f's_cmp_eq_u32 s{S_TY}, 1')
    a('s_cbranch_scc1 KG_KV1')
    for ty in range(2):
        if ty == 1:
            a.label('KG_KV1')
        for ks in range(16):
            n_out = min(6, 15 - ks)
            a(f's_waitcnt lgkmcnt({2*n_out})')
            cc = vr(KA + 4*(ks & 1), 4) if ks >= 2 else '0'
            if ty == 0:
                a(f'v_mfma_f32_16x16x32_bf16 {vr(KA+4*(ks&1),4)}, {vr(KW+4*ks,4)}, {vr(KX+4*ks,4)}, {cc}')
            else:
                a(f'v_mfma_f32_16x16x32_bf16 {vr(KA+4*(ks&1),4)}, {vr(KX+4*ks,4)}, {vr(KW+4*ks,4)}, {cc}')
            if ks + 7 < 16:
                kv_reads(ks + 7)
        a('s_nop 7')
        for i in range(4):
            a(f'v_add_f32 v{KA+i}, v{KA+i}, v{KA+4+i}')
        if ty == 0:
            for i in range(4):
                a(f'v_mul_f32 v{KA+i}, s{S_T1}, v{KA+i}')
        a(f'v_cvt_pk_bf16_f32 v{KA+8}, v{KA}, v{KA+1}')
        a(f'v_cvt_pk_bf16_f32 v{KA+9}, v{KA+2}, v{KA+3}')
        a(f'buffer_store_dwordx4 {vr(KA+8,4)}, {u(6)}, {ws}, s{S_T3} offen{SC}')
        a(f'buffer_store_dwordx2 {vr(KA+8,2)}, {u(4)}, {ws}, s{S_T2} offen{SC}')
        a(f'ds_write_b32 v{V_Z}, v{KA+12} offset:{4*F_KVS}')
        stamp(1)
        a('s_waitcnt vmcnt(0)')
        flag_store(WS_FL1, f's{S_KOFF}', S_TGX)
        stamp(3)
        if ty == 1:
            a('s_branch KG_KP')
        else:
            a(f'v_lshlrev_b32 {u(2)}, 4, v{V_G}')
            a(f'v_add_u32 {u(2)}, {L_GATE}, {u(2)}')
            for half in range(2):
                for k8 in range(8):
                    ks = 8*half + k8
                    a(f'ds_read_b128 {vr(KW+4*ks,4)}, {u(2)} offset:{64*ks}')
                for k8 in range(8):
                    ks = 8*half + k8
                    a(f's_waitcnt lgkmcnt({7-k8})')
                    cc = vr(KA, 4) if ks else '0'
                    a(f'v_mfma_f32_16x16x32_bf16 {vr(KA,4)}, {vr(KW+4*ks,4)}, {vr(KX+4*ks,4)}, {cc}')
            a(f's_lshl_b32 s{S_T0}, s{S_KQ}, 8')
            a(f's_lshl_b32 s{S_T1}, s{S_RB}, 6')
            a(f's_add_u32 s{S_T0}, s{S_T0}, s{S_T1}')
            a(f's_add_u32 s{S_T1}, s{S_T0}, {WS_G}')
            a(f'v_lshlrev_b32 {u(2)}, 2, v{V_I}')
            a('s_nop 6')
            a(f'v_cvt_pk_bf16_f32 {u(3)}, v{KA}, v{KA}')
            a(f'v_lshlrev_b32 {u(3)}, 16, {u(3)}')
            a(f's_mov_b32 s{S_T0}, {f32_bits(-math.log2(math.e))}')
            a(f'v_mul_f32 {u(3)}, s{S_T0}, {u(3)}')
            a(f'v_exp_f32 {u(3)}, {u(3)}')
            a('s_nop 0')
            a(f'v_add_f32 {u(3)}, 1.0, {u(3)}')
            a(f'v_rcp_f32 {u(3)}, {u(3)}')
            a('s_nop 0')
            a(f'v_cvt_pk_bf16_f32 {u(3)}, {u(3)}, {u(3)}')
            a(f'v_lshlrev_b32 {u(3)}, 16, {u(3)}')
            a('s_mov_b64 exec, 0xffff')
            a(f'buffer_store_dword {u(3)}, {u(2)}, {ws}, s{S_T1} offen{SC}')
            a('s_mov_b64 exec, -1')
            a('s_branch KG_KP')

    a.label('KG_TAG')
    stamp(9, 1)
    hsetup()
    a('s_waitcnt vmcnt(0)')
    a(f'v_readfirstlane_b32 s{S_TAG}, {u(3)}')
    a(f's_mul_i32 s{S_TAG}, s{S_TAG}, {TAG_M}')
    a(f's_add_u32 s{S_TAG}, s{S_TAG}, {TAG_C}')
    a(f'v_mov_b32 {u(1)}, 1')
    a(f'v_mov_b32 {u(3)}, s{S_TAG}')
    a(f'ds_write_b32 v{V_Z}, {u(3)} offset:{4*F_TAG}')
    a(f'ds_write_b32 v{V_Z}, {u(1)} offset:{4*F_TAGOK}')
    stamp(2)
    GR = 16
    V_GW, V_QW = V_A1, V_A2
    S_PEND, S_GB, S_DN = S_P, S_KH, S_VM
    a(f's_and_b32 s{S_T0}, s2, 7')
    a(f's_lshl_b32 s{S_GB}, s{S_T0}, 15')
    a(f's_movk_i32 s{S_PEND}, 0x1ff')
    a(f'v_lshlrev_b32 v{V_GW}, 3, v0')
    a(f'v_add_u32 v{V_GW}, {L_PRE}, v{V_GW}')
    lds_wait(F_KVS, 1, V_U + 4, sleep=1)
    if G_DELAY:
        a(f's_sleep {G_DELAY}')
    def g_loads(c, sc=SC):
        a(f's_add_u32 s{S_T0}, s{S_GB}, {c*4096}')
        for j in range(4):
            a(f'buffer_load_dwordx4 {vr(GR+16*c+4*j,4)}, v{V_L16}, {ws}, s{S_T0} offen offset:{1024*j}{sc}')
    def g_check(c, k):
        for j in range(4):
            a(f'v_cmpx_eq_u32 vcc, s{S_TAG}, v{GR+16*c+4*j+2}')
        a('s_cmp_eq_u64 exec, -1')
        a('s_mov_b64 exec, -1')
        a(f's_cbranch_scc0 KG_GF{k}_{c}')
        for j in range(4):
            a(f'ds_write_b64 v{V_GW}, {vr(GR+16*c+4*j,2)} offset:{512*j}')
        a(f'v_add_u32 {u(6)}, 1, {u(6)}')
        a(f's_bitset0_b32 s{S_PEND}, {c}')
        a(f'v_add_u32 v{V_GW}, 0x800, v{V_GW}')
        a(f'ds_write_b32 v{V_Z}, {u(6)} offset:{4*F_PRE}')
        a.label(f'KG_GF{k}_{c}')
    def g_round(c0, c1, gi):
        for c in range(c0, c1):
            g_loads(c)
        if gi:
            a(f'ds_write_b32 v{V_Z}, {u(1)} offset:{4*F_GI}')
            stamp(1)
        for c in range(c0, c1):
            a(f's_waitcnt vmcnt({4*(c1-1-c)})')
            g_check(c, 0)
    S_AL = S_KB
    a(f'v_mov_b32 {u(6)}, 0')
    g_round(0, G_EARLY, G_EARLY == 8)
    stamp(5)
    a(f's_movk_i32 s{S_AL}, {(1 << G_EARLY) - 1}')
    a(f's_mov_b32 s{S_CNT}, {POLL_LIMIT}')
    a.label('KG_GR')
    a(f's_sub_u32 s{S_CNT}, s{S_CNT}, 1')
    a('s_cbranch_scc1 KG_GE')
    a(f's_cmp_eq_u32 s{S_PEND}, 0x100')
    a('s_cbranch_scc1 KG_GE')
    if G_EARLY < 8:
        a(f's_cmp_eq_u32 s{S_AL}, 0xff')
        a('s_cbranch_scc1 KG_GA')
        a(f'ds_read_b64 {vr(V_U+4,2)}, v{V_Z} offset:{4*F_CX}')
        a('s_waitcnt lgkmcnt(0)')
        a(f'v_min_u32 {u(4)}, {u(4)}, {u(5)}')
        a('s_nop 0')
        a(f'v_readfirstlane_b32 s{S_T0}, {u(4)}')
        a(f's_cmp_lt_u32 s{S_T0}, {G_TRIG}')
        a('s_cbranch_scc1 KG_GA')
        a(f's_movk_i32 s{S_AL}, 0xff')
        g_round(G_EARLY, 8, True)
        a('s_branch KG_GR')
        a.label('KG_GA')
    a(f's_and_b32 s{S_T2}, s{S_PEND}, s{S_AL}')
    a('s_cbranch_scc1 KG_GB')
    a('s_sleep 1')
    a('s_branch KG_GR')
    a.label('KG_GB')
    for c in range(8):
        a(f's_bitcmp1_b32 s{S_T2}, {c}')
        a(f's_cbranch_scc0 KG_GL{c}')
        g_loads(c)
        a.label(f'KG_GL{c}')
    a('s_waitcnt vmcnt(0)')
    for c in range(8):
        a(f's_bitcmp1_b32 s{S_T2}, {c}')
        a(f's_cbranch_scc0 KG_GF1_{c}')
        g_check(c, 1)
    a('s_branch KG_GR')
    a.label('KG_GE')
    stamp(6)
    a('s_branch KG_WT')
    a.label('KG_KP')
    a(f's_and_b32 s{S_T0}, s2, 7')
    a(f's_lshl_b32 s{S_T0}, s{S_T0}, 3')
    a(f's_mov_b64 s[{S_DN}:{S_DN+1}], 0xff')
    a(f's_lshl_b64 s[{S_DN}:{S_DN+1}], s[{S_DN}:{S_DN+1}], s{S_T0}')
    a(f's_mov_b32 s{S_NQ}, 0')
    a(f's_mov_b32 s{S_QU}, 0')
    a(f's_mov_b32 s{S_NEW}, 0')
    a(f's_mov_b32 s{S_LB}, {L_WQ}')
    if not EPOLL: pg_wait(1)
    elif EPOLL > 1:
        lds_wait(F_CW, EPOLL, V_U, sleep=2)
        lds_wait(F_CX, EPOLL, V_U, sleep=2)
    a(f's_mov_b32 s{S_T1}, {WS_FL1}')
    if KP_DELAY:
        a(f's_sleep {KP_DELAY}')
    glob_poll('KV', -1, KV_SLEEP)
    a(f'v_mov_b32 {u(1)}, 127')
    a(f'ds_write_b32 v{V_Z}, {u(1)} offset:{4*F_N}')
    stamp(5)
    a(f's_lshl_b32 s{S_T0}, s{S_QG}, 1')
    a(f's_add_u32 s{S_T1}, s{S_T0}, 1')
    a(f'v_readlane_b32 s{S_T0}, {u(4)}, s{S_T0}')
    a(f'v_readlane_b32 s{S_T1}, {u(4)}, s{S_T1}')
    a('s_nop 1')
    a(f's_or_b32 s{S_T0}, s{S_T0}, s{S_T1}')
    a(f's_cmp_eq_u32 s{S_T0}, 0')
    a(f's_cselect_b32 s{S_T0}, {2 if FORCE_GL else 1}, 2')
    a(f'v_mov_b32 {u(4)}, s{S_T0}')
    a(f'ds_write_b32 v{V_Z}, {u(4)} offset:{4*F_LOC}')
    for i in range(4):
        a(f'v_mov_b32 {u(4+i)}, -1')
    a(f's_lshl_b32 s{S_T1}, s{S_QG}, 16')
    a(f's_lshl_b32 s{S_T2}, s{S_HG}, 12')
    a(f's_add_u32 s{S_T1}, s{S_T1}, s{S_T2}')
    a(f's_add_u32 s{S_T1}, s{S_T1}, {WS_O}')
    a(f's_add_u32 s{S_T2}, s{S_T1}, 32768')
    a(f's_cmp_eq_u32 s{S_T0}, 1')
    a('s_cbranch_scc1 KG_SE1')
    for n_, sc_ in enumerate((SC, LOCSE)):
        for k in range(8):
            a(f'buffer_store_dwordx4 {vr(V_U+4,4)}, v{V_L16}, {ws}, s{S_T1+(k>>2)} offen offset:{1024*(k&3)}{sc_}')
        if n_ == 0:
            a('s_branch KG_SE2')
            a.label('KG_SE1')
    a.label('KG_SE2')
    a('s_cmp_lg_u32 s2, 0')
    a('s_cbranch_scc1 KG_H3')
    a(f's_mov_b32 s{S_T3}, {WS_ROOT}')
    a(f'v_mov_b32 {u(2)}, 0')
    a(f'v_mov_b32 {u(3)}, s{S_TAG}')
    a('s_mov_b64 exec, 1')
    a(f'buffer_store_dword {u(3)}, {u(2)}, {ws}, s{S_T3} offen{SC}')
    a('s_mov_b64 exec, -1')
    a('s_branch KG_H3')

    a.label('KG_WT')
    if WT_LAG == 127:
        lds_wait(F_N, 127, V_U, sleep=2)
    elif WT_LAG == 100:
        lds_wait(F_POS, 1, V_U, sleep=2)
    elif WT_LAG:
        lds_wait(F_PRE, WT_LAG, V_U, sleep=2)
    S_FW, S_G4, S_PT = S_P, S_KH, S_KB
    a(f's_lshr_b32 s{S_FW}, s{S_QG}, 3')
    a(f's_bfe_u32 s{S_G4}, s{S_QG}, 0x20001')
    a(f's_and_b32 s{S_PT}, s{S_QG}, 1')
    a(f's_cmp_eq_u32 s{S_PT}, 1')
    a(f's_cselect_b64 s[{S_C0}:{S_C0+1}], s[{S_WI}:{S_WI+1}], s[{S_WR}:{S_WR+1}]')
    srd(a, R_A, S_C0, 2048 * 514)
    a(f's_lshl_b32 s{S_T3}, s{S_FW}, 4')
    a(f's_lshl_b32 s{S_T1}, s{S_G4}, 8')
    a(f's_add_u32 s{S_T1}, s{S_T1}, s{S_T3}')
    a(f'v_add_u32 {u(2)}, s{S_T1}, v{V_I}')
    a(f'v_mul_u32_u24 {u(2)}, 514, {u(2)}')
    a(f'v_lshl_add_u32 {u(2)}, v{V_G}, 4, {u(2)}')
    a(f's_lshl_b32 s{S_T1}, s{S_HG}, 6')
    a(f'v_add_u32 {u(2)}, s{S_T1}, {u(2)}')
    a(f'v_and_b32 {u(4)}, 2, {u(2)}')
    a(f'v_and_b32 {u(2)}, -4, {u(2)}')
    for e in range(8):
        a(f's_mov_b32 s{S_T0}, {(16*(e>>2)+(e&3))*32896}')
        a(f'buffer_load_dwordx4 {vr(16+4*e,4)}, {u(2)}, {ra}, s{S_T0} offen')
        a(f'buffer_load_dword v{96+e}, {u(2)}, {ra}, s{S_T0} offen offset:16')
    a(f's_or_b32 s{S_KOFF}, s{S_HG}, s{S_G4}')
    a(f's_cmp_lg_u32 s{S_KOFF}, 0')
    a('s_cbranch_scc1 KG_WT1')
    a(f'v_lshl_add_u32 {u(3)}, v{V_G}, 8, v{V_I}')
    a(f'v_add_u32 {u(3)}, s{S_T3}, {u(3)}')
    a(f'v_mul_u32_u24 {u(3)}, 514, {u(3)}')
    for e in range(8):
        a(f's_mov_b32 s{S_T0}, {(16*(e>>2)+(e&3))*32896}')
        a(f'buffer_load_ushort v{80+e}, {u(3)}, {ra}, s{S_T0} offen offset:512')
    a.label('KG_WT1')
    a(f's_mov_b32 s{S_C0}, 0x05040100')
    a(f's_mov_b32 s{S_C0+1}, 0x07060302')
    a(f'v_lshlrev_b32 {u(2)}, 16, v{V_G}')
    a(f'v_lshl_add_u32 {u(2)}, v{V_I}, 4, {u(2)}')
    a(f's_lshl_b32 s{S_T1}, s{S_HG}, 18')
    a(f's_lshl_b32 s{S_T2}, s{S_FW}, 11')
    a(f's_lshl_b32 s{S_T0}, s{S_PT}, 10')
    a(f's_add_u32 s{S_T2}, s{S_T2}, s{S_T0}')
    a(f's_add_u32 s{S_T2}, s{S_T2}, {WS_WT}')
    a(f's_add_u32 s{S_T1}, s{S_T1}, s{S_T2}')
    a(f's_lshl_b32 s{S_T0}, s{S_G4}, 8')
    a(f's_add_u32 s{S_T1}, s{S_T1}, s{S_T0}')
    a('s_waitcnt vmcnt(0)')
    stamp(3)
    for e in range(8):
        for j in range(4):
            hi = 16 + 4*e + j + 1 if j < 3 else 96 + e
            a(f'v_alignbyte_b32 v{16+4*e+j}, v{hi}, v{16+4*e+j}, {u(4)}')
    for ph in range(8):
        for q in range(4):
            lo = 16 + 4*(2*q) + (ph >> 1); hi = 16 + 4*(2*q+1) + (ph >> 1)
            a(f'v_perm_b32 v{48+4*ph+q}, v{hi}, v{lo}, s{S_C0+(ph&1)}')
    for ph in range(8):
        a(f's_add_u32 s{S_T0}, s{S_T1}, {8192*ph}')
        if not E('WT_NOST', 0): a(f'buffer_store_dwordx4 {vr(48+4*ph,4)}, {u(2)}, {ws}, s{S_T0} offen{SC}')
    a(f's_cmp_lg_u32 s{S_KOFF}, 0')
    a('s_cbranch_scc1 KG_J1')
    for q in range(4):
        a(f'v_lshl_or_b32 v{88+q}, v{81+2*q}, 16, v{80+2*q}')
    a(f's_add_u32 s{S_T0}, s{S_T2}, {256*8192}')
    a(f'buffer_store_dwordx4 {vr(88,4)}, v{V_L16}, {ws}, s{S_T0} offen{SC}')
    a('s_branch KG_J1')

    HT, HX, HA = 16, 64, 128
    a.label('KG_H2B')
    stamp(2)
    hsetup()
    table_srd(a, R_TB, 'TAB_F', 512 * 1024, 'f')
    a(f's_and_b32 s{S_CT}, s{S_HW}, 1')
    a(f's_lshl_b32 s{S_T2}, s{S_HG}, 16')
    a(f's_lshl_b32 s{S_T0}, s{S_CT}, 10')
    a(f's_add_u32 s{S_T2}, s{S_T2}, s{S_T0}')
    if TF_LAG == 1:
        lds_wait(F_GI, 1, V_U, sleep=2)
    elif TF_LAG == 100:
        lds_wait(F_POS, 1, V_U, sleep=2)
    elif TF_LAG:
        lds_wait(F_PRE, TF_LAG, V_U, sleep=2)
    def tload(i):
        if i % 2 == 0:
            a(f's_add_u32 s{S_T3}, s{S_T2}, {i*2048}')
        a(f'buffer_load_dwordx4 {vr(HT+4*(i%12),4)}, v{V_L16}, {tb}, s{S_T3} offen offset:{(i%2)*2048}')
    PD = H2_PD
    assert PD <= 12
    for i in range(PD):
        tload(i)
    a(f'v_and_b32 {u(4)}, 31, v0')
    a(f'v_lshrrev_b32 {u(5)}, 5, v0')
    a(f'v_bfe_u32 {u(6)}, v0, 1, 3')
    a(f'v_lshlrev_b32 {u(7)}, 7, {u(4)}')
    for ks in range(4):
        a(f'v_add_u32 v{HA+ks}, {2*ks}, {u(5)}')
        a(f'v_xor_b32 v{HA+ks}, v{HA+ks}, {u(6)}')
        a(f'v_lshl_add_u32 {u(ks)}, v{HA+ks}, 4, {u(7)}')
    a(f'v_lshlrev_b32 v{V_A1}, 12, {u(4)}')
    a(f'v_lshl_add_u32 v{V_A1}, {u(5)}, 5, v{V_A1}')
    stamp(5)
    lds_wait(F_CX, 8, V_U + 4, sleep=2)
    def xreads(c):
        for ks in range(4):
            for aa in range(2):
                a(f'ds_read_b128 {vr(HX+32*(c&1)+16*aa+4*ks,4)}, {u(ks)} offset:{c*8192+4096*aa}')
    if PRI & 1: a('s_setprio 0')
    xreads(0)
    for c in range(8):
        if c < 7:
            xreads(c + 1)
        for ks in range(4):
            i = 4*c + ks
            a(f's_waitcnt vmcnt({min(PD-1, 31-i)}) lgkmcnt({2*(3-ks) + (8 if c < 7 else 0)})')
            for aa in range(2):
                cc = vr(HA + 16*aa, 16) if i else '0'
                a(f'v_mfma_f32_32x32x16_bf16 {vr(HA+16*aa,16)}, {vr(HX+32*(c&1)+16*aa+4*ks,4)}, {vr(HT+4*(i%12),4)}, {cc}')
            if i + PD < 32: tload(i + PD)
    if PRI & 1: a('s_setprio 2')
    lds_add(F_H2, V_U)
    a(f's_lshl_b32 s{S_T0}, s{S_HG}, 18')
    a(f's_lshl_b32 s{S_T1}, s{S_CT}, 17')
    a(f's_add_u32 s{S_T0}, s{S_T0}, s{S_T1}')
    a(f's_lshl_b32 s{S_T1}, s{S_QG}, 7')
    a(f's_add_u32 s{S_T0}, s{S_T0}, s{S_T1}')
    a(f's_add_u32 s{S_T2}, s{S_T0}, {WS_X1T}')
    lds_wait(F_TAGOK, 1, V_U)
    get_tag(V_U)
    a('s_nop 4')
    for i in range(16):
        a(f'v_cvt_pk_bf16_f32 v{HX+i}, v{HA+2*i}, v{HA+2*i+1}')
    for aa in range(2):
        for q in range(2):
            a(f'buffer_store_dwordx4 {vr(HX+8*aa+4*q,4)}, v{V_A1}, {ws}, s{S_T2} offen offset:{64*aa+16*q}{SC}')
    a.label('KG_J1')
    join_flag(F_J1, 3, WS_FL2)
    stamp(6)
    a.label('KG_H3')
    if E('NOHELP', 0) == 1:
        lds_add(F_J2, V_U)
        dump()
        a('s_endpgm')

    V_T1 = 16
    V_T2 = 64
    V_D = 88
    V_TW = 104
    V_XX = 120
    V_W = 136
    V_AC = 152
    S_FW = S_HW
    table_srd(a, R_TB, 'TAB_K2', 24576 + 6144 + 32768, 'k2')
    O_T1, O_T2, O_TW1, O_TW2 = 0, 24576, 30720, 30720 + 16384
    a(f's_lshr_b32 s{S_MH}, s{S_FW}, 1')
    a(f's_and_b32 s{S_NH}, s{S_FW}, 1')
    a(f's_mul_i32 s{S_T0}, s{S_MH}, 12288')
    for i in range(12):
        if i % 4 == 0 and i:
            a(f's_add_u32 s{S_T0}, s{S_T0}, 4096')
        a(f'buffer_load_dwordx4 {vr(V_T1+4*i,4)}, v{V_L16}, {tb}, s{S_T0} offen offset:{(i%4)*1024}')
        thr()
    a(f's_lshl_b32 s{S_T2}, s{S_FW}, 12')
    a(f's_add_u32 s{S_T0}, s{S_T2}, {O_TW1}')
    for i in range(4):
        a(f'buffer_load_dwordx4 {vr(V_TW+4*i,4)}, v{V_L16}, {tb}, s{S_T0} offen offset:{i*1024}')
        thr()
    a(f's_mov_b32 s{S_T0}, {O_T2}')
    a(f's_mov_b32 s{S_T1}, {O_T2+4096}')
    for i in range(6):
        a(f'buffer_load_dwordx4 {vr(V_T2+4*i,4)}, v{V_L16}, {tb}, s{S_T0+(i>>2)} offen offset:{(i%4)*1024}')
        thr()
    a(f's_lshl_b32 s{S_T0}, s{S_FW}, 4')
    a(f'v_lshl_add_u32 v{V_A3}, v{V_G}, 8, v{V_I}')
    a(f'v_add_u32 v{V_A3}, s{S_T0}, v{V_A3}')
    a(f's_cmp_eq_u32 s{S_F}, 0')
    a('s_cbranch_scc1 KG_SPA')
    a.label('KG_SPAR')
    if T2:
        a(f's_cmp_lt_u32 s{S_HW}, 2')
        a('s_cbranch_scc1 KG_T2E')
        table_srd(a, R_A, 'TAB_FINV', 512 * 1024, 't2')
        a(f's_cmp_eq_u32 s{S_HW}, 3')
        a(f's_cselect_b64 s[{R_A}:{R_A+1}], s[{S_WO}:{S_WO+1}], s[{R_A}:{R_A+1}]')
        a(f's_lshr_b32 s{S_T0}, s2, 3')
        a(f's_lshl_b32 s{S_T0}, s{S_T0}, 14')
        a(f's_add_u32 s{S_T1}, s{S_T0}, 8192')
        a(f'v_lshlrev_b32 {u(0)}, 7, v0')
        a(f'buffer_load_dword v254, {u(0)}, {ra}, s{S_T0} offen')
        a(f'buffer_load_dword v255, {u(0)}, {ra}, s{S_T1} offen')
        a.label('KG_T2E')
    a(f's_cmp_lg_u32 s{S_HW}, 0')
    a('s_cbranch_scc1 KG_PCE')
    lds_wait(F_H2, 2, V_U, sleep=4)
    a(f's_mov_b32 s{S_LB}, {L_X}')
    for k in range(3):
        a(f's_bfe_u32 s{S_T0}, s{S_QU}, {hex(0x30000 + 3*(2-k))}')
        a(f's_lshl_b32 s{S_T0}, s{S_T0}, 14')
        a(f's_add_u32 s{S_T0}, s{S_T0}, {WS_KV}')
        kv_dma(S_T0, S_LB)
    a(f'v_mov_b32 {u(1)}, 8')
    a('s_waitcnt vmcnt(0)')
    a(f'ds_write_b32 v{V_Z}, {u(1)} offset:{4*F_POS}')
    stamp(6)
    a.label('KG_PCE')
    a(f's_cmp_lg_u32 s{S_HW}, 1')
    a('s_cbranch_scc1 KG_S1W')
    a(f's_lshl_b32 s{S_T1}, s{S_HG}, 10')
    a(f's_add_u32 s{S_T1}, s{S_T1}, {WS_FL2}')
    glob_poll('S1', 0xff, S1_SLEEP)
    a(f'v_mov_b32 {u(1)}, 1')
    a(f'ds_write_b32 v{V_Z}, {u(1)} offset:{4*F_S1OK}')
    a.label('KG_S1W')
    pg_wait(3)
    lds_wait(F_S1OK, 1, V_U, sleep=4)
    stamp(7)
    a(f'v_lshlrev_b32 v{V_A1}, 7, v{V_I}')
    a(f'v_lshl_add_u32 v{V_A1}, v{V_G}, 4, v{V_A1}')
    a(f's_lshl_b32 s{S_T0}, s{S_F}, 13')
    a(f's_lshl_b32 s{S_T1}, s{S_NH}, 11')
    a(f's_add_u32 s{S_T0}, s{S_T0}, s{S_T1}')
    a(f's_add_u32 s{S_T0}, s{S_T0}, {WS_X1T}')
    a(f's_add_u32 s{S_T1}, s{S_T0}, 4096')
    for part in range(2):
        for ks in range(2):
            a(f'buffer_load_dwordx4 {vr(V_D+8*part+4*ks,4)}, v{V_A1}, {ws}, s{S_T0+part} offen offset:{64*ks}{SC}')
    a(f's_lshl_b32 s{S_T0}, s{S_F}, 13')
    a(f's_lshl_b32 s{S_T1}, s{S_FW}, 11')
    a(f's_add_u32 s{S_T1}, s{S_T1}, {WS_WT}')
    a(f's_add_u32 s{S_T0}, s{S_T0}, s{S_T1}')
    a(f's_cmp_lg_u32 s{S_F}, 0')
    a('s_cbranch_scc1 KG_NXX')
    a(f's_add_u32 s{S_T1}, s{S_T1}, {256*8192}')
    for part in range(2):
        a(f'buffer_load_dwordx4 {vr(V_XX+8*part+4,4)}, v{V_L16}, {ws}, s{S_T1} offen offset:{1024*part}{SC}')
    a.label('KG_NXX')
    for part in range(2):
        a(f'buffer_load_dwordx4 {vr(V_W+8*part+4,4)}, v{V_L16}, {ws}, s{S_T0} offen offset:{1024*part}{SC}')

    def mf(d, x, y, c):
        cc = vr(d, 4) if c else '0'
        a(f'v_mfma_f32_16x16x32_bf16 {vr(d,4)}, {vr(x,4)}, {vr(y,4)}, {cc}')
    def t1(nt, ks, v): return V_T1 + 4 * ((nt * 2 + ks) * 3 + v)
    def t2(mt, v): return V_T2 + 4 * (mt * 3 + v)
    def cmul_pack(dst):
        for t_ in range(2):
            for r in range(4):
                ar, ai = V_AC + 8*t_ + r, V_AC + 8*t_ + 4 + r
                c_, s_ = V_TW + 8*t_ + r, V_TW + 8*t_ + 4 + r
                uu = V_U + (r & 1) * 2
                a(f'v_mul_f32 v{uu}, v{ar}, v{c_}')
                a(f'v_mul_f32 v{uu+1}, v{ar}, v{s_}')
                a(f'v_fma_f32 v{ar}, -v{ai}, v{s_}, v{uu}')
                a(f'v_fma_f32 v{ai}, v{ai}, v{c_}, v{uu+1}')
        for i in range(8):
            a(f'v_cvt_pk_bf16_f32 v{dst+i}, v{V_AC+2*i}, v{V_AC+2*i+1}')
    def sync(flag):
        a('s_waitcnt lgkmcnt(0)')
        lds_add(flag, V_U)
        lds_wait(flag, 4, V_U, sleep=2)

    def lo():
        if PRI & 4: a('s_setprio 0')
    def hi():
        if PRI & 4: a('s_setprio 2')
    lo()
    a('s_waitcnt vmcnt(2)')
    zr = lambda ks: V_D + 4*ks
    zi = lambda ks: V_D + 8 + 4*ks
    for ks in range(2):
        for nt in range(2):
            mf(V_AC + 8*nt, zr(ks), t1(nt, ks, 0), ks)
            mf(V_AC + 8*nt + 4, zi(ks), t1(nt, ks, 0), ks)
        for nt in range(2):
            mf(V_AC + 8*nt, zi(ks), t1(nt, ks, 2), 1)
            mf(V_AC + 8*nt + 4, zr(ks), t1(nt, ks, 1), 1)
    hi()
    a(f's_cmp_eq_u32 s{S_F}, 0')
    a('s_cbranch_scc1 KG_SPB')
    a.label('KG_SPBR')
    a(f's_mul_i32 s{S_T0}, s{S_MH}, 2560')
    a(f's_lshl_b32 s{S_T1}, s{S_NH}, 3')
    a(f's_add_u32 s{S_T0}, s{S_T0}, s{S_T1}')
    a(f'v_mul_u32_u24 v{V_A1}, 80, v{V_I}')
    a(f'v_lshl_add_u32 v{V_A1}, v{V_G}, 4, v{V_A1}')
    a(f'v_add_u32 v{V_A1}, {L_APR}, v{V_A1}')
    a(f'v_add_u32 {u(4)}, s{S_T0}, v{V_A1}')
    a('s_nop 4')
    cmul_pack(V_D)
    for nt in range(2):
        a(f'ds_write_b64 {u(4)}, {vr(V_D+4*nt,2)} offset:{1280*nt}')
        a(f'ds_write_b64 {u(4)}, {vr(V_D+4*nt+2,2)} offset:{L_API-L_APR+1280*nt}')
    a(f's_add_u32 s{S_T0}, s{S_T2}, {O_TW2}')
    for i in range(4):
        a(f'buffer_load_dwordx4 {vr(V_TW+4*i,4)}, v{V_L16}, {tb}, s{S_T0} offen offset:{i*1024}')
    sync(F_SY0)
    a(f's_mul_i32 s{S_T0}, s{S_FW}, 1280')
    a(f'v_add_u32 {u(4)}, s{S_T0}, v{V_A1}')
    a(f'ds_read_b128 {vr(V_D,4)}, {u(4)}')
    a(f'ds_read_b128 {vr(V_D+4,4)}, {u(4)} offset:{L_API-L_APR}')
    lo()
    a('s_waitcnt vmcnt(4) lgkmcnt(0)')
    for mt in range(2):
        mf(V_AC + 8*mt, t2(mt, 0), V_D, 0)
        mf(V_AC + 8*mt + 4, t2(mt, 0), V_D + 4, 0)
    for mt in range(2):
        mf(V_AC + 8*mt, t2(mt, 2), V_D + 4, 1)
        mf(V_AC + 8*mt + 4, t2(mt, 1), V_D, 1)
    hi()
    def unpack(base):
        for part in range(2):
            b = base + 8*part
            for q in range(4):
                a(f'v_lshlrev_b32 v{b+2*q}, 16, v{b+4+q}')
                a(f'v_and_b32 v{b+2*q+1}, 0xffff0000, v{b+4+q}')
    unpack(V_W)
    a(f's_cmp_eq_u32 s{S_F}, 0')
    a('s_cbranch_scc1 KG_SPECIAL')
    for e in range(8):
        mt, r = e >> 2, e & 3
        ar, ai = V_AC + 8*mt + r, V_AC + 8*mt + 4 + r
        c_, s_ = V_W + e, V_W + 8 + e
        uu = V_U + (r & 1) * 2
        a(f'v_mul_f32 v{uu}, v{ar}, v{c_}')
        a(f'v_mul_f32 v{uu+1}, v{ar}, v{s_}')
        a(f'v_fma_f32 v{ar}, -v{ai}, v{s_}, v{uu}')
        a(f'v_fma_f32 v{ai}, v{ai}, v{c_}, v{uu+1}')
    a.label('KG_STEP3')
    for mt in range(2):
        for part in range(2):
            for q in range(2):
                src = V_AC + 8*mt + 4*part + 2*q
                a(f'v_cvt_pk_bf16_f32 v{V_D+4*part+2*mt+q}, v{src}, v{src+1}')
    lo()
    a('s_nop 1')
    for mt in range(2):
        mf(V_AC + 8*mt, V_D, t2(mt, 0), 0)
        mf(V_AC + 8*mt + 4, V_D + 4, t2(mt, 0), 0)
    for mt in range(2):
        mf(V_AC + 8*mt, V_D + 4, t2(mt, 1), 1)
        mf(V_AC + 8*mt + 4, V_D, t2(mt, 2), 1)
    hi()
    a(f'v_mul_u32_u24 v{V_A1}, 144, v{V_I}')
    a(f'v_add_u32 v{V_A1}, {L_CPR}, v{V_A1}')
    a(f's_lshl_b32 s{S_T0}, s{S_FW}, 5')
    a(f'v_lshl_add_u32 {u(4)}, v{V_G}, 3, v{V_A1}')
    a(f'v_add_u32 {u(4)}, s{S_T0}, {u(4)}')
    a('s_waitcnt vmcnt(0)')
    a('s_nop 4')
    cmul_pack(V_D)
    for mt in range(2):
        a(f'ds_write_b64 {u(4)}, {vr(V_D+4*mt,2)} offset:{2304*mt}')
        a(f'ds_write_b64 {u(4)}, {vr(V_D+4*mt+2,2)} offset:{L_CPI-L_CPR+2304*mt}')
    sync(F_SY1)
    a(f's_mul_i32 s{S_T0}, s{S_NH}, 2304')
    a(f'v_lshl_add_u32 {u(4)}, v{V_G}, 4, v{V_A1}')
    a(f'v_add_u32 {u(4)}, s{S_T0}, {u(4)}')
    for part in range(2):
        for ks in range(2):
            a(f'ds_read_b128 {vr(V_D+8*part+4*ks,4)}, {u(4)} offset:{(L_CPI-L_CPR)*part+64*ks}')
    lo()
    a('s_waitcnt lgkmcnt(0)')
    for ks in range(2):
        for nt in range(2):
            mf(V_AC + 8*nt, t1(nt, ks, 0), zr(ks), ks)
            mf(V_AC + 8*nt + 4, t1(nt, ks, 0), zi(ks), ks)
        for nt in range(2):
            mf(V_AC + 8*nt, t1(nt, ks, 1), zi(ks), 1)
            mf(V_AC + 8*nt + 4, t1(nt, ks, 2), zr(ks), 1)
    hi()
    a(f'v_lshlrev_b32 {u(4)}, 7, v{V_I}')
    a(f'v_lshl_add_u32 {u(4)}, v{V_G}, 4, {u(4)}')
    a(f's_lshl_b32 s{S_T0}, s{S_F}, 13')
    a(f's_lshl_b32 s{S_T1}, s{S_NH}, 11')
    a(f's_add_u32 s{S_T0}, s{S_T0}, s{S_T1}')
    a(f's_lshl_b32 s{S_T1}, s{S_MH}, 6')
    a(f's_add_u32 s{S_T0}, s{S_T0}, s{S_T1}')
    a(f's_add_u32 s{S_T0}, s{S_T0}, {WS_Y1T}')
    a(f's_add_u32 s{S_T1}, s{S_T0}, 4096')
    for part in range(2):
        for nt in range(2):
            for q in range(2):
                src = V_AC + 8*nt + 4*part + 2*q
                a(f'v_cvt_pk_bf16_f32 v{V_D+4*part+2*nt+q}, v{src}, v{src+1}')
    for part in range(2):
        a(f'buffer_store_dwordx4 {vr(V_D+4*part,4)}, {u(4)}, {ws}, s{S_T0+part} offen{SC}')
    join_flag(F_J2, 4, WS_FL3)
    stamp(8)
    if E('NOHELP', 0) == 2:
        dump()
        a('s_endpgm')

    AB, AA, LF, FR = 16, 32, 32, 64
    NFR = 14
    AX, FI, FW = 48, 64, 128
    V_DM, V_RA, V_RY, V_OUT, V_GT, V_DW = 120, 121, 122, 123, 124, 125
    S_MI, S_NI = S_CT, S_A
    a(f's_lshr_b32 s{S_MI}, s{S_HW}, 1')
    a(f's_and_b32 s{S_NI}, s{S_HW}, 1')
    srd(a, R_A, S_WO, 512 * 1024)
    srd(a, R_OUT, S_OUT, 2048 * 1024)
    table_srd(a, R_TB, 'TAB_FINV', 512 * 1024, 'fi')
    a(f'v_lshrrev_b32 {u(0)}, 3, v0')
    a(f'v_and_b32 {u(1)}, 7, v0')
    a(f'v_and_b32 {u(2)}, 1, v{V_G}')
    a(f'v_lshlrev_b32 {u(3)}, 2, {u(2)}')
    a(f'v_xor_b32 {u(3)}, {u(3)}, {u(1)}')
    a(f'v_lshlrev_b32 {u(3)}, 4, {u(3)}')
    a(f'v_lshl_add_u32 {u(4)}, {u(0)}, 10, {u(3)}')
    a(f'v_mov_b32 v{V_DW}, {u(4)}')
    a(f's_lshl_b32 s{S_T3}, s{S_HW}, 14')
    a(f'v_lshl_add_u32 v{V_DM}, {u(0)}, 12, {u(3)}')
    a(f'v_and_b32 {u(0)}, 31, v0')
    a(f'v_lshrrev_b32 {u(1)}, 5, v0')
    a(f'v_bfe_u32 {u(3)}, v0, 2, 2')
    a(f'v_and_b32 {u(4)}, 3, v0')
    a(f'v_lshrrev_b32 {u(5)}, 1, {u(4)}')
    a(f'v_and_b32 {u(4)}, 1, {u(4)}')
    a(f'v_lshrrev_b32 {u(6)}, 1, {u(3)}')
    a(f'v_lshlrev_b32 {u(6)}, 2, {u(6)}')
    a(f'v_lshl_add_u32 {u(7)}, {u(4)}, 1, {u(2)}')
    a(f's_lshl_b32 s{S_T0}, s{S_MI}, 2')
    a(f'v_add_u32 {u(7)}, s{S_T0}, {u(7)}')
    a(f'v_xor_b32 {u(7)}, {u(7)}, {u(6)}')
    a(f'v_lshlrev_b32 {u(7)}, 4, {u(7)}')
    a(f'v_lshl_add_u32 {u(7)}, {u(5)}, 3, {u(7)}')
    a(f'v_lshl_add_u32 v{V_RA}, {u(1)}, 2, {u(3)}')
    a(f'v_lshl_add_u32 v{V_RA}, v{V_RA}, 7, {u(7)}')
    a(f'v_lshl_add_u32 {u(7)}, {u(2)}, 1, {u(5)}')
    a(f's_lshl_b32 s{S_T0}, s{S_NI}, 2')
    a(f'v_add_u32 {u(7)}, s{S_T0}, {u(7)}')
    a(f'v_xor_b32 {u(7)}, {u(7)}, {u(6)}')
    a(f'v_lshlrev_b32 {u(7)}, 4, {u(7)}')
    a(f'v_lshl_add_u32 {u(7)}, {u(4)}, 3, {u(7)}')
    a(f'v_lshl_add_u32 v{V_RY}, {u(1)}, 3, {u(3)}')
    a(f'v_lshl_add_u32 v{V_RY}, v{V_RY}, 7, {u(7)}')
    a(f'v_add_u32 v{V_RY}, {L_Y}, v{V_RY}')
    a(f'v_bfe_u32 {u(5)}, {u(0)}, 2, 1')
    a(f'v_lshrrev_b32 {u(6)}, 3, {u(0)}')
    a(f'v_and_b32 {u(7)}, 3, {u(0)}')
    a(f'v_lshl_add_u32 {u(7)}, {u(5)}, 4, {u(7)}')
    a(f'v_lshl_add_u32 {u(7)}, {u(6)}, 2, {u(7)}')
    a(f'v_lshlrev_b32 {u(7)}, 15, {u(7)}')
    a(f'v_lshl_add_u32 {u(7)}, {u(1)}, 5, {u(7)}')
    a(f's_lshl_b32 s{S_T0}, s{S_NI}, 20')
    a(f's_lshl_b32 s{S_T1}, s{S_QG}, 10')
    a(f's_add_u32 s{S_T0}, s{S_T0}, s{S_T1}')
    a(f's_lshl_b32 s{S_T1}, s{S_HG}, 7')
    a(f's_add_u32 s{S_T0}, s{S_T0}, s{S_T1}')
    a(f's_lshl_b32 s{S_T1}, s{S_MI}, 6')
    a(f's_add_u32 s{S_T0}, s{S_T0}, s{S_T1}')
    a(f'v_add_u32 v{V_OUT}, s{S_T0}, {u(7)}')
    a(f'v_lshlrev_b32 v{V_GT}, 2, {u(0)}')
    S_FI = S_KOFF
    a(f's_lshl_b32 s{S_FI}, s{S_HG}, 16')
    a(f's_lshl_b32 s{S_T0}, s{S_MI}, 10')
    a(f's_add_u32 s{S_FI}, s{S_FI}, s{S_T0}')
    def fload(i):
        if i % 2 == 0:
            a(f's_add_u32 s{S_KB}, s{S_FI}, {i*2048}')
        a(f'buffer_load_dwordx4 {vr(FR+4*(i%NFR),4)}, v{V_L16}, {tb}, s{S_KB} offen offset:{(i%2)*2048}')
    for i in range(NFR):
        fload(i)
        thr()
    if FI_TOUCH:
        a(f'v_lshlrev_b32 {u(0)}, 7, v0')
        a(f'v_and_b32 {u(1)}, 0x1c00, {u(0)}')
        a(f'v_add_u32 {u(0)}, {u(0)}, {u(1)}')
        for k in range(3):
            a(f's_add_u32 s{S_KB}, s{S_FI}, {(8+8*k)*2048}')
            a(f'buffer_load_dword v{FW+k}, {u(0)}, {tb}, s{S_KB} offen')
    lds_wait(F_J2, 4, V_U, sleep=2)
    pg_wait(4, 2)
    a(f's_lshl_b32 s{S_T2}, s{S_HW}, 17')
    a(f's_lshl_b32 s{S_T0}, s{S_HG}, 7')
    a(f's_add_u32 s{S_T2}, s{S_T2}, s{S_T0}')
    a(f's_add_u32 s{S_T1}, s{S_T3}, {L_WQ}')
    a(f's_cmp_eq_u32 s{S_HW}, 2')
    a(f's_cselect_b32 s{S_T1}, {L_KW}, s{S_T1}')
    a(f's_cmp_eq_u32 s{S_HW}, 3')
    a(f's_cselect_b32 s{S_T1}, s{S_T3}, s{S_T1}')
    for i in range(16):
        a(f's_add_u32 m0, s{S_T1}, {i*1024}')
        a(f's_add_u32 s{S_T0}, s{S_T2}, {i*8192}')
        a(f'buffer_load_dwordx4 v{V_DW}, {ra}, s{S_T0} offen lds')
        thr()
    a(f's_mov_b32 s{S_T0}, {L_WQ}')
    a(f's_mov_b32 s{S_T1}, {L_WQ + 16384}')
    a(f's_cmp_eq_u32 s{S_MI}, 1')
    a(f's_cselect_b32 s{S_T0}, {L_KW}, s{S_T0}')
    a(f's_cselect_b32 s{S_T1}, 49152, s{S_T1}')
    a(f'v_add_u32 v{LF}, s{S_T0}, v{V_RA}')
    a(f'v_add_u32 v{LF+2}, s{S_T1}, v{V_RA}')
    a(f'v_xor_b32 v{LF+1}, 64, v{LF}')
    a(f'v_xor_b32 v{LF+3}, 64, v{LF+2}')
    a('s_waitcnt vmcnt(0)')
    sync(F_J4)
    def fw(j, t_, o): return FW + 64*t_ + 8*j + 4*o
    for t_ in range(2):
        for j in range(8):
            i = 2*j + t_
            for o in range(2):
                ad = LF + 2*(i >> 3) + o
                a(f'ds_read_b64_tr_b16 {vr(fw(j,t_,o),2)}, v{ad} offset:{(i&7)*2048}')
                a(f'ds_read_b64_tr_b16 {vr(fw(j,t_,o)+2,2)}, v{ad} offset:{(i&7)*2048+1024}')
    a('s_waitcnt lgkmcnt(0)')
    lds_add(F_WR, V_U)
    if TST: stamp(6)
    a(f's_cmp_lg_u32 s{S_HW}, 1')
    a('s_cbranch_scc1 KG_S2W')
    a(f's_mov_b32 s{S_T1}, {WS_FL3}')
    glob_poll('S2', -1, S2_SLEEP)
    a(f'v_mov_b32 {u(1)}, 1')
    a(f'ds_write_b32 v{V_Z}, {u(1)} offset:{4*F_S2OK}')
    a.label('KG_S2W')
    pg_wait(6, 4)
    lds_wait(F_WR, 4, V_U, sleep=4)
    lds_wait(F_S2OK, 1, V_U, sleep=4)
    stamp(9)
    a(f's_lshl_b32 s{S_T2}, s{S_HW}, 19')
    a(f's_lshl_b32 s{S_T0}, s{S_QG}, 7')
    a(f's_add_u32 s{S_T2}, s{S_T2}, s{S_T0}')
    a(f's_add_u32 s{S_T2}, s{S_T2}, {WS_Y1T}')
    for i in range(16):
        a(f's_add_u32 m0, s{S_T3}, {L_Y + i*1024}')
        a(f's_add_u32 s{S_T0}, s{S_T2}, {i*32768}')
        a(f'buffer_load_dwordx4 v{V_DM}, {ws}, s{S_T0} offen{SC} lds')
        thr()
    a(f's_lshl_b32 s{S_T0}, s{S_QG}, 8')
    a(f's_lshl_b32 s{S_T1}, s{S_NI}, 7')
    a(f's_add_u32 s{S_T0}, s{S_T0}, s{S_T1}')
    a(f's_add_u32 s{S_T0}, s{S_T0}, {WS_G}')
    a(f'buffer_load_dword v{V_GT}, v{V_GT}, {ws}, s{S_T0} offen{SC}')
    a('s_waitcnt vmcnt(0)')
    sync(F_J3)
    def lread(i, addr, second):
        a(f'ds_read_b64_tr_b16 {vr(LF+4*(i%8),2)}, v{addr} offset:{i*2048}')
        a(f'ds_read_b64_tr_b16 {vr(LF+4*(i%8)+2,2)}, v{addr} offset:{i*2048+second}')
    if PRI & 2: a('s_setprio 0')
    for i in range(6):
        lread(i, V_RY, 512)
    for i in range(32):
        if i >= NFR:
            a(f's_waitcnt vmcnt({min(31, i+NFR-1)-i}) lgkmcnt({2*min(5, 31-i)})')
        else:
            a(f's_waitcnt lgkmcnt({2*min(5, 31-i)})')
        cc = vr(AB, 16) if i else '0'
        a(f'v_mfma_f32_32x32x16_bf16 {vr(AB,16)}, {vr(FR+4*(i%NFR),4)}, {vr(LF+4*(i%8),4)}, {cc}')
        if i + NFR < 32: fload(i + NFR)
        if i + 6 < 32: lread(i + 6, V_RY, 512)
    if PRI & 2: a('s_setprio 2')
    stamp(10)
    if E('NOHELP', 0) == 3:
        dump()
        a('s_endpgm')
    L_EX = L_X + 49152
    F_EX = F_MM
    a(f's_lshl_b32 s{S_T2}, s{S_QG}, 1')
    a(f's_add_u32 s{S_T2}, s{S_T2}, s{S_NI}')
    a(f's_lshl_b32 s{S_T2}, s{S_T2}, 1')
    a(f's_add_u32 s{S_T2}, s{S_T2}, s{S_MI}')
    a(f's_lshl_b32 s{S_T2}, s{S_T2}, 14')
    SBK = [R_X, R_X+1, R_X+2, R_X+3]
    S_PD = S_P
    for k in range(4):
        a(f's_add_u32 s{SBK[k]}, s{S_T2}, {WS_O + 4096*k}')
    a(f'v_sub_f32 {u(1)}, 1.0, v{V_GT}')
    for i in range(4):
        a(f'v_mov_b32 {u(4+i)}, 0')
    a('s_nop 1')
    for r_ in (AA, AX):
        a(f'v_mfma_f32_32x32x16_bf16 {vr(r_,16)}, {vr(V_U+4,4)}, {vr(V_U+4,4)}, 0')
    for i in range(8):
        a(f'v_pk_mul_f32 {vr(AB+2*i,2)}, {vr(AB+2*i,2)}, {vr(V_U,2)} op_sel:[0,1] op_sel_hi:[1,1]')
    a(f'v_mov_b32 v{V_DM}, v{V_GT}')
    a(f's_lshl_b32 s{S_T0}, s{S_HW}, 2')
    a(f'v_add_u32 v{V_DW}, s{S_T0}, v{V_Z}')
    a(f'v_xor_b32 v{V_GT}, 8, v{V_DW}')
    a(f's_lshl_b32 s{S_T0}, s{S_HW}, 12')
    a(f's_add_u32 s{S_T0}, s{S_T0}, {L_EX}')
    a(f'v_add_u32 v{V_RA}, s{S_T0}, v{V_L16}')
    a(f'v_xor_b32 v{V_RY}, 0x2000, v{V_RA}')
    def oload(p_, t_):
        a(f'buffer_load_dwordx4 {vr(FI+4*p_,4)}, v{V_L16}, {ws}, s{SBK[p_>>1]} offen offset:{(p_%2)*2048+1024*t_}{SC}')
    def ocheck(p_, t_, k):
        a(f'v_cmp_eq_u32 vcc, -1, v{FI+4*p_+3}')
        a(f's_cbranch_vccnz KG_OC{t_}{k}_{p_}')
        a(f'v_mfma_f32_32x32x16_bf16 {vr(AX,16)}, {vr(fw(p_,t_,1),4)}, {vr(FI+4*p_,4)}, {vr(AX,16)}')
        a(f'v_mfma_f32_32x32x16_bf16 {vr(AA,16)}, {vr(fw(p_,t_,0),4)}, {vr(FI+4*p_,4)}, {vr(AA,16)}')
        a(f's_bitset0_b32 s{S_PD}, {p_}')
        a.label(f'KG_OC{t_}{k}_{p_}')
    def pend_each(tag, fn):
        for g in range(2):
            a(f's_and_b32 s{S_T0}, s{S_PD}, {hex(0xf << (4*g))}')
            a(f's_cbranch_scc0 KG_OG{tag}_{g}')
            for p_ in range(4*g, 4*g + 4):
                a(f's_bitcmp1_b32 s{S_PD}, {p_}')
                a(f's_cbranch_scc0 KG_OP{tag}_{p_}')
                fn(p_)
                a.label(f'KG_OP{tag}_{p_}')
            a.label(f'KG_OG{tag}_{g}')
    for t_ in range(2):
        a(f's_movk_i32 s{S_PD}, 0xff')
        a(f's_mov_b32 s{S_CNT}, {POLL_LIMIT}')
        if t_ == 0:
            stamp(4)
            lds_wait(F_ADONE, 1, V_U, sleep=4)
            stamp(3)
        elif O1W == 1:
            lds_wait(F_PGW, 10, V_U, sleep=1, addr=V_DW)
            stamp(11)
        elif O1W == 2:
            pg_wait(10, 1)
            stamp(11)
        for p_ in range(8):
            oload(p_, t_)
        for p_ in range(8):
            a(f's_waitcnt vmcnt({7-p_})')
            ocheck(p_, t_, 0)
        if TST and t_: stamp(1)
        a.label(f'KG_OR{t_}')
        a(f's_cmp_eq_u32 s{S_PD}, 0')
        a(f's_cbranch_scc1 KG_OD{t_}')
        a(f's_sub_u32 s{S_CNT}, s{S_CNT}, 1')
        a(f's_cbranch_scc1 KG_OD{t_}')
        sl = O_SLEEP if t_ == 0 else O_SLEEP1
        if sl: a(f's_sleep {sl}')
        pend_each(f'L{t_}', lambda p_: oload(p_, t_))
        a('s_waitcnt vmcnt(0)')
        pend_each(f'C{t_}', lambda p_: ocheck(p_, t_, 1))
        a(f's_branch KG_OR{t_}')
        a.label(f'KG_OD{t_}')
        if t_ == 0: stamp(5)
        elif TST: stamp(2)
    a(f'v_mov_b32 {u(1)}, 1')
    a('s_nop 7')
    for q in range(4):
        a(f'ds_write_b128 v{V_RA}, {vr(AX+4*q,4)} offset:{1024*q}')
    a(f'ds_write_b32 v{V_DW}, {u(1)} offset:{4*F_EX}')
    def ex_reads():
        a(f'ds_read_b32 {u(0)}, v{V_GT} offset:{4*F_EX}')
        for q in range(4):
            a(f'ds_read_b128 {vr(FI+4*q,4)}, v{V_RY} offset:{1024*q}')
    ex_reads()
    for i in range(8):
        a(f'v_pk_fma_f32 {vr(AB+2*i,2)}, {vr(AA+2*i,2)}, {vr(V_DM,2)}, {vr(AB+2*i,2)} op_sel_hi:[1,0,1]')
    a.label('KG_EXL')
    a('s_waitcnt lgkmcnt(4)')
    a(f'v_readfirstlane_b32 s{S_T0}, {u(0)}')
    a(f's_cmp_lg_u32 s{S_T0}, 0')
    a('s_cbranch_scc1 KG_EXD')
    ex_reads()
    a(f's_sub_u32 s{S_LIM}, s{S_LIM}, 1')
    a('s_cbranch_scc0 KG_EXL')
    a.label('KG_EXD')
    for i in range(8):
        if i % 2 == 0: a(f's_waitcnt lgkmcnt({3 - i//2})')
        a(f'v_pk_fma_f32 {vr(AA+2*i,2)}, {vr(FI+2*i,2)}, {vr(V_DM,2)}, {vr(AB+2*i,2)} op_sel_hi:[1,0,1]')
    for i in range(8):
        a(f'v_cvt_pk_bf16_f32 v{LF+i}, v{AA+2*i}, v{AA+2*i+1}')
    for q in range(2):
        a(f'buffer_store_dwordx4 {vr(LF+4*q,4)}, v{V_OUT}, {sr(R_OUT,4)}, 0 offen offset:{16*q}{OUTSC}')
    dump()
    a('s_endpgm')

    SG, SL, SD = 168, 176, 184
    a.label('KG_SPA')
    a(f's_mov_b32 s{S_T0}, {L_SP}')
    a(f's_mov_b32 s{S_T1}, {L_SPW}')
    for e in range(8):
        k_ = u(4 + (e & 1))
        a(f'v_sub_u32 {k_}, {2048 - 64*(e&3) - 1024*(e>>2)}, v{V_A3}')
        a(f'v_and_b32 {k_}, 2047, {k_}')
        a(f'v_lshl_add_u32 v{SL+e}, {k_}, 2, s{S_T0}')
        a(f'v_lshl_add_u32 v{SG+e}, {k_}, 3, s{S_T1}')
    a('s_branch KG_SPAR')
    a.label('KG_SPB')
    a(f's_mov_b32 s{S_C0}, 0x05040100')
    a(f's_mov_b32 s{S_C0+1}, 0x07060302')
    a(f's_mov_b32 s{S_T1}, {L_SPW}')
    a(f'v_lshl_add_u32 {u(4)}, v{V_A3}, 3, s{S_T1}')
    a('s_waitcnt vmcnt(0)')
    for e in range(8):
        for j, base in enumerate((V_W, V_XX)):
            a(f'v_perm_b32 v{SD+2*e+j}, v{base+12+(e>>1)}, v{base+4+(e>>1)}, s{S_C0+(e&1)}')
        a(f'ds_write_b64 {u(4)}, {vr(SD+2*e,2)} offset:{512*(e&3) + 8192*(e>>2)}')
    a('s_branch KG_SPBR')
    a.label('KG_SPECIAL')
    for e in range(8):
        a(f'ds_read_b64 {vr(SD+2*e,2)}, v{SG+e}')
    a(f'v_lshlrev_b32 {u(4)}, 2, v{V_A3}')
    a(f'v_add_u32 {u(6)}, {L_SP}, {u(4)}')
    for e in range(8):
        mt, r = e >> 2, e & 3
        a(f'ds_write2st64_b32 {u(6)}, v{V_AC+8*mt+r}, v{V_AC+8*mt+4+r} offset0:{16*mt+r} offset1:{32+16*mt+r}')
    a(f'v_mov_b32 {u(0)}, 1')
    a('s_waitcnt lgkmcnt(0)')
    a('s_mov_b64 exec, 1')
    a(f'ds_add_u32 v{V_Z}, {u(0)} offset:{4*F_SY2}')
    a('s_mov_b64 exec, -1')
    unpack(V_XX)
    for e in range(8):
        a0r, a0i, a1r, a1i = V_W + e, V_W + 8 + e, V_XX + e, V_XX + 8 + e
        b0r, b0i, b1r, b1i = SD + 16, SD + 2*e, SD + 17, SD + 2*e + 1
        a(f'v_lshlrev_b32 v{b0r}, 16, v{b0i}')
        a(f'v_lshlrev_b32 v{b1r}, 16, v{b1i}')
        a(f'v_and_b32 v{b0i}, 0xffff0000, v{b0i}')
        a(f'v_and_b32 v{b1i}, 0xffff0000, v{b1i}')
        a(f'v_add_f32 v{b0r}, v{a0r}, v{b0r}')
        a(f'v_sub_f32 v{b0i}, v{a0i}, v{b0i}')
        a(f'v_add_f32 v{b1r}, v{a1r}, v{b1r}')
        a(f'v_sub_f32 v{b1i}, v{a1i}, v{b1i}')
        a(f'v_add_f32 v{a0r}, v{b0r}, v{b1r}')
        a(f'v_add_f32 v{a0i}, v{b0i}, v{b1i}')
        a(f'v_sub_f32 v{a1r}, v{b0r}, v{b1r}')
        a(f'v_sub_f32 v{a1i}, v{b0i}, v{b1i}')
    lds_wait(F_SY2, 4, V_U, sleep=1)
    for e in range(8):
        a(f'ds_read2st64_b32 {vr(V_D+2*e,2)}, v{SL+e} offset0:0 offset1:32')
    a(f's_mov_b32 s{S_T0}, {f32_bits(0.125)}')
    for e in range(8):
        mt, r = e >> 2, e & 3
        zr_, zi_ = V_AC + 8*mt + r, V_AC + 8*mt + 4 + r
        pr, pi_, mr, mi = V_W + e, V_W + 8 + e, V_XX + e, V_XX + 8 + e
        znr, zni = V_D + 2*e, V_D + 2*e + 1
        rr, ri = SD + 2*e, SD + 2*e + 1
        a(f'v_mul_f32 v{rr}, v{zr_}, v{pr}')
        a(f'v_mul_f32 v{ri}, v{zr_}, v{pi_}')
        a(f'v_fma_f32 v{rr}, -v{zi_}, v{pi_}, v{rr}')
        a(f'v_fma_f32 v{ri}, v{zi_}, v{pr}, v{ri}')
        a(f's_waitcnt lgkmcnt({7-e})')
        a(f'v_fma_f32 v{rr}, v{znr}, v{mr}, v{rr}')
        a(f'v_fma_f32 v{ri}, v{znr}, v{mi}, v{ri}')
        a(f'v_fma_f32 v{rr}, v{zni}, v{mi}, v{rr}')
        a(f'v_fma_f32 v{ri}, -v{zni}, v{mr}, v{ri}')
        a(f'v_mul_f32 v{zr_}, s{S_T0}, v{rr}')
        a(f'v_mul_f32 v{zi_}, s{S_T0}, v{ri}')
    a('s_branch KG_STEP3')
    a.label('KG_END')
    a('s_endpgm')
    return 256, (102 if ST in (5, 6, 7) else NS)

def build_g(path):
    a = Asm()
    hdr = open(f'cdna_kernels/{NAME}.s.ref').read().split('\n')
    for l in hdr:
        if l.startswith(';') and '@launch' not in l and 'Override launch' not in l and 'grid=ceil' not in l:
            a.raw(l)
    kn = NAME + '_kernel'
    if E('PLAIN', 0):
        a.raw(f'; @launch grid=(256,1,1) block=(512,1,1) lds={KG_LDS}')
    else:
        a.raw(f'; @launch kernel={kn} grid=(256,1,1) block=(512,1,1) lds={KG_LDS}')
    a.raw('.amdgcn_target "amdgcn-amd-amdhsa--gfx950"')
    a.raw('.text')
    v, s = gen_g(a, kn)
    a.raw('.section .rodata,"a"')
    kernel_desc(a, kn, v, s)
    gen_tables(a)
    gen_k2.gen_tables_k2(a)
    gen_k3.gen_tables_k3(a)
    open(path, 'w').write(a.text())

if __name__ == '__main__':
    build_g(sys.argv[1] if len(sys.argv) > 1 else 'j.s')
```

```python
from gen import *
import gen_k2, gen_k3
from gen_k2 import YSCALE
import os

WS_ROOT = 0x240000
WS_FL1 = 0x244000
WS_FL2 = 0x248000
WS_FL3 = 0x24C000
WS_FL4 = 0x260000
TAG_M, TAG_C = 0x9E3779B1, 0x7F4A7C15
WS_XC = 0x250000
FORCE_GL = int(os.environ.get('FORCE_GL', '0'))
WS_KVT = int(os.environ.get('WS_KVT', '0x280000'), 0)

L_X = 0
L_WQ = 65536
L_FLAG = 131072
L_KW = L_FLAG + 256
L_GATE = L_KW + 16384
KG_LDS = 163840
L_APR = L_KW; L_API = L_APR + 5120
L_CPR = L_API + 5120; L_CPI = L_CPR + 4608
L_MX = L_KW
L_MXM = L_KW + 20480
assert L_CPI + 4608 <= L_MXM and L_MX + 8 * 2304 <= L_MXM and L_MXM + 4096 <= KG_LDS and L_GATE + 1024 <= L_MXM
L_SP = L_WQ
L_SPW = L_X + 49152
L_WO = L_X
L_Y = L_WQ
F_CX, F_CW = 0, 1
F_CC, F_MG, F_MM, F_PG, F_QX = 0, 8, 16, 40, 48
L_QX = L_GATE + 1024
assert L_QX + 8192 <= KG_LDS
F_N, F_TAG, F_QDONE, F_J1, F_S1OK, F_SY0, F_SY1, F_SY2, F_J2, F_S2OK, F_J3, F_TAGOK, F_ADONE, F_J4, F_KVS, F_GI, F_PRE = range(24, 41)
F_PRE = 2
F_PGW = 8
F_KX = 15
F_WR = 3
F_LOC = 14
F_POS, F_H2 = 12, 13
L_PRE = L_KW
NWAVE = 8
WS_G = 0x230000
E = lambda k, d: int(os.environ.get(k, str(d)))
LOAD_D = E('LOAD_D', 6)
KV_SLEEP = E('KV_SLEEP', 4)
O_SLEEP = E('O_SLEEP', 0)
THR = E('THR', 15)
LD_PRE = {'X': E('LD_PREX', 0), 'W': E('LD_PREW', 0)}
KV_BAR = E('KV_BAR', 15)
FAIR = E('FAIR', 1)
KV_LAG = E('KV_LAG', 0)
TF_LAG = E('TF_LAG', 1)
WT_LAG = E('WT_LAG', 8)
G_DELAY = E('G_DELAY', 12)
Q7_SLEEP = E('Q7_SLEEP', 0)
H2_PD = E('H2_PD', 12)
KVSC = ' sc1' if E('KVSC1', 0) else ''
OSC = ' sc1' if E('OSC1', 0) else ''
SC = ' sc1'
POLL_LIMIT = 1 << 18
NSTAMP = 12
OF_STEP = E('OF_STEP', 10)
O1W = E('O1W', 1)
FI_TOUCH = E('FI_TOUCH', 0)
T2 = E('T2', 1)
ROT = E('ROT', 3)
KVL = E('KVL', 1)
DRY = E('DRY', 0)
QP = E('QP', 1)
OLD = {0: ' sc1', 1: ' nt', 2: ' sc0 sc1', 3: ' sc0 nt'}[E('OLD', 0)]
XS = E('XS', 5)
LOCSC = {0: '', 1: ' nt', 2: ' sc0', 3: ' sc0 nt'}[E('LOCSC', 1)]
LOCSE = {0: '', 1: ' nt', 2: ' sc0', 3: ' sc0 nt', 4: ' sc1'}[E('LOCSE', 4)]
O_SLEEP1 = E('O_SLEEP1', 0)
NFO = E('NFO', 10)
TST = E('TST', 0)
OST = '' if E('OPLAIN', 0) else ' sc1'
S1_SLEEP = E('S1_SLEEP', 4)
S2_SLEEP = E('S2_SLEEP', 8)
SPSC = ' sc1' if E('SPSC1', 0) else ''
KP_DELAY = E('KP_DELAY', 0)
PEEL_B = E('PEEL_B', 4)
PRI = E('PRI', 7)
LST = E('LST', 0)
G_EARLY = E('G_EARLY', 8)
G_TRIG = E('G_TRIG', 7)
QPIPE = E('QPIPE', 2)
EPOLL = E('EPOLL', 8)
TOUCH = E('TOUCH', 0)
FST = E('FST', 0)
PRET = E('PRET', 1)
OUTSC = {0: '', 1: ' sc1', 2: ' nt', 3: ' sc0 sc1', 4: ' sc1 nt'}[E('OUTSC', 2)]

def gen_g(a, name):
    kernel_header(a, name)
    S_X, S_WQ, S_WK, S_WV, S_WO, S_WS, S_WR, S_WI, S_GT, S_OUT = 4, 6, 8, 10, 12, 14, 16, 18, 20, 22
    R_X, R_WS, R_A, R_B, R_TB, R_OUT = 24, 28, 32, 36, 40, 44
    S_W, S_QG, S_HG, S_T0, S_T1, S_T2, S_T3, S_CNT, S_KOFF, S_KB, S_P, S_KH = 48, 49, 50, 51, 52, 53, 54, 55, 56, 57, 58, 59
    S_VM = 60; S_C0 = 62; S_C1 = 64
    S_CT, S_A, S_F, S_HW, S_MH, S_NH, S_SEEN, S_LIM, S_TAG = 3, 66, 67, 68, 69, 70, 71, 72, 73
    NS = 74
    SB = 74
    ws = sr(R_WS, 4); xs = sr(R_X, 4); ra = sr(R_A, 4); rb_ = sr(R_B, 4); tb = sr(R_TB, 4)
    TM = 's_memrealtime' if ST in (5, 7) else 's_memtime'
    duid = [0]
    def stamp(i, f=0):
        if FST and (i >= 7) != bool(f):
            if i >= 7 or f: return
        if f and not FST: return
        if ST in (5, 6, 7):
            a(f'{TM} s[{SB+2*i}:{SB+1+2*i}]')
    def dump(kind=0):
        n = NSTAMP
        if ST == 7:
            duid[0] += 1
            a('s_waitcnt vmcnt(0)')
            a(f'{TM} s[{SB+2*n}:{SB+1+2*n}]')
            a(f's_load_dwordx2 s[{R_A}:{R_A+1}], s[0:1], 80')
            a(f's_mov_b32 s{R_A+2}, 256')
            a(f's_mov_b32 s{R_A+3}, 0x20000')
            a('s_waitcnt lgkmcnt(0)')
            a('s_mov_b64 exec, 1')
            a('v_mov_b32 v0, 0')
            a(f's_cmp_lg_u32 s{S_W}, {4 if kind else 0}')
            a(f's_cbranch_scc1 KG_DD{duid[0]}')
            if kind:
                a(f's_not_b32 s{S_T0}, s{SB}')
                a(f'v_mov_b32 v2, s{S_T0}')
                a(f'buffer_atomic_umax v2, v0, {ra}, 0 offen offset:0')
                L = [(2, 0), (3, 2), (4, 3), (5, 4), (6, 5), (7, 12)]
            else:
                a(f'v_mov_b32 v2, s{SB+24}')
                a(f'buffer_atomic_umax v2, v0, {ra}, 0 offen offset:4')
                L = [(8, 3), (9, 5), (10, 6), (11, 7), (12, 8), (13, 9), (14, 11), (15, 12)]
            for k, (sl, st_) in enumerate(L):
                a(f'v_mov_b32 v{3+k}, s{SB+2*st_}')
                a(f'buffer_atomic_add v{3+k}, v0, {ra}, 0 offen offset:{4*sl}')
            a.label(f'KG_DD{duid[0]}')
        if ST in (5, 6):
            a('s_waitcnt vmcnt(0)')
            a(f'{TM} s[{SB+2*n}:{SB+1+2*n}]')
            a('s_mov_b64 exec, 1')
            a(f's_lshl_b32 s{S_T0}, s2, 4')
            a(f's_add_u32 s{S_T0}, s{S_T0}, s{S_W}')
            a(f's_lshl_b32 s{S_T0}, s{S_T0}, 6')
            a(f's_add_u32 s{S_T0}, s{S_T0}, {0xC00000}')
            a('s_waitcnt lgkmcnt(0)')
            a(f's_mov_b32 s{R_WS+2}, 0x1000000')
            a('v_mov_b32 v0, 0')
            if LST and kind:
                a('s_mov_b64 exec, 0xffff')
                a('v_mbcnt_lo_u32_b32 v3, -1, 0')
                a('v_lshlrev_b32 v3, 2, v3')
                a(f'v_add_u32 v3, 0x100000, v3')
                a(f'buffer_store_dword v{192+23}, v3, {ws}, s{S_T0} offen')
                a('s_mov_b64 exec, 1')
            for i in range(n + 1):
                a(f'v_mov_b32 v2, s{SB+2*i}')
                a(f'buffer_store_dword v2, v0, {ws}, s{S_T0} offen offset:{4*i}')
                a('s_nop 1')

    a('s_cmp_ge_u32 s2, 256')
    a('s_cbranch_scc1 KG_END')
    if ST in (5, 6, 7):
        for i in range(NSTAMP + 1):
            a(f's_mov_b32 s{SB+2*i}, 0')
    stamp(0)
    a(f's_load_dwordx8 s[{S_X}:{S_X+7}], s[0:1], 0')
    a(f's_load_dwordx2 s[{S_WS}:{S_WS+1}], s[0:1], 88')
    a(f's_load_dwordx4 s[{S_GT}:{S_GT+3}], s[0:1], 64')
    a(f's_load_dwordx2 s[{S_WO}:{S_WO+1}], s[0:1], 32')
    a(f's_load_dwordx4 s[{S_WR}:{S_WR+3}], s[0:1], 48')
    a('v_lshrrev_b32 v1, 6, v0')
    a('v_and_b32 v0, 63, v0')
    a(f's_and_b32 s{S_T0}, s2, 7')
    a(f'v_readfirstlane_b32 s{S_W}, v1')
    a(f's_lshl_b32 s{S_T0}, s{S_T0}, 2')
    a(f's_lshr_b32 s{S_QG}, s2, 6')
    a(f's_add_u32 s{S_QG}, s{S_QG}, s{S_T0}')
    a(f's_bfe_u32 s{S_HG}, s2, 0x30003')
    a(f's_mov_b32 s{S_LIM}, {1<<21}')
    S_ROT = S_F
    if ROT == 1:
        a(f's_lshl_b32 s{S_ROT}, s{S_HG}, 7')
    elif ROT == 2:
        a(f's_lshr_b32 s{S_ROT}, s2, 5')
        a(f's_and_b32 s{S_ROT}, s{S_ROT}, 6')
        a(f's_add_u32 s{S_ROT}, s{S_ROT}, s{S_HG}')
        a(f's_and_b32 s{S_ROT}, s{S_ROT}, 7')
        a(f's_lshl_b32 s{S_ROT}, s{S_ROT}, 7')
    elif ROT == 3:
        a(f's_lshr_b32 s{S_ROT}, s2, 6')
        a(f's_lshl_b32 s{S_ROT}, s{S_ROT}, 8')
    V_Z = 7
    a(f'v_mov_b32 v{V_Z}, {L_FLAG}')
    V_I, V_G, V_L16, V_A1, V_A2, V_A3 = 1, 2, 3, 4, 5, 6
    V_U = 8
    u = lambda i: f'v{V_U+i}'
    KX, KW, KA = 16, 80, 144
    S_RB, S_TY, S_KQ = S_P, S_KH, S_KB
    a(f'v_and_b32 v{V_I}, 15, v0')
    a(f'v_lshrrev_b32 v{V_G}, 4, v0')
    a(f'v_lshlrev_b32 v{V_L16}, 4, v0')
    a(f's_mov_b32 s{S_HW}, s{S_W}')
    a(f's_cmp_lg_u32 s{S_W}, 0')
    a('s_cbranch_scc1 KG_N0')
    a('s_setprio 2')
    a(f'v_lshl_add_u32 {u(1)}, v0, 2, v{V_Z}')
    a(f'v_mov_b32 {u(2)}, 0')
    a(f'ds_write_b32 {u(1)}, {u(2)}')
    def xaddr():
        a(f'v_lshrrev_b32 {u(0)}, 3, v0')
        a(f'v_and_b32 {u(1)}, 7, v0')
        a(f'v_lshrrev_b32 {u(2)}, 2, {u(0)}')
        a(f'v_and_b32 {u(3)}, 3, {u(0)}')
        a(f'v_lshl_add_u32 {u(2)}, {u(2)}, 4, {u(3)}')
        a(f'v_lshlrev_b32 {u(2)}, 15, {u(2)}')
        a(f's_lshl_b32 s{S_T0}, s{S_QG}, 10')
        a(f'v_add_u32 {u(2)}, s{S_T0}, {u(2)}')
        a(f'v_xor_b32 {u(3)}, v{V_G}, {u(1)}')
        a(f'v_lshl_add_u32 {u(4)}, {u(3)}, 4, {u(2)}')
        a(f'v_xor_b32 {u(3)}, 4, {u(3)}')
        a(f'v_lshl_add_u32 {u(5)}, {u(3)}, 4, {u(2)}')
        a(f'v_add_u32 {u(5)}, {131072 - 1024}, {u(5)}')
    def xpair(sd, sl, sp):
        a(f's_lshr_b32 s{sd}, s{sp}, 1')
        a(f's_lshl_b32 s{sd}, s{sd}, 20')
        a(f's_and_b32 s{sl}, s{sp}, 1')
        a(f's_lshl_b32 s{sl}, s{sl}, 18')
        a(f's_add_u32 s{sd}, s{sd}, s{sl}')
        if ROT: a(f's_add_u32 s{sd}, s{sd}, s{S_ROT}')
        a(f's_lshl_b32 s{sl}, s{sp}, 11')
    a(f's_lshr_b32 s{S_RB}, s{S_HG}, 1')
    a(f's_and_b32 s{S_TY}, s{S_HG}, 1')
    xaddr()
    xpair(S_T2, S_T3, S_RB)
    a(f's_mov_b32 s{R_A+2}, 16384')
    a(f's_mov_b32 s{R_A+3}, 0x20000')
    a(f's_mov_b32 s{R_X+2}, {2048 * 1024}')
    a(f's_mov_b32 s{R_X+3}, 0x20000')
    a(f's_mov_b32 m0, s{S_T3}')
    a(f's_cmp_eq_u32 s{S_TY}, 1')
    a('s_waitcnt lgkmcnt(0)')
    stamp(8, 1)
    a(f's_cselect_b64 s[{R_A}:{R_A+1}], s[{S_WV}:{S_WV+1}], s[{S_WK}:{S_WK+1}]')
    def touch():
        S_I, S_J, S_K = S_CNT, S_KOFF, S_SEEN
        a(f's_lshr_b32 s{S_I}, s2, 3')
        srd(a, R_TB, S_WQ, 512 * 1024)
        a(f'v_lshlrev_b32 {u(6)}, 7, v0')
        a(f's_lshl_b32 s{S_J}, s{S_I}, 14')
        a(f's_add_u32 s{S_K}, s{S_J}, 8192')
        a(f'buffer_load_dword v{KA+16}, {u(6)}, {tb}, s{S_J} offen')
        a(f'buffer_load_dword v{KA+17}, {u(6)}, {tb}, s{S_K} offen')
        a(f'v_and_b32 {u(7)}, 32, v0')
        a(f'v_lshlrev_b32 {u(7)}, 10, {u(7)}')
        a(f'v_and_b32 {u(6)}, 0xfff, {u(6)}')
        a(f'v_add_u32 {u(7)}, {u(7)}, {u(6)}')
        a(f's_and_b32 s{S_K}, s2, 7')
        a(f's_lshl_b32 s{S_K}, s{S_K}, 12')
        a(f's_lshl_b32 s{S_J}, s{S_I}, 16')
        a(f's_add_u32 s{S_K}, s{S_K}, s{S_J}')
        a(f'buffer_load_dword v{KA+18}, {u(7)}, {xs}, s{S_K} offen')
    a(f's_mov_b64 s[{R_X}:{R_X+1}], s[{S_X}:{S_X+1}]')
    if TOUCH == 2: touch()
    for c in range(8):
        if c:
            a(f's_add_u32 m0, s{S_T3}, {c*8192}')
            a(f's_add_u32 s{S_T2}, s{S_T2}, 128')
            if ROT: a(f's_bitset0_b32 s{S_T2}, 10')
        a(f'buffer_load_dwordx4 {u(4)}, {xs}, s{S_T2} offen lds')
        a(f'buffer_load_dwordx4 {u(5)}, {xs}, s{S_T2} offen offset:1024 lds')
        if c == 0: stamp(10, 1)
    for q in range(4):
        a(f's_mov_b32 m0, {L_KW + q*4096}')
        if ROT == 3:
            if q == 0: a(f's_lshl_b32 s{S_T0}, s{S_ROT}, 4')
            else:
                a(f's_add_u32 s{S_T0}, s{S_T0}, 4096')
                a(f's_bitset0_b32 s{S_T0}, 14')
        else:
            a(f's_movk_i32 s{S_T0}, {q*4096}')
        for j in range(4):
            a(f'buffer_load_dwordx4 v{V_L16}, {ra}, s{S_T0} offen offset:{j*1024} lds')
    srd(a, R_B, S_GT, 1024)
    a(f's_mov_b32 m0, {L_GATE}')
    a(f's_lshr_b32 s{S_T2}, s2, 3')
    if ROT == 3:
        a(f'v_add_u32 {u(6)}, s{S_ROT}, v{V_L16}')
        a(f'v_and_b32 {u(6)}, 0x3ff, {u(6)}')
        a(f'buffer_load_dwordx4 {u(6)}, {rb_}, 0 offen lds')
    else:
        a(f'buffer_load_dwordx4 v{V_L16}, {rb_}, 0 offen lds')
    if TOUCH == 1: touch()
    stamp(11, 1)
    a('s_barrier')
    stamp(1)
    a('s_branch KG_KV')
    a.label('KG_N0')
    a(f's_cmp_lt_u32 s{S_W}, 4')
    a('s_cbranch_scc1 KG_N1')
    if PRET:
        a(f's_getpc_b64 s[{R_A}:{R_A+1}]')
        a.label('KG_PC')
        a(f's_mov_b32 s{R_A+2}, KG_END-KG_PC')
        a(f's_mov_b32 s{R_A+3}, 0x20000')
        a(f's_lshl_b32 s{S_T0}, s{S_W}, 13')
        a(f's_sub_u32 s{S_T1}, s{S_T0}, 0x8000')
        a(f'v_lshlrev_b32 v212, 7, v0')
        a(f'buffer_load_dword v213, v212, {ra}, s{S_T1} offen')
        a(f'buffer_load_dword v214, v212, {ra}, s{S_T0} offen')
    a('s_branch KG_ATT')
    a.label('KG_N1')
    a('s_setprio 2')
    a(f's_cmp_lg_u32 s{S_W}, 1')
    a('s_cbranch_scc1 KG_N2')
    a(f's_mov_b32 s{S_T3}, {WS_ROOT}')
    a(f'v_mov_b32 {u(2)}, 0')
    a('s_waitcnt lgkmcnt(0)')
    srd(a, R_WS, S_WS, WS_SIZE)
    a(f'buffer_load_dword {u(3)}, {u(2)}, {ws}, s{S_T3} offen{SC}')
    a('s_barrier')
    stamp(1)
    a('s_branch KG_TAG')
    a.label('KG_N2')
    S_O, S_L = S_P, S_P + 4
    assert S_O + 8 <= S_A
    S_PV = S_NH
    LK = LOAD_D // 2
    assert L_X == 0 and 1 <= LK <= 7
    a(f's_mov_b32 s{S_PV}, {-LK}')
    a(f's_mov_b32 s{R_A+3}, 0x20000')
    a(f's_cmp_eq_u32 s{S_HW}, 3')
    a('s_cbranch_scc1 KG_LDW')
    def ld_tail(tag, n, flag, first=None):
        if LD_PRE[tag]:
            a(f's_cmp_lg_i32 s{S_PV}, {LD_PRE[tag]-LK}')
            a(f's_cbranch_scc1 KG_LB{tag}')
            a('s_barrier')
            stamp(1)
            a.label(f'KG_LB{tag}')
        a(f'v_mov_b32 {u(6)}, s{S_PV}')
        a(f's_cmp_le_i32 s{S_PV}, 0')
        a(f's_cbranch_scc1 KG_LL{tag}')
        if first: first()
        a(f's_waitcnt vmcnt({n*LK})')
        a(f'ds_write_b32 v{V_Z}, {u(6)} offset:{4*flag}')
        stamp(9, 1)
        if FST:
            a(f's_cmp_lg_u32 s{S_PV}, 1')
            a(f's_cbranch_scc1 KG_FS{tag}')
            stamp(7, 1)
            a.label(f'KG_FS{tag}')
        a(f's_cmp_lt_i32 s{S_PV}, {8-LK}')
        a(f's_cbranch_scc1 KG_LL{tag}')
        for j in range(LK):
            a(f'v_mov_b32 {u(6)}, {8-LK+1+j}')
            a(f's_waitcnt vmcnt({n*(LK-1-j)})')
            a(f'ds_write_b32 v{V_Z}, {u(6)} offset:{4*flag}')
            if j < 2: stamp(10 + j, 1)
        a('s_branch KG_H2B')
    xaddr()
    a(f's_lshr_b32 s{S_T1}, s{S_HG}, 1')
    for k in range(3):
        a(f's_add_u32 s{S_T1}, s{S_T1}, 1')
        a(f's_and_b32 s{S_T1}, s{S_T1}, 3')
        xpair(S_O + k, S_L + k, S_T1)
    a(f's_mov_b32 s{R_A+2}, {2048 * 1024}')
    a(f's_mov_b32 s{S_T2}, 0')
    a('s_waitcnt lgkmcnt(0)')
    a(f's_mov_b64 s[{R_A}:{R_A+1}], s[{S_X}:{S_X+1}]')
    stamp(8, 1)
    if not LD_PRE['X']:
        a('s_barrier')
        stamp(1)
    if XS: a(f's_sleep {XS}')
    a.label('KG_LLX')
    a(f's_add_i32 s{S_PV}, s{S_PV}, 1')
    for k in range(3):
        a(f's_mov_b32 m0, s{S_L+k}')
        a(f's_add_u32 s{S_L+k}, s{S_L+k}, 8192')
        a(f'buffer_load_dwordx4 {u(4)}, {ra}, s{S_O+k} offen lds')
        a(f'buffer_load_dwordx4 {u(5)}, {ra}, s{S_O+k} offen offset:1024 lds')
        a(f's_add_u32 s{S_O+k}, s{S_O+k}, 128')
        if ROT: a(f's_bitset0_b32 s{S_O+k}, 10')
    def kx_wait():
        a(f's_cmp_lg_u32 s{S_T2}, 0')
        a('s_cbranch_scc1 KG_KXD')
        a.label('KG_KXW')
        a(f'ds_read_b32 {u(7)}, v{V_Z} offset:{4*F_KX}')
        a('s_waitcnt lgkmcnt(0)')
        a(f'v_readfirstlane_b32 s{S_T2}, {u(7)}')
        a(f's_cmp_lg_u32 s{S_T2}, 0')
        a('s_cbranch_scc1 KG_KXD')
        a('s_sleep 1')
        a(f's_sub_u32 s{S_LIM}, s{S_LIM}, 1')
        a('s_cbranch_scc0 KG_KXW')
        a(f's_mov_b32 s{S_LIM}, 0')
        a.label('KG_KXD')
    ld_tail('X', 6, F_CX, kx_wait)
    a.label('KG_LDW')
    a(f'v_lshrrev_b32 {u(0)}, 3, v0')
    a(f'v_and_b32 {u(1)}, 7, v0')
    a(f'v_and_b32 {u(2)}, 1, v{V_G}')
    a(f'v_lshlrev_b32 {u(2)}, 2, {u(2)}')
    a(f'v_xor_b32 {u(2)}, {u(2)}, {u(1)}')
    a(f'v_lshlrev_b32 {u(2)}, 4, {u(2)}')
    a(f'v_lshl_add_u32 {u(2)}, {u(0)}, 10, {u(2)}')
    a(f's_lshl_b32 s{S_T0}, s{S_HG}, 7')
    a(f'v_add_u32 {u(2)}, s{S_T0}, {u(2)}')
    for j in range(1, 4):
        a(f'v_add_u32 {u(2+j)}, {7168*j}, {u(2)}')
    if ROT: a(f's_lshl_b32 s{S_O}, s{S_ROT}, 9')
    else: a(f's_mov_b32 s{S_O}, 0')
    a(f's_mov_b32 s{S_L}, {L_WQ}')
    a(f's_mov_b32 s{R_A+2}, {512 * 1024}')
    a('s_waitcnt lgkmcnt(0)')
    a(f's_mov_b64 s[{R_A}:{R_A+1}], s[{S_WQ}:{S_WQ+1}]')
    stamp(8, 1)
    if not LD_PRE['W']:
        a('s_barrier')
        stamp(1)
    a.label('KG_LLW')
    a(f's_add_i32 s{S_PV}, s{S_PV}, 1')
    for k in range(2):
        a(f's_mov_b32 m0, s{S_L}')
        a(f's_add_u32 s{S_L}, s{S_L}, 4096')
        for j in range(4):
            a(f'buffer_load_dwordx4 {u(2+j)}, {ra}, s{S_O} offen offset:{1024*j} lds')
        a(f's_add_u32 s{S_O}, s{S_O}, 32768')
        if ROT and k == 1: a(f's_bitset0_b32 s{S_O}, 19')
        if k == 0: a(f's_waitcnt vmcnt({8*LK})')
    ld_tail('W', 8, F_CW)

    uid = [0]
    def lds_wait(flag, val, vtmp, sleep=1, addr=None, sdst=None):
        uid[0] += 1; u = uid[0]
        addr = V_Z if addr is None else addr
        sdst = S_T0 if sdst is None else sdst
        a.label(f'KG_LW{u}')
        a(f'ds_read_b32 v{vtmp}, v{addr} offset:{4*flag}')
        a('s_waitcnt lgkmcnt(0)')
        a(f'v_readfirstlane_b32 s{sdst}, v{vtmp}')
        a(f's_cmp_ge_u32 s{sdst}, {val}')
        a(f's_cbranch_scc1 KG_LD{u}')
        a(f's_sleep {sleep}')
        a(f's_sub_u32 s{S_LIM}, s{S_LIM}, 1')
        a(f's_cbranch_scc0 KG_LW{u}')
        a(f's_mov_b32 s{S_LIM}, 0')
        a.label(f'KG_LD{u}')
    def lds_add(flag, vtmp):
        a(f'v_mov_b32 v{vtmp}, 1')
        a('s_mov_b64 exec, 1')
        a(f'ds_add_u32 v{V_Z}, v{vtmp} offset:{4*flag}')
        a('s_mov_b64 exec, -1')
    def get_tag(vtmp):
        a(f'ds_read_b32 v{vtmp}, v{V_Z} offset:{4*F_TAG}')
        a('s_waitcnt lgkmcnt(0)')
        a(f'v_readfirstlane_b32 s{S_TAG}, v{vtmp}')

    V_OQ, V_OV = 2, 3
    V_M = 4
    V_H = 6
    V_Q = 8
    V_S = 16
    V_P = 48
    V_O = 64
    V_K = 96
    V_V = 128
    V_T = 192
    S_N = S_KH
    V_PGA, V_PGV, V_LK = V_T + 16, V_T + 17, V_T + 18
    a.label('KG_ATT')
    a('s_setprio 1')
    a(f's_and_b32 s{S_CT}, s{S_W}, 1')
    a(f's_bfe_u32 s{S_A}, s{S_W}, 0x10001')
    a(f's_mov_b32 s{S_N}, 0')
    a('v_and_b32 v1, 31, v0')
    a(f'v_lshrrev_b32 v{V_H}, 5, v0')
    V_XA = V_T
    V_WA = V_T + 4
    t = lambda i: f'v{V_T+8+i}'
    a(f'v_bfe_u32 {t(0)}, v0, 1, 3')
    a(f's_lshl_b32 s{S_T0}, s{S_A}, 12')
    a(f'v_lshlrev_b32 {t(1)}, 7, v1')
    a(f'v_add_u32 {t(1)}, s{S_T0}, {t(1)}')
    for ks in range(4):
        a(f'v_add_u32 {t(2)}, {2*ks}, v{V_H}')
        a(f'v_xor_b32 {t(2)}, {t(2)}, {t(0)}')
        a(f'v_lshl_add_u32 v{V_XA+ks}, {t(2)}, 4, {t(1)}')
    a(f'v_bfe_u32 {t(0)}, v0, 2, 2')
    a(f'v_and_b32 {t(1)}, 3, v0')
    a(f'v_bfe_u32 {t(2)}, v0, 4, 1')
    a(f'v_lshl_add_u32 {t(3)}, v{V_H}, 3, {t(0)}')
    a(f'v_lshlrev_b32 {t(3)}, 7, {t(3)}')
    a(f'v_lshrrev_b32 {t(4)}, 1, {t(1)}')
    a(f'v_and_b32 {t(5)}, 1, {t(1)}')
    a(f'v_lshrrev_b32 {t(6)}, 1, {t(0)}')
    a(f'v_lshlrev_b32 {t(6)}, 2, {t(6)}')
    a(f'v_lshl_add_u32 {t(7)}, {t(2)}, 1, {t(4)}')
    a(f's_lshl_b32 s{S_T0}, s{S_CT}, 2')
    a(f'v_add_u32 {t(7)}, s{S_T0}, {t(7)}')
    a(f'v_xor_b32 {t(7)}, {t(7)}, {t(6)}')
    a(f'v_lshl_add_u32 {t(7)}, {t(7)}, 4, {t(3)}')
    a(f'v_lshl_add_u32 v{V_WA}, {t(5)}, 3, {t(7)}')
    a(f'v_add_u32 v{V_WA}, {L_WQ}, v{V_WA}')
    a(f'v_lshlrev_b32 v{V_OQ}, 4, v0')
    a(f'v_add_u32 v{V_LK}, {L_PRE}, v{V_OQ}')
    a(f's_lshl_b32 s{S_T0}, s{S_W}, 2')
    a(f'v_add_u32 v{V_PGA}, s{S_T0}, v{V_Z}')
    a(f'v_mov_b32 v{V_PGV}, 1')
    a(f's_mov_b32 s{S_VM}, 0xffff')
    a(f's_mov_b32 s{S_VM+1}, 0xffff')
    a(f'v_and_b32 {t(0)}, 27, v1')
    a(f'v_cmp_eq_u32 vcc, 16, {t(0)}')
    a(f'v_mov_b32 {t(1)}, 0x3f803f80')
    a(f'v_mov_b32 v{V_M}, 0')
    a(f'v_mov_b32 v{V_M+1}, 0')
    a(f'v_cndmask_b32 {t(1)}, 0, {t(1)}, vcc')
    for i in range(64):
        a(f'v_mov_b32 v{V_V+i}, {t(1)}')
    QA = V_S
    if QPIPE == 2:
        for i in range(16):
            a(f'v_mov_b32 v{QA+i}, 0')
    QB = (V_O, V_S + 16)
    a(f's_mov_b32 s{S_SEEN}, 0')
    a('s_waitcnt lgkmcnt(0)')
    srd(a, R_WS, S_WS, WS_SIZE)
    stamp(11, 1)
    a('s_barrier')
    stamp(1)
    def q_wait(c):
        a(f's_cmp_gt_u32 s{S_SEEN}, {c}')
        a(f's_cbranch_scc1 KG_QG{c}')
        a.label(f'KG_QP{c}')
        a(f'ds_read_b64 {vr(V_T+8,2)}, v{V_Z} offset:{4*F_CX}')
        a('s_waitcnt lgkmcnt(0)')
        a(f'v_min_u32 {t(0)}, {t(0)}, {t(1)}')
        a('s_nop 0')
        a(f'v_readfirstlane_b32 s{S_SEEN}, {t(0)}')
        a(f's_cmp_gt_u32 s{S_SEEN}, {c}')
        a(f's_cbranch_scc1 KG_QG{c}')
        if c < 7 or Q7_SLEEP:
            a('s_sleep 1')
        a(f's_sub_u32 s{S_LIM}, s{S_LIM}, 1')
        a(f's_cbranch_scc0 KG_QP{c}')
        a(f's_mov_b32 s{S_LIM}, 0')
        a.label(f'KG_QG{c}')
        if c in (0, 4, 6, 7): stamp({0: 7, 4: 8, 6: 9, 7: 10}[c], 1)
    def q_reads(c):
        b = QB[c & 1]
        for ks in range(4):
            a(f'ds_read_b128 {vr(b+4*ks,4)}, v{V_XA+ks} offset:{c*8192}')
            a(f'ds_read_b64_tr_b16 {vr(b+16+4*ks,2)}, v{V_WA} offset:{c*8192+ks*2048}')
            a(f'ds_read_b64_tr_b16 {vr(b+16+4*ks+2,2)}, v{V_WA} offset:{c*8192+ks*2048+512}')
    def progress():
        a(f'ds_write_b32 v{V_PGA}, v{V_PGV} offset:{4*(F_PGW-4)}')
    spins = []
    def pre_check(n):
        uid[0] += 1; u = uid[0]
        a(f's_cmp_lt_u32 s{S_N}, {n}')
        a(f's_cbranch_scc1 KG_SP{u}')
        a.label(f'KG_SR{u}')
        spins.append(('pre', u, n))
    def pos_check():
        uid[0] += 1; u = uid[0]
        a(f's_cmp_lt_u32 s{S_KOFF}, s{S_KB}')
        a(f's_cbranch_scc1 KG_SP{u}')
        a.label(f'KG_SR{u}')
        spins.append(('q', u, 0))
    def emit_spins():
        for kind, u, n in spins:
            a.label(f'KG_SP{u}')
            if kind == 'pre':
                a(f'ds_read_b32 v{V_T+8}, v{V_Z} offset:{4*F_PRE}')
                a('s_waitcnt lgkmcnt(0)')
                a(f'v_readfirstlane_b32 s{S_N}, v{V_T+8}')
                a(f's_cmp_ge_u32 s{S_N}, {n}')
                a(f's_cbranch_scc1 KG_SR{u}')
            else:
                a(f'ds_read_b32 v{V_T+8}, v{V_Z} offset:{4*F_POS}')
                a('s_waitcnt lgkmcnt(0)')
                a(f'v_readfirstlane_b32 s{S_KOFF}, v{V_T+8}')
                a(f's_cmp_ge_u32 s{S_KOFF}, s{S_KB}')
                a(f's_cbranch_scc1 KG_SR{u}')
                a('s_sleep 1')
            a(f's_sub_u32 s{S_LIM}, s{S_LIM}, 1')
            a(f's_cbranch_scc0 KG_SP{u}')
            a(f's_mov_b32 s{S_LIM}, 0')
            a(f's_branch KG_SR{u}')
        spins.clear()

    def load_k(slot, off):
        a(f'buffer_load_dwordx4 {vr(V_K+4*slot,4)}, v{V_OQ}, {ws}, s{S_KOFF} offen offset:{off}{KVSC}')
    def kv_group(c, adv=True):
        load_k(c & 7, 0)
        load_k((c + 1) & 7, 2048)
        a(f's_mov_b64 exec, s[{S_VM}:{S_VM+1}]')
        for j in range(2):
            sl = (c + j) & 7
            a(f'buffer_load_dwordx4 {vr(V_V+8*sl,4)}, v{V_OQ}, {ws}, s{S_KOFF} offen offset:{2048*j+1024}{KVSC}')
            a(f'buffer_load_dwordx4 {vr(V_V+8*sl+4,4)}, v{V_OQ}, {ws}, s{S_KOFF} offen offset:{2048*j+1280}{KVSC}')
        a('s_mov_b64 exec, -1')
        if adv:
            a(f's_add_u32 s{S_KOFF}, s{S_KOFF}, 4096')
    def pre_reads(c, n=1):
        for j in range(c, c + n):
            a(f'ds_read_b128 {vr(V_K+4*j,4)}, v{V_LK} offset:{2048*j}')
        a(f's_mov_b64 exec, s[{S_VM}:{S_VM+1}]')
        for j in range(c, c + n):
            a(f'ds_read_b128 {vr(V_V+8*j,4)}, v{V_LK} offset:{2048*j+1024}')
            a(f'ds_read_b128 {vr(V_V+8*j+4,4)}, v{V_LK} offset:{2048*j+1280}')
        a('s_mov_b64 exec, -1')
    def mfma_s(t_, slot):
        a(f'v_mfma_f32_32x32x16_bf16 {vr(V_S+16*t_,16)}, {vr(V_K+4*slot,4)}, {vr(V_Q+4*t_,4)}, 0')
    def mfma_pv(t_, slot, pp, zero=False):
        cc = '0' if zero else vr(V_O+16*t_, 16)
        a(f'v_mfma_f32_32x32x16_bf16 {vr(V_O+16*t_,16)}, {vr(V_V+8*slot+4*pp,4)}, {vr(V_P+8*t_+4*pp,4)}, {cc}')
    def cv(t_, i):
        a(f'v_cvt_pk_bf16_f32 v{V_P+8*t_+i}, v{V_S+16*t_+2*i}, v{V_S+16*t_+2*i+1}')

    if QPIPE == 2:
        S_QC = S_CNT
        def qw(k):
            a(f's_cmp_gt_u32 s{S_SEEN}, s{S_QC}')
            a(f's_cbranch_scc0 KG_QS{k}')
            a.label(f'KG_QR{k}')
        def qm(b, wait=True):
            for ks in range(4):
                if wait: a(f's_waitcnt lgkmcnt({min(15, 21 - 3*ks)})')
                a(f'v_mfma_f32_32x32x16_bf16 {vr(QA,16)}, {vr(b+16+4*ks,4)}, {vr(b+4*ks,4)}, {vr(QA,16)}')
        a(f's_mov_b32 s{S_QC}, 0')
        a('s_branch KG_QS0')
        for k in range(3):
            a.label(f'KG_QS{k}')
            a(f'ds_read_b64 {vr(V_T+8,2)}, v{V_Z} offset:{4*F_CX}')
            a('s_waitcnt lgkmcnt(0)')
            a(f'v_min_u32 {t(0)}, {t(0)}, {t(1)}')
            a('s_nop 0')
            a(f'v_readfirstlane_b32 s{S_SEEN}, {t(0)}')
            a(f's_cmp_gt_u32 s{S_SEEN}, s{S_QC}')
            a(f's_cbranch_scc1 KG_QR{k}')
            a('s_sleep 1')
            a(f's_sub_u32 s{S_LIM}, s{S_LIM}, 1')
            a(f's_cbranch_scc0 KG_QS{k}')
            a(f's_mov_b32 s{S_LIM}, 0')
            a(f's_branch KG_QR{k}')
        def fread():
            a(f'ds_read_b128 {vr(V_T+8,4)}, v{V_Z} offset:{4*F_CX}')
        def qg(n_, cn, ks):
            a(f'ds_read_b128 {vr(n_+4*ks,4)}, v{V_XA+ks} offset:{cn*8192}')
            a(f'ds_read_b64_tr_b16 {vr(n_+16+4*ks,2)}, v{V_WA} offset:{cn*8192+ks*2048}')
            a(f'ds_read_b64_tr_b16 {vr(n_+16+4*ks+2,2)}, v{V_WA} offset:{cn*8192+ks*2048+512}')
        def qf(b, ks):
            a(f'v_mfma_f32_32x32x16_bf16 {vr(QA,16)}, {vr(b+16+4*ks,4)}, {vr(b+4*ks,4)}, {vr(QA,16)}')
        a.label('KG_QR0')
        fread()
        q_reads(0)
        def qstep(cn):
            b = QB[1 - cn]; n_ = QB[cn]
            a('s_waitcnt lgkmcnt(9)')
            qf(b, 0)
            a(f'v_min_u32 {t(0)}, {t(0)}, {t(1)}')
            a(f's_add_u32 s{S_QC}, s{S_QC}, 1')
            a(f'v_readfirstlane_b32 s{S_SEEN}, {t(0)}')
            if cn == 0:
                for r in [V_XA + ks for ks in range(4)] + [V_WA]:
                    a(f'v_add_u32 v{r}, 0x4000, v{r}')
            qw(1 + cn)
            fread()
            qg(n_, cn, 0)
            for ks in range(1, 4):
                a('s_waitcnt lgkmcnt(10)')
                qf(b, ks)
                qg(n_, cn, ks)
        a.label('KG_QLP')
        qstep(1)
        a(f's_cmp_eq_u32 s{S_QC}, 7')
        a('s_cbranch_scc1 KG_QX')
        qstep(0)
        if QP:
            a(f'v_mov_b32 {t(4)}, s{S_QC}')
            a(f'ds_write_b32 v{V_PGA}, {t(4)}')
        a('s_branch KG_QLP')
        a.label('KG_QX')
        if E('QST', 0):
            stamp(7); a('s_waitcnt lgkmcnt(0)')
        a('s_waitcnt lgkmcnt(9)')
        qf(QB[1], 0)
        a(f'v_readfirstlane_b32 s{S_N}, {t(2)}')
        pre_check(1)
        pre_reads(0)
        for ks in range(1, 4):
            a(f's_waitcnt lgkmcnt({12 - 3*ks})')
            qf(QB[1], ks)
        progress()
        stamp(2)
    elif QPIPE:
        q_wait(0); q_reads(0)
        for c in range(8):
            if c < 7:
                q_wait(c + 1); q_reads(c + 1)
            else:
                a('s_waitcnt lgkmcnt(0)')
                progress()
                stamp(2)
                pre_check(1)
                pre_reads(0)
            b = QB[c & 1]
            for ks in range(4):
                if c < 7: a(f's_waitcnt lgkmcnt({min(15, 21 - 3*ks)})')
                cc = vr(QA, 16) if (c or ks) else '0'
                a(f'v_mfma_f32_32x32x16_bf16 {vr(QA,16)}, {vr(b+16+4*ks,4)}, {vr(b+4*ks,4)}, {cc}')
    else:
        for c in range(8):
            q_wait(c); q_reads(c)
            b = QB[c & 1]
            for ks in range(4):
                a(f's_waitcnt lgkmcnt({9 - 3*ks})')
                cc = vr(QA, 16) if (c or ks) else '0'
                a(f'v_mfma_f32_32x32x16_bf16 {vr(QA,16)}, {vr(b+16+4*ks,4)}, {vr(b+4*ks,4)}, {cc}')
        progress()
        stamp(2)

    def body(sub, peel, lds):
        def ex(t_, i):
            r = V_S + 16*t_ + i
            if sub:
                a(f'v_sub_f32 v{r}, v{r}, v{V_M+t_}')
            a(f'v_exp_f32 v{r}, v{r}')
        for b in range(8):
            for t_ in range(2):
                if peel and t_ == 0 and LST:
                    a('s_memtime s[100:101]')
                ex(t_, 0); ex(t_, 1)
                if t_ == 1:
                    mfma_pv(0, b, 1)
                elif not (peel and b == 0):
                    mfma_pv(1, (b - 1) & 7, 1)
                if peel and t_ == 0 and b < 7:
                    pre_check(b + 2)
                    pre_reads(b + 1)
                ex(t_, 2); ex(t_, 3); ex(t_, 4); ex(t_, 5)
                if t_ == 1:
                    if peel or (lds and b in (1, 7)):
                        a('s_waitcnt lgkmcnt(0)')
                    elif not lds and b & 1:
                        a('s_waitcnt vmcnt(12)')
                    if peel and LST:
                        a(f'v_writelane_b32 v{V_T+23}, s100, {8+b}')
                    mfma_s(0, (b + 1) & 7)
                    if lds and b == (6 if peel else 1):
                        progress()
                    if LST and lds and not peel and b == 1:
                        a(f'v_writelane_b32 v{V_T+23}, s100, m0')
                    if peel and b == 6:
                        pos_check()
                        pre_reads(0, 2)
                else:
                    mfma_s(1, b)
                    if peel and b == 6:
                        a(f'v_add_u32 v{V_PGV}, 1, v{V_PGV}')
                    if peel and b == 7:
                        pre_reads(2, 2)
                    if lds and not peel and b == 0:
                        pre_reads(4, 4)
                        a(f'v_add_u32 v{V_PGV}, 1, v{V_PGV}')
                    if lds and not peel and b == 4:
                        pos_check()
                        pre_reads(0, 4)
                    if not lds and b % 2 == 0:
                        kv_group(b + 6)
                ex(t_, 6); ex(t_, 7)
                cv(t_, 0); cv(t_, 1); cv(t_, 2); cv(t_, 3)
                if peel and b == 6 and t_ == 0:
                    a(f'v_add_u32 v{V_LK}, {L_WQ - L_PRE}, v{V_LK}')
                if lds and not peel and b == 3 and t_ == 0:
                    a(f'v_add_u32 v{V_LK}, 0x4000, v{V_LK}')
                    a(f's_add_u32 s{S_KB}, s{S_KB}, 1')
                    a(f'v_and_b32 v{V_LK}, 0x1ffff, v{V_LK}')
                ex(t_, 8); ex(t_, 9)
                mfma_pv(t_, b, 0, zero=(peel and b == 0))
                for i in range(10, 16):
                    ex(t_, i)
                cv(t_, 4); cv(t_, 5); cv(t_, 6); cv(t_, 7)

    def attn_pass(tag, sub, first):
        if first:
            if not QPIPE:
                pre_check(1)
                pre_reads(0)
            stamp(3)
            a('s_nop 4')
            for i in range(8):
                a(f'v_cvt_pk_bf16_f32 v{V_Q+i}, v{QA+2*i}, v{QA+2*i+1}')
            a('s_waitcnt lgkmcnt(0)')
            mfma_s(0, 0)
            a(f's_mov_b32 s{S_CNT}, 6')
            a(f's_mov_b32 s{S_KOFF}, 0')
            a(f's_mov_b32 s{S_KB}, 1')
            stamp(4)
            a('s_nop 4')
            body(False, True, True)
        else:
            a(f's_mov_b32 s{S_KOFF}, {WS_KV}')
            for c in range(0, 6, 2):
                kv_group(c)
            for i in range(32):
                a(f'v_mov_b32 v{V_O+i}, 0')
            for i in range(4):
                a(f'v_mov_b32 v{V_P+12+i}, 0')
            a('s_waitcnt vmcnt(12)')
            mfma_s(0, 0)
            a(f's_mov_b32 s{S_CNT}, 8')
            a('s_nop 10')
        a.label(f'KG_LOOP{tag}')
        if LST and first:
            a('s_memtime s[100:101]')
            a(f's_mov_b32 m0, s{S_CNT}')
        body(sub, False, first)
        a(f's_sub_u32 s{S_CNT}, s{S_CNT}, 1')
        a(f's_cmp_lg_u32 s{S_CNT}, 0')
        a(f's_cbranch_scc1 KG_LOOP{tag}')
        if first:
            last_body()
        else:
            mfma_pv(1, 7, 1)

    S_OA, S_FA, S_LOC, S_BAD = S_P, S_SEEN, S_MH, S_NH
    V_TG, V_ZR, V_PK, V_RC = V_T, V_T + 2, V_T + 4, V_T + 9
    outl = []
    def st2(ins):
        uid[0] += 1; k = uid[0]
        a(f's_cmp_eq_u32 s{S_LOC}, 1')
        a(f's_cbranch_scc0 KG_SG{k}')
        a(ins + LOCSC)
        a.label(f'KG_SH{k}')
        outl.append((k, ins))
    def rng(t_):
        a(f'v_cmp_le_f32 s[{S_C0}:{S_C0+1}], s{S_T0}, v{V_O+16*t_+8}')
        a(f'v_cmp_ge_f32 s[{S_C1}:{S_C1+1}], s{S_T1}, v{V_O+16*t_+8}')
        a(f'v_rcp_f32 v{V_RC}, v{V_O+16*t_+8}')
        a(f's_and_b64 s[{S_C0}:{S_C0+1}], s[{S_C0}:{S_C0+1}], s[{S_C1}:{S_C1+1}]')
        a(f's_cmp_eq_u64 s[{S_C0}:{S_C0+1}], -1')
    def o_store(t_):
        for i in range(8):
            a(f'v_mul_f32 v{V_O+16*t_+i}, v{V_RC}, v{V_O+16*t_+i}')
        for i in range(4):
            a(f'v_cvt_pk_bf16_f32 v{V_PK+i}, v{V_O+16*t_+2*i}, v{V_O+16*t_+2*i+1}')
        a(f'v_min_u32 v{V_PK+3}, -2, v{V_PK+3}')
        st2(f'buffer_store_dwordx4 {vr(V_PK,4)}, v{V_OQ}, {ws}, s{S_OA} offen offset:{1024*t_}')
    def o_flag(t_):
        a('s_mov_b64 exec, 1')
        st2(f'buffer_store_dword v{V_TG}, v{V_ZR}, {ws}, s{S_FA} offen offset:{4*t_}')
        a('s_mov_b64 exec, -1')
    def last_body():
        steps = [(0, c) for c in range(8)] + [(1, c) for c in range(8)]
        def pv(tile, buf, slot, pp):
            a(f'v_mfma_f32_32x32x16_bf16 {vr(V_O+16*tile,16)}, {vr(V_V+8*slot+4*pp,4)}, {vr(V_P+8*buf+4*pp,4)}, {vr(V_O+16*tile,16)}')
        def ex(p_, i):
            a(f'v_exp_f32 v{V_S+16*p_+i}, v{V_S+16*p_+i}')
        for n, (tile, c) in enumerate(steps):
            p_ = n & 1
            pt, pc = steps[n - 1] if n else (1, 7)
            ex(p_, 0); ex(p_, 1)
            pv(pt, 1 - p_, pc, 1)
            ex(p_, 2); ex(p_, 3); ex(p_, 4); ex(p_, 5)
            if n == 2:
                a('s_waitcnt lgkmcnt(0)')
            if n < 15:
                nt, nc = steps[n + 1]
                a(f'v_mfma_f32_32x32x16_bf16 {vr(V_S+16*(1-p_),16)}, {vr(V_K+4*nc,4)}, {vr(V_Q+4*nt,4)}, 0')
            if n == 0:
                pre_reads(4, 4)
                a(f'ds_read_b32 v{V_ZR}, v{V_Z} offset:{4*F_LOC}')
                a(f'v_add_u32 v{V_PGV}, 1, v{V_PGV}')
            if n == 2:
                progress()
                a(f'v_readfirstlane_b32 s{S_LOC}, v{V_ZR}')
                a(f'v_add_u32 v{V_PGV}, 1, v{V_PGV}')
            if n == 9:
                rng(0)
                a(f's_cselect_b32 s{S_BAD}, 0, 1')
                a('s_cbranch_scc0 KG_L9')
                o_store(0)
                a.label('KG_L9')
            if n == OF_STEP:
                a(f's_cmp_lg_u32 s{S_BAD}, 0')
                a('s_cbranch_scc1 KG_L12')
                a(f'ds_write_b32 v{V_Z}, v{V_PGV} offset:{4*F_ADONE}')
                a.label('KG_L12')
            ex(p_, 6); ex(p_, 7)
            cv(p_, 0); cv(p_, 1); cv(p_, 2); cv(p_, 3)
            ex(p_, 8); ex(p_, 9)
            pv(tile, p_, c, 0)
            for i in range(10, 16):
                ex(p_, i)
            cv(p_, 4); cv(p_, 5); cv(p_, 6); cv(p_, 7)
        a('s_nop 1')
        pv(1, 1, 7, 1)

    a(f's_lshl_b32 s{S_T2}, s{S_QG}, 1')
    a(f's_add_u32 s{S_T2}, s{S_T2}, s{S_A}')
    a(f's_lshl_b32 s{S_T3}, s{S_HG}, 1')
    a(f's_add_u32 s{S_T3}, s{S_T3}, s{S_CT}')
    a(f's_lshl_b32 s{S_T2}, s{S_T2}, 4')
    a(f's_add_u32 s{S_T2}, s{S_T2}, s{S_T3}')
    a(f's_lshl_b32 s{S_OA}, s{S_T2}, 11')
    a(f's_add_u32 s{S_OA}, s{S_OA}, {WS_O}')
    a(f's_mov_b32 s{S_T0}, {f32_bits(2.0**-30)}')
    a(f's_mov_b32 s{S_T1}, {f32_bits(2.0**30)}')
    attn_pass('A', False, True)
    stamp(5)
    a('s_nop 12')
    rng(1)
    a('s_cbranch_scc0 KG_SLOW')
    a(f's_cmp_lg_u32 s{S_BAD}, 0')
    a('s_cbranch_scc1 KG_SLOW')
    a.label('KG_OUT')
    o_store(1)
    progress()
    if ST in (5, 6, 7): a('s_waitcnt vmcnt(0)')
    stamp(6)
    dump(1)
    a('s_endpgm')
    emit_spins()

    a.label('KG_SLOW')
    lds_wait(F_N, 127, V_T + 8, sdst=S_T2)
    a('s_waitcnt vmcnt(0)')
    a(f'v_mov_b32 v{V_M}, 0xff800000')
    a(f'v_mov_b32 v{V_M+1}, 0xff800000')
    a(f's_mov_b32 s{S_KOFF}, {WS_KV}')
    a(f's_mov_b32 s{S_CNT}, 64')
    a.label('KG_MAXLOOP')
    load_k(0, 0)
    a(f's_add_u32 s{S_KOFF}, s{S_KOFF}, 2048')
    a('s_waitcnt vmcnt(0)')
    mfma_s(0, 0)
    mfma_s(1, 0)
    a('s_nop 12')
    for t_ in range(2):
        for i in range(8):
            a(f'v_max3_f32 v{V_M+t_}, v{V_S+16*t_+2*i}, v{V_S+16*t_+2*i+1}, v{V_M+t_}')
    a(f's_sub_u32 s{S_CNT}, s{S_CNT}, 1')
    a(f's_cmp_lg_u32 s{S_CNT}, 0')
    a('s_cbranch_scc1 KG_MAXLOOP')
    for t_ in range(2):
        a(f'v_mov_b32 v{V_T+4+t_}, v{V_M+t_}')
    a('s_nop 1')
    for t_ in range(2):
        a(f'v_permlane32_swap_b32 v{V_M+t_}, v{V_T+4+t_}')
    a('s_nop 1')
    for t_ in range(2):
        a(f'v_max_f32 v{V_M+t_}, v{V_M+t_}, v{V_T+4+t_}')
    attn_pass('B', True, False)
    a('s_nop 12')
    a(f'v_rcp_f32 v{V_RC}, v{V_O+8}')
    a('s_nop 0')
    o_store(0)
    a(f'ds_write_b32 v{V_Z}, v{V_PGV} offset:{4*F_ADONE}')
    a(f'v_rcp_f32 v{V_RC}, v{V_O+24}')
    a('s_nop 0')
    a('s_branch KG_OUT')
    for k, ins in outl:
        a.label(f'KG_SG{k}')
        a(ins + SC)
        a(f's_branch KG_SH{k}')

    def hsetup():
        a(f's_lshl_b32 s{S_F}, s{S_HG}, 5')
        a(f's_add_u32 s{S_F}, s{S_F}, s{S_QG}')
        srd(a, R_WS, S_WS, WS_SIZE)

    def pg_wait(val, sleep=2, vb=V_U+4, fl=F_PGW):
        uid[0] += 1; k = uid[0]
        a.label(f'KG_PW{k}')
        a(f'ds_read_b128 {vr(vb,4)}, v{V_Z} offset:{4*fl}')
        a('s_waitcnt lgkmcnt(0)')
        a(f'v_min3_u32 v{vb}, v{vb}, v{vb+1}, v{vb+2}')
        a(f'v_min_u32 v{vb}, v{vb}, v{vb+3}')
        a('s_nop 0')
        a(f'v_readfirstlane_b32 s{S_T0}, v{vb}')
        a(f's_cmp_ge_u32 s{S_T0}, {val}')
        a(f's_cbranch_scc1 KG_PD{k}')
        a(f's_sleep {sleep}')
        a(f's_sub_u32 s{S_LIM}, s{S_LIM}, 1')
        a(f's_cbranch_scc0 KG_PW{k}')
        a(f's_mov_b32 s{S_LIM}, 0')
        a.label(f'KG_PD{k}')
    def kv_dma(s_cls, s_lds):
        for q in range(4):
            a(f's_mov_b32 m0, s{s_lds}')
            a(f's_add_u32 s{s_lds}, s{s_lds}, 4096')
            for j in range(4):
                a(f'buffer_load_dwordx4 v{V_L16}, {ws}, s{s_cls} offen offset:{1024*j}{KVSC} lds')
            a(f's_add_u32 s{s_cls}, s{s_cls}, 4096')
    def thr():
        a(f's_waitcnt vmcnt({THR})')
    S_TGX = S_MH
    def flag_store(base, idx=None, stag=None):
        idx = f's{S_F}' if idx is None else idx
        stag = S_TAG if stag is None else stag
        a(f's_lshr_b32 s{S_T0}, {idx}, 2')
        a(f's_lshl_b32 s{S_T0}, s{S_T0}, 7')
        a(f's_and_b32 s{S_T1}, {idx}, 3')
        a(f's_lshl_b32 s{S_T1}, s{S_T1}, 2')
        a(f's_add_u32 s{S_T0}, s{S_T0}, s{S_T1}')
        a(f's_add_u32 s{S_T0}, s{S_T0}, {base}')
        a(f'v_mov_b32 {u(0)}, 0')
        a(f'v_mov_b32 {u(1)}, s{stag}')
        a('s_mov_b64 exec, 1')
        a(f'buffer_store_dword {u(1)}, {u(0)}, {ws}, s{S_T0} offen{SC}')
        a('s_mov_b64 exec, -1')
    def join_flag(cnt, n, base):
        uid[0] += 1; k = uid[0]
        a(f'v_mov_b32 {u(0)}, 1')
        a('s_waitcnt vmcnt(0)')
        a('s_mov_b64 exec, 1')
        a(f'ds_add_rtn_u32 {u(1)}, v{V_Z}, {u(0)} offset:{4*cnt}')
        a('s_mov_b64 exec, -1')
        a('s_waitcnt lgkmcnt(0)')
        a(f'v_readfirstlane_b32 s{S_T0}, {u(1)}')
        a(f's_cmp_lg_u32 s{S_T0}, {n-1}')
        a(f's_cbranch_scc1 KG_JN{k}')
        flag_store(base)
        a.label(f'KG_JN{k}')
    S_NQ, S_NEW, S_LB, S_QU, S_PUB = S_P, S_KH, S_KB, S_SEEN, S_KOFF
    def glob_poll(tag, execmask, sleep, wide=True, lsh=7):
        a(f's_mov_b32 s{S_CNT}, {POLL_LIMIT}')
        a(f'v_lshlrev_b32 {u(0)}, {lsh}, v0')
        if execmask == 0xffffffff:
            a('s_mov_b32 exec_hi, 0')
        else:
            a(f's_mov_b64 exec, {execmask}')
        a.label(f'KG_GP{tag}')
        if wide:
            a(f'buffer_load_dwordx4 {vr(V_U+4,4)}, {u(0)}, {ws}, s{S_T1} offen{SC}')
            a('s_waitcnt vmcnt(0)')
            for i in range(4):
                a(f'v_xor_b32 {u(4+i)}, s{S_TGX if tag == "KV" else S_TAG}, {u(4+i)}')
            a(f'v_or3_b32 {u(4)}, {u(4)}, {u(5)}, {u(6)}')
            a(f'v_or_b32 {u(4)}, {u(4)}, {u(7)}')
            if tag == 'KV':
                a(f'v_lshlrev_b32 {u(5)}, 4, {u(4)}')
                a(f'v_cmp_ne_u32 vcc, 0, {u(5)}')
            else:
                a(f'v_cmp_ne_u32 vcc, 0, {u(4)}')
        else:
            a(f'buffer_load_dword {u(4)}, {u(0)}, {ws}, s{S_T1} offen{SC}')
            a('s_waitcnt vmcnt(0)')
            a(f'v_cmp_ne_u32 vcc, s{S_TAG}, {u(4)}')
        a(f's_sub_u32 s{S_CNT}, s{S_CNT}, 1')
        a(f's_cbranch_scc1 KG_GD{tag}')
        if tag == 'KV':
            S_DN = S_VM
            a(f's_and_b64 s[{S_C0}:{S_C0+1}], exec, vcc')
            a(f's_or_b64 s[{S_C1}:{S_C1+1}], s[{S_C0}:{S_C0+1}], s[{S_DN}:{S_DN+1}]')
            a('s_mov_b64 exec, -1')
            for c in range(8):
                m = 0xff << (8 * (c & 3))
                a(f's_and_b32 s{S_T0}, s{S_C1+(c>>2)}, {hex(m)}')
                a(f's_cselect_b32 s{S_T0}, 0, {hex(m)}')
                a(f's_cselect_b32 s{S_T2}, 0, {1 << c}')
                a(f's_or_b32 s{S_DN+(c>>2)}, s{S_DN+(c>>2)}, s{S_T0}')
                a(f's_or_b32 s{S_NEW}, s{S_NEW}, s{S_T2}')
            a('s_cbranch_scc0 KG_QE')
            a(f's_cmp_lg_u32 s{S_NQ}, 0')
            a('s_cbranch_scc1 KG_QL')
            if QP: pg_wait(2, 1, 16, 4)
            else: pg_wait(1, 1, 16)
            a.label('KG_QL')
            if QP:
                a(f's_cmp_lg_u32 s{S_NQ}, 1')
                a('s_cbranch_scc1 KG_QL2')
                pg_wait(1, 1, 16)
                a.label('KG_QL2')
            a(f's_ff1_i32_b32 s{S_T0}, s{S_NEW}')
            a(f's_bitset0_b32 s{S_NEW}, s{S_T0}')
            a(f's_cmp_ge_u32 s{S_NQ}, 4')
            a('s_cbranch_scc1 KG_QQ')
            a(f'v_mov_b32 {u(1)}, s{S_NQ}')
            a(f's_add_u32 s{S_NQ}, s{S_NQ}, 1')
            a(f's_lshl_b32 s{S_T0}, s{S_T0}, 14')
            a(f's_add_u32 s{S_T0}, s{S_T0}, {WS_KV}')
            kv_dma(S_T0, S_LB)
            a('s_waitcnt vmcnt(16)')
            a(f'ds_write_b32 v{V_Z}, {u(1)} offset:{4*F_POS}')
            a('s_branch KG_QN')
            a.label('KG_QQ')
            a(f's_lshl_b32 s{S_QU}, s{S_QU}, 3')
            a(f's_or_b32 s{S_QU}, s{S_QU}, s{S_T0}')
            a.label('KG_QN')
            a(f's_cmp_lg_u32 s{S_NEW}, 0')
            a('s_cbranch_scc1 KG_QL')
            a(f'v_mov_b32 {u(1)}, s{S_NQ}')
            a('s_waitcnt vmcnt(0)')
            a(f'ds_write_b32 v{V_Z}, {u(1)} offset:{4*F_POS}')
            a.label('KG_QE')
            a(f's_and_b64 exec, s[{S_C0}:{S_C0+1}], s[{S_C0}:{S_C0+1}]')
        else:
            a('s_and_b64 exec, exec, vcc')
        a(f's_cbranch_scc0 KG_GD{tag}')
        a(f's_sleep {sleep}')
        a(f's_branch KG_GP{tag}')
        a.label(f'KG_GD{tag}')
        a('s_mov_b64 exec, -1')

    a.label('KG_KV')
    stamp(9, 1)
    hsetup()
    a(f's_mov_b32 s{S_KQ}, s{S_QG}')
    a(f'v_bfe_u32 {u(1)}, v0, 2, 2')
    a(f'v_and_b32 {u(2)}, 3, v0')
    a(f'v_lshl_add_u32 {u(1)}, v{V_G}, 3, {u(1)}')
    a(f'v_lshlrev_b32 {u(1)}, 5, {u(1)}')
    a(f'v_lshl_add_u32 {u(1)}, {u(2)}, 3, {u(1)}')
    a(f'v_add_u32 v{V_A2}, {L_KW}, {u(1)}')
    a(f's_lshl_b32 s{S_T2}, s{S_QG}, 12')
    a(f's_lshr_b32 s{S_T0}, s{S_RB}, 1')
    a(f's_lshl_b32 s{S_T0}, s{S_T0}, 11')
    a(f's_add_u32 s{S_T2}, s{S_T2}, s{S_T0}')
    a(f's_and_b32 s{S_T0}, s{S_RB}, 1')
    a(f's_lshl_b32 s{S_T0}, s{S_T0}, 8')
    a(f's_add_u32 s{S_T2}, s{S_T2}, s{S_T0}')
    a(f's_lshl_b32 s{S_T0}, s{S_TY}, 10')
    a(f's_add_u32 s{S_T2}, s{S_T2}, s{S_T0}')
    a(f's_lshl_b32 s{S_T3}, s{S_T2}, 1')
    a(f's_add_u32 s{S_T2}, s{S_T2}, {WS_KV}')
    a(f's_add_u32 s{S_T3}, s{S_T3}, {WS_KVT}')
    a(f's_add_u32 s{S_CNT}, s{S_T3}, 0x40000')
    a(f's_lshl_b32 s{S_KOFF}, s{S_QG}, 3')
    a(f's_add_u32 s{S_KOFF}, s{S_KOFF}, s{S_HG}')
    lds_wait(F_TAGOK, 1, V_U)
    get_tag(V_U)
    a(f'v_and_b32 {u(2)}, 1, v{V_G}')
    a(f'v_lshrrev_b32 {u(3)}, 1, v{V_G}')
    a(f'v_lshlrev_b32 {u(4)}, 9, {u(2)}')
    a(f'v_lshl_add_u32 {u(4)}, v{V_I}, 4, {u(4)}')
    a(f'v_lshl_add_u32 {u(4)}, {u(3)}, 3, {u(4)}')
    a(f'v_lshlrev_b32 {u(6)}, 1, {u(4)}')
    a(f'v_mov_b32 v{KA+10}, s{S_TAG}')
    a(f'v_mov_b32 v{KA+11}, s{S_TAG}')
    a(f'v_mov_b32 v{KA+12}, 1')
    a(f's_getreg_b32 s{S_T0}, hwreg(HW_REG_XCC_ID, 0, 4)')
    a(f's_lshl_b32 s{S_T0}, s{S_T0}, 28')
    a(f's_xor_b32 s{S_TGX}, s{S_TAG}, s{S_T0}')
    a(f's_mov_b32 s{S_T1}, {f32_bits(QSCALE)}')
    a(f'v_lshrrev_b32 {u(2)}, 1, v{V_I}')
    a(f'v_xor_b32 {u(2)}, v{V_G}, {u(2)}')
    a(f'v_lshlrev_b32 {u(2)}, 4, {u(2)}')
    a(f'v_lshl_add_u32 {u(2)}, v{V_I}, 7, {u(2)}')
    a(f's_lshl_b32 s{S_T0}, s{S_RB}, 11')
    a(f'v_add_u32 {u(2)}, s{S_T0}, {u(2)}')
    a(f'v_xor_b32 {u(3)}, 64, {u(2)}')
    a(f's_waitcnt vmcnt({16 + (4 if TOUCH == 1 else 1)})')
    a(f'ds_write_b32 v{V_Z}, v{KA+12} offset:{4*F_KX}')
    for ks in range(16):
        a(f'ds_read_b128 {vr(KX+4*ks,4)}, {u(2+(ks&1))} offset:{(ks>>1)*8192}')
    a(f's_waitcnt vmcnt({4 if TOUCH == 1 else 1}) lgkmcnt(0)')
    stamp(2)
    def kv_reads(ks):
        a(f'ds_read_b64_tr_b16 {vr(KW+4*ks,2)}, v{V_A2} offset:{ks*1024}')
        a(f'ds_read_b64_tr_b16 {vr(KW+4*ks+2,2)}, v{V_A2} offset:{ks*1024+128}')
    for ks in range(7):
        kv_reads(ks)
    a(f's_cmp_eq_u32 s{S_TY}, 1')
    a('s_cbranch_scc1 KG_KV1')
    for ty in range(2):
        if ty == 1:
            a.label('KG_KV1')
        for ks in range(16):
            n_out = min(6, 15 - ks)
            a(f's_waitcnt lgkmcnt({2*n_out})')
            cc = vr(KA + 4*(ks & 1), 4) if ks >= 2 else '0'
            if ty == 0:
                a(f'v_mfma_f32_16x16x32_bf16 {vr(KA+4*(ks&1),4)}, {vr(KW+4*ks,4)}, {vr(KX+4*ks,4)}, {cc}')
            else:
                a(f'v_mfma_f32_16x16x32_bf16 {vr(KA+4*(ks&1),4)}, {vr(KX+4*ks,4)}, {vr(KW+4*ks,4)}, {cc}')
            if ks + 7 < 16:
                kv_reads(ks + 7)
        a('s_nop 7')
        for i in range(4):
            a(f'v_add_f32 v{KA+i}, v{KA+i}, v{KA+4+i}')
        if ty == 0:
            for i in range(4):
                a(f'v_mul_f32 v{KA+i}, s{S_T1}, v{KA+i}')
        a(f'v_cvt_pk_bf16_f32 v{KA+8}, v{KA}, v{KA+1}')
        a(f'v_cvt_pk_bf16_f32 v{KA+9}, v{KA+2}, v{KA+3}')
        if KVL: a(f'buffer_store_dwordx4 {vr(KA+8,4)}, {u(6)}, {ws}, s{S_T3} offen')
        a(f'buffer_store_dwordx2 {vr(KA+8,2)}, {u(4)}, {ws}, s{S_T2} offen{SC}')
        a(f'buffer_store_dwordx4 {vr(KA+8,4)}, {u(6)}, {ws}, s{S_CNT} offen{SC}')
        a(f'ds_write_b32 v{V_Z}, v{KA+12} offset:{4*F_KVS}')
        stamp(1)
        a('s_waitcnt vmcnt(0)')
        flag_store(WS_FL1, f's{S_KOFF}', S_TGX)
        stamp(3)
        if ty == 1:
            a('s_branch KG_KP')
        else:
            a(f'v_lshlrev_b32 {u(2)}, 4, v{V_G}')
            a(f'v_add_u32 {u(2)}, {L_GATE}, {u(2)}')
            for half in range(2):
                for k8 in range(8):
                    ks = 8*half + k8
                    a(f'ds_read_b128 {vr(KW+4*ks,4)}, {u(2)} offset:{64*ks}')
                for k8 in range(8):
                    ks = 8*half + k8
                    a(f's_waitcnt lgkmcnt({7-k8})')
                    cc = vr(KA, 4) if ks else '0'
                    a(f'v_mfma_f32_16x16x32_bf16 {vr(KA,4)}, {vr(KW+4*ks,4)}, {vr(KX+4*ks,4)}, {cc}')
            a(f's_lshl_b32 s{S_T0}, s{S_KQ}, 8')
            a(f's_lshl_b32 s{S_T1}, s{S_RB}, 6')
            a(f's_add_u32 s{S_T0}, s{S_T0}, s{S_T1}')
            a(f's_add_u32 s{S_T1}, s{S_T0}, {WS_G}')
            a(f'v_lshlrev_b32 {u(2)}, 2, v{V_I}')
            a('s_nop 6')
            a(f'v_cvt_pk_bf16_f32 {u(3)}, v{KA}, v{KA}')
            a(f'v_lshlrev_b32 {u(3)}, 16, {u(3)}')
            a(f's_mov_b32 s{S_T0}, {f32_bits(-math.log2(math.e))}')
            a(f'v_mul_f32 {u(3)}, s{S_T0}, {u(3)}')
            a(f'v_exp_f32 {u(3)}, {u(3)}')
            a('s_nop 0')
            a(f'v_add_f32 {u(3)}, 1.0, {u(3)}')
            a(f'v_rcp_f32 {u(3)}, {u(3)}')
            a('s_nop 0')
            a(f'v_cvt_pk_bf16_f32 {u(3)}, {u(3)}, {u(3)}')
            a(f'v_lshlrev_b32 {u(3)}, 16, {u(3)}')
            a('s_mov_b64 exec, 0xffff')
            a(f'buffer_store_dword {u(3)}, {u(2)}, {ws}, s{S_T1} offen{SC}')
            a('s_mov_b64 exec, -1')
            a('s_branch KG_KP')

    a.label('KG_TAG')
    stamp(9, 1)
    hsetup()
    a('s_waitcnt vmcnt(0)')
    a(f'v_readfirstlane_b32 s{S_TAG}, {u(3)}')
    a(f's_mul_i32 s{S_TAG}, s{S_TAG}, {TAG_M}')
    a(f's_add_u32 s{S_TAG}, s{S_TAG}, {TAG_C}')
    a(f'v_mov_b32 {u(1)}, 1')
    a(f'v_mov_b32 {u(3)}, s{S_TAG}')
    a(f'ds_write_b32 v{V_Z}, {u(3)} offset:{4*F_TAG}')
    a(f'ds_write_b32 v{V_Z}, {u(1)} offset:{4*F_TAGOK}')
    stamp(2)
    GR = 16
    V_GW, V_QW = V_A1, V_A2
    S_PEND, S_GB, S_DN = S_P, S_KH, S_VM
    a(f's_and_b32 s{S_T0}, s2, 7')
    a(f's_lshl_b32 s{S_GB}, s{S_T0}, 15')
    a(f's_add_u32 s{S_GB}, s{S_GB}, {WS_KVT + (0 if KVL else 0x40000)}')
    a(f's_movk_i32 s{S_PEND}, 0x1ff')
    a(f'v_lshlrev_b32 v{V_GW}, 3, v0')
    a(f'v_add_u32 v{V_GW}, {L_PRE}, v{V_GW}')
    lds_wait(F_KVS, 1, V_U + 4, sleep=1)
    if G_DELAY:
        a(f's_sleep {G_DELAY}')
    def g_loads(c, sc=SC):
        a(f's_add_u32 s{S_T0}, s{S_GB}, {c*4096}')
        for j in range(4):
            a(f'buffer_load_dwordx4 {vr(GR+16*c+4*j,4)}, v{V_L16}, {ws}, s{S_T0} offen offset:{1024*j}{sc}')
    def g_check(c, k):
        for j in range(4):
            a(f'v_cmpx_eq_u32 vcc, s{S_TAG}, v{GR+16*c+4*j+2}')
        a('s_cmp_eq_u64 exec, -1')
        a('s_mov_b64 exec, -1')
        a(f's_cbranch_scc0 KG_GF{k}_{c}')
        for j in range(4):
            a(f'ds_write_b64 v{V_GW}, {vr(GR+16*c+4*j,2)} offset:{512*j}')
        a(f'v_add_u32 {u(6)}, 1, {u(6)}')
        a(f's_bitset0_b32 s{S_PEND}, {c}')
        a(f'v_add_u32 v{V_GW}, 0x800, v{V_GW}')
        a(f'ds_write_b32 v{V_Z}, {u(6)} offset:{4*F_PRE}')
        a.label(f'KG_GF{k}_{c}')
    def g_round(c0, c1, gi):
        for c in range(c0, c1):
            g_loads(c)
        if gi:
            a(f'ds_write_b32 v{V_Z}, {u(1)} offset:{4*F_GI}')
            stamp(1)
        for c in range(c0, c1):
            a(f's_waitcnt vmcnt({4*(c1-1-c)})')
            g_check(c, 0)
    S_AL = S_KB
    a(f'v_mov_b32 {u(6)}, 0')
    g_round(0, G_EARLY, G_EARLY == 8)
    stamp(5)
    a(f's_movk_i32 s{S_AL}, {(1 << G_EARLY) - 1}')
    a(f's_mov_b32 s{S_CNT}, {POLL_LIMIT}')
    a.label('KG_GR')
    a(f's_sub_u32 s{S_CNT}, s{S_CNT}, 1')
    a('s_cbranch_scc1 KG_GE')
    a(f's_cmp_eq_u32 s{S_PEND}, 0x100')
    a('s_cbranch_scc1 KG_GE')
    if G_EARLY < 8:
        a(f's_cmp_eq_u32 s{S_AL}, 0xff')
        a('s_cbranch_scc1 KG_GA')
        a(f'ds_read_b64 {vr(V_U+4,2)}, v{V_Z} offset:{4*F_CX}')
        a('s_waitcnt lgkmcnt(0)')
        a(f'v_min_u32 {u(4)}, {u(4)}, {u(5)}')
        a('s_nop 0')
        a(f'v_readfirstlane_b32 s{S_T0}, {u(4)}')
        a(f's_cmp_lt_u32 s{S_T0}, {G_TRIG}')
        a('s_cbranch_scc1 KG_GA')
        a(f's_movk_i32 s{S_AL}, 0xff')
        g_round(G_EARLY, 8, True)
        a('s_branch KG_GR')
        a.label('KG_GA')
    a(f's_and_b32 s{S_T2}, s{S_PEND}, s{S_AL}')
    a('s_cbranch_scc1 KG_GB')
    a('s_sleep 1')
    a('s_branch KG_GR')
    a.label('KG_GB')
    if KVL:
        assert (WS_KVT & 0x40000) == 0
        a(f's_bitset0_b32 s{S_GB}, 18')
        a(f's_and_b32 s{S_T0}, s{S_CNT}, 3')
        a('s_cbranch_scc1 KG_GC')
        a(f's_bitset1_b32 s{S_GB}, 18')
        a.label('KG_GC')
    for c in range(8):
        a(f's_bitcmp1_b32 s{S_T2}, {c}')
        a(f's_cbranch_scc0 KG_GL{c}')
        g_loads(c)
        a.label(f'KG_GL{c}')
    a('s_waitcnt vmcnt(0)')
    for c in range(8):
        a(f's_bitcmp1_b32 s{S_T2}, {c}')
        a(f's_cbranch_scc0 KG_GF1_{c}')
        g_check(c, 1)
    a('s_branch KG_GR')
    a.label('KG_GE')
    stamp(6)
    a('s_branch KG_WT')
    a.label('KG_KP')
    a(f's_and_b32 s{S_T0}, s2, 7')
    a(f's_lshl_b32 s{S_T0}, s{S_T0}, 3')
    a(f's_mov_b64 s[{S_DN}:{S_DN+1}], 0xff')
    a(f's_lshl_b64 s[{S_DN}:{S_DN+1}], s[{S_DN}:{S_DN+1}], s{S_T0}')
    a(f's_mov_b32 s{S_NQ}, 0')
    a(f's_mov_b32 s{S_QU}, 0')
    a(f's_mov_b32 s{S_NEW}, 0')
    a(f's_mov_b32 s{S_LB}, {L_WQ}')
    if not EPOLL: pg_wait(1)
    elif EPOLL > 1:
        lds_wait(F_CW, EPOLL, V_U, sleep=2)
        lds_wait(F_CX, EPOLL, V_U, sleep=2)
    a(f's_mov_b32 s{S_T1}, {WS_FL1}')
    if KP_DELAY:
        a(f's_sleep {KP_DELAY}')
    glob_poll('KV', -1, KV_SLEEP)
    a(f'v_mov_b32 {u(1)}, 127')
    a(f'ds_write_b32 v{V_Z}, {u(1)} offset:{4*F_N}')
    stamp(5)
    a(f's_lshl_b32 s{S_T0}, s{S_QG}, 1')
    a(f's_add_u32 s{S_T1}, s{S_T0}, 1')
    a(f'v_readlane_b32 s{S_T0}, {u(4)}, s{S_T0}')
    a(f'v_readlane_b32 s{S_T1}, {u(4)}, s{S_T1}')
    a('s_nop 1')
    a(f's_or_b32 s{S_T0}, s{S_T0}, s{S_T1}')
    a(f's_cmp_eq_u32 s{S_T0}, 0')
    a(f's_cselect_b32 s{S_T0}, {2 if FORCE_GL else 1}, 2')
    a(f'v_mov_b32 {u(4)}, s{S_T0}')
    a(f'ds_write_b32 v{V_Z}, {u(4)} offset:{4*F_LOC}')
    for i in range(4):
        a(f'v_mov_b32 {u(4+i)}, -1')
    a(f's_lshl_b32 s{S_T1}, s{S_QG}, 16')
    a(f's_lshl_b32 s{S_T2}, s{S_HG}, 12')
    a(f's_add_u32 s{S_T1}, s{S_T1}, s{S_T2}')
    a(f's_add_u32 s{S_T1}, s{S_T1}, {WS_O}')
    a(f's_add_u32 s{S_T2}, s{S_T1}, 32768')
    a(f's_cmp_eq_u32 s{S_T0}, 1')
    a('s_cbranch_scc1 KG_SE1')
    for n_, sc_ in enumerate((SC, LOCSE)):
        for k in range(8):
            a(f'buffer_store_dwordx4 {vr(V_U+4,4)}, v{V_L16}, {ws}, s{S_T1+(k>>2)} offen offset:{1024*(k&3)}{sc_}')
        if n_ == 0:
            a('s_branch KG_SE2')
            a.label('KG_SE1')
    a.label('KG_SE2')
    a('s_cmp_lg_u32 s2, 0')
    a('s_cbranch_scc1 KG_H3')
    a(f's_mov_b32 s{S_T3}, {WS_ROOT}')
    a(f'v_mov_b32 {u(2)}, 0')
    a(f'v_mov_b32 {u(3)}, s{S_TAG}')
    a('s_mov_b64 exec, 1')
    a(f'buffer_store_dword {u(3)}, {u(2)}, {ws}, s{S_T3} offen{SC}')
    a('s_mov_b64 exec, -1')
    a('s_branch KG_H3')

    a.label('KG_WT')
    if WT_LAG == 127:
        lds_wait(F_N, 127, V_U, sleep=2)
    elif WT_LAG == 100:
        lds_wait(F_POS, 1, V_U, sleep=2)
    elif WT_LAG:
        lds_wait(F_PRE, WT_LAG, V_U, sleep=2)
    S_FW, S_G4, S_PT = S_P, S_KH, S_KB
    a(f's_lshr_b32 s{S_FW}, s{S_QG}, 3')
    a(f's_bfe_u32 s{S_G4}, s{S_QG}, 0x20001')
    a(f's_and_b32 s{S_PT}, s{S_QG}, 1')
    a(f's_cmp_eq_u32 s{S_PT}, 1')
    a(f's_cselect_b64 s[{S_C0}:{S_C0+1}], s[{S_WI}:{S_WI+1}], s[{S_WR}:{S_WR+1}]')
    srd(a, R_A, S_C0, 2048 * 514)
    a(f's_lshl_b32 s{S_T3}, s{S_FW}, 4')
    a(f's_lshl_b32 s{S_T1}, s{S_G4}, 8')
    a(f's_add_u32 s{S_T1}, s{S_T1}, s{S_T3}')
    a(f'v_add_u32 {u(2)}, s{S_T1}, v{V_I}')
    a(f'v_mul_u32_u24 {u(2)}, 514, {u(2)}')
    a(f'v_lshl_add_u32 {u(2)}, v{V_G}, 4, {u(2)}')
    a(f's_lshl_b32 s{S_T1}, s{S_HG}, 6')
    a(f'v_add_u32 {u(2)}, s{S_T1}, {u(2)}')
    a(f'v_and_b32 {u(4)}, 2, {u(2)}')
    a(f'v_and_b32 {u(2)}, -4, {u(2)}')
    for e in range(8):
        a(f's_mov_b32 s{S_T0}, {(16*(e>>2)+(e&3))*32896}')
        a(f'buffer_load_dwordx4 {vr(16+4*e,4)}, {u(2)}, {ra}, s{S_T0} offen')
        a(f'buffer_load_dword v{96+e}, {u(2)}, {ra}, s{S_T0} offen offset:16')
    a(f's_or_b32 s{S_KOFF}, s{S_HG}, s{S_G4}')
    a(f's_cmp_lg_u32 s{S_KOFF}, 0')
    a('s_cbranch_scc1 KG_WT1')
    a(f'v_lshl_add_u32 {u(3)}, v{V_G}, 8, v{V_I}')
    a(f'v_add_u32 {u(3)}, s{S_T3}, {u(3)}')
    a(f'v_mul_u32_u24 {u(3)}, 514, {u(3)}')
    for e in range(8):
        a(f's_mov_b32 s{S_T0}, {(16*(e>>2)+(e&3))*32896}')
        a(f'buffer_load_ushort v{80+e}, {u(3)}, {ra}, s{S_T0} offen offset:512')
    a.label('KG_WT1')
    a(f's_mov_b32 s{S_C0}, 0x05040100')
    a(f's_mov_b32 s{S_C0+1}, 0x07060302')
    a(f'v_lshlrev_b32 {u(2)}, 16, v{V_G}')
    a(f'v_lshl_add_u32 {u(2)}, v{V_I}, 4, {u(2)}')
    a(f's_lshl_b32 s{S_T1}, s{S_HG}, 18')
    a(f's_lshl_b32 s{S_T2}, s{S_FW}, 11')
    a(f's_lshl_b32 s{S_T0}, s{S_PT}, 10')
    a(f's_add_u32 s{S_T2}, s{S_T2}, s{S_T0}')
    a(f's_add_u32 s{S_T2}, s{S_T2}, {WS_WT}')
    a(f's_add_u32 s{S_T1}, s{S_T1}, s{S_T2}')
    a(f's_lshl_b32 s{S_T0}, s{S_G4}, 8')
    a(f's_add_u32 s{S_T1}, s{S_T1}, s{S_T0}')
    a('s_waitcnt vmcnt(0)')
    stamp(3)
    for e in range(8):
        for j in range(4):
            hi = 16 + 4*e + j + 1 if j < 3 else 96 + e
            a(f'v_alignbyte_b32 v{16+4*e+j}, v{hi}, v{16+4*e+j}, {u(4)}')
    for ph in range(8):
        for q in range(4):
            lo = 16 + 4*(2*q) + (ph >> 1); hi = 16 + 4*(2*q+1) + (ph >> 1)
            a(f'v_perm_b32 v{48+4*ph+q}, v{hi}, v{lo}, s{S_C0+(ph&1)}')
    for ph in range(8):
        a(f's_add_u32 s{S_T0}, s{S_T1}, {8192*ph}')
        if not E('WT_NOST', 0): a(f'buffer_store_dwordx4 {vr(48+4*ph,4)}, {u(2)}, {ws}, s{S_T0} offen{SC}')
    a(f's_cmp_lg_u32 s{S_KOFF}, 0')
    a('s_cbranch_scc1 KG_J1')
    for q in range(4):
        a(f'v_lshl_or_b32 v{88+q}, v{81+2*q}, 16, v{80+2*q}')
    a(f's_add_u32 s{S_T0}, s{S_T2}, {256*8192}')
    a(f'buffer_store_dwordx4 {vr(88,4)}, v{V_L16}, {ws}, s{S_T0} offen{SC}')
    a('s_branch KG_J1')

    HT, HX, HA = 16, 64, 128
    a.label('KG_H2B')
    stamp(2)
    hsetup()
    table_srd(a, R_TB, 'TAB_F', 512 * 1024, 'f')
    a(f's_and_b32 s{S_CT}, s{S_HW}, 1')
    a(f's_lshl_b32 s{S_T2}, s{S_HG}, 16')
    a(f's_lshl_b32 s{S_T0}, s{S_CT}, 10')
    a(f's_add_u32 s{S_T2}, s{S_T2}, s{S_T0}')
    if TF_LAG == 1:
        lds_wait(F_GI, 1, V_U, sleep=2)
    elif TF_LAG == 100:
        lds_wait(F_POS, 1, V_U, sleep=2)
    elif TF_LAG:
        lds_wait(F_PRE, TF_LAG, V_U, sleep=2)
    if ROT == 3:
        a(f's_lshr_b32 s{S_KOFF}, s2, 6')
        a(f's_lshl_b32 s{S_KOFF}, s{S_KOFF}, 14')
    def tload(i):
        if ROT == 3:
            if i % 8 == 0:
                if i:
                    a(f's_add_u32 s{S_KOFF}, s{S_KOFF}, 0x4000')
                    a(f's_bitset0_b32 s{S_KOFF}, 16')
                a(f's_add_u32 s{S_KB}, s{S_T2}, s{S_KOFF}')
            if i % 2 == 0:
                a(f's_add_u32 s{S_T3}, s{S_KB}, {(i%8)*2048}')
        elif i % 2 == 0:
            a(f's_add_u32 s{S_T3}, s{S_T2}, {i*2048}')
        a(f'buffer_load_dwordx4 {vr(HT+4*(i%12),4)}, v{V_L16}, {tb}, s{S_T3} offen offset:{(i%2)*2048}')
    PD = H2_PD
    assert PD <= 12
    for i in range(PD):
        tload(i)
    a(f'v_and_b32 {u(4)}, 31, v0')
    a(f'v_lshrrev_b32 {u(5)}, 5, v0')
    a(f'v_bfe_u32 {u(6)}, v0, 1, 3')
    a(f'v_lshlrev_b32 {u(7)}, 7, {u(4)}')
    for ks in range(4):
        a(f'v_add_u32 v{HA+ks}, {2*ks}, {u(5)}')
        a(f'v_xor_b32 v{HA+ks}, v{HA+ks}, {u(6)}')
        a(f'v_lshl_add_u32 {u(ks)}, v{HA+ks}, 4, {u(7)}')
    a(f'v_lshlrev_b32 v{V_A1}, 12, {u(4)}')
    a(f'v_lshl_add_u32 v{V_A1}, {u(5)}, 5, v{V_A1}')
    stamp(5)
    lds_wait(F_CX, 8, V_U + 4, sleep=2)
    def xreads(c):
        for ks in range(4):
            for aa in range(2):
                a(f'ds_read_b128 {vr(HX+32*(c&1)+16*aa+4*ks,4)}, {u(ks)} offset:{c*8192+4096*aa}')
    if PRI & 1: a('s_setprio 0')
    xreads(0)
    for c in range(8):
        if c < 7:
            xreads(c + 1)
        for ks in range(4):
            i = 4*c + ks
            a(f's_waitcnt vmcnt({min(PD-1, 31-i)}) lgkmcnt({2*(3-ks) + (8 if c < 7 else 0)})')
            for aa in range(2):
                cc = vr(HA + 16*aa, 16) if i else '0'
                a(f'v_mfma_f32_32x32x16_bf16 {vr(HA+16*aa,16)}, {vr(HX+32*(c&1)+16*aa+4*ks,4)}, {vr(HT+4*(i%12),4)}, {cc}')
            if i + PD < 32: tload(i + PD)
    if PRI & 1: a('s_setprio 2')
    lds_add(F_H2, V_U)
    a(f's_lshl_b32 s{S_T0}, s{S_HG}, 18')
    a(f's_lshl_b32 s{S_T1}, s{S_CT}, 17')
    a(f's_add_u32 s{S_T0}, s{S_T0}, s{S_T1}')
    a(f's_lshl_b32 s{S_T1}, s{S_QG}, 7')
    a(f's_add_u32 s{S_T0}, s{S_T0}, s{S_T1}')
    a(f's_add_u32 s{S_T2}, s{S_T0}, {WS_X1T}')
    lds_wait(F_TAGOK, 1, V_U)
    get_tag(V_U)
    a('s_nop 4')
    for i in range(16):
        a(f'v_cvt_pk_bf16_f32 v{HX+i}, v{HA+2*i}, v{HA+2*i+1}')
    for aa in range(2):
        for q in range(2):
            a(f'buffer_store_dwordx4 {vr(HX+8*aa+4*q,4)}, v{V_A1}, {ws}, s{S_T2} offen offset:{64*aa+16*q}{SC}')
    a.label('KG_J1')
    join_flag(F_J1, 3, WS_FL2)
    stamp(6)
    a.label('KG_H3')
    if E('NOHELP', 0) == 1:
        lds_add(F_J2, V_U)
        dump()
        a('s_endpgm')

    V_T1 = 16
    V_T2 = 64
    V_D = 88
    V_TW = 104
    V_XX = 120
    V_W = 136
    V_AC = 152
    S_FW = S_HW
    table_srd(a, R_TB, 'TAB_K2', 24576 + 6144 + 32768, 'k2')
    O_T1, O_T2, O_TW1, O_TW2 = 0, 24576, 30720, 30720 + 16384
    a(f's_lshr_b32 s{S_MH}, s{S_FW}, 1')
    a(f's_and_b32 s{S_NH}, s{S_FW}, 1')
    a(f's_mul_i32 s{S_T0}, s{S_MH}, 12288')
    for i in range(12):
        if i % 4 == 0 and i:
            a(f's_add_u32 s{S_T0}, s{S_T0}, 4096')
        a(f'buffer_load_dwordx4 {vr(V_T1+4*i,4)}, v{V_L16}, {tb}, s{S_T0} offen offset:{(i%4)*1024}')
        thr()
    a(f's_lshl_b32 s{S_T2}, s{S_FW}, 12')
    a(f's_add_u32 s{S_T0}, s{S_T2}, {O_TW1}')
    for i in range(4):
        a(f'buffer_load_dwordx4 {vr(V_TW+4*i,4)}, v{V_L16}, {tb}, s{S_T0} offen offset:{i*1024}')
        thr()
    a(f's_mov_b32 s{S_T0}, {O_T2}')
    a(f's_mov_b32 s{S_T1}, {O_T2+4096}')
    for i in range(6):
        a(f'buffer_load_dwordx4 {vr(V_T2+4*i,4)}, v{V_L16}, {tb}, s{S_T0+(i>>2)} offen offset:{(i%4)*1024}')
        thr()
    a(f's_lshl_b32 s{S_T0}, s{S_FW}, 4')
    a(f'v_lshl_add_u32 v{V_A3}, v{V_G}, 8, v{V_I}')
    a(f'v_add_u32 v{V_A3}, s{S_T0}, v{V_A3}')
    a(f's_cmp_eq_u32 s{S_F}, 0')
    a('s_cbranch_scc1 KG_SPA')
    a.label('KG_SPAR')
    if T2:
        a(f's_cmp_lt_u32 s{S_HW}, 2')
        a('s_cbranch_scc1 KG_T2E')
        table_srd(a, R_A, 'TAB_FINV', 512 * 1024, 't2')
        a(f's_cmp_eq_u32 s{S_HW}, 3')
        a(f's_cselect_b64 s[{R_A}:{R_A+1}], s[{S_WO}:{S_WO+1}], s[{R_A}:{R_A+1}]')
        a(f's_lshr_b32 s{S_T0}, s2, 3')
        a(f's_lshl_b32 s{S_T0}, s{S_T0}, 14')
        a(f's_add_u32 s{S_T1}, s{S_T0}, 8192')
        a(f'v_lshlrev_b32 {u(0)}, 7, v0')
        a(f'buffer_load_dword v254, {u(0)}, {ra}, s{S_T0} offen')
        a(f'buffer_load_dword v255, {u(0)}, {ra}, s{S_T1} offen')
        a.label('KG_T2E')
    a(f's_cmp_lg_u32 s{S_HW}, 0')
    a('s_cbranch_scc1 KG_PCE')
    lds_wait(F_H2, 2, V_U, sleep=4)
    a(f's_mov_b32 s{S_LB}, {L_X}')
    for k in range(3):
        a(f's_bfe_u32 s{S_T0}, s{S_QU}, {hex(0x30000 + 3*(2-k))}')
        a(f's_lshl_b32 s{S_T0}, s{S_T0}, 14')
        a(f's_add_u32 s{S_T0}, s{S_T0}, {WS_KV}')
        kv_dma(S_T0, S_LB)
    a(f'v_mov_b32 {u(1)}, 8')
    a('s_waitcnt vmcnt(0)')
    a(f'ds_write_b32 v{V_Z}, {u(1)} offset:{4*F_POS}')
    stamp(6)
    a.label('KG_PCE')
    a(f's_cmp_lg_u32 s{S_HW}, 1')
    a('s_cbranch_scc1 KG_S1W')
    a(f's_lshl_b32 s{S_T1}, s{S_HG}, 10')
    a(f's_add_u32 s{S_T1}, s{S_T1}, {WS_FL2}')
    glob_poll('S1', 0xff, S1_SLEEP)
    a(f'v_mov_b32 {u(1)}, 1')
    a(f'ds_write_b32 v{V_Z}, {u(1)} offset:{4*F_S1OK}')
    a.label('KG_S1W')
    pg_wait(3)
    lds_wait(F_S1OK, 1, V_U, sleep=4)
    stamp(7)
    a(f'v_lshlrev_b32 v{V_A1}, 7, v{V_I}')
    a(f'v_lshl_add_u32 v{V_A1}, v{V_G}, 4, v{V_A1}')
    a(f's_lshl_b32 s{S_T0}, s{S_F}, 13')
    a(f's_lshl_b32 s{S_T1}, s{S_NH}, 11')
    a(f's_add_u32 s{S_T0}, s{S_T0}, s{S_T1}')
    a(f's_add_u32 s{S_T0}, s{S_T0}, {WS_X1T}')
    a(f's_add_u32 s{S_T1}, s{S_T0}, 4096')
    for part in range(2):
        for ks in range(2):
            a(f'buffer_load_dwordx4 {vr(V_D+8*part+4*ks,4)}, v{V_A1}, {ws}, s{S_T0+part} offen offset:{64*ks}{SC}')
    a(f's_lshl_b32 s{S_T0}, s{S_F}, 13')
    a(f's_lshl_b32 s{S_T1}, s{S_FW}, 11')
    a(f's_add_u32 s{S_T1}, s{S_T1}, {WS_WT}')
    a(f's_add_u32 s{S_T0}, s{S_T0}, s{S_T1}')
    a(f's_cmp_lg_u32 s{S_F}, 0')
    a('s_cbranch_scc1 KG_NXX')
    a(f's_add_u32 s{S_T1}, s{S_T1}, {256*8192}')
    for part in range(2):
        a(f'buffer_load_dwordx4 {vr(V_XX+8*part+4,4)}, v{V_L16}, {ws}, s{S_T1} offen offset:{1024*part}{SC}')
    a.label('KG_NXX')
    for part in range(2):
        a(f'buffer_load_dwordx4 {vr(V_W+8*part+4,4)}, v{V_L16}, {ws}, s{S_T0} offen offset:{1024*part}{SC}')

    def mf(d, x, y, c):
        cc = vr(d, 4) if c else '0'
        a(f'v_mfma_f32_16x16x32_bf16 {vr(d,4)}, {vr(x,4)}, {vr(y,4)}, {cc}')
    def t1(nt, ks, v): return V_T1 + 4 * ((nt * 2 + ks) * 3 + v)
    def t2(mt, v): return V_T2 + 4 * (mt * 3 + v)
    def cmul_pack(dst):
        for t_ in range(2):
            for r in range(4):
                ar, ai = V_AC + 8*t_ + r, V_AC + 8*t_ + 4 + r
                c_, s_ = V_TW + 8*t_ + r, V_TW + 8*t_ + 4 + r
                uu = V_U + (r & 1) * 2
                a(f'v_mul_f32 v{uu}, v{ar}, v{c_}')
                a(f'v_mul_f32 v{uu+1}, v{ar}, v{s_}')
                a(f'v_fma_f32 v{ar}, -v{ai}, v{s_}, v{uu}')
                a(f'v_fma_f32 v{ai}, v{ai}, v{c_}, v{uu+1}')
        for i in range(8):
            a(f'v_cvt_pk_bf16_f32 v{dst+i}, v{V_AC+2*i}, v{V_AC+2*i+1}')
    def sync(flag):
        a('s_waitcnt lgkmcnt(0)')
        lds_add(flag, V_U)
        lds_wait(flag, 4, V_U, sleep=2)

    def lo():
        if PRI & 4: a('s_setprio 0')
    def hi():
        if PRI & 4: a('s_setprio 2')
    lo()
    a('s_waitcnt vmcnt(2)')
    zr = lambda ks: V_D + 4*ks
    zi = lambda ks: V_D + 8 + 4*ks
    for ks in range(2):
        for nt in range(2):
            mf(V_AC + 8*nt, zr(ks), t1(nt, ks, 0), ks)
            mf(V_AC + 8*nt + 4, zi(ks), t1(nt, ks, 0), ks)
        for nt in range(2):
            mf(V_AC + 8*nt, zi(ks), t1(nt, ks, 2), 1)
            mf(V_AC + 8*nt + 4, zr(ks), t1(nt, ks, 1), 1)
    hi()
    a(f's_cmp_eq_u32 s{S_F}, 0')
    a('s_cbranch_scc1 KG_SPB')
    a.label('KG_SPBR')
    a(f's_mul_i32 s{S_T0}, s{S_MH}, 2560')
    a(f's_lshl_b32 s{S_T1}, s{S_NH}, 3')
    a(f's_add_u32 s{S_T0}, s{S_T0}, s{S_T1}')
    a(f'v_mul_u32_u24 v{V_A1}, 80, v{V_I}')
    a(f'v_lshl_add_u32 v{V_A1}, v{V_G}, 4, v{V_A1}')
    a(f'v_add_u32 v{V_A1}, {L_APR}, v{V_A1}')
    a(f'v_add_u32 {u(4)}, s{S_T0}, v{V_A1}')
    a('s_nop 4')
    cmul_pack(V_D)
    for nt in range(2):
        a(f'ds_write_b64 {u(4)}, {vr(V_D+4*nt,2)} offset:{1280*nt}')
        a(f'ds_write_b64 {u(4)}, {vr(V_D+4*nt+2,2)} offset:{L_API-L_APR+1280*nt}')
    a(f's_add_u32 s{S_T0}, s{S_T2}, {O_TW2}')
    for i in range(4):
        a(f'buffer_load_dwordx4 {vr(V_TW+4*i,4)}, v{V_L16}, {tb}, s{S_T0} offen offset:{i*1024}')
    sync(F_SY0)
    a(f's_mul_i32 s{S_T0}, s{S_FW}, 1280')
    a(f'v_add_u32 {u(4)}, s{S_T0}, v{V_A1}')
    a(f'ds_read_b128 {vr(V_D,4)}, {u(4)}')
    a(f'ds_read_b128 {vr(V_D+4,4)}, {u(4)} offset:{L_API-L_APR}')
    lo()
    a('s_waitcnt vmcnt(4) lgkmcnt(0)')
    for mt in range(2):
        mf(V_AC + 8*mt, t2(mt, 0), V_D, 0)
        mf(V_AC + 8*mt + 4, t2(mt, 0), V_D + 4, 0)
    for mt in range(2):
        mf(V_AC + 8*mt, t2(mt, 2), V_D + 4, 1)
        mf(V_AC + 8*mt + 4, t2(mt, 1), V_D, 1)
    hi()
    def unpack(base):
        for part in range(2):
            b = base + 8*part
            for q in range(4):
                a(f'v_lshlrev_b32 v{b+2*q}, 16, v{b+4+q}')
                a(f'v_and_b32 v{b+2*q+1}, 0xffff0000, v{b+4+q}')
    unpack(V_W)
    a(f's_cmp_eq_u32 s{S_F}, 0')
    a('s_cbranch_scc1 KG_SPECIAL')
    for e in range(8):
        mt, r = e >> 2, e & 3
        ar, ai = V_AC + 8*mt + r, V_AC + 8*mt + 4 + r
        c_, s_ = V_W + e, V_W + 8 + e
        uu = V_U + (r & 1) * 2
        a(f'v_mul_f32 v{uu}, v{ar}, v{c_}')
        a(f'v_mul_f32 v{uu+1}, v{ar}, v{s_}')
        a(f'v_fma_f32 v{ar}, -v{ai}, v{s_}, v{uu}')
        a(f'v_fma_f32 v{ai}, v{ai}, v{c_}, v{uu+1}')
    a.label('KG_STEP3')
    for mt in range(2):
        for part in range(2):
            for q in range(2):
                src = V_AC + 8*mt + 4*part + 2*q
                a(f'v_cvt_pk_bf16_f32 v{V_D+4*part+2*mt+q}, v{src}, v{src+1}')
    lo()
    a('s_nop 1')
    for mt in range(2):
        mf(V_AC + 8*mt, V_D, t2(mt, 0), 0)
        mf(V_AC + 8*mt + 4, V_D + 4, t2(mt, 0), 0)
    for mt in range(2):
        mf(V_AC + 8*mt, V_D + 4, t2(mt, 1), 1)
        mf(V_AC + 8*mt + 4, V_D, t2(mt, 2), 1)
    hi()
    a(f'v_mul_u32_u24 v{V_A1}, 144, v{V_I}')
    a(f'v_add_u32 v{V_A1}, {L_CPR}, v{V_A1}')
    a(f's_lshl_b32 s{S_T0}, s{S_FW}, 5')
    a(f'v_lshl_add_u32 {u(4)}, v{V_G}, 3, v{V_A1}')
    a(f'v_add_u32 {u(4)}, s{S_T0}, {u(4)}')
    a('s_waitcnt vmcnt(0)')
    a('s_nop 4')
    cmul_pack(V_D)
    for mt in range(2):
        a(f'ds_write_b64 {u(4)}, {vr(V_D+4*mt,2)} offset:{2304*mt}')
        a(f'ds_write_b64 {u(4)}, {vr(V_D+4*mt+2,2)} offset:{L_CPI-L_CPR+2304*mt}')
    sync(F_SY1)
    a(f's_mul_i32 s{S_T0}, s{S_NH}, 2304')
    a(f'v_lshl_add_u32 {u(4)}, v{V_G}, 4, v{V_A1}')
    a(f'v_add_u32 {u(4)}, s{S_T0}, {u(4)}')
    for part in range(2):
        for ks in range(2):
            a(f'ds_read_b128 {vr(V_D+8*part+4*ks,4)}, {u(4)} offset:{(L_CPI-L_CPR)*part+64*ks}')
    lo()
    a('s_waitcnt lgkmcnt(0)')
    for ks in range(2):
        for nt in range(2):
            mf(V_AC + 8*nt, t1(nt, ks, 0), zr(ks), ks)
            mf(V_AC + 8*nt + 4, t1(nt, ks, 0), zi(ks), ks)
        for nt in range(2):
            mf(V_AC + 8*nt, t1(nt, ks, 1), zi(ks), 1)
            mf(V_AC + 8*nt + 4, t1(nt, ks, 2), zr(ks), 1)
    hi()
    a(f'v_lshlrev_b32 {u(4)}, 7, v{V_I}')
    a(f'v_lshl_add_u32 {u(4)}, v{V_G}, 4, {u(4)}')
    a(f's_lshl_b32 s{S_T0}, s{S_F}, 13')
    a(f's_lshl_b32 s{S_T1}, s{S_NH}, 11')
    a(f's_add_u32 s{S_T0}, s{S_T0}, s{S_T1}')
    a(f's_lshl_b32 s{S_T1}, s{S_MH}, 6')
    a(f's_add_u32 s{S_T0}, s{S_T0}, s{S_T1}')
    a(f's_add_u32 s{S_T0}, s{S_T0}, {WS_Y1T}')
    a(f's_add_u32 s{S_T1}, s{S_T0}, 4096')
    for part in range(2):
        for nt in range(2):
            for q in range(2):
                src = V_AC + 8*nt + 4*part + 2*q
                a(f'v_cvt_pk_bf16_f32 v{V_D+4*part+2*nt+q}, v{src}, v{src+1}')
    for part in range(2):
        a(f'buffer_store_dwordx4 {vr(V_D+4*part,4)}, {u(4)}, {ws}, s{S_T0+part} offen{SC}')
    join_flag(F_J2, 4, WS_FL3)
    stamp(8)
    if E('NOHELP', 0) == 2:
        dump()
        a('s_endpgm')

    AB, AA, LF, FR = 16, 32, 32, 64
    NFR = 14
    AX, FI, FW = 48, 64, 128
    V_DM, V_RA, V_RY, V_OUT, V_GT, V_DW = 120, 121, 122, 123, 124, 125
    S_MI, S_NI = S_CT, S_A
    a(f's_lshr_b32 s{S_MI}, s{S_HW}, 1')
    a(f's_and_b32 s{S_NI}, s{S_HW}, 1')
    srd(a, R_A, S_WO, 512 * 1024)
    srd(a, R_OUT, S_OUT, 2048 * 1024)
    table_srd(a, R_TB, 'TAB_FINV', 512 * 1024, 'fi')
    a(f'v_lshrrev_b32 {u(0)}, 3, v0')
    a(f'v_and_b32 {u(1)}, 7, v0')
    a(f'v_and_b32 {u(2)}, 1, v{V_G}')
    a(f'v_lshlrev_b32 {u(3)}, 2, {u(2)}')
    a(f'v_xor_b32 {u(3)}, {u(3)}, {u(1)}')
    a(f'v_lshlrev_b32 {u(3)}, 4, {u(3)}')
    a(f'v_lshl_add_u32 {u(4)}, {u(0)}, 10, {u(3)}')
    a(f'v_mov_b32 v{V_DW}, {u(4)}')
    a(f's_lshl_b32 s{S_T3}, s{S_HW}, 14')
    a(f'v_lshl_add_u32 v{V_DM}, {u(0)}, 12, {u(3)}')
    a(f'v_and_b32 {u(0)}, 31, v0')
    a(f'v_lshrrev_b32 {u(1)}, 5, v0')
    a(f'v_bfe_u32 {u(3)}, v0, 2, 2')
    a(f'v_and_b32 {u(4)}, 3, v0')
    a(f'v_lshrrev_b32 {u(5)}, 1, {u(4)}')
    a(f'v_and_b32 {u(4)}, 1, {u(4)}')
    a(f'v_lshrrev_b32 {u(6)}, 1, {u(3)}')
    a(f'v_lshlrev_b32 {u(6)}, 2, {u(6)}')
    a(f'v_lshl_add_u32 {u(7)}, {u(4)}, 1, {u(2)}')
    a(f's_lshl_b32 s{S_T0}, s{S_MI}, 2')
    a(f'v_add_u32 {u(7)}, s{S_T0}, {u(7)}')
    a(f'v_xor_b32 {u(7)}, {u(7)}, {u(6)}')
    a(f'v_lshlrev_b32 {u(7)}, 4, {u(7)}')
    a(f'v_lshl_add_u32 {u(7)}, {u(5)}, 3, {u(7)}')
    a(f'v_lshl_add_u32 v{V_RA}, {u(1)}, 2, {u(3)}')
    a(f'v_lshl_add_u32 v{V_RA}, v{V_RA}, 7, {u(7)}')
    a(f'v_lshl_add_u32 {u(7)}, {u(2)}, 1, {u(5)}')
    a(f's_lshl_b32 s{S_T0}, s{S_NI}, 2')
    a(f'v_add_u32 {u(7)}, s{S_T0}, {u(7)}')
    a(f'v_xor_b32 {u(7)}, {u(7)}, {u(6)}')
    a(f'v_lshlrev_b32 {u(7)}, 4, {u(7)}')
    a(f'v_lshl_add_u32 {u(7)}, {u(4)}, 3, {u(7)}')
    a(f'v_lshl_add_u32 v{V_RY}, {u(1)}, 3, {u(3)}')
    a(f'v_lshl_add_u32 v{V_RY}, v{V_RY}, 7, {u(7)}')
    a(f'v_add_u32 v{V_RY}, {L_Y}, v{V_RY}')
    a(f'v_bfe_u32 {u(5)}, {u(0)}, 2, 1')
    a(f'v_lshrrev_b32 {u(6)}, 3, {u(0)}')
    a(f'v_and_b32 {u(7)}, 3, {u(0)}')
    a(f'v_lshl_add_u32 {u(7)}, {u(5)}, 4, {u(7)}')
    a(f'v_lshl_add_u32 {u(7)}, {u(6)}, 2, {u(7)}')
    a(f'v_lshlrev_b32 {u(7)}, 15, {u(7)}')
    a(f'v_lshl_add_u32 {u(7)}, {u(1)}, 5, {u(7)}')
    a(f's_lshl_b32 s{S_T0}, s{S_NI}, 20')
    a(f's_lshl_b32 s{S_T1}, s{S_QG}, 10')
    a(f's_add_u32 s{S_T0}, s{S_T0}, s{S_T1}')
    a(f's_lshl_b32 s{S_T1}, s{S_HG}, 7')
    a(f's_add_u32 s{S_T0}, s{S_T0}, s{S_T1}')
    a(f's_lshl_b32 s{S_T1}, s{S_MI}, 6')
    a(f's_add_u32 s{S_T0}, s{S_T0}, s{S_T1}')
    a(f'v_add_u32 v{V_OUT}, s{S_T0}, {u(7)}')
    a(f'v_lshlrev_b32 v{V_GT}, 2, {u(0)}')
    S_FI = S_KOFF
    a(f's_lshl_b32 s{S_FI}, s{S_HG}, 16')
    a(f's_lshl_b32 s{S_T0}, s{S_MI}, 10')
    a(f's_add_u32 s{S_FI}, s{S_FI}, s{S_T0}')
    def fload(i):
        if i % 2 == 0:
            a(f's_add_u32 s{S_KB}, s{S_FI}, {i*2048}')
        a(f'buffer_load_dwordx4 {vr(FR+4*(i%NFR),4)}, v{V_L16}, {tb}, s{S_KB} offen offset:{(i%2)*2048}')
    for i in range(NFR):
        fload(i)
        thr()
    if FI_TOUCH:
        a(f'v_lshlrev_b32 {u(0)}, 7, v0')
        a(f'v_and_b32 {u(1)}, 0x1c00, {u(0)}')
        a(f'v_add_u32 {u(0)}, {u(0)}, {u(1)}')
        for k in range(3):
            a(f's_add_u32 s{S_KB}, s{S_FI}, {(8+8*k)*2048}')
            a(f'buffer_load_dword v{FW+k}, {u(0)}, {tb}, s{S_KB} offen')
    lds_wait(F_J2, 4, V_U, sleep=2)
    pg_wait(4, 2)
    a(f's_lshl_b32 s{S_T2}, s{S_HW}, 17')
    a(f's_lshl_b32 s{S_T0}, s{S_HG}, 7')
    a(f's_add_u32 s{S_T2}, s{S_T2}, s{S_T0}')
    a(f's_add_u32 s{S_T1}, s{S_T3}, {L_WQ}')
    a(f's_cmp_eq_u32 s{S_HW}, 2')
    a(f's_cselect_b32 s{S_T1}, {L_KW}, s{S_T1}')
    a(f's_cmp_eq_u32 s{S_HW}, 3')
    a(f's_cselect_b32 s{S_T1}, s{S_T3}, s{S_T1}')
    for i in range(16):
        a(f's_add_u32 m0, s{S_T1}, {i*1024}')
        a(f's_add_u32 s{S_T0}, s{S_T2}, {i*8192}')
        a(f'buffer_load_dwordx4 v{V_DW}, {ra}, s{S_T0} offen lds')
        thr()
    a(f's_mov_b32 s{S_T0}, {L_WQ}')
    a(f's_mov_b32 s{S_T1}, {L_WQ + 16384}')
    a(f's_cmp_eq_u32 s{S_MI}, 1')
    a(f's_cselect_b32 s{S_T0}, {L_KW}, s{S_T0}')
    a(f's_cselect_b32 s{S_T1}, 49152, s{S_T1}')
    a(f'v_add_u32 v{LF}, s{S_T0}, v{V_RA}')
    a(f'v_add_u32 v{LF+2}, s{S_T1}, v{V_RA}')
    a(f'v_xor_b32 v{LF+1}, 64, v{LF}')
    a(f'v_xor_b32 v{LF+3}, 64, v{LF+2}')
    a('s_waitcnt vmcnt(0)')
    sync(F_J4)
    def fw(j, t_, o): return FW + 64*t_ + 8*j + 4*o
    for t_ in range(2):
        for j in range(8):
            i = 2*j + t_
            for o in range(2):
                ad = LF + 2*(i >> 3) + o
                a(f'ds_read_b64_tr_b16 {vr(fw(j,t_,o),2)}, v{ad} offset:{(i&7)*2048}')
                a(f'ds_read_b64_tr_b16 {vr(fw(j,t_,o)+2,2)}, v{ad} offset:{(i&7)*2048+1024}')
    a('s_waitcnt lgkmcnt(0)')
    lds_add(F_WR, V_U)
    if TST: stamp(6)
    a(f's_cmp_lg_u32 s{S_HW}, 1')
    a('s_cbranch_scc1 KG_S2W')
    a(f's_mov_b32 s{S_T1}, {WS_FL3}')
    glob_poll('S2', -1, S2_SLEEP)
    a(f'v_mov_b32 {u(1)}, 1')
    a(f'ds_write_b32 v{V_Z}, {u(1)} offset:{4*F_S2OK}')
    a.label('KG_S2W')
    pg_wait(6, 4)
    lds_wait(F_WR, 4, V_U, sleep=4)
    lds_wait(F_S2OK, 1, V_U, sleep=4)
    stamp(9)
    a(f's_lshl_b32 s{S_T2}, s{S_HW}, 19')
    a(f's_lshl_b32 s{S_T0}, s{S_QG}, 7')
    a(f's_add_u32 s{S_T2}, s{S_T2}, s{S_T0}')
    a(f's_add_u32 s{S_T2}, s{S_T2}, {WS_Y1T}')
    for i in range(16):
        a(f's_add_u32 m0, s{S_T3}, {L_Y + i*1024}')
        a(f's_add_u32 s{S_T0}, s{S_T2}, {i*32768}')
        a(f'buffer_load_dwordx4 v{V_DM}, {ws}, s{S_T0} offen{SC} lds')
        thr()
    a(f's_lshl_b32 s{S_T0}, s{S_QG}, 8')
    a(f's_lshl_b32 s{S_T1}, s{S_NI}, 7')
    a(f's_add_u32 s{S_T0}, s{S_T0}, s{S_T1}')
    a(f's_add_u32 s{S_T0}, s{S_T0}, {WS_G}')
    a(f'buffer_load_dword v{V_GT}, v{V_GT}, {ws}, s{S_T0} offen{SC}')
    a('s_waitcnt vmcnt(0)')
    sync(F_J3)
    def lread(i, addr, second):
        a(f'ds_read_b64_tr_b16 {vr(LF+4*(i%8),2)}, v{addr} offset:{i*2048}')
        a(f'ds_read_b64_tr_b16 {vr(LF+4*(i%8)+2,2)}, v{addr} offset:{i*2048+second}')
    if PRI & 2: a('s_setprio 0')
    for i in range(6):
        lread(i, V_RY, 512)
    for i in range(32):
        if i >= NFR:
            a(f's_waitcnt vmcnt({min(31, i+NFR-1)-i}) lgkmcnt({2*min(5, 31-i)})')
        else:
            a(f's_waitcnt lgkmcnt({2*min(5, 31-i)})')
        cc = vr(AB, 16) if i else '0'
        a(f'v_mfma_f32_32x32x16_bf16 {vr(AB,16)}, {vr(FR+4*(i%NFR),4)}, {vr(LF+4*(i%8),4)}, {cc}')
        if i + NFR < 32: fload(i + NFR)
        if i + 6 < 32: lread(i + 6, V_RY, 512)
    if PRI & 2: a('s_setprio 2')
    stamp(10)
    if E('NOHELP', 0) == 3:
        dump()
        a('s_endpgm')
    L_EX = L_X + 49152
    F_EX = F_MM
    a(f's_lshl_b32 s{S_T2}, s{S_QG}, 1')
    a(f's_add_u32 s{S_T2}, s{S_T2}, s{S_NI}')
    a(f's_lshl_b32 s{S_T2}, s{S_T2}, 1')
    a(f's_add_u32 s{S_T2}, s{S_T2}, s{S_MI}')
    a(f's_lshl_b32 s{S_T2}, s{S_T2}, 14')
    SBK = [R_X, R_X+1, R_X+2, R_X+3]
    S_PD = S_P
    for k in range(4):
        a(f's_add_u32 s{SBK[k]}, s{S_T2}, {WS_O + 4096*k}')
    a(f'v_sub_f32 {u(1)}, 1.0, v{V_GT}')
    for i in range(4):
        a(f'v_mov_b32 {u(4+i)}, 0')
    a('s_nop 1')
    for r_ in (AA, AX):
        a(f'v_mfma_f32_32x32x16_bf16 {vr(r_,16)}, {vr(V_U+4,4)}, {vr(V_U+4,4)}, 0')
    for i in range(8):
        a(f'v_pk_mul_f32 {vr(AB+2*i,2)}, {vr(AB+2*i,2)}, {vr(V_U,2)} op_sel:[0,1] op_sel_hi:[1,1]')
    a(f'v_mov_b32 v{V_DM}, v{V_GT}')
    a(f's_lshl_b32 s{S_T0}, s{S_HW}, 2')
    a(f'v_add_u32 v{V_DW}, s{S_T0}, v{V_Z}')
    a(f'v_xor_b32 v{V_GT}, 8, v{V_DW}')
    a(f's_lshl_b32 s{S_T0}, s{S_HW}, 12')
    a(f's_add_u32 s{S_T0}, s{S_T0}, {L_EX}')
    a(f'v_add_u32 v{V_RA}, s{S_T0}, v{V_L16}')
    a(f'v_xor_b32 v{V_RY}, 0x2000, v{V_RA}')
    def oload(p_, t_):
        a(f'buffer_load_dwordx4 {vr(FI+4*p_,4)}, v{V_L16}, {ws}, s{SBK[p_>>1]} offen offset:{(p_%2)*2048+1024*t_}{OLD}')
    def ocheck(p_, t_, k):
        if DRY:
            a(f'v_cmp_ne_u32 vcc, -1, v{FI+4*p_+3}')
            a('s_cmp_eq_u64 vcc, -1')
            a(f's_cbranch_scc0 KG_OC{t_}{k}_{p_}')
        else:
            a(f'v_cmp_eq_u32 vcc, -1, v{FI+4*p_+3}')
            a(f's_cbranch_vccnz KG_OC{t_}{k}_{p_}')
        a(f'v_mfma_f32_32x32x16_bf16 {vr(AX,16)}, {vr(fw(p_,t_,1),4)}, {vr(FI+4*p_,4)}, {vr(AX,16)}')
        a(f'v_mfma_f32_32x32x16_bf16 {vr(AA,16)}, {vr(fw(p_,t_,0),4)}, {vr(FI+4*p_,4)}, {vr(AA,16)}')
        a(f's_bitset0_b32 s{S_PD}, {p_}')
        a.label(f'KG_OC{t_}{k}_{p_}')
    def pend_each(tag, fn):
        for g in range(2):
            a(f's_and_b32 s{S_T0}, s{S_PD}, {hex(0xf << (4*g))}')
            a(f's_cbranch_scc0 KG_OG{tag}_{g}')
            for p_ in range(4*g, 4*g + 4):
                a(f's_bitcmp1_b32 s{S_PD}, {p_}')
                a(f's_cbranch_scc0 KG_OP{tag}_{p_}')
                fn(p_)
                a.label(f'KG_OP{tag}_{p_}')
            a.label(f'KG_OG{tag}_{g}')
    S_PL = S_KH
    a(f's_mov_b32 s{S_PL}, {POLL_LIMIT}')
    if DRY:
        a(f's_cmp_ge_u32 s{S_HW}, {DRY}')
        a('s_cbranch_scc1 KG_OS')
        a(f'v_mov_b32 {u(0)}, 64')
        a(f's_mov_b32 s{S_PL}, 1')
        a('s_mov_b64 exec, 0')
        a('s_branch KG_OS')
        a.label('KG_REAL')
        a('s_mov_b64 exec, -1')
        a(f's_mov_b32 s{S_PL}, {POLL_LIMIT}')
        a.label('KG_OS')
    for t_ in range(2):
        a(f's_movk_i32 s{S_PD}, 0xff')
        a(f's_mov_b32 s{S_CNT}, s{S_PL}')
        if t_ == 0:
            stamp(4)
            lds_wait(F_ADONE, 1, V_U, sleep=4)
            stamp(3)
        elif O1W == 1:
            lds_wait(F_PGW, 10, V_U, sleep=1, addr=V_DW)
            stamp(11)
        elif O1W == 2:
            pg_wait(10, 1)
            stamp(11)
        for p_ in range(8):
            oload(p_, t_)
        for p_ in range(8):
            a(f's_waitcnt vmcnt({7-p_})')
            if TST == 2 and t_ and p_ in (0, 4): stamp(7 if p_ == 0 else 6)
            ocheck(p_, t_, 0)
        if TST and t_: stamp(1)
        a.label(f'KG_OR{t_}')
        a(f's_cmp_eq_u32 s{S_PD}, 0')
        a(f's_cbranch_scc1 KG_OD{t_}')
        a(f's_sub_u32 s{S_CNT}, s{S_CNT}, 1')
        a(f's_cbranch_scc1 KG_OD{t_}')
        sl = O_SLEEP if t_ == 0 else O_SLEEP1
        if sl: a(f's_sleep {sl}')
        pend_each(f'L{t_}', lambda p_: oload(p_, t_))
        a('s_waitcnt vmcnt(0)')
        pend_each(f'C{t_}', lambda p_: ocheck(p_, t_, 1))
        a(f's_branch KG_OR{t_}')
        a.label(f'KG_OD{t_}')
        if t_ == 0: stamp(5)
        elif TST: stamp(2)
    a(f'v_mov_b32 {u(1)}, 1')
    a('s_nop 7')
    for q in range(4):
        a(f'ds_write_b128 v{V_RA}, {vr(AX+4*q,4)} offset:{1024*q}')
    a(f'ds_write_b32 v{V_DW}, {u(1)} offset:{4*F_EX}')
    def ex_reads():
        a(f'ds_read_b32 {u(0)}, v{V_GT} offset:{4*F_EX}')
        for q in range(4):
            a(f'ds_read_b128 {vr(FI+4*q,4)}, v{V_RY} offset:{1024*q}')
    ex_reads()
    for i in range(8):
        a(f'v_pk_fma_f32 {vr(AB+2*i,2)}, {vr(AA+2*i,2)}, {vr(V_DM,2)}, {vr(AB+2*i,2)} op_sel_hi:[1,0,1]')
    if TST == 2: stamp(10)
    a.label('KG_EXL')
    a('s_waitcnt lgkmcnt(4)' if TST != 2 else 's_waitcnt lgkmcnt(0)')
    a(f'v_readfirstlane_b32 s{S_T0}, {u(0)}')
    a(f's_cmp_lg_u32 s{S_T0}, 0')
    a('s_cbranch_scc1 KG_EXD')
    ex_reads()
    a(f's_sub_u32 s{S_LIM}, s{S_LIM}, 1')
    a('s_cbranch_scc0 KG_EXL')
    a.label('KG_EXD')
    if TST == 2: stamp(8)
    for i in range(8):
        if i % 2 == 0: a(f's_waitcnt lgkmcnt({3 - i//2})')
        a(f'v_pk_fma_f32 {vr(AA+2*i,2)}, {vr(FI+2*i,2)}, {vr(V_DM,2)}, {vr(AB+2*i,2)} op_sel_hi:[1,0,1]')
    for i in range(8):
        a(f'v_cvt_pk_bf16_f32 v{LF+i}, v{AA+2*i}, v{AA+2*i+1}')
    for q in range(2):
        a(f'buffer_store_dwordx4 {vr(LF+4*q,4)}, v{V_OUT}, {sr(R_OUT,4)}, 0 offen offset:{16*q}{OUTSC}')
    if DRY: a('s_cbranch_execz KG_REAL')
    if TST == 2: stamp(9)
    dump()
    a('s_endpgm')

    SG, SL, SD = 168, 176, 184
    a.label('KG_SPA')
    a(f's_mov_b32 s{S_T0}, {L_SP}')
    a(f's_mov_b32 s{S_T1}, {L_SPW}')
    for e in range(8):
        k_ = u(4 + (e & 1))
        a(f'v_sub_u32 {k_}, {2048 - 64*(e&3) - 1024*(e>>2)}, v{V_A3}')
        a(f'v_and_b32 {k_}, 2047, {k_}')
        a(f'v_lshl_add_u32 v{SL+e}, {k_}, 2, s{S_T0}')
        a(f'v_lshl_add_u32 v{SG+e}, {k_}, 3, s{S_T1}')
    a('s_branch KG_SPAR')
    a.label('KG_SPB')
    a(f's_mov_b32 s{S_C0}, 0x05040100')
    a(f's_mov_b32 s{S_C0+1}, 0x07060302')
    a(f's_mov_b32 s{S_T1}, {L_SPW}')
    a(f'v_lshl_add_u32 {u(4)}, v{V_A3}, 3, s{S_T1}')
    a('s_waitcnt vmcnt(0)')
    for e in range(8):
        for j, base in enumerate((V_W, V_XX)):
            a(f'v_perm_b32 v{SD+2*e+j}, v{base+12+(e>>1)}, v{base+4+(e>>1)}, s{S_C0+(e&1)}')
        a(f'ds_write_b64 {u(4)}, {vr(SD+2*e,2)} offset:{512*(e&3) + 8192*(e>>2)}')
    a('s_branch KG_SPBR')
    a.label('KG_SPECIAL')
    for e in range(8):
        a(f'ds_read_b64 {vr(SD+2*e,2)}, v{SG+e}')
    a(f'v_lshlrev_b32 {u(4)}, 2, v{V_A3}')
    a(f'v_add_u32 {u(6)}, {L_SP}, {u(4)}')
    for e in range(8):
        mt, r = e >> 2, e & 3
        a(f'ds_write2st64_b32 {u(6)}, v{V_AC+8*mt+r}, v{V_AC+8*mt+4+r} offset0:{16*mt+r} offset1:{32+16*mt+r}')
    a(f'v_mov_b32 {u(0)}, 1')
    a('s_waitcnt lgkmcnt(0)')
    a('s_mov_b64 exec, 1')
    a(f'ds_add_u32 v{V_Z}, {u(0)} offset:{4*F_SY2}')
    a('s_mov_b64 exec, -1')
    unpack(V_XX)
    for e in range(8):
        a0r, a0i, a1r, a1i = V_W + e, V_W + 8 + e, V_XX + e, V_XX + 8 + e
        b0r, b0i, b1r, b1i = SD + 16, SD + 2*e, SD + 17, SD + 2*e + 1
        a(f'v_lshlrev_b32 v{b0r}, 16, v{b0i}')
        a(f'v_lshlrev_b32 v{b1r}, 16, v{b1i}')
        a(f'v_and_b32 v{b0i}, 0xffff0000, v{b0i}')
        a(f'v_and_b32 v{b1i}, 0xffff0000, v{b1i}')
        a(f'v_add_f32 v{b0r}, v{a0r}, v{b0r}')
        a(f'v_sub_f32 v{b0i}, v{a0i}, v{b0i}')
        a(f'v_add_f32 v{b1r}, v{a1r}, v{b1r}')
        a(f'v_sub_f32 v{b1i}, v{a1i}, v{b1i}')
        a(f'v_add_f32 v{a0r}, v{b0r}, v{b1r}')
        a(f'v_add_f32 v{a0i}, v{b0i}, v{b1i}')
        a(f'v_sub_f32 v{a1r}, v{b0r}, v{b1r}')
        a(f'v_sub_f32 v{a1i}, v{b0i}, v{b1i}')
    lds_wait(F_SY2, 4, V_U, sleep=1)
    for e in range(8):
        a(f'ds_read2st64_b32 {vr(V_D+2*e,2)}, v{SL+e} offset0:0 offset1:32')
    a(f's_mov_b32 s{S_T0}, {f32_bits(0.125)}')
    for e in range(8):
        mt, r = e >> 2, e & 3
        zr_, zi_ = V_AC + 8*mt + r, V_AC + 8*mt + 4 + r
        pr, pi_, mr, mi = V_W + e, V_W + 8 + e, V_XX + e, V_XX + 8 + e
        znr, zni = V_D + 2*e, V_D + 2*e + 1
        rr, ri = SD + 2*e, SD + 2*e + 1
        a(f'v_mul_f32 v{rr}, v{zr_}, v{pr}')
        a(f'v_mul_f32 v{ri}, v{zr_}, v{pi_}')
        a(f'v_fma_f32 v{rr}, -v{zi_}, v{pi_}, v{rr}')
        a(f'v_fma_f32 v{ri}, v{zi_}, v{pr}, v{ri}')
        a(f's_waitcnt lgkmcnt({7-e})')
        a(f'v_fma_f32 v{rr}, v{znr}, v{mr}, v{rr}')
        a(f'v_fma_f32 v{ri}, v{znr}, v{mi}, v{ri}')
        a(f'v_fma_f32 v{rr}, v{zni}, v{mi}, v{rr}')
        a(f'v_fma_f32 v{ri}, -v{zni}, v{mr}, v{ri}')
        a(f'v_mul_f32 v{zr_}, s{S_T0}, v{rr}')
        a(f'v_mul_f32 v{zi_}, s{S_T0}, v{ri}')
    a('s_branch KG_STEP3')
    a.label('KG_END')
    a('s_endpgm')
    return 256, (102 if ST in (5, 6, 7) else NS)

def build_g(path):
    a = Asm()
    hdr = open(f'cdna_kernels/{NAME}.s.ref').read().split('\n')
    for l in hdr:
        if l.startswith(';') and '@launch' not in l and 'Override launch' not in l and 'grid=ceil' not in l:
            a.raw(l)
    kn = NAME + '_kernel'
    if E('PLAIN', 0):
        a.raw(f'; @launch grid=(256,1,1) block=(512,1,1) lds={KG_LDS}')
    else:
        a.raw(f'; @launch kernel={kn} grid=(256,1,1) block=(512,1,1) lds={KG_LDS}')
    a.raw('.amdgcn_target "amdgcn-amd-amdhsa--gfx950"')
    a.raw('.text')
    v, s = gen_g(a, kn)
    a.raw('.section .rodata,"a"')
    kernel_desc(a, kn, v, s)
    gen_tables(a)
    gen_k2.gen_tables_k2(a)
    gen_k3.gen_tables_k3(a)
    open(path, 'w').write(a.text())

if __name__ == '__main__':
    build_g(sys.argv[1] if len(sys.argv) > 1 else 'j.s')
```

```python
from gen import *
import gen_k2, gen_k3
from gen_k2 import YSCALE
import os

WS_ROOT = 0x240000
WS_FL1 = 0x244000
WS_FL2 = 0x248000
WS_FL3 = 0x24C000
WS_FL4 = 0x260000
TAG_M, TAG_C = 0x9E3779B1, 0x7F4A7C15
WS_XC = 0x250000
FORCE_GL = int(os.environ.get('FORCE_GL', '0'))
WS_KVT = int(os.environ.get('WS_KVT', '0x280000'), 0)

L_X = 0
L_WQ = 65536
L_FLAG = 131072
L_KW = L_FLAG + 256
L_GATE = L_KW + 16384
KG_LDS = 163840
L_APR = L_KW; L_API = L_APR + 5120
L_CPR = L_API + 5120; L_CPI = L_CPR + 4608
L_MX = L_KW
L_MXM = L_KW + 20480
assert L_CPI + 4608 <= L_MXM and L_MX + 8 * 2304 <= L_MXM and L_MXM + 4096 <= KG_LDS and L_GATE + 1024 <= L_MXM
L_SP = L_WQ
L_SPW = L_X + 49152
L_WO = L_X
L_Y = L_WQ
F_CX, F_CW = 0, 1
F_CC, F_MG, F_MM, F_PG, F_QX = 0, 8, 16, 40, 48
L_QX = L_GATE + 1024
assert L_QX + 8192 <= KG_LDS
F_N, F_TAG, F_QDONE, F_J1, F_S1OK, F_SY0, F_SY1, F_SY2, F_J2, F_S2OK, F_J3, F_TAGOK, F_ADONE, F_J4, F_KVS, F_GI, F_PRE = range(24, 41)
F_PRE = 2
F_PGW = 8
F_KX = 15
F_WR = 3
F_LOC = 14
F_POS, F_H2 = 12, 13
L_PRE = L_KW
NWAVE = 8
WS_G = 0x230000
E = lambda k, d: int(os.environ.get(k, str(d)))
LOAD_D = E('LOAD_D', 6)
KV_SLEEP = E('KV_SLEEP', 4)
O_SLEEP = E('O_SLEEP', 0)
THR = E('THR', 15)
LD_PRE = {'X': E('LD_PREX', 0), 'W': E('LD_PREW', 0)}
KV_BAR = E('KV_BAR', 15)
FAIR = E('FAIR', 1)
KV_LAG = E('KV_LAG', 0)
TF_LAG = E('TF_LAG', 2)
WT_LAG = E('WT_LAG', 8)
G_DELAY = E('G_DELAY', 12)
Q7_SLEEP = E('Q7_SLEEP', 0)
H2_PD = E('H2_PD', 12)
KVSC = ' sc1' if E('KVSC1', 0) else ''
OSC = ' sc1' if E('OSC1', 0) else ''
SC = ' sc1'
POLL_LIMIT = 1 << 18
NSTAMP = 12
OF_STEP = E('OF_STEP', 10)
O1W = E('O1W', 1)
FI_TOUCH = E('FI_TOUCH', 0)
T2 = E('T2', 1)
ROT = E('ROT', 3)
KVL = E('KVL', 1)
DRY = E('DRY', 0)
QP = E('QP', 1)
QSL = E('QSL', 0)
VCH = E('VCH', 0)
OLD = {0: ' sc1', 1: ' nt', 2: ' sc0 sc1', 3: ' sc0 nt'}[E('OLD', 0)]
XS = E('XS', 0)
LOCSC = {0: '', 1: ' nt', 2: ' sc0', 3: ' sc0 nt'}[E('LOCSC', 1)]
LOCSE = {0: '', 1: ' nt', 2: ' sc0', 3: ' sc0 nt', 4: ' sc1'}[E('LOCSE', 4)]
O_SLEEP1 = E('O_SLEEP1', 0)
NFO = E('NFO', 10)
TST = E('TST', 0)
OST = '' if E('OPLAIN', 0) else ' sc1'
S1_SLEEP = E('S1_SLEEP', 4)
S2_SLEEP = E('S2_SLEEP', 8)
SPSC = ' sc1' if E('SPSC1', 0) else ''
KP_DELAY = E('KP_DELAY', 0)
PEEL_B = E('PEEL_B', 4)
PRI = E('PRI', 7)
LST = E('LST', 0)
G_EARLY = E('G_EARLY', 8)
G_TRIG = E('G_TRIG', 7)
QPIPE = E('QPIPE', 3)
if QPIPE == 3: QP = 0
EPOLL = E('EPOLL', 8)
TOUCH = E('TOUCH', 0)
FST = E('FST', 0)
PRET = E('PRET', 1)
GST = E('GST', 0)
OUTSC = {0: '', 1: ' sc1', 2: ' nt', 3: ' sc0 sc1', 4: ' sc1 nt'}[E('OUTSC', 2)]

def gen_g(a, name):
    kernel_header(a, name)
    S_X, S_WQ, S_WK, S_WV, S_WO, S_WS, S_WR, S_WI, S_GT, S_OUT = 4, 6, 8, 10, 12, 14, 16, 18, 20, 22
    R_X, R_WS, R_A, R_B, R_TB, R_OUT = 24, 28, 32, 36, 40, 44
    S_W, S_QG, S_HG, S_T0, S_T1, S_T2, S_T3, S_CNT, S_KOFF, S_KB, S_P, S_KH = 48, 49, 50, 51, 52, 53, 54, 55, 56, 57, 58, 59
    S_VM = 60; S_C0 = 62; S_C1 = 64
    S_CT, S_A, S_F, S_HW, S_MH, S_NH, S_SEEN, S_LIM, S_TAG = 3, 66, 67, 68, 69, 70, 71, 72, 73
    NS = 74
    SB = 74
    ws = sr(R_WS, 4); xs = sr(R_X, 4); ra = sr(R_A, 4); rb_ = sr(R_B, 4); tb = sr(R_TB, 4)
    TM = 's_memrealtime' if ST in (5, 7) else 's_memtime'
    duid = [0]
    def stamp(i, f=0):
        if FST and (i >= 7) != bool(f):
            if i >= 7 or f: return
        if f and not FST: return
        if ST in (5, 6, 7):
            a(f'{TM} s[{SB+2*i}:{SB+1+2*i}]')
    def dump(kind=0):
        n = NSTAMP
        if ST == 7:
            duid[0] += 1
            a('s_waitcnt vmcnt(0)')
            a(f'{TM} s[{SB+2*n}:{SB+1+2*n}]')
            a(f's_load_dwordx2 s[{R_A}:{R_A+1}], s[0:1], 80')
            a(f's_mov_b32 s{R_A+2}, 256')
            a(f's_mov_b32 s{R_A+3}, 0x20000')
            a('s_waitcnt lgkmcnt(0)')
            a('s_mov_b64 exec, 1')
            a('v_mov_b32 v0, 0')
            a(f's_cmp_lg_u32 s{S_W}, {4 if kind else 0}')
            a(f's_cbranch_scc1 KG_DD{duid[0]}')
            if kind:
                a(f's_not_b32 s{S_T0}, s{SB}')
                a(f'v_mov_b32 v2, s{S_T0}')
                a(f'buffer_atomic_umax v2, v0, {ra}, 0 offen offset:0')
                L = [(2, 0), (3, 2), (4, 3), (5, 4), (6, 5), (7, 12)]
            else:
                a(f'v_mov_b32 v2, s{SB+24}')
                a(f'buffer_atomic_umax v2, v0, {ra}, 0 offen offset:4')
                L = [(8, 3), (9, 5), (10, 6), (11, 7), (12, 8), (13, 9), (14, 11), (15, 12)]
            for k, (sl, st_) in enumerate(L):
                a(f'v_mov_b32 v{3+k}, s{SB+2*st_}')
                a(f'buffer_atomic_add v{3+k}, v0, {ra}, 0 offen offset:{4*sl}')
            a.label(f'KG_DD{duid[0]}')
        if ST in (5, 6):
            a('s_waitcnt vmcnt(0)')
            a(f'{TM} s[{SB+2*n}:{SB+1+2*n}]')
            a('s_mov_b64 exec, 1')
            a(f's_lshl_b32 s{S_T0}, s2, 4')
            a(f's_add_u32 s{S_T0}, s{S_T0}, s{S_W}')
            a(f's_lshl_b32 s{S_T0}, s{S_T0}, 6')
            a(f's_add_u32 s{S_T0}, s{S_T0}, {0xC00000}')
            a('s_waitcnt lgkmcnt(0)')
            a(f's_mov_b32 s{R_WS+2}, 0x1000000')
            a('v_mov_b32 v0, 0')
            if LST and kind:
                a('s_mov_b64 exec, 0xffff')
                a('v_mbcnt_lo_u32_b32 v3, -1, 0')
                a('v_lshlrev_b32 v3, 2, v3')
                a(f'v_add_u32 v3, 0x100000, v3')
                a(f'buffer_store_dword v{192+23}, v3, {ws}, s{S_T0} offen')
                a('s_mov_b64 exec, 1')
            for i in range(n + 1):
                a(f'v_mov_b32 v2, s{SB+2*i}')
                a(f'buffer_store_dword v2, v0, {ws}, s{S_T0} offen offset:{4*i}')
                a('s_nop 1')

    a('s_cmp_ge_u32 s2, 256')
    a('s_cbranch_scc1 KG_END')
    if ST in (5, 6, 7):
        for i in range(NSTAMP + 1):
            a(f's_mov_b32 s{SB+2*i}, 0')
    stamp(0)
    a(f's_load_dwordx8 s[{S_X}:{S_X+7}], s[0:1], 0')
    a(f's_load_dwordx2 s[{S_WS}:{S_WS+1}], s[0:1], 88')
    a(f's_load_dwordx4 s[{S_GT}:{S_GT+3}], s[0:1], 64')
    a(f's_load_dwordx2 s[{S_WO}:{S_WO+1}], s[0:1], 32')
    a(f's_load_dwordx4 s[{S_WR}:{S_WR+3}], s[0:1], 48')
    a('v_lshrrev_b32 v1, 6, v0')
    a('v_and_b32 v0, 63, v0')
    a(f's_and_b32 s{S_T0}, s2, 7')
    a(f'v_readfirstlane_b32 s{S_W}, v1')
    a(f's_lshl_b32 s{S_T0}, s{S_T0}, 2')
    a(f's_lshr_b32 s{S_QG}, s2, 6')
    a(f's_add_u32 s{S_QG}, s{S_QG}, s{S_T0}')
    a(f's_bfe_u32 s{S_HG}, s2, 0x30003')
    a(f's_mov_b32 s{S_LIM}, {1<<21}')
    S_ROT = S_F
    if ROT == 1:
        a(f's_lshl_b32 s{S_ROT}, s{S_HG}, 7')
    elif ROT == 2:
        a(f's_lshr_b32 s{S_ROT}, s2, 5')
        a(f's_and_b32 s{S_ROT}, s{S_ROT}, 6')
        a(f's_add_u32 s{S_ROT}, s{S_ROT}, s{S_HG}')
        a(f's_and_b32 s{S_ROT}, s{S_ROT}, 7')
        a(f's_lshl_b32 s{S_ROT}, s{S_ROT}, 7')
    elif ROT == 3:
        a(f's_lshr_b32 s{S_ROT}, s2, 6')
        a(f's_lshl_b32 s{S_ROT}, s{S_ROT}, 8')
    V_Z = 7
    a(f'v_mov_b32 v{V_Z}, {L_FLAG}')
    V_I, V_G, V_L16, V_A1, V_A2, V_A3 = 1, 2, 3, 4, 5, 6
    V_U = 8
    u = lambda i: f'v{V_U+i}'
    KX, KW, KA = 16, 80, 144
    S_RB, S_TY, S_KQ = S_P, S_KH, S_KB
    a(f'v_and_b32 v{V_I}, 15, v0')
    a(f'v_lshrrev_b32 v{V_G}, 4, v0')
    a(f'v_lshlrev_b32 v{V_L16}, 4, v0')
    a(f's_mov_b32 s{S_HW}, s{S_W}')
    a(f's_cmp_lg_u32 s{S_W}, 0')
    a('s_cbranch_scc1 KG_N0')
    a('s_setprio 2')
    a(f'v_lshl_add_u32 {u(1)}, v0, 2, v{V_Z}')
    a(f'v_mov_b32 {u(2)}, 0')
    a(f'ds_write_b32 {u(1)}, {u(2)}')
    def xaddr():
        a(f'v_lshrrev_b32 {u(0)}, 3, v0')
        a(f'v_and_b32 {u(1)}, 7, v0')
        a(f'v_lshrrev_b32 {u(2)}, 2, {u(0)}')
        a(f'v_and_b32 {u(3)}, 3, {u(0)}')
        a(f'v_lshl_add_u32 {u(2)}, {u(2)}, 4, {u(3)}')
        a(f'v_lshlrev_b32 {u(2)}, 15, {u(2)}')
        a(f's_lshl_b32 s{S_T0}, s{S_QG}, 10')
        a(f'v_add_u32 {u(2)}, s{S_T0}, {u(2)}')
        a(f'v_xor_b32 {u(3)}, v{V_G}, {u(1)}')
        a(f'v_lshl_add_u32 {u(4)}, {u(3)}, 4, {u(2)}')
        a(f'v_xor_b32 {u(3)}, 4, {u(3)}')
        a(f'v_lshl_add_u32 {u(5)}, {u(3)}, 4, {u(2)}')
        a(f'v_add_u32 {u(5)}, {131072 - 1024}, {u(5)}')
    def xpair(sd, sl, sp):
        a(f's_lshr_b32 s{sd}, s{sp}, 1')
        a(f's_lshl_b32 s{sd}, s{sd}, 20')
        a(f's_and_b32 s{sl}, s{sp}, 1')
        a(f's_lshl_b32 s{sl}, s{sl}, 18')
        a(f's_add_u32 s{sd}, s{sd}, s{sl}')
        if ROT: a(f's_add_u32 s{sd}, s{sd}, s{S_ROT}')
        a(f's_lshl_b32 s{sl}, s{sp}, 11')
    a(f's_lshr_b32 s{S_RB}, s{S_HG}, 1')
    a(f's_and_b32 s{S_TY}, s{S_HG}, 1')
    xaddr()
    xpair(S_T2, S_T3, S_RB)
    a(f's_mov_b32 s{R_A+2}, 16384')
    a(f's_mov_b32 s{R_A+3}, 0x20000')
    a(f's_mov_b32 s{R_X+2}, {2048 * 1024}')
    a(f's_mov_b32 s{R_X+3}, 0x20000')
    a(f's_mov_b32 m0, s{S_T3}')
    a(f's_cmp_eq_u32 s{S_TY}, 1')
    a('s_waitcnt lgkmcnt(0)')
    if not GST: stamp(8, 1)
    a(f's_cselect_b64 s[{R_A}:{R_A+1}], s[{S_WV}:{S_WV+1}], s[{S_WK}:{S_WK+1}]')
    def touch():
        S_I, S_J, S_K = S_CNT, S_KOFF, S_SEEN
        a(f's_lshr_b32 s{S_I}, s2, 3')
        srd(a, R_TB, S_WQ, 512 * 1024)
        a(f'v_lshlrev_b32 {u(6)}, 7, v0')
        a(f's_lshl_b32 s{S_J}, s{S_I}, 14')
        a(f's_add_u32 s{S_K}, s{S_J}, 8192')
        a(f'buffer_load_dword v{KA+16}, {u(6)}, {tb}, s{S_J} offen')
        a(f'buffer_load_dword v{KA+17}, {u(6)}, {tb}, s{S_K} offen')
        a(f'v_and_b32 {u(7)}, 32, v0')
        a(f'v_lshlrev_b32 {u(7)}, 10, {u(7)}')
        a(f'v_and_b32 {u(6)}, 0xfff, {u(6)}')
        a(f'v_add_u32 {u(7)}, {u(7)}, {u(6)}')
        a(f's_and_b32 s{S_K}, s2, 7')
        a(f's_lshl_b32 s{S_K}, s{S_K}, 12')
        a(f's_lshl_b32 s{S_J}, s{S_I}, 16')
        a(f's_add_u32 s{S_K}, s{S_K}, s{S_J}')
        a(f'buffer_load_dword v{KA+18}, {u(7)}, {xs}, s{S_K} offen')
    a(f's_mov_b64 s[{R_X}:{R_X+1}], s[{S_X}:{S_X+1}]')
    if TOUCH == 2: touch()
    for c in range(8):
        if c:
            a(f's_add_u32 m0, s{S_T3}, {c*8192}')
            a(f's_add_u32 s{S_T2}, s{S_T2}, 128')
            if ROT: a(f's_bitset0_b32 s{S_T2}, 10')
        a(f'buffer_load_dwordx4 {u(4)}, {xs}, s{S_T2} offen lds')
        a(f'buffer_load_dwordx4 {u(5)}, {xs}, s{S_T2} offen offset:1024 lds')
        if c == 0 and not GST: stamp(10, 1)
    for q in range(4):
        a(f's_mov_b32 m0, {L_KW + q*4096}')
        if ROT == 3:
            if q == 0: a(f's_lshl_b32 s{S_T0}, s{S_ROT}, 4')
            else:
                a(f's_add_u32 s{S_T0}, s{S_T0}, 4096')
                a(f's_bitset0_b32 s{S_T0}, 14')
        else:
            a(f's_movk_i32 s{S_T0}, {q*4096}')
        for j in range(4):
            a(f'buffer_load_dwordx4 v{V_L16}, {ra}, s{S_T0} offen offset:{j*1024} lds')
    srd(a, R_B, S_GT, 1024)
    a(f's_mov_b32 m0, {L_GATE}')
    a(f's_lshr_b32 s{S_T2}, s2, 3')
    if ROT == 3:
        a(f'v_add_u32 {u(6)}, s{S_ROT}, v{V_L16}')
        a(f'v_and_b32 {u(6)}, 0x3ff, {u(6)}')
        a(f'buffer_load_dwordx4 {u(6)}, {rb_}, 0 offen lds')
    else:
        a(f'buffer_load_dwordx4 v{V_L16}, {rb_}, 0 offen lds')
    if TOUCH == 1: touch()
    if not GST: stamp(11, 1)
    a('s_barrier')
    stamp(1)
    a('s_branch KG_KV')
    a.label('KG_N0')
    a(f's_cmp_lt_u32 s{S_W}, 4')
    a('s_cbranch_scc1 KG_N1')
    if PRET:
        a(f's_getpc_b64 s[{R_A}:{R_A+1}]')
        a.label('KG_PC')
        a(f's_mov_b32 s{R_A+2}, KG_END-KG_PC')
        a(f's_mov_b32 s{R_A+3}, 0x20000')
        a(f's_lshl_b32 s{S_T0}, s{S_W}, 13')
        a(f's_sub_u32 s{S_T1}, s{S_T0}, 0x8000')
        a(f'v_lshlrev_b32 v212, 7, v0')
        a(f'buffer_load_dword v213, v212, {ra}, s{S_T1} offen')
        a(f'buffer_load_dword v214, v212, {ra}, s{S_T0} offen')
    a('s_branch KG_ATT')
    a.label('KG_N1')
    a('s_setprio 2')
    a(f's_cmp_lg_u32 s{S_W}, 1')
    a('s_cbranch_scc1 KG_N2')
    a(f's_mov_b32 s{S_T3}, {WS_ROOT}')
    a(f'v_mov_b32 {u(2)}, 0')
    a('s_waitcnt lgkmcnt(0)')
    srd(a, R_WS, S_WS, WS_SIZE)
    a(f'buffer_load_dword {u(3)}, {u(2)}, {ws}, s{S_T3} offen{SC}')
    a('s_barrier')
    stamp(1)
    a('s_branch KG_TAG')
    a.label('KG_N2')
    S_O, S_L = S_P, S_P + 4
    assert S_O + 8 <= S_A
    S_PV = S_NH
    LK = LOAD_D // 2
    assert L_X == 0 and 1 <= LK <= 7
    LKS = {'X': E('LKX', LK), 'W': E('LKW', 2)}
    a(f's_mov_b32 s{S_PV}, {-LKS["X"]}')
    if VCH: a(f's_mov_b32 s{S_MH}, 0')
    a(f's_mov_b32 s{R_A+3}, 0x20000')
    a(f's_cmp_eq_u32 s{S_HW}, 3')
    a('s_cbranch_scc1 KG_LDW')
    S_ANN, S_VA, S_VB = S_MH, S_T0, S_T3
    cuid = [0]
    def announce(flag, first, k):
        a(f's_cmp_le_i32 s{S_VA}, s{S_ANN}')
        a(f's_cbranch_scc1 KG_CE{k}')
        a(f's_mov_b32 s{S_ANN}, s{S_VA}')
        a(f'v_mov_b32 {u(6)}, s{S_VA}')
        if first: first(k)
        a(f'ds_write_b32 v{V_Z}, {u(6)} offset:{4*flag}')
        a.label(f'KG_CE{k}')
    def chk(n, ki, flag, first=None):
        if not VCH: return
        cuid[0] += 1; k = cuid[0]
        a(f's_cmp_lt_i32 s{S_PV}, {E("VMIN", 3) - LK}')
        a(f's_cbranch_scc1 KG_CE{k}')
        a(f's_getreg_b32 s{S_VA}, hwreg(HW_REG_IB_STS, 0, 24)')
        a(f's_lshr_b32 s{S_VB}, s{S_VA}, 18')
        a(f's_and_b32 s{S_VA}, s{S_VA}, 15')
        a(f's_and_b32 s{S_VB}, s{S_VB}, 0x30')
        a(f's_or_b32 s{S_VB}, s{S_VB}, s{S_VA}')
        js = list(range(LK - (1 if ki == n else 0), 0, -1))
        a(f's_cmp_gt_u32 s{S_VB}, {n*(js[0]-1)+ki}')
        a(f's_cbranch_scc1 KG_CE{k}')
        for j in js:
            a(f's_add_i32 s{S_VA}, s{S_PV}, {LK-j}')
            a(f's_waitcnt vmcnt({n*(j-1)+ki})')
            if j > 1:
                a(f's_cmp_gt_u32 s{S_VB}, {n*(j-2)+ki}')
                a(f's_cbranch_scc1 KG_CW{k}')
        a.label(f'KG_CW{k}')
        announce(flag, first, k)
    def ld_tail(tag, n, flag, first=None):
        LK = LKS[tag]
        if VCH:
            chk(n, n, flag, first)
            a(f's_cmp_le_i32 s{S_PV}, 0')
            a(f's_cbranch_scc1 KG_LL{tag}')
            cuid[0] += 1
            a(f's_mov_b32 s{S_VA}, s{S_PV}')
            a(f's_waitcnt vmcnt({n*LK})')
            announce(flag, first, cuid[0])
            stamp(9, 1)
            if FST:
                a(f's_cmp_lg_u32 s{S_PV}, 1')
                a(f's_cbranch_scc1 KG_FS{tag}')
                stamp(7, 1)
                a.label(f'KG_FS{tag}')
            a(f's_cmp_lt_i32 s{S_PV}, {8-LK}')
            a(f's_cbranch_scc1 KG_LL{tag}')
            for j in range(LK):
                cuid[0] += 1
                a(f's_mov_b32 s{S_VA}, {8-LK+1+j}')
                a(f's_waitcnt vmcnt({n*(LK-1-j)})')
                announce(flag, None, cuid[0])
                if j < 2: stamp(10 + j, 1)
            a('s_branch KG_H2B')
            return
        LK = LKS[tag]
        if LD_PRE[tag]:
            a(f's_cmp_lg_i32 s{S_PV}, {LD_PRE[tag]-LK}')
            a(f's_cbranch_scc1 KG_LB{tag}')
            a('s_barrier')
            stamp(1)
            a.label(f'KG_LB{tag}')
        a(f'v_mov_b32 {u(6)}, s{S_PV}')
        a(f's_cmp_le_i32 s{S_PV}, 0')
        a(f's_cbranch_scc1 KG_LL{tag}')
        if first: first(0)
        a(f's_waitcnt vmcnt({n*LK})')
        a(f'ds_write_b32 v{V_Z}, {u(6)} offset:{4*flag}')
        stamp(9, 1)
        if FST:
            a(f's_cmp_lg_u32 s{S_PV}, 1')
            a(f's_cbranch_scc1 KG_FS{tag}')
            stamp(7, 1)
            a.label(f'KG_FS{tag}')
        a(f's_cmp_lt_i32 s{S_PV}, {8-LK}')
        a(f's_cbranch_scc1 KG_LL{tag}')
        for j in range(LK):
            a(f'v_mov_b32 {u(6)}, {8-LK+1+j}')
            a(f's_waitcnt vmcnt({n*(LK-1-j)})')
            a(f'ds_write_b32 v{V_Z}, {u(6)} offset:{4*flag}')
            if j < 2: stamp(10 + j, 1)
        a('s_branch KG_H2B')
    xaddr()
    a(f's_lshr_b32 s{S_T1}, s{S_HG}, 1')
    for k in range(3):
        a(f's_add_u32 s{S_T1}, s{S_T1}, 1')
        a(f's_and_b32 s{S_T1}, s{S_T1}, 3')
        xpair(S_O + k, S_L + k, S_T1)
    a(f's_mov_b32 s{R_A+2}, {2048 * 1024}')
    a(f's_mov_b32 s{S_T2}, 0')
    a('s_waitcnt lgkmcnt(0)')
    a(f's_mov_b64 s[{R_A}:{R_A+1}], s[{S_X}:{S_X+1}]')
    stamp(8, 1)
    if not LD_PRE['X']:
        a('s_barrier')
        stamp(1)
    if XS: a(f's_sleep {XS}')
    def kx_wait(k):
        a(f's_cmp_lg_u32 s{S_T2}, 0')
        a(f's_cbranch_scc1 KG_KXD{k}')
        a.label(f'KG_KXW{k}')
        a(f'ds_read_b32 {u(7)}, v{V_Z} offset:{4*F_KX}')
        a('s_waitcnt lgkmcnt(0)')
        a(f'v_readfirstlane_b32 s{S_T2}, {u(7)}')
        a(f's_cmp_lg_u32 s{S_T2}, 0')
        a(f's_cbranch_scc1 KG_KXD{k}')
        a('s_sleep 1')
        a(f's_sub_u32 s{S_LIM}, s{S_LIM}, 1')
        a(f's_cbranch_scc0 KG_KXW{k}')
        a(f's_mov_b32 s{S_LIM}, 0')
        a.label(f'KG_KXD{k}')
    a.label('KG_LLX')
    a(f's_add_i32 s{S_PV}, s{S_PV}, 1')
    for k in range(3):
        a(f's_mov_b32 m0, s{S_L+k}')
        a(f's_add_u32 s{S_L+k}, s{S_L+k}, 8192')
        a(f'buffer_load_dwordx4 {u(4)}, {ra}, s{S_O+k} offen lds')
        a(f'buffer_load_dwordx4 {u(5)}, {ra}, s{S_O+k} offen offset:1024 lds')
        a(f's_add_u32 s{S_O+k}, s{S_O+k}, 128')
        if ROT: a(f's_bitset0_b32 s{S_O+k}, 10')
        if k < 2: chk(6, 2*k + 2, F_CX, kx_wait)
    ld_tail('X', 6, F_CX, kx_wait)
    a.label('KG_LDW')
    if LKS['W'] != LKS['X']: a(f's_mov_b32 s{S_PV}, {-LKS["W"]}')
    a(f'v_lshrrev_b32 {u(0)}, 3, v0')
    a(f'v_and_b32 {u(1)}, 7, v0')
    a(f'v_and_b32 {u(2)}, 1, v{V_G}')
    a(f'v_lshlrev_b32 {u(2)}, 2, {u(2)}')
    a(f'v_xor_b32 {u(2)}, {u(2)}, {u(1)}')
    a(f'v_lshlrev_b32 {u(2)}, 4, {u(2)}')
    a(f'v_lshl_add_u32 {u(2)}, {u(0)}, 10, {u(2)}')
    a(f's_lshl_b32 s{S_T0}, s{S_HG}, 7')
    a(f'v_add_u32 {u(2)}, s{S_T0}, {u(2)}')
    for j in range(1, 4):
        a(f'v_add_u32 {u(2+j)}, {7168*j}, {u(2)}')
    if ROT: a(f's_lshl_b32 s{S_O}, s{S_ROT}, 9')
    else: a(f's_mov_b32 s{S_O}, 0')
    a(f's_mov_b32 s{S_L}, {L_WQ}')
    a(f's_mov_b32 s{R_A+2}, {512 * 1024}')
    a('s_waitcnt lgkmcnt(0)')
    a(f's_mov_b64 s[{R_A}:{R_A+1}], s[{S_WQ}:{S_WQ+1}]')
    stamp(8, 1)
    if not LD_PRE['W']:
        a('s_barrier')
        stamp(1)
    if E('WS', 0): a(f's_sleep {E("WS", 0)}')
    a.label('KG_LLW')
    a(f's_add_i32 s{S_PV}, s{S_PV}, 1')
    for k in range(2):
        a(f's_mov_b32 m0, s{S_L}')
        a(f's_add_u32 s{S_L}, s{S_L}, 4096')
        for j in range(4):
            a(f'buffer_load_dwordx4 {u(2+j)}, {ra}, s{S_O} offen offset:{1024*j} lds')
        a(f's_add_u32 s{S_O}, s{S_O}, 32768')
        if ROT and k == 1: a(f's_bitset0_b32 s{S_O}, 19')
        if k == 0:
            chk(8, 4, F_CW)
            a(f's_waitcnt vmcnt({8*LKS["W"] + E("WH", 0)})')
    ld_tail('W', 8, F_CW)

    uid = [0]
    def lds_wait(flag, val, vtmp, sleep=1, addr=None, sdst=None):
        uid[0] += 1; u = uid[0]
        addr = V_Z if addr is None else addr
        sdst = S_T0 if sdst is None else sdst
        a.label(f'KG_LW{u}')
        a(f'ds_read_b32 v{vtmp}, v{addr} offset:{4*flag}')
        a('s_waitcnt lgkmcnt(0)')
        a(f'v_readfirstlane_b32 s{sdst}, v{vtmp}')
        a(f's_cmp_ge_u32 s{sdst}, {val}')
        a(f's_cbranch_scc1 KG_LD{u}')
        a(f's_sleep {sleep}')
        a(f's_sub_u32 s{S_LIM}, s{S_LIM}, 1')
        a(f's_cbranch_scc0 KG_LW{u}')
        a(f's_mov_b32 s{S_LIM}, 0')
        a.label(f'KG_LD{u}')
    def lds_add(flag, vtmp):
        a(f'v_mov_b32 v{vtmp}, 1')
        a('s_mov_b64 exec, 1')
        a(f'ds_add_u32 v{V_Z}, v{vtmp} offset:{4*flag}')
        a('s_mov_b64 exec, -1')
    def get_tag(vtmp):
        a(f'ds_read_b32 v{vtmp}, v{V_Z} offset:{4*F_TAG}')
        a('s_waitcnt lgkmcnt(0)')
        a(f'v_readfirstlane_b32 s{S_TAG}, v{vtmp}')

    V_OQ, V_OV = 2, 3
    V_M = 4
    V_H = 6
    V_Q = 8
    V_S = 16
    V_P = 48
    V_O = 64
    V_K = 96
    V_V = 128
    V_T = 192
    S_N = S_KH
    V_PGA, V_PGV, V_LK = V_T + 16, V_T + 17, V_T + 18
    a.label('KG_ATT')
    a('s_setprio 1')
    a(f's_and_b32 s{S_CT}, s{S_W}, 1')
    a(f's_bfe_u32 s{S_A}, s{S_W}, 0x10001')
    a(f's_mov_b32 s{S_N}, 0')
    a('v_and_b32 v1, 31, v0')
    a(f'v_lshrrev_b32 v{V_H}, 5, v0')
    V_XA = V_T
    V_WA = V_T + 4
    t = lambda i: f'v{V_T+8+i}'
    a(f'v_bfe_u32 {t(0)}, v0, 1, 3')
    a(f's_lshl_b32 s{S_T0}, s{S_A}, 12')
    a(f'v_lshlrev_b32 {t(1)}, 7, v1')
    a(f'v_add_u32 {t(1)}, s{S_T0}, {t(1)}')
    for ks in range(4):
        a(f'v_add_u32 {t(2)}, {2*ks}, v{V_H}')
        a(f'v_xor_b32 {t(2)}, {t(2)}, {t(0)}')
        a(f'v_lshl_add_u32 v{V_XA+ks}, {t(2)}, 4, {t(1)}')
    a(f'v_bfe_u32 {t(0)}, v0, 2, 2')
    a(f'v_and_b32 {t(1)}, 3, v0')
    a(f'v_bfe_u32 {t(2)}, v0, 4, 1')
    a(f'v_lshl_add_u32 {t(3)}, v{V_H}, 3, {t(0)}')
    a(f'v_lshlrev_b32 {t(3)}, 7, {t(3)}')
    a(f'v_lshrrev_b32 {t(4)}, 1, {t(1)}')
    a(f'v_and_b32 {t(5)}, 1, {t(1)}')
    a(f'v_lshrrev_b32 {t(6)}, 1, {t(0)}')
    a(f'v_lshlrev_b32 {t(6)}, 2, {t(6)}')
    a(f'v_lshl_add_u32 {t(7)}, {t(2)}, 1, {t(4)}')
    a(f's_lshl_b32 s{S_T0}, s{S_CT}, 2')
    a(f'v_add_u32 {t(7)}, s{S_T0}, {t(7)}')
    a(f'v_xor_b32 {t(7)}, {t(7)}, {t(6)}')
    a(f'v_lshl_add_u32 {t(7)}, {t(7)}, 4, {t(3)}')
    a(f'v_lshl_add_u32 v{V_WA}, {t(5)}, 3, {t(7)}')
    a(f'v_add_u32 v{V_WA}, {L_WQ}, v{V_WA}')
    a(f'v_lshlrev_b32 v{V_OQ}, 4, v0')
    a(f'v_add_u32 v{V_LK}, {L_PRE}, v{V_OQ}')
    a(f's_lshl_b32 s{S_T0}, s{S_W}, 2')
    a(f'v_add_u32 v{V_PGA}, s{S_T0}, v{V_Z}')
    a(f'v_mov_b32 v{V_PGV}, 1')
    a(f's_mov_b32 s{S_VM}, 0xffff')
    a(f's_mov_b32 s{S_VM+1}, 0xffff')
    a(f'v_and_b32 {t(0)}, 27, v1')
    a(f'v_cmp_eq_u32 vcc, 16, {t(0)}')
    a(f'v_mov_b32 {t(1)}, 0x3f803f80')
    a(f'v_mov_b32 v{V_M}, 0')
    a(f'v_mov_b32 v{V_M+1}, 0')
    a(f'v_cndmask_b32 {t(1)}, 0, {t(1)}, vcc')
    for i in range(64):
        a(f'v_mov_b32 v{V_V+i}, {t(1)}')
    QA = V_S
    if QPIPE == 3:
        a(f'v_mov_b32 v{V_T+5}, v{V_WA}')
    if QPIPE >= 2:
        for i in range(16):
            a(f'v_mov_b32 v{QA+i}, 0')
    QB = (V_O, V_S + 16)
    a(f's_mov_b32 s{S_SEEN}, 0')
    a('s_waitcnt lgkmcnt(0)')
    srd(a, R_WS, S_WS, WS_SIZE)
    stamp(11, 1)
    a('s_barrier')
    stamp(1)
    def q_wait(c):
        a(f's_cmp_gt_u32 s{S_SEEN}, {c}')
        a(f's_cbranch_scc1 KG_QG{c}')
        a.label(f'KG_QP{c}')
        a(f'ds_read_b64 {vr(V_T+8,2)}, v{V_Z} offset:{4*F_CX}')
        a('s_waitcnt lgkmcnt(0)')
        a(f'v_min_u32 {t(0)}, {t(0)}, {t(1)}')
        a('s_nop 0')
        a(f'v_readfirstlane_b32 s{S_SEEN}, {t(0)}')
        a(f's_cmp_gt_u32 s{S_SEEN}, {c}')
        a(f's_cbranch_scc1 KG_QG{c}')
        if c < 7 or Q7_SLEEP:
            a('s_sleep 1')
        a(f's_sub_u32 s{S_LIM}, s{S_LIM}, 1')
        a(f's_cbranch_scc0 KG_QP{c}')
        a(f's_mov_b32 s{S_LIM}, 0')
        a.label(f'KG_QG{c}')
        if c in (0, 4, 6, 7): stamp({0: 7, 4: 8, 6: 9, 7: 10}[c], 1)
    def q_reads(c):
        b = QB[c & 1]
        for ks in range(4):
            a(f'ds_read_b128 {vr(b+4*ks,4)}, v{V_XA+ks} offset:{c*8192}')
            a(f'ds_read_b64_tr_b16 {vr(b+16+4*ks,2)}, v{V_WA} offset:{c*8192+ks*2048}')
            a(f'ds_read_b64_tr_b16 {vr(b+16+4*ks+2,2)}, v{V_WA} offset:{c*8192+ks*2048+512}')
    def progress():
        a(f'ds_write_b32 v{V_PGA}, v{V_PGV} offset:{4*(F_PGW-4)}')
    spins = []
    def pre_check(n):
        uid[0] += 1; u = uid[0]
        a(f's_cmp_lt_u32 s{S_N}, {n}')
        a(f's_cbranch_scc1 KG_SP{u}')
        a.label(f'KG_SR{u}')
        spins.append(('pre', u, n))
    def pos_check():
        uid[0] += 1; u = uid[0]
        a(f's_cmp_lt_u32 s{S_KOFF}, s{S_KB}')
        a(f's_cbranch_scc1 KG_SP{u}')
        a.label(f'KG_SR{u}')
        spins.append(('q', u, 0))
    def emit_spins():
        for kind, u, n in spins:
            a.label(f'KG_SP{u}')
            if kind == 'pre':
                a(f'ds_read_b32 v{V_T+8}, v{V_Z} offset:{4*F_PRE}')
                a('s_waitcnt lgkmcnt(0)')
                a(f'v_readfirstlane_b32 s{S_N}, v{V_T+8}')
                a(f's_cmp_ge_u32 s{S_N}, {n}')
                a(f's_cbranch_scc1 KG_SR{u}')
            else:
                a(f'ds_read_b32 v{V_T+8}, v{V_Z} offset:{4*F_POS}')
                a('s_waitcnt lgkmcnt(0)')
                a(f'v_readfirstlane_b32 s{S_KOFF}, v{V_T+8}')
                a(f's_cmp_ge_u32 s{S_KOFF}, s{S_KB}')
                a(f's_cbranch_scc1 KG_SR{u}')
                a('s_sleep 1')
            a(f's_sub_u32 s{S_LIM}, s{S_LIM}, 1')
            a(f's_cbranch_scc0 KG_SP{u}')
            a(f's_mov_b32 s{S_LIM}, 0')
            a(f's_branch KG_SR{u}')
        spins.clear()

    def load_k(slot, off):
        a(f'buffer_load_dwordx4 {vr(V_K+4*slot,4)}, v{V_OQ}, {ws}, s{S_KOFF} offen offset:{off}{KVSC}')
    def kv_group(c, adv=True):
        load_k(c & 7, 0)
        load_k((c + 1) & 7, 2048)
        a(f's_mov_b64 exec, s[{S_VM}:{S_VM+1}]')
        for j in range(2):
            sl = (c + j) & 7
            a(f'buffer_load_dwordx4 {vr(V_V+8*sl,4)}, v{V_OQ}, {ws}, s{S_KOFF} offen offset:{2048*j+1024}{KVSC}')
            a(f'buffer_load_dwordx4 {vr(V_V+8*sl+4,4)}, v{V_OQ}, {ws}, s{S_KOFF} offen offset:{2048*j+1280}{KVSC}')
        a('s_mov_b64 exec, -1')
        if adv:
            a(f's_add_u32 s{S_KOFF}, s{S_KOFF}, 4096')
    def pre_reads(c, n=1):
        for j in range(c, c + n):
            a(f'ds_read_b128 {vr(V_K+4*j,4)}, v{V_LK} offset:{2048*j}')
        a(f's_mov_b64 exec, s[{S_VM}:{S_VM+1}]')
        for j in range(c, c + n):
            a(f'ds_read_b128 {vr(V_V+8*j,4)}, v{V_LK} offset:{2048*j+1024}')
            a(f'ds_read_b128 {vr(V_V+8*j+4,4)}, v{V_LK} offset:{2048*j+1280}')
        a('s_mov_b64 exec, -1')
    def mfma_s(t_, slot):
        a(f'v_mfma_f32_32x32x16_bf16 {vr(V_S+16*t_,16)}, {vr(V_K+4*slot,4)}, {vr(V_Q+4*t_,4)}, 0')
    def mfma_pv(t_, slot, pp, zero=False):
        cc = '0' if zero else vr(V_O+16*t_, 16)
        a(f'v_mfma_f32_32x32x16_bf16 {vr(V_O+16*t_,16)}, {vr(V_V+8*slot+4*pp,4)}, {vr(V_P+8*t_+4*pp,4)}, {cc}')
    def cv(t_, i):
        a(f'v_cvt_pk_bf16_f32 v{V_P+8*t_+i}, v{V_S+16*t_+2*i}, v{V_S+16*t_+2*i+1}')

    if QPIPE == 3:
        S_QC = S_CNT
        V_WB = V_T + 5
        WA = (V_WA, V_WB)
        def fread():
            a(f'ds_read_b128 {vr(V_T+8,4)}, v{V_Z} offset:{4*F_CX}')
        def qg(cn, ks):
            n_ = QB[cn]
            a(f'ds_read_b128 {vr(n_+4*ks,4)}, v{V_XA+ks} offset:{cn*8192}')
            a(f'ds_read_b64_tr_b16 {vr(n_+16+4*ks,2)}, v{WA[cn]} offset:{cn*8192+ks*2048}')
            a(f'ds_read_b64_tr_b16 {vr(n_+16+4*ks+2,2)}, v{WA[cn]} offset:{cn*8192+ks*2048+512}')
        def qf(b, ks):
            a(f'v_mfma_f32_32x32x16_bf16 {vr(QA,16)}, {vr(b+16+4*ks,4)}, {vr(b+4*ks,4)}, {vr(QA,16)}')
        UPD = ((V_XA + 2, V_XA + 3, V_WB), (V_XA, V_XA + 1, V_WA))
        def upd(r):
            a(f'v_add_u32 v{r}, 0x4000, v{r}')
        def qst():
            if E('QST', 0) == 2:
                a(f's_add_u32 m0, s{S_QC}, 6')
                a('s_nop 0')
                a(f'v_writelane_b32 v{V_T+23}, s100, m0')
                a('s_memtime s[100:101]')
        a(f's_mov_b32 s{S_QC}, 0')
        a('s_branch KG_QE0')
        for cn in (1, 0):
            a.label(f'KG_QS{cn}')
            if cn == 0:
                a(f's_cmp_eq_u32 s{S_QC}, 8')
                a('s_cbranch_scc1 KG_QX')
            for ks in range(1, 4):
                a(f's_waitcnt lgkmcnt({9 - 3*ks})')
                qf(QB[1 - cn], ks)
            if cn == 0:
                for r in UPD[0]: upd(r)
            a.label(f'KG_QE{cn}')
            fread()
            a('s_waitcnt lgkmcnt(0)')
            a(f'v_min_u32 {t(0)}, {t(0)}, {t(1)}')
            a('s_nop 0')
            a(f'v_readfirstlane_b32 s{S_SEEN}, {t(0)}')
            a(f's_cmp_gt_u32 s{S_SEEN}, s{S_QC}')
            a(f's_cbranch_scc1 KG_QG{cn}')
            if QSL: a(f's_sleep {QSL}')
            a(f's_sub_u32 s{S_LIM}, s{S_LIM}, 1')
            a(f's_cbranch_scc0 KG_QE{cn}')
            a(f's_mov_b32 s{S_LIM}, 0')
            a.label(f'KG_QG{cn}')
            qst()
            for ks in range(4): qg(cn, ks)
            a(f's_add_u32 s{S_QC}, s{S_QC}, 1')
            if cn == 1:
                for r in UPD[1]: upd(r)
                a('s_branch KG_Q0')
        for cn in (1, 0):
            b = QB[1 - cn]
            a.label(f'KG_Q{cn}')
            a('s_waitcnt lgkmcnt(9)')
            qf(b, 0)
            a(f's_cmp_gt_u32 s{S_SEEN}, s{S_QC}')
            a(f's_cbranch_scc0 KG_QS{cn}')
            qst()
            fread()
            qg(cn, 0)
            a('s_waitcnt lgkmcnt(10)')
            qf(b, 1)
            qg(cn, 1)
            upd(UPD[cn][0])
            a(f's_add_u32 s{S_QC}, s{S_QC}, 1')
            a('s_waitcnt lgkmcnt(10)')
            qf(b, 2)
            qg(cn, 2)
            upd(UPD[cn][1])
            upd(UPD[cn][2])
            a('s_waitcnt lgkmcnt(9)')
            qf(b, 3)
            a(f'v_min_u32 {t(0)}, {t(0)}, {t(1)}')
            qg(cn, 3)
            a(f'v_readfirstlane_b32 s{S_SEEN}, {t(0)}')
        a('s_branch KG_Q1')
        a.label('KG_QX')
        a(f'v_readfirstlane_b32 s{S_N}, {t(2)}')
        pre_check(1)
        if E('QST', 0) == 2:
            a(f'v_writelane_b32 v{V_T+23}, s100, 14')
            a('s_memtime s[100:101]')
        pre_reads(0)
        for ks in range(1, 4):
            a(f's_waitcnt lgkmcnt({12 - 3*ks})')
            qf(QB[1], ks)
        if E('QST', 0) == 2:
            a(f'v_writelane_b32 v{V_T+23}, s100, 15')
        progress()
        stamp(2)
    elif QPIPE == 2:
        S_QC = S_CNT
        def qw(k):
            a(f's_cmp_gt_u32 s{S_SEEN}, s{S_QC}')
            a(f's_cbranch_scc0 KG_QS{k}')
            a.label(f'KG_QR{k}')
        def qm(b, wait=True):
            for ks in range(4):
                if wait: a(f's_waitcnt lgkmcnt({min(15, 21 - 3*ks)})')
                a(f'v_mfma_f32_32x32x16_bf16 {vr(QA,16)}, {vr(b+16+4*ks,4)}, {vr(b+4*ks,4)}, {vr(QA,16)}')
        a(f's_mov_b32 s{S_QC}, 0')
        a('s_branch KG_QS0')
        for k in range(3):
            a.label(f'KG_QS{k}')
            a(f'ds_read_b64 {vr(V_T+8,2)}, v{V_Z} offset:{4*F_CX}')
            a('s_waitcnt lgkmcnt(0)')
            a(f'v_min_u32 {t(0)}, {t(0)}, {t(1)}')
            a('s_nop 0')
            a(f'v_readfirstlane_b32 s{S_SEEN}, {t(0)}')
            a(f's_cmp_gt_u32 s{S_SEEN}, s{S_QC}')
            a(f's_cbranch_scc1 KG_QR{k}')
            a('s_sleep 1')
            a(f's_sub_u32 s{S_LIM}, s{S_LIM}, 1')
            a(f's_cbranch_scc0 KG_QS{k}')
            a(f's_mov_b32 s{S_LIM}, 0')
            a(f's_branch KG_QR{k}')
        def fread():
            a(f'ds_read_b128 {vr(V_T+8,4)}, v{V_Z} offset:{4*F_CX}')
        def qg(n_, cn, ks):
            a(f'ds_read_b128 {vr(n_+4*ks,4)}, v{V_XA+ks} offset:{cn*8192}')
            a(f'ds_read_b64_tr_b16 {vr(n_+16+4*ks,2)}, v{V_WA} offset:{cn*8192+ks*2048}')
            a(f'ds_read_b64_tr_b16 {vr(n_+16+4*ks+2,2)}, v{V_WA} offset:{cn*8192+ks*2048+512}')
        def qf(b, ks):
            a(f'v_mfma_f32_32x32x16_bf16 {vr(QA,16)}, {vr(b+16+4*ks,4)}, {vr(b+4*ks,4)}, {vr(QA,16)}')
        a.label('KG_QR0')
        fread()
        q_reads(0)
        def qstep(cn):
            b = QB[1 - cn]; n_ = QB[cn]
            a('s_waitcnt lgkmcnt(9)')
            qf(b, 0)
            a(f'v_min_u32 {t(0)}, {t(0)}, {t(1)}')
            a(f's_add_u32 s{S_QC}, s{S_QC}, 1')
            a(f'v_readfirstlane_b32 s{S_SEEN}, {t(0)}')
            if cn == 0:
                for r in [V_XA + ks for ks in range(4)] + [V_WA]:
                    a(f'v_add_u32 v{r}, 0x4000, v{r}')
            qw(1 + cn)
            if E('QST', 0) == 2:
                a(f's_add_u32 m0, s{S_QC}, 6')
                a('s_nop 0')
                a(f'v_writelane_b32 v{V_T+23}, s100, m0')
                a('s_memtime s[100:101]')
            fread()
            qg(n_, cn, 0)
            for ks in range(1, 4):
                a('s_waitcnt lgkmcnt(10)')
                qf(b, ks)
                qg(n_, cn, ks)
        a.label('KG_QLP')
        qstep(1)
        a(f's_cmp_eq_u32 s{S_QC}, 7')
        a('s_cbranch_scc1 KG_QX')
        qstep(0)
        if QP:
            a(f'v_mov_b32 {t(4)}, s{S_QC}')
            a(f'ds_write_b32 v{V_PGA}, {t(4)}')
        a('s_branch KG_QLP')
        a.label('KG_QX')
        if E('QST', 0) == 1:
            stamp(7); a('s_waitcnt lgkmcnt(0)')
        a('s_waitcnt lgkmcnt(9)')
        qf(QB[1], 0)
        a(f'v_readfirstlane_b32 s{S_N}, {t(2)}')
        pre_check(1)
        if E('QST', 0) == 2:
            a(f'v_writelane_b32 v{V_T+23}, s100, 14')
            a('s_memtime s[100:101]')
        pre_reads(0)
        for ks in range(1, 4):
            a(f's_waitcnt lgkmcnt({12 - 3*ks})')
            qf(QB[1], ks)
        if E('QST', 0) == 2:
            a(f'v_writelane_b32 v{V_T+23}, s100, 15')
        progress()
        stamp(2)
    elif QPIPE:
        q_wait(0); q_reads(0)
        for c in range(8):
            if c < 7:
                q_wait(c + 1); q_reads(c + 1)
            else:
                a('s_waitcnt lgkmcnt(0)')
                progress()
                stamp(2)
                pre_check(1)
                pre_reads(0)
            b = QB[c & 1]
            for ks in range(4):
                if c < 7: a(f's_waitcnt lgkmcnt({min(15, 21 - 3*ks)})')
                cc = vr(QA, 16) if (c or ks) else '0'
                a(f'v_mfma_f32_32x32x16_bf16 {vr(QA,16)}, {vr(b+16+4*ks,4)}, {vr(b+4*ks,4)}, {cc}')
    else:
        for c in range(8):
            q_wait(c); q_reads(c)
            b = QB[c & 1]
            for ks in range(4):
                a(f's_waitcnt lgkmcnt({9 - 3*ks})')
                cc = vr(QA, 16) if (c or ks) else '0'
                a(f'v_mfma_f32_32x32x16_bf16 {vr(QA,16)}, {vr(b+16+4*ks,4)}, {vr(b+4*ks,4)}, {cc}')
        progress()
        stamp(2)

    def body(sub, peel, lds):
        def ex(t_, i):
            r = V_S + 16*t_ + i
            if sub:
                a(f'v_sub_f32 v{r}, v{r}, v{V_M+t_}')
            a(f'v_exp_f32 v{r}, v{r}')
        for b in range(8):
            for t_ in range(2):
                if peel and t_ == 0 and LST:
                    a(f'{TM} s[100:101]')
                ex(t_, 0); ex(t_, 1)
                if t_ == 1:
                    mfma_pv(0, b, 1)
                elif not (peel and b == 0):
                    mfma_pv(1, (b - 1) & 7, 1)
                if peel and t_ == 0 and b < 7:
                    pre_check(b + 2)
                    pre_reads(b + 1)
                ex(t_, 2); ex(t_, 3); ex(t_, 4); ex(t_, 5)
                if t_ == 1:
                    if peel or (lds and b in (1, 7)):
                        a('s_waitcnt lgkmcnt(0)')
                    elif not lds and b & 1:
                        a('s_waitcnt vmcnt(12)')
                    if peel and LST and E('QST', 0) != 2:
                        a(f'v_writelane_b32 v{V_T+23}, s100, {8+b}')
                    mfma_s(0, (b + 1) & 7)
                    if lds and b == (6 if peel else 1):
                        progress()
                    if LST and lds and not peel and b == 1:
                        a(f'v_writelane_b32 v{V_T+23}, s100, m0')
                    if peel and b == 6:
                        pos_check()
                        pre_reads(0, 2)
                else:
                    mfma_s(1, b)
                    if peel and b == 6:
                        a(f'v_add_u32 v{V_PGV}, 1, v{V_PGV}')
                    if peel and b == 7:
                        pre_reads(2, 2)
                    if lds and not peel and b == 0:
                        pre_reads(4, 4)
                        a(f'v_add_u32 v{V_PGV}, 1, v{V_PGV}')
                    if lds and not peel and b == 4:
                        pos_check()
                        pre_reads(0, 4)
                    if not lds and b % 2 == 0:
                        kv_group(b + 6)
                ex(t_, 6); ex(t_, 7)
                cv(t_, 0); cv(t_, 1); cv(t_, 2); cv(t_, 3)
                if peel and b == 6 and t_ == 0:
                    a(f'v_add_u32 v{V_LK}, {L_WQ - L_PRE}, v{V_LK}')
                if lds and not peel and b == 3 and t_ == 0:
                    a(f'v_add_u32 v{V_LK}, 0x4000, v{V_LK}')
                    a(f's_add_u32 s{S_KB}, s{S_KB}, 1')
                    a(f'v_and_b32 v{V_LK}, 0x1ffff, v{V_LK}')
                ex(t_, 8); ex(t_, 9)
                mfma_pv(t_, b, 0, zero=(peel and b == 0))
                for i in range(10, 16):
                    ex(t_, i)
                cv(t_, 4); cv(t_, 5); cv(t_, 6); cv(t_, 7)

    def attn_pass(tag, sub, first):
        if first:
            if not QPIPE:
                pre_check(1)
                pre_reads(0)
            stamp(3)
            a('s_nop 4')
            for i in range(8):
                a(f'v_cvt_pk_bf16_f32 v{V_Q+i}, v{QA+2*i}, v{QA+2*i+1}')
            a('s_waitcnt lgkmcnt(0)')
            mfma_s(0, 0)
            a(f's_mov_b32 s{S_CNT}, 6')
            a(f's_mov_b32 s{S_KOFF}, 0')
            a(f's_mov_b32 s{S_KB}, 1')
            stamp(4)
            a('s_nop 4')
            body(False, True, True)
        else:
            a(f's_mov_b32 s{S_KOFF}, {WS_KV}')
            for c in range(0, 6, 2):
                kv_group(c)
            for i in range(32):
                a(f'v_mov_b32 v{V_O+i}, 0')
            for i in range(4):
                a(f'v_mov_b32 v{V_P+12+i}, 0')
            a('s_waitcnt vmcnt(12)')
            mfma_s(0, 0)
            a(f's_mov_b32 s{S_CNT}, 8')
            a('s_nop 10')
        a.label(f'KG_LOOP{tag}')
        if LST and first:
            a(f'{TM} s[100:101]')
            a(f's_mov_b32 m0, s{S_CNT}')
        body(sub, False, first)
        a(f's_sub_u32 s{S_CNT}, s{S_CNT}, 1')
        a(f's_cmp_lg_u32 s{S_CNT}, 0')
        a(f's_cbranch_scc1 KG_LOOP{tag}')
        if first:
            last_body()
        else:
            mfma_pv(1, 7, 1)

    S_OA, S_FA, S_LOC, S_BAD = S_P, S_SEEN, S_MH, S_NH
    V_TG, V_ZR, V_PK, V_RC = V_T, V_T + 2, V_T + 4, V_T + 9
    outl = []
    def st2(ins):
        uid[0] += 1; k = uid[0]
        a(f's_cmp_eq_u32 s{S_LOC}, 1')
        a(f's_cbranch_scc0 KG_SG{k}')
        a(ins + LOCSC)
        a.label(f'KG_SH{k}')
        outl.append((k, ins))
    def rng(t_):
        a(f'v_cmp_le_f32 s[{S_C0}:{S_C0+1}], s{S_T0}, v{V_O+16*t_+8}')
        a(f'v_cmp_ge_f32 s[{S_C1}:{S_C1+1}], s{S_T1}, v{V_O+16*t_+8}')
        a(f'v_rcp_f32 v{V_RC}, v{V_O+16*t_+8}')
        a(f's_and_b64 s[{S_C0}:{S_C0+1}], s[{S_C0}:{S_C0+1}], s[{S_C1}:{S_C1+1}]')
        a(f's_cmp_eq_u64 s[{S_C0}:{S_C0+1}], -1')
    def o_store(t_):
        for i in range(8):
            a(f'v_mul_f32 v{V_O+16*t_+i}, v{V_RC}, v{V_O+16*t_+i}')
        for i in range(4):
            a(f'v_cvt_pk_bf16_f32 v{V_PK+i}, v{V_O+16*t_+2*i}, v{V_O+16*t_+2*i+1}')
        a(f'v_min_u32 v{V_PK+3}, -2, v{V_PK+3}')
        st2(f'buffer_store_dwordx4 {vr(V_PK,4)}, v{V_OQ}, {ws}, s{S_OA} offen offset:{1024*t_}')
    def o_flag(t_):
        a('s_mov_b64 exec, 1')
        st2(f'buffer_store_dword v{V_TG}, v{V_ZR}, {ws}, s{S_FA} offen offset:{4*t_}')
        a('s_mov_b64 exec, -1')
    def last_body():
        steps = [(0, c) for c in range(8)] + [(1, c) for c in range(8)]
        def pv(tile, buf, slot, pp):
            a(f'v_mfma_f32_32x32x16_bf16 {vr(V_O+16*tile,16)}, {vr(V_V+8*slot+4*pp,4)}, {vr(V_P+8*buf+4*pp,4)}, {vr(V_O+16*tile,16)}')
        def ex(p_, i):
            a(f'v_exp_f32 v{V_S+16*p_+i}, v{V_S+16*p_+i}')
        for n, (tile, c) in enumerate(steps):
            p_ = n & 1
            pt, pc = steps[n - 1] if n else (1, 7)
            ex(p_, 0); ex(p_, 1)
            pv(pt, 1 - p_, pc, 1)
            ex(p_, 2); ex(p_, 3); ex(p_, 4); ex(p_, 5)
            if n == 2:
                a('s_waitcnt lgkmcnt(0)')
            if n < 15:
                nt, nc = steps[n + 1]
                a(f'v_mfma_f32_32x32x16_bf16 {vr(V_S+16*(1-p_),16)}, {vr(V_K+4*nc,4)}, {vr(V_Q+4*nt,4)}, 0')
            if n == 0:
                pre_reads(4, 4)
                a(f'ds_read_b32 v{V_ZR}, v{V_Z} offset:{4*F_LOC}')
                a(f'v_add_u32 v{V_PGV}, 1, v{V_PGV}')
            if n == 2:
                progress()
                a(f'v_readfirstlane_b32 s{S_LOC}, v{V_ZR}')
                a(f'v_add_u32 v{V_PGV}, 1, v{V_PGV}')
            if n == 9:
                rng(0)
                a(f's_cselect_b32 s{S_BAD}, 0, 1')
                a('s_cbranch_scc0 KG_L9')
                o_store(0)
                a.label('KG_L9')
            if n == OF_STEP:
                a(f's_cmp_lg_u32 s{S_BAD}, 0')
                a('s_cbranch_scc1 KG_L12')
                a(f'ds_write_b32 v{V_Z}, v{V_PGV} offset:{4*F_ADONE}')
                a.label('KG_L12')
            ex(p_, 6); ex(p_, 7)
            cv(p_, 0); cv(p_, 1); cv(p_, 2); cv(p_, 3)
            ex(p_, 8); ex(p_, 9)
            pv(tile, p_, c, 0)
            for i in range(10, 16):
                ex(p_, i)
            cv(p_, 4); cv(p_, 5); cv(p_, 6); cv(p_, 7)
        a('s_nop 1')
        pv(1, 1, 7, 1)

    a(f's_lshl_b32 s{S_T2}, s{S_QG}, 1')
    a(f's_add_u32 s{S_T2}, s{S_T2}, s{S_A}')
    a(f's_lshl_b32 s{S_T3}, s{S_HG}, 1')
    a(f's_add_u32 s{S_T3}, s{S_T3}, s{S_CT}')
    a(f's_lshl_b32 s{S_T2}, s{S_T2}, 4')
    a(f's_add_u32 s{S_T2}, s{S_T2}, s{S_T3}')
    a(f's_lshl_b32 s{S_OA}, s{S_T2}, 11')
    a(f's_add_u32 s{S_OA}, s{S_OA}, {WS_O}')
    a(f's_mov_b32 s{S_T0}, {f32_bits(2.0**-30)}')
    a(f's_mov_b32 s{S_T1}, {f32_bits(2.0**30)}')
    attn_pass('A', False, True)
    stamp(5)
    a('s_nop 12')
    rng(1)
    a('s_cbranch_scc0 KG_SLOW')
    a(f's_cmp_lg_u32 s{S_BAD}, 0')
    a('s_cbranch_scc1 KG_SLOW')
    a.label('KG_OUT')
    o_store(1)
    progress()
    if ST in (5, 6, 7): a('s_waitcnt vmcnt(0)')
    stamp(6)
    dump(1)
    a('s_endpgm')
    emit_spins()

    a.label('KG_SLOW')
    lds_wait(F_N, 127, V_T + 8, sdst=S_T2)
    a('s_waitcnt vmcnt(0)')
    a(f'v_mov_b32 v{V_M}, 0xff800000')
    a(f'v_mov_b32 v{V_M+1}, 0xff800000')
    a(f's_mov_b32 s{S_KOFF}, {WS_KV}')
    a(f's_mov_b32 s{S_CNT}, 64')
    a.label('KG_MAXLOOP')
    load_k(0, 0)
    a(f's_add_u32 s{S_KOFF}, s{S_KOFF}, 2048')
    a('s_waitcnt vmcnt(0)')
    mfma_s(0, 0)
    mfma_s(1, 0)
    a('s_nop 12')
    for t_ in range(2):
        for i in range(8):
            a(f'v_max3_f32 v{V_M+t_}, v{V_S+16*t_+2*i}, v{V_S+16*t_+2*i+1}, v{V_M+t_}')
    a(f's_sub_u32 s{S_CNT}, s{S_CNT}, 1')
    a(f's_cmp_lg_u32 s{S_CNT}, 0')
    a('s_cbranch_scc1 KG_MAXLOOP')
    for t_ in range(2):
        a(f'v_mov_b32 v{V_T+4+t_}, v{V_M+t_}')
    a('s_nop 1')
    for t_ in range(2):
        a(f'v_permlane32_swap_b32 v{V_M+t_}, v{V_T+4+t_}')
    a('s_nop 1')
    for t_ in range(2):
        a(f'v_max_f32 v{V_M+t_}, v{V_M+t_}, v{V_T+4+t_}')
    attn_pass('B', True, False)
    a('s_nop 12')
    a(f'v_rcp_f32 v{V_RC}, v{V_O+8}')
    a('s_nop 0')
    o_store(0)
    a(f'ds_write_b32 v{V_Z}, v{V_PGV} offset:{4*F_ADONE}')
    a(f'v_rcp_f32 v{V_RC}, v{V_O+24}')
    a('s_nop 0')
    a('s_branch KG_OUT')
    for k, ins in outl:
        a.label(f'KG_SG{k}')
        a(ins + SC)
        a(f's_branch KG_SH{k}')

    def hsetup():
        a(f's_lshl_b32 s{S_F}, s{S_HG}, 5')
        a(f's_add_u32 s{S_F}, s{S_F}, s{S_QG}')
        srd(a, R_WS, S_WS, WS_SIZE)

    def pg_wait(val, sleep=2, vb=V_U+4, fl=F_PGW):
        uid[0] += 1; k = uid[0]
        a.label(f'KG_PW{k}')
        a(f'ds_read_b128 {vr(vb,4)}, v{V_Z} offset:{4*fl}')
        a('s_waitcnt lgkmcnt(0)')
        a(f'v_min3_u32 v{vb}, v{vb}, v{vb+1}, v{vb+2}')
        a(f'v_min_u32 v{vb}, v{vb}, v{vb+3}')
        a('s_nop 0')
        a(f'v_readfirstlane_b32 s{S_T0}, v{vb}')
        a(f's_cmp_ge_u32 s{S_T0}, {val}')
        a(f's_cbranch_scc1 KG_PD{k}')
        a(f's_sleep {sleep}')
        a(f's_sub_u32 s{S_LIM}, s{S_LIM}, 1')
        a(f's_cbranch_scc0 KG_PW{k}')
        a(f's_mov_b32 s{S_LIM}, 0')
        a.label(f'KG_PD{k}')
    def kv_dma(s_cls, s_lds):
        for q in range(4):
            a(f's_mov_b32 m0, s{s_lds}')
            a(f's_add_u32 s{s_lds}, s{s_lds}, 4096')
            for j in range(4):
                a(f'buffer_load_dwordx4 v{V_L16}, {ws}, s{s_cls} offen offset:{1024*j}{KVSC} lds')
            a(f's_add_u32 s{s_cls}, s{s_cls}, 4096')
    def thr():
        a(f's_waitcnt vmcnt({THR})')
    S_TGX = S_MH
    def flag_store(base, idx=None, stag=None):
        idx = f's{S_F}' if idx is None else idx
        stag = S_TAG if stag is None else stag
        a(f's_lshr_b32 s{S_T0}, {idx}, 2')
        a(f's_lshl_b32 s{S_T0}, s{S_T0}, 7')
        a(f's_and_b32 s{S_T1}, {idx}, 3')
        a(f's_lshl_b32 s{S_T1}, s{S_T1}, 2')
        a(f's_add_u32 s{S_T0}, s{S_T0}, s{S_T1}')
        a(f's_add_u32 s{S_T0}, s{S_T0}, {base}')
        a(f'v_mov_b32 {u(0)}, 0')
        a(f'v_mov_b32 {u(1)}, s{stag}')
        a('s_mov_b64 exec, 1')
        a(f'buffer_store_dword {u(1)}, {u(0)}, {ws}, s{S_T0} offen{SC}')
        a('s_mov_b64 exec, -1')
    def join_flag(cnt, n, base):
        uid[0] += 1; k = uid[0]
        a(f'v_mov_b32 {u(0)}, 1')
        a('s_waitcnt vmcnt(0)')
        a('s_mov_b64 exec, 1')
        a(f'ds_add_rtn_u32 {u(1)}, v{V_Z}, {u(0)} offset:{4*cnt}')
        a('s_mov_b64 exec, -1')
        a('s_waitcnt lgkmcnt(0)')
        a(f'v_readfirstlane_b32 s{S_T0}, {u(1)}')
        a(f's_cmp_lg_u32 s{S_T0}, {n-1}')
        a(f's_cbranch_scc1 KG_JN{k}')
        flag_store(base)
        a.label(f'KG_JN{k}')
    S_NQ, S_NEW, S_LB, S_QU, S_PUB = S_P, S_KH, S_KB, S_SEEN, S_KOFF
    def glob_poll(tag, execmask, sleep, wide=True, lsh=7):
        a(f's_mov_b32 s{S_CNT}, {POLL_LIMIT}')
        a(f'v_lshlrev_b32 {u(0)}, {lsh}, v0')
        if execmask == 0xffffffff:
            a('s_mov_b32 exec_hi, 0')
        else:
            a(f's_mov_b64 exec, {execmask}')
        a.label(f'KG_GP{tag}')
        if wide:
            a(f'buffer_load_dwordx4 {vr(V_U+4,4)}, {u(0)}, {ws}, s{S_T1} offen{SC}')
            if tag == 'KV' and TF_LAG == 2:
                a(f'ds_write_b32 v{V_Z}, v{KA+12} offset:{4*F_QDONE}')
            a('s_waitcnt vmcnt(0)')
            for i in range(4):
                a(f'v_xor_b32 {u(4+i)}, s{S_TGX if tag == "KV" else S_TAG}, {u(4+i)}')
            a(f'v_or3_b32 {u(4)}, {u(4)}, {u(5)}, {u(6)}')
            a(f'v_or_b32 {u(4)}, {u(4)}, {u(7)}')
            if tag == 'KV':
                a(f'v_lshlrev_b32 {u(5)}, 4, {u(4)}')
                a(f'v_cmp_ne_u32 vcc, 0, {u(5)}')
            else:
                a(f'v_cmp_ne_u32 vcc, 0, {u(4)}')
        else:
            a(f'buffer_load_dword {u(4)}, {u(0)}, {ws}, s{S_T1} offen{SC}')
            a('s_waitcnt vmcnt(0)')
            a(f'v_cmp_ne_u32 vcc, s{S_TAG}, {u(4)}')
        a(f's_sub_u32 s{S_CNT}, s{S_CNT}, 1')
        a(f's_cbranch_scc1 KG_GD{tag}')
        if tag == 'KV':
            S_DN = S_VM
            a(f's_and_b64 s[{S_C0}:{S_C0+1}], exec, vcc')
            a(f's_or_b64 s[{S_C1}:{S_C1+1}], s[{S_C0}:{S_C0+1}], s[{S_DN}:{S_DN+1}]')
            a('s_mov_b64 exec, -1')
            for c in range(8):
                m = 0xff << (8 * (c & 3))
                a(f's_and_b32 s{S_T0}, s{S_C1+(c>>2)}, {hex(m)}')
                a(f's_cselect_b32 s{S_T0}, 0, {hex(m)}')
                a(f's_cselect_b32 s{S_T2}, 0, {1 << c}')
                a(f's_or_b32 s{S_DN+(c>>2)}, s{S_DN+(c>>2)}, s{S_T0}')
                a(f's_or_b32 s{S_NEW}, s{S_NEW}, s{S_T2}')
            a('s_cbranch_scc0 KG_QE')
            a(f's_cmp_lg_u32 s{S_NQ}, 0')
            a('s_cbranch_scc1 KG_QL')
            if GST: stamp(8, 1)
            if QP: pg_wait(2, 1, 16, 4)
            else: pg_wait(1, 1, 16)
            a.label('KG_QL')
            if QP:
                a(f's_cmp_lg_u32 s{S_NQ}, 1')
                a('s_cbranch_scc1 KG_QL2')
                pg_wait(1, 1, 16)
                a.label('KG_QL2')
            a(f's_ff1_i32_b32 s{S_T0}, s{S_NEW}')
            a(f's_bitset0_b32 s{S_NEW}, s{S_T0}')
            a(f's_cmp_ge_u32 s{S_NQ}, 4')
            a('s_cbranch_scc1 KG_QQ')
            a(f'v_mov_b32 {u(1)}, s{S_NQ}')
            a(f's_add_u32 s{S_NQ}, s{S_NQ}, 1')
            a(f's_lshl_b32 s{S_T0}, s{S_T0}, 14')
            a(f's_add_u32 s{S_T0}, s{S_T0}, {WS_KV}')
            kv_dma(S_T0, S_LB)
            if GST:
                a(f's_cmp_lg_u32 s{S_NQ}, 1')
                a('s_cbranch_scc1 KG_GS1')
                stamp(9, 1)
                a.label('KG_GS1')
            a('s_waitcnt vmcnt(16)')
            a(f'ds_write_b32 v{V_Z}, {u(1)} offset:{4*F_POS}')
            if GST:
                a(f's_cmp_lg_u32 s{S_NQ}, 2')
                a('s_cbranch_scc1 KG_GS2')
                stamp(10, 1)
                a.label('KG_GS2')
            a('s_branch KG_QN')
            a.label('KG_QQ')
            a(f's_lshl_b32 s{S_QU}, s{S_QU}, 3')
            a(f's_or_b32 s{S_QU}, s{S_QU}, s{S_T0}')
            a.label('KG_QN')
            a(f's_cmp_lg_u32 s{S_NEW}, 0')
            a('s_cbranch_scc1 KG_QL')
            a(f'v_mov_b32 {u(1)}, s{S_NQ}')
            a('s_waitcnt vmcnt(0)')
            a(f'ds_write_b32 v{V_Z}, {u(1)} offset:{4*F_POS}')
            if GST:
                a(f's_cmp_lg_u32 s{S_NQ}, 1')
                a('s_cbranch_scc1 KG_GS3')
                stamp(11, 1)
                a.label('KG_GS3')
            a.label('KG_QE')
            a(f's_and_b64 exec, s[{S_C0}:{S_C0+1}], s[{S_C0}:{S_C0+1}]')
        else:
            a('s_and_b64 exec, exec, vcc')
        a(f's_cbranch_scc0 KG_GD{tag}')
        a(f's_sleep {sleep}')
        a(f's_branch KG_GP{tag}')
        a.label(f'KG_GD{tag}')
        a('s_mov_b64 exec, -1')

    a.label('KG_KV')
    if not GST: stamp(9, 1)
    hsetup()
    a(f's_mov_b32 s{S_KQ}, s{S_QG}')
    a(f'v_bfe_u32 {u(1)}, v0, 2, 2')
    a(f'v_and_b32 {u(2)}, 3, v0')
    a(f'v_lshl_add_u32 {u(1)}, v{V_G}, 3, {u(1)}')
    a(f'v_lshlrev_b32 {u(1)}, 5, {u(1)}')
    a(f'v_lshl_add_u32 {u(1)}, {u(2)}, 3, {u(1)}')
    a(f'v_add_u32 v{V_A2}, {L_KW}, {u(1)}')
    a(f's_lshl_b32 s{S_T2}, s{S_QG}, 12')
    a(f's_lshr_b32 s{S_T0}, s{S_RB}, 1')
    a(f's_lshl_b32 s{S_T0}, s{S_T0}, 11')
    a(f's_add_u32 s{S_T2}, s{S_T2}, s{S_T0}')
    a(f's_and_b32 s{S_T0}, s{S_RB}, 1')
    a(f's_lshl_b32 s{S_T0}, s{S_T0}, 8')
    a(f's_add_u32 s{S_T2}, s{S_T2}, s{S_T0}')
    a(f's_lshl_b32 s{S_T0}, s{S_TY}, 10')
    a(f's_add_u32 s{S_T2}, s{S_T2}, s{S_T0}')
    a(f's_lshl_b32 s{S_T3}, s{S_T2}, 1')
    a(f's_add_u32 s{S_T2}, s{S_T2}, {WS_KV}')
    a(f's_add_u32 s{S_T3}, s{S_T3}, {WS_KVT}')
    a(f's_add_u32 s{S_CNT}, s{S_T3}, 0x40000')
    a(f's_lshl_b32 s{S_KOFF}, s{S_QG}, 3')
    a(f's_add_u32 s{S_KOFF}, s{S_KOFF}, s{S_HG}')
    lds_wait(F_TAGOK, 1, V_U)
    get_tag(V_U)
    a(f'v_and_b32 {u(2)}, 1, v{V_G}')
    a(f'v_lshrrev_b32 {u(3)}, 1, v{V_G}')
    a(f'v_lshlrev_b32 {u(4)}, 9, {u(2)}')
    a(f'v_lshl_add_u32 {u(4)}, v{V_I}, 4, {u(4)}')
    a(f'v_lshl_add_u32 {u(4)}, {u(3)}, 3, {u(4)}')
    a(f'v_lshlrev_b32 {u(6)}, 1, {u(4)}')
    a(f'v_mov_b32 v{KA+10}, s{S_TAG}')
    a(f'v_mov_b32 v{KA+11}, s{S_TAG}')
    a(f'v_mov_b32 v{KA+12}, 1')
    a(f's_getreg_b32 s{S_T0}, hwreg(HW_REG_XCC_ID, 0, 4)')
    a(f's_lshl_b32 s{S_T0}, s{S_T0}, 28')
    a(f's_xor_b32 s{S_TGX}, s{S_TAG}, s{S_T0}')
    a(f's_mov_b32 s{S_T1}, {f32_bits(QSCALE)}')
    a(f'v_lshrrev_b32 {u(2)}, 1, v{V_I}')
    a(f'v_xor_b32 {u(2)}, v{V_G}, {u(2)}')
    a(f'v_lshlrev_b32 {u(2)}, 4, {u(2)}')
    a(f'v_lshl_add_u32 {u(2)}, v{V_I}, 7, {u(2)}')
    a(f's_lshl_b32 s{S_T0}, s{S_RB}, 11')
    a(f'v_add_u32 {u(2)}, s{S_T0}, {u(2)}')
    a(f'v_xor_b32 {u(3)}, 64, {u(2)}')
    a(f's_waitcnt vmcnt({16 + (4 if TOUCH == 1 else 1)})')
    a(f'ds_write_b32 v{V_Z}, v{KA+12} offset:{4*F_KX}')
    for ks in range(16):
        a(f'ds_read_b128 {vr(KX+4*ks,4)}, {u(2+(ks&1))} offset:{(ks>>1)*8192}')
    a(f's_waitcnt vmcnt({4 if TOUCH == 1 else 1}) lgkmcnt(0)')
    stamp(2)
    def kv_reads(ks):
        a(f'ds_read_b64_tr_b16 {vr(KW+4*ks,2)}, v{V_A2} offset:{ks*1024}')
        a(f'ds_read_b64_tr_b16 {vr(KW+4*ks+2,2)}, v{V_A2} offset:{ks*1024+128}')
    for ks in range(7):
        kv_reads(ks)
    a(f's_cmp_eq_u32 s{S_TY}, 1')
    a('s_cbranch_scc1 KG_KV1')
    for ty in range(2):
        if ty == 1:
            a.label('KG_KV1')
        for ks in range(16):
            n_out = min(6, 15 - ks)
            a(f's_waitcnt lgkmcnt({2*n_out})')
            cc = vr(KA + 4*(ks & 1), 4) if ks >= 2 else '0'
            if ty == 0:
                a(f'v_mfma_f32_16x16x32_bf16 {vr(KA+4*(ks&1),4)}, {vr(KW+4*ks,4)}, {vr(KX+4*ks,4)}, {cc}')
            else:
                a(f'v_mfma_f32_16x16x32_bf16 {vr(KA+4*(ks&1),4)}, {vr(KX+4*ks,4)}, {vr(KW+4*ks,4)}, {cc}')
            if ks + 7 < 16:
                kv_reads(ks + 7)
        a('s_nop 7')
        for i in range(4):
            a(f'v_add_f32 v{KA+i}, v{KA+i}, v{KA+4+i}')
        if ty == 0:
            for i in range(4):
                a(f'v_mul_f32 v{KA+i}, s{S_T1}, v{KA+i}')
        a(f'v_cvt_pk_bf16_f32 v{KA+8}, v{KA}, v{KA+1}')
        a(f'v_cvt_pk_bf16_f32 v{KA+9}, v{KA+2}, v{KA+3}')
        if KVL: a(f'buffer_store_dwordx4 {vr(KA+8,4)}, {u(6)}, {ws}, s{S_T3} offen')
        a(f'buffer_store_dwordx2 {vr(KA+8,2)}, {u(4)}, {ws}, s{S_T2} offen{SC}')
        a(f'buffer_store_dwordx4 {vr(KA+8,4)}, {u(6)}, {ws}, s{S_CNT} offen{SC}')
        a(f'ds_write_b32 v{V_Z}, v{KA+12} offset:{4*F_KVS}')
        stamp(1)
        a('s_waitcnt vmcnt(0)')
        flag_store(WS_FL1, f's{S_KOFF}', S_TGX)
        stamp(3)
        if ty == 1:
            a('s_branch KG_KP')
        else:
            a(f'v_lshlrev_b32 {u(2)}, 4, v{V_G}')
            a(f'v_add_u32 {u(2)}, {L_GATE}, {u(2)}')
            for half in range(2):
                for k8 in range(8):
                    ks = 8*half + k8
                    a(f'ds_read_b128 {vr(KW+4*ks,4)}, {u(2)} offset:{64*ks}')
                for k8 in range(8):
                    ks = 8*half + k8
                    a(f's_waitcnt lgkmcnt({7-k8})')
                    cc = vr(KA, 4) if ks else '0'
                    a(f'v_mfma_f32_16x16x32_bf16 {vr(KA,4)}, {vr(KW+4*ks,4)}, {vr(KX+4*ks,4)}, {cc}')
            a(f's_lshl_b32 s{S_T0}, s{S_KQ}, 8')
            a(f's_lshl_b32 s{S_T1}, s{S_RB}, 6')
            a(f's_add_u32 s{S_T0}, s{S_T0}, s{S_T1}')
            a(f's_add_u32 s{S_T1}, s{S_T0}, {WS_G}')
            a(f'v_lshlrev_b32 {u(2)}, 2, v{V_I}')
            a('s_nop 6')
            a(f'v_cvt_pk_bf16_f32 {u(3)}, v{KA}, v{KA}')
            a(f'v_lshlrev_b32 {u(3)}, 16, {u(3)}')
            a(f's_mov_b32 s{S_T0}, {f32_bits(-math.log2(math.e))}')
            a(f'v_mul_f32 {u(3)}, s{S_T0}, {u(3)}')
            a(f'v_exp_f32 {u(3)}, {u(3)}')
            a('s_nop 0')
            a(f'v_add_f32 {u(3)}, 1.0, {u(3)}')
            a(f'v_rcp_f32 {u(3)}, {u(3)}')
            a('s_nop 0')
            a(f'v_cvt_pk_bf16_f32 {u(3)}, {u(3)}, {u(3)}')
            a(f'v_lshlrev_b32 {u(3)}, 16, {u(3)}')
            a('s_mov_b64 exec, 0xffff')
            a(f'buffer_store_dword {u(3)}, {u(2)}, {ws}, s{S_T1} offen{SC}')
            a('s_mov_b64 exec, -1')
            a('s_branch KG_KP')

    a.label('KG_TAG')
    stamp(9, 1)
    hsetup()
    a('s_waitcnt vmcnt(0)')
    a(f'v_readfirstlane_b32 s{S_TAG}, {u(3)}')
    a(f's_mul_i32 s{S_TAG}, s{S_TAG}, {TAG_M}')
    a(f's_add_u32 s{S_TAG}, s{S_TAG}, {TAG_C}')
    a(f'v_mov_b32 {u(1)}, 1')
    a(f'v_mov_b32 {u(3)}, s{S_TAG}')
    a(f'ds_write_b32 v{V_Z}, {u(3)} offset:{4*F_TAG}')
    a(f'ds_write_b32 v{V_Z}, {u(1)} offset:{4*F_TAGOK}')
    stamp(2)
    GR = 16
    V_GW, V_QW = V_A1, V_A2
    S_PEND, S_GB, S_DN = S_P, S_KH, S_VM
    a(f's_and_b32 s{S_T0}, s2, 7')
    a(f's_lshl_b32 s{S_GB}, s{S_T0}, 15')
    a(f's_add_u32 s{S_GB}, s{S_GB}, {WS_KVT + (0 if KVL else 0x40000)}')
    a(f's_movk_i32 s{S_PEND}, 0x1ff')
    a(f'v_lshlrev_b32 v{V_GW}, 3, v0')
    a(f'v_add_u32 v{V_GW}, {L_PRE}, v{V_GW}')
    lds_wait(F_KVS, 1, V_U + 4, sleep=1)
    if G_DELAY:
        a(f's_sleep {G_DELAY}')
    def g_loads(c, sc=SC):
        a(f's_add_u32 s{S_T0}, s{S_GB}, {c*4096}')
        for j in range(4):
            a(f'buffer_load_dwordx4 {vr(GR+16*c+4*j,4)}, v{V_L16}, {ws}, s{S_T0} offen offset:{1024*j}{sc}')
    def g_check(c, k):
        for j in range(4):
            a(f'v_cmpx_eq_u32 vcc, s{S_TAG}, v{GR+16*c+4*j+2}')
        a('s_cmp_eq_u64 exec, -1')
        a('s_mov_b64 exec, -1')
        a(f's_cbranch_scc0 KG_GF{k}_{c}')
        for j in range(4):
            a(f'ds_write_b64 v{V_GW}, {vr(GR+16*c+4*j,2)} offset:{512*j}')
        a(f'v_add_u32 {u(6)}, 1, {u(6)}')
        a(f's_bitset0_b32 s{S_PEND}, {c}')
        a(f'v_add_u32 v{V_GW}, 0x800, v{V_GW}')
        a(f'ds_write_b32 v{V_Z}, {u(6)} offset:{4*F_PRE}')
        if GST:
            a(f's_bcnt1_i32_b32 s{S_T1}, s{S_PEND}')
            for n_, st_ in ((8, 7), (5, 8), (1, 10)):
                a(f's_cmp_lg_u32 s{S_T1}, {n_}')
                a(f's_cbranch_scc1 KG_GS{k}_{c}_{n_}')
                stamp(st_, 1)
                a.label(f'KG_GS{k}_{c}_{n_}')
        a.label(f'KG_GF{k}_{c}')
    def g_round(c0, c1, gi):
        for c in range(c0, c1):
            g_loads(c)
        if gi:
            a(f'ds_write_b32 v{V_Z}, {u(1)} offset:{4*F_GI}')
            stamp(1)
        for c in range(c0, c1):
            a(f's_waitcnt vmcnt({4*(c1-1-c)})')
            g_check(c, 0)
    S_AL = S_KB
    a(f'v_mov_b32 {u(6)}, 0')
    g_round(0, G_EARLY, G_EARLY == 8)
    stamp(5)
    if GST: stamp(11, 1)
    a(f's_movk_i32 s{S_AL}, {(1 << G_EARLY) - 1}')
    a(f's_mov_b32 s{S_CNT}, {POLL_LIMIT}')
    a.label('KG_GR')
    a(f's_sub_u32 s{S_CNT}, s{S_CNT}, 1')
    a('s_cbranch_scc1 KG_GE')
    a(f's_cmp_eq_u32 s{S_PEND}, 0x100')
    a('s_cbranch_scc1 KG_GE')
    if G_EARLY < 8:
        a(f's_cmp_eq_u32 s{S_AL}, 0xff')
        a('s_cbranch_scc1 KG_GA')
        a(f'ds_read_b64 {vr(V_U+4,2)}, v{V_Z} offset:{4*F_CX}')
        a('s_waitcnt lgkmcnt(0)')
        a(f'v_min_u32 {u(4)}, {u(4)}, {u(5)}')
        a('s_nop 0')
        a(f'v_readfirstlane_b32 s{S_T0}, {u(4)}')
        a(f's_cmp_lt_u32 s{S_T0}, {G_TRIG}')
        a('s_cbranch_scc1 KG_GA')
        a(f's_movk_i32 s{S_AL}, 0xff')
        g_round(G_EARLY, 8, True)
        a('s_branch KG_GR')
        a.label('KG_GA')
    a(f's_and_b32 s{S_T2}, s{S_PEND}, s{S_AL}')
    a('s_cbranch_scc1 KG_GB')
    a('s_sleep 1')
    a('s_branch KG_GR')
    a.label('KG_GB')
    if KVL:
        assert (WS_KVT & 0x40000) == 0
        a(f's_bitset0_b32 s{S_GB}, 18')
        a(f's_and_b32 s{S_T0}, s{S_CNT}, 3')
        a('s_cbranch_scc1 KG_GC')
        a(f's_bitset1_b32 s{S_GB}, 18')
        a.label('KG_GC')
    for c in range(8):
        a(f's_bitcmp1_b32 s{S_T2}, {c}')
        a(f's_cbranch_scc0 KG_GL{c}')
        g_loads(c)
        a.label(f'KG_GL{c}')
    a('s_waitcnt vmcnt(0)')
    for c in range(8):
        a(f's_bitcmp1_b32 s{S_T2}, {c}')
        a(f's_cbranch_scc0 KG_GF1_{c}')
        g_check(c, 1)
    a('s_branch KG_GR')
    a.label('KG_GE')
    stamp(6)
    a('s_branch KG_WT')
    a.label('KG_KP')
    a(f's_and_b32 s{S_T0}, s2, 7')
    a(f's_lshl_b32 s{S_T0}, s{S_T0}, 3')
    a(f's_mov_b64 s[{S_DN}:{S_DN+1}], 0xff')
    a(f's_lshl_b64 s[{S_DN}:{S_DN+1}], s[{S_DN}:{S_DN+1}], s{S_T0}')
    a(f's_mov_b32 s{S_NQ}, 0')
    a(f's_mov_b32 s{S_QU}, 0')
    a(f's_mov_b32 s{S_NEW}, 0')
    a(f's_mov_b32 s{S_LB}, {L_WQ}')
    if not EPOLL: pg_wait(1)
    elif EPOLL > 1:
        lds_wait(F_CW, EPOLL, V_U, sleep=2)
        lds_wait(F_CX, EPOLL, V_U, sleep=2)
    a(f's_mov_b32 s{S_T1}, {WS_FL1}')
    if GST: stamp(7, 1)
    if KP_DELAY:
        a(f's_sleep {KP_DELAY}')
    glob_poll('KV', -1, KV_SLEEP)
    a(f'v_mov_b32 {u(1)}, 127')
    a(f'ds_write_b32 v{V_Z}, {u(1)} offset:{4*F_N}')
    stamp(5)
    a(f's_lshl_b32 s{S_T0}, s{S_QG}, 1')
    a(f's_add_u32 s{S_T1}, s{S_T0}, 1')
    a(f'v_readlane_b32 s{S_T0}, {u(4)}, s{S_T0}')
    a(f'v_readlane_b32 s{S_T1}, {u(4)}, s{S_T1}')
    a('s_nop 1')
    a(f's_or_b32 s{S_T0}, s{S_T0}, s{S_T1}')
    a(f's_cmp_eq_u32 s{S_T0}, 0')
    a(f's_cselect_b32 s{S_T0}, {2 if FORCE_GL else 1}, 2')
    a(f'v_mov_b32 {u(4)}, s{S_T0}')
    a(f'ds_write_b32 v{V_Z}, {u(4)} offset:{4*F_LOC}')
    for i in range(4):
        a(f'v_mov_b32 {u(4+i)}, -1')
    a(f's_lshl_b32 s{S_T1}, s{S_QG}, 16')
    a(f's_lshl_b32 s{S_T2}, s{S_HG}, 12')
    a(f's_add_u32 s{S_T1}, s{S_T1}, s{S_T2}')
    a(f's_add_u32 s{S_T1}, s{S_T1}, {WS_O}')
    a(f's_add_u32 s{S_T2}, s{S_T1}, 32768')
    a(f's_cmp_eq_u32 s{S_T0}, 1')
    a('s_cbranch_scc1 KG_SE1')
    for n_, sc_ in enumerate((SC, LOCSE)):
        for k in range(8):
            a(f'buffer_store_dwordx4 {vr(V_U+4,4)}, v{V_L16}, {ws}, s{S_T1+(k>>2)} offen offset:{1024*(k&3)}{sc_}')
        if n_ == 0:
            a('s_branch KG_SE2')
            a.label('KG_SE1')
    a.label('KG_SE2')
    a('s_cmp_lg_u32 s2, 0')
    a('s_cbranch_scc1 KG_H3')
    a(f's_mov_b32 s{S_T3}, {WS_ROOT}')
    a(f'v_mov_b32 {u(2)}, 0')
    a(f'v_mov_b32 {u(3)}, s{S_TAG}')
    a('s_mov_b64 exec, 1')
    a(f'buffer_store_dword {u(3)}, {u(2)}, {ws}, s{S_T3} offen{SC}')
    a('s_mov_b64 exec, -1')
    a('s_branch KG_H3')

    a.label('KG_WT')
    if WT_LAG == 127:
        lds_wait(F_N, 127, V_U, sleep=2)
    elif WT_LAG == 100:
        lds_wait(F_POS, 1, V_U, sleep=2)
    elif WT_LAG:
        lds_wait(F_PRE, WT_LAG, V_U, sleep=2)
    S_FW, S_G4, S_PT = S_P, S_KH, S_KB
    a(f's_lshr_b32 s{S_FW}, s{S_QG}, 3')
    a(f's_bfe_u32 s{S_G4}, s{S_QG}, 0x20001')
    a(f's_and_b32 s{S_PT}, s{S_QG}, 1')
    a(f's_cmp_eq_u32 s{S_PT}, 1')
    a(f's_cselect_b64 s[{S_C0}:{S_C0+1}], s[{S_WI}:{S_WI+1}], s[{S_WR}:{S_WR+1}]')
    srd(a, R_A, S_C0, 2048 * 514)
    a(f's_lshl_b32 s{S_T3}, s{S_FW}, 4')
    a(f's_lshl_b32 s{S_T1}, s{S_G4}, 8')
    a(f's_add_u32 s{S_T1}, s{S_T1}, s{S_T3}')
    a(f'v_add_u32 {u(2)}, s{S_T1}, v{V_I}')
    a(f'v_mul_u32_u24 {u(2)}, 514, {u(2)}')
    a(f'v_lshl_add_u32 {u(2)}, v{V_G}, 4, {u(2)}')
    a(f's_lshl_b32 s{S_T1}, s{S_HG}, 6')
    a(f'v_add_u32 {u(2)}, s{S_T1}, {u(2)}')
    a(f'v_and_b32 {u(4)}, 2, {u(2)}')
    a(f'v_and_b32 {u(2)}, -4, {u(2)}')
    for e in range(8):
        a(f's_mov_b32 s{S_T0}, {(16*(e>>2)+(e&3))*32896}')
        a(f'buffer_load_dwordx4 {vr(16+4*e,4)}, {u(2)}, {ra}, s{S_T0} offen')
        a(f'buffer_load_dword v{96+e}, {u(2)}, {ra}, s{S_T0} offen offset:16')
    a(f's_or_b32 s{S_KOFF}, s{S_HG}, s{S_G4}')
    a(f's_cmp_lg_u32 s{S_KOFF}, 0')
    a('s_cbranch_scc1 KG_WT1')
    a(f'v_lshl_add_u32 {u(3)}, v{V_G}, 8, v{V_I}')
    a(f'v_add_u32 {u(3)}, s{S_T3}, {u(3)}')
    a(f'v_mul_u32_u24 {u(3)}, 514, {u(3)}')
    for e in range(8):
        a(f's_mov_b32 s{S_T0}, {(16*(e>>2)+(e&3))*32896}')
        a(f'buffer_load_ushort v{80+e}, {u(3)}, {ra}, s{S_T0} offen offset:512')
    a.label('KG_WT1')
    a(f's_mov_b32 s{S_C0}, 0x05040100')
    a(f's_mov_b32 s{S_C0+1}, 0x07060302')
    a(f'v_lshlrev_b32 {u(2)}, 16, v{V_G}')
    a(f'v_lshl_add_u32 {u(2)}, v{V_I}, 4, {u(2)}')
    a(f's_lshl_b32 s{S_T1}, s{S_HG}, 18')
    a(f's_lshl_b32 s{S_T2}, s{S_FW}, 11')
    a(f's_lshl_b32 s{S_T0}, s{S_PT}, 10')
    a(f's_add_u32 s{S_T2}, s{S_T2}, s{S_T0}')
    a(f's_add_u32 s{S_T2}, s{S_T2}, {WS_WT}')
    a(f's_add_u32 s{S_T1}, s{S_T1}, s{S_T2}')
    a(f's_lshl_b32 s{S_T0}, s{S_G4}, 8')
    a(f's_add_u32 s{S_T1}, s{S_T1}, s{S_T0}')
    a('s_waitcnt vmcnt(0)')
    stamp(3)
    for e in range(8):
        for j in range(4):
            hi = 16 + 4*e + j + 1 if j < 3 else 96 + e
            a(f'v_alignbyte_b32 v{16+4*e+j}, v{hi}, v{16+4*e+j}, {u(4)}')
    for ph in range(8):
        for q in range(4):
            lo = 16 + 4*(2*q) + (ph >> 1); hi = 16 + 4*(2*q+1) + (ph >> 1)
            a(f'v_perm_b32 v{48+4*ph+q}, v{hi}, v{lo}, s{S_C0+(ph&1)}')
    for ph in range(8):
        a(f's_add_u32 s{S_T0}, s{S_T1}, {8192*ph}')
        if not E('WT_NOST', 0): a(f'buffer_store_dwordx4 {vr(48+4*ph,4)}, {u(2)}, {ws}, s{S_T0} offen{SC}')
    a(f's_cmp_lg_u32 s{S_KOFF}, 0')
    a('s_cbranch_scc1 KG_J1')
    for q in range(4):
        a(f'v_lshl_or_b32 v{88+q}, v{81+2*q}, 16, v{80+2*q}')
    a(f's_add_u32 s{S_T0}, s{S_T2}, {256*8192}')
    a(f'buffer_store_dwordx4 {vr(88,4)}, v{V_L16}, {ws}, s{S_T0} offen{SC}')
    a('s_branch KG_J1')

    HT, HX, HA = 16, 64, 128
    a.label('KG_H2B')
    stamp(2)
    hsetup()
    table_srd(a, R_TB, 'TAB_F', 512 * 1024, 'f')
    a(f's_and_b32 s{S_CT}, s{S_HW}, 1')
    a(f's_lshl_b32 s{S_T2}, s{S_HG}, 16')
    a(f's_lshl_b32 s{S_T0}, s{S_CT}, 10')
    a(f's_add_u32 s{S_T2}, s{S_T2}, s{S_T0}')
    if TF_LAG == 1:
        lds_wait(F_GI, 1, V_U, sleep=2)
    elif TF_LAG == 2:
        lds_wait(F_QDONE, 1, V_U, sleep=1)
    elif TF_LAG == 100:
        lds_wait(F_POS, 1, V_U, sleep=2)
    elif TF_LAG:
        lds_wait(F_PRE, TF_LAG, V_U, sleep=2)
    if ROT == 3:
        a(f's_lshr_b32 s{S_KOFF}, s2, 6')
        a(f's_lshl_b32 s{S_KOFF}, s{S_KOFF}, 14')
    def tload(i):
        if ROT == 3:
            if i % 8 == 0:
                if i:
                    a(f's_add_u32 s{S_KOFF}, s{S_KOFF}, 0x4000')
                    a(f's_bitset0_b32 s{S_KOFF}, 16')
                a(f's_add_u32 s{S_KB}, s{S_T2}, s{S_KOFF}')
            if i % 2 == 0:
                a(f's_add_u32 s{S_T3}, s{S_KB}, {(i%8)*2048}')
        elif i % 2 == 0:
            a(f's_add_u32 s{S_T3}, s{S_T2}, {i*2048}')
        a(f'buffer_load_dwordx4 {vr(HT+4*(i%12),4)}, v{V_L16}, {tb}, s{S_T3} offen offset:{(i%2)*2048}')
    PD = H2_PD
    assert PD <= 12
    for i in range(PD):
        tload(i)
    a(f'v_and_b32 {u(4)}, 31, v0')
    a(f'v_lshrrev_b32 {u(5)}, 5, v0')
    a(f'v_bfe_u32 {u(6)}, v0, 1, 3')
    a(f'v_lshlrev_b32 {u(7)}, 7, {u(4)}')
    for ks in range(4):
        a(f'v_add_u32 v{HA+ks}, {2*ks}, {u(5)}')
        a(f'v_xor_b32 v{HA+ks}, v{HA+ks}, {u(6)}')
        a(f'v_lshl_add_u32 {u(ks)}, v{HA+ks}, 4, {u(7)}')
    a(f'v_lshlrev_b32 v{V_A1}, 12, {u(4)}')
    a(f'v_lshl_add_u32 v{V_A1}, {u(5)}, 5, v{V_A1}')
    stamp(5)
    lds_wait(F_CX, 8, V_U + 4, sleep=2)
    def xreads(c):
        for ks in range(4):
            for aa in range(2):
                a(f'ds_read_b128 {vr(HX+32*(c&1)+16*aa+4*ks,4)}, {u(ks)} offset:{c*8192+4096*aa}')
    if PRI & 1: a('s_setprio 0')
    xreads(0)
    for c in range(8):
        if c < 7:
            xreads(c + 1)
        for ks in range(4):
            i = 4*c + ks
            a(f's_waitcnt vmcnt({min(PD-1, 31-i)}) lgkmcnt({2*(3-ks) + (8 if c < 7 else 0)})')
            for aa in range(2):
                cc = vr(HA + 16*aa, 16) if i else '0'
                a(f'v_mfma_f32_32x32x16_bf16 {vr(HA+16*aa,16)}, {vr(HX+32*(c&1)+16*aa+4*ks,4)}, {vr(HT+4*(i%12),4)}, {cc}')
            if i + PD < 32: tload(i + PD)
    if PRI & 1: a('s_setprio 2')
    lds_add(F_H2, V_U)
    a(f's_lshl_b32 s{S_T0}, s{S_HG}, 18')
    a(f's_lshl_b32 s{S_T1}, s{S_CT}, 17')
    a(f's_add_u32 s{S_T0}, s{S_T0}, s{S_T1}')
    a(f's_lshl_b32 s{S_T1}, s{S_QG}, 7')
    a(f's_add_u32 s{S_T0}, s{S_T0}, s{S_T1}')
    a(f's_add_u32 s{S_T2}, s{S_T0}, {WS_X1T}')
    lds_wait(F_TAGOK, 1, V_U)
    get_tag(V_U)
    a('s_nop 4')
    for i in range(16):
        a(f'v_cvt_pk_bf16_f32 v{HX+i}, v{HA+2*i}, v{HA+2*i+1}')
    for aa in range(2):
        for q in range(2):
            a(f'buffer_store_dwordx4 {vr(HX+8*aa+4*q,4)}, v{V_A1}, {ws}, s{S_T2} offen offset:{64*aa+16*q}{SC}')
    a.label('KG_J1')
    join_flag(F_J1, 3, WS_FL2)
    stamp(6)
    a.label('KG_H3')
    if E('NOHELP', 0) == 1:
        lds_add(F_J2, V_U)
        dump()
        a('s_endpgm')

    V_T1 = 16
    V_T2 = 64
    V_D = 88
    V_TW = 104
    V_XX = 120
    V_W = 136
    V_AC = 152
    S_FW = S_HW
    table_srd(a, R_TB, 'TAB_K2', 24576 + 6144 + 32768, 'k2')
    O_T1, O_T2, O_TW1, O_TW2 = 0, 24576, 30720, 30720 + 16384
    a(f's_lshr_b32 s{S_MH}, s{S_FW}, 1')
    a(f's_and_b32 s{S_NH}, s{S_FW}, 1')
    a(f's_mul_i32 s{S_T0}, s{S_MH}, 12288')
    for i in range(12):
        if i % 4 == 0 and i:
            a(f's_add_u32 s{S_T0}, s{S_T0}, 4096')
        a(f'buffer_load_dwordx4 {vr(V_T1+4*i,4)}, v{V_L16}, {tb}, s{S_T0} offen offset:{(i%4)*1024}')
        thr()
    a(f's_lshl_b32 s{S_T2}, s{S_FW}, 12')
    a(f's_add_u32 s{S_T0}, s{S_T2}, {O_TW1}')
    for i in range(4):
        a(f'buffer_load_dwordx4 {vr(V_TW+4*i,4)}, v{V_L16}, {tb}, s{S_T0} offen offset:{i*1024}')
        thr()
    a(f's_mov_b32 s{S_T0}, {O_T2}')
    a(f's_mov_b32 s{S_T1}, {O_T2+4096}')
    for i in range(6):
        a(f'buffer_load_dwordx4 {vr(V_T2+4*i,4)}, v{V_L16}, {tb}, s{S_T0+(i>>2)} offen offset:{(i%4)*1024}')
        thr()
    a(f's_lshl_b32 s{S_T0}, s{S_FW}, 4')
    a(f'v_lshl_add_u32 v{V_A3}, v{V_G}, 8, v{V_I}')
    a(f'v_add_u32 v{V_A3}, s{S_T0}, v{V_A3}')
    a(f's_cmp_eq_u32 s{S_F}, 0')
    a('s_cbranch_scc1 KG_SPA')
    a.label('KG_SPAR')
    if T2:
        a(f's_cmp_lt_u32 s{S_HW}, 2')
        a('s_cbranch_scc1 KG_T2E')
        table_srd(a, R_A, 'TAB_FINV', 512 * 1024, 't2')
        a(f's_cmp_eq_u32 s{S_HW}, 3')
        a(f's_cselect_b64 s[{R_A}:{R_A+1}], s[{S_WO}:{S_WO+1}], s[{R_A}:{R_A+1}]')
        a(f's_lshr_b32 s{S_T0}, s2, 3')
        a(f's_lshl_b32 s{S_T0}, s{S_T0}, 14')
        a(f's_add_u32 s{S_T1}, s{S_T0}, 8192')
        a(f'v_lshlrev_b32 {u(0)}, 7, v0')
        a(f'buffer_load_dword v254, {u(0)}, {ra}, s{S_T0} offen')
        a(f'buffer_load_dword v255, {u(0)}, {ra}, s{S_T1} offen')
        a.label('KG_T2E')
    a(f's_cmp_lg_u32 s{S_HW}, 0')
    a('s_cbranch_scc1 KG_PCE')
    lds_wait(F_H2, 2, V_U, sleep=4)
    a(f's_mov_b32 s{S_LB}, {L_X}')
    for k in range(3):
        a(f's_bfe_u32 s{S_T0}, s{S_QU}, {hex(0x30000 + 3*(2-k))}')
        a(f's_lshl_b32 s{S_T0}, s{S_T0}, 14')
        a(f's_add_u32 s{S_T0}, s{S_T0}, {WS_KV}')
        kv_dma(S_T0, S_LB)
    a(f'v_mov_b32 {u(1)}, 8')
    a('s_waitcnt vmcnt(0)')
    a(f'ds_write_b32 v{V_Z}, {u(1)} offset:{4*F_POS}')
    stamp(6)
    a.label('KG_PCE')
    a(f's_cmp_lg_u32 s{S_HW}, 1')
    a('s_cbranch_scc1 KG_S1W')
    a(f's_lshl_b32 s{S_T1}, s{S_HG}, 10')
    a(f's_add_u32 s{S_T1}, s{S_T1}, {WS_FL2}')
    glob_poll('S1', 0xff, S1_SLEEP)
    a(f'v_mov_b32 {u(1)}, 1')
    a(f'ds_write_b32 v{V_Z}, {u(1)} offset:{4*F_S1OK}')
    a.label('KG_S1W')
    pg_wait(3)
    lds_wait(F_S1OK, 1, V_U, sleep=4)
    stamp(7)
    a(f'v_lshlrev_b32 v{V_A1}, 7, v{V_I}')
    a(f'v_lshl_add_u32 v{V_A1}, v{V_G}, 4, v{V_A1}')
    a(f's_lshl_b32 s{S_T0}, s{S_F}, 13')
    a(f's_lshl_b32 s{S_T1}, s{S_NH}, 11')
    a(f's_add_u32 s{S_T0}, s{S_T0}, s{S_T1}')
    a(f's_add_u32 s{S_T0}, s{S_T0}, {WS_X1T}')
    a(f's_add_u32 s{S_T1}, s{S_T0}, 4096')
    for part in range(2):
        for ks in range(2):
            a(f'buffer_load_dwordx4 {vr(V_D+8*part+4*ks,4)}, v{V_A1}, {ws}, s{S_T0+part} offen offset:{64*ks}{SC}')
    a(f's_lshl_b32 s{S_T0}, s{S_F}, 13')
    a(f's_lshl_b32 s{S_T1}, s{S_FW}, 11')
    a(f's_add_u32 s{S_T1}, s{S_T1}, {WS_WT}')
    a(f's_add_u32 s{S_T0}, s{S_T0}, s{S_T1}')
    a(f's_cmp_lg_u32 s{S_F}, 0')
    a('s_cbranch_scc1 KG_NXX')
    a(f's_add_u32 s{S_T1}, s{S_T1}, {256*8192}')
    for part in range(2):
        a(f'buffer_load_dwordx4 {vr(V_XX+8*part+4,4)}, v{V_L16}, {ws}, s{S_T1} offen offset:{1024*part}{SC}')
    a.label('KG_NXX')
    for part in range(2):
        a(f'buffer_load_dwordx4 {vr(V_W+8*part+4,4)}, v{V_L16}, {ws}, s{S_T0} offen offset:{1024*part}{SC}')

    def mf(d, x, y, c):
        cc = vr(d, 4) if c else '0'
        a(f'v_mfma_f32_16x16x32_bf16 {vr(d,4)}, {vr(x,4)}, {vr(y,4)}, {cc}')
    def t1(nt, ks, v): return V_T1 + 4 * ((nt * 2 + ks) * 3 + v)
    def t2(mt, v): return V_T2 + 4 * (mt * 3 + v)
    def cmul_pack(dst):
        for t_ in range(2):
            for r in range(4):
                ar, ai = V_AC + 8*t_ + r, V_AC + 8*t_ + 4 + r
                c_, s_ = V_TW + 8*t_ + r, V_TW + 8*t_ + 4 + r
                uu = V_U + (r & 1) * 2
                a(f'v_mul_f32 v{uu}, v{ar}, v{c_}')
                a(f'v_mul_f32 v{uu+1}, v{ar}, v{s_}')
                a(f'v_fma_f32 v{ar}, -v{ai}, v{s_}, v{uu}')
                a(f'v_fma_f32 v{ai}, v{ai}, v{c_}, v{uu+1}')
        for i in range(8):
            a(f'v_cvt_pk_bf16_f32 v{dst+i}, v{V_AC+2*i}, v{V_AC+2*i+1}')
    def sync(flag):
        a('s_waitcnt lgkmcnt(0)')
        lds_add(flag, V_U)
        lds_wait(flag, 4, V_U, sleep=2)

    def lo():
        if PRI & 4: a('s_setprio 0')
    def hi():
        if PRI & 4: a('s_setprio 2')
    lo()
    a('s_waitcnt vmcnt(2)')
    zr = lambda ks: V_D + 4*ks
    zi = lambda ks: V_D + 8 + 4*ks
    for ks in range(2):
        for nt in range(2):
            mf(V_AC + 8*nt, zr(ks), t1(nt, ks, 0), ks)
            mf(V_AC + 8*nt + 4, zi(ks), t1(nt, ks, 0), ks)
        for nt in range(2):
            mf(V_AC + 8*nt, zi(ks), t1(nt, ks, 2), 1)
            mf(V_AC + 8*nt + 4, zr(ks), t1(nt, ks, 1), 1)
    hi()
    a(f's_cmp_eq_u32 s{S_F}, 0')
    a('s_cbranch_scc1 KG_SPB')
    a.label('KG_SPBR')
    a(f's_mul_i32 s{S_T0}, s{S_MH}, 2560')
    a(f's_lshl_b32 s{S_T1}, s{S_NH}, 3')
    a(f's_add_u32 s{S_T0}, s{S_T0}, s{S_T1}')
    a(f'v_mul_u32_u24 v{V_A1}, 80, v{V_I}')
    a(f'v_lshl_add_u32 v{V_A1}, v{V_G}, 4, v{V_A1}')
    a(f'v_add_u32 v{V_A1}, {L_APR}, v{V_A1}')
    a(f'v_add_u32 {u(4)}, s{S_T0}, v{V_A1}')
    a('s_nop 4')
    cmul_pack(V_D)
    for nt in range(2):
        a(f'ds_write_b64 {u(4)}, {vr(V_D+4*nt,2)} offset:{1280*nt}')
        a(f'ds_write_b64 {u(4)}, {vr(V_D+4*nt+2,2)} offset:{L_API-L_APR+1280*nt}')
    a(f's_add_u32 s{S_T0}, s{S_T2}, {O_TW2}')
    for i in range(4):
        a(f'buffer_load_dwordx4 {vr(V_TW+4*i,4)}, v{V_L16}, {tb}, s{S_T0} offen offset:{i*1024}')
    sync(F_SY0)
    a(f's_mul_i32 s{S_T0}, s{S_FW}, 1280')
    a(f'v_add_u32 {u(4)}, s{S_T0}, v{V_A1}')
    a(f'ds_read_b128 {vr(V_D,4)}, {u(4)}')
    a(f'ds_read_b128 {vr(V_D+4,4)}, {u(4)} offset:{L_API-L_APR}')
    lo()
    a('s_waitcnt vmcnt(4) lgkmcnt(0)')
    for mt in range(2):
        mf(V_AC + 8*mt, t2(mt, 0), V_D, 0)
        mf(V_AC + 8*mt + 4, t2(mt, 0), V_D + 4, 0)
    for mt in range(2):
        mf(V_AC + 8*mt, t2(mt, 2), V_D + 4, 1)
        mf(V_AC + 8*mt + 4, t2(mt, 1), V_D, 1)
    hi()
    def unpack(base):
        for part in range(2):
            b = base + 8*part
            for q in range(4):
                a(f'v_lshlrev_b32 v{b+2*q}, 16, v{b+4+q}')
                a(f'v_and_b32 v{b+2*q+1}, 0xffff0000, v{b+4+q}')
    unpack(V_W)
    a(f's_cmp_eq_u32 s{S_F}, 0')
    a('s_cbranch_scc1 KG_SPECIAL')
    for e in range(8):
        mt, r = e >> 2, e & 3
        ar, ai = V_AC + 8*mt + r, V_AC + 8*mt + 4 + r
        c_, s_ = V_W + e, V_W + 8 + e
        uu = V_U + (r & 1) * 2
        a(f'v_mul_f32 v{uu}, v{ar}, v{c_}')
        a(f'v_mul_f32 v{uu+1}, v{ar}, v{s_}')
        a(f'v_fma_f32 v{ar}, -v{ai}, v{s_}, v{uu}')
        a(f'v_fma_f32 v{ai}, v{ai}, v{c_}, v{uu+1}')
    a.label('KG_STEP3')
    for mt in range(2):
        for part in range(2):
            for q in range(2):
                src = V_AC + 8*mt + 4*part + 2*q
                a(f'v_cvt_pk_bf16_f32 v{V_D+4*part+2*mt+q}, v{src}, v{src+1}')
    lo()
    a('s_nop 1')
    for mt in range(2):
        mf(V_AC + 8*mt, V_D, t2(mt, 0), 0)
        mf(V_AC + 8*mt + 4, V_D + 4, t2(mt, 0), 0)
    for mt in range(2):
        mf(V_AC + 8*mt, V_D + 4, t2(mt, 1), 1)
        mf(V_AC + 8*mt + 4, V_D, t2(mt, 2), 1)
    hi()
    a(f'v_mul_u32_u24 v{V_A1}, 144, v{V_I}')
    a(f'v_add_u32 v{V_A1}, {L_CPR}, v{V_A1}')
    a(f's_lshl_b32 s{S_T0}, s{S_FW}, 5')
    a(f'v_lshl_add_u32 {u(4)}, v{V_G}, 3, v{V_A1}')
    a(f'v_add_u32 {u(4)}, s{S_T0}, {u(4)}')
    a('s_waitcnt vmcnt(0)')
    a('s_nop 4')
    cmul_pack(V_D)
    for mt in range(2):
        a(f'ds_write_b64 {u(4)}, {vr(V_D+4*mt,2)} offset:{2304*mt}')
        a(f'ds_write_b64 {u(4)}, {vr(V_D+4*mt+2,2)} offset:{L_CPI-L_CPR+2304*mt}')
    sync(F_SY1)
    a(f's_mul_i32 s{S_T0}, s{S_NH}, 2304')
    a(f'v_lshl_add_u32 {u(4)}, v{V_G}, 4, v{V_A1}')
    a(f'v_add_u32 {u(4)}, s{S_T0}, {u(4)}')
    for part in range(2):
        for ks in range(2):
            a(f'ds_read_b128 {vr(V_D+8*part+4*ks,4)}, {u(4)} offset:{(L_CPI-L_CPR)*part+64*ks}')
    lo()
    a('s_waitcnt lgkmcnt(0)')
    for ks in range(2):
        for nt in range(2):
            mf(V_AC + 8*nt, t1(nt, ks, 0), zr(ks), ks)
            mf(V_AC + 8*nt + 4, t1(nt, ks, 0), zi(ks), ks)
        for nt in range(2):
            mf(V_AC + 8*nt, t1(nt, ks, 1), zi(ks), 1)
            mf(V_AC + 8*nt + 4, t1(nt, ks, 2), zr(ks), 1)
    hi()
    a(f'v_lshlrev_b32 {u(4)}, 7, v{V_I}')
    a(f'v_lshl_add_u32 {u(4)}, v{V_G}, 4, {u(4)}')
    a(f's_lshl_b32 s{S_T0}, s{S_F}, 13')
    a(f's_lshl_b32 s{S_T1}, s{S_NH}, 11')
    a(f's_add_u32 s{S_T0}, s{S_T0}, s{S_T1}')
    a(f's_lshl_b32 s{S_T1}, s{S_MH}, 6')
    a(f's_add_u32 s{S_T0}, s{S_T0}, s{S_T1}')
    a(f's_add_u32 s{S_T0}, s{S_T0}, {WS_Y1T}')
    a(f's_add_u32 s{S_T1}, s{S_T0}, 4096')
    for part in range(2):
        for nt in range(2):
            for q in range(2):
                src = V_AC + 8*nt + 4*part + 2*q
                a(f'v_cvt_pk_bf16_f32 v{V_D+4*part+2*nt+q}, v{src}, v{src+1}')
    for part in range(2):
        a(f'buffer_store_dwordx4 {vr(V_D+4*part,4)}, {u(4)}, {ws}, s{S_T0+part} offen{SC}')
    join_flag(F_J2, 4, WS_FL3)
    stamp(8)
    if E('NOHELP', 0) == 2:
        dump()
        a('s_endpgm')

    AB, AA, LF, FR = 16, 32, 32, 64
    NFR = 14
    AX, FI, FW = 48, 64, 128
    V_DM, V_RA, V_RY, V_OUT, V_GT, V_DW = 120, 121, 122, 123, 124, 125
    S_MI, S_NI = S_CT, S_A
    a(f's_lshr_b32 s{S_MI}, s{S_HW}, 1')
    a(f's_and_b32 s{S_NI}, s{S_HW}, 1')
    srd(a, R_A, S_WO, 512 * 1024)
    srd(a, R_OUT, S_OUT, 2048 * 1024)
    table_srd(a, R_TB, 'TAB_FINV', 512 * 1024, 'fi')
    a(f'v_lshrrev_b32 {u(0)}, 3, v0')
    a(f'v_and_b32 {u(1)}, 7, v0')
    a(f'v_and_b32 {u(2)}, 1, v{V_G}')
    a(f'v_lshlrev_b32 {u(3)}, 2, {u(2)}')
    a(f'v_xor_b32 {u(3)}, {u(3)}, {u(1)}')
    a(f'v_lshlrev_b32 {u(3)}, 4, {u(3)}')
    a(f'v_lshl_add_u32 {u(4)}, {u(0)}, 10, {u(3)}')
    a(f'v_mov_b32 v{V_DW}, {u(4)}')
    a(f's_lshl_b32 s{S_T3}, s{S_HW}, 14')
    a(f'v_lshl_add_u32 v{V_DM}, {u(0)}, 12, {u(3)}')
    a(f'v_and_b32 {u(0)}, 31, v0')
    a(f'v_lshrrev_b32 {u(1)}, 5, v0')
    a(f'v_bfe_u32 {u(3)}, v0, 2, 2')
    a(f'v_and_b32 {u(4)}, 3, v0')
    a(f'v_lshrrev_b32 {u(5)}, 1, {u(4)}')
    a(f'v_and_b32 {u(4)}, 1, {u(4)}')
    a(f'v_lshrrev_b32 {u(6)}, 1, {u(3)}')
    a(f'v_lshlrev_b32 {u(6)}, 2, {u(6)}')
    a(f'v_lshl_add_u32 {u(7)}, {u(4)}, 1, {u(2)}')
    a(f's_lshl_b32 s{S_T0}, s{S_MI}, 2')
    a(f'v_add_u32 {u(7)}, s{S_T0}, {u(7)}')
    a(f'v_xor_b32 {u(7)}, {u(7)}, {u(6)}')
    a(f'v_lshlrev_b32 {u(7)}, 4, {u(7)}')
    a(f'v_lshl_add_u32 {u(7)}, {u(5)}, 3, {u(7)}')
    a(f'v_lshl_add_u32 v{V_RA}, {u(1)}, 2, {u(3)}')
    a(f'v_lshl_add_u32 v{V_RA}, v{V_RA}, 7, {u(7)}')
    a(f'v_lshl_add_u32 {u(7)}, {u(2)}, 1, {u(5)}')
    a(f's_lshl_b32 s{S_T0}, s{S_NI}, 2')
    a(f'v_add_u32 {u(7)}, s{S_T0}, {u(7)}')
    a(f'v_xor_b32 {u(7)}, {u(7)}, {u(6)}')
    a(f'v_lshlrev_b32 {u(7)}, 4, {u(7)}')
    a(f'v_lshl_add_u32 {u(7)}, {u(4)}, 3, {u(7)}')
    a(f'v_lshl_add_u32 v{V_RY}, {u(1)}, 3, {u(3)}')
    a(f'v_lshl_add_u32 v{V_RY}, v{V_RY}, 7, {u(7)}')
    a(f'v_add_u32 v{V_RY}, {L_Y}, v{V_RY}')
    a(f'v_bfe_u32 {u(5)}, {u(0)}, 2, 1')
    a(f'v_lshrrev_b32 {u(6)}, 3, {u(0)}')
    a(f'v_and_b32 {u(7)}, 3, {u(0)}')
    a(f'v_lshl_add_u32 {u(7)}, {u(5)}, 4, {u(7)}')
    a(f'v_lshl_add_u32 {u(7)}, {u(6)}, 2, {u(7)}')
    a(f'v_lshlrev_b32 {u(7)}, 15, {u(7)}')
    a(f'v_lshl_add_u32 {u(7)}, {u(1)}, 5, {u(7)}')
    a(f's_lshl_b32 s{S_T0}, s{S_NI}, 20')
    a(f's_lshl_b32 s{S_T1}, s{S_QG}, 10')
    a(f's_add_u32 s{S_T0}, s{S_T0}, s{S_T1}')
    a(f's_lshl_b32 s{S_T1}, s{S_HG}, 7')
    a(f's_add_u32 s{S_T0}, s{S_T0}, s{S_T1}')
    a(f's_lshl_b32 s{S_T1}, s{S_MI}, 6')
    a(f's_add_u32 s{S_T0}, s{S_T0}, s{S_T1}')
    a(f'v_add_u32 v{V_OUT}, s{S_T0}, {u(7)}')
    a(f'v_lshlrev_b32 v{V_GT}, 2, {u(0)}')
    S_FI = S_KOFF
    a(f's_lshl_b32 s{S_FI}, s{S_HG}, 16')
    a(f's_lshl_b32 s{S_T0}, s{S_MI}, 10')
    a(f's_add_u32 s{S_FI}, s{S_FI}, s{S_T0}')
    def fload(i):
        if i % 2 == 0:
            a(f's_add_u32 s{S_KB}, s{S_FI}, {i*2048}')
        a(f'buffer_load_dwordx4 {vr(FR+4*(i%NFR),4)}, v{V_L16}, {tb}, s{S_KB} offen offset:{(i%2)*2048}')
    for i in range(NFR):
        fload(i)
        thr()
    if FI_TOUCH:
        a(f'v_lshlrev_b32 {u(0)}, 7, v0')
        a(f'v_and_b32 {u(1)}, 0x1c00, {u(0)}')
        a(f'v_add_u32 {u(0)}, {u(0)}, {u(1)}')
        for k in range(3):
            a(f's_add_u32 s{S_KB}, s{S_FI}, {(8+8*k)*2048}')
            a(f'buffer_load_dword v{FW+k}, {u(0)}, {tb}, s{S_KB} offen')
    lds_wait(F_J2, 4, V_U, sleep=2)
    pg_wait(4, 2)
    a(f's_lshl_b32 s{S_T2}, s{S_HW}, 17')
    a(f's_lshl_b32 s{S_T0}, s{S_HG}, 7')
    a(f's_add_u32 s{S_T2}, s{S_T2}, s{S_T0}')
    a(f's_add_u32 s{S_T1}, s{S_T3}, {L_WQ}')
    a(f's_cmp_eq_u32 s{S_HW}, 2')
    a(f's_cselect_b32 s{S_T1}, {L_KW}, s{S_T1}')
    a(f's_cmp_eq_u32 s{S_HW}, 3')
    a(f's_cselect_b32 s{S_T1}, s{S_T3}, s{S_T1}')
    for i in range(16):
        a(f's_add_u32 m0, s{S_T1}, {i*1024}')
        a(f's_add_u32 s{S_T0}, s{S_T2}, {i*8192}')
        a(f'buffer_load_dwordx4 v{V_DW}, {ra}, s{S_T0} offen lds')
        thr()
    a(f's_mov_b32 s{S_T0}, {L_WQ}')
    a(f's_mov_b32 s{S_T1}, {L_WQ + 16384}')
    a(f's_cmp_eq_u32 s{S_MI}, 1')
    a(f's_cselect_b32 s{S_T0}, {L_KW}, s{S_T0}')
    a(f's_cselect_b32 s{S_T1}, 49152, s{S_T1}')
    a(f'v_add_u32 v{LF}, s{S_T0}, v{V_RA}')
    a(f'v_add_u32 v{LF+2}, s{S_T1}, v{V_RA}')
    a(f'v_xor_b32 v{LF+1}, 64, v{LF}')
    a(f'v_xor_b32 v{LF+3}, 64, v{LF+2}')
    a('s_waitcnt vmcnt(0)')
    sync(F_J4)
    def fw(j, t_, o): return FW + 64*t_ + 8*j + 4*o
    for t_ in range(2):
        for j in range(8):
            i = 2*j + t_
            for o in range(2):
                ad = LF + 2*(i >> 3) + o
                a(f'ds_read_b64_tr_b16 {vr(fw(j,t_,o),2)}, v{ad} offset:{(i&7)*2048}')
                a(f'ds_read_b64_tr_b16 {vr(fw(j,t_,o)+2,2)}, v{ad} offset:{(i&7)*2048+1024}')
    a('s_waitcnt lgkmcnt(0)')
    lds_add(F_WR, V_U)
    if TST: stamp(6)
    a(f's_cmp_lg_u32 s{S_HW}, 1')
    a('s_cbranch_scc1 KG_S2W')
    a(f's_mov_b32 s{S_T1}, {WS_FL3}')
    glob_poll('S2', -1, S2_SLEEP)
    a(f'v_mov_b32 {u(1)}, 1')
    a(f'ds_write_b32 v{V_Z}, {u(1)} offset:{4*F_S2OK}')
    a.label('KG_S2W')
    pg_wait(6, 4)
    lds_wait(F_WR, 4, V_U, sleep=4)
    lds_wait(F_S2OK, 1, V_U, sleep=4)
    stamp(9)
    a(f's_lshl_b32 s{S_T2}, s{S_HW}, 19')
    a(f's_lshl_b32 s{S_T0}, s{S_QG}, 7')
    a(f's_add_u32 s{S_T2}, s{S_T2}, s{S_T0}')
    a(f's_add_u32 s{S_T2}, s{S_T2}, {WS_Y1T}')
    for i in range(16):
        a(f's_add_u32 m0, s{S_T3}, {L_Y + i*1024}')
        a(f's_add_u32 s{S_T0}, s{S_T2}, {i*32768}')
        a(f'buffer_load_dwordx4 v{V_DM}, {ws}, s{S_T0} offen{SC} lds')
        thr()
    a(f's_lshl_b32 s{S_T0}, s{S_QG}, 8')
    a(f's_lshl_b32 s{S_T1}, s{S_NI}, 7')
    a(f's_add_u32 s{S_T0}, s{S_T0}, s{S_T1}')
    a(f's_add_u32 s{S_T0}, s{S_T0}, {WS_G}')
    a(f'buffer_load_dword v{V_GT}, v{V_GT}, {ws}, s{S_T0} offen{SC}')
    a('s_waitcnt vmcnt(0)')
    sync(F_J3)
    def lread(i, addr, second):
        a(f'ds_read_b64_tr_b16 {vr(LF+4*(i%8),2)}, v{addr} offset:{i*2048}')
        a(f'ds_read_b64_tr_b16 {vr(LF+4*(i%8)+2,2)}, v{addr} offset:{i*2048+second}')
    if PRI & 2: a('s_setprio 0')
    for i in range(6):
        lread(i, V_RY, 512)
    for i in range(32):
        if i >= NFR:
            a(f's_waitcnt vmcnt({min(31, i+NFR-1)-i}) lgkmcnt({2*min(5, 31-i)})')
        else:
            a(f's_waitcnt lgkmcnt({2*min(5, 31-i)})')
        cc = vr(AB, 16) if i else '0'
        a(f'v_mfma_f32_32x32x16_bf16 {vr(AB,16)}, {vr(FR+4*(i%NFR),4)}, {vr(LF+4*(i%8),4)}, {cc}')
        if i + NFR < 32: fload(i + NFR)
        if i + 6 < 32: lread(i + 6, V_RY, 512)
    if PRI & 2: a('s_setprio 2')
    stamp(10)
    if E('NOHELP', 0) == 3:
        dump()
        a('s_endpgm')
    L_EX = L_X + 49152
    F_EX = F_MM
    a(f's_lshl_b32 s{S_T2}, s{S_QG}, 1')
    a(f's_add_u32 s{S_T2}, s{S_T2}, s{S_NI}')
    a(f's_lshl_b32 s{S_T2}, s{S_T2}, 1')
    a(f's_add_u32 s{S_T2}, s{S_T2}, s{S_MI}')
    a(f's_lshl_b32 s{S_T2}, s{S_T2}, 14')
    SBK = [R_X, R_X+1, R_X+2, R_X+3]
    S_PD = S_P
    for k in range(4):
        a(f's_add_u32 s{SBK[k]}, s{S_T2}, {WS_O + 4096*k}')
    a(f'v_sub_f32 {u(1)}, 1.0, v{V_GT}')
    for i in range(4):
        a(f'v_mov_b32 {u(4+i)}, 0')
    a('s_nop 1')
    for r_ in (AA, AX):
        a(f'v_mfma_f32_32x32x16_bf16 {vr(r_,16)}, {vr(V_U+4,4)}, {vr(V_U+4,4)}, 0')
    for i in range(8):
        a(f'v_pk_mul_f32 {vr(AB+2*i,2)}, {vr(AB+2*i,2)}, {vr(V_U,2)} op_sel:[0,1] op_sel_hi:[1,1]')
    a(f'v_mov_b32 v{V_DM}, v{V_GT}')
    a(f's_lshl_b32 s{S_T0}, s{S_HW}, 2')
    a(f'v_add_u32 v{V_DW}, s{S_T0}, v{V_Z}')
    a(f'v_xor_b32 v{V_GT}, 8, v{V_DW}')
    a(f's_lshl_b32 s{S_T0}, s{S_HW}, 12')
    a(f's_add_u32 s{S_T0}, s{S_T0}, {L_EX}')
    a(f'v_add_u32 v{V_RA}, s{S_T0}, v{V_L16}')
    a(f'v_xor_b32 v{V_RY}, 0x2000, v{V_RA}')
    def oload(p_, t_):
        a(f'buffer_load_dwordx4 {vr(FI+4*p_,4)}, v{V_L16}, {ws}, s{SBK[p_>>1]} offen offset:{(p_%2)*2048+1024*t_}{OLD}')
    def ocheck(p_, t_, k):
        if DRY:
            a(f'v_cmp_ne_u32 vcc, -1, v{FI+4*p_+3}')
            a('s_cmp_eq_u64 vcc, -1')
            a(f's_cbranch_scc0 KG_OC{t_}{k}_{p_}')
        else:
            a(f'v_cmp_eq_u32 vcc, -1, v{FI+4*p_+3}')
            a(f's_cbranch_vccnz KG_OC{t_}{k}_{p_}')
        a(f'v_mfma_f32_32x32x16_bf16 {vr(AX,16)}, {vr(fw(p_,t_,1),4)}, {vr(FI+4*p_,4)}, {vr(AX,16)}')
        a(f'v_mfma_f32_32x32x16_bf16 {vr(AA,16)}, {vr(fw(p_,t_,0),4)}, {vr(FI+4*p_,4)}, {vr(AA,16)}')
        a(f's_bitset0_b32 s{S_PD}, {p_}')
        a.label(f'KG_OC{t_}{k}_{p_}')
    def pend_each(tag, fn):
        for g in range(2):
            a(f's_and_b32 s{S_T0}, s{S_PD}, {hex(0xf << (4*g))}')
            a(f's_cbranch_scc0 KG_OG{tag}_{g}')
            for p_ in range(4*g, 4*g + 4):
                a(f's_bitcmp1_b32 s{S_PD}, {p_}')
                a(f's_cbranch_scc0 KG_OP{tag}_{p_}')
                fn(p_)
                a.label(f'KG_OP{tag}_{p_}')
            a.label(f'KG_OG{tag}_{g}')
    S_PL = S_KH
    a(f's_mov_b32 s{S_PL}, {POLL_LIMIT}')
    if DRY:
        a(f's_cmp_ge_u32 s{S_HW}, {DRY}')
        a('s_cbranch_scc1 KG_OS')
        a(f'v_mov_b32 {u(0)}, 64')
        a(f's_mov_b32 s{S_PL}, 1')
        a('s_mov_b64 exec, 0')
        a('s_branch KG_OS')
        a.label('KG_REAL')
        a('s_mov_b64 exec, -1')
        a(f's_mov_b32 s{S_PL}, {POLL_LIMIT}')
        a.label('KG_OS')
    for t_ in range(2):
        a(f's_movk_i32 s{S_PD}, 0xff')
        a(f's_mov_b32 s{S_CNT}, s{S_PL}')
        if t_ == 0:
            stamp(4)
            lds_wait(F_ADONE, 1, V_U, sleep=4)
            stamp(3)
        elif O1W == 1:
            lds_wait(F_PGW, 10, V_U, sleep=1, addr=V_DW)
            stamp(11)
        elif O1W == 2:
            pg_wait(10, 1)
            stamp(11)
        for p_ in range(8):
            oload(p_, t_)
        for p_ in range(8):
            a(f's_waitcnt vmcnt({7-p_})')
            if TST == 2 and t_ and p_ in (0, 4): stamp(7 if p_ == 0 else 6)
            ocheck(p_, t_, 0)
        if TST and t_: stamp(1)
        a.label(f'KG_OR{t_}')
        a(f's_cmp_eq_u32 s{S_PD}, 0')
        a(f's_cbranch_scc1 KG_OD{t_}')
        a(f's_sub_u32 s{S_CNT}, s{S_CNT}, 1')
        a(f's_cbranch_scc1 KG_OD{t_}')
        sl = O_SLEEP if t_ == 0 else O_SLEEP1
        if sl: a(f's_sleep {sl}')
        pend_each(f'L{t_}', lambda p_: oload(p_, t_))
        a('s_waitcnt vmcnt(0)')
        pend_each(f'C{t_}', lambda p_: ocheck(p_, t_, 1))
        a(f's_branch KG_OR{t_}')
        a.label(f'KG_OD{t_}')
        if t_ == 0: stamp(5)
        elif TST: stamp(2)
    a(f'v_mov_b32 {u(1)}, 1')
    a('s_nop 7')
    for q in range(4):
        a(f'ds_write_b128 v{V_RA}, {vr(AX+4*q,4)} offset:{1024*q}')
    a(f'ds_write_b32 v{V_DW}, {u(1)} offset:{4*F_EX}')
    def ex_reads():
        a(f'ds_read_b32 {u(0)}, v{V_GT} offset:{4*F_EX}')
        for q in range(4):
            a(f'ds_read_b128 {vr(FI+4*q,4)}, v{V_RY} offset:{1024*q}')
    ex_reads()
    for i in range(8):
        a(f'v_pk_fma_f32 {vr(AB+2*i,2)}, {vr(AA+2*i,2)}, {vr(V_DM,2)}, {vr(AB+2*i,2)} op_sel_hi:[1,0,1]')
    if TST == 2: stamp(10)
    a.label('KG_EXL')
    a('s_waitcnt lgkmcnt(4)' if TST != 2 else 's_waitcnt lgkmcnt(0)')
    a(f'v_readfirstlane_b32 s{S_T0}, {u(0)}')
    a(f's_cmp_lg_u32 s{S_T0}, 0')
    a('s_cbranch_scc1 KG_EXD')
    ex_reads()
    a(f's_sub_u32 s{S_LIM}, s{S_LIM}, 1')
    a('s_cbranch_scc0 KG_EXL')
    a.label('KG_EXD')
    if TST == 2: stamp(8)
    for i in range(8):
        if i % 2 == 0: a(f's_waitcnt lgkmcnt({3 - i//2})')
        a(f'v_pk_fma_f32 {vr(AA+2*i,2)}, {vr(FI+2*i,2)}, {vr(V_DM,2)}, {vr(AB+2*i,2)} op_sel_hi:[1,0,1]')
    for i in range(8):
        a(f'v_cvt_pk_bf16_f32 v{LF+i}, v{AA+2*i}, v{AA+2*i+1}')
    for q in range(2):
        a(f'buffer_store_dwordx4 {vr(LF+4*q,4)}, v{V_OUT}, {sr(R_OUT,4)}, 0 offen offset:{16*q}{OUTSC}')
    if DRY: a('s_cbranch_execz KG_REAL')
    if TST == 2: stamp(9)
    dump()
    a('s_endpgm')

    SG, SL, SD = 168, 176, 184
    a.label('KG_SPA')
    a(f's_mov_b32 s{S_T0}, {L_SP}')
    a(f's_mov_b32 s{S_T1}, {L_SPW}')
    for e in range(8):
        k_ = u(4 + (e & 1))
        a(f'v_sub_u32 {k_}, {2048 - 64*(e&3) - 1024*(e>>2)}, v{V_A3}')
        a(f'v_and_b32 {k_}, 2047, {k_}')
        a(f'v_lshl_add_u32 v{SL+e}, {k_}, 2, s{S_T0}')
        a(f'v_lshl_add_u32 v{SG+e}, {k_}, 3, s{S_T1}')
    a('s_branch KG_SPAR')
    a.label('KG_SPB')
    a(f's_mov_b32 s{S_C0}, 0x05040100')
    a(f's_mov_b32 s{S_C0+1}, 0x07060302')
    a(f's_mov_b32 s{S_T1}, {L_SPW}')
    a(f'v_lshl_add_u32 {u(4)}, v{V_A3}, 3, s{S_T1}')
    a('s_waitcnt vmcnt(0)')
    for e in range(8):
        for j, base in enumerate((V_W, V_XX)):
            a(f'v_perm_b32 v{SD+2*e+j}, v{base+12+(e>>1)}, v{base+4+(e>>1)}, s{S_C0+(e&1)}')
        a(f'ds_write_b64 {u(4)}, {vr(SD+2*e,2)} offset:{512*(e&3) + 8192*(e>>2)}')
    a('s_branch KG_SPBR')
    a.label('KG_SPECIAL')
    for e in range(8):
        a(f'ds_read_b64 {vr(SD+2*e,2)}, v{SG+e}')
    a(f'v_lshlrev_b32 {u(4)}, 2, v{V_A3}')
    a(f'v_add_u32 {u(6)}, {L_SP}, {u(4)}')
    for e in range(8):
        mt, r = e >> 2, e & 3
        a(f'ds_write2st64_b32 {u(6)}, v{V_AC+8*mt+r}, v{V_AC+8*mt+4+r} offset0:{16*mt+r} offset1:{32+16*mt+r}')
    a(f'v_mov_b32 {u(0)}, 1')
    a('s_waitcnt lgkmcnt(0)')
    a('s_mov_b64 exec, 1')
    a(f'ds_add_u32 v{V_Z}, {u(0)} offset:{4*F_SY2}')
    a('s_mov_b64 exec, -1')
    unpack(V_XX)
    for e in range(8):
        a0r, a0i, a1r, a1i = V_W + e, V_W + 8 + e, V_XX + e, V_XX + 8 + e
        b0r, b0i, b1r, b1i = SD + 16, SD + 2*e, SD + 17, SD + 2*e + 1
        a(f'v_lshlrev_b32 v{b0r}, 16, v{b0i}')
        a(f'v_lshlrev_b32 v{b1r}, 16, v{b1i}')
        a(f'v_and_b32 v{b0i}, 0xffff0000, v{b0i}')
        a(f'v_and_b32 v{b1i}, 0xffff0000, v{b1i}')
        a(f'v_add_f32 v{b0r}, v{a0r}, v{b0r}')
        a(f'v_sub_f32 v{b0i}, v{a0i}, v{b0i}')
        a(f'v_add_f32 v{b1r}, v{a1r}, v{b1r}')
        a(f'v_sub_f32 v{b1i}, v{a1i}, v{b1i}')
        a(f'v_add_f32 v{a0r}, v{b0r}, v{b1r}')
        a(f'v_add_f32 v{a0i}, v{b0i}, v{b1i}')
        a(f'v_sub_f32 v{a1r}, v{b0r}, v{b1r}')
        a(f'v_sub_f32 v{a1i}, v{b0i}, v{b1i}')
    lds_wait(F_SY2, 4, V_U, sleep=1)
    for e in range(8):
        a(f'ds_read2st64_b32 {vr(V_D+2*e,2)}, v{SL+e} offset0:0 offset1:32')
    a(f's_mov_b32 s{S_T0}, {f32_bits(0.125)}')
    for e in range(8):
        mt, r = e >> 2, e & 3
        zr_, zi_ = V_AC + 8*mt + r, V_AC + 8*mt + 4 + r
        pr, pi_, mr, mi = V_W + e, V_W + 8 + e, V_XX + e, V_XX + 8 + e
        znr, zni = V_D + 2*e, V_D + 2*e + 1
        rr, ri = SD + 2*e, SD + 2*e + 1
        a(f'v_mul_f32 v{rr}, v{zr_}, v{pr}')
        a(f'v_mul_f32 v{ri}, v{zr_}, v{pi_}')
        a(f'v_fma_f32 v{rr}, -v{zi_}, v{pi_}, v{rr}')
        a(f'v_fma_f32 v{ri}, v{zi_}, v{pr}, v{ri}')
        a(f's_waitcnt lgkmcnt({7-e})')
        a(f'v_fma_f32 v{rr}, v{znr}, v{mr}, v{rr}')
        a(f'v_fma_f32 v{ri}, v{znr}, v{mi}, v{ri}')
        a(f'v_fma_f32 v{rr}, v{zni}, v{mi}, v{rr}')
        a(f'v_fma_f32 v{ri}, -v{zni}, v{mr}, v{ri}')
        a(f'v_mul_f32 v{zr_}, s{S_T0}, v{rr}')
        a(f'v_mul_f32 v{zi_}, s{S_T0}, v{ri}')
    a('s_branch KG_STEP3')
    a.label('KG_END')
    a('s_endpgm')
    return 256, (102 if ST in (5, 6, 7) else NS)

def build_g(path):
    a = Asm()
    hdr = open(f'cdna_kernels/{NAME}.s.ref').read().split('\n')
    for l in hdr:
        if l.startswith(';') and '@launch' not in l and 'Override launch' not in l and 'grid=ceil' not in l:
            a.raw(l)
    kn = NAME + '_kernel'
    if E('PLAIN', 0):
        a.raw(f'; @launch grid=(256,1,1) block=(512,1,1) lds={KG_LDS}')
    else:
        a.raw(f'; @launch kernel={kn} grid=(256,1,1) block=(512,1,1) lds={KG_LDS}')
    a.raw('.amdgcn_target "amdgcn-amd-amdhsa--gfx950"')
    a.raw('.text')
    v, s = gen_g(a, kn)
    a.raw('.section .rodata,"a"')
    kernel_desc(a, kn, v, s)
    gen_tables(a)
    gen_k2.gen_tables_k2(a)
    gen_k3.gen_tables_k3(a)
    open(path, 'w').write(a.text())

if __name__ == '__main__':
    build_g(sys.argv[1] if len(sys.argv) > 1 else 'j.s')
```

```python
from gen import *
import gen_k2, gen_k3
from gen_k2 import YSCALE
import os

WS_ROOT = 0x240000
WS_FL1 = 0x244000
WS_FL2 = 0x248000
WS_FL3 = 0x24C000
WS_FL4 = 0x260000
TAG_M, TAG_C = 0x9E3779B1, 0x7F4A7C15
WS_XC = 0x250000
FORCE_GL = int(os.environ.get('FORCE_GL', '0'))
WS_KVT = int(os.environ.get('WS_KVT', '0x280000'), 0)

L_X = 0
L_WQ = 65536
L_FLAG = 131072
L_KW = L_FLAG + 256
L_GATE = L_KW + 16384
KG_LDS = 163840
L_APR = L_KW; L_API = L_APR + 5120
L_CPR = L_API + 5120; L_CPI = L_CPR + 4608
L_MX = L_KW
L_MXM = L_KW + 20480
assert L_CPI + 4608 <= L_MXM and L_MX + 8 * 2304 <= L_MXM and L_MXM + 4096 <= KG_LDS and L_GATE + 1024 <= L_MXM
L_SP = L_WQ
L_SPW = L_X + 49152
L_WO = L_X
L_Y = L_WQ
F_CX, F_CW = 0, 1
F_CC, F_MG, F_MM, F_PG, F_QX = 0, 8, 16, 40, 48
L_QX = L_GATE + 1024
assert L_QX + 8192 <= KG_LDS
F_N, F_TAG, F_QDONE, F_J1, F_S1OK, F_SY0, F_SY1, F_SY2, F_J2, F_S2OK, F_J3, F_TAGOK, F_ADONE, F_J4, F_KVS, F_GI, F_PRE = range(24, 41)
F_PRE = 2
F_PGW = 8
F_KX = 15
F_WR = 3
F_LOC = 14
F_POS, F_H2 = 12, 13
L_PRE = L_KW
NWAVE = 8
WS_G = 0x230000
E = lambda k, d: int(os.environ.get(k, str(d)))
LOAD_D = E('LOAD_D', 6)
KV_SLEEP = E('KV_SLEEP', 4)
O_SLEEP = E('O_SLEEP', 0)
THR = E('THR', 15)
LD_PRE = {'X': E('LD_PREX', 0), 'W': E('LD_PREW', 0)}
KV_BAR = E('KV_BAR', 15)
FAIR = E('FAIR', 1)
KV_LAG = E('KV_LAG', 0)
TF_LAG = E('TF_LAG', 2)
WT_LAG = E('WT_LAG', 8)
G_DELAY = E('G_DELAY', 16)
Q7_SLEEP = E('Q7_SLEEP', 0)
H2_PD = E('H2_PD', 12)
KVSC = ' sc1' if E('KVSC1', 0) else ''
OSC = ' sc1' if E('OSC1', 0) else ''
SC = ' sc1'
POLL_LIMIT = 1 << 18
NSTAMP = 12
OF_STEP = E('OF_STEP', 10)
O1W = E('O1W', 1)
FI_TOUCH = E('FI_TOUCH', 0)
T2 = E('T2', 1)
ROT = E('ROT', 3)
KVL = E('KVL', 1)
DRY = E('DRY', 0)
QP = E('QP', 1)
QSL = E('QSL', 0)
IST = E('IST', 0)
PTOP = E('PTOP', 0)
PMOD = E('PMOD', 8)
PSC = E('PSC', 1)
EB = E('EB', 3)
F_GO = 41
VCH = E('VCH', 0)
OLD = {0: ' sc1', 1: ' nt', 2: ' sc0 sc1', 3: ' sc0 nt'}[E('OLD', 0)]
XS = E('XS', 0)
LOCSC = {0: '', 1: ' nt', 2: ' sc0', 3: ' sc0 nt'}[E('LOCSC', 1)]
LOCSE = {0: '', 1: ' nt', 2: ' sc0', 3: ' sc0 nt', 4: ' sc1'}[E('LOCSE', 4)]
O_SLEEP1 = E('O_SLEEP1', 0)
NFO = E('NFO', 10)
TST = E('TST', 0)
OST = '' if E('OPLAIN', 0) else ' sc1'
S1_SLEEP = E('S1_SLEEP', 4)
S2_SLEEP = E('S2_SLEEP', 8)
SPSC = ' sc1' if E('SPSC1', 0) else ''
KP_DELAY = E('KP_DELAY', 0)
PEEL_B = E('PEEL_B', 4)
PRI = E('PRI', 7)
LST = E('LST', 0)
G_EARLY = E('G_EARLY', 3)
G_TRIG = E('G_TRIG', 7)
QPIPE = E('QPIPE', 3)
if QPIPE == 3: QP = 0
EPOLL = E('EPOLL', 8)
TOUCH = E('TOUCH', 0)
FST = E('FST', 0)
PRET = E('PRET', 3)
GST = E('GST', 0)
OUTSC = {0: '', 1: ' sc1', 2: ' nt', 3: ' sc0 sc1', 4: ' sc1 nt'}[E('OUTSC', 2)]

def gen_g(a, name):
    kernel_header(a, name)
    S_X, S_WQ, S_WK, S_WV, S_WO, S_WS, S_WR, S_WI, S_GT, S_OUT = 4, 6, 8, 10, 12, 14, 16, 18, 20, 22
    R_X, R_WS, R_A, R_B, R_TB, R_OUT = 24, 28, 32, 36, 40, 44
    S_W, S_QG, S_HG, S_T0, S_T1, S_T2, S_T3, S_CNT, S_KOFF, S_KB, S_P, S_KH = 48, 49, 50, 51, 52, 53, 54, 55, 56, 57, 58, 59
    S_VM = 60; S_C0 = 62; S_C1 = 64
    S_CT, S_A, S_F, S_HW, S_MH, S_NH, S_SEEN, S_LIM, S_TAG = 3, 66, 67, 68, 69, 70, 71, 72, 73
    NS = 74
    SB = 74
    ws = sr(R_WS, 4); xs = sr(R_X, 4); ra = sr(R_A, 4); rb_ = sr(R_B, 4); tb = sr(R_TB, 4)
    TM = 's_memrealtime' if ST in (5, 7) else 's_memtime'
    duid = [0]
    def stamp(i, f=0):
        if IST and i in (3, 4, 5) : return
        if FST and (i >= 7) != bool(f):
            if i >= 7 or f: return
        if f and not FST: return
        if ST in (5, 6, 7):
            a(f'{TM} s[{SB+2*i}:{SB+1+2*i}]')
    def dump(kind=0):
        n = NSTAMP
        if ST == 7:
            duid[0] += 1
            a('s_waitcnt vmcnt(0)')
            a(f'{TM} s[{SB+2*n}:{SB+1+2*n}]')
            a(f's_load_dwordx2 s[{R_A}:{R_A+1}], s[0:1], 80')
            a(f's_mov_b32 s{R_A+2}, 256')
            a(f's_mov_b32 s{R_A+3}, 0x20000')
            a('s_waitcnt lgkmcnt(0)')
            a('s_mov_b64 exec, 1')
            a('v_mov_b32 v0, 0')
            a(f's_cmp_lg_u32 s{S_W}, {4 if kind else 0}')
            a(f's_cbranch_scc1 KG_DD{duid[0]}')
            if kind:
                a(f's_not_b32 s{S_T0}, s{SB}')
                a(f'v_mov_b32 v2, s{S_T0}')
                a(f'buffer_atomic_umax v2, v0, {ra}, 0 offen offset:0')
                L = [(2, 0), (3, 2), (4, 3), (5, 4), (6, 5), (7, 12)]
            else:
                a(f'v_mov_b32 v2, s{SB+24}')
                a(f'buffer_atomic_umax v2, v0, {ra}, 0 offen offset:4')
                L = [(8, 3), (9, 5), (10, 6), (11, 7), (12, 8), (13, 9), (14, 11), (15, 12)]
            for k, (sl, st_) in enumerate(L):
                a(f'v_mov_b32 v{3+k}, s{SB+2*st_}')
                a(f'buffer_atomic_add v{3+k}, v0, {ra}, 0 offen offset:{4*sl}')
            a.label(f'KG_DD{duid[0]}')
        if ST in (5, 6):
            a('s_waitcnt vmcnt(0)')
            a(f'{TM} s[{SB+2*n}:{SB+1+2*n}]')
            a('s_mov_b64 exec, 1')
            a(f's_lshl_b32 s{S_T0}, s2, 4')
            a(f's_add_u32 s{S_T0}, s{S_T0}, s{S_W}')
            a(f's_lshl_b32 s{S_T0}, s{S_T0}, 6')
            a(f's_add_u32 s{S_T0}, s{S_T0}, {0xC00000}')
            a('s_waitcnt lgkmcnt(0)')
            a(f's_mov_b32 s{R_WS+2}, 0x1000000')
            a('v_mov_b32 v0, 0')
            if LST and kind:
                a('s_mov_b64 exec, 0xffff')
                a('v_mbcnt_lo_u32_b32 v3, -1, 0')
                a('v_lshlrev_b32 v3, 2, v3')
                a(f'v_add_u32 v3, 0x100000, v3')
                a(f'buffer_store_dword v{192+23}, v3, {ws}, s{S_T0} offen')
                a('s_mov_b64 exec, 1')
            for i in range(n + 1):
                a(f'v_mov_b32 v2, s{SB+2*i}')
                a(f'buffer_store_dword v2, v0, {ws}, s{S_T0} offen offset:{4*i}')
                a('s_nop 1')

    a('s_cmp_ge_u32 s2, 256')
    a('s_cbranch_scc1 KG_END')
    if ST in (5, 6, 7):
        for i in range(NSTAMP + 1):
            a(f's_mov_b32 s{SB+2*i}, 0')
    stamp(0)
    if EB in (1, 2):
        a('v_cmp_gt_u32 vcc, 0x100, v0')
        a('s_cbranch_vccnz KG_A1')
        a('v_and_b32 v8, 63, v0')
        a('v_lshlrev_b32 v8, 2, v8')
        a(f'v_add_u32 v8, {L_FLAG}, v8')
        a('v_mov_b32 v9, 0')
        a('ds_write_b32 v8, v9')
        a('s_waitcnt lgkmcnt(0)')
        a('s_barrier')
        a.label('KG_A1')
    a(f's_load_dwordx8 s[{S_X}:{S_X+7}], s[0:1], 0')
    a(f's_load_dwordx2 s[{S_WS}:{S_WS+1}], s[0:1], 88')
    a(f's_load_dwordx4 s[{S_GT}:{S_GT+3}], s[0:1], 64')
    a(f's_load_dwordx2 s[{S_WO}:{S_WO+1}], s[0:1], 32')
    a(f's_load_dwordx4 s[{S_WR}:{S_WR+3}], s[0:1], 48')
    if PTOP:
        PL = PTOP
        a('v_cmp_gt_u32 vcc, 0x100, v0')
        a('s_cbranch_vccnz KG_P1')
        a(f's_getpc_b64 s[{R_A}:{R_A+1}]')
        a.label('KG_PC')
        if PSC:
            a('v_bfe_u32 v212, v0, 6, 2')
            a(f's_lshr_b32 s{S_T0}, s2, 3')
            a(f'v_readfirstlane_b32 s{S_T1}, v212')
            a(f's_and_b32 s{S_T0}, s{S_T0}, {PMOD - 1}')
            a(f's_lshl2_add_u32 s{S_T0}, s{S_T0}, s{S_T1}')
            a(f's_mul_i32 s{S_T0}, s{S_T0}, {128*PL}')
            a(f's_min_u32 s{S_T0}, s{S_T0}, KG_END-KG_PC-{128*PL}')
            a(f's_add_u32 s{R_A}, s{R_A}, s{S_T0}')
            a(f's_addc_u32 s{R_A+1}, s{R_A+1}, 0')
            for k in range(PL * PSC):
                a(f's_load_dword s{R_B}, s[{R_A}:{R_A+1}], {128*k//PSC}')
        else:
            a(f's_mov_b32 s{R_A+2}, KG_END-KG_PC')
            a(f's_mov_b32 s{R_A+3}, 0x20000')
            a(f's_lshr_b32 s{S_T0}, s2, 3')
            a(f's_and_b32 s{S_T0}, s{S_T0}, {PMOD - 1}')
            a(f's_mul_i32 s{S_T0}, s{S_T0}, {512*PL}')
            a('v_bfe_u32 v212, v0, 6, 2')
            a('v_and_b32 v213, 63, v0')
            a(f'v_mad_u32_u24 v212, v212, {PL}, v213')
            a('v_lshlrev_b32 v212, 7, v212')
            a(f's_mov_b64 exec, {hex((1 << PL) - 1)}')
            a(f'buffer_load_dword v213, v212, {ra}, s{S_T0} offen')
            a('s_mov_b64 exec, -1')
        if EB == 3: a('s_barrier')
        a.label('KG_P1')
    a('v_lshrrev_b32 v1, 6, v0')
    a('v_and_b32 v0, 63, v0')
    a(f's_and_b32 s{S_T0}, s2, 7')
    a(f'v_readfirstlane_b32 s{S_W}, v1')
    a(f's_lshl_b32 s{S_T0}, s{S_T0}, 2')
    a(f's_lshr_b32 s{S_QG}, s2, 6')
    a(f's_add_u32 s{S_QG}, s{S_QG}, s{S_T0}')
    a(f's_bfe_u32 s{S_HG}, s2, 0x30003')
    a(f's_mov_b32 s{S_LIM}, {1<<21}')
    S_ROT = S_F
    if ROT == 1:
        a(f's_lshl_b32 s{S_ROT}, s{S_HG}, 7')
    elif ROT == 2:
        a(f's_lshr_b32 s{S_ROT}, s2, 5')
        a(f's_and_b32 s{S_ROT}, s{S_ROT}, 6')
        a(f's_add_u32 s{S_ROT}, s{S_ROT}, s{S_HG}')
        a(f's_and_b32 s{S_ROT}, s{S_ROT}, 7')
        a(f's_lshl_b32 s{S_ROT}, s{S_ROT}, 7')
    elif ROT == 3:
        a(f's_lshr_b32 s{S_ROT}, s2, 6')
        a(f's_lshl_b32 s{S_ROT}, s{S_ROT}, 8')
    V_Z = 7
    a(f'v_mov_b32 v{V_Z}, {L_FLAG}')
    V_I, V_G, V_L16, V_A1, V_A2, V_A3 = 1, 2, 3, 4, 5, 6
    V_U = 8
    u = lambda i: f'v{V_U+i}'
    KX, KW, KA = 16, 80, 144
    S_RB, S_TY, S_KQ = S_P, S_KH, S_KB
    a(f'v_and_b32 v{V_I}, 15, v0')
    a(f'v_lshrrev_b32 v{V_G}, 4, v0')
    a(f'v_lshlrev_b32 v{V_L16}, 4, v0')
    a(f's_mov_b32 s{S_HW}, s{S_W}')
    if EB == 1:
        a(f's_sub_u32 s{S_T0}, s{S_W}, 1')
        a(f's_cmp_lt_u32 s{S_T0}, 3')
        a('s_cbranch_scc0 KG_A2')
        a('s_barrier')
        a.label('KG_A2')
    a(f's_cmp_lg_u32 s{S_W}, 0')
    a('s_cbranch_scc1 KG_N0')
    a('s_setprio 2')
    if EB in (1, 2):
        a(f'v_mov_b32 v{KA+12}, 1')
    else:
        a(f'v_lshl_add_u32 {u(1)}, v0, 2, v{V_Z}')
        a(f'v_mov_b32 {u(2)}, 0')
        a(f'ds_write_b32 {u(1)}, {u(2)}')
    def xaddr():
        a(f'v_lshrrev_b32 {u(0)}, 3, v0')
        a(f'v_and_b32 {u(1)}, 7, v0')
        a(f'v_lshrrev_b32 {u(2)}, 2, {u(0)}')
        a(f'v_and_b32 {u(3)}, 3, {u(0)}')
        a(f'v_lshl_add_u32 {u(2)}, {u(2)}, 4, {u(3)}')
        a(f'v_lshlrev_b32 {u(2)}, 15, {u(2)}')
        a(f's_lshl_b32 s{S_T0}, s{S_QG}, 10')
        a(f'v_add_u32 {u(2)}, s{S_T0}, {u(2)}')
        a(f'v_xor_b32 {u(3)}, v{V_G}, {u(1)}')
        a(f'v_lshl_add_u32 {u(4)}, {u(3)}, 4, {u(2)}')
        a(f'v_xor_b32 {u(3)}, 4, {u(3)}')
        a(f'v_lshl_add_u32 {u(5)}, {u(3)}, 4, {u(2)}')
        a(f'v_add_u32 {u(5)}, {131072 - 1024}, {u(5)}')
    def xpair(sd, sl, sp):
        a(f's_lshr_b32 s{sd}, s{sp}, 1')
        a(f's_lshl_b32 s{sd}, s{sd}, 20')
        a(f's_and_b32 s{sl}, s{sp}, 1')
        a(f's_lshl_b32 s{sl}, s{sl}, 18')
        a(f's_add_u32 s{sd}, s{sd}, s{sl}')
        if ROT: a(f's_add_u32 s{sd}, s{sd}, s{S_ROT}')
        a(f's_lshl_b32 s{sl}, s{sp}, 11')
    a(f's_lshr_b32 s{S_RB}, s{S_HG}, 1')
    a(f's_and_b32 s{S_TY}, s{S_HG}, 1')
    xaddr()
    xpair(S_T2, S_T3, S_RB)
    a(f's_mov_b32 s{R_A+2}, 16384')
    a(f's_mov_b32 s{R_A+3}, 0x20000')
    a(f's_mov_b32 s{R_X+2}, {2048 * 1024}')
    a(f's_mov_b32 s{R_X+3}, 0x20000')
    a(f's_mov_b32 m0, s{S_T3}')
    a(f's_cmp_eq_u32 s{S_TY}, 1')
    if EB == 1: a('s_barrier')
    if IST: stamp(7, 1)
    a('s_waitcnt lgkmcnt(0)')
    if not GST: stamp(8, 1)
    a(f's_cselect_b64 s[{R_A}:{R_A+1}], s[{S_WV}:{S_WV+1}], s[{S_WK}:{S_WK+1}]')
    def touch():
        S_I, S_J, S_K = S_CNT, S_KOFF, S_SEEN
        a(f's_lshr_b32 s{S_I}, s2, 3')
        srd(a, R_TB, S_WQ, 512 * 1024)
        a(f'v_lshlrev_b32 {u(6)}, 7, v0')
        a(f's_lshl_b32 s{S_J}, s{S_I}, 14')
        a(f's_add_u32 s{S_K}, s{S_J}, 8192')
        a(f'buffer_load_dword v{KA+16}, {u(6)}, {tb}, s{S_J} offen')
        a(f'buffer_load_dword v{KA+17}, {u(6)}, {tb}, s{S_K} offen')
        a(f'v_and_b32 {u(7)}, 32, v0')
        a(f'v_lshlrev_b32 {u(7)}, 10, {u(7)}')
        a(f'v_and_b32 {u(6)}, 0xfff, {u(6)}')
        a(f'v_add_u32 {u(7)}, {u(7)}, {u(6)}')
        a(f's_and_b32 s{S_K}, s2, 7')
        a(f's_lshl_b32 s{S_K}, s{S_K}, 12')
        a(f's_lshl_b32 s{S_J}, s{S_I}, 16')
        a(f's_add_u32 s{S_K}, s{S_K}, s{S_J}')
        a(f'buffer_load_dword v{KA+18}, {u(7)}, {xs}, s{S_K} offen')
    a(f's_mov_b64 s[{R_X}:{R_X+1}], s[{S_X}:{S_X+1}]')
    if TOUCH == 2: touch()
    for c in range(8):
        if c:
            a(f's_add_u32 m0, s{S_T3}, {c*8192}')
            a(f's_add_u32 s{S_T2}, s{S_T2}, 128')
            if ROT: a(f's_bitset0_b32 s{S_T2}, 10')
        a(f'buffer_load_dwordx4 {u(4)}, {xs}, s{S_T2} offen lds')
        a(f'buffer_load_dwordx4 {u(5)}, {xs}, s{S_T2} offen offset:1024 lds')
        if c == 0 and not GST: stamp(10, 1)
    for q in range(4):
        a(f's_mov_b32 m0, {L_KW + q*4096}')
        if ROT == 3:
            if q == 0: a(f's_lshl_b32 s{S_T0}, s{S_ROT}, 4')
            else:
                a(f's_add_u32 s{S_T0}, s{S_T0}, 4096')
                a(f's_bitset0_b32 s{S_T0}, 14')
        else:
            a(f's_movk_i32 s{S_T0}, {q*4096}')
        for j in range(4):
            a(f'buffer_load_dwordx4 v{V_L16}, {ra}, s{S_T0} offen offset:{j*1024} lds')
    srd(a, R_B, S_GT, 1024)
    a(f's_mov_b32 m0, {L_GATE}')
    a(f's_lshr_b32 s{S_T2}, s2, 3')
    if ROT == 3:
        a(f'v_add_u32 {u(6)}, s{S_ROT}, v{V_L16}')
        a(f'v_and_b32 {u(6)}, 0x3ff, {u(6)}')
        a(f'buffer_load_dwordx4 {u(6)}, {rb_}, 0 offen lds')
    else:
        a(f'buffer_load_dwordx4 v{V_L16}, {rb_}, 0 offen lds')
    if TOUCH == 1: touch()
    if not GST: stamp(11, 1)
    if EB == 2: a('s_barrier')
    if EB in (1, 2): a(f'ds_write_b32 v{V_Z}, v{KA+12} offset:{4*F_GO}')
    else: a('s_barrier')
    stamp(1)
    a('s_branch KG_KV')
    a.label('KG_N0')
    if IST: a(f'{TM} s[{SB+2*3}:{SB+1+2*3}]')
    a(f's_cmp_lt_u32 s{S_W}, 4')
    a('s_cbranch_scc1 KG_N1')
    if PTOP: pass
    elif PRET >= 2:
        PL = {2: 4, 3: 8, 4: 16}[PRET]
        a(f's_getpc_b64 s[{R_A}:{R_A+1}]')
        a.label('KG_PC')
        a(f's_mov_b32 s{R_A+2}, KG_END-KG_PC')
        a(f's_mov_b32 s{R_A+3}, 0x20000')
        a(f's_lshr_b32 s{S_T0}, s2, 3')
        a(f's_lshl_b32 s{S_T0}, s{S_T0}, 2')
        a(f's_add_u32 s{S_T0}, s{S_T0}, s{S_W}')
        a(f's_mul_i32 s{S_T0}, s{S_T0}, {128*PL}')
        a(f's_and_b32 s{S_T0}, s{S_T0}, 0xffff')
        a(f'v_lshlrev_b32 v212, 7, v0')
        a(f's_mov_b64 exec, {hex((1 << PL) - 1)}')
        a(f'buffer_load_dword v213, v212, {ra}, s{S_T0} offen')
        a('s_mov_b64 exec, -1')
    elif PRET:
        a(f's_getpc_b64 s[{R_A}:{R_A+1}]')
        a.label('KG_PC')
        a(f's_mov_b32 s{R_A+2}, KG_END-KG_PC')
        a(f's_mov_b32 s{R_A+3}, 0x20000')
        a(f's_lshl_b32 s{S_T0}, s{S_W}, 13')
        a(f's_sub_u32 s{S_T1}, s{S_T0}, 0x8000')
        a(f'v_lshlrev_b32 v212, 7, v0')
        a(f'buffer_load_dword v213, v212, {ra}, s{S_T1} offen')
        a(f'buffer_load_dword v214, v212, {ra}, s{S_T0} offen')
    if EB == 3 and not PTOP: a('s_barrier')
    a('s_branch KG_ATT')
    a.label('KG_N1')
    a('s_setprio 2')
    a(f's_cmp_lg_u32 s{S_W}, 1')
    a('s_cbranch_scc1 KG_N2')
    a(f's_mov_b32 s{S_T3}, {WS_ROOT}')
    a(f'v_mov_b32 {u(2)}, 0')
    a('s_waitcnt lgkmcnt(0)')
    srd(a, R_WS, S_WS, WS_SIZE)
    a(f'buffer_load_dword {u(3)}, {u(2)}, {ws}, s{S_T3} offen{SC}')
    if IST: a(f'{TM} s[{SB+2*4}:{SB+1+2*4}]')
    if EB != 1: a('s_barrier')
    stamp(1)
    a('s_branch KG_TAG')
    a.label('KG_N2')
    if IST: a(f'{TM} s[{SB+2*4}:{SB+1+2*4}]')
    S_O, S_L = S_P, S_P + 4
    assert S_O + 8 <= S_A
    S_PV = S_NH
    LK = LOAD_D // 2
    assert L_X == 0 and 1 <= LK <= 7
    LKS = {'X': E('LKX', LK), 'W': E('LKW', 2)}
    a(f's_mov_b32 s{S_PV}, {-LKS["X"]}')
    if VCH: a(f's_mov_b32 s{S_MH}, 0')
    a(f's_mov_b32 s{R_A+3}, 0x20000')
    a(f's_cmp_eq_u32 s{S_HW}, 3')
    a('s_cbranch_scc1 KG_LDW')
    S_ANN, S_VA, S_VB = S_MH, S_T0, S_T3
    cuid = [0]
    def announce(flag, first, k):
        a(f's_cmp_le_i32 s{S_VA}, s{S_ANN}')
        a(f's_cbranch_scc1 KG_CE{k}')
        a(f's_mov_b32 s{S_ANN}, s{S_VA}')
        a(f'v_mov_b32 {u(6)}, s{S_VA}')
        if first: first(k)
        a(f'ds_write_b32 v{V_Z}, {u(6)} offset:{4*flag}')
        a.label(f'KG_CE{k}')
    def chk(n, ki, flag, first=None):
        if not VCH: return
        cuid[0] += 1; k = cuid[0]
        a(f's_cmp_lt_i32 s{S_PV}, {E("VMIN", 3) - LK}')
        a(f's_cbranch_scc1 KG_CE{k}')
        a(f's_getreg_b32 s{S_VA}, hwreg(HW_REG_IB_STS, 0, 24)')
        a(f's_lshr_b32 s{S_VB}, s{S_VA}, 18')
        a(f's_and_b32 s{S_VA}, s{S_VA}, 15')
        a(f's_and_b32 s{S_VB}, s{S_VB}, 0x30')
        a(f's_or_b32 s{S_VB}, s{S_VB}, s{S_VA}')
        js = list(range(LK - (1 if ki == n else 0), 0, -1))
        a(f's_cmp_gt_u32 s{S_VB}, {n*(js[0]-1)+ki}')
        a(f's_cbranch_scc1 KG_CE{k}')
        for j in js:
            a(f's_add_i32 s{S_VA}, s{S_PV}, {LK-j}')
            a(f's_waitcnt vmcnt({n*(j-1)+ki})')
            if j > 1:
                a(f's_cmp_gt_u32 s{S_VB}, {n*(j-2)+ki}')
                a(f's_cbranch_scc1 KG_CW{k}')
        a.label(f'KG_CW{k}')
        announce(flag, first, k)
    def ld_tail(tag, n, flag, first=None):
        LK = LKS[tag]
        if VCH:
            chk(n, n, flag, first)
            a(f's_cmp_le_i32 s{S_PV}, 0')
            a(f's_cbranch_scc1 KG_LL{tag}')
            cuid[0] += 1
            a(f's_mov_b32 s{S_VA}, s{S_PV}')
            a(f's_waitcnt vmcnt({n*LK})')
            announce(flag, first, cuid[0])
            stamp(9, 1)
            if FST:
                a(f's_cmp_lg_u32 s{S_PV}, 1')
                a(f's_cbranch_scc1 KG_FS{tag}')
                stamp(7, 1)
                a.label(f'KG_FS{tag}')
            a(f's_cmp_lt_i32 s{S_PV}, {8-LK}')
            a(f's_cbranch_scc1 KG_LL{tag}')
            for j in range(LK):
                cuid[0] += 1
                a(f's_mov_b32 s{S_VA}, {8-LK+1+j}')
                a(f's_waitcnt vmcnt({n*(LK-1-j)})')
                announce(flag, None, cuid[0])
                if j < 2: stamp(10 + j, 1)
            a('s_branch KG_H2B')
            return
        LK = LKS[tag]
        if LD_PRE[tag]:
            a(f's_cmp_lg_i32 s{S_PV}, {LD_PRE[tag]-LK}')
            a(f's_cbranch_scc1 KG_LB{tag}')
            a('s_barrier')
            stamp(1)
            a.label(f'KG_LB{tag}')
        a(f'v_mov_b32 {u(6)}, s{S_PV}')
        a(f's_cmp_le_i32 s{S_PV}, 0')
        a(f's_cbranch_scc1 KG_LL{tag}')
        if first: first(0)
        a(f's_waitcnt vmcnt({n*LK})')
        a(f'ds_write_b32 v{V_Z}, {u(6)} offset:{4*flag}')
        stamp(9, 1)
        if FST:
            a(f's_cmp_lg_u32 s{S_PV}, 1')
            a(f's_cbranch_scc1 KG_FS{tag}')
            stamp(7, 1)
            a.label(f'KG_FS{tag}')
        a(f's_cmp_lt_i32 s{S_PV}, {8-LK}')
        a(f's_cbranch_scc1 KG_LL{tag}')
        for j in range(LK):
            a(f'v_mov_b32 {u(6)}, {8-LK+1+j}')
            a(f's_waitcnt vmcnt({n*(LK-1-j)})')
            a(f'ds_write_b32 v{V_Z}, {u(6)} offset:{4*flag}')
            if j < 2: stamp(10 + j, 1)
        a('s_branch KG_H2B')
    xaddr()
    a(f's_lshr_b32 s{S_T1}, s{S_HG}, 1')
    for k in range(3):
        a(f's_add_u32 s{S_T1}, s{S_T1}, 1')
        a(f's_and_b32 s{S_T1}, s{S_T1}, 3')
        xpair(S_O + k, S_L + k, S_T1)
    a(f's_mov_b32 s{R_A+2}, {2048 * 1024}')
    a(f's_mov_b32 s{S_T2}, 0')
    if IST: a(f'{TM} s[{SB+2*5}:{SB+1+2*5}]')
    a('s_waitcnt lgkmcnt(0)')
    a(f's_mov_b64 s[{R_A}:{R_A+1}], s[{S_X}:{S_X+1}]')
    stamp(8, 1)
    if not LD_PRE['X']:
        if EB == 1:
            a.label(f'KG_GOOX')
            a(f'ds_read_b32 {u(7)}, v{V_Z} offset:{4*F_GO}')
            a('s_waitcnt lgkmcnt(0)')
            a(f'v_readfirstlane_b32 s{S_T0}, {u(7)}')
            a(f's_sub_u32 s{S_LIM}, s{S_LIM}, 1')
            a(f's_cbranch_scc1 KG_GPOX')
            a(f's_cmp_eq_u32 s{S_T0}, 0')
            a(f's_cbranch_scc1 KG_GOOX')
            a.label(f'KG_GPOX')
        else: a('s_barrier')
        stamp(1)
    if XS: a(f's_sleep {XS}')
    def kx_wait(k):
        a(f's_cmp_lg_u32 s{S_T2}, 0')
        a(f's_cbranch_scc1 KG_KXD{k}')
        a.label(f'KG_KXW{k}')
        a(f'ds_read_b32 {u(7)}, v{V_Z} offset:{4*F_KX}')
        a('s_waitcnt lgkmcnt(0)')
        a(f'v_readfirstlane_b32 s{S_T2}, {u(7)}')
        a(f's_cmp_lg_u32 s{S_T2}, 0')
        a(f's_cbranch_scc1 KG_KXD{k}')
        a('s_sleep 1')
        a(f's_sub_u32 s{S_LIM}, s{S_LIM}, 1')
        a(f's_cbranch_scc0 KG_KXW{k}')
        a(f's_mov_b32 s{S_LIM}, 0')
        a.label(f'KG_KXD{k}')
    a.label('KG_LLX')
    a(f's_add_i32 s{S_PV}, s{S_PV}, 1')
    for k in range(3):
        a(f's_mov_b32 m0, s{S_L+k}')
        a(f's_add_u32 s{S_L+k}, s{S_L+k}, 8192')
        a(f'buffer_load_dwordx4 {u(4)}, {ra}, s{S_O+k} offen lds')
        a(f'buffer_load_dwordx4 {u(5)}, {ra}, s{S_O+k} offen offset:1024 lds')
        a(f's_add_u32 s{S_O+k}, s{S_O+k}, 128')
        if ROT: a(f's_bitset0_b32 s{S_O+k}, 10')
        if k < 2: chk(6, 2*k + 2, F_CX, kx_wait)
    ld_tail('X', 6, F_CX, kx_wait)
    a.label('KG_LDW')
    if IST: a(f'{TM} s[{SB+2*5}:{SB+1+2*5}]')
    if LKS['W'] != LKS['X']: a(f's_mov_b32 s{S_PV}, {-LKS["W"]}')
    a(f'v_lshrrev_b32 {u(0)}, 3, v0')
    a(f'v_and_b32 {u(1)}, 7, v0')
    a(f'v_and_b32 {u(2)}, 1, v{V_G}')
    a(f'v_lshlrev_b32 {u(2)}, 2, {u(2)}')
    a(f'v_xor_b32 {u(2)}, {u(2)}, {u(1)}')
    a(f'v_lshlrev_b32 {u(2)}, 4, {u(2)}')
    a(f'v_lshl_add_u32 {u(2)}, {u(0)}, 10, {u(2)}')
    a(f's_lshl_b32 s{S_T0}, s{S_HG}, 7')
    a(f'v_add_u32 {u(2)}, s{S_T0}, {u(2)}')
    for j in range(1, 4):
        a(f'v_add_u32 {u(2+j)}, {7168*j}, {u(2)}')
    if ROT: a(f's_lshl_b32 s{S_O}, s{S_ROT}, 9')
    else: a(f's_mov_b32 s{S_O}, 0')
    a(f's_mov_b32 s{S_L}, {L_WQ}')
    a(f's_mov_b32 s{R_A+2}, {512 * 1024}')
    a('s_waitcnt lgkmcnt(0)')
    a(f's_mov_b64 s[{R_A}:{R_A+1}], s[{S_WQ}:{S_WQ+1}]')
    stamp(8, 1)
    if not LD_PRE['W']:
        if EB == 1:
            a.label(f'KG_GOOW')
            a(f'ds_read_b32 {u(7)}, v{V_Z} offset:{4*F_GO}')
            a('s_waitcnt lgkmcnt(0)')
            a(f'v_readfirstlane_b32 s{S_T0}, {u(7)}')
            a(f's_sub_u32 s{S_LIM}, s{S_LIM}, 1')
            a(f's_cbranch_scc1 KG_GPOW')
            a(f's_cmp_eq_u32 s{S_T0}, 0')
            a(f's_cbranch_scc1 KG_GOOW')
            a.label(f'KG_GPOW')
        else: a('s_barrier')
        stamp(1)
    if E('WS', 0): a(f's_sleep {E("WS", 0)}')
    a.label('KG_LLW')
    a(f's_add_i32 s{S_PV}, s{S_PV}, 1')
    for k in range(2):
        a(f's_mov_b32 m0, s{S_L}')
        a(f's_add_u32 s{S_L}, s{S_L}, 4096')
        for j in range(4):
            a(f'buffer_load_dwordx4 {u(2+j)}, {ra}, s{S_O} offen offset:{1024*j} lds')
        a(f's_add_u32 s{S_O}, s{S_O}, 32768')
        if ROT and k == 1: a(f's_bitset0_b32 s{S_O}, 19')
        if k == 0:
            chk(8, 4, F_CW)
            a(f's_waitcnt vmcnt({8*LKS["W"] + E("WH", 0)})')
    ld_tail('W', 8, F_CW)

    uid = [0]
    def lds_wait(flag, val, vtmp, sleep=1, addr=None, sdst=None):
        uid[0] += 1; u = uid[0]
        addr = V_Z if addr is None else addr
        sdst = S_T0 if sdst is None else sdst
        a.label(f'KG_LW{u}')
        a(f'ds_read_b32 v{vtmp}, v{addr} offset:{4*flag}')
        a('s_waitcnt lgkmcnt(0)')
        a(f'v_readfirstlane_b32 s{sdst}, v{vtmp}')
        a(f's_cmp_ge_u32 s{sdst}, {val}')
        a(f's_cbranch_scc1 KG_LD{u}')
        a(f's_sleep {sleep}')
        a(f's_sub_u32 s{S_LIM}, s{S_LIM}, 1')
        a(f's_cbranch_scc0 KG_LW{u}')
        a(f's_mov_b32 s{S_LIM}, 0')
        a.label(f'KG_LD{u}')
    def lds_add(flag, vtmp):
        a(f'v_mov_b32 v{vtmp}, 1')
        a('s_mov_b64 exec, 1')
        a(f'ds_add_u32 v{V_Z}, v{vtmp} offset:{4*flag}')
        a('s_mov_b64 exec, -1')
    def get_tag(vtmp):
        a(f'ds_read_b32 v{vtmp}, v{V_Z} offset:{4*F_TAG}')
        a('s_waitcnt lgkmcnt(0)')
        a(f'v_readfirstlane_b32 s{S_TAG}, v{vtmp}')

    V_OQ, V_OV = 2, 3
    V_M = 4
    V_H = 6
    V_Q = 8
    V_S = 16
    V_P = 48
    V_O = 64
    V_K = 96
    V_V = 128
    V_T = 192
    S_N = S_KH
    V_PGA, V_PGV, V_LK = V_T + 16, V_T + 17, V_T + 18
    a.label('KG_ATT')
    a('s_setprio 1')
    a(f's_and_b32 s{S_CT}, s{S_W}, 1')
    a(f's_bfe_u32 s{S_A}, s{S_W}, 0x10001')
    a(f's_mov_b32 s{S_N}, 0')
    a('v_and_b32 v1, 31, v0')
    a(f'v_lshrrev_b32 v{V_H}, 5, v0')
    V_XA = V_T
    V_WA = V_T + 4
    t = lambda i: f'v{V_T+8+i}'
    a(f'v_bfe_u32 {t(0)}, v0, 1, 3')
    a(f's_lshl_b32 s{S_T0}, s{S_A}, 12')
    a(f'v_lshlrev_b32 {t(1)}, 7, v1')
    a(f'v_add_u32 {t(1)}, s{S_T0}, {t(1)}')
    for ks in range(4):
        a(f'v_add_u32 {t(2)}, {2*ks}, v{V_H}')
        a(f'v_xor_b32 {t(2)}, {t(2)}, {t(0)}')
        a(f'v_lshl_add_u32 v{V_XA+ks}, {t(2)}, 4, {t(1)}')
    a(f'v_bfe_u32 {t(0)}, v0, 2, 2')
    a(f'v_and_b32 {t(1)}, 3, v0')
    a(f'v_bfe_u32 {t(2)}, v0, 4, 1')
    a(f'v_lshl_add_u32 {t(3)}, v{V_H}, 3, {t(0)}')
    a(f'v_lshlrev_b32 {t(3)}, 7, {t(3)}')
    a(f'v_lshrrev_b32 {t(4)}, 1, {t(1)}')
    a(f'v_and_b32 {t(5)}, 1, {t(1)}')
    a(f'v_lshrrev_b32 {t(6)}, 1, {t(0)}')
    a(f'v_lshlrev_b32 {t(6)}, 2, {t(6)}')
    a(f'v_lshl_add_u32 {t(7)}, {t(2)}, 1, {t(4)}')
    a(f's_lshl_b32 s{S_T0}, s{S_CT}, 2')
    a(f'v_add_u32 {t(7)}, s{S_T0}, {t(7)}')
    a(f'v_xor_b32 {t(7)}, {t(7)}, {t(6)}')
    a(f'v_lshl_add_u32 {t(7)}, {t(7)}, 4, {t(3)}')
    a(f'v_lshl_add_u32 v{V_WA}, {t(5)}, 3, {t(7)}')
    a(f'v_add_u32 v{V_WA}, {L_WQ}, v{V_WA}')
    a(f'v_lshlrev_b32 v{V_OQ}, 4, v0')
    a(f'v_add_u32 v{V_LK}, {L_PRE}, v{V_OQ}')
    a(f's_lshl_b32 s{S_T0}, s{S_W}, 2')
    a(f'v_add_u32 v{V_PGA}, s{S_T0}, v{V_Z}')
    a(f'v_mov_b32 v{V_PGV}, 1')
    a(f's_mov_b32 s{S_VM}, 0xffff')
    a(f's_mov_b32 s{S_VM+1}, 0xffff')
    a(f'v_and_b32 {t(0)}, 27, v1')
    a(f'v_cmp_eq_u32 vcc, 16, {t(0)}')
    a(f'v_mov_b32 {t(1)}, 0x3f803f80')
    a(f'v_mov_b32 v{V_M}, 0')
    a(f'v_mov_b32 v{V_M+1}, 0')
    a(f'v_cndmask_b32 {t(1)}, 0, {t(1)}, vcc')
    for i in range(64):
        a(f'v_mov_b32 v{V_V+i}, {t(1)}')
    QA = V_S
    if QPIPE == 3:
        a(f'v_mov_b32 v{V_T+5}, v{V_WA}')
    if QPIPE >= 2:
        for i in range(16):
            a(f'v_mov_b32 v{QA+i}, 0')
    QB = (V_O, V_S + 16)
    a(f's_mov_b32 s{S_SEEN}, 0')
    a('s_waitcnt lgkmcnt(0)')
    srd(a, R_WS, S_WS, WS_SIZE)
    stamp(11, 1)
    if not EB: a('s_barrier')
    stamp(1)
    def q_wait(c):
        a(f's_cmp_gt_u32 s{S_SEEN}, {c}')
        a(f's_cbranch_scc1 KG_QG{c}')
        a.label(f'KG_QP{c}')
        a(f'ds_read_b64 {vr(V_T+8,2)}, v{V_Z} offset:{4*F_CX}')
        a('s_waitcnt lgkmcnt(0)')
        a(f'v_min_u32 {t(0)}, {t(0)}, {t(1)}')
        a('s_nop 0')
        a(f'v_readfirstlane_b32 s{S_SEEN}, {t(0)}')
        a(f's_cmp_gt_u32 s{S_SEEN}, {c}')
        a(f's_cbranch_scc1 KG_QG{c}')
        if c < 7 or Q7_SLEEP:
            a('s_sleep 1')
        a(f's_sub_u32 s{S_LIM}, s{S_LIM}, 1')
        a(f's_cbranch_scc0 KG_QP{c}')
        a(f's_mov_b32 s{S_LIM}, 0')
        a.label(f'KG_QG{c}')
        if c in (0, 4, 6, 7): stamp({0: 7, 4: 8, 6: 9, 7: 10}[c], 1)
    def q_reads(c):
        b = QB[c & 1]
        for ks in range(4):
            a(f'ds_read_b128 {vr(b+4*ks,4)}, v{V_XA+ks} offset:{c*8192}')
            a(f'ds_read_b64_tr_b16 {vr(b+16+4*ks,2)}, v{V_WA} offset:{c*8192+ks*2048}')
            a(f'ds_read_b64_tr_b16 {vr(b+16+4*ks+2,2)}, v{V_WA} offset:{c*8192+ks*2048+512}')
    def progress():
        a(f'ds_write_b32 v{V_PGA}, v{V_PGV} offset:{4*(F_PGW-4)}')
    spins = []
    def pre_check(n):
        uid[0] += 1; u = uid[0]
        a(f's_cmp_lt_u32 s{S_N}, {n}')
        a(f's_cbranch_scc1 KG_SP{u}')
        a.label(f'KG_SR{u}')
        spins.append(('pre', u, n))
    def pos_check():
        uid[0] += 1; u = uid[0]
        a(f's_cmp_lt_u32 s{S_KOFF}, s{S_KB}')
        a(f's_cbranch_scc1 KG_SP{u}')
        a.label(f'KG_SR{u}')
        spins.append(('q', u, 0))
    def emit_spins():
        for kind, u, n in spins:
            a.label(f'KG_SP{u}')
            if kind == 'pre':
                a(f'ds_read_b32 v{V_T+8}, v{V_Z} offset:{4*F_PRE}')
                a('s_waitcnt lgkmcnt(0)')
                a(f'v_readfirstlane_b32 s{S_N}, v{V_T+8}')
                a(f's_cmp_ge_u32 s{S_N}, {n}')
                a(f's_cbranch_scc1 KG_SR{u}')
            else:
                a(f'ds_read_b32 v{V_T+8}, v{V_Z} offset:{4*F_POS}')
                a('s_waitcnt lgkmcnt(0)')
                a(f'v_readfirstlane_b32 s{S_KOFF}, v{V_T+8}')
                a(f's_cmp_ge_u32 s{S_KOFF}, s{S_KB}')
                a(f's_cbranch_scc1 KG_SR{u}')
                a('s_sleep 1')
            a(f's_sub_u32 s{S_LIM}, s{S_LIM}, 1')
            a(f's_cbranch_scc0 KG_SP{u}')
            a(f's_mov_b32 s{S_LIM}, 0')
            a(f's_branch KG_SR{u}')
        spins.clear()

    def load_k(slot, off):
        a(f'buffer_load_dwordx4 {vr(V_K+4*slot,4)}, v{V_OQ}, {ws}, s{S_KOFF} offen offset:{off}{KVSC}')
    def kv_group(c, adv=True):
        load_k(c & 7, 0)
        load_k((c + 1) & 7, 2048)
        a(f's_mov_b64 exec, s[{S_VM}:{S_VM+1}]')
        for j in range(2):
            sl = (c + j) & 7
            a(f'buffer_load_dwordx4 {vr(V_V+8*sl,4)}, v{V_OQ}, {ws}, s{S_KOFF} offen offset:{2048*j+1024}{KVSC}')
            a(f'buffer_load_dwordx4 {vr(V_V+8*sl+4,4)}, v{V_OQ}, {ws}, s{S_KOFF} offen offset:{2048*j+1280}{KVSC}')
        a('s_mov_b64 exec, -1')
        if adv:
            a(f's_add_u32 s{S_KOFF}, s{S_KOFF}, 4096')
    def pre_reads(c, n=1):
        for j in range(c, c + n):
            a(f'ds_read_b128 {vr(V_K+4*j,4)}, v{V_LK} offset:{2048*j}')
        a(f's_mov_b64 exec, s[{S_VM}:{S_VM+1}]')
        for j in range(c, c + n):
            a(f'ds_read_b128 {vr(V_V+8*j,4)}, v{V_LK} offset:{2048*j+1024}')
            a(f'ds_read_b128 {vr(V_V+8*j+4,4)}, v{V_LK} offset:{2048*j+1280}')
        a('s_mov_b64 exec, -1')
    def mfma_s(t_, slot):
        a(f'v_mfma_f32_32x32x16_bf16 {vr(V_S+16*t_,16)}, {vr(V_K+4*slot,4)}, {vr(V_Q+4*t_,4)}, 0')
    def mfma_pv(t_, slot, pp, zero=False):
        cc = '0' if zero else vr(V_O+16*t_, 16)
        a(f'v_mfma_f32_32x32x16_bf16 {vr(V_O+16*t_,16)}, {vr(V_V+8*slot+4*pp,4)}, {vr(V_P+8*t_+4*pp,4)}, {cc}')
    def cv(t_, i):
        a(f'v_cvt_pk_bf16_f32 v{V_P+8*t_+i}, v{V_S+16*t_+2*i}, v{V_S+16*t_+2*i+1}')

    if QPIPE == 3:
        S_QC = S_CNT
        V_WB = V_T + 5
        WA = (V_WA, V_WB)
        def fread():
            a(f'ds_read_b128 {vr(V_T+8,4)}, v{V_Z} offset:{4*F_CX}')
        def qg(cn, ks):
            n_ = QB[cn]
            a(f'ds_read_b128 {vr(n_+4*ks,4)}, v{V_XA+ks} offset:{cn*8192}')
            a(f'ds_read_b64_tr_b16 {vr(n_+16+4*ks,2)}, v{WA[cn]} offset:{cn*8192+ks*2048}')
            a(f'ds_read_b64_tr_b16 {vr(n_+16+4*ks+2,2)}, v{WA[cn]} offset:{cn*8192+ks*2048+512}')
        def qf(b, ks):
            a(f'v_mfma_f32_32x32x16_bf16 {vr(QA,16)}, {vr(b+16+4*ks,4)}, {vr(b+4*ks,4)}, {vr(QA,16)}')
        UPD = ((V_XA + 2, V_XA + 3, V_WB), (V_XA, V_XA + 1, V_WA))
        def upd(r):
            a(f'v_add_u32 v{r}, 0x4000, v{r}')
        def qst():
            if E('QST', 0) == 2:
                a(f's_add_u32 m0, s{S_QC}, 6')
                a('s_nop 0')
                a(f'v_writelane_b32 v{V_T+23}, s100, m0')
                a('s_memtime s[100:101]')
        a(f's_mov_b32 s{S_QC}, 0')
        a('s_branch KG_QE0')
        for cn in (1, 0):
            a.label(f'KG_QS{cn}')
            if cn == 0:
                a(f's_cmp_eq_u32 s{S_QC}, 8')
                a('s_cbranch_scc1 KG_QX')
            for ks in range(1, 4):
                a(f's_waitcnt lgkmcnt({9 - 3*ks})')
                qf(QB[1 - cn], ks)
            if cn == 0:
                for r in UPD[0]: upd(r)
            a.label(f'KG_QE{cn}')
            fread()
            a('s_waitcnt lgkmcnt(0)')
            a(f'v_min_u32 {t(0)}, {t(0)}, {t(1)}')
            a('s_nop 0')
            a(f'v_readfirstlane_b32 s{S_SEEN}, {t(0)}')
            a(f's_cmp_gt_u32 s{S_SEEN}, s{S_QC}')
            a(f's_cbranch_scc1 KG_QG{cn}')
            if QSL: a(f's_sleep {QSL}')
            a(f's_sub_u32 s{S_LIM}, s{S_LIM}, 1')
            a(f's_cbranch_scc0 KG_QE{cn}')
            a(f's_mov_b32 s{S_LIM}, 0')
            a.label(f'KG_QG{cn}')
            qst()
            for ks in range(4): qg(cn, ks)
            a(f's_add_u32 s{S_QC}, s{S_QC}, 1')
            if cn == 1:
                for r in UPD[1]: upd(r)
                a('s_branch KG_Q0')
        for cn in (1, 0):
            b = QB[1 - cn]
            a.label(f'KG_Q{cn}')
            a('s_waitcnt lgkmcnt(9)')
            qf(b, 0)
            a(f's_cmp_gt_u32 s{S_SEEN}, s{S_QC}')
            a(f's_cbranch_scc0 KG_QS{cn}')
            qst()
            fread()
            qg(cn, 0)
            a('s_waitcnt lgkmcnt(10)')
            qf(b, 1)
            qg(cn, 1)
            upd(UPD[cn][0])
            a(f's_add_u32 s{S_QC}, s{S_QC}, 1')
            a('s_waitcnt lgkmcnt(10)')
            qf(b, 2)
            qg(cn, 2)
            upd(UPD[cn][1])
            upd(UPD[cn][2])
            a('s_waitcnt lgkmcnt(9)')
            qf(b, 3)
            a(f'v_min_u32 {t(0)}, {t(0)}, {t(1)}')
            qg(cn, 3)
            a(f'v_readfirstlane_b32 s{S_SEEN}, {t(0)}')
        a('s_branch KG_Q1')
        a.label('KG_QX')
        a(f'v_readfirstlane_b32 s{S_N}, {t(2)}')
        pre_check(1)
        if E('QST', 0) == 2:
            a(f'v_writelane_b32 v{V_T+23}, s100, 14')
            a('s_memtime s[100:101]')
        pre_reads(0)
        for ks in range(1, 4):
            a(f's_waitcnt lgkmcnt({12 - 3*ks})')
            qf(QB[1], ks)
        if E('QST', 0) == 2:
            a(f'v_writelane_b32 v{V_T+23}, s100, 15')
        progress()
        stamp(2)
    elif QPIPE == 2:
        S_QC = S_CNT
        def qw(k):
            a(f's_cmp_gt_u32 s{S_SEEN}, s{S_QC}')
            a(f's_cbranch_scc0 KG_QS{k}')
            a.label(f'KG_QR{k}')
        def qm(b, wait=True):
            for ks in range(4):
                if wait: a(f's_waitcnt lgkmcnt({min(15, 21 - 3*ks)})')
                a(f'v_mfma_f32_32x32x16_bf16 {vr(QA,16)}, {vr(b+16+4*ks,4)}, {vr(b+4*ks,4)}, {vr(QA,16)}')
        a(f's_mov_b32 s{S_QC}, 0')
        a('s_branch KG_QS0')
        for k in range(3):
            a.label(f'KG_QS{k}')
            a(f'ds_read_b64 {vr(V_T+8,2)}, v{V_Z} offset:{4*F_CX}')
            a('s_waitcnt lgkmcnt(0)')
            a(f'v_min_u32 {t(0)}, {t(0)}, {t(1)}')
            a('s_nop 0')
            a(f'v_readfirstlane_b32 s{S_SEEN}, {t(0)}')
            a(f's_cmp_gt_u32 s{S_SEEN}, s{S_QC}')
            a(f's_cbranch_scc1 KG_QR{k}')
            a('s_sleep 1')
            a(f's_sub_u32 s{S_LIM}, s{S_LIM}, 1')
            a(f's_cbranch_scc0 KG_QS{k}')
            a(f's_mov_b32 s{S_LIM}, 0')
            a(f's_branch KG_QR{k}')
        def fread():
            a(f'ds_read_b128 {vr(V_T+8,4)}, v{V_Z} offset:{4*F_CX}')
        def qg(n_, cn, ks):
            a(f'ds_read_b128 {vr(n_+4*ks,4)}, v{V_XA+ks} offset:{cn*8192}')
            a(f'ds_read_b64_tr_b16 {vr(n_+16+4*ks,2)}, v{V_WA} offset:{cn*8192+ks*2048}')
            a(f'ds_read_b64_tr_b16 {vr(n_+16+4*ks+2,2)}, v{V_WA} offset:{cn*8192+ks*2048+512}')
        def qf(b, ks):
            a(f'v_mfma_f32_32x32x16_bf16 {vr(QA,16)}, {vr(b+16+4*ks,4)}, {vr(b+4*ks,4)}, {vr(QA,16)}')
        a.label('KG_QR0')
        fread()
        q_reads(0)
        def qstep(cn):
            b = QB[1 - cn]; n_ = QB[cn]
            a('s_waitcnt lgkmcnt(9)')
            qf(b, 0)
            a(f'v_min_u32 {t(0)}, {t(0)}, {t(1)}')
            a(f's_add_u32 s{S_QC}, s{S_QC}, 1')
            a(f'v_readfirstlane_b32 s{S_SEEN}, {t(0)}')
            if cn == 0:
                for r in [V_XA + ks for ks in range(4)] + [V_WA]:
                    a(f'v_add_u32 v{r}, 0x4000, v{r}')
            qw(1 + cn)
            if E('QST', 0) == 2:
                a(f's_add_u32 m0, s{S_QC}, 6')
                a('s_nop 0')
                a(f'v_writelane_b32 v{V_T+23}, s100, m0')
                a('s_memtime s[100:101]')
            fread()
            qg(n_, cn, 0)
            for ks in range(1, 4):
                a('s_waitcnt lgkmcnt(10)')
                qf(b, ks)
                qg(n_, cn, ks)
        a.label('KG_QLP')
        qstep(1)
        a(f's_cmp_eq_u32 s{S_QC}, 7')
        a('s_cbranch_scc1 KG_QX')
        qstep(0)
        if QP:
            a(f'v_mov_b32 {t(4)}, s{S_QC}')
            a(f'ds_write_b32 v{V_PGA}, {t(4)}')
        a('s_branch KG_QLP')
        a.label('KG_QX')
        if E('QST', 0) == 1:
            stamp(7); a('s_waitcnt lgkmcnt(0)')
        a('s_waitcnt lgkmcnt(9)')
        qf(QB[1], 0)
        a(f'v_readfirstlane_b32 s{S_N}, {t(2)}')
        pre_check(1)
        if E('QST', 0) == 2:
            a(f'v_writelane_b32 v{V_T+23}, s100, 14')
            a('s_memtime s[100:101]')
        pre_reads(0)
        for ks in range(1, 4):
            a(f's_waitcnt lgkmcnt({12 - 3*ks})')
            qf(QB[1], ks)
        if E('QST', 0) == 2:
            a(f'v_writelane_b32 v{V_T+23}, s100, 15')
        progress()
        stamp(2)
    elif QPIPE:
        q_wait(0); q_reads(0)
        for c in range(8):
            if c < 7:
                q_wait(c + 1); q_reads(c + 1)
            else:
                a('s_waitcnt lgkmcnt(0)')
                progress()
                stamp(2)
                pre_check(1)
                pre_reads(0)
            b = QB[c & 1]
            for ks in range(4):
                if c < 7: a(f's_waitcnt lgkmcnt({min(15, 21 - 3*ks)})')
                cc = vr(QA, 16) if (c or ks) else '0'
                a(f'v_mfma_f32_32x32x16_bf16 {vr(QA,16)}, {vr(b+16+4*ks,4)}, {vr(b+4*ks,4)}, {cc}')
    else:
        for c in range(8):
            q_wait(c); q_reads(c)
            b = QB[c & 1]
            for ks in range(4):
                a(f's_waitcnt lgkmcnt({9 - 3*ks})')
                cc = vr(QA, 16) if (c or ks) else '0'
                a(f'v_mfma_f32_32x32x16_bf16 {vr(QA,16)}, {vr(b+16+4*ks,4)}, {vr(b+4*ks,4)}, {cc}')
        progress()
        stamp(2)

    def body(sub, peel, lds):
        def ex(t_, i):
            r = V_S + 16*t_ + i
            if sub:
                a(f'v_sub_f32 v{r}, v{r}, v{V_M+t_}')
            a(f'v_exp_f32 v{r}, v{r}')
        for b in range(8):
            for t_ in range(2):
                if peel and t_ == 0 and LST:
                    a(f'{TM} s[100:101]')
                ex(t_, 0); ex(t_, 1)
                if t_ == 1:
                    mfma_pv(0, b, 1)
                elif not (peel and b == 0):
                    mfma_pv(1, (b - 1) & 7, 1)
                if peel and t_ == 0 and b < 7:
                    pre_check(b + 2)
                    pre_reads(b + 1)
                ex(t_, 2); ex(t_, 3); ex(t_, 4); ex(t_, 5)
                if t_ == 1:
                    if peel or (lds and b in (1, 7)):
                        a('s_waitcnt lgkmcnt(0)')
                    elif not lds and b & 1:
                        a('s_waitcnt vmcnt(12)')
                    if peel and LST and E('QST', 0) != 2:
                        a(f'v_writelane_b32 v{V_T+23}, s100, {8+b}')
                    mfma_s(0, (b + 1) & 7)
                    if lds and b == (6 if peel else 1):
                        progress()
                    if LST and lds and not peel and b == 1:
                        a(f'v_writelane_b32 v{V_T+23}, s100, m0')
                    if peel and b == 6:
                        pos_check()
                        pre_reads(0, 2)
                else:
                    mfma_s(1, b)
                    if peel and b == 6:
                        a(f'v_add_u32 v{V_PGV}, 1, v{V_PGV}')
                    if peel and b == 7:
                        pre_reads(2, 2)
                    if lds and not peel and b == 0:
                        pre_reads(4, 4)
                        a(f'v_add_u32 v{V_PGV}, 1, v{V_PGV}')
                    if lds and not peel and b == 4:
                        pos_check()
                        pre_reads(0, 4)
                    if not lds and b % 2 == 0:
                        kv_group(b + 6)
                ex(t_, 6); ex(t_, 7)
                cv(t_, 0); cv(t_, 1); cv(t_, 2); cv(t_, 3)
                if peel and b == 6 and t_ == 0:
                    a(f'v_add_u32 v{V_LK}, {L_WQ - L_PRE}, v{V_LK}')
                if lds and not peel and b == 3 and t_ == 0:
                    a(f'v_add_u32 v{V_LK}, 0x4000, v{V_LK}')
                    a(f's_add_u32 s{S_KB}, s{S_KB}, 1')
                    a(f'v_and_b32 v{V_LK}, 0x1ffff, v{V_LK}')
                ex(t_, 8); ex(t_, 9)
                mfma_pv(t_, b, 0, zero=(peel and b == 0))
                for i in range(10, 16):
                    ex(t_, i)
                cv(t_, 4); cv(t_, 5); cv(t_, 6); cv(t_, 7)

    def attn_pass(tag, sub, first):
        if first:
            if not QPIPE:
                pre_check(1)
                pre_reads(0)
            stamp(3)
            a('s_nop 4')
            for i in range(8):
                a(f'v_cvt_pk_bf16_f32 v{V_Q+i}, v{QA+2*i}, v{QA+2*i+1}')
            a('s_waitcnt lgkmcnt(0)')
            mfma_s(0, 0)
            a(f's_mov_b32 s{S_CNT}, 6')
            a(f's_mov_b32 s{S_KOFF}, 0')
            a(f's_mov_b32 s{S_KB}, 1')
            stamp(4)
            a('s_nop 4')
            body(False, True, True)
        else:
            a(f's_mov_b32 s{S_KOFF}, {WS_KV}')
            for c in range(0, 6, 2):
                kv_group(c)
            for i in range(32):
                a(f'v_mov_b32 v{V_O+i}, 0')
            for i in range(4):
                a(f'v_mov_b32 v{V_P+12+i}, 0')
            a('s_waitcnt vmcnt(12)')
            mfma_s(0, 0)
            a(f's_mov_b32 s{S_CNT}, 8')
            a('s_nop 10')
        a.label(f'KG_LOOP{tag}')
        if LST and first:
            a(f'{TM} s[100:101]')
            a(f's_mov_b32 m0, s{S_CNT}')
        body(sub, False, first)
        a(f's_sub_u32 s{S_CNT}, s{S_CNT}, 1')
        a(f's_cmp_lg_u32 s{S_CNT}, 0')
        a(f's_cbranch_scc1 KG_LOOP{tag}')
        if first:
            last_body()
        else:
            mfma_pv(1, 7, 1)

    S_OA, S_FA, S_LOC, S_BAD = S_P, S_SEEN, S_MH, S_NH
    V_TG, V_ZR, V_PK, V_RC = V_T, V_T + 2, V_T + 4, V_T + 9
    outl = []
    def st2(ins):
        uid[0] += 1; k = uid[0]
        a(f's_cmp_eq_u32 s{S_LOC}, 1')
        a(f's_cbranch_scc0 KG_SG{k}')
        a(ins + LOCSC)
        a.label(f'KG_SH{k}')
        outl.append((k, ins))
    def rng(t_):
        a(f'v_cmp_le_f32 s[{S_C0}:{S_C0+1}], s{S_T0}, v{V_O+16*t_+8}')
        a(f'v_cmp_ge_f32 s[{S_C1}:{S_C1+1}], s{S_T1}, v{V_O+16*t_+8}')
        a(f'v_rcp_f32 v{V_RC}, v{V_O+16*t_+8}')
        a(f's_and_b64 s[{S_C0}:{S_C0+1}], s[{S_C0}:{S_C0+1}], s[{S_C1}:{S_C1+1}]')
        a(f's_cmp_eq_u64 s[{S_C0}:{S_C0+1}], -1')
    def o_store(t_):
        for i in range(8):
            a(f'v_mul_f32 v{V_O+16*t_+i}, v{V_RC}, v{V_O+16*t_+i}')
        for i in range(4):
            a(f'v_cvt_pk_bf16_f32 v{V_PK+i}, v{V_O+16*t_+2*i}, v{V_O+16*t_+2*i+1}')
        a(f'v_min_u32 v{V_PK+3}, -2, v{V_PK+3}')
        st2(f'buffer_store_dwordx4 {vr(V_PK,4)}, v{V_OQ}, {ws}, s{S_OA} offen offset:{1024*t_}')
    def o_flag(t_):
        a('s_mov_b64 exec, 1')
        st2(f'buffer_store_dword v{V_TG}, v{V_ZR}, {ws}, s{S_FA} offen offset:{4*t_}')
        a('s_mov_b64 exec, -1')
    def last_body():
        steps = [(0, c) for c in range(8)] + [(1, c) for c in range(8)]
        def pv(tile, buf, slot, pp):
            a(f'v_mfma_f32_32x32x16_bf16 {vr(V_O+16*tile,16)}, {vr(V_V+8*slot+4*pp,4)}, {vr(V_P+8*buf+4*pp,4)}, {vr(V_O+16*tile,16)}')
        def ex(p_, i):
            a(f'v_exp_f32 v{V_S+16*p_+i}, v{V_S+16*p_+i}')
        for n, (tile, c) in enumerate(steps):
            p_ = n & 1
            pt, pc = steps[n - 1] if n else (1, 7)
            ex(p_, 0); ex(p_, 1)
            pv(pt, 1 - p_, pc, 1)
            ex(p_, 2); ex(p_, 3); ex(p_, 4); ex(p_, 5)
            if n == 2:
                a('s_waitcnt lgkmcnt(0)')
            if n < 15:
                nt, nc = steps[n + 1]
                a(f'v_mfma_f32_32x32x16_bf16 {vr(V_S+16*(1-p_),16)}, {vr(V_K+4*nc,4)}, {vr(V_Q+4*nt,4)}, 0')
            if n == 0:
                pre_reads(4, 4)
                a(f'ds_read_b32 v{V_ZR}, v{V_Z} offset:{4*F_LOC}')
                a(f'v_add_u32 v{V_PGV}, 1, v{V_PGV}')
            if n == 2:
                progress()
                a(f'v_readfirstlane_b32 s{S_LOC}, v{V_ZR}')
                a(f'v_add_u32 v{V_PGV}, 1, v{V_PGV}')
            if n == 9:
                rng(0)
                a(f's_cselect_b32 s{S_BAD}, 0, 1')
                a('s_cbranch_scc0 KG_L9')
                o_store(0)
                a.label('KG_L9')
            if n == OF_STEP:
                a(f's_cmp_lg_u32 s{S_BAD}, 0')
                a('s_cbranch_scc1 KG_L12')
                a(f'ds_write_b32 v{V_Z}, v{V_PGV} offset:{4*F_ADONE}')
                a.label('KG_L12')
            ex(p_, 6); ex(p_, 7)
            cv(p_, 0); cv(p_, 1); cv(p_, 2); cv(p_, 3)
            ex(p_, 8); ex(p_, 9)
            pv(tile, p_, c, 0)
            for i in range(10, 16):
                ex(p_, i)
            cv(p_, 4); cv(p_, 5); cv(p_, 6); cv(p_, 7)
        a('s_nop 1')
        pv(1, 1, 7, 1)

    a(f's_lshl_b32 s{S_T2}, s{S_QG}, 1')
    a(f's_add_u32 s{S_T2}, s{S_T2}, s{S_A}')
    a(f's_lshl_b32 s{S_T3}, s{S_HG}, 1')
    a(f's_add_u32 s{S_T3}, s{S_T3}, s{S_CT}')
    a(f's_lshl_b32 s{S_T2}, s{S_T2}, 4')
    a(f's_add_u32 s{S_T2}, s{S_T2}, s{S_T3}')
    a(f's_lshl_b32 s{S_OA}, s{S_T2}, 11')
    a(f's_add_u32 s{S_OA}, s{S_OA}, {WS_O}')
    a(f's_mov_b32 s{S_T0}, {f32_bits(2.0**-30)}')
    a(f's_mov_b32 s{S_T1}, {f32_bits(2.0**30)}')
    attn_pass('A', False, True)
    stamp(5)
    a('s_nop 12')
    rng(1)
    a('s_cbranch_scc0 KG_SLOW')
    a(f's_cmp_lg_u32 s{S_BAD}, 0')
    a('s_cbranch_scc1 KG_SLOW')
    a.label('KG_OUT')
    o_store(1)
    progress()
    if ST in (5, 6, 7): a('s_waitcnt vmcnt(0)')
    stamp(6)
    dump(1)
    a('s_endpgm')
    emit_spins()

    a.label('KG_SLOW')
    lds_wait(F_N, 127, V_T + 8, sdst=S_T2)
    a('s_waitcnt vmcnt(0)')
    a(f'v_mov_b32 v{V_M}, 0xff800000')
    a(f'v_mov_b32 v{V_M+1}, 0xff800000')
    a(f's_mov_b32 s{S_KOFF}, {WS_KV}')
    a(f's_mov_b32 s{S_CNT}, 64')
    a.label('KG_MAXLOOP')
    load_k(0, 0)
    a(f's_add_u32 s{S_KOFF}, s{S_KOFF}, 2048')
    a('s_waitcnt vmcnt(0)')
    mfma_s(0, 0)
    mfma_s(1, 0)
    a('s_nop 12')
    for t_ in range(2):
        for i in range(8):
            a(f'v_max3_f32 v{V_M+t_}, v{V_S+16*t_+2*i}, v{V_S+16*t_+2*i+1}, v{V_M+t_}')
    a(f's_sub_u32 s{S_CNT}, s{S_CNT}, 1')
    a(f's_cmp_lg_u32 s{S_CNT}, 0')
    a('s_cbranch_scc1 KG_MAXLOOP')
    for t_ in range(2):
        a(f'v_mov_b32 v{V_T+4+t_}, v{V_M+t_}')
    a('s_nop 1')
    for t_ in range(2):
        a(f'v_permlane32_swap_b32 v{V_M+t_}, v{V_T+4+t_}')
    a('s_nop 1')
    for t_ in range(2):
        a(f'v_max_f32 v{V_M+t_}, v{V_M+t_}, v{V_T+4+t_}')
    attn_pass('B', True, False)
    a('s_nop 12')
    a(f'v_rcp_f32 v{V_RC}, v{V_O+8}')
    a('s_nop 0')
    o_store(0)
    a(f'ds_write_b32 v{V_Z}, v{V_PGV} offset:{4*F_ADONE}')
    a(f'v_rcp_f32 v{V_RC}, v{V_O+24}')
    a('s_nop 0')
    a('s_branch KG_OUT')
    for k, ins in outl:
        a.label(f'KG_SG{k}')
        a(ins + SC)
        a(f's_branch KG_SH{k}')

    def hsetup():
        a(f's_lshl_b32 s{S_F}, s{S_HG}, 5')
        a(f's_add_u32 s{S_F}, s{S_F}, s{S_QG}')
        srd(a, R_WS, S_WS, WS_SIZE)

    def pg_wait(val, sleep=2, vb=V_U+4, fl=F_PGW):
        uid[0] += 1; k = uid[0]
        a.label(f'KG_PW{k}')
        a(f'ds_read_b128 {vr(vb,4)}, v{V_Z} offset:{4*fl}')
        a('s_waitcnt lgkmcnt(0)')
        a(f'v_min3_u32 v{vb}, v{vb}, v{vb+1}, v{vb+2}')
        a(f'v_min_u32 v{vb}, v{vb}, v{vb+3}')
        a('s_nop 0')
        a(f'v_readfirstlane_b32 s{S_T0}, v{vb}')
        a(f's_cmp_ge_u32 s{S_T0}, {val}')
        a(f's_cbranch_scc1 KG_PD{k}')
        a(f's_sleep {sleep}')
        a(f's_sub_u32 s{S_LIM}, s{S_LIM}, 1')
        a(f's_cbranch_scc0 KG_PW{k}')
        a(f's_mov_b32 s{S_LIM}, 0')
        a.label(f'KG_PD{k}')
    def kv_dma(s_cls, s_lds):
        for q in range(4):
            a(f's_mov_b32 m0, s{s_lds}')
            a(f's_add_u32 s{s_lds}, s{s_lds}, 4096')
            for j in range(4):
                a(f'buffer_load_dwordx4 v{V_L16}, {ws}, s{s_cls} offen offset:{1024*j}{KVSC} lds')
            a(f's_add_u32 s{s_cls}, s{s_cls}, 4096')
    def thr():
        a(f's_waitcnt vmcnt({THR})')
    S_TGX = S_MH
    def flag_store(base, idx=None, stag=None):
        idx = f's{S_F}' if idx is None else idx
        stag = S_TAG if stag is None else stag
        a(f's_lshr_b32 s{S_T0}, {idx}, 2')
        a(f's_lshl_b32 s{S_T0}, s{S_T0}, 7')
        a(f's_and_b32 s{S_T1}, {idx}, 3')
        a(f's_lshl_b32 s{S_T1}, s{S_T1}, 2')
        a(f's_add_u32 s{S_T0}, s{S_T0}, s{S_T1}')
        a(f's_add_u32 s{S_T0}, s{S_T0}, {base}')
        a(f'v_mov_b32 {u(0)}, 0')
        a(f'v_mov_b32 {u(1)}, s{stag}')
        a('s_mov_b64 exec, 1')
        a(f'buffer_store_dword {u(1)}, {u(0)}, {ws}, s{S_T0} offen{SC}')
        a('s_mov_b64 exec, -1')
    def join_flag(cnt, n, base):
        uid[0] += 1; k = uid[0]
        a(f'v_mov_b32 {u(0)}, 1')
        a('s_waitcnt vmcnt(0)')
        a('s_mov_b64 exec, 1')
        a(f'ds_add_rtn_u32 {u(1)}, v{V_Z}, {u(0)} offset:{4*cnt}')
        a('s_mov_b64 exec, -1')
        a('s_waitcnt lgkmcnt(0)')
        a(f'v_readfirstlane_b32 s{S_T0}, {u(1)}')
        a(f's_cmp_lg_u32 s{S_T0}, {n-1}')
        a(f's_cbranch_scc1 KG_JN{k}')
        flag_store(base)
        a.label(f'KG_JN{k}')
    S_NQ, S_NEW, S_LB, S_QU, S_PUB = S_P, S_KH, S_KB, S_SEEN, S_KOFF
    def glob_poll(tag, execmask, sleep, wide=True, lsh=7):
        a(f's_mov_b32 s{S_CNT}, {POLL_LIMIT}')
        a(f'v_lshlrev_b32 {u(0)}, {lsh}, v0')
        if execmask == 0xffffffff:
            a('s_mov_b32 exec_hi, 0')
        else:
            a(f's_mov_b64 exec, {execmask}')
        a.label(f'KG_GP{tag}')
        if wide:
            a(f'buffer_load_dwordx4 {vr(V_U+4,4)}, {u(0)}, {ws}, s{S_T1} offen{SC}')
            if tag == 'KV' and TF_LAG == 2:
                a(f'ds_write_b32 v{V_Z}, v{KA+12} offset:{4*F_QDONE}')
            a('s_waitcnt vmcnt(0)')
            for i in range(4):
                a(f'v_xor_b32 {u(4+i)}, s{S_TGX if tag == "KV" else S_TAG}, {u(4+i)}')
            a(f'v_or3_b32 {u(4)}, {u(4)}, {u(5)}, {u(6)}')
            a(f'v_or_b32 {u(4)}, {u(4)}, {u(7)}')
            if tag == 'KV':
                a(f'v_lshlrev_b32 {u(5)}, 4, {u(4)}')
                a(f'v_cmp_ne_u32 vcc, 0, {u(5)}')
            else:
                a(f'v_cmp_ne_u32 vcc, 0, {u(4)}')
        else:
            a(f'buffer_load_dword {u(4)}, {u(0)}, {ws}, s{S_T1} offen{SC}')
            a('s_waitcnt vmcnt(0)')
            a(f'v_cmp_ne_u32 vcc, s{S_TAG}, {u(4)}')
        a(f's_sub_u32 s{S_CNT}, s{S_CNT}, 1')
        a(f's_cbranch_scc1 KG_GD{tag}')
        if tag == 'KV':
            S_DN = S_VM
            a(f's_and_b64 s[{S_C0}:{S_C0+1}], exec, vcc')
            a(f's_or_b64 s[{S_C1}:{S_C1+1}], s[{S_C0}:{S_C0+1}], s[{S_DN}:{S_DN+1}]')
            a('s_mov_b64 exec, -1')
            for c in range(8):
                m = 0xff << (8 * (c & 3))
                a(f's_and_b32 s{S_T0}, s{S_C1+(c>>2)}, {hex(m)}')
                a(f's_cselect_b32 s{S_T0}, 0, {hex(m)}')
                a(f's_cselect_b32 s{S_T2}, 0, {1 << c}')
                a(f's_or_b32 s{S_DN+(c>>2)}, s{S_DN+(c>>2)}, s{S_T0}')
                a(f's_or_b32 s{S_NEW}, s{S_NEW}, s{S_T2}')
            a('s_cbranch_scc0 KG_QE')
            a(f's_cmp_lg_u32 s{S_NQ}, 0')
            a('s_cbranch_scc1 KG_QL')
            if GST: stamp(8, 1)
            if QP: pg_wait(2, 1, 16, 4)
            else: pg_wait(1, 1, 16)
            a.label('KG_QL')
            if QP:
                a(f's_cmp_lg_u32 s{S_NQ}, 1')
                a('s_cbranch_scc1 KG_QL2')
                pg_wait(1, 1, 16)
                a.label('KG_QL2')
            a(f's_ff1_i32_b32 s{S_T0}, s{S_NEW}')
            a(f's_bitset0_b32 s{S_NEW}, s{S_T0}')
            a(f's_cmp_ge_u32 s{S_NQ}, 4')
            a('s_cbranch_scc1 KG_QQ')
            a(f'v_mov_b32 {u(1)}, s{S_NQ}')
            a(f's_add_u32 s{S_NQ}, s{S_NQ}, 1')
            a(f's_lshl_b32 s{S_T0}, s{S_T0}, 14')
            a(f's_add_u32 s{S_T0}, s{S_T0}, {WS_KV}')
            kv_dma(S_T0, S_LB)
            if GST:
                a(f's_cmp_lg_u32 s{S_NQ}, 1')
                a('s_cbranch_scc1 KG_GS1')
                stamp(9, 1)
                a.label('KG_GS1')
            a('s_waitcnt vmcnt(16)')
            a(f'ds_write_b32 v{V_Z}, {u(1)} offset:{4*F_POS}')
            if GST:
                a(f's_cmp_lg_u32 s{S_NQ}, 2')
                a('s_cbranch_scc1 KG_GS2')
                stamp(10, 1)
                a.label('KG_GS2')
            a('s_branch KG_QN')
            a.label('KG_QQ')
            a(f's_lshl_b32 s{S_QU}, s{S_QU}, 3')
            a(f's_or_b32 s{S_QU}, s{S_QU}, s{S_T0}')
            a.label('KG_QN')
            a(f's_cmp_lg_u32 s{S_NEW}, 0')
            a('s_cbranch_scc1 KG_QL')
            a(f'v_mov_b32 {u(1)}, s{S_NQ}')
            a('s_waitcnt vmcnt(0)')
            a(f'ds_write_b32 v{V_Z}, {u(1)} offset:{4*F_POS}')
            if GST:
                a(f's_cmp_lg_u32 s{S_NQ}, 1')
                a('s_cbranch_scc1 KG_GS3')
                stamp(11, 1)
                a.label('KG_GS3')
            a.label('KG_QE')
            a(f's_and_b64 exec, s[{S_C0}:{S_C0+1}], s[{S_C0}:{S_C0+1}]')
        else:
            a('s_and_b64 exec, exec, vcc')
        a(f's_cbranch_scc0 KG_GD{tag}')
        a(f's_sleep {sleep}')
        a(f's_branch KG_GP{tag}')
        a.label(f'KG_GD{tag}')
        a('s_mov_b64 exec, -1')

    a.label('KG_KV')
    if not GST: stamp(9, 1)
    hsetup()
    a(f's_mov_b32 s{S_KQ}, s{S_QG}')
    a(f'v_bfe_u32 {u(1)}, v0, 2, 2')
    a(f'v_and_b32 {u(2)}, 3, v0')
    a(f'v_lshl_add_u32 {u(1)}, v{V_G}, 3, {u(1)}')
    a(f'v_lshlrev_b32 {u(1)}, 5, {u(1)}')
    a(f'v_lshl_add_u32 {u(1)}, {u(2)}, 3, {u(1)}')
    a(f'v_add_u32 v{V_A2}, {L_KW}, {u(1)}')
    a(f's_lshl_b32 s{S_T2}, s{S_QG}, 12')
    a(f's_lshr_b32 s{S_T0}, s{S_RB}, 1')
    a(f's_lshl_b32 s{S_T0}, s{S_T0}, 11')
    a(f's_add_u32 s{S_T2}, s{S_T2}, s{S_T0}')
    a(f's_and_b32 s{S_T0}, s{S_RB}, 1')
    a(f's_lshl_b32 s{S_T0}, s{S_T0}, 8')
    a(f's_add_u32 s{S_T2}, s{S_T2}, s{S_T0}')
    a(f's_lshl_b32 s{S_T0}, s{S_TY}, 10')
    a(f's_add_u32 s{S_T2}, s{S_T2}, s{S_T0}')
    a(f's_lshl_b32 s{S_T3}, s{S_T2}, 1')
    a(f's_add_u32 s{S_T2}, s{S_T2}, {WS_KV}')
    a(f's_add_u32 s{S_T3}, s{S_T3}, {WS_KVT}')
    a(f's_add_u32 s{S_CNT}, s{S_T3}, 0x40000')
    a(f's_lshl_b32 s{S_KOFF}, s{S_QG}, 3')
    a(f's_add_u32 s{S_KOFF}, s{S_KOFF}, s{S_HG}')
    lds_wait(F_TAGOK, 1, V_U)
    get_tag(V_U)
    a(f'v_and_b32 {u(2)}, 1, v{V_G}')
    a(f'v_lshrrev_b32 {u(3)}, 1, v{V_G}')
    a(f'v_lshlrev_b32 {u(4)}, 9, {u(2)}')
    a(f'v_lshl_add_u32 {u(4)}, v{V_I}, 4, {u(4)}')
    a(f'v_lshl_add_u32 {u(4)}, {u(3)}, 3, {u(4)}')
    a(f'v_lshlrev_b32 {u(6)}, 1, {u(4)}')
    a(f'v_mov_b32 v{KA+10}, s{S_TAG}')
    a(f'v_mov_b32 v{KA+11}, s{S_TAG}')
    a(f'v_mov_b32 v{KA+12}, 1')
    a(f's_getreg_b32 s{S_T0}, hwreg(HW_REG_XCC_ID, 0, 4)')
    a(f's_lshl_b32 s{S_T0}, s{S_T0}, 28')
    a(f's_xor_b32 s{S_TGX}, s{S_TAG}, s{S_T0}')
    a(f's_mov_b32 s{S_T1}, {f32_bits(QSCALE)}')
    a(f'v_lshrrev_b32 {u(2)}, 1, v{V_I}')
    a(f'v_xor_b32 {u(2)}, v{V_G}, {u(2)}')
    a(f'v_lshlrev_b32 {u(2)}, 4, {u(2)}')
    a(f'v_lshl_add_u32 {u(2)}, v{V_I}, 7, {u(2)}')
    a(f's_lshl_b32 s{S_T0}, s{S_RB}, 11')
    a(f'v_add_u32 {u(2)}, s{S_T0}, {u(2)}')
    a(f'v_xor_b32 {u(3)}, 64, {u(2)}')
    a(f's_waitcnt vmcnt({16 + (4 if TOUCH == 1 else 1)})')
    a(f'ds_write_b32 v{V_Z}, v{KA+12} offset:{4*F_KX}')
    for ks in range(16):
        a(f'ds_read_b128 {vr(KX+4*ks,4)}, {u(2+(ks&1))} offset:{(ks>>1)*8192}')
    a(f's_waitcnt vmcnt({4 if TOUCH == 1 else 1}) lgkmcnt(0)')
    stamp(2)
    def kv_reads(ks):
        a(f'ds_read_b64_tr_b16 {vr(KW+4*ks,2)}, v{V_A2} offset:{ks*1024}')
        a(f'ds_read_b64_tr_b16 {vr(KW+4*ks+2,2)}, v{V_A2} offset:{ks*1024+128}')
    for ks in range(7):
        kv_reads(ks)
    a(f's_cmp_eq_u32 s{S_TY}, 1')
    a('s_cbranch_scc1 KG_KV1')
    for ty in range(2):
        if ty == 1:
            a.label('KG_KV1')
        for ks in range(16):
            n_out = min(6, 15 - ks)
            a(f's_waitcnt lgkmcnt({2*n_out})')
            cc = vr(KA + 4*(ks & 1), 4) if ks >= 2 else '0'
            if ty == 0:
                a(f'v_mfma_f32_16x16x32_bf16 {vr(KA+4*(ks&1),4)}, {vr(KW+4*ks,4)}, {vr(KX+4*ks,4)}, {cc}')
            else:
                a(f'v_mfma_f32_16x16x32_bf16 {vr(KA+4*(ks&1),4)}, {vr(KX+4*ks,4)}, {vr(KW+4*ks,4)}, {cc}')
            if ks + 7 < 16:
                kv_reads(ks + 7)
        a('s_nop 7')
        for i in range(4):
            a(f'v_add_f32 v{KA+i}, v{KA+i}, v{KA+4+i}')
        if ty == 0:
            for i in range(4):
                a(f'v_mul_f32 v{KA+i}, s{S_T1}, v{KA+i}')
        a(f'v_cvt_pk_bf16_f32 v{KA+8}, v{KA}, v{KA+1}')
        a(f'v_cvt_pk_bf16_f32 v{KA+9}, v{KA+2}, v{KA+3}')
        if KVL: a(f'buffer_store_dwordx4 {vr(KA+8,4)}, {u(6)}, {ws}, s{S_T3} offen')
        a(f'buffer_store_dwordx2 {vr(KA+8,2)}, {u(4)}, {ws}, s{S_T2} offen{SC}')
        a(f'buffer_store_dwordx4 {vr(KA+8,4)}, {u(6)}, {ws}, s{S_CNT} offen{SC}')
        a(f'ds_write_b32 v{V_Z}, v{KA+12} offset:{4*F_KVS}')
        stamp(1)
        a('s_waitcnt vmcnt(0)')
        flag_store(WS_FL1, f's{S_KOFF}', S_TGX)
        stamp(3)
        if ty == 1:
            a('s_branch KG_KP')
        else:
            a(f'v_lshlrev_b32 {u(2)}, 4, v{V_G}')
            a(f'v_add_u32 {u(2)}, {L_GATE}, {u(2)}')
            for half in range(2):
                for k8 in range(8):
                    ks = 8*half + k8
                    a(f'ds_read_b128 {vr(KW+4*ks,4)}, {u(2)} offset:{64*ks}')
                for k8 in range(8):
                    ks = 8*half + k8
                    a(f's_waitcnt lgkmcnt({7-k8})')
                    cc = vr(KA, 4) if ks else '0'
                    a(f'v_mfma_f32_16x16x32_bf16 {vr(KA,4)}, {vr(KW+4*ks,4)}, {vr(KX+4*ks,4)}, {cc}')
            a(f's_lshl_b32 s{S_T0}, s{S_KQ}, 8')
            a(f's_lshl_b32 s{S_T1}, s{S_RB}, 6')
            a(f's_add_u32 s{S_T0}, s{S_T0}, s{S_T1}')
            a(f's_add_u32 s{S_T1}, s{S_T0}, {WS_G}')
            a(f'v_lshlrev_b32 {u(2)}, 2, v{V_I}')
            a('s_nop 6')
            a(f'v_cvt_pk_bf16_f32 {u(3)}, v{KA}, v{KA}')
            a(f'v_lshlrev_b32 {u(3)}, 16, {u(3)}')
            a(f's_mov_b32 s{S_T0}, {f32_bits(-math.log2(math.e))}')
            a(f'v_mul_f32 {u(3)}, s{S_T0}, {u(3)}')
            a(f'v_exp_f32 {u(3)}, {u(3)}')
            a('s_nop 0')
            a(f'v_add_f32 {u(3)}, 1.0, {u(3)}')
            a(f'v_rcp_f32 {u(3)}, {u(3)}')
            a('s_nop 0')
            a(f'v_cvt_pk_bf16_f32 {u(3)}, {u(3)}, {u(3)}')
            a(f'v_lshlrev_b32 {u(3)}, 16, {u(3)}')
            a('s_mov_b64 exec, 0xffff')
            a(f'buffer_store_dword {u(3)}, {u(2)}, {ws}, s{S_T1} offen{SC}')
            a('s_mov_b64 exec, -1')
            a('s_branch KG_KP')

    a.label('KG_TAG')
    stamp(9, 1)
    hsetup()
    a('s_waitcnt vmcnt(0)')
    a(f'v_readfirstlane_b32 s{S_TAG}, {u(3)}')
    a(f's_mul_i32 s{S_TAG}, s{S_TAG}, {TAG_M}')
    a(f's_add_u32 s{S_TAG}, s{S_TAG}, {TAG_C}')
    a(f'v_mov_b32 {u(1)}, 1')
    a(f'v_mov_b32 {u(3)}, s{S_TAG}')
    a(f'ds_write_b32 v{V_Z}, {u(3)} offset:{4*F_TAG}')
    a(f'ds_write_b32 v{V_Z}, {u(1)} offset:{4*F_TAGOK}')
    stamp(2)
    GR = 16
    V_GW, V_QW = V_A1, V_A2
    S_PEND, S_GB, S_DN = S_P, S_KH, S_VM
    a(f's_and_b32 s{S_T0}, s2, 7')
    a(f's_lshl_b32 s{S_GB}, s{S_T0}, 15')
    a(f's_add_u32 s{S_GB}, s{S_GB}, {WS_KVT + (0 if KVL else 0x40000)}')
    a(f's_movk_i32 s{S_PEND}, 0x1ff')
    a(f'v_lshlrev_b32 v{V_GW}, 3, v0')
    a(f'v_add_u32 v{V_GW}, {L_PRE}, v{V_GW}')
    lds_wait(F_KVS, 1, V_U + 4, sleep=1)
    if G_DELAY:
        a(f's_sleep {G_DELAY}')
    def g_loads(c, sc=SC):
        a(f's_add_u32 s{S_T0}, s{S_GB}, {c*4096}')
        for j in range(4):
            a(f'buffer_load_dwordx4 {vr(GR+16*c+4*j,4)}, v{V_L16}, {ws}, s{S_T0} offen offset:{1024*j}{sc}')
    def g_check(c, k):
        for j in range(4):
            a(f'v_cmpx_eq_u32 vcc, s{S_TAG}, v{GR+16*c+4*j+2}')
        a('s_cmp_eq_u64 exec, -1')
        a('s_mov_b64 exec, -1')
        a(f's_cbranch_scc0 KG_GF{k}_{c}')
        for j in range(4):
            a(f'ds_write_b64 v{V_GW}, {vr(GR+16*c+4*j,2)} offset:{512*j}')
        a(f'v_add_u32 {u(6)}, 1, {u(6)}')
        a(f's_bitset0_b32 s{S_PEND}, {c}')
        a(f'v_add_u32 v{V_GW}, 0x800, v{V_GW}')
        a(f'ds_write_b32 v{V_Z}, {u(6)} offset:{4*F_PRE}')
        if GST:
            a(f's_bcnt1_i32_b32 s{S_T1}, s{S_PEND}')
            for n_, st_ in ((8, 7), (5, 8), (1, 10)):
                a(f's_cmp_lg_u32 s{S_T1}, {n_}')
                a(f's_cbranch_scc1 KG_GS{k}_{c}_{n_}')
                stamp(st_, 1)
                a.label(f'KG_GS{k}_{c}_{n_}')
        a.label(f'KG_GF{k}_{c}')
    def g_round(c0, c1, gi):
        for c in range(c0, c1):
            g_loads(c)
        if gi:
            a(f'ds_write_b32 v{V_Z}, {u(1)} offset:{4*F_GI}')
            stamp(1)
        for c in range(c0, c1):
            a(f's_waitcnt vmcnt({4*(c1-1-c)})')
            g_check(c, 0)
    S_AL = S_KB
    a(f'v_mov_b32 {u(6)}, 0')
    g_round(0, G_EARLY, G_EARLY == 8)
    stamp(5)
    if GST: stamp(11, 1)
    a(f's_movk_i32 s{S_AL}, {(1 << G_EARLY) - 1}')
    a(f's_mov_b32 s{S_CNT}, {POLL_LIMIT}')
    a.label('KG_GR')
    a(f's_sub_u32 s{S_CNT}, s{S_CNT}, 1')
    a('s_cbranch_scc1 KG_GE')
    a(f's_cmp_eq_u32 s{S_PEND}, 0x100')
    a('s_cbranch_scc1 KG_GE')
    if G_EARLY < 8:
        a(f's_cmp_eq_u32 s{S_AL}, 0xff')
        a('s_cbranch_scc1 KG_GA')
        a(f'ds_read_b64 {vr(V_U+4,2)}, v{V_Z} offset:{4*F_CX}')
        a('s_waitcnt lgkmcnt(0)')
        a(f'v_min_u32 {u(4)}, {u(4)}, {u(5)}')
        a('s_nop 0')
        a(f'v_readfirstlane_b32 s{S_T0}, {u(4)}')
        a(f's_cmp_lt_u32 s{S_T0}, {G_TRIG}')
        a('s_cbranch_scc1 KG_GA')
        a(f's_movk_i32 s{S_AL}, 0xff')
        g_round(G_EARLY, 8, True)
        a('s_branch KG_GR')
        a.label('KG_GA')
    a(f's_and_b32 s{S_T2}, s{S_PEND}, s{S_AL}')
    a('s_cbranch_scc1 KG_GB')
    a('s_sleep 1')
    a('s_branch KG_GR')
    a.label('KG_GB')
    if KVL:
        assert (WS_KVT & 0x40000) == 0
        a(f's_bitset0_b32 s{S_GB}, 18')
        a(f's_and_b32 s{S_T0}, s{S_CNT}, 3')
        a('s_cbranch_scc1 KG_GC')
        a(f's_bitset1_b32 s{S_GB}, 18')
        a.label('KG_GC')
    for c in range(8):
        a(f's_bitcmp1_b32 s{S_T2}, {c}')
        a(f's_cbranch_scc0 KG_GL{c}')
        g_loads(c)
        a.label(f'KG_GL{c}')
    a('s_waitcnt vmcnt(0)')
    for c in range(8):
        a(f's_bitcmp1_b32 s{S_T2}, {c}')
        a(f's_cbranch_scc0 KG_GF1_{c}')
        g_check(c, 1)
    a('s_branch KG_GR')
    a.label('KG_GE')
    stamp(6)
    a('s_branch KG_WT')
    a.label('KG_KP')
    a(f's_and_b32 s{S_T0}, s2, 7')
    a(f's_lshl_b32 s{S_T0}, s{S_T0}, 3')
    a(f's_mov_b64 s[{S_DN}:{S_DN+1}], 0xff')
    a(f's_lshl_b64 s[{S_DN}:{S_DN+1}], s[{S_DN}:{S_DN+1}], s{S_T0}')
    a(f's_mov_b32 s{S_NQ}, 0')
    a(f's_mov_b32 s{S_QU}, 0')
    a(f's_mov_b32 s{S_NEW}, 0')
    a(f's_mov_b32 s{S_LB}, {L_WQ}')
    if not EPOLL: pg_wait(1)
    elif EPOLL > 1:
        lds_wait(F_CW, EPOLL, V_U, sleep=2)
        lds_wait(F_CX, EPOLL, V_U, sleep=2)
    a(f's_mov_b32 s{S_T1}, {WS_FL1}')
    if GST: stamp(7, 1)
    if KP_DELAY:
        a(f's_sleep {KP_DELAY}')
    glob_poll('KV', -1, KV_SLEEP)
    a(f'v_mov_b32 {u(1)}, 127')
    a(f'ds_write_b32 v{V_Z}, {u(1)} offset:{4*F_N}')
    stamp(5)
    a(f's_lshl_b32 s{S_T0}, s{S_QG}, 1')
    a(f's_add_u32 s{S_T1}, s{S_T0}, 1')
    a(f'v_readlane_b32 s{S_T0}, {u(4)}, s{S_T0}')
    a(f'v_readlane_b32 s{S_T1}, {u(4)}, s{S_T1}')
    a('s_nop 1')
    a(f's_or_b32 s{S_T0}, s{S_T0}, s{S_T1}')
    a(f's_cmp_eq_u32 s{S_T0}, 0')
    a(f's_cselect_b32 s{S_T0}, {2 if FORCE_GL else 1}, 2')
    a(f'v_mov_b32 {u(4)}, s{S_T0}')
    a(f'ds_write_b32 v{V_Z}, {u(4)} offset:{4*F_LOC}')
    for i in range(4):
        a(f'v_mov_b32 {u(4+i)}, -1')
    a(f's_lshl_b32 s{S_T1}, s{S_QG}, 16')
    a(f's_lshl_b32 s{S_T2}, s{S_HG}, 12')
    a(f's_add_u32 s{S_T1}, s{S_T1}, s{S_T2}')
    a(f's_add_u32 s{S_T1}, s{S_T1}, {WS_O}')
    a(f's_add_u32 s{S_T2}, s{S_T1}, 32768')
    a(f's_cmp_eq_u32 s{S_T0}, 1')
    a('s_cbranch_scc1 KG_SE1')
    for n_, sc_ in enumerate((SC, LOCSE)):
        for k in range(8):
            a(f'buffer_store_dwordx4 {vr(V_U+4,4)}, v{V_L16}, {ws}, s{S_T1+(k>>2)} offen offset:{1024*(k&3)}{sc_}')
        if n_ == 0:
            a('s_branch KG_SE2')
            a.label('KG_SE1')
    a.label('KG_SE2')
    a('s_cmp_lg_u32 s2, 0')
    a('s_cbranch_scc1 KG_H3')
    a(f's_mov_b32 s{S_T3}, {WS_ROOT}')
    a(f'v_mov_b32 {u(2)}, 0')
    a(f'v_mov_b32 {u(3)}, s{S_TAG}')
    a('s_mov_b64 exec, 1')
    a(f'buffer_store_dword {u(3)}, {u(2)}, {ws}, s{S_T3} offen{SC}')
    a('s_mov_b64 exec, -1')
    a('s_branch KG_H3')

    a.label('KG_WT')
    if WT_LAG == 127:
        lds_wait(F_N, 127, V_U, sleep=2)
    elif WT_LAG == 100:
        lds_wait(F_POS, 1, V_U, sleep=2)
    elif WT_LAG:
        lds_wait(F_PRE, WT_LAG, V_U, sleep=2)
    S_FW, S_G4, S_PT = S_P, S_KH, S_KB
    a(f's_lshr_b32 s{S_FW}, s{S_QG}, 3')
    a(f's_bfe_u32 s{S_G4}, s{S_QG}, 0x20001')
    a(f's_and_b32 s{S_PT}, s{S_QG}, 1')
    a(f's_cmp_eq_u32 s{S_PT}, 1')
    a(f's_cselect_b64 s[{S_C0}:{S_C0+1}], s[{S_WI}:{S_WI+1}], s[{S_WR}:{S_WR+1}]')
    srd(a, R_A, S_C0, 2048 * 514)
    a(f's_lshl_b32 s{S_T3}, s{S_FW}, 4')
    a(f's_lshl_b32 s{S_T1}, s{S_G4}, 8')
    a(f's_add_u32 s{S_T1}, s{S_T1}, s{S_T3}')
    a(f'v_add_u32 {u(2)}, s{S_T1}, v{V_I}')
    a(f'v_mul_u32_u24 {u(2)}, 514, {u(2)}')
    a(f'v_lshl_add_u32 {u(2)}, v{V_G}, 4, {u(2)}')
    a(f's_lshl_b32 s{S_T1}, s{S_HG}, 6')
    a(f'v_add_u32 {u(2)}, s{S_T1}, {u(2)}')
    a(f'v_and_b32 {u(4)}, 2, {u(2)}')
    a(f'v_and_b32 {u(2)}, -4, {u(2)}')
    for e in range(8):
        a(f's_mov_b32 s{S_T0}, {(16*(e>>2)+(e&3))*32896}')
        a(f'buffer_load_dwordx4 {vr(16+4*e,4)}, {u(2)}, {ra}, s{S_T0} offen')
        a(f'buffer_load_dword v{96+e}, {u(2)}, {ra}, s{S_T0} offen offset:16')
    a(f's_or_b32 s{S_KOFF}, s{S_HG}, s{S_G4}')
    a(f's_cmp_lg_u32 s{S_KOFF}, 0')
    a('s_cbranch_scc1 KG_WT1')
    a(f'v_lshl_add_u32 {u(3)}, v{V_G}, 8, v{V_I}')
    a(f'v_add_u32 {u(3)}, s{S_T3}, {u(3)}')
    a(f'v_mul_u32_u24 {u(3)}, 514, {u(3)}')
    for e in range(8):
        a(f's_mov_b32 s{S_T0}, {(16*(e>>2)+(e&3))*32896}')
        a(f'buffer_load_ushort v{80+e}, {u(3)}, {ra}, s{S_T0} offen offset:512')
    a.label('KG_WT1')
    a(f's_mov_b32 s{S_C0}, 0x05040100')
    a(f's_mov_b32 s{S_C0+1}, 0x07060302')
    a(f'v_lshlrev_b32 {u(2)}, 16, v{V_G}')
    a(f'v_lshl_add_u32 {u(2)}, v{V_I}, 4, {u(2)}')
    a(f's_lshl_b32 s{S_T1}, s{S_HG}, 18')
    a(f's_lshl_b32 s{S_T2}, s{S_FW}, 11')
    a(f's_lshl_b32 s{S_T0}, s{S_PT}, 10')
    a(f's_add_u32 s{S_T2}, s{S_T2}, s{S_T0}')
    a(f's_add_u32 s{S_T2}, s{S_T2}, {WS_WT}')
    a(f's_add_u32 s{S_T1}, s{S_T1}, s{S_T2}')
    a(f's_lshl_b32 s{S_T0}, s{S_G4}, 8')
    a(f's_add_u32 s{S_T1}, s{S_T1}, s{S_T0}')
    a('s_waitcnt vmcnt(0)')
    stamp(3)
    for e in range(8):
        for j in range(4):
            hi = 16 + 4*e + j + 1 if j < 3 else 96 + e
            a(f'v_alignbyte_b32 v{16+4*e+j}, v{hi}, v{16+4*e+j}, {u(4)}')
    for ph in range(8):
        for q in range(4):
            lo = 16 + 4*(2*q) + (ph >> 1); hi = 16 + 4*(2*q+1) + (ph >> 1)
            a(f'v_perm_b32 v{48+4*ph+q}, v{hi}, v{lo}, s{S_C0+(ph&1)}')
    for ph in range(8):
        a(f's_add_u32 s{S_T0}, s{S_T1}, {8192*ph}')
        if not E('WT_NOST', 0): a(f'buffer_store_dwordx4 {vr(48+4*ph,4)}, {u(2)}, {ws}, s{S_T0} offen{SC}')
    a(f's_cmp_lg_u32 s{S_KOFF}, 0')
    a('s_cbranch_scc1 KG_J1')
    for q in range(4):
        a(f'v_lshl_or_b32 v{88+q}, v{81+2*q}, 16, v{80+2*q}')
    a(f's_add_u32 s{S_T0}, s{S_T2}, {256*8192}')
    a(f'buffer_store_dwordx4 {vr(88,4)}, v{V_L16}, {ws}, s{S_T0} offen{SC}')
    a('s_branch KG_J1')

    HT, HX, HA = 16, 64, 128
    a.label('KG_H2B')
    stamp(2)
    hsetup()
    table_srd(a, R_TB, 'TAB_F', 512 * 1024, 'f')
    a(f's_and_b32 s{S_CT}, s{S_HW}, 1')
    a(f's_lshl_b32 s{S_T2}, s{S_HG}, 16')
    a(f's_lshl_b32 s{S_T0}, s{S_CT}, 10')
    a(f's_add_u32 s{S_T2}, s{S_T2}, s{S_T0}')
    if TF_LAG == 1:
        lds_wait(F_GI, 1, V_U, sleep=2)
    elif TF_LAG == 2:
        lds_wait(F_QDONE, 1, V_U, sleep=1)
    elif TF_LAG == 100:
        lds_wait(F_POS, 1, V_U, sleep=2)
    elif TF_LAG:
        lds_wait(F_PRE, TF_LAG, V_U, sleep=2)
    if ROT == 3:
        a(f's_lshr_b32 s{S_KOFF}, s2, 6')
        a(f's_lshl_b32 s{S_KOFF}, s{S_KOFF}, 14')
    def tload(i):
        if ROT == 3:
            if i % 8 == 0:
                if i:
                    a(f's_add_u32 s{S_KOFF}, s{S_KOFF}, 0x4000')
                    a(f's_bitset0_b32 s{S_KOFF}, 16')
                a(f's_add_u32 s{S_KB}, s{S_T2}, s{S_KOFF}')
            if i % 2 == 0:
                a(f's_add_u32 s{S_T3}, s{S_KB}, {(i%8)*2048}')
        elif i % 2 == 0:
            a(f's_add_u32 s{S_T3}, s{S_T2}, {i*2048}')
        a(f'buffer_load_dwordx4 {vr(HT+4*(i%12),4)}, v{V_L16}, {tb}, s{S_T3} offen offset:{(i%2)*2048}')
    PD = H2_PD
    assert PD <= 12
    for i in range(PD):
        tload(i)
    a(f'v_and_b32 {u(4)}, 31, v0')
    a(f'v_lshrrev_b32 {u(5)}, 5, v0')
    a(f'v_bfe_u32 {u(6)}, v0, 1, 3')
    a(f'v_lshlrev_b32 {u(7)}, 7, {u(4)}')
    for ks in range(4):
        a(f'v_add_u32 v{HA+ks}, {2*ks}, {u(5)}')
        a(f'v_xor_b32 v{HA+ks}, v{HA+ks}, {u(6)}')
        a(f'v_lshl_add_u32 {u(ks)}, v{HA+ks}, 4, {u(7)}')
    a(f'v_lshlrev_b32 v{V_A1}, 12, {u(4)}')
    a(f'v_lshl_add_u32 v{V_A1}, {u(5)}, 5, v{V_A1}')
    stamp(5)
    lds_wait(F_CX, 8, V_U + 4, sleep=2)
    def xreads(c):
        for ks in range(4):
            for aa in range(2):
                a(f'ds_read_b128 {vr(HX+32*(c&1)+16*aa+4*ks,4)}, {u(ks)} offset:{c*8192+4096*aa}')
    if PRI & 1: a('s_setprio 0')
    xreads(0)
    for c in range(8):
        if c < 7:
            xreads(c + 1)
        for ks in range(4):
            i = 4*c + ks
            a(f's_waitcnt vmcnt({min(PD-1, 31-i)}) lgkmcnt({2*(3-ks) + (8 if c < 7 else 0)})')
            for aa in range(2):
                cc = vr(HA + 16*aa, 16) if i else '0'
                a(f'v_mfma_f32_32x32x16_bf16 {vr(HA+16*aa,16)}, {vr(HX+32*(c&1)+16*aa+4*ks,4)}, {vr(HT+4*(i%12),4)}, {cc}')
            if i + PD < 32: tload(i + PD)
    if PRI & 1: a('s_setprio 2')
    lds_add(F_H2, V_U)
    a(f's_lshl_b32 s{S_T0}, s{S_HG}, 18')
    a(f's_lshl_b32 s{S_T1}, s{S_CT}, 17')
    a(f's_add_u32 s{S_T0}, s{S_T0}, s{S_T1}')
    a(f's_lshl_b32 s{S_T1}, s{S_QG}, 7')
    a(f's_add_u32 s{S_T0}, s{S_T0}, s{S_T1}')
    a(f's_add_u32 s{S_T2}, s{S_T0}, {WS_X1T}')
    lds_wait(F_TAGOK, 1, V_U)
    get_tag(V_U)
    a('s_nop 4')
    for i in range(16):
        a(f'v_cvt_pk_bf16_f32 v{HX+i}, v{HA+2*i}, v{HA+2*i+1}')
    for aa in range(2):
        for q in range(2):
            a(f'buffer_store_dwordx4 {vr(HX+8*aa+4*q,4)}, v{V_A1}, {ws}, s{S_T2} offen offset:{64*aa+16*q}{SC}')
    a.label('KG_J1')
    join_flag(F_J1, 3, WS_FL2)
    stamp(6)
    a.label('KG_H3')
    if E('NOHELP', 0) == 1:
        lds_add(F_J2, V_U)
        dump()
        a('s_endpgm')

    V_T1 = 16
    V_T2 = 64
    V_D = 88
    V_TW = 104
    V_XX = 120
    V_W = 136
    V_AC = 152
    S_FW = S_HW
    table_srd(a, R_TB, 'TAB_K2', 24576 + 6144 + 32768, 'k2')
    O_T1, O_T2, O_TW1, O_TW2 = 0, 24576, 30720, 30720 + 16384
    a(f's_lshr_b32 s{S_MH}, s{S_FW}, 1')
    a(f's_and_b32 s{S_NH}, s{S_FW}, 1')
    a(f's_mul_i32 s{S_T0}, s{S_MH}, 12288')
    for i in range(12):
        if i % 4 == 0 and i:
            a(f's_add_u32 s{S_T0}, s{S_T0}, 4096')
        a(f'buffer_load_dwordx4 {vr(V_T1+4*i,4)}, v{V_L16}, {tb}, s{S_T0} offen offset:{(i%4)*1024}')
        thr()
    a(f's_lshl_b32 s{S_T2}, s{S_FW}, 12')
    a(f's_add_u32 s{S_T0}, s{S_T2}, {O_TW1}')
    for i in range(4):
        a(f'buffer_load_dwordx4 {vr(V_TW+4*i,4)}, v{V_L16}, {tb}, s{S_T0} offen offset:{i*1024}')
        thr()
    a(f's_mov_b32 s{S_T0}, {O_T2}')
    a(f's_mov_b32 s{S_T1}, {O_T2+4096}')
    for i in range(6):
        a(f'buffer_load_dwordx4 {vr(V_T2+4*i,4)}, v{V_L16}, {tb}, s{S_T0+(i>>2)} offen offset:{(i%4)*1024}')
        thr()
    a(f's_lshl_b32 s{S_T0}, s{S_FW}, 4')
    a(f'v_lshl_add_u32 v{V_A3}, v{V_G}, 8, v{V_I}')
    a(f'v_add_u32 v{V_A3}, s{S_T0}, v{V_A3}')
    a(f's_cmp_eq_u32 s{S_F}, 0')
    a('s_cbranch_scc1 KG_SPA')
    a.label('KG_SPAR')
    if T2:
        a(f's_cmp_lt_u32 s{S_HW}, 2')
        a('s_cbranch_scc1 KG_T2E')
        table_srd(a, R_A, 'TAB_FINV', 512 * 1024, 't2')
        a(f's_cmp_eq_u32 s{S_HW}, 3')
        a(f's_cselect_b64 s[{R_A}:{R_A+1}], s[{S_WO}:{S_WO+1}], s[{R_A}:{R_A+1}]')
        a(f's_lshr_b32 s{S_T0}, s2, 3')
        a(f's_lshl_b32 s{S_T0}, s{S_T0}, 14')
        a(f's_add_u32 s{S_T1}, s{S_T0}, 8192')
        a(f'v_lshlrev_b32 {u(0)}, 7, v0')
        a(f'buffer_load_dword v254, {u(0)}, {ra}, s{S_T0} offen')
        a(f'buffer_load_dword v255, {u(0)}, {ra}, s{S_T1} offen')
        a.label('KG_T2E')
    a(f's_cmp_lg_u32 s{S_HW}, 0')
    a('s_cbranch_scc1 KG_PCE')
    lds_wait(F_H2, 2, V_U, sleep=4)
    a(f's_mov_b32 s{S_LB}, {L_X}')
    for k in range(3):
        a(f's_bfe_u32 s{S_T0}, s{S_QU}, {hex(0x30000 + 3*(2-k))}')
        a(f's_lshl_b32 s{S_T0}, s{S_T0}, 14')
        a(f's_add_u32 s{S_T0}, s{S_T0}, {WS_KV}')
        kv_dma(S_T0, S_LB)
    a(f'v_mov_b32 {u(1)}, 8')
    a('s_waitcnt vmcnt(0)')
    a(f'ds_write_b32 v{V_Z}, {u(1)} offset:{4*F_POS}')
    stamp(6)
    a.label('KG_PCE')
    a(f's_cmp_lg_u32 s{S_HW}, 1')
    a('s_cbranch_scc1 KG_S1W')
    a(f's_lshl_b32 s{S_T1}, s{S_HG}, 10')
    a(f's_add_u32 s{S_T1}, s{S_T1}, {WS_FL2}')
    glob_poll('S1', 0xff, S1_SLEEP)
    a(f'v_mov_b32 {u(1)}, 1')
    a(f'ds_write_b32 v{V_Z}, {u(1)} offset:{4*F_S1OK}')
    a.label('KG_S1W')
    pg_wait(3)
    lds_wait(F_S1OK, 1, V_U, sleep=4)
    stamp(7)
    a(f'v_lshlrev_b32 v{V_A1}, 7, v{V_I}')
    a(f'v_lshl_add_u32 v{V_A1}, v{V_G}, 4, v{V_A1}')
    a(f's_lshl_b32 s{S_T0}, s{S_F}, 13')
    a(f's_lshl_b32 s{S_T1}, s{S_NH}, 11')
    a(f's_add_u32 s{S_T0}, s{S_T0}, s{S_T1}')
    a(f's_add_u32 s{S_T0}, s{S_T0}, {WS_X1T}')
    a(f's_add_u32 s{S_T1}, s{S_T0}, 4096')
    for part in range(2):
        for ks in range(2):
            a(f'buffer_load_dwordx4 {vr(V_D+8*part+4*ks,4)}, v{V_A1}, {ws}, s{S_T0+part} offen offset:{64*ks}{SC}')
    a(f's_lshl_b32 s{S_T0}, s{S_F}, 13')
    a(f's_lshl_b32 s{S_T1}, s{S_FW}, 11')
    a(f's_add_u32 s{S_T1}, s{S_T1}, {WS_WT}')
    a(f's_add_u32 s{S_T0}, s{S_T0}, s{S_T1}')
    a(f's_cmp_lg_u32 s{S_F}, 0')
    a('s_cbranch_scc1 KG_NXX')
    a(f's_add_u32 s{S_T1}, s{S_T1}, {256*8192}')
    for part in range(2):
        a(f'buffer_load_dwordx4 {vr(V_XX+8*part+4,4)}, v{V_L16}, {ws}, s{S_T1} offen offset:{1024*part}{SC}')
    a.label('KG_NXX')
    for part in range(2):
        a(f'buffer_load_dwordx4 {vr(V_W+8*part+4,4)}, v{V_L16}, {ws}, s{S_T0} offen offset:{1024*part}{SC}')

    def mf(d, x, y, c):
        cc = vr(d, 4) if c else '0'
        a(f'v_mfma_f32_16x16x32_bf16 {vr(d,4)}, {vr(x,4)}, {vr(y,4)}, {cc}')
    def t1(nt, ks, v): return V_T1 + 4 * ((nt * 2 + ks) * 3 + v)
    def t2(mt, v): return V_T2 + 4 * (mt * 3 + v)
    def cmul_pack(dst):
        for t_ in range(2):
            for r in range(4):
                ar, ai = V_AC + 8*t_ + r, V_AC + 8*t_ + 4 + r
                c_, s_ = V_TW + 8*t_ + r, V_TW + 8*t_ + 4 + r
                uu = V_U + (r & 1) * 2
                a(f'v_mul_f32 v{uu}, v{ar}, v{c_}')
                a(f'v_mul_f32 v{uu+1}, v{ar}, v{s_}')
                a(f'v_fma_f32 v{ar}, -v{ai}, v{s_}, v{uu}')
                a(f'v_fma_f32 v{ai}, v{ai}, v{c_}, v{uu+1}')
        for i in range(8):
            a(f'v_cvt_pk_bf16_f32 v{dst+i}, v{V_AC+2*i}, v{V_AC+2*i+1}')
    def sync(flag):
        a('s_waitcnt lgkmcnt(0)')
        lds_add(flag, V_U)
        lds_wait(flag, 4, V_U, sleep=2)

    def lo():
        if PRI & 4: a('s_setprio 0')
    def hi():
        if PRI & 4: a('s_setprio 2')
    lo()
    a('s_waitcnt vmcnt(2)')
    zr = lambda ks: V_D + 4*ks
    zi = lambda ks: V_D + 8 + 4*ks
    for ks in range(2):
        for nt in range(2):
            mf(V_AC + 8*nt, zr(ks), t1(nt, ks, 0), ks)
            mf(V_AC + 8*nt + 4, zi(ks), t1(nt, ks, 0), ks)
        for nt in range(2):
            mf(V_AC + 8*nt, zi(ks), t1(nt, ks, 2), 1)
            mf(V_AC + 8*nt + 4, zr(ks), t1(nt, ks, 1), 1)
    hi()
    a(f's_cmp_eq_u32 s{S_F}, 0')
    a('s_cbranch_scc1 KG_SPB')
    a.label('KG_SPBR')
    a(f's_mul_i32 s{S_T0}, s{S_MH}, 2560')
    a(f's_lshl_b32 s{S_T1}, s{S_NH}, 3')
    a(f's_add_u32 s{S_T0}, s{S_T0}, s{S_T1}')
    a(f'v_mul_u32_u24 v{V_A1}, 80, v{V_I}')
    a(f'v_lshl_add_u32 v{V_A1}, v{V_G}, 4, v{V_A1}')
    a(f'v_add_u32 v{V_A1}, {L_APR}, v{V_A1}')
    a(f'v_add_u32 {u(4)}, s{S_T0}, v{V_A1}')
    a('s_nop 4')
    cmul_pack(V_D)
    for nt in range(2):
        a(f'ds_write_b64 {u(4)}, {vr(V_D+4*nt,2)} offset:{1280*nt}')
        a(f'ds_write_b64 {u(4)}, {vr(V_D+4*nt+2,2)} offset:{L_API-L_APR+1280*nt}')
    a(f's_add_u32 s{S_T0}, s{S_T2}, {O_TW2}')
    for i in range(4):
        a(f'buffer_load_dwordx4 {vr(V_TW+4*i,4)}, v{V_L16}, {tb}, s{S_T0} offen offset:{i*1024}')
    sync(F_SY0)
    a(f's_mul_i32 s{S_T0}, s{S_FW}, 1280')
    a(f'v_add_u32 {u(4)}, s{S_T0}, v{V_A1}')
    a(f'ds_read_b128 {vr(V_D,4)}, {u(4)}')
    a(f'ds_read_b128 {vr(V_D+4,4)}, {u(4)} offset:{L_API-L_APR}')
    lo()
    a('s_waitcnt vmcnt(4) lgkmcnt(0)')
    for mt in range(2):
        mf(V_AC + 8*mt, t2(mt, 0), V_D, 0)
        mf(V_AC + 8*mt + 4, t2(mt, 0), V_D + 4, 0)
    for mt in range(2):
        mf(V_AC + 8*mt, t2(mt, 2), V_D + 4, 1)
        mf(V_AC + 8*mt + 4, t2(mt, 1), V_D, 1)
    hi()
    def unpack(base):
        for part in range(2):
            b = base + 8*part
            for q in range(4):
                a(f'v_lshlrev_b32 v{b+2*q}, 16, v{b+4+q}')
                a(f'v_and_b32 v{b+2*q+1}, 0xffff0000, v{b+4+q}')
    unpack(V_W)
    a(f's_cmp_eq_u32 s{S_F}, 0')
    a('s_cbranch_scc1 KG_SPECIAL')
    for e in range(8):
        mt, r = e >> 2, e & 3
        ar, ai = V_AC + 8*mt + r, V_AC + 8*mt + 4 + r
        c_, s_ = V_W + e, V_W + 8 + e
        uu = V_U + (r & 1) * 2
        a(f'v_mul_f32 v{uu}, v{ar}, v{c_}')
        a(f'v_mul_f32 v{uu+1}, v{ar}, v{s_}')
        a(f'v_fma_f32 v{ar}, -v{ai}, v{s_}, v{uu}')
        a(f'v_fma_f32 v{ai}, v{ai}, v{c_}, v{uu+1}')
    a.label('KG_STEP3')
    for mt in range(2):
        for part in range(2):
            for q in range(2):
                src = V_AC + 8*mt + 4*part + 2*q
                a(f'v_cvt_pk_bf16_f32 v{V_D+4*part+2*mt+q}, v{src}, v{src+1}')
    lo()
    a('s_nop 1')
    for mt in range(2):
        mf(V_AC + 8*mt, V_D, t2(mt, 0), 0)
        mf(V_AC + 8*mt + 4, V_D + 4, t2(mt, 0), 0)
    for mt in range(2):
        mf(V_AC + 8*mt, V_D + 4, t2(mt, 1), 1)
        mf(V_AC + 8*mt + 4, V_D, t2(mt, 2), 1)
    hi()
    a(f'v_mul_u32_u24 v{V_A1}, 144, v{V_I}')
    a(f'v_add_u32 v{V_A1}, {L_CPR}, v{V_A1}')
    a(f's_lshl_b32 s{S_T0}, s{S_FW}, 5')
    a(f'v_lshl_add_u32 {u(4)}, v{V_G}, 3, v{V_A1}')
    a(f'v_add_u32 {u(4)}, s{S_T0}, {u(4)}')
    a('s_waitcnt vmcnt(0)')
    a('s_nop 4')
    cmul_pack(V_D)
    for mt in range(2):
        a(f'ds_write_b64 {u(4)}, {vr(V_D+4*mt,2)} offset:{2304*mt}')
        a(f'ds_write_b64 {u(4)}, {vr(V_D+4*mt+2,2)} offset:{L_CPI-L_CPR+2304*mt}')
    sync(F_SY1)
    a(f's_mul_i32 s{S_T0}, s{S_NH}, 2304')
    a(f'v_lshl_add_u32 {u(4)}, v{V_G}, 4, v{V_A1}')
    a(f'v_add_u32 {u(4)}, s{S_T0}, {u(4)}')
    for part in range(2):
        for ks in range(2):
            a(f'ds_read_b128 {vr(V_D+8*part+4*ks,4)}, {u(4)} offset:{(L_CPI-L_CPR)*part+64*ks}')
    lo()
    a('s_waitcnt lgkmcnt(0)')
    for ks in range(2):
        for nt in range(2):
            mf(V_AC + 8*nt, t1(nt, ks, 0), zr(ks), ks)
            mf(V_AC + 8*nt + 4, t1(nt, ks, 0), zi(ks), ks)
        for nt in range(2):
            mf(V_AC + 8*nt, t1(nt, ks, 1), zi(ks), 1)
            mf(V_AC + 8*nt + 4, t1(nt, ks, 2), zr(ks), 1)
    hi()
    a(f'v_lshlrev_b32 {u(4)}, 7, v{V_I}')
    a(f'v_lshl_add_u32 {u(4)}, v{V_G}, 4, {u(4)}')
    a(f's_lshl_b32 s{S_T0}, s{S_F}, 13')
    a(f's_lshl_b32 s{S_T1}, s{S_NH}, 11')
    a(f's_add_u32 s{S_T0}, s{S_T0}, s{S_T1}')
    a(f's_lshl_b32 s{S_T1}, s{S_MH}, 6')
    a(f's_add_u32 s{S_T0}, s{S_T0}, s{S_T1}')
    a(f's_add_u32 s{S_T0}, s{S_T0}, {WS_Y1T}')
    a(f's_add_u32 s{S_T1}, s{S_T0}, 4096')
    for part in range(2):
        for nt in range(2):
            for q in range(2):
                src = V_AC + 8*nt + 4*part + 2*q
                a(f'v_cvt_pk_bf16_f32 v{V_D+4*part+2*nt+q}, v{src}, v{src+1}')
    for part in range(2):
        a(f'buffer_store_dwordx4 {vr(V_D+4*part,4)}, {u(4)}, {ws}, s{S_T0+part} offen{SC}')
    join_flag(F_J2, 4, WS_FL3)
    stamp(8)
    if E('NOHELP', 0) == 2:
        dump()
        a('s_endpgm')

    AB, AA, LF, FR = 16, 32, 32, 64
    NFR = 14
    AX, FI, FW = 48, 64, 128
    V_DM, V_RA, V_RY, V_OUT, V_GT, V_DW = 120, 121, 122, 123, 124, 125
    S_MI, S_NI = S_CT, S_A
    a(f's_lshr_b32 s{S_MI}, s{S_HW}, 1')
    a(f's_and_b32 s{S_NI}, s{S_HW}, 1')
    srd(a, R_A, S_WO, 512 * 1024)
    srd(a, R_OUT, S_OUT, 2048 * 1024)
    table_srd(a, R_TB, 'TAB_FINV', 512 * 1024, 'fi')
    a(f'v_lshrrev_b32 {u(0)}, 3, v0')
    a(f'v_and_b32 {u(1)}, 7, v0')
    a(f'v_and_b32 {u(2)}, 1, v{V_G}')
    a(f'v_lshlrev_b32 {u(3)}, 2, {u(2)}')
    a(f'v_xor_b32 {u(3)}, {u(3)}, {u(1)}')
    a(f'v_lshlrev_b32 {u(3)}, 4, {u(3)}')
    a(f'v_lshl_add_u32 {u(4)}, {u(0)}, 10, {u(3)}')
    a(f'v_mov_b32 v{V_DW}, {u(4)}')
    a(f's_lshl_b32 s{S_T3}, s{S_HW}, 14')
    a(f'v_lshl_add_u32 v{V_DM}, {u(0)}, 12, {u(3)}')
    a(f'v_and_b32 {u(0)}, 31, v0')
    a(f'v_lshrrev_b32 {u(1)}, 5, v0')
    a(f'v_bfe_u32 {u(3)}, v0, 2, 2')
    a(f'v_and_b32 {u(4)}, 3, v0')
    a(f'v_lshrrev_b32 {u(5)}, 1, {u(4)}')
    a(f'v_and_b32 {u(4)}, 1, {u(4)}')
    a(f'v_lshrrev_b32 {u(6)}, 1, {u(3)}')
    a(f'v_lshlrev_b32 {u(6)}, 2, {u(6)}')
    a(f'v_lshl_add_u32 {u(7)}, {u(4)}, 1, {u(2)}')
    a(f's_lshl_b32 s{S_T0}, s{S_MI}, 2')
    a(f'v_add_u32 {u(7)}, s{S_T0}, {u(7)}')
    a(f'v_xor_b32 {u(7)}, {u(7)}, {u(6)}')
    a(f'v_lshlrev_b32 {u(7)}, 4, {u(7)}')
    a(f'v_lshl_add_u32 {u(7)}, {u(5)}, 3, {u(7)}')
    a(f'v_lshl_add_u32 v{V_RA}, {u(1)}, 2, {u(3)}')
    a(f'v_lshl_add_u32 v{V_RA}, v{V_RA}, 7, {u(7)}')
    a(f'v_lshl_add_u32 {u(7)}, {u(2)}, 1, {u(5)}')
    a(f's_lshl_b32 s{S_T0}, s{S_NI}, 2')
    a(f'v_add_u32 {u(7)}, s{S_T0}, {u(7)}')
    a(f'v_xor_b32 {u(7)}, {u(7)}, {u(6)}')
    a(f'v_lshlrev_b32 {u(7)}, 4, {u(7)}')
    a(f'v_lshl_add_u32 {u(7)}, {u(4)}, 3, {u(7)}')
    a(f'v_lshl_add_u32 v{V_RY}, {u(1)}, 3, {u(3)}')
    a(f'v_lshl_add_u32 v{V_RY}, v{V_RY}, 7, {u(7)}')
    a(f'v_add_u32 v{V_RY}, {L_Y}, v{V_RY}')
    a(f'v_bfe_u32 {u(5)}, {u(0)}, 2, 1')
    a(f'v_lshrrev_b32 {u(6)}, 3, {u(0)}')
    a(f'v_and_b32 {u(7)}, 3, {u(0)}')
    a(f'v_lshl_add_u32 {u(7)}, {u(5)}, 4, {u(7)}')
    a(f'v_lshl_add_u32 {u(7)}, {u(6)}, 2, {u(7)}')
    a(f'v_lshlrev_b32 {u(7)}, 15, {u(7)}')
    a(f'v_lshl_add_u32 {u(7)}, {u(1)}, 5, {u(7)}')
    a(f's_lshl_b32 s{S_T0}, s{S_NI}, 20')
    a(f's_lshl_b32 s{S_T1}, s{S_QG}, 10')
    a(f's_add_u32 s{S_T0}, s{S_T0}, s{S_T1}')
    a(f's_lshl_b32 s{S_T1}, s{S_HG}, 7')
    a(f's_add_u32 s{S_T0}, s{S_T0}, s{S_T1}')
    a(f's_lshl_b32 s{S_T1}, s{S_MI}, 6')
    a(f's_add_u32 s{S_T0}, s{S_T0}, s{S_T1}')
    a(f'v_add_u32 v{V_OUT}, s{S_T0}, {u(7)}')
    a(f'v_lshlrev_b32 v{V_GT}, 2, {u(0)}')
    S_FI = S_KOFF
    a(f's_lshl_b32 s{S_FI}, s{S_HG}, 16')
    a(f's_lshl_b32 s{S_T0}, s{S_MI}, 10')
    a(f's_add_u32 s{S_FI}, s{S_FI}, s{S_T0}')
    def fload(i):
        if i % 2 == 0:
            a(f's_add_u32 s{S_KB}, s{S_FI}, {i*2048}')
        a(f'buffer_load_dwordx4 {vr(FR+4*(i%NFR),4)}, v{V_L16}, {tb}, s{S_KB} offen offset:{(i%2)*2048}')
    for i in range(NFR):
        fload(i)
        thr()
    if FI_TOUCH:
        a(f'v_lshlrev_b32 {u(0)}, 7, v0')
        a(f'v_and_b32 {u(1)}, 0x1c00, {u(0)}')
        a(f'v_add_u32 {u(0)}, {u(0)}, {u(1)}')
        for k in range(3):
            a(f's_add_u32 s{S_KB}, s{S_FI}, {(8+8*k)*2048}')
            a(f'buffer_load_dword v{FW+k}, {u(0)}, {tb}, s{S_KB} offen')
    lds_wait(F_J2, 4, V_U, sleep=2)
    pg_wait(4, 2)
    a(f's_lshl_b32 s{S_T2}, s{S_HW}, 17')
    a(f's_lshl_b32 s{S_T0}, s{S_HG}, 7')
    a(f's_add_u32 s{S_T2}, s{S_T2}, s{S_T0}')
    a(f's_add_u32 s{S_T1}, s{S_T3}, {L_WQ}')
    a(f's_cmp_eq_u32 s{S_HW}, 2')
    a(f's_cselect_b32 s{S_T1}, {L_KW}, s{S_T1}')
    a(f's_cmp_eq_u32 s{S_HW}, 3')
    a(f's_cselect_b32 s{S_T1}, s{S_T3}, s{S_T1}')
    for i in range(16):
        a(f's_add_u32 m0, s{S_T1}, {i*1024}')
        a(f's_add_u32 s{S_T0}, s{S_T2}, {i*8192}')
        a(f'buffer_load_dwordx4 v{V_DW}, {ra}, s{S_T0} offen lds')
        thr()
    a(f's_mov_b32 s{S_T0}, {L_WQ}')
    a(f's_mov_b32 s{S_T1}, {L_WQ + 16384}')
    a(f's_cmp_eq_u32 s{S_MI}, 1')
    a(f's_cselect_b32 s{S_T0}, {L_KW}, s{S_T0}')
    a(f's_cselect_b32 s{S_T1}, 49152, s{S_T1}')
    a(f'v_add_u32 v{LF}, s{S_T0}, v{V_RA}')
    a(f'v_add_u32 v{LF+2}, s{S_T1}, v{V_RA}')
    a(f'v_xor_b32 v{LF+1}, 64, v{LF}')
    a(f'v_xor_b32 v{LF+3}, 64, v{LF+2}')
    a('s_waitcnt vmcnt(0)')
    sync(F_J4)
    def fw(j, t_, o): return FW + 64*t_ + 8*j + 4*o
    for t_ in range(2):
        for j in range(8):
            i = 2*j + t_
            for o in range(2):
                ad = LF + 2*(i >> 3) + o
                a(f'ds_read_b64_tr_b16 {vr(fw(j,t_,o),2)}, v{ad} offset:{(i&7)*2048}')
                a(f'ds_read_b64_tr_b16 {vr(fw(j,t_,o)+2,2)}, v{ad} offset:{(i&7)*2048+1024}')
    a('s_waitcnt lgkmcnt(0)')
    lds_add(F_WR, V_U)
    if TST: stamp(6)
    a(f's_cmp_lg_u32 s{S_HW}, 1')
    a('s_cbranch_scc1 KG_S2W')
    a(f's_mov_b32 s{S_T1}, {WS_FL3}')
    glob_poll('S2', -1, S2_SLEEP)
    a(f'v_mov_b32 {u(1)}, 1')
    a(f'ds_write_b32 v{V_Z}, {u(1)} offset:{4*F_S2OK}')
    a.label('KG_S2W')
    pg_wait(6, 4)
    lds_wait(F_WR, 4, V_U, sleep=4)
    lds_wait(F_S2OK, 1, V_U, sleep=4)
    stamp(9)
    a(f's_lshl_b32 s{S_T2}, s{S_HW}, 19')
    a(f's_lshl_b32 s{S_T0}, s{S_QG}, 7')
    a(f's_add_u32 s{S_T2}, s{S_T2}, s{S_T0}')
    a(f's_add_u32 s{S_T2}, s{S_T2}, {WS_Y1T}')
    for i in range(16):
        a(f's_add_u32 m0, s{S_T3}, {L_Y + i*1024}')
        a(f's_add_u32 s{S_T0}, s{S_T2}, {i*32768}')
        a(f'buffer_load_dwordx4 v{V_DM}, {ws}, s{S_T0} offen{SC} lds')
        thr()
    a(f's_lshl_b32 s{S_T0}, s{S_QG}, 8')
    a(f's_lshl_b32 s{S_T1}, s{S_NI}, 7')
    a(f's_add_u32 s{S_T0}, s{S_T0}, s{S_T1}')
    a(f's_add_u32 s{S_T0}, s{S_T0}, {WS_G}')
    a(f'buffer_load_dword v{V_GT}, v{V_GT}, {ws}, s{S_T0} offen{SC}')
    a('s_waitcnt vmcnt(0)')
    sync(F_J3)
    def lread(i, addr, second):
        a(f'ds_read_b64_tr_b16 {vr(LF+4*(i%8),2)}, v{addr} offset:{i*2048}')
        a(f'ds_read_b64_tr_b16 {vr(LF+4*(i%8)+2,2)}, v{addr} offset:{i*2048+second}')
    if PRI & 2: a('s_setprio 0')
    for i in range(6):
        lread(i, V_RY, 512)
    for i in range(32):
        if i >= NFR:
            a(f's_waitcnt vmcnt({min(31, i+NFR-1)-i}) lgkmcnt({2*min(5, 31-i)})')
        else:
            a(f's_waitcnt lgkmcnt({2*min(5, 31-i)})')
        cc = vr(AB, 16) if i else '0'
        a(f'v_mfma_f32_32x32x16_bf16 {vr(AB,16)}, {vr(FR+4*(i%NFR),4)}, {vr(LF+4*(i%8),4)}, {cc}')
        if i + NFR < 32: fload(i + NFR)
        if i + 6 < 32: lread(i + 6, V_RY, 512)
    if PRI & 2: a('s_setprio 2')
    stamp(10)
    if E('NOHELP', 0) == 3:
        dump()
        a('s_endpgm')
    L_EX = L_X + 49152
    F_EX = F_MM
    a(f's_lshl_b32 s{S_T2}, s{S_QG}, 1')
    a(f's_add_u32 s{S_T2}, s{S_T2}, s{S_NI}')
    a(f's_lshl_b32 s{S_T2}, s{S_T2}, 1')
    a(f's_add_u32 s{S_T2}, s{S_T2}, s{S_MI}')
    a(f's_lshl_b32 s{S_T2}, s{S_T2}, 14')
    SBK = [R_X, R_X+1, R_X+2, R_X+3]
    S_PD = S_P
    for k in range(4):
        a(f's_add_u32 s{SBK[k]}, s{S_T2}, {WS_O + 4096*k}')
    a(f'v_sub_f32 {u(1)}, 1.0, v{V_GT}')
    for i in range(4):
        a(f'v_mov_b32 {u(4+i)}, 0')
    a('s_nop 1')
    for r_ in (AA, AX):
        a(f'v_mfma_f32_32x32x16_bf16 {vr(r_,16)}, {vr(V_U+4,4)}, {vr(V_U+4,4)}, 0')
    for i in range(8):
        a(f'v_pk_mul_f32 {vr(AB+2*i,2)}, {vr(AB+2*i,2)}, {vr(V_U,2)} op_sel:[0,1] op_sel_hi:[1,1]')
    a(f'v_mov_b32 v{V_DM}, v{V_GT}')
    a(f's_lshl_b32 s{S_T0}, s{S_HW}, 2')
    a(f'v_add_u32 v{V_DW}, s{S_T0}, v{V_Z}')
    a(f'v_xor_b32 v{V_GT}, 8, v{V_DW}')
    a(f's_lshl_b32 s{S_T0}, s{S_HW}, 12')
    a(f's_add_u32 s{S_T0}, s{S_T0}, {L_EX}')
    a(f'v_add_u32 v{V_RA}, s{S_T0}, v{V_L16}')
    a(f'v_xor_b32 v{V_RY}, 0x2000, v{V_RA}')
    def oload(p_, t_):
        a(f'buffer_load_dwordx4 {vr(FI+4*p_,4)}, v{V_L16}, {ws}, s{SBK[p_>>1]} offen offset:{(p_%2)*2048+1024*t_}{OLD}')
    def ocheck(p_, t_, k):
        if DRY:
            a(f'v_cmp_ne_u32 vcc, -1, v{FI+4*p_+3}')
            a('s_cmp_eq_u64 vcc, -1')
            a(f's_cbranch_scc0 KG_OC{t_}{k}_{p_}')
        else:
            a(f'v_cmp_eq_u32 vcc, -1, v{FI+4*p_+3}')
            a(f's_cbranch_vccnz KG_OC{t_}{k}_{p_}')
        a(f'v_mfma_f32_32x32x16_bf16 {vr(AX,16)}, {vr(fw(p_,t_,1),4)}, {vr(FI+4*p_,4)}, {vr(AX,16)}')
        a(f'v_mfma_f32_32x32x16_bf16 {vr(AA,16)}, {vr(fw(p_,t_,0),4)}, {vr(FI+4*p_,4)}, {vr(AA,16)}')
        a(f's_bitset0_b32 s{S_PD}, {p_}')
        a.label(f'KG_OC{t_}{k}_{p_}')
    def pend_each(tag, fn):
        for g in range(2):
            a(f's_and_b32 s{S_T0}, s{S_PD}, {hex(0xf << (4*g))}')
            a(f's_cbranch_scc0 KG_OG{tag}_{g}')
            for p_ in range(4*g, 4*g + 4):
                a(f's_bitcmp1_b32 s{S_PD}, {p_}')
                a(f's_cbranch_scc0 KG_OP{tag}_{p_}')
                fn(p_)
                a.label(f'KG_OP{tag}_{p_}')
            a.label(f'KG_OG{tag}_{g}')
    S_PL = S_KH
    a(f's_mov_b32 s{S_PL}, {POLL_LIMIT}')
    if DRY:
        a(f's_cmp_ge_u32 s{S_HW}, {DRY}')
        a('s_cbranch_scc1 KG_OS')
        a(f'v_mov_b32 {u(0)}, 64')
        a(f's_mov_b32 s{S_PL}, 1')
        a('s_mov_b64 exec, 0')
        a('s_branch KG_OS')
        a.label('KG_REAL')
        a('s_mov_b64 exec, -1')
        a(f's_mov_b32 s{S_PL}, {POLL_LIMIT}')
        a.label('KG_OS')
    for t_ in range(2):
        a(f's_movk_i32 s{S_PD}, 0xff')
        a(f's_mov_b32 s{S_CNT}, s{S_PL}')
        if t_ == 0:
            stamp(4)
            lds_wait(F_ADONE, 1, V_U, sleep=4)
            stamp(3)
        elif O1W == 1:
            lds_wait(F_PGW, 10, V_U, sleep=1, addr=V_DW)
            stamp(11)
        elif O1W == 2:
            pg_wait(10, 1)
            stamp(11)
        for p_ in range(8):
            oload(p_, t_)
        for p_ in range(8):
            a(f's_waitcnt vmcnt({7-p_})')
            if TST == 2 and t_ and p_ in (0, 4): stamp(7 if p_ == 0 else 6)
            ocheck(p_, t_, 0)
        if TST and t_: stamp(1)
        a.label(f'KG_OR{t_}')
        a(f's_cmp_eq_u32 s{S_PD}, 0')
        a(f's_cbranch_scc1 KG_OD{t_}')
        a(f's_sub_u32 s{S_CNT}, s{S_CNT}, 1')
        a(f's_cbranch_scc1 KG_OD{t_}')
        sl = O_SLEEP if t_ == 0 else O_SLEEP1
        if sl: a(f's_sleep {sl}')
        pend_each(f'L{t_}', lambda p_: oload(p_, t_))
        a('s_waitcnt vmcnt(0)')
        pend_each(f'C{t_}', lambda p_: ocheck(p_, t_, 1))
        a(f's_branch KG_OR{t_}')
        a.label(f'KG_OD{t_}')
        if t_ == 0: stamp(5)
        elif TST: stamp(2)
    a(f'v_mov_b32 {u(1)}, 1')
    a('s_nop 7')
    for q in range(4):
        a(f'ds_write_b128 v{V_RA}, {vr(AX+4*q,4)} offset:{1024*q}')
    a(f'ds_write_b32 v{V_DW}, {u(1)} offset:{4*F_EX}')
    def ex_reads():
        a(f'ds_read_b32 {u(0)}, v{V_GT} offset:{4*F_EX}')
        for q in range(4):
            a(f'ds_read_b128 {vr(FI+4*q,4)}, v{V_RY} offset:{1024*q}')
    ex_reads()
    for i in range(8):
        a(f'v_pk_fma_f32 {vr(AB+2*i,2)}, {vr(AA+2*i,2)}, {vr(V_DM,2)}, {vr(AB+2*i,2)} op_sel_hi:[1,0,1]')
    if TST == 2: stamp(10)
    a.label('KG_EXL')
    a('s_waitcnt lgkmcnt(4)' if TST != 2 else 's_waitcnt lgkmcnt(0)')
    a(f'v_readfirstlane_b32 s{S_T0}, {u(0)}')
    a(f's_cmp_lg_u32 s{S_T0}, 0')
    a('s_cbranch_scc1 KG_EXD')
    ex_reads()
    a(f's_sub_u32 s{S_LIM}, s{S_LIM}, 1')
    a('s_cbranch_scc0 KG_EXL')
    a.label('KG_EXD')
    if TST == 2: stamp(8)
    for i in range(8):
        if i % 2 == 0: a(f's_waitcnt lgkmcnt({3 - i//2})')
        a(f'v_pk_fma_f32 {vr(AA+2*i,2)}, {vr(FI+2*i,2)}, {vr(V_DM,2)}, {vr(AB+2*i,2)} op_sel_hi:[1,0,1]')
    for i in range(8):
        a(f'v_cvt_pk_bf16_f32 v{LF+i}, v{AA+2*i}, v{AA+2*i+1}')
    for q in range(2):
        a(f'buffer_store_dwordx4 {vr(LF+4*q,4)}, v{V_OUT}, {sr(R_OUT,4)}, 0 offen offset:{16*q}{OUTSC}')
    if DRY: a('s_cbranch_execz KG_REAL')
    if TST == 2: stamp(9)
    dump()
    a('s_endpgm')

    SG, SL, SD = 168, 176, 184
    a.label('KG_SPA')
    a(f's_mov_b32 s{S_T0}, {L_SP}')
    a(f's_mov_b32 s{S_T1}, {L_SPW}')
    for e in range(8):
        k_ = u(4 + (e & 1))
        a(f'v_sub_u32 {k_}, {2048 - 64*(e&3) - 1024*(e>>2)}, v{V_A3}')
        a(f'v_and_b32 {k_}, 2047, {k_}')
        a(f'v_lshl_add_u32 v{SL+e}, {k_}, 2, s{S_T0}')
        a(f'v_lshl_add_u32 v{SG+e}, {k_}, 3, s{S_T1}')
    a('s_branch KG_SPAR')
    a.label('KG_SPB')
    a(f's_mov_b32 s{S_C0}, 0x05040100')
    a(f's_mov_b32 s{S_C0+1}, 0x07060302')
    a(f's_mov_b32 s{S_T1}, {L_SPW}')
    a(f'v_lshl_add_u32 {u(4)}, v{V_A3}, 3, s{S_T1}')
    a('s_waitcnt vmcnt(0)')
    for e in range(8):
        for j, base in enumerate((V_W, V_XX)):
            a(f'v_perm_b32 v{SD+2*e+j}, v{base+12+(e>>1)}, v{base+4+(e>>1)}, s{S_C0+(e&1)}')
        a(f'ds_write_b64 {u(4)}, {vr(SD+2*e,2)} offset:{512*(e&3) + 8192*(e>>2)}')
    a('s_branch KG_SPBR')
    a.label('KG_SPECIAL')
    for e in range(8):
        a(f'ds_read_b64 {vr(SD+2*e,2)}, v{SG+e}')
    a(f'v_lshlrev_b32 {u(4)}, 2, v{V_A3}')
    a(f'v_add_u32 {u(6)}, {L_SP}, {u(4)}')
    for e in range(8):
        mt, r = e >> 2, e & 3
        a(f'ds_write2st64_b32 {u(6)}, v{V_AC+8*mt+r}, v{V_AC+8*mt+4+r} offset0:{16*mt+r} offset1:{32+16*mt+r}')
    a(f'v_mov_b32 {u(0)}, 1')
    a('s_waitcnt lgkmcnt(0)')
    a('s_mov_b64 exec, 1')
    a(f'ds_add_u32 v{V_Z}, {u(0)} offset:{4*F_SY2}')
    a('s_mov_b64 exec, -1')
    unpack(V_XX)
    for e in range(8):
        a0r, a0i, a1r, a1i = V_W + e, V_W + 8 + e, V_XX + e, V_XX + 8 + e
        b0r, b0i, b1r, b1i = SD + 16, SD + 2*e, SD + 17, SD + 2*e + 1
        a(f'v_lshlrev_b32 v{b0r}, 16, v{b0i}')
        a(f'v_lshlrev_b32 v{b1r}, 16, v{b1i}')
        a(f'v_and_b32 v{b0i}, 0xffff0000, v{b0i}')
        a(f'v_and_b32 v{b1i}, 0xffff0000, v{b1i}')
        a(f'v_add_f32 v{b0r}, v{a0r}, v{b0r}')
        a(f'v_sub_f32 v{b0i}, v{a0i}, v{b0i}')
        a(f'v_add_f32 v{b1r}, v{a1r}, v{b1r}')
        a(f'v_sub_f32 v{b1i}, v{a1i}, v{b1i}')
        a(f'v_add_f32 v{a0r}, v{b0r}, v{b1r}')
        a(f'v_add_f32 v{a0i}, v{b0i}, v{b1i}')
        a(f'v_sub_f32 v{a1r}, v{b0r}, v{b1r}')
        a(f'v_sub_f32 v{a1i}, v{b0i}, v{b1i}')
    lds_wait(F_SY2, 4, V_U, sleep=1)
    for e in range(8):
        a(f'ds_read2st64_b32 {vr(V_D+2*e,2)}, v{SL+e} offset0:0 offset1:32')
    a(f's_mov_b32 s{S_T0}, {f32_bits(0.125)}')
    for e in range(8):
        mt, r = e >> 2, e & 3
        zr_, zi_ = V_AC + 8*mt + r, V_AC + 8*mt + 4 + r
        pr, pi_, mr, mi = V_W + e, V_W + 8 + e, V_XX + e, V_XX + 8 + e
        znr, zni = V_D + 2*e, V_D + 2*e + 1
        rr, ri = SD + 2*e, SD + 2*e + 1
        a(f'v_mul_f32 v{rr}, v{zr_}, v{pr}')
        a(f'v_mul_f32 v{ri}, v{zr_}, v{pi_}')
        a(f'v_fma_f32 v{rr}, -v{zi_}, v{pi_}, v{rr}')
        a(f'v_fma_f32 v{ri}, v{zi_}, v{pr}, v{ri}')
        a(f's_waitcnt lgkmcnt({7-e})')
        a(f'v_fma_f32 v{rr}, v{znr}, v{mr}, v{rr}')
        a(f'v_fma_f32 v{ri}, v{znr}, v{mi}, v{ri}')
        a(f'v_fma_f32 v{rr}, v{zni}, v{mi}, v{rr}')
        a(f'v_fma_f32 v{ri}, -v{zni}, v{mr}, v{ri}')
        a(f'v_mul_f32 v{zr_}, s{S_T0}, v{rr}')
        a(f'v_mul_f32 v{zi_}, s{S_T0}, v{ri}')
    a('s_branch KG_STEP3')
    a.label('KG_END')
    a('s_endpgm')
    return 256, (102 if ST in (5, 6, 7) else NS)

def build_g(path):
    a = Asm()
    hdr = open(f'cdna_kernels/{NAME}.s.ref').read().split('\n')
    for l in hdr:
        if l.startswith(';') and '@launch' not in l and 'Override launch' not in l and 'grid=ceil' not in l:
            a.raw(l)
    kn = NAME + '_kernel'
    if E('PLAIN', 0):
        a.raw(f'; @launch grid=(256,1,1) block=(512,1,1) lds={KG_LDS}')
    else:
        a.raw(f'; @launch kernel={kn} grid=(256,1,1) block=(512,1,1) lds={KG_LDS}')
    a.raw('.amdgcn_target "amdgcn-amd-amdhsa--gfx950"')
    a.raw('.text')
    v, s = gen_g(a, kn)
    a.raw('.section .rodata,"a"')
    kernel_desc(a, kn, v, s)
    gen_tables(a)
    gen_k2.gen_tables_k2(a)
    gen_k3.gen_tables_k3(a)
    open(path, 'w').write(a.text())

if __name__ == '__main__':
    build_g(sys.argv[1] if len(sys.argv) > 1 else 'j.s')
```

```python
from gen import *
import gen_k2, gen_k3
from gen_k2 import YSCALE
import os

WS_ROOT = int(os.environ.get('WS_ROOT', '0x240000'), 0)
WS_FL1 = 0x244000
WS_FL2 = 0x248000
WS_FL3 = 0x24C000
WS_FL4 = 0x260000
TAG_M, TAG_C = 0x9E3779B1, 0x7F4A7C15
WS_XC = 0x250000
FORCE_GL = int(os.environ.get('FORCE_GL', '0'))
WS_KVT = int(os.environ.get('WS_KVT', '0x280000'), 0)

L_X = 0
L_WQ = 65536
L_FLAG = 131072
L_KW = L_FLAG + 256
L_GATE = L_KW + 16384
KG_LDS = 163840
L_APR = L_KW; L_API = L_APR + 5120
L_CPR = L_API + 5120; L_CPI = L_CPR + 4608
L_MX = L_KW
L_MXM = L_KW + 20480
assert L_CPI + 4608 <= L_MXM and L_MX + 8 * 2304 <= L_MXM and L_MXM + 4096 <= KG_LDS and L_GATE + 1024 <= L_MXM
L_SP = L_WQ
L_SPW = L_X + 49152
L_WO = L_X
L_EX = L_X + 49152
L_Y = L_WQ
F_CX, F_CW = 0, 1
F_CC, F_MG, F_MM, F_PG, F_QX = 0, 8, 16, 40, 48
L_QX = L_GATE + 1024
assert L_QX + 8192 <= KG_LDS
F_N, F_TAG, F_QDONE, F_J1, F_S1OK, F_SY0, F_SY1, F_SY2, F_J2, F_S2OK, F_J3, F_TAGOK, F_ADONE, F_J4, F_KVS, F_GI, F_PRE = range(24, 41)
F_PRE = 2
F_EX = F_MM
F_PGW = 8
F_KX = 15
F_WR = 3
F_LOC = 14
F_POS, F_H2 = 12, 13
L_PRE = L_KW
NWAVE = 8
WS_G = 0x230000
E = lambda k, d: int(os.environ.get(k, str(d)))
LOAD_D = E('LOAD_D', 6)
KV_SLEEP = E('KV_SLEEP', 4)
O_SLEEP = E('O_SLEEP', 0)
THR = E('THR', 15)
LD_PRE = {'X': E('LD_PREX', 0), 'W': E('LD_PREW', 0)}
KV_BAR = E('KV_BAR', 15)
FAIR = E('FAIR', 1)
KV_LAG = E('KV_LAG', 0)
TF_LAG = E('TF_LAG', 2)
WT_LAG = E('WT_LAG', 8)
G_DELAY = E('G_DELAY', 16)
Q7_SLEEP = E('Q7_SLEEP', 0)
H2_PD = E('H2_PD', 12)
KVSC = ' sc1' if E('KVSC1', 0) else ''
OSC = ' sc1' if E('OSC1', 0) else ''
SC = ' sc1'
POLL_LIMIT = 1 << 18
NSTAMP = 12
OF_STEP = E('OF_STEP', 10)
O1W = E('O1W', 1)
FI_TOUCH = E('FI_TOUCH', 0)
T2 = E('T2', 1)
ROT = E('ROT', 3)
KVL = E('KVL', 1)
DRY = E('DRY', 0)
QP = E('QP', 1)
QSL = E('QSL', 0)
IST = E('IST', 0)
PTOP = E('PTOP', 0)
PMOD = E('PMOD', 8)
PSC = E('PSC', 1)
EB = E('EB', 3)
F_GO = 41
VCH = E('VCH', 0)
OLD = {0: ' sc1', 1: ' nt', 2: ' sc0 sc1', 3: ' sc0 nt'}[E('OLD', 0)]
XS = E('XS', 0)
LOCSC = {0: '', 1: ' nt', 2: ' sc0', 3: ' sc0 nt'}[E('LOCSC', 1)]
LOCSE = {0: '', 1: ' nt', 2: ' sc0', 3: ' sc0 nt', 4: ' sc1'}[E('LOCSE', 4)]
O_SLEEP1 = E('O_SLEEP1', 0)
NFO = E('NFO', 10)
TST = E('TST', 0)
OST = '' if E('OPLAIN', 0) else ' sc1'
S1_SLEEP = E('S1_SLEEP', 4)
S2_SLEEP = E('S2_SLEEP', 8)
SPSC = ' sc1' if E('SPSC1', 0) else ''
KP_DELAY = E('KP_DELAY', 0)
PEEL_B = E('PEEL_B', 4)
PRI = E('PRI', 7)
LST = E('LST', 0)
G_EARLY = E('G_EARLY', 3)
G_TRIG = E('G_TRIG', 7)
QPIPE = E('QPIPE', 3)
if QPIPE == 3: QP = 0
EPOLL = E('EPOLL', 8)
TOUCH = E('TOUCH', 0)
FST = E('FST', 0)
PRET = E('PRET', 3)
UNR = E('UNR', 1)
BST = E('BST', 0)
HTB = E('HTB', 1)
PKM = E('PKM', 1)
O_AD = 24576 + 6144 + 32768
PEND = E('PEND', 1)
PFP = E('PFP', 63)
PFK = E('PFK', 0x2e)
GST = E('GST', 0)
OUTSC = {0: '', 1: ' sc1', 2: ' nt', 3: ' sc0 sc1', 4: ' sc1 nt'}[E('OUTSC', 2)]

def gen_g(a, name):
    kernel_header(a, name)
    S_X, S_WQ, S_WK, S_WV, S_WO, S_WS, S_WR, S_WI, S_GT, S_OUT = 4, 6, 8, 10, 12, 14, 16, 18, 20, 22
    R_X, R_WS, R_A, R_B, R_TB, R_OUT = 24, 28, 32, 36, 40, 44
    S_W, S_QG, S_HG, S_T0, S_T1, S_T2, S_T3, S_CNT, S_KOFF, S_KB, S_P, S_KH = 48, 49, 50, 51, 52, 53, 54, 55, 56, 57, 58, 59
    S_VM = 60; S_C0 = 62; S_C1 = 64
    S_CT, S_A, S_F, S_HW, S_MH, S_NH, S_SEEN, S_LIM, S_TAG = 3, 66, 67, 68, 69, 70, 71, 72, 73
    NS = 74
    SB = 74
    ws = sr(R_WS, 4); xs = sr(R_X, 4); ra = sr(R_A, 4); rb_ = sr(R_B, 4); tb = sr(R_TB, 4)
    TM = 's_memrealtime' if ST in (5, 7) else 's_memtime'
    duid = [0]
    def stamp(i, f=0):
        if IST and i in (3, 4, 5) : return
        if FST and (i >= 7) != bool(f):
            if i >= 7 or f: return
        if f and not FST: return
        if ST in (5, 6, 7):
            a(f'{TM} s[{SB+2*i}:{SB+1+2*i}]')
    def dump(kind=0):
        n = NSTAMP
        if ST == 7:
            duid[0] += 1
            a('s_waitcnt vmcnt(0)')
            a(f'{TM} s[{SB+2*n}:{SB+1+2*n}]')
            a(f's_load_dwordx2 s[{R_A}:{R_A+1}], s[0:1], 80')
            a(f's_mov_b32 s{R_A+2}, 256')
            a(f's_mov_b32 s{R_A+3}, 0x20000')
            a('s_waitcnt lgkmcnt(0)')
            a('s_mov_b64 exec, 1')
            a('v_mov_b32 v0, 0')
            a(f's_cmp_lg_u32 s{S_W}, {4 if kind else 0}')
            a(f's_cbranch_scc1 KG_DD{duid[0]}')
            if kind:
                a(f's_not_b32 s{S_T0}, s{SB}')
                a(f'v_mov_b32 v2, s{S_T0}')
                a(f'buffer_atomic_umax v2, v0, {ra}, 0 offen offset:0')
                L = [(2, 0), (3, 2), (4, 3), (5, 4), (6, 5), (7, 12)]
            else:
                a(f'v_mov_b32 v2, s{SB+24}')
                a(f'buffer_atomic_umax v2, v0, {ra}, 0 offen offset:4')
                L = [(8, 3), (9, 5), (10, 6), (11, 7), (12, 8), (13, 9), (14, 11), (15, 12)]
            for k, (sl, st_) in enumerate(L):
                a(f'v_mov_b32 v{3+k}, s{SB+2*st_}')
                a(f'buffer_atomic_add v{3+k}, v0, {ra}, 0 offen offset:{4*sl}')
            a.label(f'KG_DD{duid[0]}')
        if ST in (5, 6):
            a('s_waitcnt vmcnt(0)')
            a(f'{TM} s[{SB+2*n}:{SB+1+2*n}]')
            a('s_mov_b64 exec, 1')
            a(f's_lshl_b32 s{S_T0}, s2, 4')
            a(f's_add_u32 s{S_T0}, s{S_T0}, s{S_W}')
            a(f's_lshl_b32 s{S_T0}, s{S_T0}, 6')
            a(f's_add_u32 s{S_T0}, s{S_T0}, {0xC00000}')
            a('s_waitcnt lgkmcnt(0)')
            a(f's_mov_b32 s{R_WS+2}, 0x1000000')
            a('v_mov_b32 v0, 0')
            if LST and kind:
                a('s_mov_b64 exec, 0xffff')
                a('v_mbcnt_lo_u32_b32 v3, -1, 0')
                a('v_lshlrev_b32 v3, 2, v3')
                a(f'v_add_u32 v3, 0x100000, v3')
                a(f'buffer_store_dword v{192+23}, v3, {ws}, s{S_T0} offen')
                a('s_mov_b64 exec, 1')
            for i in range(n + 1):
                a(f'v_mov_b32 v2, s{SB+2*i}')
                a(f'buffer_store_dword v2, v0, {ws}, s{S_T0} offen offset:{4*i}')
                a('s_nop 1')

    a('s_cmp_ge_u32 s2, 256')
    a('s_cbranch_scc1 KG_END')
    if ST in (5, 6, 7):
        for i in range(NSTAMP + 1):
            a(f's_mov_b32 s{SB+2*i}, 0')
    stamp(0)
    if EB in (1, 2):
        a('v_cmp_gt_u32 vcc, 0x100, v0')
        a('s_cbranch_vccnz KG_A1')
        a('v_and_b32 v8, 63, v0')
        a('v_lshlrev_b32 v8, 2, v8')
        a(f'v_add_u32 v8, {L_FLAG}, v8')
        a('v_mov_b32 v9, 0')
        a('ds_write_b32 v8, v9')
        a('s_waitcnt lgkmcnt(0)')
        a('s_barrier')
        a.label('KG_A1')
    a(f's_load_dwordx8 s[{S_X}:{S_X+7}], s[0:1], 0')
    a(f's_load_dwordx2 s[{S_WS}:{S_WS+1}], s[0:1], 88')
    a(f's_load_dwordx4 s[{S_GT}:{S_GT+3}], s[0:1], 64')
    a(f's_load_dwordx2 s[{S_WO}:{S_WO+1}], s[0:1], 32')
    a(f's_load_dwordx4 s[{S_WR}:{S_WR+3}], s[0:1], 48')
    if PTOP:
        PL = PTOP
        a('v_cmp_gt_u32 vcc, 0x100, v0')
        a('s_cbranch_vccnz KG_P1')
        a(f's_getpc_b64 s[{R_A}:{R_A+1}]')
        a.label('KG_PC')
        if PSC:
            a('v_bfe_u32 v212, v0, 6, 2')
            a(f's_lshr_b32 s{S_T0}, s2, 3')
            a(f'v_readfirstlane_b32 s{S_T1}, v212')
            a(f's_and_b32 s{S_T0}, s{S_T0}, {PMOD - 1}')
            a(f's_lshl2_add_u32 s{S_T0}, s{S_T0}, s{S_T1}')
            a(f's_mul_i32 s{S_T0}, s{S_T0}, {128*PL}')
            a(f's_min_u32 s{S_T0}, s{S_T0}, KG_END-KG_PC-{128*PL}')
            a(f's_add_u32 s{R_A}, s{R_A}, s{S_T0}')
            a(f's_addc_u32 s{R_A+1}, s{R_A+1}, 0')
            for k in range(PL * PSC):
                a(f's_load_dword s{R_B}, s[{R_A}:{R_A+1}], {128*k//PSC}')
        else:
            a(f's_mov_b32 s{R_A+2}, KG_END-KG_PC')
            a(f's_mov_b32 s{R_A+3}, 0x20000')
            a(f's_lshr_b32 s{S_T0}, s2, 3')
            a(f's_and_b32 s{S_T0}, s{S_T0}, {PMOD - 1}')
            a(f's_mul_i32 s{S_T0}, s{S_T0}, {512*PL}')
            a('v_bfe_u32 v212, v0, 6, 2')
            a('v_and_b32 v213, 63, v0')
            a(f'v_mad_u32_u24 v212, v212, {PL}, v213')
            a('v_lshlrev_b32 v212, 7, v212')
            a(f's_mov_b64 exec, {hex((1 << PL) - 1)}')
            a(f'buffer_load_dword v213, v212, {ra}, s{S_T0} offen')
            a('s_mov_b64 exec, -1')
        if EB == 3: a('s_barrier')
        a.label('KG_P1')
    a('v_lshrrev_b32 v1, 6, v0')
    a('v_and_b32 v0, 63, v0')
    a(f's_and_b32 s{S_T0}, s2, 7')
    a(f'v_readfirstlane_b32 s{S_W}, v1')
    a(f's_lshl_b32 s{S_T0}, s{S_T0}, 2')
    a(f's_lshr_b32 s{S_QG}, s2, 6')
    a(f's_add_u32 s{S_QG}, s{S_QG}, s{S_T0}')
    a(f's_bfe_u32 s{S_HG}, s2, 0x30003')
    if E('HGX', 0): a(f's_xor_b32 s{S_HG}, s{S_HG}, {E("HGX", 0)}')
    a(f's_mov_b32 s{S_LIM}, {1<<21}')
    S_ROT = S_F
    if ROT == 1:
        a(f's_lshl_b32 s{S_ROT}, s{S_HG}, 7')
    elif ROT == 2:
        a(f's_lshr_b32 s{S_ROT}, s2, 5')
        a(f's_and_b32 s{S_ROT}, s{S_ROT}, 6')
        a(f's_add_u32 s{S_ROT}, s{S_ROT}, s{S_HG}')
        a(f's_and_b32 s{S_ROT}, s{S_ROT}, 7')
        a(f's_lshl_b32 s{S_ROT}, s{S_ROT}, 7')
    elif ROT == 3:
        a(f's_lshr_b32 s{S_ROT}, s2, 6')
        a(f's_lshl_b32 s{S_ROT}, s{S_ROT}, 8')
    V_Z = 7
    a(f'v_mov_b32 v{V_Z}, {L_FLAG}')
    V_I, V_G, V_L16, V_A1, V_A2, V_A3 = 1, 2, 3, 4, 5, 6
    V_U = 8
    u = lambda i: f'v{V_U+i}'
    KX, KW, KA = 16, 80, 144
    S_RB, S_TY, S_KQ = S_P, S_KH, S_KB
    a(f'v_and_b32 v{V_I}, 15, v0')
    a(f'v_lshrrev_b32 v{V_G}, 4, v0')
    a(f'v_lshlrev_b32 v{V_L16}, 4, v0')
    a(f's_mov_b32 s{S_HW}, s{S_W}')
    if EB == 1:
        a(f's_sub_u32 s{S_T0}, s{S_W}, 1')
        a(f's_cmp_lt_u32 s{S_T0}, 3')
        a('s_cbranch_scc0 KG_A2')
        a('s_barrier')
        a.label('KG_A2')
    a(f's_cmp_lg_u32 s{S_W}, 0')
    a('s_cbranch_scc1 KG_N0')
    a('s_setprio 2')
    if EB in (1, 2):
        a(f'v_mov_b32 v{KA+12}, 1')
    else:
        a(f'v_lshl_add_u32 {u(1)}, v0, 2, v{V_Z}')
        a(f'v_mov_b32 {u(2)}, 0')
        a(f'ds_write_b32 {u(1)}, {u(2)}')
    def xaddr():
        a(f'v_lshrrev_b32 {u(0)}, 3, v0')
        a(f'v_and_b32 {u(1)}, 7, v0')
        a(f'v_lshrrev_b32 {u(2)}, 2, {u(0)}')
        a(f'v_and_b32 {u(3)}, 3, {u(0)}')
        a(f'v_lshl_add_u32 {u(2)}, {u(2)}, 4, {u(3)}')
        a(f'v_lshlrev_b32 {u(2)}, 15, {u(2)}')
        a(f's_lshl_b32 s{S_T0}, s{S_QG}, 10')
        a(f'v_add_u32 {u(2)}, s{S_T0}, {u(2)}')
        a(f'v_xor_b32 {u(3)}, v{V_G}, {u(1)}')
        a(f'v_lshl_add_u32 {u(4)}, {u(3)}, 4, {u(2)}')
        a(f'v_xor_b32 {u(3)}, 4, {u(3)}')
        a(f'v_lshl_add_u32 {u(5)}, {u(3)}, 4, {u(2)}')
        a(f'v_add_u32 {u(5)}, {131072 - 1024}, {u(5)}')
    def xpair(sd, sl, sp):
        a(f's_lshr_b32 s{sd}, s{sp}, 1')
        a(f's_lshl_b32 s{sd}, s{sd}, 20')
        a(f's_and_b32 s{sl}, s{sp}, 1')
        a(f's_lshl_b32 s{sl}, s{sl}, 18')
        a(f's_add_u32 s{sd}, s{sd}, s{sl}')
        if ROT: a(f's_add_u32 s{sd}, s{sd}, s{S_ROT}')
        a(f's_lshl_b32 s{sl}, s{sp}, 11')
    a(f's_lshr_b32 s{S_RB}, s{S_HG}, 1')
    a(f's_and_b32 s{S_TY}, s{S_HG}, 1')
    xaddr()
    xpair(S_T2, S_T3, S_RB)
    a(f's_mov_b32 s{R_A+2}, 16384')
    a(f's_mov_b32 s{R_A+3}, 0x20000')
    a(f's_mov_b32 s{R_X+2}, {2048 * 1024}')
    a(f's_mov_b32 s{R_X+3}, 0x20000')
    a(f's_mov_b32 m0, s{S_T3}')
    a(f's_cmp_eq_u32 s{S_TY}, 1')
    if EB == 1: a('s_barrier')
    if IST: stamp(7, 1)
    a('s_waitcnt lgkmcnt(0)')
    if not GST: stamp(8, 1)
    a(f's_cselect_b64 s[{R_A}:{R_A+1}], s[{S_WV}:{S_WV+1}], s[{S_WK}:{S_WK+1}]')
    def touch():
        S_I, S_J, S_K = S_CNT, S_KOFF, S_SEEN
        a(f's_lshr_b32 s{S_I}, s2, 3')
        srd(a, R_TB, S_WQ, 512 * 1024)
        a(f'v_lshlrev_b32 {u(6)}, 7, v0')
        a(f's_lshl_b32 s{S_J}, s{S_I}, 14')
        a(f's_add_u32 s{S_K}, s{S_J}, 8192')
        a(f'buffer_load_dword v{KA+16}, {u(6)}, {tb}, s{S_J} offen')
        a(f'buffer_load_dword v{KA+17}, {u(6)}, {tb}, s{S_K} offen')
        a(f'v_and_b32 {u(7)}, 32, v0')
        a(f'v_lshlrev_b32 {u(7)}, 10, {u(7)}')
        a(f'v_and_b32 {u(6)}, 0xfff, {u(6)}')
        a(f'v_add_u32 {u(7)}, {u(7)}, {u(6)}')
        a(f's_and_b32 s{S_K}, s2, 7')
        a(f's_lshl_b32 s{S_K}, s{S_K}, 12')
        a(f's_lshl_b32 s{S_J}, s{S_I}, 16')
        a(f's_add_u32 s{S_K}, s{S_K}, s{S_J}')
        a(f'buffer_load_dword v{KA+18}, {u(7)}, {xs}, s{S_K} offen')
    a(f's_mov_b64 s[{R_X}:{R_X+1}], s[{S_X}:{S_X+1}]')
    if TOUCH == 2: touch()
    for c in range(8):
        if c:
            a(f's_add_u32 m0, s{S_T3}, {c*8192}')
            a(f's_add_u32 s{S_T2}, s{S_T2}, 128')
            if ROT: a(f's_bitset0_b32 s{S_T2}, 10')
        a(f'buffer_load_dwordx4 {u(4)}, {xs}, s{S_T2} offen lds')
        a(f'buffer_load_dwordx4 {u(5)}, {xs}, s{S_T2} offen offset:1024 lds')
        if c == 0 and not GST: stamp(10, 1)
    for q in range(4):
        a(f's_mov_b32 m0, {L_KW + q*4096}')
        if ROT == 3:
            if q == 0: a(f's_lshl_b32 s{S_T0}, s{S_ROT}, 4')
            else:
                a(f's_add_u32 s{S_T0}, s{S_T0}, 4096')
                a(f's_bitset0_b32 s{S_T0}, 14')
        else:
            a(f's_movk_i32 s{S_T0}, {q*4096}')
        for j in range(4):
            a(f'buffer_load_dwordx4 v{V_L16}, {ra}, s{S_T0} offen offset:{j*1024} lds')
    srd(a, R_B, S_GT, 1024)
    a(f's_mov_b32 m0, {L_GATE}')
    a(f's_lshr_b32 s{S_T2}, s2, 3')
    if ROT == 3:
        a(f'v_add_u32 {u(6)}, s{S_ROT}, v{V_L16}')
        a(f'v_and_b32 {u(6)}, 0x3ff, {u(6)}')
        a(f'buffer_load_dwordx4 {u(6)}, {rb_}, 0 offen lds')
    else:
        a(f'buffer_load_dwordx4 v{V_L16}, {rb_}, 0 offen lds')
    if TOUCH == 1: touch()
    if not GST: stamp(11, 1)
    if EB == 2: a('s_barrier')
    if EB in (1, 2): a(f'ds_write_b32 v{V_Z}, v{KA+12} offset:{4*F_GO}')
    else: a('s_barrier')
    stamp(1)
    a('s_branch KG_KV')
    a.label('KG_N0')
    if IST: a(f'{TM} s[{SB+2*3}:{SB+1+2*3}]')
    a(f's_cmp_lt_u32 s{S_W}, 4')
    a('s_cbranch_scc1 KG_N1')
    if PTOP: pass
    elif PRET >= 2:
        PL = {2: 4, 3: 8, 4: 16}[PRET]
        a(f's_getpc_b64 s[{R_A}:{R_A+1}]')
        a.label('KG_PC')
        a(f's_mov_b32 s{R_A+2}, KG_END-KG_PC')
        a(f's_mov_b32 s{R_A+3}, 0x20000')
        a(f's_lshr_b32 s{S_T0}, s2, 3')
        a(f's_lshl_b32 s{S_T0}, s{S_T0}, 2')
        a(f's_add_u32 s{S_T0}, s{S_T0}, s{S_W}')
        a(f's_mul_i32 s{S_T0}, s{S_T0}, {128*PL}')
        a(f's_and_b32 s{S_T0}, s{S_T0}, 0xffff')
        a(f'v_lshlrev_b32 v212, 7, v0')
        a(f's_mov_b64 exec, {hex((1 << PL) - 1)}')
        a(f'buffer_load_dword v213, v212, {ra}, s{S_T0} offen')
        a('s_mov_b64 exec, -1')
    elif PRET:
        a(f's_getpc_b64 s[{R_A}:{R_A+1}]')
        a.label('KG_PC')
        a(f's_mov_b32 s{R_A+2}, KG_END-KG_PC')
        a(f's_mov_b32 s{R_A+3}, 0x20000')
        a(f's_lshl_b32 s{S_T0}, s{S_W}, 13')
        a(f's_sub_u32 s{S_T1}, s{S_T0}, 0x8000')
        a(f'v_lshlrev_b32 v212, 7, v0')
        a(f'buffer_load_dword v213, v212, {ra}, s{S_T1} offen')
        a(f'buffer_load_dword v214, v212, {ra}, s{S_T0} offen')
    if EB == 3 and not PTOP: a('s_barrier')
    a('s_branch KG_ATT')
    a.label('KG_N1')
    a('s_setprio 2')
    a(f's_cmp_lg_u32 s{S_W}, 1')
    a('s_cbranch_scc1 KG_N2')
    a(f's_mov_b32 s{S_T3}, {WS_ROOT}')
    a(f'v_mov_b32 {u(2)}, 0')
    a('s_waitcnt lgkmcnt(0)')
    srd(a, R_WS, S_WS, WS_SIZE)
    a(f'buffer_load_dword {u(3)}, {u(2)}, {ws}, s{S_T3} offen{SC}')
    if IST: a(f'{TM} s[{SB+2*4}:{SB+1+2*4}]')
    if EB != 1: a('s_barrier')
    stamp(1)
    a('s_branch KG_TAG')
    a.label('KG_N2')
    if IST: a(f'{TM} s[{SB+2*4}:{SB+1+2*4}]')
    S_O, S_L = S_P, S_P + 4
    assert S_O + 8 <= S_A
    S_PV = S_NH
    LK = LOAD_D // 2
    assert L_X == 0 and 1 <= LK <= 7
    LKS = {'X': E('LKX', LK), 'W': E('LKW', 2)}
    a(f's_mov_b32 s{S_PV}, {-LKS["X"]}')
    if VCH: a(f's_mov_b32 s{S_MH}, 0')
    a(f's_mov_b32 s{R_A+3}, 0x20000')
    a(f's_cmp_eq_u32 s{S_HW}, 3')
    a('s_cbranch_scc1 KG_LDW')
    S_ANN, S_VA, S_VB = S_MH, S_T0, S_T3
    cuid = [0]
    def announce(flag, first, k):
        a(f's_cmp_le_i32 s{S_VA}, s{S_ANN}')
        a(f's_cbranch_scc1 KG_CE{k}')
        a(f's_mov_b32 s{S_ANN}, s{S_VA}')
        a(f'v_mov_b32 {u(6)}, s{S_VA}')
        if first: first(k)
        a(f'ds_write_b32 v{V_Z}, {u(6)} offset:{4*flag}')
        a.label(f'KG_CE{k}')
    def chk(n, ki, flag, first=None):
        if not VCH: return
        cuid[0] += 1; k = cuid[0]
        a(f's_cmp_lt_i32 s{S_PV}, {E("VMIN", 3) - LK}')
        a(f's_cbranch_scc1 KG_CE{k}')
        a(f's_getreg_b32 s{S_VA}, hwreg(HW_REG_IB_STS, 0, 24)')
        a(f's_lshr_b32 s{S_VB}, s{S_VA}, 18')
        a(f's_and_b32 s{S_VA}, s{S_VA}, 15')
        a(f's_and_b32 s{S_VB}, s{S_VB}, 0x30')
        a(f's_or_b32 s{S_VB}, s{S_VB}, s{S_VA}')
        js = list(range(LK - (1 if ki == n else 0), 0, -1))
        a(f's_cmp_gt_u32 s{S_VB}, {n*(js[0]-1)+ki}')
        a(f's_cbranch_scc1 KG_CE{k}')
        for j in js:
            a(f's_add_i32 s{S_VA}, s{S_PV}, {LK-j}')
            a(f's_waitcnt vmcnt({n*(j-1)+ki})')
            if j > 1:
                a(f's_cmp_gt_u32 s{S_VB}, {n*(j-2)+ki}')
                a(f's_cbranch_scc1 KG_CW{k}')
        a.label(f'KG_CW{k}')
        announce(flag, first, k)
    def ld_tail(tag, n, flag, first=None):
        LK = LKS[tag]
        if VCH:
            chk(n, n, flag, first)
            a(f's_cmp_le_i32 s{S_PV}, 0')
            a(f's_cbranch_scc1 KG_LL{tag}')
            cuid[0] += 1
            a(f's_mov_b32 s{S_VA}, s{S_PV}')
            a(f's_waitcnt vmcnt({n*LK})')
            announce(flag, first, cuid[0])
            stamp(9, 1)
            if FST:
                a(f's_cmp_lg_u32 s{S_PV}, 1')
                a(f's_cbranch_scc1 KG_FS{tag}')
                stamp(7, 1)
                a.label(f'KG_FS{tag}')
            a(f's_cmp_lt_i32 s{S_PV}, {8-LK}')
            a(f's_cbranch_scc1 KG_LL{tag}')
            for j in range(LK):
                cuid[0] += 1
                a(f's_mov_b32 s{S_VA}, {8-LK+1+j}')
                a(f's_waitcnt vmcnt({n*(LK-1-j)})')
                announce(flag, None, cuid[0])
                if j < 2: stamp(10 + j, 1)
            a('s_branch KG_H2B')
            return
        LK = LKS[tag]
        if LD_PRE[tag]:
            a(f's_cmp_lg_i32 s{S_PV}, {LD_PRE[tag]-LK}')
            a(f's_cbranch_scc1 KG_LB{tag}')
            a('s_barrier')
            stamp(1)
            a.label(f'KG_LB{tag}')
        a(f'v_mov_b32 {u(6)}, s{S_PV}')
        a(f's_cmp_le_i32 s{S_PV}, 0')
        a(f's_cbranch_scc1 KG_LL{tag}')
        if first: first(0)
        a(f's_waitcnt vmcnt({n*LK})')
        a(f'ds_write_b32 v{V_Z}, {u(6)} offset:{4*flag}')
        stamp(9, 1)
        if FST:
            a(f's_cmp_lg_u32 s{S_PV}, 1')
            a(f's_cbranch_scc1 KG_FS{tag}')
            stamp(7, 1)
            a.label(f'KG_FS{tag}')
        a(f's_cmp_lt_i32 s{S_PV}, {8-LK}')
        a(f's_cbranch_scc1 KG_LL{tag}')
        for j in range(LK):
            a(f'v_mov_b32 {u(6)}, {8-LK+1+j}')
            a(f's_waitcnt vmcnt({n*(LK-1-j)})')
            a(f'ds_write_b32 v{V_Z}, {u(6)} offset:{4*flag}')
            if j < 2: stamp(10 + j, 1)
        a('s_branch KG_H2B')
    xaddr()
    a(f's_lshr_b32 s{S_T1}, s{S_HG}, 1')
    for k in range(3):
        a(f's_add_u32 s{S_T1}, s{S_T1}, 1')
        a(f's_and_b32 s{S_T1}, s{S_T1}, 3')
        xpair(S_O + k, S_L + k, S_T1)
    a(f's_mov_b32 s{R_A+2}, {2048 * 1024}')
    a(f's_mov_b32 s{S_T2}, 0')
    if IST: a(f'{TM} s[{SB+2*5}:{SB+1+2*5}]')
    a('s_waitcnt lgkmcnt(0)')
    a(f's_mov_b64 s[{R_A}:{R_A+1}], s[{S_X}:{S_X+1}]')
    stamp(8, 1)
    if not LD_PRE['X']:
        if EB == 1:
            a.label(f'KG_GOOX')
            a(f'ds_read_b32 {u(7)}, v{V_Z} offset:{4*F_GO}')
            a('s_waitcnt lgkmcnt(0)')
            a(f'v_readfirstlane_b32 s{S_T0}, {u(7)}')
            a(f's_sub_u32 s{S_LIM}, s{S_LIM}, 1')
            a(f's_cbranch_scc1 KG_GPOX')
            a(f's_cmp_eq_u32 s{S_T0}, 0')
            a(f's_cbranch_scc1 KG_GOOX')
            a.label(f'KG_GPOX')
        else: a('s_barrier')
        stamp(1)
    if XS: a(f's_sleep {XS}')
    def kx_wait(k):
        a(f's_cmp_lg_u32 s{S_T2}, 0')
        a(f's_cbranch_scc1 KG_KXD{k}')
        a.label(f'KG_KXW{k}')
        a(f'ds_read_b32 {u(7)}, v{V_Z} offset:{4*F_KX}')
        a('s_waitcnt lgkmcnt(0)')
        a(f'v_readfirstlane_b32 s{S_T2}, {u(7)}')
        a(f's_cmp_lg_u32 s{S_T2}, 0')
        a(f's_cbranch_scc1 KG_KXD{k}')
        a('s_sleep 1')
        a(f's_sub_u32 s{S_LIM}, s{S_LIM}, 1')
        a(f's_cbranch_scc0 KG_KXW{k}')
        a(f's_mov_b32 s{S_LIM}, 0')
        a.label(f'KG_KXD{k}')
    a.label('KG_LLX')
    a(f's_add_i32 s{S_PV}, s{S_PV}, 1')
    for k in range(3):
        a(f's_mov_b32 m0, s{S_L+k}')
        a(f's_add_u32 s{S_L+k}, s{S_L+k}, 8192')
        a(f'buffer_load_dwordx4 {u(4)}, {ra}, s{S_O+k} offen lds')
        a(f'buffer_load_dwordx4 {u(5)}, {ra}, s{S_O+k} offen offset:1024 lds')
        a(f's_add_u32 s{S_O+k}, s{S_O+k}, 128')
        if ROT: a(f's_bitset0_b32 s{S_O+k}, 10')
        if k < 2: chk(6, 2*k + 2, F_CX, kx_wait)
    ld_tail('X', 6, F_CX, kx_wait)
    a.label('KG_LDW')
    if IST: a(f'{TM} s[{SB+2*5}:{SB+1+2*5}]')
    if LKS['W'] != LKS['X']: a(f's_mov_b32 s{S_PV}, {-LKS["W"]}')
    a(f'v_lshrrev_b32 {u(0)}, 3, v0')
    a(f'v_and_b32 {u(1)}, 7, v0')
    a(f'v_and_b32 {u(2)}, 1, v{V_G}')
    a(f'v_lshlrev_b32 {u(2)}, 2, {u(2)}')
    a(f'v_xor_b32 {u(2)}, {u(2)}, {u(1)}')
    a(f'v_lshlrev_b32 {u(2)}, 4, {u(2)}')
    a(f'v_lshl_add_u32 {u(2)}, {u(0)}, 10, {u(2)}')
    a(f's_lshl_b32 s{S_T0}, s{S_HG}, 7')
    if E('WQX', 0): a(f's_xor_b32 s{S_T0}, s{S_T0}, {E("WQX", 0) << 7}')
    a(f'v_add_u32 {u(2)}, s{S_T0}, {u(2)}')
    for j in range(1, 4):
        a(f'v_add_u32 {u(2+j)}, {7168*j}, {u(2)}')
    if ROT: a(f's_lshl_b32 s{S_O}, s{S_ROT}, 9')
    else: a(f's_mov_b32 s{S_O}, 0')
    a(f's_mov_b32 s{S_L}, {L_WQ}')
    a(f's_mov_b32 s{R_A+2}, {512 * 1024}')
    a('s_waitcnt lgkmcnt(0)')
    a(f's_mov_b64 s[{R_A}:{R_A+1}], s[{S_WQ}:{S_WQ+1}]')
    if E('WQO', 0): a(f's_mov_b64 s[{R_A}:{R_A+1}], s[{S_WO}:{S_WO+1}]')
    stamp(8, 1)
    if not LD_PRE['W']:
        if EB == 1:
            a.label(f'KG_GOOW')
            a(f'ds_read_b32 {u(7)}, v{V_Z} offset:{4*F_GO}')
            a('s_waitcnt lgkmcnt(0)')
            a(f'v_readfirstlane_b32 s{S_T0}, {u(7)}')
            a(f's_sub_u32 s{S_LIM}, s{S_LIM}, 1')
            a(f's_cbranch_scc1 KG_GPOW')
            a(f's_cmp_eq_u32 s{S_T0}, 0')
            a(f's_cbranch_scc1 KG_GOOW')
            a.label(f'KG_GPOW')
        else: a('s_barrier')
        stamp(1)
    if E('WS', 0): a(f's_sleep {E("WS", 0)}')
    a.label('KG_LLW')
    a(f's_add_i32 s{S_PV}, s{S_PV}, 1')
    for k in range(2):
        a(f's_mov_b32 m0, s{S_L}')
        a(f's_add_u32 s{S_L}, s{S_L}, 4096')
        for j in range(4):
            a(f'buffer_load_dwordx4 {u(2+j)}, {ra}, s{S_O} offen offset:{1024*j} lds')
        a(f's_add_u32 s{S_O}, s{S_O}, 32768')
        if ROT and k == 1: a(f's_bitset0_b32 s{S_O}, 19')
        if k == 0:
            chk(8, 4, F_CW)
            a(f's_waitcnt vmcnt({8*LKS["W"] + E("WH", 0)})')
    ld_tail('W', 8, F_CW)

    uid = [0]
    def lds_wait(flag, val, vtmp, sleep=1, addr=None, sdst=None):
        uid[0] += 1; u = uid[0]
        addr = V_Z if addr is None else addr
        sdst = S_T0 if sdst is None else sdst
        a.label(f'KG_LW{u}')
        a(f'ds_read_b32 v{vtmp}, v{addr} offset:{4*flag}')
        a('s_waitcnt lgkmcnt(0)')
        a(f'v_readfirstlane_b32 s{sdst}, v{vtmp}')
        a(f's_cmp_ge_u32 s{sdst}, {val}')
        a(f's_cbranch_scc1 KG_LD{u}')
        a(f's_sleep {sleep}')
        a(f's_sub_u32 s{S_LIM}, s{S_LIM}, 1')
        a(f's_cbranch_scc0 KG_LW{u}')
        a(f's_mov_b32 s{S_LIM}, 0')
        a.label(f'KG_LD{u}')
    def lds_add(flag, vtmp, one=None):
        if one is None: a(f'v_mov_b32 v{vtmp}, 1')
        else: vtmp = one
        a('s_mov_b64 exec, 1')
        a(f'ds_add_u32 v{V_Z}, v{vtmp} offset:{4*flag}')
        a('s_mov_b64 exec, -1')
    def get_tag(vtmp):
        a(f'ds_read_b32 v{vtmp}, v{V_Z} offset:{4*F_TAG}')
        a('s_waitcnt lgkmcnt(0)')
        a(f'v_readfirstlane_b32 s{S_TAG}, v{vtmp}')

    V_OQ, V_OV = 2, 3
    V_M = 4
    V_H = 6
    V_Q = 8
    V_S = 16
    V_P = 48
    V_O = 64
    V_K = 96
    V_V = 128
    V_T = 192
    S_N = S_KH
    V_PGA, V_PGV, V_LK = V_T + 16, V_T + 17, V_T + 18
    a.label('KG_ATT')
    a('s_setprio 1')
    a(f's_and_b32 s{S_CT}, s{S_W}, 1')
    a(f's_bfe_u32 s{S_A}, s{S_W}, 0x10001')
    a(f's_mov_b32 s{S_N}, 0')
    a('v_and_b32 v1, 31, v0')
    a(f'v_lshrrev_b32 v{V_H}, 5, v0')
    V_XA = V_T
    V_WA = V_T + 4
    t = lambda i: f'v{V_T+8+i}'
    a(f'v_bfe_u32 {t(0)}, v0, 1, 3')
    a(f's_lshl_b32 s{S_T0}, s{S_A}, 12')
    a(f'v_lshlrev_b32 {t(1)}, 7, v1')
    a(f'v_add_u32 {t(1)}, s{S_T0}, {t(1)}')
    for ks in range(4):
        a(f'v_add_u32 {t(2)}, {2*ks}, v{V_H}')
        a(f'v_xor_b32 {t(2)}, {t(2)}, {t(0)}')
        a(f'v_lshl_add_u32 v{V_XA+ks}, {t(2)}, 4, {t(1)}')
    a(f'v_bfe_u32 {t(0)}, v0, 2, 2')
    a(f'v_and_b32 {t(1)}, 3, v0')
    a(f'v_bfe_u32 {t(2)}, v0, 4, 1')
    a(f'v_lshl_add_u32 {t(3)}, v{V_H}, 3, {t(0)}')
    a(f'v_lshlrev_b32 {t(3)}, 7, {t(3)}')
    a(f'v_lshrrev_b32 {t(4)}, 1, {t(1)}')
    a(f'v_and_b32 {t(5)}, 1, {t(1)}')
    a(f'v_lshrrev_b32 {t(6)}, 1, {t(0)}')
    a(f'v_lshlrev_b32 {t(6)}, 2, {t(6)}')
    a(f'v_lshl_add_u32 {t(7)}, {t(2)}, 1, {t(4)}')
    a(f's_lshl_b32 s{S_T0}, s{S_CT}, 2')
    a(f'v_add_u32 {t(7)}, s{S_T0}, {t(7)}')
    a(f'v_xor_b32 {t(7)}, {t(7)}, {t(6)}')
    a(f'v_lshl_add_u32 {t(7)}, {t(7)}, 4, {t(3)}')
    a(f'v_lshl_add_u32 v{V_WA}, {t(5)}, 3, {t(7)}')
    a(f'v_add_u32 v{V_WA}, {L_WQ}, v{V_WA}')
    a(f'v_lshlrev_b32 v{V_OQ}, 4, v0')
    a(f'v_add_u32 v{V_LK}, {L_PRE}, v{V_OQ}')
    a(f's_lshl_b32 s{S_T0}, s{S_W}, 2')
    a(f'v_add_u32 v{V_PGA}, s{S_T0}, v{V_Z}')
    a(f'v_mov_b32 v{V_PGV}, 1')
    V_LW, V_FP, V_FQ = 216, 221, 222
    V_PC = {1: V_PGV, 3: 217, 4: 218, 6: 219, 10: 220}
    if UNR:
        a(f'v_add_u32 v{V_LW}, {L_WQ}, v{V_OQ}')
        for k_ in (3, 4, 6, 10): a(f'v_mov_b32 v{V_PC[k_]}, {k_}')
    a(f's_mov_b32 s{S_VM}, 0xffff')
    a(f's_mov_b32 s{S_VM+1}, 0xffff')
    a(f'v_and_b32 {t(0)}, 27, v1')
    a(f'v_cmp_eq_u32 vcc, 16, {t(0)}')
    a(f'v_mov_b32 {t(1)}, 0x3f803f80')
    a(f'v_mov_b32 v{V_M}, 0')
    a(f'v_mov_b32 v{V_M+1}, 0')
    a(f'v_cndmask_b32 {t(1)}, 0, {t(1)}, vcc')
    for i in range(64):
        a(f'v_mov_b32 v{V_V+i}, {t(1)}')
    QA = V_S
    if QPIPE == 3:
        a(f'v_mov_b32 v{V_T+5}, v{V_WA}')
    if QPIPE >= 2:
        for i in range(16):
            a(f'v_mov_b32 v{QA+i}, 0')
    QB = (V_O, V_S + 16)
    a(f's_mov_b32 s{S_SEEN}, 0')
    a('s_waitcnt lgkmcnt(0)')
    srd(a, R_WS, S_WS, WS_SIZE)
    stamp(11, 1)
    if not EB: a('s_barrier')
    stamp(1)
    def q_wait(c):
        a(f's_cmp_gt_u32 s{S_SEEN}, {c}')
        a(f's_cbranch_scc1 KG_QG{c}')
        a.label(f'KG_QP{c}')
        a(f'ds_read_b64 {vr(V_T+8,2)}, v{V_Z} offset:{4*F_CX}')
        a('s_waitcnt lgkmcnt(0)')
        a(f'v_min_u32 {t(0)}, {t(0)}, {t(1)}')
        a('s_nop 0')
        a(f'v_readfirstlane_b32 s{S_SEEN}, {t(0)}')
        a(f's_cmp_gt_u32 s{S_SEEN}, {c}')
        a(f's_cbranch_scc1 KG_QG{c}')
        if c < 7 or Q7_SLEEP:
            a('s_sleep 1')
        a(f's_sub_u32 s{S_LIM}, s{S_LIM}, 1')
        a(f's_cbranch_scc0 KG_QP{c}')
        a(f's_mov_b32 s{S_LIM}, 0')
        a.label(f'KG_QG{c}')
        if c in (0, 4, 6, 7): stamp({0: 7, 4: 8, 6: 9, 7: 10}[c], 1)
    def q_reads(c):
        b = QB[c & 1]
        for ks in range(4):
            a(f'ds_read_b128 {vr(b+4*ks,4)}, v{V_XA+ks} offset:{c*8192}')
            a(f'ds_read_b64_tr_b16 {vr(b+16+4*ks,2)}, v{V_WA} offset:{c*8192+ks*2048}')
            a(f'ds_read_b64_tr_b16 {vr(b+16+4*ks+2,2)}, v{V_WA} offset:{c*8192+ks*2048+512}')
    def progress(val=1):
        a(f'ds_write_b32 v{V_PGA}, v{V_PC[val] if UNR else V_PGV} offset:{4*(F_PGW-4)}')
    spins = []
    def pre_check(n):
        uid[0] += 1; u = uid[0]
        a(f's_cmp_lt_u32 s{S_N}, {n}')
        a(f's_cbranch_scc1 KG_SP{u}')
        a.label(f'KG_SR{u}')
        spins.append(('pre', u, n))
    def pos_check(k=None):
        uid[0] += 1; u = uid[0]
        k = f's{S_KB}' if k is None else k
        a(f's_cmp_lt_u32 s{S_KOFF}, {k}')
        a(f's_cbranch_scc1 KG_SP{u}')
        a.label(f'KG_SR{u}')
        spins.append(('q', u, k))
    def emit_spins():
        for kind, u, n in spins:
            a.label(f'KG_SP{u}')
            if kind == 'pre':
                a(f'ds_read_b32 v{V_T+8}, v{V_Z} offset:{4*F_PRE}')
                a('s_waitcnt lgkmcnt(0)')
                a(f'v_readfirstlane_b32 s{S_N}, v{V_T+8}')
                a(f's_cmp_ge_u32 s{S_N}, {n}')
                a(f's_cbranch_scc1 KG_SR{u}')
            else:
                a(f'ds_read_b32 v{V_T+8}, v{V_Z} offset:{4*F_POS}')
                a('s_waitcnt lgkmcnt(0)')
                a(f'v_readfirstlane_b32 s{S_KOFF}, v{V_T+8}')
                a(f's_cmp_ge_u32 s{S_KOFF}, {n}')
                a(f's_cbranch_scc1 KG_SR{u}')
                a('s_sleep 1')
            a(f's_sub_u32 s{S_LIM}, s{S_LIM}, 1')
            a(f's_cbranch_scc0 KG_SP{u}')
            a(f's_mov_b32 s{S_LIM}, 0')
            a(f's_branch KG_SR{u}')
        spins.clear()

    def load_k(slot, off):
        a(f'buffer_load_dwordx4 {vr(V_K+4*slot,4)}, v{V_OQ}, {ws}, s{S_KOFF} offen offset:{off}{KVSC}')
    def kv_group(c, adv=True):
        load_k(c & 7, 0)
        load_k((c + 1) & 7, 2048)
        a(f's_mov_b64 exec, s[{S_VM}:{S_VM+1}]')
        for j in range(2):
            sl = (c + j) & 7
            a(f'buffer_load_dwordx4 {vr(V_V+8*sl,4)}, v{V_OQ}, {ws}, s{S_KOFF} offen offset:{2048*j+1024}{KVSC}')
            a(f'buffer_load_dwordx4 {vr(V_V+8*sl+4,4)}, v{V_OQ}, {ws}, s{S_KOFF} offen offset:{2048*j+1280}{KVSC}')
        a('s_mov_b64 exec, -1')
        if adv:
            a(f's_add_u32 s{S_KOFF}, s{S_KOFF}, 4096')
    def pre_reads(c, n=1, cls=0):
        ad, o = (V_LK, 0) if cls == 0 else (V_LW, 16384*(cls-1)) if cls <= 4 else (V_OQ, L_X + 16384*(cls-5))
        for j in range(c, c + n):
            a(f'ds_read_b128 {vr(V_K+4*j,4)}, v{ad} offset:{o+2048*j}')
        a(f's_mov_b64 exec, s[{S_VM}:{S_VM+1}]')
        for j in range(c, c + n):
            a(f'ds_read_b128 {vr(V_V+8*j,4)}, v{ad} offset:{o+2048*j+1024}')
            a(f'ds_read_b128 {vr(V_V+8*j+4,4)}, v{ad} offset:{o+2048*j+1280}')
        a('s_mov_b64 exec, -1')
    def mfma_s(t_, slot):
        a(f'v_mfma_f32_32x32x16_bf16 {vr(V_S+16*t_,16)}, {vr(V_K+4*slot,4)}, {vr(V_Q+4*t_,4)}, 0')
    def mfma_pv(t_, slot, pp, zero=False):
        cc = '0' if zero else vr(V_O+16*t_, 16)
        a(f'v_mfma_f32_32x32x16_bf16 {vr(V_O+16*t_,16)}, {vr(V_V+8*slot+4*pp,4)}, {vr(V_P+8*t_+4*pp,4)}, {cc}')
    def cv(t_, i):
        a(f'v_cvt_pk_bf16_f32 v{V_P+8*t_+i}, v{V_S+16*t_+2*i}, v{V_S+16*t_+2*i+1}')

    if QPIPE == 3:
        S_QC = S_CNT
        V_WB = V_T + 5
        WA = (V_WA, V_WB)
        def fread():
            a(f'ds_read_b128 {vr(V_T+8,4)}, v{V_Z} offset:{4*F_CX}')
        def qg(cn, ks):
            n_ = QB[cn]
            a(f'ds_read_b128 {vr(n_+4*ks,4)}, v{V_XA+ks} offset:{cn*8192}')
            a(f'ds_read_b64_tr_b16 {vr(n_+16+4*ks,2)}, v{WA[cn]} offset:{cn*8192+ks*2048}')
            a(f'ds_read_b64_tr_b16 {vr(n_+16+4*ks+2,2)}, v{WA[cn]} offset:{cn*8192+ks*2048+512}')
        def qf(b, ks):
            a(f'v_mfma_f32_32x32x16_bf16 {vr(QA,16)}, {vr(b+16+4*ks,4)}, {vr(b+4*ks,4)}, {vr(QA,16)}')
        UPD = ((V_XA + 2, V_XA + 3, V_WB), (V_XA, V_XA + 1, V_WA))
        def upd(r):
            a(f'v_add_u32 v{r}, 0x4000, v{r}')
        def qst():
            if E('QST', 0) == 2:
                a(f's_add_u32 m0, s{S_QC}, 6')
                a('s_nop 0')
                a(f'v_writelane_b32 v{V_T+23}, s100, m0')
                a('s_memtime s[100:101]')
        a(f's_mov_b32 s{S_QC}, 0')
        a('s_branch KG_QE0')
        for cn in (1, 0):
            a.label(f'KG_QS{cn}')
            if cn == 0:
                a(f's_cmp_eq_u32 s{S_QC}, 8')
                a('s_cbranch_scc1 KG_QX')
            for ks in range(1, 4):
                a(f's_waitcnt lgkmcnt({9 - 3*ks})')
                qf(QB[1 - cn], ks)
            if cn == 0:
                for r in UPD[0]: upd(r)
            a.label(f'KG_QE{cn}')
            fread()
            a('s_waitcnt lgkmcnt(0)')
            a(f'v_min_u32 {t(0)}, {t(0)}, {t(1)}')
            a('s_nop 0')
            a(f'v_readfirstlane_b32 s{S_SEEN}, {t(0)}')
            a(f's_cmp_gt_u32 s{S_SEEN}, s{S_QC}')
            a(f's_cbranch_scc1 KG_QG{cn}')
            if QSL: a(f's_sleep {QSL}')
            a(f's_sub_u32 s{S_LIM}, s{S_LIM}, 1')
            a(f's_cbranch_scc0 KG_QE{cn}')
            a(f's_mov_b32 s{S_LIM}, 0')
            a.label(f'KG_QG{cn}')
            qst()
            for ks in range(4): qg(cn, ks)
            a(f's_add_u32 s{S_QC}, s{S_QC}, 1')
            if cn == 1:
                for r in UPD[1]: upd(r)
                a('s_branch KG_Q0')
        for cn in (1, 0):
            b = QB[1 - cn]
            a.label(f'KG_Q{cn}')
            a('s_waitcnt lgkmcnt(9)')
            qf(b, 0)
            a(f's_cmp_gt_u32 s{S_SEEN}, s{S_QC}')
            a(f's_cbranch_scc0 KG_QS{cn}')
            qst()
            fread()
            qg(cn, 0)
            a('s_waitcnt lgkmcnt(10)')
            qf(b, 1)
            qg(cn, 1)
            upd(UPD[cn][0])
            a(f's_add_u32 s{S_QC}, s{S_QC}, 1')
            a('s_waitcnt lgkmcnt(10)')
            qf(b, 2)
            qg(cn, 2)
            upd(UPD[cn][1])
            upd(UPD[cn][2])
            a('s_waitcnt lgkmcnt(9)')
            qf(b, 3)
            a(f'v_min_u32 {t(0)}, {t(0)}, {t(1)}')
            qg(cn, 3)
            a(f'v_readfirstlane_b32 s{S_SEEN}, {t(0)}')
        a('s_branch KG_Q1')
        a.label('KG_QX')
        a(f'v_readfirstlane_b32 s{S_N}, {t(2)}')
        pre_check(1)
        if E('QST', 0) == 2:
            a(f'v_writelane_b32 v{V_T+23}, s100, 14')
            a('s_memtime s[100:101]')
        pre_reads(0)
        for ks in range(1, 4):
            a(f's_waitcnt lgkmcnt({12 - 3*ks})')
            qf(QB[1], ks)
        if E('QST', 0) == 2:
            a(f'v_writelane_b32 v{V_T+23}, s100, 15')
        progress()
        stamp(2)
    elif QPIPE == 2:
        S_QC = S_CNT
        def qw(k):
            a(f's_cmp_gt_u32 s{S_SEEN}, s{S_QC}')
            a(f's_cbranch_scc0 KG_QS{k}')
            a.label(f'KG_QR{k}')
        def qm(b, wait=True):
            for ks in range(4):
                if wait: a(f's_waitcnt lgkmcnt({min(15, 21 - 3*ks)})')
                a(f'v_mfma_f32_32x32x16_bf16 {vr(QA,16)}, {vr(b+16+4*ks,4)}, {vr(b+4*ks,4)}, {vr(QA,16)}')
        a(f's_mov_b32 s{S_QC}, 0')
        a('s_branch KG_QS0')
        for k in range(3):
            a.label(f'KG_QS{k}')
            a(f'ds_read_b64 {vr(V_T+8,2)}, v{V_Z} offset:{4*F_CX}')
            a('s_waitcnt lgkmcnt(0)')
            a(f'v_min_u32 {t(0)}, {t(0)}, {t(1)}')
            a('s_nop 0')
            a(f'v_readfirstlane_b32 s{S_SEEN}, {t(0)}')
            a(f's_cmp_gt_u32 s{S_SEEN}, s{S_QC}')
            a(f's_cbranch_scc1 KG_QR{k}')
            a('s_sleep 1')
            a(f's_sub_u32 s{S_LIM}, s{S_LIM}, 1')
            a(f's_cbranch_scc0 KG_QS{k}')
            a(f's_mov_b32 s{S_LIM}, 0')
            a(f's_branch KG_QR{k}')
        def fread():
            a(f'ds_read_b128 {vr(V_T+8,4)}, v{V_Z} offset:{4*F_CX}')
        def qg(n_, cn, ks):
            a(f'ds_read_b128 {vr(n_+4*ks,4)}, v{V_XA+ks} offset:{cn*8192}')
            a(f'ds_read_b64_tr_b16 {vr(n_+16+4*ks,2)}, v{V_WA} offset:{cn*8192+ks*2048}')
            a(f'ds_read_b64_tr_b16 {vr(n_+16+4*ks+2,2)}, v{V_WA} offset:{cn*8192+ks*2048+512}')
        def qf(b, ks):
            a(f'v_mfma_f32_32x32x16_bf16 {vr(QA,16)}, {vr(b+16+4*ks,4)}, {vr(b+4*ks,4)}, {vr(QA,16)}')
        a.label('KG_QR0')
        fread()
        q_reads(0)
        def qstep(cn):
            b = QB[1 - cn]; n_ = QB[cn]
            a('s_waitcnt lgkmcnt(9)')
            qf(b, 0)
            a(f'v_min_u32 {t(0)}, {t(0)}, {t(1)}')
            a(f's_add_u32 s{S_QC}, s{S_QC}, 1')
            a(f'v_readfirstlane_b32 s{S_SEEN}, {t(0)}')
            if cn == 0:
                for r in [V_XA + ks for ks in range(4)] + [V_WA]:
                    a(f'v_add_u32 v{r}, 0x4000, v{r}')
            qw(1 + cn)
            if E('QST', 0) == 2:
                a(f's_add_u32 m0, s{S_QC}, 6')
                a('s_nop 0')
                a(f'v_writelane_b32 v{V_T+23}, s100, m0')
                a('s_memtime s[100:101]')
            fread()
            qg(n_, cn, 0)
            for ks in range(1, 4):
                a('s_waitcnt lgkmcnt(10)')
                qf(b, ks)
                qg(n_, cn, ks)
        a.label('KG_QLP')
        qstep(1)
        a(f's_cmp_eq_u32 s{S_QC}, 7')
        a('s_cbranch_scc1 KG_QX')
        qstep(0)
        if QP:
            a(f'v_mov_b32 {t(4)}, s{S_QC}')
            a(f'ds_write_b32 v{V_PGA}, {t(4)}')
        a('s_branch KG_QLP')
        a.label('KG_QX')
        if E('QST', 0) == 1:
            stamp(7); a('s_waitcnt lgkmcnt(0)')
        a('s_waitcnt lgkmcnt(9)')
        qf(QB[1], 0)
        a(f'v_readfirstlane_b32 s{S_N}, {t(2)}')
        pre_check(1)
        if E('QST', 0) == 2:
            a(f'v_writelane_b32 v{V_T+23}, s100, 14')
            a('s_memtime s[100:101]')
        pre_reads(0)
        for ks in range(1, 4):
            a(f's_waitcnt lgkmcnt({12 - 3*ks})')
            qf(QB[1], ks)
        if E('QST', 0) == 2:
            a(f'v_writelane_b32 v{V_T+23}, s100, 15')
        progress()
        stamp(2)
    elif QPIPE:
        q_wait(0); q_reads(0)
        for c in range(8):
            if c < 7:
                q_wait(c + 1); q_reads(c + 1)
            else:
                a('s_waitcnt lgkmcnt(0)')
                progress()
                stamp(2)
                pre_check(1)
                pre_reads(0)
            b = QB[c & 1]
            for ks in range(4):
                if c < 7: a(f's_waitcnt lgkmcnt({min(15, 21 - 3*ks)})')
                cc = vr(QA, 16) if (c or ks) else '0'
                a(f'v_mfma_f32_32x32x16_bf16 {vr(QA,16)}, {vr(b+16+4*ks,4)}, {vr(b+4*ks,4)}, {cc}')
    else:
        for c in range(8):
            q_wait(c); q_reads(c)
            b = QB[c & 1]
            for ks in range(4):
                a(f's_waitcnt lgkmcnt({9 - 3*ks})')
                cc = vr(QA, 16) if (c or ks) else '0'
                a(f'v_mfma_f32_32x32x16_bf16 {vr(QA,16)}, {vr(b+16+4*ks,4)}, {vr(b+4*ks,4)}, {cc}')
        progress()
        stamp(2)

    def body(sub, peel, lds):
        def ex(t_, i):
            r = V_S + 16*t_ + i
            if sub:
                a(f'v_sub_f32 v{r}, v{r}, v{V_M+t_}')
            a(f'v_exp_f32 v{r}, v{r}')
        for b in range(8):
            for t_ in range(2):
                if peel and t_ == 0 and LST:
                    a(f'{TM} s[100:101]')
                ex(t_, 0); ex(t_, 1)
                if t_ == 1:
                    mfma_pv(0, b, 1)
                elif not (peel and b == 0):
                    mfma_pv(1, (b - 1) & 7, 1)
                if peel and t_ == 0 and b < 7:
                    pre_check(b + 2)
                    pre_reads(b + 1)
                ex(t_, 2); ex(t_, 3); ex(t_, 4); ex(t_, 5)
                if t_ == 1:
                    if peel or (lds and b in (1, 7)):
                        a('s_waitcnt lgkmcnt(0)')
                    elif not lds and b & 1:
                        a('s_waitcnt vmcnt(12)')
                    if peel and LST and E('QST', 0) != 2:
                        a(f'v_writelane_b32 v{V_T+23}, s100, {8+b}')
                    mfma_s(0, (b + 1) & 7)
                    if lds and b == (6 if peel else 1):
                        progress()
                    if LST and lds and not peel and b == 1:
                        a(f'v_writelane_b32 v{V_T+23}, s100, m0')
                    if peel and b == 6:
                        pos_check()
                        pre_reads(0, 2)
                else:
                    mfma_s(1, b)
                    if peel and b == 6:
                        a(f'v_add_u32 v{V_PGV}, 1, v{V_PGV}')
                    if peel and b == 7:
                        pre_reads(2, 2)
                    if lds and not peel and b == 0:
                        pre_reads(4, 4)
                        a(f'v_add_u32 v{V_PGV}, 1, v{V_PGV}')
                    if lds and not peel and b == 4:
                        pos_check()
                        pre_reads(0, 4)
                    if not lds and b % 2 == 0:
                        kv_group(b + 6)
                ex(t_, 6); ex(t_, 7)
                cv(t_, 0); cv(t_, 1); cv(t_, 2); cv(t_, 3)
                if peel and b == 6 and t_ == 0:
                    a(f'v_add_u32 v{V_LK}, {L_WQ - L_PRE}, v{V_LK}')
                if lds and not peel and b == 3 and t_ == 0:
                    a(f'v_add_u32 v{V_LK}, 0x4000, v{V_LK}')
                    a(f's_add_u32 s{S_KB}, s{S_KB}, 1')
                    a(f'v_and_b32 v{V_LK}, 0x1ffff, v{V_LK}')
                ex(t_, 8); ex(t_, 9)
                mfma_pv(t_, b, 0, zero=(peel and b == 0))
                for i in range(10, 16):
                    ex(t_, i)
                cv(t_, 4); cv(t_, 5); cv(t_, 6); cv(t_, 7)

    def body_u(cls):
        peel = cls == 0
        def ex(t_, i):
            a(f'v_exp_f32 v{V_S+16*t_+i}, v{V_S+16*t_+i}')
        def fpos(): a(f'ds_read_b32 v{V_FP}, v{V_Z} offset:{4*F_POS}')
        def chk0(k):
            if PFK >> k & 1:
                a('s_waitcnt lgkmcnt(0)')
                a(f'v_readfirstlane_b32 s{S_KOFF}, v{V_FP}')
        def chk(k):
            if k <= 5: pos_check(k)
        if LST and not peel: a(f'{TM} s[100:101]')
        for b in range(8):
            for t_ in range(2):
                if peel and t_ == 0 and 0 < b < 7 and PFP >> (b - 1) & 1:
                    if PFP & 0x100: a('s_waitcnt lgkmcnt(0)')
                    a(f'v_readfirstlane_b32 s{S_N}, v{V_FQ}')
                if peel and t_ == 0 and LST:
                    a(f'{TM} s[100:101]')
                ex(t_, 0); ex(t_, 1)
                if t_ == 1:
                    mfma_pv(0, b, 1)
                elif not (peel and b == 0):
                    mfma_pv(1, (b - 1) & 7, 1)
                if t_ == 0 and (b == 7 and PEND if peel else b == 4): chk0(cls + 1)
                if peel and t_ == 0 and b < 7:
                    pre_check(b + 2)
                    pre_reads(b + 1)
                    if PFP >> b & 1 and not PFP & 0x100:
                        a(f'ds_read_b32 v{V_FQ}, v{V_Z} offset:{4*F_PRE}')
                    if b == 6 and not PEND and PFK & 2: fpos()
                ex(t_, 2); ex(t_, 3); ex(t_, 4); ex(t_, 5)
                if t_ == 1:
                    if peel and b == 7 and PEND:
                        a('s_waitcnt lgkmcnt(8)' if not LST else 's_waitcnt lgkmcnt(0)')
                    elif peel or b in (1, 7):
                        a('s_waitcnt lgkmcnt(0)')
                    if peel and LST:
                        a(f'v_writelane_b32 v{V_T+23}, s100, {8+b}')
                    mfma_s(0, (b + 1) & 7)
                    if peel and PFP >> b & 1 and PFP & 0x100:
                        a(f'ds_read_b32 v{V_FQ}, v{V_Z} offset:{4*F_PRE}')
                    if not peel and b == 1 and cls + 2 in V_PC:
                        progress(cls + 2)
                    if LST and not peel and b == 1:
                        a(f'v_writelane_b32 v{V_T+23}, s100, {7-cls}')
                    if peel and b == 6:
                        if PEND:
                            if PFK & 2: fpos()
                        else:
                            if PFK & 2: a(f'v_readfirstlane_b32 s{S_KOFF}, v{V_FP}')
                            pos_check(1)
                            pre_reads(0, 2, 1)
                    if not peel and b == 3 and PFK >> (cls + 1) & 1: fpos()
                else:
                    mfma_s(1, b)
                    if peel and b == 7:
                        if PEND:
                            chk(1)
                            pre_reads(0, 4, 1)
                        else:
                            pre_reads(2, 2, 1)
                    if not peel and b == 0:
                        pre_reads(4, 4, cls)
                    if not peel and b == 4:
                        chk(cls + 1)
                        pre_reads(0, 4, cls + 1)
                ex(t_, 6); ex(t_, 7)
                cv(t_, 0); cv(t_, 1); cv(t_, 2); cv(t_, 3)
                ex(t_, 8); ex(t_, 9)
                if cls == 1 and PEND and b == 0 and t_ == 0: a('s_waitcnt lgkmcnt(12)')
                mfma_pv(t_, b, 0, zero=(peel and b == 0))
                for i in range(10, 16):
                    ex(t_, i)
                cv(t_, 4); cv(t_, 5); cv(t_, 6); cv(t_, 7)

    def attn_pass(tag, sub, first):
        if first:
            if not QPIPE:
                pre_check(1)
                pre_reads(0)
            stamp(3)
            a('s_nop 4')
            for i in range(8):
                a(f'v_cvt_pk_bf16_f32 v{V_Q+i}, v{QA+2*i}, v{QA+2*i+1}')
            a('s_waitcnt lgkmcnt(0)')
            mfma_s(0, 0)
            a(f's_mov_b32 s{S_CNT}, 6')
            a(f's_mov_b32 s{S_KOFF}, 0')
            a(f's_mov_b32 s{S_KB}, 1')
            stamp(4)
            a('s_nop 4')
            if UNR:
                for cls in range(7): body_u(cls)
                last_body()
                return
            body(False, True, True)
        else:
            a(f's_mov_b32 s{S_KOFF}, {WS_KV}')
            for c in range(0, 6, 2):
                kv_group(c)
            for i in range(32):
                a(f'v_mov_b32 v{V_O+i}, 0')
            for i in range(4):
                a(f'v_mov_b32 v{V_P+12+i}, 0')
            a('s_waitcnt vmcnt(12)')
            mfma_s(0, 0)
            a(f's_mov_b32 s{S_CNT}, 8')
            a('s_nop 10')
        a.label(f'KG_LOOP{tag}')
        if LST and first:
            a(f'{TM} s[100:101]')
            a(f's_mov_b32 m0, s{S_CNT}')
        body(sub, False, first)
        a(f's_sub_u32 s{S_CNT}, s{S_CNT}, 1')
        a(f's_cmp_lg_u32 s{S_CNT}, 0')
        a(f's_cbranch_scc1 KG_LOOP{tag}')
        if first:
            last_body()
        else:
            mfma_pv(1, 7, 1)

    S_OA, S_FA, S_LOC, S_BAD = S_P, S_SEEN, S_MH, S_NH
    V_TG, V_ZR, V_PK, V_RC = V_T, V_T + 2, V_T + 4, V_T + 9
    outl = []
    def st2(ins):
        uid[0] += 1; k = uid[0]
        a(f's_cmp_eq_u32 s{S_LOC}, 1')
        a(f's_cbranch_scc0 KG_SG{k}')
        a(ins + LOCSC)
        a.label(f'KG_SH{k}')
        outl.append((k, ins))
    def rng(t_):
        a(f'v_cmp_le_f32 s[{S_C0}:{S_C0+1}], s{S_T0}, v{V_O+16*t_+8}')
        a(f'v_cmp_ge_f32 s[{S_C1}:{S_C1+1}], s{S_T1}, v{V_O+16*t_+8}')
        a(f'v_rcp_f32 v{V_RC}, v{V_O+16*t_+8}')
        a(f's_and_b64 s[{S_C0}:{S_C0+1}], s[{S_C0}:{S_C0+1}], s[{S_C1}:{S_C1+1}]')
        a(f's_cmp_eq_u64 s[{S_C0}:{S_C0+1}], -1')
    def o_store(t_):
        for i in range(8):
            a(f'v_mul_f32 v{V_O+16*t_+i}, v{V_RC}, v{V_O+16*t_+i}')
        for i in range(4):
            a(f'v_cvt_pk_bf16_f32 v{V_PK+i}, v{V_O+16*t_+2*i}, v{V_O+16*t_+2*i+1}')
        a(f'v_min_u32 v{V_PK+3}, -2, v{V_PK+3}')
        st2(f'buffer_store_dwordx4 {vr(V_PK,4)}, v{V_OQ}, {ws}, s{S_OA} offen offset:{1024*t_}')
    def o_flag(t_):
        a('s_mov_b64 exec, 1')
        st2(f'buffer_store_dword v{V_TG}, v{V_ZR}, {ws}, s{S_FA} offen offset:{4*t_}')
        a('s_mov_b64 exec, -1')
    def last_body():
        steps = [(0, c) for c in range(8)] + [(1, c) for c in range(8)]
        def pv(tile, buf, slot, pp):
            a(f'v_mfma_f32_32x32x16_bf16 {vr(V_O+16*tile,16)}, {vr(V_V+8*slot+4*pp,4)}, {vr(V_P+8*buf+4*pp,4)}, {vr(V_O+16*tile,16)}')
        def ex(p_, i):
            a(f'v_exp_f32 v{V_S+16*p_+i}, v{V_S+16*p_+i}')
        for n, (tile, c) in enumerate(steps):
            p_ = n & 1
            pt, pc = steps[n - 1] if n else (1, 7)
            ex(p_, 0); ex(p_, 1)
            pv(pt, 1 - p_, pc, 1)
            ex(p_, 2); ex(p_, 3); ex(p_, 4); ex(p_, 5)
            if n == 2:
                a('s_waitcnt lgkmcnt(0)')
            if n < 15:
                nt, nc = steps[n + 1]
                a(f'v_mfma_f32_32x32x16_bf16 {vr(V_S+16*(1-p_),16)}, {vr(V_K+4*nc,4)}, {vr(V_Q+4*nt,4)}, 0')
            if n == 0:
                pre_reads(4, 4, 7 if UNR else 0)
                a(f'ds_read_b32 v{V_ZR}, v{V_Z} offset:{4*F_LOC}')
                if not UNR: a(f'v_add_u32 v{V_PGV}, 1, v{V_PGV}')
            if n == 2:
                if not UNR: progress()
                a(f'v_readfirstlane_b32 s{S_LOC}, v{V_ZR}')
                if not UNR: a(f'v_add_u32 v{V_PGV}, 1, v{V_PGV}')
            if n == 9:
                rng(0)
                a(f's_cselect_b32 s{S_BAD}, 0, 1')
                a('s_cbranch_scc0 KG_L9')
                o_store(0)
                a.label('KG_L9')
            if n == OF_STEP:
                a(f's_cmp_lg_u32 s{S_BAD}, 0')
                a('s_cbranch_scc1 KG_L12')
                a(f'ds_write_b32 v{V_Z}, v{V_PGV} offset:{4*F_ADONE}')
                a.label('KG_L12')
            ex(p_, 6); ex(p_, 7)
            cv(p_, 0); cv(p_, 1); cv(p_, 2); cv(p_, 3)
            ex(p_, 8); ex(p_, 9)
            pv(tile, p_, c, 0)
            for i in range(10, 16):
                ex(p_, i)
            cv(p_, 4); cv(p_, 5); cv(p_, 6); cv(p_, 7)
        a('s_nop 1')
        pv(1, 1, 7, 1)

    a(f's_lshl_b32 s{S_T2}, s{S_QG}, 1')
    a(f's_add_u32 s{S_T2}, s{S_T2}, s{S_A}')
    a(f's_lshl_b32 s{S_T3}, s{S_HG}, 1')
    a(f's_add_u32 s{S_T3}, s{S_T3}, s{S_CT}')
    a(f's_lshl_b32 s{S_T2}, s{S_T2}, 4')
    a(f's_add_u32 s{S_T2}, s{S_T2}, s{S_T3}')
    a(f's_lshl_b32 s{S_OA}, s{S_T2}, 11')
    a(f's_add_u32 s{S_OA}, s{S_OA}, {WS_O}')
    a(f's_mov_b32 s{S_T0}, {f32_bits(2.0**-30)}')
    a(f's_mov_b32 s{S_T1}, {f32_bits(2.0**30)}')
    attn_pass('A', False, True)
    stamp(5)
    a('s_nop 12')
    rng(1)
    a('s_cbranch_scc0 KG_SLOW')
    a(f's_cmp_lg_u32 s{S_BAD}, 0')
    a('s_cbranch_scc1 KG_SLOW')
    a.label('KG_OUT')
    o_store(1)
    progress(10)
    if ST in (5, 6, 7): a('s_waitcnt vmcnt(0)')
    stamp(6)
    dump(1)
    a('s_endpgm')
    emit_spins()

    a.label('KG_SLOW')
    lds_wait(F_N, 127, V_T + 8, sdst=S_T2)
    a('s_waitcnt vmcnt(0)')
    a(f'v_mov_b32 v{V_M}, 0xff800000')
    a(f'v_mov_b32 v{V_M+1}, 0xff800000')
    a(f's_mov_b32 s{S_KOFF}, {WS_KV}')
    a(f's_mov_b32 s{S_CNT}, 64')
    a.label('KG_MAXLOOP')
    load_k(0, 0)
    a(f's_add_u32 s{S_KOFF}, s{S_KOFF}, 2048')
    a('s_waitcnt vmcnt(0)')
    mfma_s(0, 0)
    mfma_s(1, 0)
    a('s_nop 12')
    for t_ in range(2):
        for i in range(8):
            a(f'v_max3_f32 v{V_M+t_}, v{V_S+16*t_+2*i}, v{V_S+16*t_+2*i+1}, v{V_M+t_}')
    a(f's_sub_u32 s{S_CNT}, s{S_CNT}, 1')
    a(f's_cmp_lg_u32 s{S_CNT}, 0')
    a('s_cbranch_scc1 KG_MAXLOOP')
    for t_ in range(2):
        a(f'v_mov_b32 v{V_T+4+t_}, v{V_M+t_}')
    a('s_nop 1')
    for t_ in range(2):
        a(f'v_permlane32_swap_b32 v{V_M+t_}, v{V_T+4+t_}')
    a('s_nop 1')
    for t_ in range(2):
        a(f'v_max_f32 v{V_M+t_}, v{V_M+t_}, v{V_T+4+t_}')
    attn_pass('B', True, False)
    a('s_nop 12')
    a(f'v_rcp_f32 v{V_RC}, v{V_O+8}')
    a('s_nop 0')
    o_store(0)
    a(f'ds_write_b32 v{V_Z}, v{V_PGV} offset:{4*F_ADONE}')
    a(f'v_rcp_f32 v{V_RC}, v{V_O+24}')
    a('s_nop 0')
    a('s_branch KG_OUT')
    for k, ins in outl:
        a.label(f'KG_SG{k}')
        a(ins + SC)
        a(f's_branch KG_SH{k}')

    def hsetup():
        a(f's_lshl_b32 s{S_F}, s{S_HG}, 5')
        a(f's_add_u32 s{S_F}, s{S_F}, s{S_QG}')
        srd(a, R_WS, S_WS, WS_SIZE)

    def pg_wait(val, sleep=2, vb=V_U+4, fl=F_PGW, pa=None):
        uid[0] += 1; k = uid[0]
        a.label(f'KG_PW{k}')
        if pa is not None:
            a(f'ds_read_b32 v{vb}, v{pa}')
            a('s_waitcnt lgkmcnt(0)')
            a(f'v_cmp_gt_u32 vcc, {val}, v{vb}')
            a(f's_cbranch_vccz KG_PD{k}')
            a(f's_sleep {sleep}')
            a(f's_sub_u32 s{S_LIM}, s{S_LIM}, 1')
            a(f's_cbranch_scc0 KG_PW{k}')
            a(f's_mov_b32 s{S_LIM}, 0')
            a.label(f'KG_PD{k}')
            return
        a(f'ds_read_b128 {vr(vb,4)}, v{V_Z} offset:{4*fl}')
        a('s_waitcnt lgkmcnt(0)')
        a(f'v_min3_u32 v{vb}, v{vb}, v{vb+1}, v{vb+2}')
        a(f'v_min_u32 v{vb}, v{vb}, v{vb+3}')
        a('s_nop 0')
        a(f'v_readfirstlane_b32 s{S_T0}, v{vb}')
        a(f's_cmp_ge_u32 s{S_T0}, {val}')
        a(f's_cbranch_scc1 KG_PD{k}')
        a(f's_sleep {sleep}')
        a(f's_sub_u32 s{S_LIM}, s{S_LIM}, 1')
        a(f's_cbranch_scc0 KG_PW{k}')
        a(f's_mov_b32 s{S_LIM}, 0')
        a.label(f'KG_PD{k}')
    def kv_dma(s_cls, s_lds):
        for q in range(4):
            a(f's_mov_b32 m0, s{s_lds}')
            a(f's_add_u32 s{s_lds}, s{s_lds}, 4096')
            for j in range(4):
                a(f'buffer_load_dwordx4 v{V_L16}, {ws}, s{s_cls} offen offset:{1024*j}{KVSC} lds')
            a(f's_add_u32 s{s_cls}, s{s_cls}, 4096')
    def thr():
        a(f's_waitcnt vmcnt({THR})')
    S_TGX = S_MH
    def flag_store(base, idx=None, stag=None):
        idx = f's{S_F}' if idx is None else idx
        stag = S_TAG if stag is None else stag
        a(f's_lshr_b32 s{S_T0}, {idx}, 2')
        a(f's_lshl_b32 s{S_T0}, s{S_T0}, 7')
        a(f's_and_b32 s{S_T1}, {idx}, 3')
        a(f's_lshl_b32 s{S_T1}, s{S_T1}, 2')
        a(f's_add_u32 s{S_T0}, s{S_T0}, s{S_T1}')
        a(f's_add_u32 s{S_T0}, s{S_T0}, {base}')
        a(f'v_mov_b32 {u(0)}, 0')
        a(f'v_mov_b32 {u(1)}, s{stag}')
        a('s_mov_b64 exec, 1')
        a(f'buffer_store_dword {u(1)}, {u(0)}, {ws}, s{S_T0} offen{SC}')
        a('s_mov_b64 exec, -1')
    def join_flag(cnt, n, base, one=None):
        uid[0] += 1; k = uid[0]
        if one is None: a(f'v_mov_b32 {u(0)}, 1')
        a('s_waitcnt vmcnt(0)')
        a('s_mov_b64 exec, 1')
        a(f'ds_add_rtn_u32 {u(1)}, v{V_Z}, {u(0) if one is None else "v%d" % one} offset:{4*cnt}')
        a('s_mov_b64 exec, -1')
        a('s_waitcnt lgkmcnt(0)')
        a(f'v_readfirstlane_b32 s{S_T0}, {u(1)}')
        a(f's_cmp_lg_u32 s{S_T0}, {n-1}')
        a(f's_cbranch_scc1 KG_JN{k}')
        flag_store(base)
        a.label(f'KG_JN{k}')
    S_NQ, S_NEW, S_LB, S_QU, S_PUB = S_P, S_KH, S_KB, S_SEEN, S_KOFF
    def glob_poll(tag, execmask, sleep, wide=True, lsh=7):
        a(f's_mov_b32 s{S_CNT}, {POLL_LIMIT}')
        a(f'v_lshlrev_b32 {u(0)}, {lsh}, v0')
        if execmask == 0xffffffff:
            a('s_mov_b32 exec_hi, 0')
        else:
            a(f's_mov_b64 exec, {execmask}')
        a.label(f'KG_GP{tag}')
        if wide:
            a(f'buffer_load_dwordx4 {vr(V_U+4,4)}, {u(0)}, {ws}, s{S_T1} offen{SC}')
            if tag == 'KV' and TF_LAG == 2:
                a(f'ds_write_b32 v{V_Z}, v{KA+12} offset:{4*F_QDONE}')
            a('s_waitcnt vmcnt(0)')
            for i in range(4):
                a(f'v_xor_b32 {u(4+i)}, s{S_TGX if tag == "KV" else S_TAG}, {u(4+i)}')
            a(f'v_or3_b32 {u(4)}, {u(4)}, {u(5)}, {u(6)}')
            a(f'v_or_b32 {u(4)}, {u(4)}, {u(7)}')
            if tag == 'KV':
                a(f'v_lshlrev_b32 {u(5)}, 4, {u(4)}')
                a(f'v_cmp_ne_u32 vcc, 0, {u(5)}')
            else:
                a(f'v_cmp_ne_u32 vcc, 0, {u(4)}')
        else:
            a(f'buffer_load_dword {u(4)}, {u(0)}, {ws}, s{S_T1} offen{SC}')
            a('s_waitcnt vmcnt(0)')
            a(f'v_cmp_ne_u32 vcc, s{S_TAG}, {u(4)}')
        a(f's_sub_u32 s{S_CNT}, s{S_CNT}, 1')
        a(f's_cbranch_scc1 KG_GD{tag}')
        if tag == 'KV':
            S_DN = S_VM
            a(f's_and_b64 s[{S_C0}:{S_C0+1}], exec, vcc')
            a(f's_or_b64 s[{S_C1}:{S_C1+1}], s[{S_C0}:{S_C0+1}], s[{S_DN}:{S_DN+1}]')
            a('s_mov_b64 exec, -1')
            for c in range(8):
                m = 0xff << (8 * (c & 3))
                a(f's_and_b32 s{S_T0}, s{S_C1+(c>>2)}, {hex(m)}')
                a(f's_cselect_b32 s{S_T0}, 0, {hex(m)}')
                a(f's_cselect_b32 s{S_T2}, 0, {1 << c}')
                a(f's_or_b32 s{S_DN+(c>>2)}, s{S_DN+(c>>2)}, s{S_T0}')
                a(f's_or_b32 s{S_NEW}, s{S_NEW}, s{S_T2}')
            a('s_cbranch_scc0 KG_QE')
            a(f's_cmp_lg_u32 s{S_NQ}, 0')
            a('s_cbranch_scc1 KG_QL')
            if GST: stamp(8, 1)
            if QP: pg_wait(2, 1, 16, 4)
            else: pg_wait(1, 1, 16)
            a.label('KG_QL')
            if QP:
                a(f's_cmp_lg_u32 s{S_NQ}, 1')
                a('s_cbranch_scc1 KG_QL2')
                pg_wait(1, 1, 16)
                a.label('KG_QL2')
            a(f's_ff1_i32_b32 s{S_T0}, s{S_NEW}')
            a(f's_bitset0_b32 s{S_NEW}, s{S_T0}')
            a(f's_cmp_ge_u32 s{S_NQ}, 4')
            a('s_cbranch_scc1 KG_QQ')
            a(f'v_mov_b32 {u(1)}, s{S_NQ}')
            a(f's_add_u32 s{S_NQ}, s{S_NQ}, 1')
            a(f's_lshl_b32 s{S_T0}, s{S_T0}, 14')
            a(f's_add_u32 s{S_T0}, s{S_T0}, {WS_KV}')
            kv_dma(S_T0, S_LB)
            if GST:
                a(f's_cmp_lg_u32 s{S_NQ}, 1')
                a('s_cbranch_scc1 KG_GS1')
                stamp(9, 1)
                a.label('KG_GS1')
            a('s_waitcnt vmcnt(16)')
            a(f'ds_write_b32 v{V_Z}, {u(1)} offset:{4*F_POS}')
            if GST:
                a(f's_cmp_lg_u32 s{S_NQ}, 2')
                a('s_cbranch_scc1 KG_GS2')
                stamp(10, 1)
                a.label('KG_GS2')
            a('s_branch KG_QN')
            a.label('KG_QQ')
            a(f's_lshl_b32 s{S_QU}, s{S_QU}, 3')
            a(f's_or_b32 s{S_QU}, s{S_QU}, s{S_T0}')
            a.label('KG_QN')
            a(f's_cmp_lg_u32 s{S_NEW}, 0')
            a('s_cbranch_scc1 KG_QL')
            a(f'v_mov_b32 {u(1)}, s{S_NQ}')
            a('s_waitcnt vmcnt(0)')
            a(f'ds_write_b32 v{V_Z}, {u(1)} offset:{4*F_POS}')
            if GST:
                a(f's_cmp_lg_u32 s{S_NQ}, 1')
                a('s_cbranch_scc1 KG_GS3')
                stamp(11, 1)
                a.label('KG_GS3')
            a.label('KG_QE')
            a(f's_and_b64 exec, s[{S_C0}:{S_C0+1}], s[{S_C0}:{S_C0+1}]')
        else:
            a('s_and_b64 exec, exec, vcc')
        a(f's_cbranch_scc0 KG_GD{tag}')
        a(f's_sleep {sleep}')
        a(f's_branch KG_GP{tag}')
        a.label(f'KG_GD{tag}')
        a('s_mov_b64 exec, -1')

    a.label('KG_KV')
    if not GST: stamp(9, 1)
    hsetup()
    a(f's_mov_b32 s{S_KQ}, s{S_QG}')
    a(f'v_bfe_u32 {u(1)}, v0, 2, 2')
    a(f'v_and_b32 {u(2)}, 3, v0')
    a(f'v_lshl_add_u32 {u(1)}, v{V_G}, 3, {u(1)}')
    a(f'v_lshlrev_b32 {u(1)}, 5, {u(1)}')
    a(f'v_lshl_add_u32 {u(1)}, {u(2)}, 3, {u(1)}')
    a(f'v_add_u32 v{V_A2}, {L_KW}, {u(1)}')
    a(f's_lshl_b32 s{S_T2}, s{S_QG}, 12')
    a(f's_lshr_b32 s{S_T0}, s{S_RB}, 1')
    a(f's_lshl_b32 s{S_T0}, s{S_T0}, 11')
    a(f's_add_u32 s{S_T2}, s{S_T2}, s{S_T0}')
    a(f's_and_b32 s{S_T0}, s{S_RB}, 1')
    a(f's_lshl_b32 s{S_T0}, s{S_T0}, 8')
    a(f's_add_u32 s{S_T2}, s{S_T2}, s{S_T0}')
    a(f's_lshl_b32 s{S_T0}, s{S_TY}, 10')
    a(f's_add_u32 s{S_T2}, s{S_T2}, s{S_T0}')
    a(f's_lshl_b32 s{S_T3}, s{S_T2}, 1')
    a(f's_add_u32 s{S_T2}, s{S_T2}, {WS_KV}')
    a(f's_add_u32 s{S_T3}, s{S_T3}, {WS_KVT}')
    a(f's_add_u32 s{S_CNT}, s{S_T3}, 0x40000')
    a(f's_lshl_b32 s{S_KOFF}, s{S_QG}, 3')
    a(f's_add_u32 s{S_KOFF}, s{S_KOFF}, s{S_HG}')
    lds_wait(F_TAGOK, 1, V_U)
    get_tag(V_U)
    a(f'v_and_b32 {u(2)}, 1, v{V_G}')
    a(f'v_lshrrev_b32 {u(3)}, 1, v{V_G}')
    a(f'v_lshlrev_b32 {u(4)}, 9, {u(2)}')
    a(f'v_lshl_add_u32 {u(4)}, v{V_I}, 4, {u(4)}')
    a(f'v_lshl_add_u32 {u(4)}, {u(3)}, 3, {u(4)}')
    a(f'v_lshlrev_b32 {u(6)}, 1, {u(4)}')
    a(f'v_mov_b32 v{KA+10}, s{S_TAG}')
    a(f'v_mov_b32 v{KA+11}, s{S_TAG}')
    a(f'v_mov_b32 v{KA+12}, 1')
    a(f's_getreg_b32 s{S_T0}, hwreg(HW_REG_XCC_ID, 0, 4)')
    a(f's_lshl_b32 s{S_T0}, s{S_T0}, 28')
    a(f's_xor_b32 s{S_TGX}, s{S_TAG}, s{S_T0}')
    a(f's_mov_b32 s{S_T1}, {f32_bits(QSCALE)}')
    a(f'v_lshrrev_b32 {u(2)}, 1, v{V_I}')
    a(f'v_xor_b32 {u(2)}, v{V_G}, {u(2)}')
    a(f'v_lshlrev_b32 {u(2)}, 4, {u(2)}')
    a(f'v_lshl_add_u32 {u(2)}, v{V_I}, 7, {u(2)}')
    a(f's_lshl_b32 s{S_T0}, s{S_RB}, 11')
    a(f'v_add_u32 {u(2)}, s{S_T0}, {u(2)}')
    a(f'v_xor_b32 {u(3)}, 64, {u(2)}')
    a(f's_waitcnt vmcnt({16 + (4 if TOUCH == 1 else 1)})')
    a(f'ds_write_b32 v{V_Z}, v{KA+12} offset:{4*F_KX}')
    for ks in range(16):
        a(f'ds_read_b128 {vr(KX+4*ks,4)}, {u(2+(ks&1))} offset:{(ks>>1)*8192}')
    a(f's_waitcnt vmcnt({4 if TOUCH == 1 else 1}) lgkmcnt(0)')
    stamp(2)
    def kv_reads(ks):
        a(f'ds_read_b64_tr_b16 {vr(KW+4*ks,2)}, v{V_A2} offset:{ks*1024}')
        a(f'ds_read_b64_tr_b16 {vr(KW+4*ks+2,2)}, v{V_A2} offset:{ks*1024+128}')
    for ks in range(7):
        kv_reads(ks)
    a(f's_cmp_eq_u32 s{S_TY}, 1')
    a('s_cbranch_scc1 KG_KV1')
    for ty in range(2):
        if ty == 1:
            a.label('KG_KV1')
        for ks in range(16):
            n_out = min(6, 15 - ks)
            a(f's_waitcnt lgkmcnt({2*n_out})')
            cc = vr(KA + 4*(ks & 1), 4) if ks >= 2 else '0'
            if ty == 0:
                a(f'v_mfma_f32_16x16x32_bf16 {vr(KA+4*(ks&1),4)}, {vr(KW+4*ks,4)}, {vr(KX+4*ks,4)}, {cc}')
            else:
                a(f'v_mfma_f32_16x16x32_bf16 {vr(KA+4*(ks&1),4)}, {vr(KX+4*ks,4)}, {vr(KW+4*ks,4)}, {cc}')
            if ks + 7 < 16:
                kv_reads(ks + 7)
        a('s_nop 7')
        for i in range(4):
            a(f'v_add_f32 v{KA+i}, v{KA+i}, v{KA+4+i}')
        if ty == 0:
            for i in range(4):
                a(f'v_mul_f32 v{KA+i}, s{S_T1}, v{KA+i}')
        a(f'v_cvt_pk_bf16_f32 v{KA+8}, v{KA}, v{KA+1}')
        a(f'v_cvt_pk_bf16_f32 v{KA+9}, v{KA+2}, v{KA+3}')
        if KVL: a(f'buffer_store_dwordx4 {vr(KA+8,4)}, {u(6)}, {ws}, s{S_T3} offen')
        a(f'buffer_store_dwordx2 {vr(KA+8,2)}, {u(4)}, {ws}, s{S_T2} offen{SC}')
        a(f'buffer_store_dwordx4 {vr(KA+8,4)}, {u(6)}, {ws}, s{S_CNT} offen{SC}')
        a(f'ds_write_b32 v{V_Z}, v{KA+12} offset:{4*F_KVS}')
        stamp(1)
        a('s_waitcnt vmcnt(0)')
        flag_store(WS_FL1, f's{S_KOFF}', S_TGX)
        stamp(3)
        if ty == 1:
            a('s_branch KG_KP')
        else:
            a(f'v_lshlrev_b32 {u(2)}, 4, v{V_G}')
            a(f'v_add_u32 {u(2)}, {L_GATE}, {u(2)}')
            for half in range(2):
                for k8 in range(8):
                    ks = 8*half + k8
                    a(f'ds_read_b128 {vr(KW+4*ks,4)}, {u(2)} offset:{64*ks}')
                for k8 in range(8):
                    ks = 8*half + k8
                    a(f's_waitcnt lgkmcnt({7-k8})')
                    cc = vr(KA, 4) if ks else '0'
                    a(f'v_mfma_f32_16x16x32_bf16 {vr(KA,4)}, {vr(KW+4*ks,4)}, {vr(KX+4*ks,4)}, {cc}')
            a(f's_lshl_b32 s{S_T0}, s{S_KQ}, 8')
            a(f's_lshl_b32 s{S_T1}, s{S_RB}, 6')
            a(f's_add_u32 s{S_T0}, s{S_T0}, s{S_T1}')
            a(f's_add_u32 s{S_T1}, s{S_T0}, {WS_G}')
            a(f'v_lshlrev_b32 {u(2)}, 2, v{V_I}')
            a('s_nop 6')
            a(f'v_cvt_pk_bf16_f32 {u(3)}, v{KA}, v{KA}')
            a(f'v_lshlrev_b32 {u(3)}, 16, {u(3)}')
            a(f's_mov_b32 s{S_T0}, {f32_bits(-math.log2(math.e))}')
            a(f'v_mul_f32 {u(3)}, s{S_T0}, {u(3)}')
            a(f'v_exp_f32 {u(3)}, {u(3)}')
            a('s_nop 0')
            a(f'v_add_f32 {u(3)}, 1.0, {u(3)}')
            a(f'v_rcp_f32 {u(3)}, {u(3)}')
            a('s_nop 0')
            a(f'v_cvt_pk_bf16_f32 {u(3)}, {u(3)}, {u(3)}')
            a(f'v_lshlrev_b32 {u(3)}, 16, {u(3)}')
            a('s_mov_b64 exec, 0xffff')
            a(f'buffer_store_dword {u(3)}, {u(2)}, {ws}, s{S_T1} offen{SC}')
            a('s_mov_b64 exec, -1')
            a('s_branch KG_KP')

    a.label('KG_TAG')
    stamp(9, 1)
    hsetup()
    a('s_waitcnt vmcnt(0)')
    a(f'v_readfirstlane_b32 s{S_TAG}, {u(3)}')
    a(f's_mul_i32 s{S_TAG}, s{S_TAG}, {TAG_M}')
    a(f's_add_u32 s{S_TAG}, s{S_TAG}, {TAG_C}')
    a(f'v_mov_b32 {u(1)}, 1')
    a(f'v_mov_b32 {u(3)}, s{S_TAG}')
    a(f'ds_write_b32 v{V_Z}, {u(3)} offset:{4*F_TAG}')
    a(f'ds_write_b32 v{V_Z}, {u(1)} offset:{4*F_TAGOK}')
    stamp(2)
    GR = 16
    V_GW, V_QW = V_A1, V_A2
    S_PEND, S_GB, S_DN = S_P, S_KH, S_VM
    a(f's_and_b32 s{S_T0}, s2, 7')
    a(f's_lshl_b32 s{S_GB}, s{S_T0}, 15')
    a(f's_add_u32 s{S_GB}, s{S_GB}, {WS_KVT + (0 if KVL else 0x40000)}')
    a(f's_movk_i32 s{S_PEND}, 0x1ff')
    a(f'v_lshlrev_b32 v{V_GW}, 3, v0')
    a(f'v_add_u32 v{V_GW}, {L_PRE}, v{V_GW}')
    lds_wait(F_KVS, 1, V_U + 4, sleep=1)
    if G_DELAY:
        a(f's_sleep {G_DELAY}')
    def g_loads(c, sc=SC):
        a(f's_add_u32 s{S_T0}, s{S_GB}, {c*4096}')
        for j in range(4):
            a(f'buffer_load_dwordx4 {vr(GR+16*c+4*j,4)}, v{V_L16}, {ws}, s{S_T0} offen offset:{1024*j}{sc}')
    def g_check(c, k):
        for j in range(4):
            a(f'v_cmpx_eq_u32 vcc, s{S_TAG}, v{GR+16*c+4*j+2}')
        a('s_cmp_eq_u64 exec, -1')
        a('s_mov_b64 exec, -1')
        a(f's_cbranch_scc0 KG_GF{k}_{c}')
        for j in range(4):
            a(f'ds_write_b64 v{V_GW}, {vr(GR+16*c+4*j,2)} offset:{512*j}')
        a(f'v_add_u32 {u(6)}, 1, {u(6)}')
        a(f's_bitset0_b32 s{S_PEND}, {c}')
        a(f'v_add_u32 v{V_GW}, 0x800, v{V_GW}')
        a(f'ds_write_b32 v{V_Z}, {u(6)} offset:{4*F_PRE}')
        if GST:
            a(f's_bcnt1_i32_b32 s{S_T1}, s{S_PEND}')
            for n_, st_ in ((8, 7), (5, 8), (1, 10)):
                a(f's_cmp_lg_u32 s{S_T1}, {n_}')
                a(f's_cbranch_scc1 KG_GS{k}_{c}_{n_}')
                stamp(st_, 1)
                a.label(f'KG_GS{k}_{c}_{n_}')
        a.label(f'KG_GF{k}_{c}')
    def g_round(c0, c1, gi):
        for c in range(c0, c1):
            g_loads(c)
        if gi:
            a(f'ds_write_b32 v{V_Z}, {u(1)} offset:{4*F_GI}')
            stamp(1)
        for c in range(c0, c1):
            a(f's_waitcnt vmcnt({4*(c1-1-c)})')
            g_check(c, 0)
    S_AL = S_KB
    a(f'v_mov_b32 {u(6)}, 0')
    g_round(0, G_EARLY, G_EARLY == 8)
    stamp(5)
    if GST: stamp(11, 1)
    a(f's_movk_i32 s{S_AL}, {(1 << G_EARLY) - 1}')
    a(f's_mov_b32 s{S_CNT}, {POLL_LIMIT}')
    a.label('KG_GR')
    a(f's_sub_u32 s{S_CNT}, s{S_CNT}, 1')
    a('s_cbranch_scc1 KG_GE')
    a(f's_cmp_eq_u32 s{S_PEND}, 0x100')
    a('s_cbranch_scc1 KG_GE')
    if G_EARLY < 8:
        a(f's_cmp_eq_u32 s{S_AL}, 0xff')
        a('s_cbranch_scc1 KG_GA')
        a(f'ds_read_b64 {vr(V_U+4,2)}, v{V_Z} offset:{4*F_CX}')
        a('s_waitcnt lgkmcnt(0)')
        a(f'v_min_u32 {u(4)}, {u(4)}, {u(5)}')
        a('s_nop 0')
        a(f'v_readfirstlane_b32 s{S_T0}, {u(4)}')
        a(f's_cmp_lt_u32 s{S_T0}, {G_TRIG}')
        a('s_cbranch_scc1 KG_GA')
        a(f's_movk_i32 s{S_AL}, 0xff')
        g_round(G_EARLY, 8, True)
        a('s_branch KG_GR')
        a.label('KG_GA')
    a(f's_and_b32 s{S_T2}, s{S_PEND}, s{S_AL}')
    a('s_cbranch_scc1 KG_GB')
    a('s_sleep 1')
    a('s_branch KG_GR')
    a.label('KG_GB')
    if KVL:
        assert (WS_KVT & 0x40000) == 0
        a(f's_bitset0_b32 s{S_GB}, 18')
        a(f's_and_b32 s{S_T0}, s{S_CNT}, 3')
        a('s_cbranch_scc1 KG_GC')
        a(f's_bitset1_b32 s{S_GB}, 18')
        a.label('KG_GC')
    for c in range(8):
        a(f's_bitcmp1_b32 s{S_T2}, {c}')
        a(f's_cbranch_scc0 KG_GL{c}')
        g_loads(c)
        a.label(f'KG_GL{c}')
    a('s_waitcnt vmcnt(0)')
    for c in range(8):
        a(f's_bitcmp1_b32 s{S_T2}, {c}')
        a(f's_cbranch_scc0 KG_GF1_{c}')
        g_check(c, 1)
    a('s_branch KG_GR')
    a.label('KG_GE')
    stamp(6)
    a('s_branch KG_WT')
    a.label('KG_KP')
    a(f's_and_b32 s{S_T0}, s2, 7')
    a(f's_lshl_b32 s{S_T0}, s{S_T0}, 3')
    a(f's_mov_b64 s[{S_DN}:{S_DN+1}], 0xff')
    a(f's_lshl_b64 s[{S_DN}:{S_DN+1}], s[{S_DN}:{S_DN+1}], s{S_T0}')
    a(f's_mov_b32 s{S_NQ}, 0')
    a(f's_mov_b32 s{S_QU}, 0')
    a(f's_mov_b32 s{S_NEW}, 0')
    a(f's_mov_b32 s{S_LB}, {L_WQ}')
    if not EPOLL: pg_wait(1)
    elif EPOLL > 1:
        lds_wait(F_CW, EPOLL, V_U, sleep=2)
        lds_wait(F_CX, EPOLL, V_U, sleep=2)
    a(f's_mov_b32 s{S_T1}, {WS_FL1}')
    if GST: stamp(7, 1)
    if KP_DELAY:
        a(f's_sleep {KP_DELAY}')
    glob_poll('KV', -1, KV_SLEEP)
    a(f'v_mov_b32 {u(1)}, 127')
    a(f'ds_write_b32 v{V_Z}, {u(1)} offset:{4*F_N}')
    stamp(5)
    a(f's_lshl_b32 s{S_T0}, s{S_QG}, 1')
    a(f's_add_u32 s{S_T1}, s{S_T0}, 1')
    a(f'v_readlane_b32 s{S_T0}, {u(4)}, s{S_T0}')
    a(f'v_readlane_b32 s{S_T1}, {u(4)}, s{S_T1}')
    a('s_nop 1')
    a(f's_or_b32 s{S_T0}, s{S_T0}, s{S_T1}')
    a(f's_cmp_eq_u32 s{S_T0}, 0')
    a(f's_cselect_b32 s{S_T0}, {2 if FORCE_GL else 1}, 2')
    a(f'v_mov_b32 {u(4)}, s{S_T0}')
    a(f'ds_write_b32 v{V_Z}, {u(4)} offset:{4*F_LOC}')
    for i in range(4):
        a(f'v_mov_b32 {u(4+i)}, -1')
    a(f's_lshl_b32 s{S_T1}, s{S_QG}, 16')
    a(f's_lshl_b32 s{S_T2}, s{S_HG}, 12')
    a(f's_add_u32 s{S_T1}, s{S_T1}, s{S_T2}')
    a(f's_add_u32 s{S_T1}, s{S_T1}, {WS_O}')
    a(f's_add_u32 s{S_T2}, s{S_T1}, 32768')
    a(f's_cmp_eq_u32 s{S_T0}, 1')
    a('s_cbranch_scc1 KG_SE1')
    for n_, sc_ in enumerate((SC, LOCSE)):
        for k in range(8):
            a(f'buffer_store_dwordx4 {vr(V_U+4,4)}, v{V_L16}, {ws}, s{S_T1+(k>>2)} offen offset:{1024*(k&3)}{sc_}')
        if n_ == 0:
            a('s_branch KG_SE2')
            a.label('KG_SE1')
    a.label('KG_SE2')
    a('s_cmp_lg_u32 s2, 0')
    a('s_cbranch_scc1 KG_H3')
    a(f's_mov_b32 s{S_T3}, {WS_ROOT}')
    a(f'v_mov_b32 {u(2)}, 0')
    a(f'v_mov_b32 {u(3)}, s{S_TAG}')
    a('s_mov_b64 exec, 1')
    a(f'buffer_store_dword {u(3)}, {u(2)}, {ws}, s{S_T3} offen{SC}')
    a('s_mov_b64 exec, -1')
    a('s_branch KG_H3')

    a.label('KG_WT')
    if WT_LAG == 127:
        lds_wait(F_N, 127, V_U, sleep=2)
    elif WT_LAG == 100:
        lds_wait(F_POS, 1, V_U, sleep=2)
    elif WT_LAG:
        lds_wait(F_PRE, WT_LAG, V_U, sleep=2)
    S_FW, S_G4, S_PT = S_P, S_KH, S_KB
    a(f's_lshr_b32 s{S_FW}, s{S_QG}, 3')
    a(f's_bfe_u32 s{S_G4}, s{S_QG}, 0x20001')
    a(f's_and_b32 s{S_PT}, s{S_QG}, 1')
    a(f's_cmp_eq_u32 s{S_PT}, 1')
    a(f's_cselect_b64 s[{S_C0}:{S_C0+1}], s[{S_WI}:{S_WI+1}], s[{S_WR}:{S_WR+1}]')
    srd(a, R_A, S_C0, 2048 * 514)
    a(f's_lshl_b32 s{S_T3}, s{S_FW}, 4')
    a(f's_lshl_b32 s{S_T1}, s{S_G4}, 8')
    a(f's_add_u32 s{S_T1}, s{S_T1}, s{S_T3}')
    a(f'v_add_u32 {u(2)}, s{S_T1}, v{V_I}')
    a(f'v_mul_u32_u24 {u(2)}, 514, {u(2)}')
    a(f'v_lshl_add_u32 {u(2)}, v{V_G}, 4, {u(2)}')
    a(f's_lshl_b32 s{S_T1}, s{S_HG}, 6')
    a(f'v_add_u32 {u(2)}, s{S_T1}, {u(2)}')
    a(f'v_and_b32 {u(4)}, 2, {u(2)}')
    a(f'v_and_b32 {u(2)}, -4, {u(2)}')
    for e in range(8):
        a(f's_mov_b32 s{S_T0}, {(16*(e>>2)+(e&3))*32896}')
        a(f'buffer_load_dwordx4 {vr(16+4*e,4)}, {u(2)}, {ra}, s{S_T0} offen')
        a(f'buffer_load_dword v{96+e}, {u(2)}, {ra}, s{S_T0} offen offset:16')
    a(f's_or_b32 s{S_KOFF}, s{S_HG}, s{S_G4}')
    a(f's_cmp_lg_u32 s{S_KOFF}, 0')
    a('s_cbranch_scc1 KG_WT1')
    a(f'v_lshl_add_u32 {u(3)}, v{V_G}, 8, v{V_I}')
    a(f'v_add_u32 {u(3)}, s{S_T3}, {u(3)}')
    a(f'v_mul_u32_u24 {u(3)}, 514, {u(3)}')
    for e in range(8):
        a(f's_mov_b32 s{S_T0}, {(16*(e>>2)+(e&3))*32896}')
        a(f'buffer_load_ushort v{80+e}, {u(3)}, {ra}, s{S_T0} offen offset:512')
    a.label('KG_WT1')
    a(f's_mov_b32 s{S_C0}, 0x05040100')
    a(f's_mov_b32 s{S_C0+1}, 0x07060302')
    a(f'v_lshlrev_b32 {u(2)}, 16, v{V_G}')
    a(f'v_lshl_add_u32 {u(2)}, v{V_I}, 4, {u(2)}')
    a(f's_lshl_b32 s{S_T1}, s{S_HG}, 18')
    a(f's_lshl_b32 s{S_T2}, s{S_FW}, 11')
    a(f's_lshl_b32 s{S_T0}, s{S_PT}, 10')
    a(f's_add_u32 s{S_T2}, s{S_T2}, s{S_T0}')
    a(f's_add_u32 s{S_T2}, s{S_T2}, {WS_WT}')
    a(f's_add_u32 s{S_T1}, s{S_T1}, s{S_T2}')
    a(f's_lshl_b32 s{S_T0}, s{S_G4}, 8')
    a(f's_add_u32 s{S_T1}, s{S_T1}, s{S_T0}')
    a('s_waitcnt vmcnt(0)')
    stamp(3)
    for e in range(8):
        for j in range(4):
            hi = 16 + 4*e + j + 1 if j < 3 else 96 + e
            a(f'v_alignbyte_b32 v{16+4*e+j}, v{hi}, v{16+4*e+j}, {u(4)}')
    for ph in range(8):
        for q in range(4):
            lo = 16 + 4*(2*q) + (ph >> 1); hi = 16 + 4*(2*q+1) + (ph >> 1)
            a(f'v_perm_b32 v{48+4*ph+q}, v{hi}, v{lo}, s{S_C0+(ph&1)}')
    for ph in range(8):
        a(f's_add_u32 s{S_T0}, s{S_T1}, {8192*ph}')
        if not E('WT_NOST', 0): a(f'buffer_store_dwordx4 {vr(48+4*ph,4)}, {u(2)}, {ws}, s{S_T0} offen{SC}')
    a(f's_cmp_lg_u32 s{S_KOFF}, 0')
    a('s_cbranch_scc1 KG_J1')
    for q in range(4):
        a(f'v_lshl_or_b32 v{88+q}, v{81+2*q}, 16, v{80+2*q}')
    a(f's_add_u32 s{S_T0}, s{S_T2}, {256*8192}')
    a(f'buffer_store_dwordx4 {vr(88,4)}, v{V_L16}, {ws}, s{S_T0} offen{SC}')
    a('s_branch KG_J1')

    HT, HX, HA = 16, 64, 128
    a.label('KG_H2B')
    stamp(2)
    hsetup()
    table_srd(a, R_TB, 'TAB_F', 512 * 1024, 'f')
    a(f's_and_b32 s{S_CT}, s{S_HW}, 1')
    a(f's_lshl_b32 s{S_T2}, s{S_HG}, 16')
    a(f's_lshl_b32 s{S_T0}, s{S_CT}, 10')
    a(f's_add_u32 s{S_T2}, s{S_T2}, s{S_T0}')
    if TF_LAG == 1:
        lds_wait(F_GI, 1, V_U, sleep=2)
    elif TF_LAG == 2:
        lds_wait(F_QDONE, 1, V_U, sleep=1)
    elif TF_LAG == 100:
        lds_wait(F_POS, 1, V_U, sleep=2)
    elif TF_LAG:
        lds_wait(F_PRE, TF_LAG, V_U, sleep=2)
    if ROT == 3:
        a(f's_lshr_b32 s{S_KOFF}, s2, 6')
        a(f's_lshl_b32 s{S_KOFF}, s{S_KOFF}, 14')
    def tload(i):
        if ROT == 3:
            if i % 8 == 0:
                if i:
                    a(f's_add_u32 s{S_KOFF}, s{S_KOFF}, 0x4000')
                    a(f's_bitset0_b32 s{S_KOFF}, 16')
                a(f's_add_u32 s{S_KB}, s{S_T2}, s{S_KOFF}')
            if i % 2 == 0:
                a(f's_add_u32 s{S_T3}, s{S_KB}, {(i%8)*2048}')
        elif i % 2 == 0:
            a(f's_add_u32 s{S_T3}, s{S_T2}, {i*2048}')
        a(f'buffer_load_dwordx4 {vr(HT+4*(i%12),4)}, v{V_L16}, {tb}, s{S_T3} offen offset:{(i%2)*2048}')
    PD = H2_PD
    assert PD <= 12
    for i in range(PD):
        tload(i)
    a(f'v_and_b32 {u(4)}, 31, v0')
    a(f'v_lshrrev_b32 {u(5)}, 5, v0')
    a(f'v_bfe_u32 {u(6)}, v0, 1, 3')
    a(f'v_lshlrev_b32 {u(7)}, 7, {u(4)}')
    for ks in range(4):
        a(f'v_add_u32 v{HA+ks}, {2*ks}, {u(5)}')
        a(f'v_xor_b32 v{HA+ks}, v{HA+ks}, {u(6)}')
        a(f'v_lshl_add_u32 {u(ks)}, v{HA+ks}, 4, {u(7)}')
    a(f'v_lshlrev_b32 v{V_A1}, 12, {u(4)}')
    a(f'v_lshl_add_u32 v{V_A1}, {u(5)}, 5, v{V_A1}')
    stamp(5)
    if BST:
        a(f's_memtime s[{SB+2*3}:{SB+1+2*3}]'); a(f's_memrealtime s[{SB+2*1}:{SB+1+2*1}]')
    lds_wait(F_CX, 8, V_U + 4, sleep=2)
    def xreads(c):
        for ks in range(4):
            for aa in range(2):
                a(f'ds_read_b128 {vr(HX+32*(c&1)+16*aa+4*ks,4)}, {u(ks)} offset:{c*8192+4096*aa}')
    if PRI & 1: a('s_setprio 0')
    xreads(0)
    for c in range(8):
        if c < 7:
            xreads(c + 1)
        for ks in range(4):
            i = 4*c + ks
            a(f's_waitcnt vmcnt({min(PD-1, 31-i)}) lgkmcnt({2*(3-ks) + (8 if c < 7 else 0)})')
            for aa in range(2):
                cc = vr(HA + 16*aa, 16) if i else '0'
                a(f'v_mfma_f32_32x32x16_bf16 {vr(HA+16*aa,16)}, {vr(HX+32*(c&1)+16*aa+4*ks,4)}, {vr(HT+4*(i%12),4)}, {cc}')
            if i + PD < 32: tload(i + PD)
    if PRI & 1: a('s_setprio 2')
    lds_add(F_H2, V_U)
    a(f's_lshl_b32 s{S_T0}, s{S_HG}, 18')
    a(f's_lshl_b32 s{S_T1}, s{S_CT}, 17')
    a(f's_add_u32 s{S_T0}, s{S_T0}, s{S_T1}')
    a(f's_lshl_b32 s{S_T1}, s{S_QG}, 7')
    a(f's_add_u32 s{S_T0}, s{S_T0}, s{S_T1}')
    a(f's_add_u32 s{S_T2}, s{S_T0}, {WS_X1T}')
    if BST:
        a(f's_memtime s[{SB+2*4}:{SB+1+2*4}]'); a(f's_memrealtime s[{SB+2*2}:{SB+1+2*2}]')
    lds_wait(F_TAGOK, 1, V_U)
    get_tag(V_U)
    a('s_nop 4')
    for i in range(16):
        a(f'v_cvt_pk_bf16_f32 v{HX+i}, v{HA+2*i}, v{HA+2*i+1}')
    for aa in range(2):
        for q in range(2):
            a(f'buffer_store_dwordx4 {vr(HX+8*aa+4*q,4)}, v{V_A1}, {ws}, s{S_T2} offen offset:{64*aa+16*q}{SC}')
    a.label('KG_J1')
    join_flag(F_J1, 3, WS_FL2)
    stamp(6)
    a.label('KG_H3')
    if E('NOHELP', 0) == 1:
        lds_add(F_J2, V_U)
        dump()
        a('s_endpgm')

    V_T1 = 16
    V_T2 = 64
    V_D = 88
    V_TW = 104
    V_XX = 120
    V_W = 136
    V_AC = 152
    S_FW = S_HW
    table_srd(a, R_TB, 'TAB_K2', O_AD + (24576 if HTB else 0), 'k2')
    O_T1, O_T2, O_TW1, O_TW2 = 0, 24576, 30720, 30720 + 16384
    AD = 216
    ONE, PGA = (V_A1, V_A2) if HTB else (None, None)
    S_AD = S_C1
    if HTB:
        a(f's_mul_i32 s{S_AD}, s{S_FW}, 6144')
        a(f's_add_u32 s{S_AD}, s{S_AD}, {O_AD}')
        a(f'buffer_load_dwordx3 {vr(V_A1,3)}, v{V_L16}, {tb}, s{S_AD} offen offset:2048')
        a(f'buffer_load_dwordx4 {vr(AD,4)}, v{V_L16}, {tb}, s{S_AD} offen')
        a(f'buffer_load_dword v{AD+4}, v{V_L16}, {tb}, s{S_AD} offen offset:1024')
    a(f's_lshr_b32 s{S_MH}, s{S_FW}, 1')
    a(f's_and_b32 s{S_NH}, s{S_FW}, 1')
    a(f's_mul_i32 s{S_T0}, s{S_MH}, 12288')
    for i in range(12):
        if i % 4 == 0 and i:
            a(f's_add_u32 s{S_T0}, s{S_T0}, 4096')
        a(f'buffer_load_dwordx4 {vr(V_T1+4*i,4)}, v{V_L16}, {tb}, s{S_T0} offen offset:{(i%4)*1024}')
        thr()
    a(f's_lshl_b32 s{S_T2}, s{S_FW}, 12')
    a(f's_add_u32 s{S_T0}, s{S_T2}, {O_TW1}')
    for i in range(4):
        a(f'buffer_load_dwordx4 {vr(V_TW+4*i,4)}, v{V_L16}, {tb}, s{S_T0} offen offset:{i*1024}')
        thr()
    a(f's_mov_b32 s{S_T0}, {O_T2}')
    a(f's_mov_b32 s{S_T1}, {O_T2+4096}')
    for i in range(6):
        a(f'buffer_load_dwordx4 {vr(V_T2+4*i,4)}, v{V_L16}, {tb}, s{S_T0+(i>>2)} offen offset:{(i%4)*1024}')
        thr()
    if not HTB:
        a(f's_lshl_b32 s{S_T0}, s{S_FW}, 4')
        a(f'v_lshl_add_u32 v{V_A3}, v{V_G}, 8, v{V_I}')
        a(f'v_add_u32 v{V_A3}, s{S_T0}, v{V_A3}')
    else:
        assert THR <= 19
    a(f's_cmp_eq_u32 s{S_F}, 0')
    a('s_cbranch_scc1 KG_SPA')
    a.label('KG_SPAR')
    if T2:
        a(f's_cmp_lt_u32 s{S_HW}, 2')
        a('s_cbranch_scc1 KG_T2E')
        table_srd(a, R_A, 'TAB_FINV', 512 * 1024, 't2')
        a(f's_cmp_eq_u32 s{S_HW}, 3')
        a(f's_cselect_b64 s[{R_A}:{R_A+1}], s[{S_WO}:{S_WO+1}], s[{R_A}:{R_A+1}]')
        a(f's_lshr_b32 s{S_T0}, s2, 3')
        a(f's_lshl_b32 s{S_T0}, s{S_T0}, 14')
        a(f's_add_u32 s{S_T1}, s{S_T0}, 8192')
        a(f'v_lshlrev_b32 {u(0)}, 7, v0')
        a(f'buffer_load_dword v254, {u(0)}, {ra}, s{S_T0} offen')
        a(f'buffer_load_dword v255, {u(0)}, {ra}, s{S_T1} offen')
        a.label('KG_T2E')
    a(f's_cmp_lg_u32 s{S_HW}, 0')
    a('s_cbranch_scc1 KG_PCE')
    lds_wait(F_H2, 2, V_U, sleep=4)
    a(f's_mov_b32 s{S_LB}, {L_X}')
    for k in range(3):
        a(f's_bfe_u32 s{S_T0}, s{S_QU}, {hex(0x30000 + 3*(2-k))}')
        a(f's_lshl_b32 s{S_T0}, s{S_T0}, 14')
        a(f's_add_u32 s{S_T0}, s{S_T0}, {WS_KV}')
        kv_dma(S_T0, S_LB)
    a(f'v_mov_b32 {u(1)}, 8')
    a('s_waitcnt vmcnt(0)')
    a(f'ds_write_b32 v{V_Z}, {u(1)} offset:{4*F_POS}')
    stamp(6)
    a.label('KG_PCE')
    if E('NOHELP', 0) == 2:
        dump()
        a('s_endpgm')
    a(f's_cmp_lg_u32 s{S_HW}, 1')
    a('s_cbranch_scc1 KG_S1W')
    a(f's_lshl_b32 s{S_T1}, s{S_HG}, 10')
    a(f's_add_u32 s{S_T1}, s{S_T1}, {WS_FL2}')
    glob_poll('S1', 0xff, S1_SLEEP)
    if HTB: a(f'ds_write_b32 v{V_Z}, v{ONE} offset:{4*F_S1OK}')
    else:
        a(f'v_mov_b32 {u(1)}, 1')
        a(f'ds_write_b32 v{V_Z}, {u(1)} offset:{4*F_S1OK}')
    a.label('KG_S1W')
    pg_wait(3, pa=PGA)
    lds_wait(F_S1OK, 1, V_U, sleep=4)
    stamp(7)
    if BST: a(f's_memtime s[{SB+2*9}:{SB+1+2*9}]')
    if not HTB:
        a(f'v_lshlrev_b32 v{V_A1}, 7, v{V_I}')
        a(f'v_lshl_add_u32 v{V_A1}, v{V_G}, 4, v{V_A1}')
    a(f's_lshl_b32 s{S_T0}, s{S_F}, 13')
    a(f's_lshl_b32 s{S_T1}, s{S_NH}, 11')
    a(f's_add_u32 s{S_T0}, s{S_T0}, s{S_T1}')
    a(f's_add_u32 s{S_T0}, s{S_T0}, {WS_X1T}')
    a(f's_add_u32 s{S_T1}, s{S_T0}, 4096')
    for part in range(2):
        for ks in range(2):
            a(f'buffer_load_dwordx4 {vr(V_D+8*part+4*ks,4)}, v{AD if HTB else V_A1}, {ws}, s{S_T0+part} offen offset:{64*ks}{SC}')
    a(f's_lshl_b32 s{S_T0}, s{S_F}, 13')
    a(f's_lshl_b32 s{S_T1}, s{S_FW}, 11')
    a(f's_add_u32 s{S_T1}, s{S_T1}, {WS_WT}')
    a(f's_add_u32 s{S_T0}, s{S_T0}, s{S_T1}')
    a(f's_cmp_lg_u32 s{S_F}, 0')
    a('s_cbranch_scc1 KG_NXX')
    a(f's_add_u32 s{S_T1}, s{S_T1}, {256*8192}')
    for part in range(2):
        a(f'buffer_load_dwordx4 {vr(V_XX+8*part+4,4)}, v{V_L16}, {ws}, s{S_T1} offen offset:{1024*part}{SC}')
    a.label('KG_NXX')
    for part in range(2):
        a(f'buffer_load_dwordx4 {vr(V_W+8*part+4,4)}, v{V_L16}, {ws}, s{S_T0} offen offset:{1024*part}{SC}')

    def mf(d, x, y, c):
        cc = vr(d, 4) if c else '0'
        a(f'v_mfma_f32_16x16x32_bf16 {vr(d,4)}, {vr(x,4)}, {vr(y,4)}, {cc}')
    def t1(nt, ks, v): return V_T1 + 4 * ((nt * 2 + ks) * 3 + v)
    def t2(mt, v): return V_T2 + 4 * (mt * 3 + v)
    def cmul2(ar, ai, c_, s_):
        a(f'v_pk_mul_f32 {vr(V_U,2)}, {vr(ar,2)}, {vr(c_,2)}')
        a(f'v_pk_mul_f32 {vr(V_U+2,2)}, {vr(ar,2)}, {vr(s_,2)}')
        a(f'v_pk_fma_f32 {vr(ar,2)}, {vr(ai,2)}, {vr(s_,2)}, {vr(V_U,2)} neg_lo:[1,0,0] neg_hi:[1,0,0]')
        a(f'v_pk_fma_f32 {vr(ai,2)}, {vr(ai,2)}, {vr(c_,2)}, {vr(V_U+2,2)}')
    def cmul_pack(dst):
        for t_ in range(2):
            for r in range(4):
                if PKM:
                    if r & 1 == 0: cmul2(V_AC + 8*t_ + r, V_AC + 8*t_ + 4 + r, V_TW + 8*t_ + r, V_TW + 8*t_ + 4 + r)
                    continue
                ar, ai = V_AC + 8*t_ + r, V_AC + 8*t_ + 4 + r
                c_, s_ = V_TW + 8*t_ + r, V_TW + 8*t_ + 4 + r
                uu = V_U + (r & 1) * 2
                a(f'v_mul_f32 v{uu}, v{ar}, v{c_}')
                a(f'v_mul_f32 v{uu+1}, v{ar}, v{s_}')
                a(f'v_fma_f32 v{ar}, -v{ai}, v{s_}, v{uu}')
                a(f'v_fma_f32 v{ai}, v{ai}, v{c_}, v{uu+1}')
        for i in range(8):
            a(f'v_cvt_pk_bf16_f32 v{dst+i}, v{V_AC+2*i}, v{V_AC+2*i+1}')
    def sync(flag):
        a('s_waitcnt lgkmcnt(0)')
        lds_add(flag, V_U, ONE)
        lds_wait(flag, 4, V_U, sleep=2)

    def lo():
        if PRI & 4: a('s_setprio 0')
    def hi():
        if PRI & 4: a('s_setprio 2')
    lo()
    a('s_waitcnt vmcnt(2)')
    zr = lambda ks: V_D + 4*ks
    zi = lambda ks: V_D + 8 + 4*ks
    for ks in range(2):
        for nt in range(2):
            mf(V_AC + 8*nt, zr(ks), t1(nt, ks, 0), ks)
            mf(V_AC + 8*nt + 4, zi(ks), t1(nt, ks, 0), ks)
        for nt in range(2):
            mf(V_AC + 8*nt, zi(ks), t1(nt, ks, 2), 1)
            mf(V_AC + 8*nt + 4, zr(ks), t1(nt, ks, 1), 1)
    hi()
    a(f's_cmp_eq_u32 s{S_F}, 0')
    a('s_cbranch_scc1 KG_SPB')
    a.label('KG_SPBR')
    ad = lambda k: f'v{AD+k}' if HTB else u(4)
    if HTB: a('s_nop 7')
    else:
        a(f's_mul_i32 s{S_T0}, s{S_MH}, 2560')
        a(f's_lshl_b32 s{S_T1}, s{S_NH}, 3')
        a(f's_add_u32 s{S_T0}, s{S_T0}, s{S_T1}')
        a(f'v_mul_u32_u24 v{V_A1}, 80, v{V_I}')
        a(f'v_lshl_add_u32 v{V_A1}, v{V_G}, 4, v{V_A1}')
        a(f'v_add_u32 v{V_A1}, {L_APR}, v{V_A1}')
        a(f'v_add_u32 {u(4)}, s{S_T0}, v{V_A1}')
    a('s_nop 4')
    cmul_pack(V_D)
    for nt in range(2):
        a(f'ds_write_b64 {ad(1)}, {vr(V_D+4*nt,2)} offset:{1280*nt}')
        a(f'ds_write_b64 {ad(1)}, {vr(V_D+4*nt+2,2)} offset:{L_API-L_APR+1280*nt}')
    a(f's_add_u32 s{S_T0}, s{S_T2}, {O_TW2}')
    for i in range(4):
        a(f'buffer_load_dwordx4 {vr(V_TW+4*i,4)}, v{V_L16}, {tb}, s{S_T0} offen offset:{i*1024}')
    sync(F_SY0)
    if not HTB:
        a(f's_mul_i32 s{S_T0}, s{S_FW}, 1280')
        a(f'v_add_u32 {u(4)}, s{S_T0}, v{V_A1}')
    a(f'ds_read_b128 {vr(V_D,4)}, {ad(2)}')
    a(f'ds_read_b128 {vr(V_D+4,4)}, {ad(2)} offset:{L_API-L_APR}')
    lo()
    a('s_waitcnt vmcnt(4) lgkmcnt(0)')
    for mt in range(2):
        mf(V_AC + 8*mt, t2(mt, 0), V_D, 0)
        mf(V_AC + 8*mt + 4, t2(mt, 0), V_D + 4, 0)
    for mt in range(2):
        mf(V_AC + 8*mt, t2(mt, 2), V_D + 4, 1)
        mf(V_AC + 8*mt + 4, t2(mt, 1), V_D, 1)
    hi()
    def unpack(base):
        for part in range(2):
            b = base + 8*part
            for q in range(4):
                a(f'v_lshlrev_b32 v{b+2*q}, 16, v{b+4+q}')
                a(f'v_and_b32 v{b+2*q+1}, 0xffff0000, v{b+4+q}')
    unpack(V_W)
    a(f's_cmp_eq_u32 s{S_F}, 0')
    a('s_cbranch_scc1 KG_SPECIAL')
    for e in range(8):
        mt, r = e >> 2, e & 3
        ar, ai = V_AC + 8*mt + r, V_AC + 8*mt + 4 + r
        c_, s_ = V_W + e, V_W + 8 + e
        if PKM:
            if r & 1 == 0: cmul2(ar, ai, c_, s_)
            continue
        uu = V_U + (r & 1) * 2
        a(f'v_mul_f32 v{uu}, v{ar}, v{c_}')
        a(f'v_mul_f32 v{uu+1}, v{ar}, v{s_}')
        a(f'v_fma_f32 v{ar}, -v{ai}, v{s_}, v{uu}')
        a(f'v_fma_f32 v{ai}, v{ai}, v{c_}, v{uu+1}')
    a.label('KG_STEP3')
    for mt in range(2):
        for part in range(2):
            for q in range(2):
                src = V_AC + 8*mt + 4*part + 2*q
                a(f'v_cvt_pk_bf16_f32 v{V_D+4*part+2*mt+q}, v{src}, v{src+1}')
    lo()
    a('s_nop 1')
    for mt in range(2):
        mf(V_AC + 8*mt, V_D, t2(mt, 0), 0)
        mf(V_AC + 8*mt + 4, V_D + 4, t2(mt, 0), 0)
    for mt in range(2):
        mf(V_AC + 8*mt, V_D + 4, t2(mt, 1), 1)
        mf(V_AC + 8*mt + 4, V_D, t2(mt, 2), 1)
    hi()
    if HTB: a('s_nop 7')
    else:
        a(f'v_mul_u32_u24 v{V_A1}, 144, v{V_I}')
        a(f'v_add_u32 v{V_A1}, {L_CPR}, v{V_A1}')
        a(f's_lshl_b32 s{S_T0}, s{S_FW}, 5')
        a(f'v_lshl_add_u32 {u(4)}, v{V_G}, 3, v{V_A1}')
        a(f'v_add_u32 {u(4)}, s{S_T0}, {u(4)}')
    a('s_waitcnt vmcnt(0)')
    a('s_nop 4')
    cmul_pack(V_D)
    for mt in range(2):
        a(f'ds_write_b64 {ad(3)}, {vr(V_D+4*mt,2)} offset:{2304*mt}')
        a(f'ds_write_b64 {ad(3)}, {vr(V_D+4*mt+2,2)} offset:{L_CPI-L_CPR+2304*mt}')
    sync(F_SY1)
    if not HTB:
        a(f's_mul_i32 s{S_T0}, s{S_NH}, 2304')
        a(f'v_lshl_add_u32 {u(4)}, v{V_G}, 4, v{V_A1}')
        a(f'v_add_u32 {u(4)}, s{S_T0}, {u(4)}')
    for part in range(2):
        for ks in range(2):
            a(f'ds_read_b128 {vr(V_D+8*part+4*ks,4)}, {ad(4)} offset:{(L_CPI-L_CPR)*part+64*ks}')
    lo()
    a('s_waitcnt lgkmcnt(0)')
    for ks in range(2):
        for nt in range(2):
            mf(V_AC + 8*nt, t1(nt, ks, 0), zr(ks), ks)
            mf(V_AC + 8*nt + 4, t1(nt, ks, 0), zi(ks), ks)
        for nt in range(2):
            mf(V_AC + 8*nt, t1(nt, ks, 1), zi(ks), 1)
            mf(V_AC + 8*nt + 4, t1(nt, ks, 2), zr(ks), 1)
    hi()
    if HTB: a('s_nop 1')
    else:
        a(f'v_lshlrev_b32 {u(4)}, 7, v{V_I}')
        a(f'v_lshl_add_u32 {u(4)}, v{V_G}, 4, {u(4)}')
    a(f's_lshl_b32 s{S_T0}, s{S_F}, 13')
    a(f's_lshl_b32 s{S_T1}, s{S_NH}, 11')
    a(f's_add_u32 s{S_T0}, s{S_T0}, s{S_T1}')
    a(f's_lshl_b32 s{S_T1}, s{S_MH}, 6')
    a(f's_add_u32 s{S_T0}, s{S_T0}, s{S_T1}')
    a(f's_add_u32 s{S_T0}, s{S_T0}, {WS_Y1T}')
    a(f's_add_u32 s{S_T1}, s{S_T0}, 4096')
    for part in range(2):
        for nt in range(2):
            for q in range(2):
                src = V_AC + 8*nt + 4*part + 2*q
                a(f'v_cvt_pk_bf16_f32 v{V_D+4*part+2*nt+q}, v{src}, v{src+1}')
    for part in range(2):
        a(f'buffer_store_dwordx4 {vr(V_D+4*part,4)}, {ad(0)}, {ws}, s{S_T0+part} offen{SC}')
    join_flag(F_J2, 4, WS_FL3, ONE)
    stamp(8)
    if E('NOHELP', 0) == 2:
        dump()
        a('s_endpgm')

    AB, AA, LF, FR = 16, 32, 32, 64
    NFR = 14
    AX, FI, FW = 48, 64, 128
    V_DM, V_RA, V_RY, V_OUT, V_GT, V_DW = 120, 121, 122, 123, 124, 125
    S_MI, S_NI = S_CT, S_A
    a(f's_lshr_b32 s{S_MI}, s{S_HW}, 1')
    a(f's_and_b32 s{S_NI}, s{S_HW}, 1')
    srd(a, R_A, S_WO, 512 * 1024)
    srd(a, R_OUT, S_OUT, 2048 * 1024)
    V_DW2, V_GT2, V_RA2, V_RY2 = (126, 127, V_RA, V_A3) if HTB else (V_DW, V_GT, V_RA, V_RY)
    S_OO = S_MH
    if HTB:
        a(f's_add_u32 s{S_AD}, s{S_AD}, 3072')
        a(f'buffer_load_dwordx4 {vr(V_GT,4)}, v{V_L16}, {tb}, s{S_AD} offen offset:1024')
        a(f'buffer_load_dwordx4 {vr(V_DM,4)}, v{V_L16}, {tb}, s{S_AD} offen')
        a(f'buffer_load_dwordx4 {vr(LF,4)}, v{V_L16}, {tb}, s{S_AD} offen offset:2048')
        a(f's_sub_u32 s{S_AD}, s{S_AD}, 2048')
        a(f'buffer_load_dword v{V_RY2}, v{V_L16}, {tb}, s{S_AD} offen offset:4')
    table_srd(a, R_TB, 'TAB_FINV', 512 * 1024, 'fi')
    if not HTB: a(f'v_lshrrev_b32 {u(0)}, 3, v0')
    if not HTB: a(f'v_and_b32 {u(1)}, 7, v0')
    if not HTB: a(f'v_and_b32 {u(2)}, 1, v{V_G}')
    if not HTB: a(f'v_lshlrev_b32 {u(3)}, 2, {u(2)}')
    if not HTB: a(f'v_xor_b32 {u(3)}, {u(3)}, {u(1)}')
    if not HTB: a(f'v_lshlrev_b32 {u(3)}, 4, {u(3)}')
    if not HTB: a(f'v_lshl_add_u32 {u(4)}, {u(0)}, 10, {u(3)}')
    if not HTB: a(f'v_mov_b32 v{V_DW}, {u(4)}')
    a(f's_lshl_b32 s{S_T3}, s{S_HW}, 14')
    if not HTB: a(f'v_lshl_add_u32 v{V_DM}, {u(0)}, 12, {u(3)}')
    if not HTB: a(f'v_and_b32 {u(0)}, 31, v0')
    if not HTB: a(f'v_lshrrev_b32 {u(1)}, 5, v0')
    if not HTB: a(f'v_bfe_u32 {u(3)}, v0, 2, 2')
    if not HTB: a(f'v_and_b32 {u(4)}, 3, v0')
    if not HTB: a(f'v_lshrrev_b32 {u(5)}, 1, {u(4)}')
    if not HTB: a(f'v_and_b32 {u(4)}, 1, {u(4)}')
    if not HTB: a(f'v_lshrrev_b32 {u(6)}, 1, {u(3)}')
    if not HTB: a(f'v_lshlrev_b32 {u(6)}, 2, {u(6)}')
    if not HTB: a(f'v_lshl_add_u32 {u(7)}, {u(4)}, 1, {u(2)}')
    if not HTB: a(f's_lshl_b32 s{S_T0}, s{S_MI}, 2')
    if not HTB: a(f'v_add_u32 {u(7)}, s{S_T0}, {u(7)}')
    if not HTB: a(f'v_xor_b32 {u(7)}, {u(7)}, {u(6)}')
    if not HTB: a(f'v_lshlrev_b32 {u(7)}, 4, {u(7)}')
    if not HTB: a(f'v_lshl_add_u32 {u(7)}, {u(5)}, 3, {u(7)}')
    if not HTB: a(f'v_lshl_add_u32 v{V_RA}, {u(1)}, 2, {u(3)}')
    if not HTB: a(f'v_lshl_add_u32 v{V_RA}, v{V_RA}, 7, {u(7)}')
    if not HTB: a(f'v_lshl_add_u32 {u(7)}, {u(2)}, 1, {u(5)}')
    if not HTB: a(f's_lshl_b32 s{S_T0}, s{S_NI}, 2')
    if not HTB: a(f'v_add_u32 {u(7)}, s{S_T0}, {u(7)}')
    if not HTB: a(f'v_xor_b32 {u(7)}, {u(7)}, {u(6)}')
    if not HTB: a(f'v_lshlrev_b32 {u(7)}, 4, {u(7)}')
    if not HTB: a(f'v_lshl_add_u32 {u(7)}, {u(4)}, 3, {u(7)}')
    if not HTB: a(f'v_lshl_add_u32 v{V_RY}, {u(1)}, 3, {u(3)}')
    if not HTB: a(f'v_lshl_add_u32 v{V_RY}, v{V_RY}, 7, {u(7)}')
    if not HTB: a(f'v_add_u32 v{V_RY}, {L_Y}, v{V_RY}')
    if not HTB: a(f'v_bfe_u32 {u(5)}, {u(0)}, 2, 1')
    if not HTB: a(f'v_lshrrev_b32 {u(6)}, 3, {u(0)}')
    if not HTB: a(f'v_and_b32 {u(7)}, 3, {u(0)}')
    if not HTB: a(f'v_lshl_add_u32 {u(7)}, {u(5)}, 4, {u(7)}')
    if not HTB: a(f'v_lshl_add_u32 {u(7)}, {u(6)}, 2, {u(7)}')
    if not HTB: a(f'v_lshlrev_b32 {u(7)}, 15, {u(7)}')
    if not HTB: a(f'v_lshl_add_u32 {u(7)}, {u(1)}, 5, {u(7)}')
    a(f's_lshl_b32 s{S_T0}, s{S_NI}, 20')
    a(f's_lshl_b32 s{S_T1}, s{S_QG}, 10')
    a(f's_add_u32 s{S_T0}, s{S_T0}, s{S_T1}')
    a(f's_lshl_b32 s{S_T1}, s{S_HG}, 7')
    a(f's_add_u32 s{S_T0}, s{S_T0}, s{S_T1}')
    a(f's_lshl_b32 s{S_T1}, s{S_MI}, 6')
    a(f's_add_u32 s{S_T0}, s{S_T0}, s{S_T1}')
    if HTB: a(f's_mov_b32 s{S_OO}, s{S_T0}')
    else: a(f'v_add_u32 v{V_OUT}, s{S_T0}, {u(7)}')
    if not HTB: a(f'v_lshlrev_b32 v{V_GT}, 2, {u(0)}')
    S_FI = S_KOFF
    a(f's_lshl_b32 s{S_FI}, s{S_HG}, 16')
    a(f's_lshl_b32 s{S_T0}, s{S_MI}, 10')
    a(f's_add_u32 s{S_FI}, s{S_FI}, s{S_T0}')
    def fload(i):
        if i % 2 == 0:
            a(f's_add_u32 s{S_KB}, s{S_FI}, {i*2048}')
        a(f'buffer_load_dwordx4 {vr(FR+4*(i%NFR),4)}, v{V_L16}, {tb}, s{S_KB} offen offset:{(i%2)*2048}')
    for i in range(NFR):
        fload(i)
        thr()
    if FI_TOUCH:
        a(f'v_lshlrev_b32 {u(0)}, 7, v0')
        a(f'v_and_b32 {u(1)}, 0x1c00, {u(0)}')
        a(f'v_add_u32 {u(0)}, {u(0)}, {u(1)}')
        for k in range(3):
            a(f's_add_u32 s{S_KB}, s{S_FI}, {(8+8*k)*2048}')
            a(f'buffer_load_dword v{FW+k}, {u(0)}, {tb}, s{S_KB} offen')
    lds_wait(F_J2, 4, V_U, sleep=2)
    pg_wait(4, 2, pa=PGA)
    if HTB: a(f's_waitcnt vmcnt({NFR})')
    a(f's_lshl_b32 s{S_T2}, s{S_HW}, 17')
    a(f's_lshl_b32 s{S_T0}, s{S_HG}, 7')
    a(f's_add_u32 s{S_T2}, s{S_T2}, s{S_T0}')
    a(f's_add_u32 s{S_T1}, s{S_T3}, {L_WQ}')
    a(f's_cmp_eq_u32 s{S_HW}, 2')
    a(f's_cselect_b32 s{S_T1}, {L_KW}, s{S_T1}')
    a(f's_cmp_eq_u32 s{S_HW}, 3')
    a(f's_cselect_b32 s{S_T1}, s{S_T3}, s{S_T1}')
    for i in range(16):
        a(f's_add_u32 m0, s{S_T1}, {i*1024}')
        a(f's_add_u32 s{S_T0}, s{S_T2}, {i*8192}')
        a(f'buffer_load_dwordx4 v{V_DW}, {ra}, s{S_T0} offen lds')
        thr()
    if not HTB:
        a(f's_mov_b32 s{S_T0}, {L_WQ}')
        a(f's_mov_b32 s{S_T1}, {L_WQ + 16384}')
        a(f's_cmp_eq_u32 s{S_MI}, 1')
        a(f's_cselect_b32 s{S_T0}, {L_KW}, s{S_T0}')
        a(f's_cselect_b32 s{S_T1}, 49152, s{S_T1}')
        a(f'v_add_u32 v{LF}, s{S_T0}, v{V_RA}')
        a(f'v_add_u32 v{LF+2}, s{S_T1}, v{V_RA}')
        a(f'v_xor_b32 v{LF+1}, 64, v{LF}')
        a(f'v_xor_b32 v{LF+3}, 64, v{LF+2}')
    a('s_waitcnt vmcnt(0)')
    sync(F_J4)
    def fw(j, t_, o): return FW + 64*t_ + 8*j + 4*o
    for t_ in range(2):
        for j in range(8):
            i = 2*j + t_
            for o in range(2):
                ad = LF + 2*(i >> 3) + o
                a(f'ds_read_b64_tr_b16 {vr(fw(j,t_,o),2)}, v{ad} offset:{(i&7)*2048}')
                a(f'ds_read_b64_tr_b16 {vr(fw(j,t_,o)+2,2)}, v{ad} offset:{(i&7)*2048+1024}')
    a('s_waitcnt lgkmcnt(0)')
    lds_add(F_WR, V_U, ONE)
    if TST: stamp(6)
    a(f's_cmp_lg_u32 s{S_HW}, 1')
    a('s_cbranch_scc1 KG_S2W')
    a(f's_mov_b32 s{S_T1}, {WS_FL3}')
    glob_poll('S2', -1, S2_SLEEP)
    if HTB: a(f'ds_write_b32 v{V_Z}, v{ONE} offset:{4*F_S2OK}')
    else:
        a(f'v_mov_b32 {u(1)}, 1')
        a(f'ds_write_b32 v{V_Z}, {u(1)} offset:{4*F_S2OK}')
    a.label('KG_S2W')
    pg_wait(6, 4, pa=PGA)
    lds_wait(F_WR, 4, V_U, sleep=4)
    lds_wait(F_S2OK, 1, V_U, sleep=4)
    if not BST: stamp(9)
    a(f's_lshl_b32 s{S_T2}, s{S_HW}, 19')
    a(f's_lshl_b32 s{S_T0}, s{S_QG}, 7')
    a(f's_add_u32 s{S_T2}, s{S_T2}, s{S_T0}')
    a(f's_add_u32 s{S_T2}, s{S_T2}, {WS_Y1T}')
    for i in range(16):
        a(f's_add_u32 m0, s{S_T3}, {L_Y + i*1024}')
        a(f's_add_u32 s{S_T0}, s{S_T2}, {i*32768}')
        a(f'buffer_load_dwordx4 v{V_DM}, {ws}, s{S_T0} offen{SC} lds')
        thr()
    a(f's_lshl_b32 s{S_T0}, s{S_QG}, 8')
    a(f's_lshl_b32 s{S_T1}, s{S_NI}, 7')
    a(f's_add_u32 s{S_T0}, s{S_T0}, s{S_T1}')
    a(f's_add_u32 s{S_T0}, s{S_T0}, {WS_G}')
    a(f'buffer_load_dword v{V_DM if HTB else V_GT}, v{V_GT}, {ws}, s{S_T0} offen{SC}')
    a('s_waitcnt vmcnt(0)')
    sync(F_J3)
    def lread(i, addr, second):
        a(f'ds_read_b64_tr_b16 {vr(LF+4*(i%8),2)}, v{addr} offset:{i*2048}')
        a(f'ds_read_b64_tr_b16 {vr(LF+4*(i%8)+2,2)}, v{addr} offset:{i*2048+second}')
    if PRI & 2: a('s_setprio 0')
    for i in range(6):
        lread(i, V_RY, 512)
    for i in range(32):
        if i >= NFR:
            a(f's_waitcnt vmcnt({min(31, i+NFR-1)-i}) lgkmcnt({2*min(5, 31-i)})')
        else:
            a(f's_waitcnt lgkmcnt({2*min(5, 31-i)})')
        cc = vr(AB, 16) if i else '0'
        a(f'v_mfma_f32_32x32x16_bf16 {vr(AB,16)}, {vr(FR+4*(i%NFR),4)}, {vr(LF+4*(i%8),4)}, {cc}')
        if i + NFR < 32: fload(i + NFR)
        if i + 6 < 32: lread(i + 6, V_RY, 512)
    if PRI & 2: a('s_setprio 2')
    stamp(10)
    if E('NOHELP', 0) == 3:
        dump()
        a('s_endpgm')
    a(f's_lshl_b32 s{S_T2}, s{S_QG}, 1')
    a(f's_add_u32 s{S_T2}, s{S_T2}, s{S_NI}')
    a(f's_lshl_b32 s{S_T2}, s{S_T2}, 1')
    a(f's_add_u32 s{S_T2}, s{S_T2}, s{S_MI}')
    a(f's_lshl_b32 s{S_T2}, s{S_T2}, 14')
    SBK = [R_X, R_X+1, R_X+2, R_X+3]
    S_PD = S_P
    for k in range(4):
        a(f's_add_u32 s{SBK[k]}, s{S_T2}, {WS_O + 4096*k}')
    a(f'v_sub_f32 {u(1)}, 1.0, v{V_DM if HTB else V_GT}')
    if HTB == 2:
        a(f's_mov_b32 s{S_T0}, {512 * 1024}')
        for i in range(8):
            a(f'buffer_load_dwordx4 {vr(AA+4*i,4)}, v{V_L16}, {tb}, s{S_T0} offen')
        a('s_nop 4')
    else:
        for i in range(4):
            a(f'v_mov_b32 {u(4+i)}, 0')
        a('s_nop 1')
        for r_ in (AA, AX):
            a(f'v_mfma_f32_32x32x16_bf16 {vr(r_,16)}, {vr(V_U+4,4)}, {vr(V_U+4,4)}, 0')
    for i in range(8):
        a(f'v_pk_mul_f32 {vr(AB+2*i,2)}, {vr(AB+2*i,2)}, {vr(V_U,2)} op_sel:[0,1] op_sel_hi:[1,1]')
    if not HTB:
        a(f'v_mov_b32 v{V_DM}, v{V_GT}')
        a(f's_lshl_b32 s{S_T0}, s{S_HW}, 2')
        a(f'v_add_u32 v{V_DW}, s{S_T0}, v{V_Z}')
        a(f'v_xor_b32 v{V_GT}, 8, v{V_DW}')
        a(f's_lshl_b32 s{S_T0}, s{S_HW}, 12')
        a(f's_add_u32 s{S_T0}, s{S_T0}, {L_EX}')
        a(f'v_add_u32 v{V_RA}, s{S_T0}, v{V_L16}')
        a(f'v_xor_b32 v{V_RY}, 0x2000, v{V_RA}')
    def oload(p_, t_):
        a(f'buffer_load_dwordx4 {vr(FI+4*p_,4)}, v{V_L16}, {ws}, s{SBK[p_>>1]} offen offset:{(p_%2)*2048+1024*t_}{OLD}')
    def ocheck(p_, t_, k):
        if DRY:
            a(f'v_cmp_ne_u32 vcc, -1, v{FI+4*p_+3}')
            a('s_cmp_eq_u64 vcc, -1')
            a(f's_cbranch_scc0 KG_OC{t_}{k}_{p_}')
        else:
            a(f'v_cmp_eq_u32 vcc, -1, v{FI+4*p_+3}')
            a(f's_cbranch_vccnz KG_OC{t_}{k}_{p_}')
        a(f'v_mfma_f32_32x32x16_bf16 {vr(AX,16)}, {vr(fw(p_,t_,1),4)}, {vr(FI+4*p_,4)}, {vr(AX,16)}')
        a(f'v_mfma_f32_32x32x16_bf16 {vr(AA,16)}, {vr(fw(p_,t_,0),4)}, {vr(FI+4*p_,4)}, {vr(AA,16)}')
        a(f's_bitset0_b32 s{S_PD}, {p_}')
        a.label(f'KG_OC{t_}{k}_{p_}')
    def pend_each(tag, fn):
        for g in range(2):
            a(f's_and_b32 s{S_T0}, s{S_PD}, {hex(0xf << (4*g))}')
            a(f's_cbranch_scc0 KG_OG{tag}_{g}')
            for p_ in range(4*g, 4*g + 4):
                a(f's_bitcmp1_b32 s{S_PD}, {p_}')
                a(f's_cbranch_scc0 KG_OP{tag}_{p_}')
                fn(p_)
                a.label(f'KG_OP{tag}_{p_}')
            a.label(f'KG_OG{tag}_{g}')
    S_PL = S_KH
    a(f's_mov_b32 s{S_PL}, {POLL_LIMIT}')
    if DRY:
        a(f's_cmp_ge_u32 s{S_HW}, {DRY}')
        a('s_cbranch_scc1 KG_OS')
        a(f'v_mov_b32 {u(0)}, 64')
        a(f's_mov_b32 s{S_PL}, 1')
        a('s_mov_b64 exec, 0')
        a('s_branch KG_OS')
        a.label('KG_REAL')
        a('s_mov_b64 exec, -1')
        a(f's_mov_b32 s{S_PL}, {POLL_LIMIT}')
        a.label('KG_OS')
    for t_ in range(2):
        a(f's_movk_i32 s{S_PD}, 0xff')
        a(f's_mov_b32 s{S_CNT}, s{S_PL}')
        if t_ == 0:
            if not BST: stamp(4)
            lds_wait(F_ADONE, 1, V_U, sleep=4)
            if not BST: stamp(3)
        elif O1W == 1:
            lds_wait(F_PGW, 10, V_U, sleep=1, addr=V_DW2)
            stamp(11)
        elif O1W == 2:
            pg_wait(10, 1)
            stamp(11)
        for p_ in range(8):
            oload(p_, t_)
        for p_ in range(8):
            a(f's_waitcnt vmcnt({7-p_})')
            if TST == 2 and t_ and p_ in (0, 4): stamp(7 if p_ == 0 else 6)
            ocheck(p_, t_, 0)
        if TST and t_: stamp(1)
        a.label(f'KG_OR{t_}')
        a(f's_cmp_eq_u32 s{S_PD}, 0')
        a(f's_cbranch_scc1 KG_OD{t_}')
        a(f's_sub_u32 s{S_CNT}, s{S_CNT}, 1')
        a(f's_cbranch_scc1 KG_OD{t_}')
        sl = O_SLEEP if t_ == 0 else O_SLEEP1
        if sl: a(f's_sleep {sl}')
        pend_each(f'L{t_}', lambda p_: oload(p_, t_))
        a('s_waitcnt vmcnt(0)')
        pend_each(f'C{t_}', lambda p_: ocheck(p_, t_, 1))
        a(f's_branch KG_OR{t_}')
        a.label(f'KG_OD{t_}')
        if t_ == 0: stamp(5)
        elif TST: stamp(2)
    a(f'v_mov_b32 {u(1)}, 1')
    a('s_nop 7')
    for q in range(4):
        a(f'ds_write_b128 v{V_RA2}, {vr(AX+4*q,4)} offset:{1024*q}')
    a(f'ds_write_b32 v{V_DW2}, {u(1)} offset:{4*F_EX}')
    def ex_reads():
        a(f'ds_read_b32 {u(0)}, v{V_GT2} offset:{4*F_EX}')
        for q in range(4):
            a(f'ds_read_b128 {vr(FI+4*q,4)}, v{V_RY2} offset:{1024*q}')
    ex_reads()
    for i in range(8):
        a(f'v_pk_fma_f32 {vr(AB+2*i,2)}, {vr(AA+2*i,2)}, {vr(V_DM,2)}, {vr(AB+2*i,2)} op_sel_hi:[1,0,1]')
    if TST == 2: stamp(10)
    a.label('KG_EXL')
    a('s_waitcnt lgkmcnt(4)' if TST != 2 else 's_waitcnt lgkmcnt(0)')
    a(f'v_readfirstlane_b32 s{S_T0}, {u(0)}')
    a(f's_cmp_lg_u32 s{S_T0}, 0')
    a('s_cbranch_scc1 KG_EXD')
    ex_reads()
    a(f's_sub_u32 s{S_LIM}, s{S_LIM}, 1')
    a('s_cbranch_scc0 KG_EXL')
    a.label('KG_EXD')
    if TST == 2: stamp(8)
    for i in range(8):
        if i % 2 == 0: a(f's_waitcnt lgkmcnt({3 - i//2})')
        a(f'v_pk_fma_f32 {vr(AA+2*i,2)}, {vr(FI+2*i,2)}, {vr(V_DM,2)}, {vr(AB+2*i,2)} op_sel_hi:[1,0,1]')
    for i in range(8):
        a(f'v_cvt_pk_bf16_f32 v{LF+i}, v{AA+2*i}, v{AA+2*i+1}')
    for q in range(2):
        a(f'buffer_store_dwordx4 {vr(LF+4*q,4)}, v{V_OUT}, {sr(R_OUT,4)}, {"s%d" % S_OO if HTB else 0} offen offset:{16*q}{OUTSC}')
    if DRY: a('s_cbranch_execz KG_REAL')
    if TST == 2: stamp(9)
    dump()
    a('s_endpgm')

    SG, SL, SD = 168, 176, 184
    a.label('KG_SPA')
    a(f's_mov_b32 s{S_T0}, {L_SP}')
    a(f's_mov_b32 s{S_T1}, {L_SPW}')
    for e in range(8):
        k_ = u(4 + (e & 1))
        a(f'v_sub_u32 {k_}, {2048 - 64*(e&3) - 1024*(e>>2)}, v{V_A3}')
        a(f'v_and_b32 {k_}, 2047, {k_}')
        a(f'v_lshl_add_u32 v{SL+e}, {k_}, 2, s{S_T0}')
        a(f'v_lshl_add_u32 v{SG+e}, {k_}, 3, s{S_T1}')
    a('s_branch KG_SPAR')
    a.label('KG_SPB')
    a(f's_mov_b32 s{S_C0}, 0x05040100')
    a(f's_mov_b32 s{S_C0+1}, 0x07060302')
    a(f's_mov_b32 s{S_T1}, {L_SPW}')
    a(f'v_lshl_add_u32 {u(4)}, v{V_A3}, 3, s{S_T1}')
    a('s_waitcnt vmcnt(0)')
    for e in range(8):
        for j, base in enumerate((V_W, V_XX)):
            a(f'v_perm_b32 v{SD+2*e+j}, v{base+12+(e>>1)}, v{base+4+(e>>1)}, s{S_C0+(e&1)}')
        a(f'ds_write_b64 {u(4)}, {vr(SD+2*e,2)} offset:{512*(e&3) + 8192*(e>>2)}')
    a('s_branch KG_SPBR')
    a.label('KG_SPECIAL')
    for e in range(8):
        a(f'ds_read_b64 {vr(SD+2*e,2)}, v{SG+e}')
    a(f'v_lshlrev_b32 {u(4)}, 2, v{V_A3}')
    a(f'v_add_u32 {u(6)}, {L_SP}, {u(4)}')
    for e in range(8):
        mt, r = e >> 2, e & 3
        a(f'ds_write2st64_b32 {u(6)}, v{V_AC+8*mt+r}, v{V_AC+8*mt+4+r} offset0:{16*mt+r} offset1:{32+16*mt+r}')
    a(f'v_mov_b32 {u(0)}, 1')
    a('s_waitcnt lgkmcnt(0)')
    a('s_mov_b64 exec, 1')
    a(f'ds_add_u32 v{V_Z}, {u(0)} offset:{4*F_SY2}')
    a('s_mov_b64 exec, -1')
    unpack(V_XX)
    for e in range(8):
        a0r, a0i, a1r, a1i = V_W + e, V_W + 8 + e, V_XX + e, V_XX + 8 + e
        b0r, b0i, b1r, b1i = SD + 16, SD + 2*e, SD + 17, SD + 2*e + 1
        a(f'v_lshlrev_b32 v{b0r}, 16, v{b0i}')
        a(f'v_lshlrev_b32 v{b1r}, 16, v{b1i}')
        a(f'v_and_b32 v{b0i}, 0xffff0000, v{b0i}')
        a(f'v_and_b32 v{b1i}, 0xffff0000, v{b1i}')
        a(f'v_add_f32 v{b0r}, v{a0r}, v{b0r}')
        a(f'v_sub_f32 v{b0i}, v{a0i}, v{b0i}')
        a(f'v_add_f32 v{b1r}, v{a1r}, v{b1r}')
        a(f'v_sub_f32 v{b1i}, v{a1i}, v{b1i}')
        a(f'v_add_f32 v{a0r}, v{b0r}, v{b1r}')
        a(f'v_add_f32 v{a0i}, v{b0i}, v{b1i}')
        a(f'v_sub_f32 v{a1r}, v{b0r}, v{b1r}')
        a(f'v_sub_f32 v{a1i}, v{b0i}, v{b1i}')
    lds_wait(F_SY2, 4, V_U, sleep=1)
    for e in range(8):
        a(f'ds_read2st64_b32 {vr(V_D+2*e,2)}, v{SL+e} offset0:0 offset1:32')
    a(f's_mov_b32 s{S_T0}, {f32_bits(0.125)}')
    for e in range(8):
        mt, r = e >> 2, e & 3
        zr_, zi_ = V_AC + 8*mt + r, V_AC + 8*mt + 4 + r
        pr, pi_, mr, mi = V_W + e, V_W + 8 + e, V_XX + e, V_XX + 8 + e
        znr, zni = V_D + 2*e, V_D + 2*e + 1
        rr, ri = SD + 2*e, SD + 2*e + 1
        a(f'v_mul_f32 v{rr}, v{zr_}, v{pr}')
        a(f'v_mul_f32 v{ri}, v{zr_}, v{pi_}')
        a(f'v_fma_f32 v{rr}, -v{zi_}, v{pi_}, v{rr}')
        a(f'v_fma_f32 v{ri}, v{zi_}, v{pr}, v{ri}')
        a(f's_waitcnt lgkmcnt({7-e})')
        a(f'v_fma_f32 v{rr}, v{znr}, v{mr}, v{rr}')
        a(f'v_fma_f32 v{ri}, v{znr}, v{mi}, v{ri}')
        a(f'v_fma_f32 v{rr}, v{zni}, v{mi}, v{rr}')
        a(f'v_fma_f32 v{ri}, -v{zni}, v{mr}, v{ri}')
        a(f'v_mul_f32 v{zr_}, s{S_T0}, v{rr}')
        a(f'v_mul_f32 v{zi_}, s{S_T0}, v{ri}')
    a('s_branch KG_STEP3')
    a.label('KG_END')
    a('s_endpgm')
    return 256, (102 if ST in (5, 6, 7) else NS)

def gen_table_ad(a):
    v = []
    for hw in range(4):
        mh, nh = hw >> 1, hw & 1
        q = [[] for _ in range(6)]
        for l in range(64):
            i, g = l & 15, l >> 4
            q[0].append([128*i + 16*g, L_APR + 80*i + 16*g + 2560*mh + 8*nh, L_APR + 80*i + 16*g + 1280*hw, L_CPR + 144*i + 8*g + 32*hw])
            ra2 = L_EX + 4096*hw + 16*l
            q[1].append([L_CPR + 144*i + 16*g + 2304*nh, ra2 ^ 0x2000, 0, 0])
            q[2].append([1, L_FLAG + 4*F_PGW + 4*(l & 3), 256*g + i + 16*hw, 0])
            e, sl, half = l >> 3, l & 7, g & 1
            gs = ((4*half) ^ sl) * 16
            n, h, r, c = l & 31, l >> 5, (l >> 2) & 3, l & 3
            swz = (r >> 1) << 2
            ra = (4*h + r)*128 + (c >> 1)*8 + ((4*mh + 2*(c & 1) + half) ^ swz)*16
            ry = L_Y + (8*h + r)*128 + (c & 1)*8 + ((4*nh + 2*half + (c >> 1)) ^ swz)*16
            out = ((16*((n >> 2) & 1) + 4*(n >> 3) + (n & 3)) << 15) + 32*h
            q[3].append([4096*e + gs, ra2, ry, out])
            dw2 = L_FLAG + 4*hw
            q[4].append([4*n, 1024*e + gs, dw2, dw2 ^ 8])
            b0, b1 = (L_KW, 49152) if mh else (L_WQ, L_WQ + 16384)
            q[5].append([b0 + ra, (b0 + ra) ^ 64, b1 + ra, (b1 + ra) ^ 64])
        for k in range(6):
            for w in q[k]: v += w
    for i in range(0, len(v), 16):
        a.raw('.long ' + ','.join(str(x) for x in v[i:i+16]))

def build_g(path):
    a = Asm()
    hdr = open(f'cdna_kernels/{NAME}.s.ref').read().split('\n')
    for l in hdr:
        if l.startswith(';') and '@launch' not in l and 'Override launch' not in l and 'grid=ceil' not in l:
            a.raw(l)
    kn = NAME + '_kernel'
    if E('PLAIN', 0):
        a.raw(f'; @launch grid=(256,1,1) block=(512,1,1) lds={KG_LDS}')
    else:
        a.raw(f'; @launch kernel={kn} grid=(256,1,1) block=(512,1,1) lds={KG_LDS}')
    a.raw('.amdgcn_target "amdgcn-amd-amdhsa--gfx950"')
    a.raw('.text')
    v, s = gen_g(a, kn)
    a.raw('.section .rodata,"a"')
    kernel_desc(a, kn, v, s)
    gen_tables(a)
    gen_k2.gen_tables_k2(a)
    if HTB: gen_table_ad(a)
    gen_k3.gen_tables_k3(a)
    open(path, 'w').write(a.text())

if __name__ == '__main__':
    build_g(sys.argv[1] if len(sys.argv) > 1 else 'j.s')
```

```python
from gen import *
import gen_k2, gen_k3
from gen_k2 import YSCALE
import os

WS_ROOT = int(os.environ.get('WS_ROOT', '0x240000'), 0)
WS_FL1 = 0x244000
WS_FL2 = 0x248000
WS_FL3 = 0x24C000
WS_FL4 = 0x260000
TAG_M, TAG_C = 0x9E3779B1, 0x7F4A7C15
WS_XC = 0x250000
FORCE_GL = int(os.environ.get('FORCE_GL', '0'))
WS_KVT = int(os.environ.get('WS_KVT', '0x280000'), 0)

L_X = 0
L_WQ = 65536
L_FLAG = 131072
L_KW = L_FLAG + 256
L_GATE = L_KW + 16384
KG_LDS = 163840
L_APR = L_KW; L_API = L_APR + 5120
L_CPR = L_API + 5120; L_CPI = L_CPR + 4608
L_MX = L_KW
L_MXM = L_KW + 20480
assert L_CPI + 4608 <= L_MXM and L_MX + 8 * 2304 <= L_MXM and L_MXM + 4096 <= KG_LDS and L_GATE + 1024 <= L_MXM
L_SP = L_WQ
L_SPW = L_X + 49152
L_WO = L_X
L_EX = L_X + 49152
L_Y = L_WQ
F_CX, F_CW = 0, 1
F_CC, F_MG, F_MM, F_PG, F_QX = 0, 8, 16, 40, 48
L_QX = L_GATE + 1024
assert L_QX + 8192 <= KG_LDS
F_N, F_TAG, F_QDONE, F_J1, F_S1OK, F_SY0, F_SY1, F_SY2, F_J2, F_S2OK, F_J3, F_TAGOK, F_ADONE, F_J4, F_KVS, F_GI, F_PRE = range(24, 41)
F_PRE = 2
F_EX = F_MM
F_PGW = 8
F_KX = 15
F_WR = 3
F_LOC = 14
F_POS, F_H2 = 12, 13
L_PRE = L_KW
NWAVE = 8
WS_G = 0x230000
E = lambda k, d: int(os.environ.get(k, str(d)))
LOAD_D = E('LOAD_D', 6)
KV_SLEEP = E('KV_SLEEP', 4)
O_SLEEP = E('O_SLEEP', 0)
THR = E('THR', 15)
LD_PRE = {'X': E('LD_PREX', 0), 'W': E('LD_PREW', 0)}
KV_BAR = E('KV_BAR', 15)
FAIR = E('FAIR', 1)
KV_LAG = E('KV_LAG', 0)
TF_LAG = E('TF_LAG', 2)
WT_LAG = E('WT_LAG', 8)
G_DELAY = E('G_DELAY', 16)
Q7_SLEEP = E('Q7_SLEEP', 0)
H2_PD = E('H2_PD', 12)
KVSC = ' sc1' if E('KVSC1', 0) else ''
OSC = ' sc1' if E('OSC1', 0) else ''
SC = ' sc1'
POLL_LIMIT = 1 << 18
NSTAMP = 12
OF_STEP = E('OF_STEP', 10)
O1W = E('O1W', 1)
FI_TOUCH = E('FI_TOUCH', 0)
T2 = E('T2', 1)
ROT = E('ROT', 3)
KVL = E('KVL', 1)
DRY = E('DRY', 0)
QP = E('QP', 1)
QSL = E('QSL', 0)
IST = E('IST', 0)
PTOP = E('PTOP', 0)
PMOD = E('PMOD', 8)
PSC = E('PSC', 1)
EB = E('EB', 3)
F_GO = 41
VCH = E('VCH', 0)
OLD = {0: ' sc1', 1: ' nt', 2: ' sc0 sc1', 3: ' sc0 nt'}[E('OLD', 0)]
XS = E('XS', 0)
LOCSC = {0: '', 1: ' nt', 2: ' sc0', 3: ' sc0 nt'}[E('LOCSC', 1)]
LOCSE = {0: '', 1: ' nt', 2: ' sc0', 3: ' sc0 nt', 4: ' sc1'}[E('LOCSE', 4)]
O_SLEEP1 = E('O_SLEEP1', 0)
NFO = E('NFO', 10)
TST = E('TST', 0)
OST = '' if E('OPLAIN', 0) else ' sc1'
S1_SLEEP = E('S1_SLEEP', 4)
S2_SLEEP = E('S2_SLEEP', 8)
SPSC = ' sc1' if E('SPSC1', 0) else ''
KP_DELAY = E('KP_DELAY', 0)
PEEL_B = E('PEEL_B', 4)
PRI = E('PRI', 7)
LST = E('LST', 0)
G_EARLY = E('G_EARLY', 3)
G_TRIG = E('G_TRIG', 7)
QPIPE = E('QPIPE', 3)
if QPIPE == 3: QP = 0
EPOLL = E('EPOLL', 8)
TOUCH = E('TOUCH', 0)
FST = E('FST', 0)
PRET = E('PRET', 3)
UNR = E('UNR', 1)
BST = E('BST', 0)
HTB = E('HTB', 1)
PKM = E('PKM', 1)
SM = E('SM', 1)
O_AD = 24576 + 6144 + 32768
PEND = E('PEND', 1)
PFP = E('PFP', 63)
PFK = E('PFK', 0x2e)
GST = E('GST', 0)
OUTSC = {0: '', 1: ' sc1', 2: ' nt', 3: ' sc0 sc1', 4: ' sc1 nt'}[E('OUTSC', 2)]

def gen_g(a, name):
    kernel_header(a, name)
    S_X, S_WQ, S_WK, S_WV, S_WO, S_WS, S_WR, S_WI, S_GT, S_OUT = 4, 6, 8, 10, 12, 14, 16, 18, 20, 22
    R_X, R_WS, R_A, R_B, R_TB, R_OUT = 24, 28, 32, 36, 40, 44
    S_W, S_QG, S_HG, S_T0, S_T1, S_T2, S_T3, S_CNT, S_KOFF, S_KB, S_P, S_KH = 48, 49, 50, 51, 52, 53, 54, 55, 56, 57, 58, 59
    S_VM = 60; S_C0 = 62; S_C1 = 64
    S_CT, S_A, S_F, S_HW, S_MH, S_NH, S_SEEN, S_LIM, S_TAG = 3, 66, 67, 68, 69, 70, 71, 72, 73
    NS = 74
    SB = 74
    ws = sr(R_WS, 4); xs = sr(R_X, 4); ra = sr(R_A, 4); rb_ = sr(R_B, 4); tb = sr(R_TB, 4)
    TM = 's_memrealtime' if ST in (5, 7) else 's_memtime'
    duid = [0]
    XST = dict((p.split('=')[0], int(p.split('=')[1])) for p in os.environ.get('XST', '').split(',') if p)
    def xs_(name):
        if name in XST and ST in (5, 6): a(f'{TM} s[{SB+2*XST[name]}:{SB+1+2*XST[name]}]')
    def stamp(i, f=0):
        if i in XST.values(): return
        if IST and i in (3, 4, 5) : return
        if FST and (i >= 7) != bool(f):
            if i >= 7 or f: return
        if f and not FST: return
        if ST in (5, 6, 7):
            a(f'{TM} s[{SB+2*i}:{SB+1+2*i}]')
    def dump(kind=0):
        n = NSTAMP
        if ST == 7:
            duid[0] += 1
            a('s_waitcnt vmcnt(0)')
            a(f'{TM} s[{SB+2*n}:{SB+1+2*n}]')
            a(f's_load_dwordx2 s[{R_A}:{R_A+1}], s[0:1], 80')
            a(f's_mov_b32 s{R_A+2}, 256')
            a(f's_mov_b32 s{R_A+3}, 0x20000')
            a('s_waitcnt lgkmcnt(0)')
            a('s_mov_b64 exec, 1')
            a('v_mov_b32 v0, 0')
            a(f's_cmp_lg_u32 s{S_W}, {4 if kind else 0}')
            a(f's_cbranch_scc1 KG_DD{duid[0]}')
            if kind:
                a(f's_not_b32 s{S_T0}, s{SB}')
                a(f'v_mov_b32 v2, s{S_T0}')
                a(f'buffer_atomic_umax v2, v0, {ra}, 0 offen offset:0')
                L = [(2, 0), (3, 2), (4, 3), (5, 4), (6, 5), (7, 12)]
            else:
                a(f'v_mov_b32 v2, s{SB+24}')
                a(f'buffer_atomic_umax v2, v0, {ra}, 0 offen offset:4')
                L = [(8, 3), (9, 5), (10, 6), (11, 7), (12, 8), (13, 9), (14, 11), (15, 12)]
            for k, (sl, st_) in enumerate(L):
                a(f'v_mov_b32 v{3+k}, s{SB+2*st_}')
                a(f'buffer_atomic_add v{3+k}, v0, {ra}, 0 offen offset:{4*sl}')
            a.label(f'KG_DD{duid[0]}')
        if ST in (5, 6):
            a('s_waitcnt vmcnt(0)')
            a(f'{TM} s[{SB+2*n}:{SB+1+2*n}]')
            a('s_mov_b64 exec, 1')
            a(f's_lshl_b32 s{S_T0}, s2, 4')
            a(f's_add_u32 s{S_T0}, s{S_T0}, s{S_W}')
            a(f's_lshl_b32 s{S_T0}, s{S_T0}, 6')
            a(f's_add_u32 s{S_T0}, s{S_T0}, {0xC00000}')
            a('s_waitcnt lgkmcnt(0)')
            a(f's_mov_b32 s{R_WS+2}, 0x1000000')
            a('v_mov_b32 v0, 0')
            if LST and kind:
                a('s_mov_b64 exec, 0xffff')
                a('v_mbcnt_lo_u32_b32 v3, -1, 0')
                a('v_lshlrev_b32 v3, 2, v3')
                a(f'v_add_u32 v3, 0x100000, v3')
                a(f'buffer_store_dword v{192+23}, v3, {ws}, s{S_T0} offen')
                a('s_mov_b64 exec, 1')
            for i in range(n + 1):
                a(f'v_mov_b32 v2, s{SB+2*i}')
                a(f'buffer_store_dword v2, v0, {ws}, s{S_T0} offen offset:{4*i}')
                a('s_nop 1')

    a('s_cmp_ge_u32 s2, 256')
    a('s_cbranch_scc1 KG_END')
    if ST in (5, 6, 7):
        for i in range(NSTAMP + 1):
            a(f's_mov_b32 s{SB+2*i}, 0')
    stamp(0)
    if EB in (1, 2):
        a('v_cmp_gt_u32 vcc, 0x100, v0')
        a('s_cbranch_vccnz KG_A1')
        a('v_and_b32 v8, 63, v0')
        a('v_lshlrev_b32 v8, 2, v8')
        a(f'v_add_u32 v8, {L_FLAG}, v8')
        a('v_mov_b32 v9, 0')
        a('ds_write_b32 v8, v9')
        a('s_waitcnt lgkmcnt(0)')
        a('s_barrier')
        a.label('KG_A1')
    a(f's_load_dwordx8 s[{S_X}:{S_X+7}], s[0:1], 0')
    a(f's_load_dwordx2 s[{S_WS}:{S_WS+1}], s[0:1], 88')
    a(f's_load_dwordx4 s[{S_GT}:{S_GT+3}], s[0:1], 64')
    a(f's_load_dwordx2 s[{S_WO}:{S_WO+1}], s[0:1], 32')
    a(f's_load_dwordx4 s[{S_WR}:{S_WR+3}], s[0:1], 48')
    if PTOP:
        PL = PTOP
        a('v_cmp_gt_u32 vcc, 0x100, v0')
        a('s_cbranch_vccnz KG_P1')
        a(f's_getpc_b64 s[{R_A}:{R_A+1}]')
        a.label('KG_PC')
        if PSC:
            a('v_bfe_u32 v212, v0, 6, 2')
            a(f's_lshr_b32 s{S_T0}, s2, 3')
            a(f'v_readfirstlane_b32 s{S_T1}, v212')
            a(f's_and_b32 s{S_T0}, s{S_T0}, {PMOD - 1}')
            a(f's_lshl2_add_u32 s{S_T0}, s{S_T0}, s{S_T1}')
            a(f's_mul_i32 s{S_T0}, s{S_T0}, {128*PL}')
            a(f's_min_u32 s{S_T0}, s{S_T0}, KG_END-KG_PC-{128*PL}')
            a(f's_add_u32 s{R_A}, s{R_A}, s{S_T0}')
            a(f's_addc_u32 s{R_A+1}, s{R_A+1}, 0')
            for k in range(PL * PSC):
                a(f's_load_dword s{R_B}, s[{R_A}:{R_A+1}], {128*k//PSC}')
        else:
            a(f's_mov_b32 s{R_A+2}, KG_END-KG_PC')
            a(f's_mov_b32 s{R_A+3}, 0x20000')
            a(f's_lshr_b32 s{S_T0}, s2, 3')
            a(f's_and_b32 s{S_T0}, s{S_T0}, {PMOD - 1}')
            a(f's_mul_i32 s{S_T0}, s{S_T0}, {512*PL}')
            a('v_bfe_u32 v212, v0, 6, 2')
            a('v_and_b32 v213, 63, v0')
            a(f'v_mad_u32_u24 v212, v212, {PL}, v213')
            a('v_lshlrev_b32 v212, 7, v212')
            a(f's_mov_b64 exec, {hex((1 << PL) - 1)}')
            a(f'buffer_load_dword v213, v212, {ra}, s{S_T0} offen')
            a('s_mov_b64 exec, -1')
        if EB == 3: a('s_barrier')
        a.label('KG_P1')
    a('v_lshrrev_b32 v1, 6, v0')
    a('v_and_b32 v0, 63, v0')
    a(f's_and_b32 s{S_T0}, s2, 7')
    a(f'v_readfirstlane_b32 s{S_W}, v1')
    a(f's_lshl_b32 s{S_T0}, s{S_T0}, 2')
    a(f's_lshr_b32 s{S_QG}, s2, 6')
    a(f's_add_u32 s{S_QG}, s{S_QG}, s{S_T0}')
    a(f's_bfe_u32 s{S_HG}, s2, 0x30003')
    if E('HGX', 0): a(f's_xor_b32 s{S_HG}, s{S_HG}, {E("HGX", 0)}')
    a(f's_mov_b32 s{S_LIM}, {1<<21}')
    S_ROT = S_F
    if ROT == 1:
        a(f's_lshl_b32 s{S_ROT}, s{S_HG}, 7')
    elif ROT == 2:
        a(f's_lshr_b32 s{S_ROT}, s2, 5')
        a(f's_and_b32 s{S_ROT}, s{S_ROT}, 6')
        a(f's_add_u32 s{S_ROT}, s{S_ROT}, s{S_HG}')
        a(f's_and_b32 s{S_ROT}, s{S_ROT}, 7')
        a(f's_lshl_b32 s{S_ROT}, s{S_ROT}, 7')
    elif ROT == 3:
        a(f's_lshr_b32 s{S_ROT}, s2, 6')
        a(f's_lshl_b32 s{S_ROT}, s{S_ROT}, 8')
    V_Z = 7
    a(f'v_mov_b32 v{V_Z}, {L_FLAG}')
    V_I, V_G, V_L16, V_A1, V_A2, V_A3 = 1, 2, 3, 4, 5, 6
    V_U = 8
    u = lambda i: f'v{V_U+i}'
    KX, KW, KA = 16, 80, 144
    S_RB, S_TY, S_KQ = S_P, S_KH, S_KB
    a(f'v_and_b32 v{V_I}, 15, v0')
    a(f'v_lshrrev_b32 v{V_G}, 4, v0')
    a(f'v_lshlrev_b32 v{V_L16}, 4, v0')
    a(f's_mov_b32 s{S_HW}, s{S_W}')
    if EB == 1:
        a(f's_sub_u32 s{S_T0}, s{S_W}, 1')
        a(f's_cmp_lt_u32 s{S_T0}, 3')
        a('s_cbranch_scc0 KG_A2')
        a('s_barrier')
        a.label('KG_A2')
    a(f's_cmp_lg_u32 s{S_W}, 0')
    a('s_cbranch_scc1 KG_N0')
    a('s_setprio 2')
    if EB in (1, 2):
        a(f'v_mov_b32 v{KA+12}, 1')
    else:
        a(f'v_lshl_add_u32 {u(1)}, v0, 2, v{V_Z}')
        a(f'v_mov_b32 {u(2)}, 0')
        a(f'ds_write_b32 {u(1)}, {u(2)}')
    def xaddr():
        a(f'v_lshrrev_b32 {u(0)}, 3, v0')
        a(f'v_and_b32 {u(1)}, 7, v0')
        a(f'v_lshrrev_b32 {u(2)}, 2, {u(0)}')
        a(f'v_and_b32 {u(3)}, 3, {u(0)}')
        a(f'v_lshl_add_u32 {u(2)}, {u(2)}, 4, {u(3)}')
        a(f'v_lshlrev_b32 {u(2)}, 15, {u(2)}')
        a(f's_lshl_b32 s{S_T0}, s{S_QG}, 10')
        a(f'v_add_u32 {u(2)}, s{S_T0}, {u(2)}')
        a(f'v_xor_b32 {u(3)}, v{V_G}, {u(1)}')
        a(f'v_lshl_add_u32 {u(4)}, {u(3)}, 4, {u(2)}')
        a(f'v_xor_b32 {u(3)}, 4, {u(3)}')
        a(f'v_lshl_add_u32 {u(5)}, {u(3)}, 4, {u(2)}')
        a(f'v_add_u32 {u(5)}, {131072 - 1024}, {u(5)}')
    def xpair(sd, sl, sp):
        a(f's_lshr_b32 s{sd}, s{sp}, 1')
        a(f's_lshl_b32 s{sd}, s{sd}, 20')
        a(f's_and_b32 s{sl}, s{sp}, 1')
        a(f's_lshl_b32 s{sl}, s{sl}, 18')
        a(f's_add_u32 s{sd}, s{sd}, s{sl}')
        if ROT: a(f's_add_u32 s{sd}, s{sd}, s{S_ROT}')
        a(f's_lshl_b32 s{sl}, s{sp}, 11')
    a(f's_lshr_b32 s{S_RB}, s{S_HG}, 1')
    a(f's_and_b32 s{S_TY}, s{S_HG}, 1')
    xaddr()
    xpair(S_T2, S_T3, S_RB)
    a(f's_mov_b32 s{R_A+2}, 16384')
    a(f's_mov_b32 s{R_A+3}, 0x20000')
    a(f's_mov_b32 s{R_X+2}, {2048 * 1024}')
    a(f's_mov_b32 s{R_X+3}, 0x20000')
    a(f's_mov_b32 m0, s{S_T3}')
    a(f's_cmp_eq_u32 s{S_TY}, 1')
    if EB == 1: a('s_barrier')
    if IST: stamp(7, 1)
    a('s_waitcnt lgkmcnt(0)')
    if not GST: stamp(8, 1)
    a(f's_cselect_b64 s[{R_A}:{R_A+1}], s[{S_WV}:{S_WV+1}], s[{S_WK}:{S_WK+1}]')
    def touch():
        S_I, S_J, S_K = S_CNT, S_KOFF, S_SEEN
        a(f's_lshr_b32 s{S_I}, s2, 3')
        srd(a, R_TB, S_WQ, 512 * 1024)
        a(f'v_lshlrev_b32 {u(6)}, 7, v0')
        a(f's_lshl_b32 s{S_J}, s{S_I}, 14')
        a(f's_add_u32 s{S_K}, s{S_J}, 8192')
        a(f'buffer_load_dword v{KA+16}, {u(6)}, {tb}, s{S_J} offen')
        a(f'buffer_load_dword v{KA+17}, {u(6)}, {tb}, s{S_K} offen')
        a(f'v_and_b32 {u(7)}, 32, v0')
        a(f'v_lshlrev_b32 {u(7)}, 10, {u(7)}')
        a(f'v_and_b32 {u(6)}, 0xfff, {u(6)}')
        a(f'v_add_u32 {u(7)}, {u(7)}, {u(6)}')
        a(f's_and_b32 s{S_K}, s2, 7')
        a(f's_lshl_b32 s{S_K}, s{S_K}, 12')
        a(f's_lshl_b32 s{S_J}, s{S_I}, 16')
        a(f's_add_u32 s{S_K}, s{S_K}, s{S_J}')
        a(f'buffer_load_dword v{KA+18}, {u(7)}, {xs}, s{S_K} offen')
    a(f's_mov_b64 s[{R_X}:{R_X+1}], s[{S_X}:{S_X+1}]')
    if TOUCH == 2: touch()
    for c in range(8):
        if c:
            a(f's_add_u32 m0, s{S_T3}, {c*8192}')
            a(f's_add_u32 s{S_T2}, s{S_T2}, 128')
            if ROT: a(f's_bitset0_b32 s{S_T2}, 10')
        a(f'buffer_load_dwordx4 {u(4)}, {xs}, s{S_T2} offen lds')
        a(f'buffer_load_dwordx4 {u(5)}, {xs}, s{S_T2} offen offset:1024 lds')
        if c == 0 and not GST: stamp(10, 1)
    for q in range(4):
        a(f's_mov_b32 m0, {L_KW + q*4096}')
        if ROT == 3:
            if q == 0: a(f's_lshl_b32 s{S_T0}, s{S_ROT}, 4')
            else:
                a(f's_add_u32 s{S_T0}, s{S_T0}, 4096')
                a(f's_bitset0_b32 s{S_T0}, 14')
        else:
            a(f's_movk_i32 s{S_T0}, {q*4096}')
        for j in range(4):
            a(f'buffer_load_dwordx4 v{V_L16}, {ra}, s{S_T0} offen offset:{j*1024} lds')
    srd(a, R_B, S_GT, 1024)
    a(f's_mov_b32 m0, {L_GATE}')
    a(f's_lshr_b32 s{S_T2}, s2, 3')
    if ROT == 3:
        a(f'v_add_u32 {u(6)}, s{S_ROT}, v{V_L16}')
        a(f'v_and_b32 {u(6)}, 0x3ff, {u(6)}')
        a(f'buffer_load_dwordx4 {u(6)}, {rb_}, 0 offen lds')
    else:
        a(f'buffer_load_dwordx4 v{V_L16}, {rb_}, 0 offen lds')
    if TOUCH == 1: touch()
    if not GST: stamp(11, 1)
    if EB == 2: a('s_barrier')
    if EB in (1, 2): a(f'ds_write_b32 v{V_Z}, v{KA+12} offset:{4*F_GO}')
    else: a('s_barrier')
    stamp(1)
    a('s_branch KG_KV')
    a.label('KG_N0')
    if IST: a(f'{TM} s[{SB+2*3}:{SB+1+2*3}]')
    a(f's_cmp_lt_u32 s{S_W}, 4')
    a('s_cbranch_scc1 KG_N1')
    if PTOP: pass
    elif PRET >= 2:
        PL = {2: 4, 3: 8, 4: 16}[PRET]
        a(f's_getpc_b64 s[{R_A}:{R_A+1}]')
        a.label('KG_PC')
        a(f's_mov_b32 s{R_A+2}, KG_END-KG_PC')
        a(f's_mov_b32 s{R_A+3}, 0x20000')
        a(f's_lshr_b32 s{S_T0}, s2, 3')
        a(f's_lshl_b32 s{S_T0}, s{S_T0}, 2')
        a(f's_add_u32 s{S_T0}, s{S_T0}, s{S_W}')
        a(f's_mul_i32 s{S_T0}, s{S_T0}, {128*PL}')
        a(f's_and_b32 s{S_T0}, s{S_T0}, 0xffff')
        a(f'v_lshlrev_b32 v212, 7, v0')
        a(f's_mov_b64 exec, {hex((1 << PL) - 1)}')
        a(f'buffer_load_dword v213, v212, {ra}, s{S_T0} offen')
        a('s_mov_b64 exec, -1')
    elif PRET:
        a(f's_getpc_b64 s[{R_A}:{R_A+1}]')
        a.label('KG_PC')
        a(f's_mov_b32 s{R_A+2}, KG_END-KG_PC')
        a(f's_mov_b32 s{R_A+3}, 0x20000')
        a(f's_lshl_b32 s{S_T0}, s{S_W}, 13')
        a(f's_sub_u32 s{S_T1}, s{S_T0}, 0x8000')
        a(f'v_lshlrev_b32 v212, 7, v0')
        a(f'buffer_load_dword v213, v212, {ra}, s{S_T1} offen')
        a(f'buffer_load_dword v214, v212, {ra}, s{S_T0} offen')
    if EB == 3 and not PTOP: a('s_barrier')
    a('s_branch KG_ATT')
    a.label('KG_N1')
    a('s_setprio 2')
    a(f's_cmp_lg_u32 s{S_W}, 1')
    a('s_cbranch_scc1 KG_N2')
    a(f's_mov_b32 s{S_T3}, {WS_ROOT}')
    a(f'v_mov_b32 {u(2)}, 0')
    a('s_waitcnt lgkmcnt(0)')
    srd(a, R_WS, S_WS, WS_SIZE)
    a(f'buffer_load_dword {u(3)}, {u(2)}, {ws}, s{S_T3} offen{SC}')
    if IST: a(f'{TM} s[{SB+2*4}:{SB+1+2*4}]')
    if EB != 1: a('s_barrier')
    stamp(1)
    a('s_branch KG_TAG')
    a.label('KG_N2')
    if IST: a(f'{TM} s[{SB+2*4}:{SB+1+2*4}]')
    S_O, S_L = S_P, S_P + 4
    assert S_O + 8 <= S_A
    S_PV = S_NH
    LK = LOAD_D // 2
    assert L_X == 0 and 1 <= LK <= 7
    LKS = {'X': E('LKX', LK), 'W': E('LKW', 2)}
    a(f's_mov_b32 s{S_PV}, {-LKS["X"]}')
    if VCH: a(f's_mov_b32 s{S_MH}, 0')
    a(f's_mov_b32 s{R_A+3}, 0x20000')
    a(f's_cmp_eq_u32 s{S_HW}, 3')
    a('s_cbranch_scc1 KG_LDW')
    S_ANN, S_VA, S_VB = S_MH, S_T0, S_T3
    cuid = [0]
    def announce(flag, first, k):
        a(f's_cmp_le_i32 s{S_VA}, s{S_ANN}')
        a(f's_cbranch_scc1 KG_CE{k}')
        a(f's_mov_b32 s{S_ANN}, s{S_VA}')
        a(f'v_mov_b32 {u(6)}, s{S_VA}')
        if first: first(k)
        a(f'ds_write_b32 v{V_Z}, {u(6)} offset:{4*flag}')
        a.label(f'KG_CE{k}')
    def chk(n, ki, flag, first=None):
        if not VCH: return
        cuid[0] += 1; k = cuid[0]
        a(f's_cmp_lt_i32 s{S_PV}, {E("VMIN", 3) - LK}')
        a(f's_cbranch_scc1 KG_CE{k}')
        a(f's_getreg_b32 s{S_VA}, hwreg(HW_REG_IB_STS, 0, 24)')
        a(f's_lshr_b32 s{S_VB}, s{S_VA}, 18')
        a(f's_and_b32 s{S_VA}, s{S_VA}, 15')
        a(f's_and_b32 s{S_VB}, s{S_VB}, 0x30')
        a(f's_or_b32 s{S_VB}, s{S_VB}, s{S_VA}')
        js = list(range(LK - (1 if ki == n else 0), 0, -1))
        a(f's_cmp_gt_u32 s{S_VB}, {n*(js[0]-1)+ki}')
        a(f's_cbranch_scc1 KG_CE{k}')
        for j in js:
            a(f's_add_i32 s{S_VA}, s{S_PV}, {LK-j}')
            a(f's_waitcnt vmcnt({n*(j-1)+ki})')
            if j > 1:
                a(f's_cmp_gt_u32 s{S_VB}, {n*(j-2)+ki}')
                a(f's_cbranch_scc1 KG_CW{k}')
        a.label(f'KG_CW{k}')
        announce(flag, first, k)
    def ld_tail(tag, n, flag, first=None):
        LK = LKS[tag]
        if VCH:
            chk(n, n, flag, first)
            a(f's_cmp_le_i32 s{S_PV}, 0')
            a(f's_cbranch_scc1 KG_LL{tag}')
            cuid[0] += 1
            a(f's_mov_b32 s{S_VA}, s{S_PV}')
            a(f's_waitcnt vmcnt({n*LK})')
            announce(flag, first, cuid[0])
            stamp(9, 1)
            if FST:
                a(f's_cmp_lg_u32 s{S_PV}, 1')
                a(f's_cbranch_scc1 KG_FS{tag}')
                stamp(7, 1)
                a.label(f'KG_FS{tag}')
            a(f's_cmp_lt_i32 s{S_PV}, {8-LK}')
            a(f's_cbranch_scc1 KG_LL{tag}')
            for j in range(LK):
                cuid[0] += 1
                a(f's_mov_b32 s{S_VA}, {8-LK+1+j}')
                a(f's_waitcnt vmcnt({n*(LK-1-j)})')
                announce(flag, None, cuid[0])
                if j < 2: stamp(10 + j, 1)
            a('s_branch KG_H2B')
            return
        LK = LKS[tag]
        if LD_PRE[tag]:
            a(f's_cmp_lg_i32 s{S_PV}, {LD_PRE[tag]-LK}')
            a(f's_cbranch_scc1 KG_LB{tag}')
            a('s_barrier')
            stamp(1)
            a.label(f'KG_LB{tag}')
        a(f'v_mov_b32 {u(6)}, s{S_PV}')
        a(f's_cmp_le_i32 s{S_PV}, 0')
        a(f's_cbranch_scc1 KG_LL{tag}')
        if first: first(0)
        a(f's_waitcnt vmcnt({n*LK})')
        a(f'ds_write_b32 v{V_Z}, {u(6)} offset:{4*flag}')
        stamp(9, 1)
        if FST:
            a(f's_cmp_lg_u32 s{S_PV}, 1')
            a(f's_cbranch_scc1 KG_FS{tag}')
            stamp(7, 1)
            a.label(f'KG_FS{tag}')
        a(f's_cmp_lt_i32 s{S_PV}, {8-LK}')
        a(f's_cbranch_scc1 KG_LL{tag}')
        for j in range(LK):
            a(f'v_mov_b32 {u(6)}, {8-LK+1+j}')
            a(f's_waitcnt vmcnt({n*(LK-1-j)})')
            a(f'ds_write_b32 v{V_Z}, {u(6)} offset:{4*flag}')
            if j < 2: stamp(10 + j, 1)
        a('s_branch KG_H2B')
    xaddr()
    a(f's_lshr_b32 s{S_T1}, s{S_HG}, 1')
    for k in range(3):
        a(f's_add_u32 s{S_T1}, s{S_T1}, 1')
        a(f's_and_b32 s{S_T1}, s{S_T1}, 3')
        xpair(S_O + k, S_L + k, S_T1)
    a(f's_mov_b32 s{R_A+2}, {2048 * 1024}')
    a(f's_mov_b32 s{S_T2}, 0')
    if IST: a(f'{TM} s[{SB+2*5}:{SB+1+2*5}]')
    a('s_waitcnt lgkmcnt(0)')
    a(f's_mov_b64 s[{R_A}:{R_A+1}], s[{S_X}:{S_X+1}]')
    stamp(8, 1)
    if not LD_PRE['X']:
        if EB == 1:
            a.label(f'KG_GOOX')
            a(f'ds_read_b32 {u(7)}, v{V_Z} offset:{4*F_GO}')
            a('s_waitcnt lgkmcnt(0)')
            a(f'v_readfirstlane_b32 s{S_T0}, {u(7)}')
            a(f's_sub_u32 s{S_LIM}, s{S_LIM}, 1')
            a(f's_cbranch_scc1 KG_GPOX')
            a(f's_cmp_eq_u32 s{S_T0}, 0')
            a(f's_cbranch_scc1 KG_GOOX')
            a.label(f'KG_GPOX')
        else: a('s_barrier')
        stamp(1)
    if XS: a(f's_sleep {XS}')
    def kx_wait(k):
        a(f's_cmp_lg_u32 s{S_T2}, 0')
        a(f's_cbranch_scc1 KG_KXD{k}')
        a.label(f'KG_KXW{k}')
        a(f'ds_read_b32 {u(7)}, v{V_Z} offset:{4*F_KX}')
        a('s_waitcnt lgkmcnt(0)')
        a(f'v_readfirstlane_b32 s{S_T2}, {u(7)}')
        a(f's_cmp_lg_u32 s{S_T2}, 0')
        a(f's_cbranch_scc1 KG_KXD{k}')
        a('s_sleep 1')
        a(f's_sub_u32 s{S_LIM}, s{S_LIM}, 1')
        a(f's_cbranch_scc0 KG_KXW{k}')
        a(f's_mov_b32 s{S_LIM}, 0')
        a.label(f'KG_KXD{k}')
    a.label('KG_LLX')
    a(f's_add_i32 s{S_PV}, s{S_PV}, 1')
    for k in range(3):
        a(f's_mov_b32 m0, s{S_L+k}')
        a(f's_add_u32 s{S_L+k}, s{S_L+k}, 8192')
        a(f'buffer_load_dwordx4 {u(4)}, {ra}, s{S_O+k} offen lds')
        a(f'buffer_load_dwordx4 {u(5)}, {ra}, s{S_O+k} offen offset:1024 lds')
        a(f's_add_u32 s{S_O+k}, s{S_O+k}, 128')
        if ROT: a(f's_bitset0_b32 s{S_O+k}, 10')
        if k < 2: chk(6, 2*k + 2, F_CX, kx_wait)
    ld_tail('X', 6, F_CX, kx_wait)
    a.label('KG_LDW')
    if IST: a(f'{TM} s[{SB+2*5}:{SB+1+2*5}]')
    if LKS['W'] != LKS['X']: a(f's_mov_b32 s{S_PV}, {-LKS["W"]}')
    a(f'v_lshrrev_b32 {u(0)}, 3, v0')
    a(f'v_and_b32 {u(1)}, 7, v0')
    a(f'v_and_b32 {u(2)}, 1, v{V_G}')
    a(f'v_lshlrev_b32 {u(2)}, 2, {u(2)}')
    a(f'v_xor_b32 {u(2)}, {u(2)}, {u(1)}')
    a(f'v_lshlrev_b32 {u(2)}, 4, {u(2)}')
    a(f'v_lshl_add_u32 {u(2)}, {u(0)}, 10, {u(2)}')
    a(f's_lshl_b32 s{S_T0}, s{S_HG}, 7')
    if E('WQX', 0): a(f's_xor_b32 s{S_T0}, s{S_T0}, {E("WQX", 0) << 7}')
    a(f'v_add_u32 {u(2)}, s{S_T0}, {u(2)}')
    for j in range(1, 4):
        a(f'v_add_u32 {u(2+j)}, {7168*j}, {u(2)}')
    if ROT: a(f's_lshl_b32 s{S_O}, s{S_ROT}, 9')
    else: a(f's_mov_b32 s{S_O}, 0')
    a(f's_mov_b32 s{S_L}, {L_WQ}')
    a(f's_mov_b32 s{R_A+2}, {512 * 1024}')
    a('s_waitcnt lgkmcnt(0)')
    a(f's_mov_b64 s[{R_A}:{R_A+1}], s[{S_WQ}:{S_WQ+1}]')
    if E('WQO', 0): a(f's_mov_b64 s[{R_A}:{R_A+1}], s[{S_WO}:{S_WO+1}]')
    stamp(8, 1)
    if not LD_PRE['W']:
        if EB == 1:
            a.label(f'KG_GOOW')
            a(f'ds_read_b32 {u(7)}, v{V_Z} offset:{4*F_GO}')
            a('s_waitcnt lgkmcnt(0)')
            a(f'v_readfirstlane_b32 s{S_T0}, {u(7)}')
            a(f's_sub_u32 s{S_LIM}, s{S_LIM}, 1')
            a(f's_cbranch_scc1 KG_GPOW')
            a(f's_cmp_eq_u32 s{S_T0}, 0')
            a(f's_cbranch_scc1 KG_GOOW')
            a.label(f'KG_GPOW')
        else: a('s_barrier')
        stamp(1)
    if E('WS', 0): a(f's_sleep {E("WS", 0)}')
    a.label('KG_LLW')
    a(f's_add_i32 s{S_PV}, s{S_PV}, 1')
    for k in range(2):
        a(f's_mov_b32 m0, s{S_L}')
        a(f's_add_u32 s{S_L}, s{S_L}, 4096')
        for j in range(4):
            a(f'buffer_load_dwordx4 {u(2+j)}, {ra}, s{S_O} offen offset:{1024*j} lds')
        a(f's_add_u32 s{S_O}, s{S_O}, 32768')
        if ROT and k == 1: a(f's_bitset0_b32 s{S_O}, 19')
        if k == 0:
            chk(8, 4, F_CW)
            a(f's_waitcnt vmcnt({8*LKS["W"] + E("WH", 0)})')
    ld_tail('W', 8, F_CW)

    uid = [0]
    def lds_wait(flag, val, vtmp, sleep=1, addr=None, sdst=None):
        uid[0] += 1; u = uid[0]
        addr = V_Z if addr is None else addr
        sdst = S_T0 if sdst is None else sdst
        a.label(f'KG_LW{u}')
        a(f'ds_read_b32 v{vtmp}, v{addr} offset:{4*flag}')
        a('s_waitcnt lgkmcnt(0)')
        a(f'v_readfirstlane_b32 s{sdst}, v{vtmp}')
        a(f's_cmp_ge_u32 s{sdst}, {val}')
        a(f's_cbranch_scc1 KG_LD{u}')
        a(f's_sleep {sleep}')
        a(f's_sub_u32 s{S_LIM}, s{S_LIM}, 1')
        a(f's_cbranch_scc0 KG_LW{u}')
        a(f's_mov_b32 s{S_LIM}, 0')
        a.label(f'KG_LD{u}')
    def lds_add(flag, vtmp, one=None):
        if one is None: a(f'v_mov_b32 v{vtmp}, 1')
        else: vtmp = one
        a('s_mov_b64 exec, 1')
        a(f'ds_add_u32 v{V_Z}, v{vtmp} offset:{4*flag}')
        a('s_mov_b64 exec, -1')
    def get_tag(vtmp):
        a(f'ds_read_b32 v{vtmp}, v{V_Z} offset:{4*F_TAG}')
        a('s_waitcnt lgkmcnt(0)')
        a(f'v_readfirstlane_b32 s{S_TAG}, v{vtmp}')

    V_OQ, V_OV = 2, 3
    V_M = 4
    V_H = 6
    V_Q = 8
    V_S = 16
    V_P = 48
    V_O = 64
    V_K = 96
    V_V = 128
    V_T = 192
    S_N = S_KH
    V_PGA, V_PGV, V_LK = V_T + 16, V_T + 17, V_T + 18
    a.label('KG_ATT')
    a('s_setprio 1')
    a(f's_and_b32 s{S_CT}, s{S_W}, 1')
    a(f's_bfe_u32 s{S_A}, s{S_W}, 0x10001')
    a(f's_mov_b32 s{S_N}, 0')
    a('v_and_b32 v1, 31, v0')
    a(f'v_lshrrev_b32 v{V_H}, 5, v0')
    V_XA = V_T
    V_WA = V_T + 4
    t = lambda i: f'v{V_T+8+i}'
    a(f'v_bfe_u32 {t(0)}, v0, 1, 3')
    a(f's_lshl_b32 s{S_T0}, s{S_A}, 12')
    a(f'v_lshlrev_b32 {t(1)}, 7, v1')
    a(f'v_add_u32 {t(1)}, s{S_T0}, {t(1)}')
    for ks in range(4):
        a(f'v_add_u32 {t(2)}, {2*ks}, v{V_H}')
        a(f'v_xor_b32 {t(2)}, {t(2)}, {t(0)}')
        a(f'v_lshl_add_u32 v{V_XA+ks}, {t(2)}, 4, {t(1)}')
    a(f'v_bfe_u32 {t(0)}, v0, 2, 2')
    a(f'v_and_b32 {t(1)}, 3, v0')
    a(f'v_bfe_u32 {t(2)}, v0, 4, 1')
    a(f'v_lshl_add_u32 {t(3)}, v{V_H}, 3, {t(0)}')
    a(f'v_lshlrev_b32 {t(3)}, 7, {t(3)}')
    a(f'v_lshrrev_b32 {t(4)}, 1, {t(1)}')
    a(f'v_and_b32 {t(5)}, 1, {t(1)}')
    a(f'v_lshrrev_b32 {t(6)}, 1, {t(0)}')
    a(f'v_lshlrev_b32 {t(6)}, 2, {t(6)}')
    a(f'v_lshl_add_u32 {t(7)}, {t(2)}, 1, {t(4)}')
    a(f's_lshl_b32 s{S_T0}, s{S_CT}, 2')
    a(f'v_add_u32 {t(7)}, s{S_T0}, {t(7)}')
    a(f'v_xor_b32 {t(7)}, {t(7)}, {t(6)}')
    a(f'v_lshl_add_u32 {t(7)}, {t(7)}, 4, {t(3)}')
    a(f'v_lshl_add_u32 v{V_WA}, {t(5)}, 3, {t(7)}')
    a(f'v_add_u32 v{V_WA}, {L_WQ}, v{V_WA}')
    a(f'v_lshlrev_b32 v{V_OQ}, 4, v0')
    a(f'v_add_u32 v{V_LK}, {L_PRE}, v{V_OQ}')
    a(f's_lshl_b32 s{S_T0}, s{S_W}, 2')
    a(f'v_add_u32 v{V_PGA}, s{S_T0}, v{V_Z}')
    a(f'v_mov_b32 v{V_PGV}, 1')
    V_LW, V_FP, V_FQ = 216, 221, 222
    V_PC = {1: V_PGV, 3: 217, 4: 218, 6: 219, 10: 220}
    if UNR:
        a(f'v_add_u32 v{V_LW}, {L_WQ}, v{V_OQ}')
        for k_ in (3, 4, 6, 10): a(f'v_mov_b32 v{V_PC[k_]}, {k_}')
    a(f's_mov_b32 s{S_VM}, 0xffff')
    a(f's_mov_b32 s{S_VM+1}, 0xffff')
    a(f'v_and_b32 {t(0)}, 27, v1')
    a(f'v_cmp_eq_u32 vcc, 16, {t(0)}')
    a(f'v_mov_b32 {t(1)}, 0x3f803f80')
    a(f'v_mov_b32 v{V_M}, 0')
    a(f'v_mov_b32 v{V_M+1}, 0')
    a(f'v_cndmask_b32 {t(1)}, 0, {t(1)}, vcc')
    for i in range(64):
        a(f'v_mov_b32 v{V_V+i}, {t(1)}')
    QA = V_S
    V_IX = 223
    if SM:
        a(f'v_mov_b32 v{V_IX}, 0xdddddddd')
        for i in range(32):
            a(f'v_mov_b32 v{V_O+i}, 0')
    if QPIPE == 3:
        a(f'v_mov_b32 v{V_T+5}, v{V_WA}')
    if QPIPE >= 2:
        for i in range(16):
            a(f'v_mov_b32 v{QA+i}, 0')
    QB = (224 if SM else V_O, V_S + 16)
    a(f's_mov_b32 s{S_SEEN}, 0')
    a('s_waitcnt lgkmcnt(0)')
    srd(a, R_WS, S_WS, WS_SIZE)
    stamp(11, 1)
    if not EB: a('s_barrier')
    stamp(1)
    def q_wait(c):
        a(f's_cmp_gt_u32 s{S_SEEN}, {c}')
        a(f's_cbranch_scc1 KG_QG{c}')
        a.label(f'KG_QP{c}')
        a(f'ds_read_b64 {vr(V_T+8,2)}, v{V_Z} offset:{4*F_CX}')
        a('s_waitcnt lgkmcnt(0)')
        a(f'v_min_u32 {t(0)}, {t(0)}, {t(1)}')
        a('s_nop 0')
        a(f'v_readfirstlane_b32 s{S_SEEN}, {t(0)}')
        a(f's_cmp_gt_u32 s{S_SEEN}, {c}')
        a(f's_cbranch_scc1 KG_QG{c}')
        if c < 7 or Q7_SLEEP:
            a('s_sleep 1')
        a(f's_sub_u32 s{S_LIM}, s{S_LIM}, 1')
        a(f's_cbranch_scc0 KG_QP{c}')
        a(f's_mov_b32 s{S_LIM}, 0')
        a.label(f'KG_QG{c}')
        if c in (0, 4, 6, 7): stamp({0: 7, 4: 8, 6: 9, 7: 10}[c], 1)
    def q_reads(c):
        b = QB[c & 1]
        for ks in range(4):
            a(f'ds_read_b128 {vr(b+4*ks,4)}, v{V_XA+ks} offset:{c*8192}')
            a(f'ds_read_b64_tr_b16 {vr(b+16+4*ks,2)}, v{V_WA} offset:{c*8192+ks*2048}')
            a(f'ds_read_b64_tr_b16 {vr(b+16+4*ks+2,2)}, v{V_WA} offset:{c*8192+ks*2048+512}')
    def progress(val=1):
        a(f'ds_write_b32 v{V_PGA}, v{V_PC[val] if UNR else V_PGV} offset:{4*(F_PGW-4)}')
    spins = []
    def pre_check(n):
        uid[0] += 1; u = uid[0]
        a(f's_cmp_lt_u32 s{S_N}, {n}')
        a(f's_cbranch_scc1 KG_SP{u}')
        a.label(f'KG_SR{u}')
        spins.append(('pre', u, n))
    def pos_check(k=None):
        uid[0] += 1; u = uid[0]
        k = f's{S_KB}' if k is None else k
        a(f's_cmp_lt_u32 s{S_KOFF}, {k}')
        a(f's_cbranch_scc1 KG_SP{u}')
        a.label(f'KG_SR{u}')
        spins.append(('q', u, k))
    def emit_spins():
        for kind, u, n in spins:
            a.label(f'KG_SP{u}')
            if kind == 'pre':
                a(f'ds_read_b32 v{V_T+8}, v{V_Z} offset:{4*F_PRE}')
                a('s_waitcnt lgkmcnt(0)')
                a(f'v_readfirstlane_b32 s{S_N}, v{V_T+8}')
                a(f's_cmp_ge_u32 s{S_N}, {n}')
                a(f's_cbranch_scc1 KG_SR{u}')
            else:
                a(f'ds_read_b32 v{V_T+8}, v{V_Z} offset:{4*F_POS}')
                a('s_waitcnt lgkmcnt(0)')
                a(f'v_readfirstlane_b32 s{S_KOFF}, v{V_T+8}')
                a(f's_cmp_ge_u32 s{S_KOFF}, {n}')
                a(f's_cbranch_scc1 KG_SR{u}')
                a('s_sleep 1')
            a(f's_sub_u32 s{S_LIM}, s{S_LIM}, 1')
            a(f's_cbranch_scc0 KG_SP{u}')
            a(f's_mov_b32 s{S_LIM}, 0')
            a(f's_branch KG_SR{u}')
        spins.clear()

    def load_k(slot, off):
        a(f'buffer_load_dwordx4 {vr(V_K+4*slot,4)}, v{V_OQ}, {ws}, s{S_KOFF} offen offset:{off}{KVSC}')
    def kv_group(c, adv=True):
        load_k(c & 7, 0)
        load_k((c + 1) & 7, 2048)
        a(f's_mov_b64 exec, s[{S_VM}:{S_VM+1}]')
        for j in range(2):
            sl = (c + j) & 7
            a(f'buffer_load_dwordx4 {vr(V_V+8*sl,4)}, v{V_OQ}, {ws}, s{S_KOFF} offen offset:{2048*j+1024}{KVSC}')
            a(f'buffer_load_dwordx4 {vr(V_V+8*sl+4,4)}, v{V_OQ}, {ws}, s{S_KOFF} offen offset:{2048*j+1280}{KVSC}')
        a('s_mov_b64 exec, -1')
        if adv:
            a(f's_add_u32 s{S_KOFF}, s{S_KOFF}, 4096')
    def pre_reads(c, n=1, cls=0):
        ad, o = (V_LK, 0) if cls == 0 else (V_LW, 16384*(cls-1)) if cls <= 4 else (V_OQ, L_X + 16384*(cls-5))
        for j in range(c, c + n):
            a(f'ds_read_b128 {vr(V_K+4*j,4)}, v{ad} offset:{o+2048*j}')
        a(f's_mov_b64 exec, s[{S_VM}:{S_VM+1}]')
        for j in range(c, c + n):
            a(f'ds_read_b128 {vr(V_V+8*j,4)}, v{ad} offset:{o+2048*j+1024}')
            a(f'ds_read_b128 {vr(V_V+8*j+4,4)}, v{ad} offset:{o+2048*j+1280}')
        a('s_mov_b64 exec, -1')
    def mfma_s(t_, slot):
        a(f'v_mfma_f32_32x32x16_bf16 {vr(V_S+16*t_,16)}, {vr(V_K+4*slot,4)}, {vr(V_Q+4*t_,4)}, 0')
    def mfma_pv(t_, slot, pp, zero=False):
        if SM:
            a(f'v_smfmac_f32_32x32x32_bf16 {vr(V_O+16*t_,16)}, {vr(V_V+8*slot+4*pp,4)}, {vr(V_S+16*t_+8*pp,8)}, v{V_IX}')
            return
        cc = '0' if zero else vr(V_O+16*t_, 16)
        a(f'v_mfma_f32_32x32x16_bf16 {vr(V_O+16*t_,16)}, {vr(V_V+8*slot+4*pp,4)}, {vr(V_P+8*t_+4*pp,4)}, {cc}')
    def cv(t_, i):
        if SM: return
        a(f'v_cvt_pk_bf16_f32 v{V_P+8*t_+i}, v{V_S+16*t_+2*i}, v{V_S+16*t_+2*i+1}')

    if QPIPE == 3:
        S_QC = S_CNT
        V_WB = V_T + 5
        WA = (V_WA, V_WB)
        def fread():
            a(f'ds_read_b128 {vr(V_T+8,4)}, v{V_Z} offset:{4*F_CX}')
        def qg(cn, ks):
            n_ = QB[cn]
            a(f'ds_read_b128 {vr(n_+4*ks,4)}, v{V_XA+ks} offset:{cn*8192}')
            a(f'ds_read_b64_tr_b16 {vr(n_+16+4*ks,2)}, v{WA[cn]} offset:{cn*8192+ks*2048}')
            a(f'ds_read_b64_tr_b16 {vr(n_+16+4*ks+2,2)}, v{WA[cn]} offset:{cn*8192+ks*2048+512}')
        def qf(b, ks):
            a(f'v_mfma_f32_32x32x16_bf16 {vr(QA,16)}, {vr(b+16+4*ks,4)}, {vr(b+4*ks,4)}, {vr(QA,16)}')
        UPD = ((V_XA + 2, V_XA + 3, V_WB), (V_XA, V_XA + 1, V_WA))
        def upd(r):
            a(f'v_add_u32 v{r}, 0x4000, v{r}')
        def qst():
            if E('QST', 0) == 2:
                a(f's_add_u32 m0, s{S_QC}, 6')
                a('s_nop 0')
                a(f'v_writelane_b32 v{V_T+23}, s100, m0')
                a('s_memtime s[100:101]')
        a(f's_mov_b32 s{S_QC}, 0')
        a('s_branch KG_QE0')
        for cn in (1, 0):
            a.label(f'KG_QS{cn}')
            if cn == 0:
                a(f's_cmp_eq_u32 s{S_QC}, 8')
                a('s_cbranch_scc1 KG_QX')
            for ks in range(1, 4):
                a(f's_waitcnt lgkmcnt({9 - 3*ks})')
                qf(QB[1 - cn], ks)
            if cn == 0:
                for r in UPD[0]: upd(r)
            a.label(f'KG_QE{cn}')
            fread()
            a('s_waitcnt lgkmcnt(0)')
            a(f'v_min_u32 {t(0)}, {t(0)}, {t(1)}')
            a('s_nop 0')
            a(f'v_readfirstlane_b32 s{S_SEEN}, {t(0)}')
            a(f's_cmp_gt_u32 s{S_SEEN}, s{S_QC}')
            a(f's_cbranch_scc1 KG_QG{cn}')
            if QSL: a(f's_sleep {QSL}')
            a(f's_sub_u32 s{S_LIM}, s{S_LIM}, 1')
            a(f's_cbranch_scc0 KG_QE{cn}')
            a(f's_mov_b32 s{S_LIM}, 0')
            a.label(f'KG_QG{cn}')
            qst()
            for ks in range(4): qg(cn, ks)
            a(f's_add_u32 s{S_QC}, s{S_QC}, 1')
            if cn == 1:
                for r in UPD[1]: upd(r)
                a('s_branch KG_Q0')
        for cn in (1, 0):
            b = QB[1 - cn]
            a.label(f'KG_Q{cn}')
            a('s_waitcnt lgkmcnt(9)')
            qf(b, 0)
            a(f's_cmp_gt_u32 s{S_SEEN}, s{S_QC}')
            a(f's_cbranch_scc0 KG_QS{cn}')
            qst()
            fread()
            qg(cn, 0)
            a('s_waitcnt lgkmcnt(10)')
            qf(b, 1)
            qg(cn, 1)
            upd(UPD[cn][0])
            a(f's_add_u32 s{S_QC}, s{S_QC}, 1')
            a('s_waitcnt lgkmcnt(10)')
            qf(b, 2)
            qg(cn, 2)
            upd(UPD[cn][1])
            upd(UPD[cn][2])
            a('s_waitcnt lgkmcnt(9)')
            qf(b, 3)
            a(f'v_min_u32 {t(0)}, {t(0)}, {t(1)}')
            qg(cn, 3)
            a(f'v_readfirstlane_b32 s{S_SEEN}, {t(0)}')
        a('s_branch KG_Q1')
        a.label('KG_QX')
        a(f'v_readfirstlane_b32 s{S_N}, {t(2)}')
        pre_check(1)
        if E('QST', 0) == 2:
            a(f'v_writelane_b32 v{V_T+23}, s100, 14')
            a('s_memtime s[100:101]')
        pre_reads(0)
        for ks in range(1, 4):
            a(f's_waitcnt lgkmcnt({12 - 3*ks})')
            qf(QB[1], ks)
        if E('QST', 0) == 2:
            a(f'v_writelane_b32 v{V_T+23}, s100, 15')
        progress()
        stamp(2)
    elif QPIPE == 2:
        S_QC = S_CNT
        def qw(k):
            a(f's_cmp_gt_u32 s{S_SEEN}, s{S_QC}')
            a(f's_cbranch_scc0 KG_QS{k}')
            a.label(f'KG_QR{k}')
        def qm(b, wait=True):
            for ks in range(4):
                if wait: a(f's_waitcnt lgkmcnt({min(15, 21 - 3*ks)})')
                a(f'v_mfma_f32_32x32x16_bf16 {vr(QA,16)}, {vr(b+16+4*ks,4)}, {vr(b+4*ks,4)}, {vr(QA,16)}')
        a(f's_mov_b32 s{S_QC}, 0')
        a('s_branch KG_QS0')
        for k in range(3):
            a.label(f'KG_QS{k}')
            a(f'ds_read_b64 {vr(V_T+8,2)}, v{V_Z} offset:{4*F_CX}')
            a('s_waitcnt lgkmcnt(0)')
            a(f'v_min_u32 {t(0)}, {t(0)}, {t(1)}')
            a('s_nop 0')
            a(f'v_readfirstlane_b32 s{S_SEEN}, {t(0)}')
            a(f's_cmp_gt_u32 s{S_SEEN}, s{S_QC}')
            a(f's_cbranch_scc1 KG_QR{k}')
            a('s_sleep 1')
            a(f's_sub_u32 s{S_LIM}, s{S_LIM}, 1')
            a(f's_cbranch_scc0 KG_QS{k}')
            a(f's_mov_b32 s{S_LIM}, 0')
            a(f's_branch KG_QR{k}')
        def fread():
            a(f'ds_read_b128 {vr(V_T+8,4)}, v{V_Z} offset:{4*F_CX}')
        def qg(n_, cn, ks):
            a(f'ds_read_b128 {vr(n_+4*ks,4)}, v{V_XA+ks} offset:{cn*8192}')
            a(f'ds_read_b64_tr_b16 {vr(n_+16+4*ks,2)}, v{V_WA} offset:{cn*8192+ks*2048}')
            a(f'ds_read_b64_tr_b16 {vr(n_+16+4*ks+2,2)}, v{V_WA} offset:{cn*8192+ks*2048+512}')
        def qf(b, ks):
            a(f'v_mfma_f32_32x32x16_bf16 {vr(QA,16)}, {vr(b+16+4*ks,4)}, {vr(b+4*ks,4)}, {vr(QA,16)}')
        a.label('KG_QR0')
        fread()
        q_reads(0)
        def qstep(cn):
            b = QB[1 - cn]; n_ = QB[cn]
            a('s_waitcnt lgkmcnt(9)')
            qf(b, 0)
            a(f'v_min_u32 {t(0)}, {t(0)}, {t(1)}')
            a(f's_add_u32 s{S_QC}, s{S_QC}, 1')
            a(f'v_readfirstlane_b32 s{S_SEEN}, {t(0)}')
            if cn == 0:
                for r in [V_XA + ks for ks in range(4)] + [V_WA]:
                    a(f'v_add_u32 v{r}, 0x4000, v{r}')
            qw(1 + cn)
            if E('QST', 0) == 2:
                a(f's_add_u32 m0, s{S_QC}, 6')
                a('s_nop 0')
                a(f'v_writelane_b32 v{V_T+23}, s100, m0')
                a('s_memtime s[100:101]')
            fread()
            qg(n_, cn, 0)
            for ks in range(1, 4):
                a('s_waitcnt lgkmcnt(10)')
                qf(b, ks)
                qg(n_, cn, ks)
        a.label('KG_QLP')
        qstep(1)
        a(f's_cmp_eq_u32 s{S_QC}, 7')
        a('s_cbranch_scc1 KG_QX')
        qstep(0)
        if QP:
            a(f'v_mov_b32 {t(4)}, s{S_QC}')
            a(f'ds_write_b32 v{V_PGA}, {t(4)}')
        a('s_branch KG_QLP')
        a.label('KG_QX')
        if E('QST', 0) == 1:
            stamp(7); a('s_waitcnt lgkmcnt(0)')
        a('s_waitcnt lgkmcnt(9)')
        qf(QB[1], 0)
        a(f'v_readfirstlane_b32 s{S_N}, {t(2)}')
        pre_check(1)
        if E('QST', 0) == 2:
            a(f'v_writelane_b32 v{V_T+23}, s100, 14')
            a('s_memtime s[100:101]')
        pre_reads(0)
        for ks in range(1, 4):
            a(f's_waitcnt lgkmcnt({12 - 3*ks})')
            qf(QB[1], ks)
        if E('QST', 0) == 2:
            a(f'v_writelane_b32 v{V_T+23}, s100, 15')
        progress()
        stamp(2)
    elif QPIPE:
        q_wait(0); q_reads(0)
        for c in range(8):
            if c < 7:
                q_wait(c + 1); q_reads(c + 1)
            else:
                a('s_waitcnt lgkmcnt(0)')
                progress()
                stamp(2)
                pre_check(1)
                pre_reads(0)
            b = QB[c & 1]
            for ks in range(4):
                if c < 7: a(f's_waitcnt lgkmcnt({min(15, 21 - 3*ks)})')
                cc = vr(QA, 16) if (c or ks) else '0'
                a(f'v_mfma_f32_32x32x16_bf16 {vr(QA,16)}, {vr(b+16+4*ks,4)}, {vr(b+4*ks,4)}, {cc}')
    else:
        for c in range(8):
            q_wait(c); q_reads(c)
            b = QB[c & 1]
            for ks in range(4):
                a(f's_waitcnt lgkmcnt({9 - 3*ks})')
                cc = vr(QA, 16) if (c or ks) else '0'
                a(f'v_mfma_f32_32x32x16_bf16 {vr(QA,16)}, {vr(b+16+4*ks,4)}, {vr(b+4*ks,4)}, {cc}')
        progress()
        stamp(2)

    def body(sub, peel, lds):
        def ex(t_, i):
            r = V_S + 16*t_ + i
            if sub:
                a(f'v_sub_f32 v{r}, v{r}, v{V_M+t_}')
            a(f'v_exp_f32 v{r}, v{r}')
        for b in range(8):
            for t_ in range(2):
                if peel and t_ == 0 and LST:
                    a(f'{TM} s[100:101]')
                ex(t_, 0); ex(t_, 1)
                if t_ == 1:
                    mfma_pv(0, b, 1)
                elif not (peel and b == 0):
                    mfma_pv(1, (b - 1) & 7, 1)
                if peel and t_ == 0 and b < 7:
                    pre_check(b + 2)
                    pre_reads(b + 1)
                ex(t_, 2); ex(t_, 3); ex(t_, 4); ex(t_, 5)
                if t_ == 1:
                    if peel or (lds and b in (1, 7)):
                        a('s_waitcnt lgkmcnt(0)')
                    elif not lds and b & 1:
                        a('s_waitcnt vmcnt(12)')
                    if peel and LST and E('QST', 0) != 2:
                        a(f'v_writelane_b32 v{V_T+23}, s100, {8+b}')
                    mfma_s(0, (b + 1) & 7)
                    if lds and b == (6 if peel else 1):
                        progress()
                    if LST and lds and not peel and b == 1:
                        a(f'v_writelane_b32 v{V_T+23}, s100, m0')
                    if peel and b == 6:
                        pos_check()
                        pre_reads(0, 2)
                else:
                    mfma_s(1, b)
                    if peel and b == 6:
                        a(f'v_add_u32 v{V_PGV}, 1, v{V_PGV}')
                    if peel and b == 7:
                        pre_reads(2, 2)
                    if lds and not peel and b == 0:
                        pre_reads(4, 4)
                        a(f'v_add_u32 v{V_PGV}, 1, v{V_PGV}')
                    if lds and not peel and b == 4:
                        pos_check()
                        pre_reads(0, 4)
                    if not lds and b % 2 == 0:
                        kv_group(b + 6)
                ex(t_, 6); ex(t_, 7)
                cv(t_, 0); cv(t_, 1); cv(t_, 2); cv(t_, 3)
                if peel and b == 6 and t_ == 0:
                    a(f'v_add_u32 v{V_LK}, {L_WQ - L_PRE}, v{V_LK}')
                if lds and not peel and b == 3 and t_ == 0:
                    a(f'v_add_u32 v{V_LK}, 0x4000, v{V_LK}')
                    a(f's_add_u32 s{S_KB}, s{S_KB}, 1')
                    a(f'v_and_b32 v{V_LK}, 0x1ffff, v{V_LK}')
                ex(t_, 8); ex(t_, 9)
                mfma_pv(t_, b, 0, zero=(peel and b == 0))
                for i in range(10, 16):
                    ex(t_, i)
                cv(t_, 4); cv(t_, 5); cv(t_, 6); cv(t_, 7)

    def body_u(cls):
        peel = cls == 0
        def ex(t_, i):
            a(f'v_exp_f32 v{V_S+16*t_+i}, v{V_S+16*t_+i}')
        def fpos(): a(f'ds_read_b32 v{V_FP}, v{V_Z} offset:{4*F_POS}')
        def chk0(k):
            if PFK >> k & 1:
                a('s_waitcnt lgkmcnt(0)')
                a(f'v_readfirstlane_b32 s{S_KOFF}, v{V_FP}')
        def chk(k):
            if k <= 5: pos_check(k)
        if LST and not peel: a(f'{TM} s[100:101]')
        for b in range(8):
            for t_ in range(2):
                if peel and t_ == 0 and 0 < b < 7 and PFP >> (b - 1) & 1:
                    if PFP & 0x100: a('s_waitcnt lgkmcnt(0)')
                    a(f'v_readfirstlane_b32 s{S_N}, v{V_FQ}')
                if peel and t_ == 0 and LST:
                    a(f'{TM} s[100:101]')
                ex(t_, 0); ex(t_, 1)
                if t_ == 1:
                    mfma_pv(0, b, 1)
                elif not (peel and b == 0):
                    mfma_pv(1, (b - 1) & 7, 1)
                if t_ == 0 and (b == 7 and PEND if peel else b == 4): chk0(cls + 1)
                if peel and t_ == 0 and b < 7:
                    pre_check(b + 2)
                    pre_reads(b + 1)
                    if PFP >> b & 1 and not PFP & 0x100:
                        a(f'ds_read_b32 v{V_FQ}, v{V_Z} offset:{4*F_PRE}')
                    if b == 6 and not PEND and PFK & 2: fpos()
                ex(t_, 2); ex(t_, 3); ex(t_, 4); ex(t_, 5)
                if t_ == 1:
                    if peel and b == 7 and PEND:
                        a('s_waitcnt lgkmcnt(8)' if not LST else 's_waitcnt lgkmcnt(0)')
                    elif peel or b in (1, 7):
                        a('s_waitcnt lgkmcnt(0)')
                    if peel and LST:
                        a(f'v_writelane_b32 v{V_T+23}, s100, {8+b}')
                    mfma_s(0, (b + 1) & 7)
                    if peel and PFP >> b & 1 and PFP & 0x100:
                        a(f'ds_read_b32 v{V_FQ}, v{V_Z} offset:{4*F_PRE}')
                    if not peel and b == 1 and cls + 2 in V_PC:
                        progress(cls + 2)
                    if LST and not peel and b == 1:
                        a(f'v_writelane_b32 v{V_T+23}, s100, {7-cls}')
                    if peel and b == 6:
                        if PEND:
                            if PFK & 2: fpos()
                        else:
                            if PFK & 2: a(f'v_readfirstlane_b32 s{S_KOFF}, v{V_FP}')
                            pos_check(1)
                            pre_reads(0, 2, 1)
                    if not peel and b == 3 and PFK >> (cls + 1) & 1: fpos()
                else:
                    mfma_s(1, b)
                    if peel and b == 7:
                        if PEND:
                            chk(1)
                            pre_reads(0, 4, 1)
                        else:
                            pre_reads(2, 2, 1)
                    if not peel and b == 0:
                        pre_reads(4, 4, cls)
                    if not peel and b == 4:
                        chk(cls + 1)
                        pre_reads(0, 4, cls + 1)
                ex(t_, 6); ex(t_, 7)
                cv(t_, 0); cv(t_, 1); cv(t_, 2); cv(t_, 3)
                ex(t_, 8); ex(t_, 9)
                if cls == 1 and PEND and b == 0 and t_ == 0: a('s_waitcnt lgkmcnt(12)')
                mfma_pv(t_, b, 0, zero=(peel and b == 0))
                for i in range(10, 16):
                    ex(t_, i)
                cv(t_, 4); cv(t_, 5); cv(t_, 6); cv(t_, 7)

    def attn_pass(tag, sub, first):
        if first:
            if not QPIPE:
                pre_check(1)
                pre_reads(0)
            stamp(3)
            a('s_nop 4')
            for i in range(8):
                a(f'v_cvt_pk_bf16_f32 v{V_Q+i}, v{QA+2*i}, v{QA+2*i+1}')
            a('s_waitcnt lgkmcnt(0)')
            mfma_s(0, 0)
            a(f's_mov_b32 s{S_CNT}, 6')
            a(f's_mov_b32 s{S_KOFF}, 0')
            a(f's_mov_b32 s{S_KB}, 1')
            stamp(4)
            a('s_nop 4')
            if UNR:
                for cls in range(7): body_u(cls)
                last_body()
                return
            body(False, True, True)
        else:
            a(f's_mov_b32 s{S_KOFF}, {WS_KV}')
            for c in range(0, 6, 2):
                kv_group(c)
            for i in range(32):
                a(f'v_mov_b32 v{V_O+i}, 0')
            for i in range(8 if SM else 4):
                a(f'v_mov_b32 v{(V_S+24 if SM else V_P+12)+i}, 0')
            a('s_waitcnt vmcnt(12)')
            mfma_s(0, 0)
            a(f's_mov_b32 s{S_CNT}, 8')
            a('s_nop 10')
        a.label(f'KG_LOOP{tag}')
        if LST and first:
            a(f'{TM} s[100:101]')
            a(f's_mov_b32 m0, s{S_CNT}')
        body(sub, False, first)
        a(f's_sub_u32 s{S_CNT}, s{S_CNT}, 1')
        a(f's_cmp_lg_u32 s{S_CNT}, 0')
        a(f's_cbranch_scc1 KG_LOOP{tag}')
        if first:
            last_body()
        else:
            mfma_pv(1, 7, 1)

    S_OA, S_FA, S_LOC, S_BAD = S_P, S_SEEN, S_MH, S_NH
    V_TG, V_ZR, V_PK, V_RC = V_T, V_T + 2, V_T + 4, V_T + 9
    outl = []
    def st2(ins):
        uid[0] += 1; k = uid[0]
        a(f's_cmp_eq_u32 s{S_LOC}, 1')
        a(f's_cbranch_scc0 KG_SG{k}')
        a(ins + LOCSC)
        a.label(f'KG_SH{k}')
        outl.append((k, ins))
    def rng(t_):
        a(f'v_cmp_le_f32 s[{S_C0}:{S_C0+1}], s{S_T0}, v{V_O+16*t_+8}')
        a(f'v_cmp_ge_f32 s[{S_C1}:{S_C1+1}], s{S_T1}, v{V_O+16*t_+8}')
        a(f'v_rcp_f32 v{V_RC}, v{V_O+16*t_+8}')
        a(f's_and_b64 s[{S_C0}:{S_C0+1}], s[{S_C0}:{S_C0+1}], s[{S_C1}:{S_C1+1}]')
        a(f's_cmp_eq_u64 s[{S_C0}:{S_C0+1}], -1')
    def o_store(t_):
        for i in range(8):
            a(f'v_mul_f32 v{V_O+16*t_+i}, v{V_RC}, v{V_O+16*t_+i}')
        for i in range(4):
            a(f'v_cvt_pk_bf16_f32 v{V_PK+i}, v{V_O+16*t_+2*i}, v{V_O+16*t_+2*i+1}')
        a(f'v_min_u32 v{V_PK+3}, -2, v{V_PK+3}')
        st2(f'buffer_store_dwordx4 {vr(V_PK,4)}, v{V_OQ}, {ws}, s{S_OA} offen offset:{1024*t_}')
    def o_flag(t_):
        a('s_mov_b64 exec, 1')
        st2(f'buffer_store_dword v{V_TG}, v{V_ZR}, {ws}, s{S_FA} offen offset:{4*t_}')
        a('s_mov_b64 exec, -1')
    def last_body():
        steps = [(0, c) for c in range(8)] + [(1, c) for c in range(8)]
        def pv(tile, buf, slot, pp):
            if SM:
                a(f'v_smfmac_f32_32x32x32_bf16 {vr(V_O+16*tile,16)}, {vr(V_V+8*slot+4*pp,4)}, {vr(V_S+16*buf+8*pp,8)}, v{V_IX}')
                return
            a(f'v_mfma_f32_32x32x16_bf16 {vr(V_O+16*tile,16)}, {vr(V_V+8*slot+4*pp,4)}, {vr(V_P+8*buf+4*pp,4)}, {vr(V_O+16*tile,16)}')
        def ex(p_, i):
            a(f'v_exp_f32 v{V_S+16*p_+i}, v{V_S+16*p_+i}')
        for n, (tile, c) in enumerate(steps):
            p_ = n & 1
            pt, pc = steps[n - 1] if n else (1, 7)
            ex(p_, 0); ex(p_, 1)
            pv(pt, 1 - p_, pc, 1)
            ex(p_, 2); ex(p_, 3); ex(p_, 4); ex(p_, 5)
            if n == 2:
                a('s_waitcnt lgkmcnt(0)')
            if n < 15:
                nt, nc = steps[n + 1]
                a(f'v_mfma_f32_32x32x16_bf16 {vr(V_S+16*(1-p_),16)}, {vr(V_K+4*nc,4)}, {vr(V_Q+4*nt,4)}, 0')
            if n == 0:
                pre_reads(4, 4, 7 if UNR else 0)
                a(f'ds_read_b32 v{V_ZR}, v{V_Z} offset:{4*F_LOC}')
                if not UNR: a(f'v_add_u32 v{V_PGV}, 1, v{V_PGV}')
            if n == 2:
                if not UNR: progress()
                a(f'v_readfirstlane_b32 s{S_LOC}, v{V_ZR}')
                if not UNR: a(f'v_add_u32 v{V_PGV}, 1, v{V_PGV}')
            if n == 9:
                rng(0)
                a(f's_cselect_b32 s{S_BAD}, 0, 1')
                a('s_cbranch_scc0 KG_L9')
                o_store(0)
                a.label('KG_L9')
            if n == OF_STEP:
                a(f's_cmp_lg_u32 s{S_BAD}, 0')
                a('s_cbranch_scc1 KG_L12')
                a(f'ds_write_b32 v{V_Z}, v{V_PGV} offset:{4*F_ADONE}')
                a.label('KG_L12')
            ex(p_, 6); ex(p_, 7)
            cv(p_, 0); cv(p_, 1); cv(p_, 2); cv(p_, 3)
            ex(p_, 8); ex(p_, 9)
            pv(tile, p_, c, 0)
            for i in range(10, 16):
                ex(p_, i)
            cv(p_, 4); cv(p_, 5); cv(p_, 6); cv(p_, 7)
        a('s_nop 2' if SM else 's_nop 1')
        pv(1, 1, 7, 1)

    a(f's_lshl_b32 s{S_T2}, s{S_QG}, 1')
    a(f's_add_u32 s{S_T2}, s{S_T2}, s{S_A}')
    a(f's_lshl_b32 s{S_T3}, s{S_HG}, 1')
    a(f's_add_u32 s{S_T3}, s{S_T3}, s{S_CT}')
    a(f's_lshl_b32 s{S_T2}, s{S_T2}, 4')
    a(f's_add_u32 s{S_T2}, s{S_T2}, s{S_T3}')
    a(f's_lshl_b32 s{S_OA}, s{S_T2}, 11')
    a(f's_add_u32 s{S_OA}, s{S_OA}, {WS_O}')
    a(f's_mov_b32 s{S_T0}, {f32_bits(2.0**-30)}')
    a(f's_mov_b32 s{S_T1}, {f32_bits(2.0**30)}')
    attn_pass('A', False, True)
    stamp(5)
    a('s_nop 12')
    rng(1)
    a('s_cbranch_scc0 KG_SLOW')
    a(f's_cmp_lg_u32 s{S_BAD}, 0')
    a('s_cbranch_scc1 KG_SLOW')
    a.label('KG_OUT')
    o_store(1)
    progress(10)
    if ST in (5, 6, 7): a('s_waitcnt vmcnt(0)')
    stamp(6)
    dump(1)
    a('s_endpgm')
    emit_spins()

    a.label('KG_SLOW')
    lds_wait(F_N, 127, V_T + 8, sdst=S_T2)
    a('s_waitcnt vmcnt(0)')
    a(f'v_mov_b32 v{V_M}, 0xff800000')
    a(f'v_mov_b32 v{V_M+1}, 0xff800000')
    a(f's_mov_b32 s{S_KOFF}, {WS_KV}')
    a(f's_mov_b32 s{S_CNT}, 64')
    a.label('KG_MAXLOOP')
    load_k(0, 0)
    a(f's_add_u32 s{S_KOFF}, s{S_KOFF}, 2048')
    a('s_waitcnt vmcnt(0)')
    mfma_s(0, 0)
    mfma_s(1, 0)
    a('s_nop 12')
    for t_ in range(2):
        for i in range(8):
            a(f'v_max3_f32 v{V_M+t_}, v{V_S+16*t_+2*i}, v{V_S+16*t_+2*i+1}, v{V_M+t_}')
    a(f's_sub_u32 s{S_CNT}, s{S_CNT}, 1')
    a(f's_cmp_lg_u32 s{S_CNT}, 0')
    a('s_cbranch_scc1 KG_MAXLOOP')
    for t_ in range(2):
        a(f'v_mov_b32 v{V_T+4+t_}, v{V_M+t_}')
    a('s_nop 1')
    for t_ in range(2):
        a(f'v_permlane32_swap_b32 v{V_M+t_}, v{V_T+4+t_}')
    a('s_nop 1')
    for t_ in range(2):
        a(f'v_max_f32 v{V_M+t_}, v{V_M+t_}, v{V_T+4+t_}')
    attn_pass('B', True, False)
    a('s_nop 12')
    a(f'v_rcp_f32 v{V_RC}, v{V_O+8}')
    a('s_nop 0')
    o_store(0)
    a(f'ds_write_b32 v{V_Z}, v{V_PGV} offset:{4*F_ADONE}')
    a(f'v_rcp_f32 v{V_RC}, v{V_O+24}')
    a('s_nop 0')
    a('s_branch KG_OUT')
    for k, ins in outl:
        a.label(f'KG_SG{k}')
        a(ins + SC)
        a(f's_branch KG_SH{k}')

    def hsetup():
        a(f's_lshl_b32 s{S_F}, s{S_HG}, 5')
        a(f's_add_u32 s{S_F}, s{S_F}, s{S_QG}')
        srd(a, R_WS, S_WS, WS_SIZE)

    def pg_wait(val, sleep=2, vb=V_U+4, fl=F_PGW, pa=None):
        uid[0] += 1; k = uid[0]
        a.label(f'KG_PW{k}')
        if pa is not None:
            a(f'ds_read_b32 v{vb}, v{pa}')
            a('s_waitcnt lgkmcnt(0)')
            a(f'v_cmp_gt_u32 vcc, {val}, v{vb}')
            a(f's_cbranch_vccz KG_PD{k}')
            a(f's_sleep {sleep}')
            a(f's_sub_u32 s{S_LIM}, s{S_LIM}, 1')
            a(f's_cbranch_scc0 KG_PW{k}')
            a(f's_mov_b32 s{S_LIM}, 0')
            a.label(f'KG_PD{k}')
            return
        a(f'ds_read_b128 {vr(vb,4)}, v{V_Z} offset:{4*fl}')
        a('s_waitcnt lgkmcnt(0)')
        a(f'v_min3_u32 v{vb}, v{vb}, v{vb+1}, v{vb+2}')
        a(f'v_min_u32 v{vb}, v{vb}, v{vb+3}')
        a('s_nop 0')
        a(f'v_readfirstlane_b32 s{S_T0}, v{vb}')
        a(f's_cmp_ge_u32 s{S_T0}, {val}')
        a(f's_cbranch_scc1 KG_PD{k}')
        a(f's_sleep {sleep}')
        a(f's_sub_u32 s{S_LIM}, s{S_LIM}, 1')
        a(f's_cbranch_scc0 KG_PW{k}')
        a(f's_mov_b32 s{S_LIM}, 0')
        a.label(f'KG_PD{k}')
    def kv_dma(s_cls, s_lds):
        for q in range(4):
            a(f's_mov_b32 m0, s{s_lds}')
            a(f's_add_u32 s{s_lds}, s{s_lds}, 4096')
            for j in range(4):
                a(f'buffer_load_dwordx4 v{V_L16}, {ws}, s{s_cls} offen offset:{1024*j}{KVSC} lds')
            a(f's_add_u32 s{s_cls}, s{s_cls}, 4096')
    def thr():
        a(f's_waitcnt vmcnt({THR})')
    S_TGX = S_MH
    def flag_store(base, idx=None, stag=None):
        idx = f's{S_F}' if idx is None else idx
        stag = S_TAG if stag is None else stag
        a(f's_lshr_b32 s{S_T0}, {idx}, 2')
        a(f's_lshl_b32 s{S_T0}, s{S_T0}, 7')
        a(f's_and_b32 s{S_T1}, {idx}, 3')
        a(f's_lshl_b32 s{S_T1}, s{S_T1}, 2')
        a(f's_add_u32 s{S_T0}, s{S_T0}, s{S_T1}')
        a(f's_add_u32 s{S_T0}, s{S_T0}, {base}')
        a(f'v_mov_b32 {u(0)}, 0')
        a(f'v_mov_b32 {u(1)}, s{stag}')
        a('s_mov_b64 exec, 1')
        a(f'buffer_store_dword {u(1)}, {u(0)}, {ws}, s{S_T0} offen{SC}')
        a('s_mov_b64 exec, -1')
    def join_flag(cnt, n, base, one=None):
        uid[0] += 1; k = uid[0]
        if one is None: a(f'v_mov_b32 {u(0)}, 1')
        a('s_waitcnt vmcnt(0)')
        a('s_mov_b64 exec, 1')
        a(f'ds_add_rtn_u32 {u(1)}, v{V_Z}, {u(0) if one is None else "v%d" % one} offset:{4*cnt}')
        a('s_mov_b64 exec, -1')
        a('s_waitcnt lgkmcnt(0)')
        a(f'v_readfirstlane_b32 s{S_T0}, {u(1)}')
        a(f's_cmp_lg_u32 s{S_T0}, {n-1}')
        a(f's_cbranch_scc1 KG_JN{k}')
        flag_store(base)
        a.label(f'KG_JN{k}')
    S_NQ, S_NEW, S_LB, S_QU, S_PUB = S_P, S_KH, S_KB, S_SEEN, S_KOFF
    def glob_poll(tag, execmask, sleep, wide=True, lsh=7):
        a(f's_mov_b32 s{S_CNT}, {POLL_LIMIT}')
        a(f'v_lshlrev_b32 {u(0)}, {lsh}, v0')
        if execmask == 0xffffffff:
            a('s_mov_b32 exec_hi, 0')
        else:
            a(f's_mov_b64 exec, {execmask}')
        a.label(f'KG_GP{tag}')
        if wide:
            a(f'buffer_load_dwordx4 {vr(V_U+4,4)}, {u(0)}, {ws}, s{S_T1} offen{SC}')
            if tag == 'KV' and TF_LAG == 2:
                a(f'ds_write_b32 v{V_Z}, v{KA+12} offset:{4*F_QDONE}')
            a('s_waitcnt vmcnt(0)')
            for i in range(4):
                a(f'v_xor_b32 {u(4+i)}, s{S_TGX if tag == "KV" else S_TAG}, {u(4+i)}')
            a(f'v_or3_b32 {u(4)}, {u(4)}, {u(5)}, {u(6)}')
            a(f'v_or_b32 {u(4)}, {u(4)}, {u(7)}')
            if tag == 'KV':
                a(f'v_lshlrev_b32 {u(5)}, 4, {u(4)}')
                a(f'v_cmp_ne_u32 vcc, 0, {u(5)}')
            else:
                a(f'v_cmp_ne_u32 vcc, 0, {u(4)}')
        else:
            a(f'buffer_load_dword {u(4)}, {u(0)}, {ws}, s{S_T1} offen{SC}')
            a('s_waitcnt vmcnt(0)')
            a(f'v_cmp_ne_u32 vcc, s{S_TAG}, {u(4)}')
        a(f's_sub_u32 s{S_CNT}, s{S_CNT}, 1')
        a(f's_cbranch_scc1 KG_GD{tag}')
        if tag == 'KV':
            S_DN = S_VM
            a(f's_and_b64 s[{S_C0}:{S_C0+1}], exec, vcc')
            a(f's_or_b64 s[{S_C1}:{S_C1+1}], s[{S_C0}:{S_C0+1}], s[{S_DN}:{S_DN+1}]')
            a('s_mov_b64 exec, -1')
            for c in range(8):
                m = 0xff << (8 * (c & 3))
                a(f's_and_b32 s{S_T0}, s{S_C1+(c>>2)}, {hex(m)}')
                a(f's_cselect_b32 s{S_T0}, 0, {hex(m)}')
                a(f's_cselect_b32 s{S_T2}, 0, {1 << c}')
                a(f's_or_b32 s{S_DN+(c>>2)}, s{S_DN+(c>>2)}, s{S_T0}')
                a(f's_or_b32 s{S_NEW}, s{S_NEW}, s{S_T2}')
            a('s_cbranch_scc0 KG_QE')
            a(f's_cmp_lg_u32 s{S_NQ}, 0')
            a('s_cbranch_scc1 KG_QL')
            if GST: stamp(8, 1)
            if QP: pg_wait(2, 1, 16, 4)
            else: pg_wait(1, 1, 16)
            a.label('KG_QL')
            if QP:
                a(f's_cmp_lg_u32 s{S_NQ}, 1')
                a('s_cbranch_scc1 KG_QL2')
                pg_wait(1, 1, 16)
                a.label('KG_QL2')
            a(f's_ff1_i32_b32 s{S_T0}, s{S_NEW}')
            a(f's_bitset0_b32 s{S_NEW}, s{S_T0}')
            a(f's_cmp_ge_u32 s{S_NQ}, 4')
            a('s_cbranch_scc1 KG_QQ')
            a(f'v_mov_b32 {u(1)}, s{S_NQ}')
            a(f's_add_u32 s{S_NQ}, s{S_NQ}, 1')
            a(f's_lshl_b32 s{S_T0}, s{S_T0}, 14')
            a(f's_add_u32 s{S_T0}, s{S_T0}, {WS_KV}')
            kv_dma(S_T0, S_LB)
            if GST:
                a(f's_cmp_lg_u32 s{S_NQ}, 1')
                a('s_cbranch_scc1 KG_GS1')
                stamp(9, 1)
                a.label('KG_GS1')
            a('s_waitcnt vmcnt(16)')
            a(f'ds_write_b32 v{V_Z}, {u(1)} offset:{4*F_POS}')
            if GST:
                a(f's_cmp_lg_u32 s{S_NQ}, 2')
                a('s_cbranch_scc1 KG_GS2')
                stamp(10, 1)
                a.label('KG_GS2')
            a('s_branch KG_QN')
            a.label('KG_QQ')
            a(f's_lshl_b32 s{S_QU}, s{S_QU}, 3')
            a(f's_or_b32 s{S_QU}, s{S_QU}, s{S_T0}')
            a.label('KG_QN')
            a(f's_cmp_lg_u32 s{S_NEW}, 0')
            a('s_cbranch_scc1 KG_QL')
            a(f'v_mov_b32 {u(1)}, s{S_NQ}')
            a('s_waitcnt vmcnt(0)')
            a(f'ds_write_b32 v{V_Z}, {u(1)} offset:{4*F_POS}')
            if GST:
                a(f's_cmp_lg_u32 s{S_NQ}, 1')
                a('s_cbranch_scc1 KG_GS3')
                stamp(11, 1)
                a.label('KG_GS3')
            a.label('KG_QE')
            a(f's_and_b64 exec, s[{S_C0}:{S_C0+1}], s[{S_C0}:{S_C0+1}]')
        else:
            a('s_and_b64 exec, exec, vcc')
        a(f's_cbranch_scc0 KG_GD{tag}')
        a(f's_sleep {sleep}')
        a(f's_branch KG_GP{tag}')
        a.label(f'KG_GD{tag}')
        a('s_mov_b64 exec, -1')

    a.label('KG_KV')
    if not GST: stamp(9, 1)
    hsetup()
    a(f's_mov_b32 s{S_KQ}, s{S_QG}')
    a(f'v_bfe_u32 {u(1)}, v0, 2, 2')
    a(f'v_and_b32 {u(2)}, 3, v0')
    a(f'v_lshl_add_u32 {u(1)}, v{V_G}, 3, {u(1)}')
    a(f'v_lshlrev_b32 {u(1)}, 5, {u(1)}')
    a(f'v_lshl_add_u32 {u(1)}, {u(2)}, 3, {u(1)}')
    a(f'v_add_u32 v{V_A2}, {L_KW}, {u(1)}')
    a(f's_lshl_b32 s{S_T2}, s{S_QG}, 12')
    a(f's_lshr_b32 s{S_T0}, s{S_RB}, 1')
    a(f's_lshl_b32 s{S_T0}, s{S_T0}, 11')
    a(f's_add_u32 s{S_T2}, s{S_T2}, s{S_T0}')
    a(f's_and_b32 s{S_T0}, s{S_RB}, 1')
    a(f's_lshl_b32 s{S_T0}, s{S_T0}, 8')
    a(f's_add_u32 s{S_T2}, s{S_T2}, s{S_T0}')
    a(f's_lshl_b32 s{S_T0}, s{S_TY}, 10')
    a(f's_add_u32 s{S_T2}, s{S_T2}, s{S_T0}')
    a(f's_lshl_b32 s{S_T3}, s{S_T2}, 1')
    a(f's_add_u32 s{S_T2}, s{S_T2}, {WS_KV}')
    a(f's_add_u32 s{S_T3}, s{S_T3}, {WS_KVT}')
    a(f's_add_u32 s{S_CNT}, s{S_T3}, 0x40000')
    a(f's_lshl_b32 s{S_KOFF}, s{S_QG}, 3')
    a(f's_add_u32 s{S_KOFF}, s{S_KOFF}, s{S_HG}')
    lds_wait(F_TAGOK, 1, V_U)
    get_tag(V_U)
    a(f'v_and_b32 {u(2)}, 1, v{V_G}')
    a(f'v_lshrrev_b32 {u(3)}, 1, v{V_G}')
    if SM:
        a(f's_cmp_eq_u32 s{S_TY}, 1')
        a(f's_cselect_b32 s{S_T0}, 3, 9')
        a(f's_cselect_b32 s{S_T1}, 9, 3')
        a(f'v_lshlrev_b32 {u(4)}, s{S_T0}, {u(2)}')
        a(f'v_lshl_add_u32 {u(4)}, v{V_I}, 4, {u(4)}')
        a(f'v_lshl_add_u32 {u(4)}, {u(3)}, s{S_T1}, {u(4)}')
    else:
        a(f'v_lshlrev_b32 {u(4)}, 9, {u(2)}')
        a(f'v_lshl_add_u32 {u(4)}, v{V_I}, 4, {u(4)}')
        a(f'v_lshl_add_u32 {u(4)}, {u(3)}, 3, {u(4)}')
    a(f'v_lshlrev_b32 {u(6)}, 1, {u(4)}')
    a(f'v_mov_b32 v{KA+10}, s{S_TAG}')
    a(f'v_mov_b32 v{KA+11}, s{S_TAG}')
    a(f'v_mov_b32 v{KA+12}, 1')
    a(f's_getreg_b32 s{S_T0}, hwreg(HW_REG_XCC_ID, 0, 4)')
    a(f's_lshl_b32 s{S_T0}, s{S_T0}, 28')
    a(f's_xor_b32 s{S_TGX}, s{S_TAG}, s{S_T0}')
    a(f's_mov_b32 s{S_T1}, {f32_bits(QSCALE)}')
    a(f'v_lshrrev_b32 {u(2)}, 1, v{V_I}')
    a(f'v_xor_b32 {u(2)}, v{V_G}, {u(2)}')
    a(f'v_lshlrev_b32 {u(2)}, 4, {u(2)}')
    a(f'v_lshl_add_u32 {u(2)}, v{V_I}, 7, {u(2)}')
    a(f's_lshl_b32 s{S_T0}, s{S_RB}, 11')
    a(f'v_add_u32 {u(2)}, s{S_T0}, {u(2)}')
    a(f'v_xor_b32 {u(3)}, 64, {u(2)}')
    a(f's_waitcnt vmcnt({16 + (4 if TOUCH == 1 else 1)})')
    a(f'ds_write_b32 v{V_Z}, v{KA+12} offset:{4*F_KX}')
    for ks in range(16):
        a(f'ds_read_b128 {vr(KX+4*ks,4)}, {u(2+(ks&1))} offset:{(ks>>1)*8192}')
    a(f's_waitcnt vmcnt({4 if TOUCH == 1 else 1}) lgkmcnt(0)')
    stamp(2)
    def kv_reads(ks):
        a(f'ds_read_b64_tr_b16 {vr(KW+4*ks,2)}, v{V_A2} offset:{ks*1024}')
        a(f'ds_read_b64_tr_b16 {vr(KW+4*ks+2,2)}, v{V_A2} offset:{ks*1024+128}')
    for ks in range(7):
        kv_reads(ks)
    a(f's_cmp_eq_u32 s{S_TY}, 1')
    a('s_cbranch_scc1 KG_KV1')
    for ty in range(2):
        if ty == 1:
            a.label('KG_KV1')
        for ks in range(16):
            n_out = min(6, 15 - ks)
            a(f's_waitcnt lgkmcnt({2*n_out})')
            cc = vr(KA + 4*(ks & 1), 4) if ks >= 2 else '0'
            if ty == 0:
                a(f'v_mfma_f32_16x16x32_bf16 {vr(KA+4*(ks&1),4)}, {vr(KW+4*ks,4)}, {vr(KX+4*ks,4)}, {cc}')
            else:
                a(f'v_mfma_f32_16x16x32_bf16 {vr(KA+4*(ks&1),4)}, {vr(KX+4*ks,4)}, {vr(KW+4*ks,4)}, {cc}')
            if ks + 7 < 16:
                kv_reads(ks + 7)
        a('s_nop 7')
        for i in range(4):
            a(f'v_add_f32 v{KA+i}, v{KA+i}, v{KA+4+i}')
        if ty == 0:
            for i in range(4):
                a(f'v_mul_f32 v{KA+i}, s{S_T1}, v{KA+i}')
        a(f'v_cvt_pk_bf16_f32 v{KA+8}, v{KA}, v{KA+1}')
        a(f'v_cvt_pk_bf16_f32 v{KA+9}, v{KA+2}, v{KA+3}')
        if KVL: a(f'buffer_store_dwordx4 {vr(KA+8,4)}, {u(6)}, {ws}, s{S_T3} offen')
        a(f'buffer_store_dwordx2 {vr(KA+8,2)}, {u(4)}, {ws}, s{S_T2} offen{SC}')
        a(f'buffer_store_dwordx4 {vr(KA+8,4)}, {u(6)}, {ws}, s{S_CNT} offen{SC}')
        a(f'ds_write_b32 v{V_Z}, v{KA+12} offset:{4*F_KVS}')
        stamp(1)
        a('s_waitcnt vmcnt(0)')
        flag_store(WS_FL1, f's{S_KOFF}', S_TGX)
        stamp(3)
        if ty == 1:
            a('s_branch KG_KP')
        else:
            a(f'v_lshlrev_b32 {u(2)}, 4, v{V_G}')
            a(f'v_add_u32 {u(2)}, {L_GATE}, {u(2)}')
            for half in range(2):
                for k8 in range(8):
                    ks = 8*half + k8
                    a(f'ds_read_b128 {vr(KW+4*ks,4)}, {u(2)} offset:{64*ks}')
                for k8 in range(8):
                    ks = 8*half + k8
                    a(f's_waitcnt lgkmcnt({7-k8})')
                    cc = vr(KA, 4) if ks else '0'
                    a(f'v_mfma_f32_16x16x32_bf16 {vr(KA,4)}, {vr(KW+4*ks,4)}, {vr(KX+4*ks,4)}, {cc}')
            a(f's_lshl_b32 s{S_T0}, s{S_KQ}, 8')
            a(f's_lshl_b32 s{S_T1}, s{S_RB}, 6')
            a(f's_add_u32 s{S_T0}, s{S_T0}, s{S_T1}')
            a(f's_add_u32 s{S_T1}, s{S_T0}, {WS_G}')
            a(f'v_lshlrev_b32 {u(2)}, 2, v{V_I}')
            a('s_nop 6')
            a(f'v_cvt_pk_bf16_f32 {u(3)}, v{KA}, v{KA}')
            a(f'v_lshlrev_b32 {u(3)}, 16, {u(3)}')
            a(f's_mov_b32 s{S_T0}, {f32_bits(-math.log2(math.e))}')
            a(f'v_mul_f32 {u(3)}, s{S_T0}, {u(3)}')
            a(f'v_exp_f32 {u(3)}, {u(3)}')
            a('s_nop 0')
            a(f'v_add_f32 {u(3)}, 1.0, {u(3)}')
            a(f'v_rcp_f32 {u(3)}, {u(3)}')
            a('s_nop 0')
            a(f'v_cvt_pk_bf16_f32 {u(3)}, {u(3)}, {u(3)}')
            a(f'v_lshlrev_b32 {u(3)}, 16, {u(3)}')
            a('s_mov_b64 exec, 0xffff')
            a(f'buffer_store_dword {u(3)}, {u(2)}, {ws}, s{S_T1} offen{SC}')
            a('s_mov_b64 exec, -1')
            a('s_branch KG_KP')

    a.label('KG_TAG')
    stamp(9, 1)
    hsetup()
    a('s_waitcnt vmcnt(0)')
    a(f'v_readfirstlane_b32 s{S_TAG}, {u(3)}')
    a(f's_mul_i32 s{S_TAG}, s{S_TAG}, {TAG_M}')
    a(f's_add_u32 s{S_TAG}, s{S_TAG}, {TAG_C}')
    a(f'v_mov_b32 {u(1)}, 1')
    a(f'v_mov_b32 {u(3)}, s{S_TAG}')
    a(f'ds_write_b32 v{V_Z}, {u(3)} offset:{4*F_TAG}')
    a(f'ds_write_b32 v{V_Z}, {u(1)} offset:{4*F_TAGOK}')
    stamp(2)
    GR = 16
    V_GW, V_QW = V_A1, V_A2
    S_PEND, S_GB, S_DN = S_P, S_KH, S_VM
    a(f's_and_b32 s{S_T0}, s2, 7')
    a(f's_lshl_b32 s{S_GB}, s{S_T0}, 15')
    a(f's_add_u32 s{S_GB}, s{S_GB}, {WS_KVT + (0 if KVL else 0x40000)}')
    a(f's_movk_i32 s{S_PEND}, 0x1ff')
    a(f'v_lshlrev_b32 v{V_GW}, 3, v0')
    a(f'v_add_u32 v{V_GW}, {L_PRE}, v{V_GW}')
    lds_wait(F_KVS, 1, V_U + 4, sleep=1)
    if G_DELAY:
        a(f's_sleep {G_DELAY}')
    def g_loads(c, sc=SC):
        a(f's_add_u32 s{S_T0}, s{S_GB}, {c*4096}')
        for j in range(4):
            a(f'buffer_load_dwordx4 {vr(GR+16*c+4*j,4)}, v{V_L16}, {ws}, s{S_T0} offen offset:{1024*j}{sc}')
    def g_check(c, k):
        for j in range(4):
            a(f'v_cmpx_eq_u32 vcc, s{S_TAG}, v{GR+16*c+4*j+2}')
        a('s_cmp_eq_u64 exec, -1')
        a('s_mov_b64 exec, -1')
        a(f's_cbranch_scc0 KG_GF{k}_{c}')
        for j in range(4):
            a(f'ds_write_b64 v{V_GW}, {vr(GR+16*c+4*j,2)} offset:{512*j}')
        a(f'v_add_u32 {u(6)}, 1, {u(6)}')
        a(f's_bitset0_b32 s{S_PEND}, {c}')
        a(f'v_add_u32 v{V_GW}, 0x800, v{V_GW}')
        a(f'ds_write_b32 v{V_Z}, {u(6)} offset:{4*F_PRE}')
        if GST:
            a(f's_bcnt1_i32_b32 s{S_T1}, s{S_PEND}')
            for n_, st_ in ((8, 7), (5, 8), (1, 10)):
                a(f's_cmp_lg_u32 s{S_T1}, {n_}')
                a(f's_cbranch_scc1 KG_GS{k}_{c}_{n_}')
                stamp(st_, 1)
                a.label(f'KG_GS{k}_{c}_{n_}')
        a.label(f'KG_GF{k}_{c}')
    def g_round(c0, c1, gi):
        for c in range(c0, c1):
            g_loads(c)
        if gi:
            a(f'ds_write_b32 v{V_Z}, {u(1)} offset:{4*F_GI}')
            stamp(1)
        for c in range(c0, c1):
            a(f's_waitcnt vmcnt({4*(c1-1-c)})')
            g_check(c, 0)
    S_AL = S_KB
    a(f'v_mov_b32 {u(6)}, 0')
    g_round(0, G_EARLY, G_EARLY == 8)
    stamp(5)
    if GST: stamp(11, 1)
    a(f's_movk_i32 s{S_AL}, {(1 << G_EARLY) - 1}')
    a(f's_mov_b32 s{S_CNT}, {POLL_LIMIT}')
    a.label('KG_GR')
    a(f's_sub_u32 s{S_CNT}, s{S_CNT}, 1')
    a('s_cbranch_scc1 KG_GE')
    a(f's_cmp_eq_u32 s{S_PEND}, 0x100')
    a('s_cbranch_scc1 KG_GE')
    if G_EARLY < 8:
        a(f's_cmp_eq_u32 s{S_AL}, 0xff')
        a('s_cbranch_scc1 KG_GA')
        a(f'ds_read_b64 {vr(V_U+4,2)}, v{V_Z} offset:{4*F_CX}')
        a('s_waitcnt lgkmcnt(0)')
        a(f'v_min_u32 {u(4)}, {u(4)}, {u(5)}')
        a('s_nop 0')
        a(f'v_readfirstlane_b32 s{S_T0}, {u(4)}')
        a(f's_cmp_lt_u32 s{S_T0}, {G_TRIG}')
        a('s_cbranch_scc1 KG_GA')
        a(f's_movk_i32 s{S_AL}, 0xff')
        g_round(G_EARLY, 8, True)
        a('s_branch KG_GR')
        a.label('KG_GA')
    a(f's_and_b32 s{S_T2}, s{S_PEND}, s{S_AL}')
    a('s_cbranch_scc1 KG_GB')
    a('s_sleep 1')
    a('s_branch KG_GR')
    a.label('KG_GB')
    if KVL:
        assert (WS_KVT & 0x40000) == 0
        a(f's_bitset0_b32 s{S_GB}, 18')
        a(f's_and_b32 s{S_T0}, s{S_CNT}, 3')
        a('s_cbranch_scc1 KG_GC')
        a(f's_bitset1_b32 s{S_GB}, 18')
        a.label('KG_GC')
    for c in range(8):
        a(f's_bitcmp1_b32 s{S_T2}, {c}')
        a(f's_cbranch_scc0 KG_GL{c}')
        g_loads(c)
        a.label(f'KG_GL{c}')
    a('s_waitcnt vmcnt(0)')
    for c in range(8):
        a(f's_bitcmp1_b32 s{S_T2}, {c}')
        a(f's_cbranch_scc0 KG_GF1_{c}')
        g_check(c, 1)
    a('s_branch KG_GR')
    a.label('KG_GE')
    stamp(6)
    a('s_branch KG_WT')
    a.label('KG_KP')
    a(f's_and_b32 s{S_T0}, s2, 7')
    a(f's_lshl_b32 s{S_T0}, s{S_T0}, 3')
    a(f's_mov_b64 s[{S_DN}:{S_DN+1}], 0xff')
    a(f's_lshl_b64 s[{S_DN}:{S_DN+1}], s[{S_DN}:{S_DN+1}], s{S_T0}')
    a(f's_mov_b32 s{S_NQ}, 0')
    a(f's_mov_b32 s{S_QU}, 0')
    a(f's_mov_b32 s{S_NEW}, 0')
    a(f's_mov_b32 s{S_LB}, {L_WQ}')
    if not EPOLL: pg_wait(1)
    elif EPOLL > 1:
        lds_wait(F_CW, EPOLL, V_U, sleep=2)
        lds_wait(F_CX, EPOLL, V_U, sleep=2)
    a(f's_mov_b32 s{S_T1}, {WS_FL1}')
    if GST: stamp(7, 1)
    if KP_DELAY:
        a(f's_sleep {KP_DELAY}')
    glob_poll('KV', -1, KV_SLEEP)
    a(f'v_mov_b32 {u(1)}, 127')
    a(f'ds_write_b32 v{V_Z}, {u(1)} offset:{4*F_N}')
    xs_('kvdone')
    stamp(5)
    a(f's_lshl_b32 s{S_T0}, s{S_QG}, 1')
    a(f's_add_u32 s{S_T1}, s{S_T0}, 1')
    a(f'v_readlane_b32 s{S_T0}, {u(4)}, s{S_T0}')
    a(f'v_readlane_b32 s{S_T1}, {u(4)}, s{S_T1}')
    a('s_nop 1')
    a(f's_or_b32 s{S_T0}, s{S_T0}, s{S_T1}')
    a(f's_cmp_eq_u32 s{S_T0}, 0')
    a(f's_cselect_b32 s{S_T0}, {2 if FORCE_GL else 1}, 2')
    a(f'v_mov_b32 {u(4)}, s{S_T0}')
    a(f'ds_write_b32 v{V_Z}, {u(4)} offset:{4*F_LOC}')
    for i in range(4):
        a(f'v_mov_b32 {u(4+i)}, -1')
    a(f's_lshl_b32 s{S_T1}, s{S_QG}, 16')
    a(f's_lshl_b32 s{S_T2}, s{S_HG}, 12')
    a(f's_add_u32 s{S_T1}, s{S_T1}, s{S_T2}')
    a(f's_add_u32 s{S_T1}, s{S_T1}, {WS_O}')
    a(f's_add_u32 s{S_T2}, s{S_T1}, 32768')
    a(f's_cmp_eq_u32 s{S_T0}, 1')
    a('s_cbranch_scc1 KG_SE1')
    for n_, sc_ in enumerate((SC, LOCSE)):
        for k in range(8):
            a(f'buffer_store_dwordx4 {vr(V_U+4,4)}, v{V_L16}, {ws}, s{S_T1+(k>>2)} offen offset:{1024*(k&3)}{sc_}')
        if n_ == 0:
            a('s_branch KG_SE2')
            a.label('KG_SE1')
    a.label('KG_SE2')
    a('s_cmp_lg_u32 s2, 0')
    a('s_cbranch_scc1 KG_H3')
    a(f's_mov_b32 s{S_T3}, {WS_ROOT}')
    a(f'v_mov_b32 {u(2)}, 0')
    a(f'v_mov_b32 {u(3)}, s{S_TAG}')
    a('s_mov_b64 exec, 1')
    a(f'buffer_store_dword {u(3)}, {u(2)}, {ws}, s{S_T3} offen{SC}')
    a('s_mov_b64 exec, -1')
    a('s_branch KG_H3')

    a.label('KG_WT')
    xs_('wt0')
    if WT_LAG == 127:
        lds_wait(F_N, 127, V_U, sleep=2)
    elif WT_LAG == 100:
        lds_wait(F_POS, 1, V_U, sleep=2)
    elif WT_LAG:
        lds_wait(F_PRE, WT_LAG, V_U, sleep=2)
    S_FW, S_G4, S_PT = S_P, S_KH, S_KB
    xs_('wt1')
    a(f's_lshr_b32 s{S_FW}, s{S_QG}, 3')
    a(f's_bfe_u32 s{S_G4}, s{S_QG}, 0x20001')
    a(f's_and_b32 s{S_PT}, s{S_QG}, 1')
    a(f's_cmp_eq_u32 s{S_PT}, 1')
    a(f's_cselect_b64 s[{S_C0}:{S_C0+1}], s[{S_WI}:{S_WI+1}], s[{S_WR}:{S_WR+1}]')
    srd(a, R_A, S_C0, 2048 * 514)
    a(f's_lshl_b32 s{S_T3}, s{S_FW}, 4')
    a(f's_lshl_b32 s{S_T1}, s{S_G4}, 8')
    a(f's_add_u32 s{S_T1}, s{S_T1}, s{S_T3}')
    a(f'v_add_u32 {u(2)}, s{S_T1}, v{V_I}')
    a(f'v_mul_u32_u24 {u(2)}, 514, {u(2)}')
    a(f'v_lshl_add_u32 {u(2)}, v{V_G}, 4, {u(2)}')
    a(f's_lshl_b32 s{S_T1}, s{S_HG}, 6')
    a(f'v_add_u32 {u(2)}, s{S_T1}, {u(2)}')
    a(f'v_and_b32 {u(4)}, 2, {u(2)}')
    a(f'v_and_b32 {u(2)}, -4, {u(2)}')
    for e in range(8):
        a(f's_mov_b32 s{S_T0}, {(16*(e>>2)+(e&3))*32896}')
        a(f'buffer_load_dwordx4 {vr(16+4*e,4)}, {u(2)}, {ra}, s{S_T0} offen')
        a(f'buffer_load_dword v{96+e}, {u(2)}, {ra}, s{S_T0} offen offset:16')
    a(f's_or_b32 s{S_KOFF}, s{S_HG}, s{S_G4}')
    a(f's_cmp_lg_u32 s{S_KOFF}, 0')
    a('s_cbranch_scc1 KG_WT1')
    a(f'v_lshl_add_u32 {u(3)}, v{V_G}, 8, v{V_I}')
    a(f'v_add_u32 {u(3)}, s{S_T3}, {u(3)}')
    a(f'v_mul_u32_u24 {u(3)}, 514, {u(3)}')
    for e in range(8):
        a(f's_mov_b32 s{S_T0}, {(16*(e>>2)+(e&3))*32896}')
        a(f'buffer_load_ushort v{80+e}, {u(3)}, {ra}, s{S_T0} offen offset:512')
    a.label('KG_WT1')
    a(f's_mov_b32 s{S_C0}, 0x05040100')
    a(f's_mov_b32 s{S_C0+1}, 0x07060302')
    a(f'v_lshlrev_b32 {u(2)}, 16, v{V_G}')
    a(f'v_lshl_add_u32 {u(2)}, v{V_I}, 4, {u(2)}')
    a(f's_lshl_b32 s{S_T1}, s{S_HG}, 18')
    a(f's_lshl_b32 s{S_T2}, s{S_FW}, 11')
    a(f's_lshl_b32 s{S_T0}, s{S_PT}, 10')
    a(f's_add_u32 s{S_T2}, s{S_T2}, s{S_T0}')
    a(f's_add_u32 s{S_T2}, s{S_T2}, {WS_WT}')
    a(f's_add_u32 s{S_T1}, s{S_T1}, s{S_T2}')
    a(f's_lshl_b32 s{S_T0}, s{S_G4}, 8')
    a(f's_add_u32 s{S_T1}, s{S_T1}, s{S_T0}')
    a('s_waitcnt vmcnt(0)')
    stamp(3)
    for e in range(8):
        for j in range(4):
            hi = 16 + 4*e + j + 1 if j < 3 else 96 + e
            a(f'v_alignbyte_b32 v{16+4*e+j}, v{hi}, v{16+4*e+j}, {u(4)}')
    for ph in range(8):
        for q in range(4):
            lo = 16 + 4*(2*q) + (ph >> 1); hi = 16 + 4*(2*q+1) + (ph >> 1)
            a(f'v_perm_b32 v{48+4*ph+q}, v{hi}, v{lo}, s{S_C0+(ph&1)}')
    for ph in range(8):
        a(f's_add_u32 s{S_T0}, s{S_T1}, {8192*ph}')
        if not E('WT_NOST', 0): a(f'buffer_store_dwordx4 {vr(48+4*ph,4)}, {u(2)}, {ws}, s{S_T0} offen{SC}')
    a(f's_cmp_lg_u32 s{S_KOFF}, 0')
    a('s_cbranch_scc1 KG_J1')
    for q in range(4):
        a(f'v_lshl_or_b32 v{88+q}, v{81+2*q}, 16, v{80+2*q}')
    a(f's_add_u32 s{S_T0}, s{S_T2}, {256*8192}')
    a(f'buffer_store_dwordx4 {vr(88,4)}, v{V_L16}, {ws}, s{S_T0} offen{SC}')
    a('s_branch KG_J1')

    HT, HX, HA = 16, 64, 128
    a.label('KG_H2B')
    stamp(2)
    hsetup()
    table_srd(a, R_TB, 'TAB_F', 512 * 1024, 'f')
    a(f's_and_b32 s{S_CT}, s{S_HW}, 1')
    a(f's_lshl_b32 s{S_T2}, s{S_HG}, 16')
    a(f's_lshl_b32 s{S_T0}, s{S_CT}, 10')
    a(f's_add_u32 s{S_T2}, s{S_T2}, s{S_T0}')
    if TF_LAG == 1:
        lds_wait(F_GI, 1, V_U, sleep=2)
    elif TF_LAG == 2:
        lds_wait(F_QDONE, 1, V_U, sleep=1)
    elif TF_LAG == 100:
        lds_wait(F_POS, 1, V_U, sleep=2)
    elif TF_LAG:
        lds_wait(F_PRE, TF_LAG, V_U, sleep=2)
    xs_('h2go')
    if ROT == 3:
        a(f's_lshr_b32 s{S_KOFF}, s2, 6')
        a(f's_lshl_b32 s{S_KOFF}, s{S_KOFF}, 14')
    def tload(i):
        if ROT == 3:
            if i % 8 == 0:
                if i:
                    a(f's_add_u32 s{S_KOFF}, s{S_KOFF}, 0x4000')
                    a(f's_bitset0_b32 s{S_KOFF}, 16')
                a(f's_add_u32 s{S_KB}, s{S_T2}, s{S_KOFF}')
            if i % 2 == 0:
                a(f's_add_u32 s{S_T3}, s{S_KB}, {(i%8)*2048}')
        elif i % 2 == 0:
            a(f's_add_u32 s{S_T3}, s{S_T2}, {i*2048}')
        a(f'buffer_load_dwordx4 {vr(HT+4*(i%12),4)}, v{V_L16}, {tb}, s{S_T3} offen offset:{(i%2)*2048}')
    PD = H2_PD
    assert PD <= 12
    for i in range(PD):
        tload(i)
    a(f'v_and_b32 {u(4)}, 31, v0')
    a(f'v_lshrrev_b32 {u(5)}, 5, v0')
    a(f'v_bfe_u32 {u(6)}, v0, 1, 3')
    a(f'v_lshlrev_b32 {u(7)}, 7, {u(4)}')
    for ks in range(4):
        a(f'v_add_u32 v{HA+ks}, {2*ks}, {u(5)}')
        a(f'v_xor_b32 v{HA+ks}, v{HA+ks}, {u(6)}')
        a(f'v_lshl_add_u32 {u(ks)}, v{HA+ks}, 4, {u(7)}')
    a(f'v_lshlrev_b32 v{V_A1}, 12, {u(4)}')
    a(f'v_lshl_add_u32 v{V_A1}, {u(5)}, 5, v{V_A1}')
    stamp(5)
    if BST:
        a(f's_memtime s[{SB+2*3}:{SB+1+2*3}]'); a(f's_memrealtime s[{SB+2*1}:{SB+1+2*1}]')
    lds_wait(F_CX, 8, V_U + 4, sleep=2)
    def xreads(c):
        for ks in range(4):
            for aa in range(2):
                a(f'ds_read_b128 {vr(HX+32*(c&1)+16*aa+4*ks,4)}, {u(ks)} offset:{c*8192+4096*aa}')
    if PRI & 1: a('s_setprio 0')
    xreads(0)
    for c in range(8):
        if c < 7:
            xreads(c + 1)
        for ks in range(4):
            i = 4*c + ks
            a(f's_waitcnt vmcnt({min(PD-1, 31-i)}) lgkmcnt({2*(3-ks) + (8 if c < 7 else 0)})')
            for aa in range(2):
                cc = vr(HA + 16*aa, 16) if i else '0'
                a(f'v_mfma_f32_32x32x16_bf16 {vr(HA+16*aa,16)}, {vr(HX+32*(c&1)+16*aa+4*ks,4)}, {vr(HT+4*(i%12),4)}, {cc}')
            if i + PD < 32: tload(i + PD)
    if PRI & 1: a('s_setprio 2')
    lds_add(F_H2, V_U)
    xs_('h2mf')
    a(f's_lshl_b32 s{S_T0}, s{S_HG}, 18')
    a(f's_lshl_b32 s{S_T1}, s{S_CT}, 17')
    a(f's_add_u32 s{S_T0}, s{S_T0}, s{S_T1}')
    a(f's_lshl_b32 s{S_T1}, s{S_QG}, 7')
    a(f's_add_u32 s{S_T0}, s{S_T0}, s{S_T1}')
    a(f's_add_u32 s{S_T2}, s{S_T0}, {WS_X1T}')
    if BST:
        a(f's_memtime s[{SB+2*4}:{SB+1+2*4}]'); a(f's_memrealtime s[{SB+2*2}:{SB+1+2*2}]')
    lds_wait(F_TAGOK, 1, V_U)
    get_tag(V_U)
    a('s_nop 4')
    for i in range(16):
        a(f'v_cvt_pk_bf16_f32 v{HX+i}, v{HA+2*i}, v{HA+2*i+1}')
    for aa in range(2):
        for q in range(2):
            a(f'buffer_store_dwordx4 {vr(HX+8*aa+4*q,4)}, v{V_A1}, {ws}, s{S_T2} offen offset:{64*aa+16*q}{SC}')
    a.label('KG_J1')
    xs_('j1in')
    join_flag(F_J1, 3, WS_FL2)
    stamp(6)
    a.label('KG_H3')
    if E('NOHELP', 0) == 1:
        lds_add(F_J2, V_U)
        dump()
        a('s_endpgm')

    V_T1 = 16
    V_T2 = 64
    V_D = 88
    V_TW = 104
    V_XX = 120
    V_W = 136
    V_AC = 152
    S_FW = S_HW
    table_srd(a, R_TB, 'TAB_K2', O_AD + (24576 if HTB else 0), 'k2')
    O_T1, O_T2, O_TW1, O_TW2 = 0, 24576, 30720, 30720 + 16384
    AD = 216
    ONE, PGA = (V_A1, V_A2) if HTB else (None, None)
    S_AD = S_C1
    if HTB:
        a(f's_mul_i32 s{S_AD}, s{S_FW}, 6144')
        a(f's_add_u32 s{S_AD}, s{S_AD}, {O_AD}')
        a(f'buffer_load_dwordx3 {vr(V_A1,3)}, v{V_L16}, {tb}, s{S_AD} offen offset:2048')
        a(f'buffer_load_dwordx4 {vr(AD,4)}, v{V_L16}, {tb}, s{S_AD} offen')
        a(f'buffer_load_dword v{AD+4}, v{V_L16}, {tb}, s{S_AD} offen offset:1024')
    a(f's_lshr_b32 s{S_MH}, s{S_FW}, 1')
    a(f's_and_b32 s{S_NH}, s{S_FW}, 1')
    a(f's_mul_i32 s{S_T0}, s{S_MH}, 12288')
    for i in range(12):
        if i % 4 == 0 and i:
            a(f's_add_u32 s{S_T0}, s{S_T0}, 4096')
        a(f'buffer_load_dwordx4 {vr(V_T1+4*i,4)}, v{V_L16}, {tb}, s{S_T0} offen offset:{(i%4)*1024}')
        thr()
    a(f's_lshl_b32 s{S_T2}, s{S_FW}, 12')
    a(f's_add_u32 s{S_T0}, s{S_T2}, {O_TW1}')
    for i in range(4):
        a(f'buffer_load_dwordx4 {vr(V_TW+4*i,4)}, v{V_L16}, {tb}, s{S_T0} offen offset:{i*1024}')
        thr()
    a(f's_mov_b32 s{S_T0}, {O_T2}')
    a(f's_mov_b32 s{S_T1}, {O_T2+4096}')
    for i in range(6):
        a(f'buffer_load_dwordx4 {vr(V_T2+4*i,4)}, v{V_L16}, {tb}, s{S_T0+(i>>2)} offen offset:{(i%4)*1024}')
        thr()
    if not HTB:
        a(f's_lshl_b32 s{S_T0}, s{S_FW}, 4')
        a(f'v_lshl_add_u32 v{V_A3}, v{V_G}, 8, v{V_I}')
        a(f'v_add_u32 v{V_A3}, s{S_T0}, v{V_A3}')
    else:
        assert THR <= 19
    a(f's_cmp_eq_u32 s{S_F}, 0')
    a('s_cbranch_scc1 KG_SPA')
    a.label('KG_SPAR')
    xs_('tabs')
    if T2:
        a(f's_cmp_lt_u32 s{S_HW}, 2')
        a('s_cbranch_scc1 KG_T2E')
        table_srd(a, R_A, 'TAB_FINV', 512 * 1024, 't2')
        a(f's_cmp_eq_u32 s{S_HW}, 3')
        a(f's_cselect_b64 s[{R_A}:{R_A+1}], s[{S_WO}:{S_WO+1}], s[{R_A}:{R_A+1}]')
        a(f's_lshr_b32 s{S_T0}, s2, 3')
        a(f's_lshl_b32 s{S_T0}, s{S_T0}, 14')
        a(f's_add_u32 s{S_T1}, s{S_T0}, 8192')
        a(f'v_lshlrev_b32 {u(0)}, 7, v0')
        a(f'buffer_load_dword v254, {u(0)}, {ra}, s{S_T0} offen')
        a(f'buffer_load_dword v255, {u(0)}, {ra}, s{S_T1} offen')
        a.label('KG_T2E')
    a(f's_cmp_lg_u32 s{S_HW}, 0')
    a('s_cbranch_scc1 KG_PCE')
    lds_wait(F_H2, 2, V_U, sleep=4)
    xs_('w0h2')
    a(f's_mov_b32 s{S_LB}, {L_X}')
    for k in range(3):
        a(f's_bfe_u32 s{S_T0}, s{S_QU}, {hex(0x30000 + 3*(2-k))}')
        a(f's_lshl_b32 s{S_T0}, s{S_T0}, 14')
        a(f's_add_u32 s{S_T0}, s{S_T0}, {WS_KV}')
        kv_dma(S_T0, S_LB)
    a(f'v_mov_b32 {u(1)}, 8')
    a('s_waitcnt vmcnt(0)')
    a(f'ds_write_b32 v{V_Z}, {u(1)} offset:{4*F_POS}')
    stamp(6)
    a.label('KG_PCE')
    if E('NOHELP', 0) == 2:
        dump()
        a('s_endpgm')
    a(f's_cmp_lg_u32 s{S_HW}, 1')
    a('s_cbranch_scc1 KG_S1W')
    a(f's_lshl_b32 s{S_T1}, s{S_HG}, 10')
    a(f's_add_u32 s{S_T1}, s{S_T1}, {WS_FL2}')
    glob_poll('S1', 0xff, S1_SLEEP)
    if HTB: a(f'ds_write_b32 v{V_Z}, v{ONE} offset:{4*F_S1OK}')
    else:
        a(f'v_mov_b32 {u(1)}, 1')
        a(f'ds_write_b32 v{V_Z}, {u(1)} offset:{4*F_S1OK}')
    a.label('KG_S1W')
    xs_('s1w')
    pg_wait(3, pa=PGA)
    lds_wait(F_S1OK, 1, V_U, sleep=4)
    stamp(7)
    if BST: a(f's_memtime s[{SB+2*9}:{SB+1+2*9}]')
    if not HTB:
        a(f'v_lshlrev_b32 v{V_A1}, 7, v{V_I}')
        a(f'v_lshl_add_u32 v{V_A1}, v{V_G}, 4, v{V_A1}')
    a(f's_lshl_b32 s{S_T0}, s{S_F}, 13')
    a(f's_lshl_b32 s{S_T1}, s{S_NH}, 11')
    a(f's_add_u32 s{S_T0}, s{S_T0}, s{S_T1}')
    a(f's_add_u32 s{S_T0}, s{S_T0}, {WS_X1T}')
    a(f's_add_u32 s{S_T1}, s{S_T0}, 4096')
    for part in range(2):
        for ks in range(2):
            a(f'buffer_load_dwordx4 {vr(V_D+8*part+4*ks,4)}, v{AD if HTB else V_A1}, {ws}, s{S_T0+part} offen offset:{64*ks}{SC}')
    a(f's_lshl_b32 s{S_T0}, s{S_F}, 13')
    a(f's_lshl_b32 s{S_T1}, s{S_FW}, 11')
    a(f's_add_u32 s{S_T1}, s{S_T1}, {WS_WT}')
    a(f's_add_u32 s{S_T0}, s{S_T0}, s{S_T1}')
    a(f's_cmp_lg_u32 s{S_F}, 0')
    a('s_cbranch_scc1 KG_NXX')
    a(f's_add_u32 s{S_T1}, s{S_T1}, {256*8192}')
    for part in range(2):
        a(f'buffer_load_dwordx4 {vr(V_XX+8*part+4,4)}, v{V_L16}, {ws}, s{S_T1} offen offset:{1024*part}{SC}')
    a.label('KG_NXX')
    for part in range(2):
        a(f'buffer_load_dwordx4 {vr(V_W+8*part+4,4)}, v{V_L16}, {ws}, s{S_T0} offen offset:{1024*part}{SC}')

    def mf(d, x, y, c):
        cc = vr(d, 4) if c else '0'
        a(f'v_mfma_f32_16x16x32_bf16 {vr(d,4)}, {vr(x,4)}, {vr(y,4)}, {cc}')
    def t1(nt, ks, v): return V_T1 + 4 * ((nt * 2 + ks) * 3 + v)
    def t2(mt, v): return V_T2 + 4 * (mt * 3 + v)
    def cmul2(ar, ai, c_, s_):
        a(f'v_pk_mul_f32 {vr(V_U,2)}, {vr(ar,2)}, {vr(c_,2)}')
        a(f'v_pk_mul_f32 {vr(V_U+2,2)}, {vr(ar,2)}, {vr(s_,2)}')
        a(f'v_pk_fma_f32 {vr(ar,2)}, {vr(ai,2)}, {vr(s_,2)}, {vr(V_U,2)} neg_lo:[1,0,0] neg_hi:[1,0,0]')
        a(f'v_pk_fma_f32 {vr(ai,2)}, {vr(ai,2)}, {vr(c_,2)}, {vr(V_U+2,2)}')
    def cmul_pack(dst):
        for t_ in range(2):
            for r in range(4):
                if PKM:
                    if r & 1 == 0: cmul2(V_AC + 8*t_ + r, V_AC + 8*t_ + 4 + r, V_TW + 8*t_ + r, V_TW + 8*t_ + 4 + r)
                    continue
                ar, ai = V_AC + 8*t_ + r, V_AC + 8*t_ + 4 + r
                c_, s_ = V_TW + 8*t_ + r, V_TW + 8*t_ + 4 + r
                uu = V_U + (r & 1) * 2
                a(f'v_mul_f32 v{uu}, v{ar}, v{c_}')
                a(f'v_mul_f32 v{uu+1}, v{ar}, v{s_}')
                a(f'v_fma_f32 v{ar}, -v{ai}, v{s_}, v{uu}')
                a(f'v_fma_f32 v{ai}, v{ai}, v{c_}, v{uu+1}')
        for i in range(8):
            a(f'v_cvt_pk_bf16_f32 v{dst+i}, v{V_AC+2*i}, v{V_AC+2*i+1}')
    def sync(flag):
        a('s_waitcnt lgkmcnt(0)')
        lds_add(flag, V_U, ONE)
        lds_wait(flag, 4, V_U, sleep=2)

    def lo():
        if PRI & 4: a('s_setprio 0')
    def hi():
        if PRI & 4: a('s_setprio 2')
    lo()
    a('s_waitcnt vmcnt(2)')
    xs_('x1ld')
    zr = lambda ks: V_D + 4*ks
    zi = lambda ks: V_D + 8 + 4*ks
    for ks in range(2):
        for nt in range(2):
            mf(V_AC + 8*nt, zr(ks), t1(nt, ks, 0), ks)
            mf(V_AC + 8*nt + 4, zi(ks), t1(nt, ks, 0), ks)
        for nt in range(2):
            mf(V_AC + 8*nt, zi(ks), t1(nt, ks, 2), 1)
            mf(V_AC + 8*nt + 4, zr(ks), t1(nt, ks, 1), 1)
    hi()
    a(f's_cmp_eq_u32 s{S_F}, 0')
    a('s_cbranch_scc1 KG_SPB')
    a.label('KG_SPBR')
    ad = lambda k: f'v{AD+k}' if HTB else u(4)
    if HTB: a('s_nop 7')
    else:
        a(f's_mul_i32 s{S_T0}, s{S_MH}, 2560')
        a(f's_lshl_b32 s{S_T1}, s{S_NH}, 3')
        a(f's_add_u32 s{S_T0}, s{S_T0}, s{S_T1}')
        a(f'v_mul_u32_u24 v{V_A1}, 80, v{V_I}')
        a(f'v_lshl_add_u32 v{V_A1}, v{V_G}, 4, v{V_A1}')
        a(f'v_add_u32 v{V_A1}, {L_APR}, v{V_A1}')
        a(f'v_add_u32 {u(4)}, s{S_T0}, v{V_A1}')
    a('s_nop 4')
    cmul_pack(V_D)
    for nt in range(2):
        a(f'ds_write_b64 {ad(1)}, {vr(V_D+4*nt,2)} offset:{1280*nt}')
        a(f'ds_write_b64 {ad(1)}, {vr(V_D+4*nt+2,2)} offset:{L_API-L_APR+1280*nt}')
    a(f's_add_u32 s{S_T0}, s{S_T2}, {O_TW2}')
    for i in range(4):
        a(f'buffer_load_dwordx4 {vr(V_TW+4*i,4)}, v{V_L16}, {tb}, s{S_T0} offen offset:{i*1024}')
    sync(F_SY0)
    xs_('sy0')
    if not HTB:
        a(f's_mul_i32 s{S_T0}, s{S_FW}, 1280')
        a(f'v_add_u32 {u(4)}, s{S_T0}, v{V_A1}')
    a(f'ds_read_b128 {vr(V_D,4)}, {ad(2)}')
    a(f'ds_read_b128 {vr(V_D+4,4)}, {ad(2)} offset:{L_API-L_APR}')
    lo()
    a('s_waitcnt vmcnt(4) lgkmcnt(0)')
    for mt in range(2):
        mf(V_AC + 8*mt, t2(mt, 0), V_D, 0)
        mf(V_AC + 8*mt + 4, t2(mt, 0), V_D + 4, 0)
    for mt in range(2):
        mf(V_AC + 8*mt, t2(mt, 2), V_D + 4, 1)
        mf(V_AC + 8*mt + 4, t2(mt, 1), V_D, 1)
    hi()
    def unpack(base):
        for part in range(2):
            b = base + 8*part
            for q in range(4):
                a(f'v_lshlrev_b32 v{b+2*q}, 16, v{b+4+q}')
                a(f'v_and_b32 v{b+2*q+1}, 0xffff0000, v{b+4+q}')
    unpack(V_W)
    a(f's_cmp_eq_u32 s{S_F}, 0')
    a('s_cbranch_scc1 KG_SPECIAL')
    for e in range(8):
        mt, r = e >> 2, e & 3
        ar, ai = V_AC + 8*mt + r, V_AC + 8*mt + 4 + r
        c_, s_ = V_W + e, V_W + 8 + e
        if PKM:
            if r & 1 == 0: cmul2(ar, ai, c_, s_)
            continue
        uu = V_U + (r & 1) * 2
        a(f'v_mul_f32 v{uu}, v{ar}, v{c_}')
        a(f'v_mul_f32 v{uu+1}, v{ar}, v{s_}')
        a(f'v_fma_f32 v{ar}, -v{ai}, v{s_}, v{uu}')
        a(f'v_fma_f32 v{ai}, v{ai}, v{c_}, v{uu+1}')
    a.label('KG_STEP3')
    for mt in range(2):
        for part in range(2):
            for q in range(2):
                src = V_AC + 8*mt + 4*part + 2*q
                a(f'v_cvt_pk_bf16_f32 v{V_D+4*part+2*mt+q}, v{src}, v{src+1}')
    lo()
    a('s_nop 1')
    for mt in range(2):
        mf(V_AC + 8*mt, V_D, t2(mt, 0), 0)
        mf(V_AC + 8*mt + 4, V_D + 4, t2(mt, 0), 0)
    for mt in range(2):
        mf(V_AC + 8*mt, V_D + 4, t2(mt, 1), 1)
        mf(V_AC + 8*mt + 4, V_D, t2(mt, 2), 1)
    hi()
    if HTB: a('s_nop 7')
    else:
        a(f'v_mul_u32_u24 v{V_A1}, 144, v{V_I}')
        a(f'v_add_u32 v{V_A1}, {L_CPR}, v{V_A1}')
        a(f's_lshl_b32 s{S_T0}, s{S_FW}, 5')
        a(f'v_lshl_add_u32 {u(4)}, v{V_G}, 3, v{V_A1}')
        a(f'v_add_u32 {u(4)}, s{S_T0}, {u(4)}')
    a('s_waitcnt vmcnt(0)')
    a('s_nop 4')
    cmul_pack(V_D)
    for mt in range(2):
        a(f'ds_write_b64 {ad(3)}, {vr(V_D+4*mt,2)} offset:{2304*mt}')
        a(f'ds_write_b64 {ad(3)}, {vr(V_D+4*mt+2,2)} offset:{L_CPI-L_CPR+2304*mt}')
    sync(F_SY1)
    xs_('sy1')
    if not HTB:
        a(f's_mul_i32 s{S_T0}, s{S_NH}, 2304')
        a(f'v_lshl_add_u32 {u(4)}, v{V_G}, 4, v{V_A1}')
        a(f'v_add_u32 {u(4)}, s{S_T0}, {u(4)}')
    for part in range(2):
        for ks in range(2):
            a(f'ds_read_b128 {vr(V_D+8*part+4*ks,4)}, {ad(4)} offset:{(L_CPI-L_CPR)*part+64*ks}')
    lo()
    a('s_waitcnt lgkmcnt(0)')
    for ks in range(2):
        for nt in range(2):
            mf(V_AC + 8*nt, t1(nt, ks, 0), zr(ks), ks)
            mf(V_AC + 8*nt + 4, t1(nt, ks, 0), zi(ks), ks)
        for nt in range(2):
            mf(V_AC + 8*nt, t1(nt, ks, 1), zi(ks), 1)
            mf(V_AC + 8*nt + 4, t1(nt, ks, 2), zr(ks), 1)
    hi()
    if HTB: a('s_nop 1')
    else:
        a(f'v_lshlrev_b32 {u(4)}, 7, v{V_I}')
        a(f'v_lshl_add_u32 {u(4)}, v{V_G}, 4, {u(4)}')
    a(f's_lshl_b32 s{S_T0}, s{S_F}, 13')
    a(f's_lshl_b32 s{S_T1}, s{S_NH}, 11')
    a(f's_add_u32 s{S_T0}, s{S_T0}, s{S_T1}')
    a(f's_lshl_b32 s{S_T1}, s{S_MH}, 6')
    a(f's_add_u32 s{S_T0}, s{S_T0}, s{S_T1}')
    a(f's_add_u32 s{S_T0}, s{S_T0}, {WS_Y1T}')
    a(f's_add_u32 s{S_T1}, s{S_T0}, 4096')
    for part in range(2):
        for nt in range(2):
            for q in range(2):
                src = V_AC + 8*nt + 4*part + 2*q
                a(f'v_cvt_pk_bf16_f32 v{V_D+4*part+2*nt+q}, v{src}, v{src+1}')
    for part in range(2):
        a(f'buffer_store_dwordx4 {vr(V_D+4*part,4)}, {ad(0)}, {ws}, s{S_T0+part} offen{SC}')
    xs_('y1st')
    join_flag(F_J2, 4, WS_FL3, ONE)
    stamp(8)
    if E('NOHELP', 0) == 2:
        dump()
        a('s_endpgm')

    AB, AA, LF, FR = 16, 32, 32, 64
    NFR = 14
    AX, FI, FW = 48, 64, 128
    V_DM, V_RA, V_RY, V_OUT, V_GT, V_DW = 120, 121, 122, 123, 124, 125
    S_MI, S_NI = S_CT, S_A
    a(f's_lshr_b32 s{S_MI}, s{S_HW}, 1')
    a(f's_and_b32 s{S_NI}, s{S_HW}, 1')
    srd(a, R_A, S_WO, 512 * 1024)
    srd(a, R_OUT, S_OUT, 2048 * 1024)
    V_DW2, V_GT2, V_RA2, V_RY2 = (126, 127, V_RA, V_A3) if HTB else (V_DW, V_GT, V_RA, V_RY)
    S_OO = S_MH
    if HTB:
        a(f's_add_u32 s{S_AD}, s{S_AD}, 3072')
        a(f'buffer_load_dwordx4 {vr(V_GT,4)}, v{V_L16}, {tb}, s{S_AD} offen offset:1024')
        a(f'buffer_load_dwordx4 {vr(V_DM,4)}, v{V_L16}, {tb}, s{S_AD} offen')
        a(f'buffer_load_dwordx4 {vr(LF,4)}, v{V_L16}, {tb}, s{S_AD} offen offset:2048')
        a(f's_sub_u32 s{S_AD}, s{S_AD}, 2048')
        a(f'buffer_load_dword v{V_RY2}, v{V_L16}, {tb}, s{S_AD} offen offset:4')
    table_srd(a, R_TB, 'TAB_FINV', 512 * 1024, 'fi')
    if not HTB: a(f'v_lshrrev_b32 {u(0)}, 3, v0')
    if not HTB: a(f'v_and_b32 {u(1)}, 7, v0')
    if not HTB: a(f'v_and_b32 {u(2)}, 1, v{V_G}')
    if not HTB: a(f'v_lshlrev_b32 {u(3)}, 2, {u(2)}')
    if not HTB: a(f'v_xor_b32 {u(3)}, {u(3)}, {u(1)}')
    if not HTB: a(f'v_lshlrev_b32 {u(3)}, 4, {u(3)}')
    if not HTB: a(f'v_lshl_add_u32 {u(4)}, {u(0)}, 10, {u(3)}')
    if not HTB: a(f'v_mov_b32 v{V_DW}, {u(4)}')
    a(f's_lshl_b32 s{S_T3}, s{S_HW}, 14')
    if not HTB: a(f'v_lshl_add_u32 v{V_DM}, {u(0)}, 12, {u(3)}')
    if not HTB: a(f'v_and_b32 {u(0)}, 31, v0')
    if not HTB: a(f'v_lshrrev_b32 {u(1)}, 5, v0')
    if not HTB: a(f'v_bfe_u32 {u(3)}, v0, 2, 2')
    if not HTB: a(f'v_and_b32 {u(4)}, 3, v0')
    if not HTB: a(f'v_lshrrev_b32 {u(5)}, 1, {u(4)}')
    if not HTB: a(f'v_and_b32 {u(4)}, 1, {u(4)}')
    if not HTB: a(f'v_lshrrev_b32 {u(6)}, 1, {u(3)}')
    if not HTB: a(f'v_lshlrev_b32 {u(6)}, 2, {u(6)}')
    if not HTB: a(f'v_lshl_add_u32 {u(7)}, {u(4)}, 1, {u(2)}')
    if not HTB: a(f's_lshl_b32 s{S_T0}, s{S_MI}, 2')
    if not HTB: a(f'v_add_u32 {u(7)}, s{S_T0}, {u(7)}')
    if not HTB: a(f'v_xor_b32 {u(7)}, {u(7)}, {u(6)}')
    if not HTB: a(f'v_lshlrev_b32 {u(7)}, 4, {u(7)}')
    if not HTB: a(f'v_lshl_add_u32 {u(7)}, {u(5)}, 3, {u(7)}')
    if not HTB: a(f'v_lshl_add_u32 v{V_RA}, {u(1)}, 2, {u(3)}')
    if not HTB: a(f'v_lshl_add_u32 v{V_RA}, v{V_RA}, 7, {u(7)}')
    if not HTB: a(f'v_lshl_add_u32 {u(7)}, {u(2)}, 1, {u(5)}')
    if not HTB: a(f's_lshl_b32 s{S_T0}, s{S_NI}, 2')
    if not HTB: a(f'v_add_u32 {u(7)}, s{S_T0}, {u(7)}')
    if not HTB: a(f'v_xor_b32 {u(7)}, {u(7)}, {u(6)}')
    if not HTB: a(f'v_lshlrev_b32 {u(7)}, 4, {u(7)}')
    if not HTB: a(f'v_lshl_add_u32 {u(7)}, {u(4)}, 3, {u(7)}')
    if not HTB: a(f'v_lshl_add_u32 v{V_RY}, {u(1)}, 3, {u(3)}')
    if not HTB: a(f'v_lshl_add_u32 v{V_RY}, v{V_RY}, 7, {u(7)}')
    if not HTB: a(f'v_add_u32 v{V_RY}, {L_Y}, v{V_RY}')
    if not HTB: a(f'v_bfe_u32 {u(5)}, {u(0)}, 2, 1')
    if not HTB: a(f'v_lshrrev_b32 {u(6)}, 3, {u(0)}')
    if not HTB: a(f'v_and_b32 {u(7)}, 3, {u(0)}')
    if not HTB: a(f'v_lshl_add_u32 {u(7)}, {u(5)}, 4, {u(7)}')
    if not HTB: a(f'v_lshl_add_u32 {u(7)}, {u(6)}, 2, {u(7)}')
    if not HTB: a(f'v_lshlrev_b32 {u(7)}, 15, {u(7)}')
    if not HTB: a(f'v_lshl_add_u32 {u(7)}, {u(1)}, 5, {u(7)}')
    a(f's_lshl_b32 s{S_T0}, s{S_NI}, 20')
    a(f's_lshl_b32 s{S_T1}, s{S_QG}, 10')
    a(f's_add_u32 s{S_T0}, s{S_T0}, s{S_T1}')
    a(f's_lshl_b32 s{S_T1}, s{S_HG}, 7')
    a(f's_add_u32 s{S_T0}, s{S_T0}, s{S_T1}')
    a(f's_lshl_b32 s{S_T1}, s{S_MI}, 6')
    a(f's_add_u32 s{S_T0}, s{S_T0}, s{S_T1}')
    if HTB: a(f's_mov_b32 s{S_OO}, s{S_T0}')
    else: a(f'v_add_u32 v{V_OUT}, s{S_T0}, {u(7)}')
    if not HTB: a(f'v_lshlrev_b32 v{V_GT}, 2, {u(0)}')
    S_FI = S_KOFF
    a(f's_lshl_b32 s{S_FI}, s{S_HG}, 16')
    a(f's_lshl_b32 s{S_T0}, s{S_MI}, 10')
    a(f's_add_u32 s{S_FI}, s{S_FI}, s{S_T0}')
    def fload(i):
        if i % 2 == 0:
            a(f's_add_u32 s{S_KB}, s{S_FI}, {i*2048}')
        a(f'buffer_load_dwordx4 {vr(FR+4*(i%NFR),4)}, v{V_L16}, {tb}, s{S_KB} offen offset:{(i%2)*2048}')
    for i in range(NFR):
        fload(i)
        thr()
    if FI_TOUCH:
        a(f'v_lshlrev_b32 {u(0)}, 7, v0')
        a(f'v_and_b32 {u(1)}, 0x1c00, {u(0)}')
        a(f'v_add_u32 {u(0)}, {u(0)}, {u(1)}')
        for k in range(3):
            a(f's_add_u32 s{S_KB}, s{S_FI}, {(8+8*k)*2048}')
            a(f'buffer_load_dword v{FW+k}, {u(0)}, {tb}, s{S_KB} offen')
    xs_('fiq')
    lds_wait(F_J2, 4, V_U, sleep=2)
    pg_wait(4, 2, pa=PGA)
    xs_('pg4')
    if HTB: a(f's_waitcnt vmcnt({NFR})')
    a(f's_lshl_b32 s{S_T2}, s{S_HW}, 17')
    a(f's_lshl_b32 s{S_T0}, s{S_HG}, 7')
    a(f's_add_u32 s{S_T2}, s{S_T2}, s{S_T0}')
    a(f's_add_u32 s{S_T1}, s{S_T3}, {L_WQ}')
    a(f's_cmp_eq_u32 s{S_HW}, 2')
    a(f's_cselect_b32 s{S_T1}, {L_KW}, s{S_T1}')
    a(f's_cmp_eq_u32 s{S_HW}, 3')
    a(f's_cselect_b32 s{S_T1}, s{S_T3}, s{S_T1}')
    for i in range(16):
        a(f's_add_u32 m0, s{S_T1}, {i*1024}')
        a(f's_add_u32 s{S_T0}, s{S_T2}, {i*8192}')
        a(f'buffer_load_dwordx4 v{V_DW}, {ra}, s{S_T0} offen lds')
        thr()
    if not HTB:
        a(f's_mov_b32 s{S_T0}, {L_WQ}')
        a(f's_mov_b32 s{S_T1}, {L_WQ + 16384}')
        a(f's_cmp_eq_u32 s{S_MI}, 1')
        a(f's_cselect_b32 s{S_T0}, {L_KW}, s{S_T0}')
        a(f's_cselect_b32 s{S_T1}, 49152, s{S_T1}')
        a(f'v_add_u32 v{LF}, s{S_T0}, v{V_RA}')
        a(f'v_add_u32 v{LF+2}, s{S_T1}, v{V_RA}')
        a(f'v_xor_b32 v{LF+1}, 64, v{LF}')
        a(f'v_xor_b32 v{LF+3}, 64, v{LF+2}')
    a('s_waitcnt vmcnt(0)')
    sync(F_J4)
    xs_('j4')
    def fw(j, t_, o): return FW + 64*t_ + 8*j + 4*o
    for t_ in range(2):
        for j in range(8):
            i = 2*j + t_
            for o in range(2):
                ad = LF + 2*(i >> 3) + o
                a(f'ds_read_b64_tr_b16 {vr(fw(j,t_,o),2)}, v{ad} offset:{(i&7)*2048}')
                a(f'ds_read_b64_tr_b16 {vr(fw(j,t_,o)+2,2)}, v{ad} offset:{(i&7)*2048+1024}')
    a('s_waitcnt lgkmcnt(0)')
    lds_add(F_WR, V_U, ONE)
    xs_('wr')
    if TST: stamp(6)
    a(f's_cmp_lg_u32 s{S_HW}, 1')
    a('s_cbranch_scc1 KG_S2W')
    a(f's_mov_b32 s{S_T1}, {WS_FL3}')
    glob_poll('S2', -1, S2_SLEEP)
    if HTB: a(f'ds_write_b32 v{V_Z}, v{ONE} offset:{4*F_S2OK}')
    else:
        a(f'v_mov_b32 {u(1)}, 1')
        a(f'ds_write_b32 v{V_Z}, {u(1)} offset:{4*F_S2OK}')
    a.label('KG_S2W')
    xs_('s2w')
    pg_wait(6, 4, pa=PGA)
    xs_('pg6')
    lds_wait(F_WR, 4, V_U, sleep=4)
    lds_wait(F_S2OK, 1, V_U, sleep=4)
    if not BST: stamp(9)
    a(f's_lshl_b32 s{S_T2}, s{S_HW}, 19')
    a(f's_lshl_b32 s{S_T0}, s{S_QG}, 7')
    a(f's_add_u32 s{S_T2}, s{S_T2}, s{S_T0}')
    a(f's_add_u32 s{S_T2}, s{S_T2}, {WS_Y1T}')
    for i in range(16):
        a(f's_add_u32 m0, s{S_T3}, {L_Y + i*1024}')
        a(f's_add_u32 s{S_T0}, s{S_T2}, {i*32768}')
        a(f'buffer_load_dwordx4 v{V_DM}, {ws}, s{S_T0} offen{SC} lds')
        thr()
    a(f's_lshl_b32 s{S_T0}, s{S_QG}, 8')
    a(f's_lshl_b32 s{S_T1}, s{S_NI}, 7')
    a(f's_add_u32 s{S_T0}, s{S_T0}, s{S_T1}')
    a(f's_add_u32 s{S_T0}, s{S_T0}, {WS_G}')
    a(f'buffer_load_dword v{V_DM if HTB else V_GT}, v{V_GT}, {ws}, s{S_T0} offen{SC}')
    a('s_waitcnt vmcnt(0)')
    xs_('yld')
    sync(F_J3)
    xs_('j3')
    def lread(i, addr, second):
        a(f'ds_read_b64_tr_b16 {vr(LF+4*(i%8),2)}, v{addr} offset:{i*2048}')
        a(f'ds_read_b64_tr_b16 {vr(LF+4*(i%8)+2,2)}, v{addr} offset:{i*2048+second}')
    if PRI & 2: a('s_setprio 0')
    for i in range(6):
        lread(i, V_RY, 512)
    for i in range(32):
        if i >= NFR:
            a(f's_waitcnt vmcnt({min(31, i+NFR-1)-i}) lgkmcnt({2*min(5, 31-i)})')
        else:
            a(f's_waitcnt lgkmcnt({2*min(5, 31-i)})')
        cc = vr(AB, 16) if i else '0'
        a(f'v_mfma_f32_32x32x16_bf16 {vr(AB,16)}, {vr(FR+4*(i%NFR),4)}, {vr(LF+4*(i%8),4)}, {cc}')
        if i + NFR < 32: fload(i + NFR)
        if i + 6 < 32: lread(i + 6, V_RY, 512)
    if PRI & 2: a('s_setprio 2')
    stamp(10)
    if E('NOHELP', 0) == 3:
        dump()
        a('s_endpgm')
    a(f's_lshl_b32 s{S_T2}, s{S_QG}, 1')
    a(f's_add_u32 s{S_T2}, s{S_T2}, s{S_NI}')
    a(f's_lshl_b32 s{S_T2}, s{S_T2}, 1')
    a(f's_add_u32 s{S_T2}, s{S_T2}, s{S_MI}')
    a(f's_lshl_b32 s{S_T2}, s{S_T2}, 14')
    SBK = [R_X, R_X+1, R_X+2, R_X+3]
    S_PD = S_P
    for k in range(4):
        a(f's_add_u32 s{SBK[k]}, s{S_T2}, {WS_O + 4096*k}')
    a(f'v_sub_f32 {u(1)}, 1.0, v{V_DM if HTB else V_GT}')
    if HTB == 2:
        a(f's_mov_b32 s{S_T0}, {512 * 1024}')
        for i in range(8):
            a(f'buffer_load_dwordx4 {vr(AA+4*i,4)}, v{V_L16}, {tb}, s{S_T0} offen')
        a('s_nop 4')
    else:
        for i in range(4):
            a(f'v_mov_b32 {u(4+i)}, 0')
        a('s_nop 1')
        for r_ in (AA, AX):
            a(f'v_mfma_f32_32x32x16_bf16 {vr(r_,16)}, {vr(V_U+4,4)}, {vr(V_U+4,4)}, 0')
    for i in range(8):
        a(f'v_pk_mul_f32 {vr(AB+2*i,2)}, {vr(AB+2*i,2)}, {vr(V_U,2)} op_sel:[0,1] op_sel_hi:[1,1]')
    if not HTB:
        a(f'v_mov_b32 v{V_DM}, v{V_GT}')
        a(f's_lshl_b32 s{S_T0}, s{S_HW}, 2')
        a(f'v_add_u32 v{V_DW}, s{S_T0}, v{V_Z}')
        a(f'v_xor_b32 v{V_GT}, 8, v{V_DW}')
        a(f's_lshl_b32 s{S_T0}, s{S_HW}, 12')
        a(f's_add_u32 s{S_T0}, s{S_T0}, {L_EX}')
        a(f'v_add_u32 v{V_RA}, s{S_T0}, v{V_L16}')
        a(f'v_xor_b32 v{V_RY}, 0x2000, v{V_RA}')
    def oload(p_, t_):
        a(f'buffer_load_dwordx4 {vr(FI+4*p_,4)}, v{V_L16}, {ws}, s{SBK[p_>>1]} offen offset:{(p_%2)*2048+1024*t_}{OLD}')
    def ocheck(p_, t_, k):
        if DRY:
            a(f'v_cmp_ne_u32 vcc, -1, v{FI+4*p_+3}')
            a('s_cmp_eq_u64 vcc, -1')
            a(f's_cbranch_scc0 KG_OC{t_}{k}_{p_}')
        else:
            a(f'v_cmp_eq_u32 vcc, -1, v{FI+4*p_+3}')
            a(f's_cbranch_vccnz KG_OC{t_}{k}_{p_}')
        a(f'v_mfma_f32_32x32x16_bf16 {vr(AX,16)}, {vr(fw(p_,t_,1),4)}, {vr(FI+4*p_,4)}, {vr(AX,16)}')
        a(f'v_mfma_f32_32x32x16_bf16 {vr(AA,16)}, {vr(fw(p_,t_,0),4)}, {vr(FI+4*p_,4)}, {vr(AA,16)}')
        a(f's_bitset0_b32 s{S_PD}, {p_}')
        a.label(f'KG_OC{t_}{k}_{p_}')
    def pend_each(tag, fn):
        for g in range(2):
            a(f's_and_b32 s{S_T0}, s{S_PD}, {hex(0xf << (4*g))}')
            a(f's_cbranch_scc0 KG_OG{tag}_{g}')
            for p_ in range(4*g, 4*g + 4):
                a(f's_bitcmp1_b32 s{S_PD}, {p_}')
                a(f's_cbranch_scc0 KG_OP{tag}_{p_}')
                fn(p_)
                a.label(f'KG_OP{tag}_{p_}')
            a.label(f'KG_OG{tag}_{g}')
    S_PL = S_KH
    a(f's_mov_b32 s{S_PL}, {POLL_LIMIT}')
    if DRY:
        a(f's_cmp_ge_u32 s{S_HW}, {DRY}')
        a('s_cbranch_scc1 KG_OS')
        a(f'v_mov_b32 {u(0)}, 64')
        a(f's_mov_b32 s{S_PL}, 1')
        a('s_mov_b64 exec, 0')
        a('s_branch KG_OS')
        a.label('KG_REAL')
        a('s_mov_b64 exec, -1')
        a(f's_mov_b32 s{S_PL}, {POLL_LIMIT}')
        a.label('KG_OS')
    for t_ in range(2):
        a(f's_movk_i32 s{S_PD}, 0xff')
        a(f's_mov_b32 s{S_CNT}, s{S_PL}')
        if t_ == 0:
            if not BST: stamp(4)
            lds_wait(F_ADONE, 1, V_U, sleep=4)
            if not BST: stamp(3)
        elif O1W == 1:
            lds_wait(F_PGW, 10, V_U, sleep=1, addr=V_DW2)
            stamp(11)
        elif O1W == 2:
            pg_wait(10, 1)
            stamp(11)
        for p_ in range(8):
            oload(p_, t_)
        for p_ in range(8):
            a(f's_waitcnt vmcnt({7-p_})')
            if TST == 2 and t_ and p_ in (0, 4): stamp(7 if p_ == 0 else 6)
            ocheck(p_, t_, 0)
        if TST and t_: stamp(1)
        a.label(f'KG_OR{t_}')
        a(f's_cmp_eq_u32 s{S_PD}, 0')
        a(f's_cbranch_scc1 KG_OD{t_}')
        a(f's_sub_u32 s{S_CNT}, s{S_CNT}, 1')
        a(f's_cbranch_scc1 KG_OD{t_}')
        sl = O_SLEEP if t_ == 0 else O_SLEEP1
        if sl: a(f's_sleep {sl}')
        pend_each(f'L{t_}', lambda p_: oload(p_, t_))
        a('s_waitcnt vmcnt(0)')
        pend_each(f'C{t_}', lambda p_: ocheck(p_, t_, 1))
        a(f's_branch KG_OR{t_}')
        a.label(f'KG_OD{t_}')
        if t_ == 0: stamp(5)
        elif TST: stamp(2)
    a(f'v_mov_b32 {u(1)}, 1')
    a('s_nop 7')
    for q in range(4):
        a(f'ds_write_b128 v{V_RA2}, {vr(AX+4*q,4)} offset:{1024*q}')
    a(f'ds_write_b32 v{V_DW2}, {u(1)} offset:{4*F_EX}')
    def ex_reads():
        a(f'ds_read_b32 {u(0)}, v{V_GT2} offset:{4*F_EX}')
        for q in range(4):
            a(f'ds_read_b128 {vr(FI+4*q,4)}, v{V_RY2} offset:{1024*q}')
    ex_reads()
    for i in range(8):
        a(f'v_pk_fma_f32 {vr(AB+2*i,2)}, {vr(AA+2*i,2)}, {vr(V_DM,2)}, {vr(AB+2*i,2)} op_sel_hi:[1,0,1]')
    if TST == 2: stamp(10)
    a.label('KG_EXL')
    a('s_waitcnt lgkmcnt(4)' if TST != 2 else 's_waitcnt lgkmcnt(0)')
    a(f'v_readfirstlane_b32 s{S_T0}, {u(0)}')
    a(f's_cmp_lg_u32 s{S_T0}, 0')
    a('s_cbranch_scc1 KG_EXD')
    ex_reads()
    a(f's_sub_u32 s{S_LIM}, s{S_LIM}, 1')
    a('s_cbranch_scc0 KG_EXL')
    a.label('KG_EXD')
    if TST == 2: stamp(8)
    for i in range(8):
        if i % 2 == 0: a(f's_waitcnt lgkmcnt({3 - i//2})')
        a(f'v_pk_fma_f32 {vr(AA+2*i,2)}, {vr(FI+2*i,2)}, {vr(V_DM,2)}, {vr(AB+2*i,2)} op_sel_hi:[1,0,1]')
    for i in range(8):
        a(f'v_cvt_pk_bf16_f32 v{LF+i}, v{AA+2*i}, v{AA+2*i+1}')
    for q in range(2):
        a(f'buffer_store_dwordx4 {vr(LF+4*q,4)}, v{V_OUT}, {sr(R_OUT,4)}, {"s%d" % S_OO if HTB else 0} offen offset:{16*q}{OUTSC}')
    if DRY: a('s_cbranch_execz KG_REAL')
    if TST == 2: stamp(9)
    dump()
    a('s_endpgm')

    SG, SL, SD = 168, 176, 184
    a.label('KG_SPA')
    a(f's_mov_b32 s{S_T0}, {L_SP}')
    a(f's_mov_b32 s{S_T1}, {L_SPW}')
    for e in range(8):
        k_ = u(4 + (e & 1))
        a(f'v_sub_u32 {k_}, {2048 - 64*(e&3) - 1024*(e>>2)}, v{V_A3}')
        a(f'v_and_b32 {k_}, 2047, {k_}')
        a(f'v_lshl_add_u32 v{SL+e}, {k_}, 2, s{S_T0}')
        a(f'v_lshl_add_u32 v{SG+e}, {k_}, 3, s{S_T1}')
    a('s_branch KG_SPAR')
    a.label('KG_SPB')
    a(f's_mov_b32 s{S_C0}, 0x05040100')
    a(f's_mov_b32 s{S_C0+1}, 0x07060302')
    a(f's_mov_b32 s{S_T1}, {L_SPW}')
    a(f'v_lshl_add_u32 {u(4)}, v{V_A3}, 3, s{S_T1}')
    a('s_waitcnt vmcnt(0)')
    for e in range(8):
        for j, base in enumerate((V_W, V_XX)):
            a(f'v_perm_b32 v{SD+2*e+j}, v{base+12+(e>>1)}, v{base+4+(e>>1)}, s{S_C0+(e&1)}')
        a(f'ds_write_b64 {u(4)}, {vr(SD+2*e,2)} offset:{512*(e&3) + 8192*(e>>2)}')
    a('s_branch KG_SPBR')
    a.label('KG_SPECIAL')
    for e in range(8):
        a(f'ds_read_b64 {vr(SD+2*e,2)}, v{SG+e}')
    a(f'v_lshlrev_b32 {u(4)}, 2, v{V_A3}')
    a(f'v_add_u32 {u(6)}, {L_SP}, {u(4)}')
    for e in range(8):
        mt, r = e >> 2, e & 3
        a(f'ds_write2st64_b32 {u(6)}, v{V_AC+8*mt+r}, v{V_AC+8*mt+4+r} offset0:{16*mt+r} offset1:{32+16*mt+r}')
    a(f'v_mov_b32 {u(0)}, 1')
    a('s_waitcnt lgkmcnt(0)')
    a('s_mov_b64 exec, 1')
    a(f'ds_add_u32 v{V_Z}, {u(0)} offset:{4*F_SY2}')
    a('s_mov_b64 exec, -1')
    unpack(V_XX)
    for e in range(8):
        a0r, a0i, a1r, a1i = V_W + e, V_W + 8 + e, V_XX + e, V_XX + 8 + e
        b0r, b0i, b1r, b1i = SD + 16, SD + 2*e, SD + 17, SD + 2*e + 1
        a(f'v_lshlrev_b32 v{b0r}, 16, v{b0i}')
        a(f'v_lshlrev_b32 v{b1r}, 16, v{b1i}')
        a(f'v_and_b32 v{b0i}, 0xffff0000, v{b0i}')
        a(f'v_and_b32 v{b1i}, 0xffff0000, v{b1i}')
        a(f'v_add_f32 v{b0r}, v{a0r}, v{b0r}')
        a(f'v_sub_f32 v{b0i}, v{a0i}, v{b0i}')
        a(f'v_add_f32 v{b1r}, v{a1r}, v{b1r}')
        a(f'v_sub_f32 v{b1i}, v{a1i}, v{b1i}')
        a(f'v_add_f32 v{a0r}, v{b0r}, v{b1r}')
        a(f'v_add_f32 v{a0i}, v{b0i}, v{b1i}')
        a(f'v_sub_f32 v{a1r}, v{b0r}, v{b1r}')
        a(f'v_sub_f32 v{a1i}, v{b0i}, v{b1i}')
    lds_wait(F_SY2, 4, V_U, sleep=1)
    for e in range(8):
        a(f'ds_read2st64_b32 {vr(V_D+2*e,2)}, v{SL+e} offset0:0 offset1:32')
    a(f's_mov_b32 s{S_T0}, {f32_bits(0.125)}')
    for e in range(8):
        mt, r = e >> 2, e & 3
        zr_, zi_ = V_AC + 8*mt + r, V_AC + 8*mt + 4 + r
        pr, pi_, mr, mi = V_W + e, V_W + 8 + e, V_XX + e, V_XX + 8 + e
        znr, zni = V_D + 2*e, V_D + 2*e + 1
        rr, ri = SD + 2*e, SD + 2*e + 1
        a(f'v_mul_f32 v{rr}, v{zr_}, v{pr}')
        a(f'v_mul_f32 v{ri}, v{zr_}, v{pi_}')
        a(f'v_fma_f32 v{rr}, -v{zi_}, v{pi_}, v{rr}')
        a(f'v_fma_f32 v{ri}, v{zi_}, v{pr}, v{ri}')
        a(f's_waitcnt lgkmcnt({7-e})')
        a(f'v_fma_f32 v{rr}, v{znr}, v{mr}, v{rr}')
        a(f'v_fma_f32 v{ri}, v{znr}, v{mi}, v{ri}')
        a(f'v_fma_f32 v{rr}, v{zni}, v{mi}, v{rr}')
        a(f'v_fma_f32 v{ri}, -v{zni}, v{mr}, v{ri}')
        a(f'v_mul_f32 v{zr_}, s{S_T0}, v{rr}')
        a(f'v_mul_f32 v{zi_}, s{S_T0}, v{ri}')
    a('s_branch KG_STEP3')
    a.label('KG_END')
    a('s_endpgm')
    return 256, (102 if ST in (5, 6, 7) else NS)

def gen_table_ad(a):
    v = []
    for hw in range(4):
        mh, nh = hw >> 1, hw & 1
        q = [[] for _ in range(6)]
        for l in range(64):
            i, g = l & 15, l >> 4
            q[0].append([128*i + 16*g, L_APR + 80*i + 16*g + 2560*mh + 8*nh, L_APR + 80*i + 16*g + 1280*hw, L_CPR + 144*i + 8*g + 32*hw])
            ra2 = L_EX + 4096*hw + 16*l
            q[1].append([L_CPR + 144*i + 16*g + 2304*nh, ra2 ^ 0x2000, 0, 0])
            q[2].append([1, L_FLAG + 4*F_PGW + 4*(l & 3), 256*g + i + 16*hw, 0])
            e, sl, half = l >> 3, l & 7, g & 1
            gs = ((4*half) ^ sl) * 16
            n, h, r, c = l & 31, l >> 5, (l >> 2) & 3, l & 3
            swz = (r >> 1) << 2
            ra = (4*h + r)*128 + (c >> 1)*8 + ((4*mh + 2*(c & 1) + half) ^ swz)*16
            ry = L_Y + (8*h + r)*128 + (c & 1)*8 + ((4*nh + 2*half + (c >> 1)) ^ swz)*16
            out = ((16*((n >> 2) & 1) + 4*(n >> 3) + (n & 3)) << 15) + 32*h
            q[3].append([4096*e + gs, ra2, ry, out])
            dw2 = L_FLAG + 4*hw
            q[4].append([4*n, 1024*e + gs, dw2, dw2 ^ 8])
            b0, b1 = (L_KW, 49152) if mh else (L_WQ, L_WQ + 16384)
            q[5].append([b0 + ra, (b0 + ra) ^ 64, b1 + ra, (b1 + ra) ^ 64])
        for k in range(6):
            for w in q[k]: v += w
    for i in range(0, len(v), 16):
        a.raw('.long ' + ','.join(str(x) for x in v[i:i+16]))

def build_g(path):
    a = Asm()
    hdr = open(f'cdna_kernels/{NAME}.s.ref').read().split('\n')
    for l in hdr:
        if l.startswith(';') and '@launch' not in l and 'Override launch' not in l and 'grid=ceil' not in l:
            a.raw(l)
    kn = NAME + '_kernel'
    if E('PLAIN', 0):
        a.raw(f'; @launch grid=(256,1,1) block=(512,1,1) lds={KG_LDS}')
    else:
        a.raw(f'; @launch kernel={kn} grid=(256,1,1) block=(512,1,1) lds={KG_LDS}')
    a.raw('.amdgcn_target "amdgcn-amd-amdhsa--gfx950"')
    a.raw('.text')
    v, s = gen_g(a, kn)
    a.raw('.section .rodata,"a"')
    kernel_desc(a, kn, v, s)
    gen_tables(a)
    gen_k2.gen_tables_k2(a)
    if HTB: gen_table_ad(a)
    gen_k3.gen_tables_k3(a)
    open(path, 'w').write(a.text())

if __name__ == '__main__':
    build_g(sys.argv[1] if len(sys.argv) > 1 else 'j.s')
```
